```python
import torch

def _softmax(x, axis=-1):
    return torch.softmax(x, dim=axis)
def _gelu(x):
    return torch.nn.functional.gelu(x, approximate="tanh")
def _silu(x):
    return torch.nn.functional.silu(x)
def _sigmoid(x):
    return torch.sigmoid(x)
def _layernorm(x, axis=-1, eps=1e-5):
    m = x.mean(dim=axis, keepdim=True)
    v = x.var(dim=axis, keepdim=True, unbiased=False)
    return (x - m) / torch.sqrt(v + eps)
def _scatter_add(tgt, idx, src, axis=0):
    return tgt.clone().index_add_(axis, idx, src)
def _segment_sum(src, seg, n):
    out = torch.zeros((n,) + src.shape[1:], dtype=src.dtype)
    return out.index_add_(0, seg, src)
def _pad(x, pw):
    flat = tuple(v for pair in reversed(pw) for v in pair)
    return torch.nn.functional.pad(x, flat)

kernel_name = 'parallel_sum__softmax_full_mha__dense_activation_squared_relu__prompt'

def setup_inputs():

    _w = (lambda a: (lambda t: t.to(torch.bfloat16) if t.is_floating_point() else t)(torch.as_tensor(a)))
    def _A_setup():
        B, S, D = 1, 2048, 640
        return {
            "x": _w((lambda *s: torch.randn(*s, dtype=torch.bfloat16) * 0.05)(B, S, D)),
            "wqkv": _w((lambda *s: torch.randn(*s, dtype=torch.bfloat16) * 0.2)(D, 3 * D)),
            "wo": _w((lambda *s: torch.randn(*s, dtype=torch.bfloat16) * 0.1)(D, D)),
        }
    _A_in = _A_setup()

    def _B_setup():
        B, S, D, F = 1, 2048, 640, 1728
        return {
            "x": _w((lambda *s: torch.randn(*s, dtype=torch.bfloat16) * 0.05)(B, S, D)),
            "w1": _w((lambda *s: torch.randn(*s, dtype=torch.bfloat16) * 0.1)(D, F)),
            "b1": _w((lambda *s: torch.randn(*s, dtype=torch.bfloat16) * 0.1)(F)),
            "w2": _w((lambda *s: torch.randn(*s, dtype=torch.bfloat16) * 0.1)(F, D)),
            "b2": _w((lambda *s: torch.randn(*s, dtype=torch.bfloat16) * 0.1)(D)),
        }
    _B_in = _B_setup()

    return {
        "A_x": _A_in["x"],
        "A_wqkv": _A_in["wqkv"],
        "A_wo": _A_in["wo"],
        "B_x": _B_in["x"],
        "B_w1": _B_in["w1"],
        "B_b1": _B_in["b1"],
        "B_w2": _B_in["w2"],
        "B_b2": _B_in["b2"],
    }

def reference(A_x, A_wqkv, A_wo, B_x, B_w1, B_b1, B_w2, B_b2):
    def _A_ref(x, wqkv, wo):
        B, S, D = x.shape
        H = 32; Dh = D // H
        qkv = (lambda x, *d: x.permute(*d))((x @ wqkv).reshape(B, S, 3, H, Dh), 2, 0, 3, 1, 4)
        q, k, v = qkv[0], qkv[1], qkv[2]
        scale = Dh ** -0.5
        scores = torch.einsum("bhqd,bhkd->bhqk", q, k) * scale
        p = _softmax(scores, axis=-1)
        o = torch.einsum("bhqk,bhkd->bhqd", p, v)
        return (lambda x, *d: x.permute(*d))(o, 0, 2, 1, 3).reshape(B, S, D) @ wo

    def _B_ref(x, w1, b1, w2, b2):
        h = torch.einsum("bsd,df->bsf", x, w1) + b1
        zero = torch.zeros_like(h)
        r = torch.where(h > zero, h, zero)
        h = r * r
        out = torch.einsum("bsf,fd->bsd", h, w2) + b2
        return out

    x = A_x
    xn = _layernorm(x, axis=-1)
    return x + _A_ref(xn, A_wqkv, A_wo) + _B_ref(xn, B_w1, B_b1, B_w2, B_b2)
```

```python
NAME = "parallel_sum__softmax_full_mha__dense_activation_squared_relu__prompt"

S, D, F, H, DH = 2048, 640, 1728, 32, 20
CH = 32768
C_Q, C_K, C_H, C_O = 0, 80, 160, 376
WS_V = 456 * CH
WS_WT = WS_V + 64 * 4 * 10240
WS_END = WS_WT + 148 * 20 * 1024
WS_DBG = 24 * 1024 * 1024
WS_SIZE = 268435456


class Asm:
    def __init__(self):
        self.lines = []

    def __call__(self, text):
        for ln in text.strip("\n").split("\n"):
            ln = ln.strip()
            if not ln:
                continue
            if ln.endswith(":") or ln.startswith("."):
                self.lines.append(ln)
            else:
                self.lines.append("    " + ln)

    def text(self):
        return "\n".join(self.lines) + "\n"


def vr(base, n=1):
    return f"v{base}" if n == 1 else f"v[{base}:{base + n - 1}]"


def sr(base, n=1):
    return f"s{base}" if n == 1 else f"s[{base}:{base + n - 1}]"


class Regs:
    def __init__(self, start=0, limit=256):
        self.next = start
        self.limit = limit

    def get(self, n=1, align=None):
        if align is None:
            align = 1 if n == 1 else 2
        self.next = (self.next + align - 1) // align * align
        r = self.next
        self.next += n
        assert self.next <= self.limit, f"out of VGPRs: {self.next}"
        return r


def srd(a, d, base, nbytes):
    a(f"""
    s_mov_b32 s{d}, s{base}
    s_mov_b32 s{d + 1}, s{base + 1}
    s_mov_b32 s{d + 2}, {nbytes}
    s_mov_b32 s{d + 3}, 0x00020000
    """)


def swap23(a, dst, src, t0, t1):
    a(f"""
    v_lshrrev_b32 v{t0}, 1, v{src}
    v_xor_b32 v{t0}, v{t0}, v{src}
    v_and_b32 v{t0}, 4, v{t0}
    v_lshlrev_b32 v{t1}, 1, v{t0}
    v_or_b32 v{t0}, v{t0}, v{t1}
    v_xor_b32 v{dst}, v{t0}, v{src}
    """)


def kernel_header(label):
    return f""".globl {label}
.p2align 8
.type {label},@function
{label}:
"""


def kernel_desc(label, vgpr, sgpr=96):
    acc = (vgpr + 3) // 4 * 4
    return f""".p2align 6
.amdhsa_kernel {label}
  .amdhsa_next_free_vgpr {vgpr}
  .amdhsa_next_free_sgpr {sgpr}
  .amdhsa_accum_offset {acc}
  .amdhsa_group_segment_fixed_size 0
  .amdhsa_kernarg_size 88
  .amdhsa_user_sgpr_count 2
  .amdhsa_user_sgpr_kernarg_segment_ptr 1
  .amdhsa_system_sgpr_workgroup_id_x 1
.end_amdhsa_kernel
"""


def stamp(a, prof, idx, sbase=80):
    if prof:
        a(f"s_memtime s[{sbase + 2 * idx}:{sbase + 2 * idx + 1}]")
        if idx == 0:
            a("s_memrealtime s[76:77]")
```

```python
import math
import struct
from common import *

LDS_X = 0
LDS_W = 3 * 16384
LDS_ST = LDS_W + 4 * 3 * 8192
K1_LDS = LDS_ST + 1024 + 2048
QSCALE = struct.unpack("<I", struct.pack("<f", math.log2(math.e) / math.sqrt(20.0)))[0]
INV_D = struct.unpack("<I", struct.pack("<f", 1.0 / 640.0))[0]
EPS = struct.unpack("<I", struct.pack("<f", 1e-5))[0]

sX, sW, sWS, sB = 24, 28, 32, 36
s_rb, s_cg, s_w, s_u, s_str, s_wo, s_xo, s_wl, s_xl, s_c, s_str32 = 40, 41, 42, 43, 44, 45, 46, 47, 48, 49, 50
s_t0, s_t1, s_t2, s_t3 = 52, 53, 54, 55


def gen_k1(label, prof=False):
    a = Asm()
    R = Regs(1)
    vL = R.get()
    T = [R.get() for _ in range(6)]
    S1, S2 = R.get(), R.get()
    SI = R.get()
    AW = [R.get(), R.get()]
    VW = [R.get() for _ in range(4)]
    SA = R.get(4)
    CSD = R.get(4)
    AX = [[R.get() for _ in range(4)] for _ in range(4)]
    VX = [R.get() for _ in range(4)]
    BR = AX[1][0]
    tmp0 = R.get(0, 2)
    XF = [[R.get(4) for _ in range(4)] for _ in range(2)]
    WF = [R.get(8) for _ in range(2)]
    EX = R.get(32)
    ACC = R.get(128)
    nv = R.next

    def acc(tt, ct):
        return ACC + (tt * 2 + ct) * 16

    a(f"""
    s_cmp_ge_u32 s2, 256
    s_cbranch_scc1 {label}_end
    s_load_dwordx16 s[4:19], s[0:1], 0
    s_load_dwordx2 s[20:21], s[0:1], 80
    """)
    stamp(a, prof, 0)
    a(f"""
    v_and_b32 v{vL}, 63, v0
    v_lshrrev_b32 v{T[0]}, 6, v0
    s_and_b32 s{s_t0}, s2, 7
    v_readfirstlane_b32 s{s_w}, v{T[0]}
    s_lshr_b32 s{s_t1}, s2, 3
    s_and_b32 s{s_rb}, s{s_t0}, 1
    s_lshl_b32 s{s_rb}, s{s_rb}, 3
    s_and_b32 s{s_t2}, s{s_t1}, 7
    s_add_u32 s{s_rb}, s{s_rb}, s{s_t2}
    s_lshr_b32 s{s_cg}, s{s_t0}, 1
    s_lshl_b32 s{s_cg}, s{s_cg}, 2
    s_lshr_b32 s{s_t2}, s{s_t1}, 3
    s_add_u32 s{s_cg}, s{s_cg}, s{s_t2}
    s_lshl_b32 s{s_u}, s{s_cg}, 2
    s_add_u32 s{s_u}, s{s_u}, s{s_w}
    s_min_u32 s{s_u}, s{s_u}, 56
    s_mul_i32 s{s_wl}, s{s_w}, 24576
    s_add_u32 s{s_wl}, s{s_wl}, {LDS_W}
    s_lshl_b32 s{s_xl}, s{s_w}, 12
    """)
    a(f"""
    s_cmp_lt_u32 s{s_u}, 30
    s_mov_b32 s{s_str}, 3840
    s_cselect_b32 s{s_str}, s{s_str}, 3456
    s_cselect_b32 s{s_t0}, 0, 30
    s_sub_u32 s{s_t0}, s{s_u}, s{s_t0}
    s_lshl_b32 s{s_t0}, s{s_t0}, 7
    s_cmp_eq_u32 s{s_cg}, 15
    s_cselect_b32 s{s_str}, 1280, s{s_str}
    s_cselect_b32 s{s_t0}, 0, s{s_t0}
    s_lshl_b32 s{s_str32}, s{s_str}, 5
    """)
    a(f"""
    v_lshrrev_b32 v{T[0]}, 3, v{vL}
    v_and_b32 v{T[1]}, 7, v{vL}
    v_lshrrev_b32 v{T[2]}, 2, v{vL}
    v_and_b32 v{T[2]}, 4, v{T[2]}
    v_xor_b32 v{T[2]}, v{T[2]}, v{T[1]}
    v_lshlrev_b32 v{T[2]}, 4, v{T[2]}
    v_mul_u32_u24 v{T[3]}, s{s_str}, v{T[0]}
    v_add3_u32 v{VW[0]}, v{T[3]}, v{T[2]}, s{s_t0}
    s_lshl_b32 s{s_t1}, s{s_str}, 3
    s_sub_u32 s{s_t1}, s{s_t1}, 1024
    v_add_u32 v{VW[1]}, s{s_t1}, v{VW[0]}
    v_add_u32 v{VW[2]}, s{s_t1}, v{VW[1]}
    v_add_u32 v{VW[3]}, s{s_t1}, v{VW[2]}
    """)
    a(f"""
    v_lshrrev_b32 v{T[2]}, 5, v{vL}
    v_lshlrev_b32 v{T[2]}, 10, v{T[2]}
    v_bfe_u32 v{T[3]}, v{vL}, 2, 2
    v_lshl_add_u32 v{T[2]}, v{T[3]}, 7, v{T[2]}
    v_bfe_u32 v{T[3]}, v{vL}, 3, 1
    v_lshl_add_u32 v{T[2]}, v{T[3]}, 6, v{T[2]}
    v_bfe_u32 v{T[3]}, v{vL}, 4, 1
    v_lshl_add_u32 v{T[2]}, v{T[3]}, 5, v{T[2]}
    v_and_b32 v{T[3]}, 1, v{vL}
    v_lshl_add_u32 v{T[2]}, v{T[3]}, 4, v{T[2]}
    v_bfe_u32 v{T[3]}, v{vL}, 1, 1
    v_lshl_add_u32 v{T[2]}, v{T[3]}, 3, v{T[2]}
    v_add_u32 v{AW[0]}, s{s_wl}, v{T[2]}
    v_xor_b32 v{AW[1]}, 64, v{AW[0]}
    """)
    a(f"""
    s_lshl_b32 s{s_t1}, s{s_rb}, 2
    s_add_u32 s{s_t1}, s{s_t1}, s{s_w}
    s_mul_i32 s{s_t1}, s{s_t1}, {32 * 1280}
    v_lshrrev_b32 v{T[2]}, 4, v{vL}
    v_xor_b32 v{T[2]}, v{T[2]}, v{T[1]}
    v_lshlrev_b32 v{T[2]}, 4, v{T[2]}
    v_mul_u32_u24 v{T[3]}, 1280, v{T[0]}
    v_add3_u32 v{VX[0]}, v{T[3]}, v{T[2]}, s{s_t1}
    v_xor_b32 v{T[2]}, 64, v{T[2]}
    v_add3_u32 v{VX[1]}, v{T[3]}, v{T[2]}, s{s_t1}
    v_add_u32 v{VX[1]}, {8 * 1280 - 1024}, v{VX[1]}
    v_add_u32 v{VX[2]}, {2 * (8 * 1280 - 1024)}, v{VX[0]}
    v_add_u32 v{VX[3]}, {2 * (8 * 1280 - 1024)}, v{VX[1]}
    s_waitcnt lgkmcnt(0)
    """)
    srd(a, sWS, 20, WS_END)
    a(f"""
    s_cmp_eq_u32 s{s_cg}, 15
    s_cbranch_scc1 {label}_tr
    """)
    srd(a, sX, 4, S * D * 2)
    a(f"""
    s_cmp_lt_u32 s{s_u}, 30
    s_cselect_b32 s{sW}, s6, s12
    s_cselect_b32 s{sW + 1}, s7, s13
    s_mov_b32 s{sW + 2}, {D * 3 * D * 2}
    s_cselect_b32 s{sW + 2}, s{sW + 2}, {D * F * 2}
    s_mov_b32 s{sW + 3}, 0x00020000
    s_mov_b32 s{s_wo}, 0
    s_mov_b32 s{s_xo}, 0
    """)

    def dma_x_setup(slot):
        return [f"s_add_u32 m0, s{s_xl}, {LDS_X + slot * 16384}"]

    def dma_x(i):
        return f"buffer_load_dwordx4 v{VX[i]}, s[{sX}:{sX + 3}], s{s_xo} offen offset:{1024 * i} lds"

    def dma_w_setup(slot, g):
        return [f"s_add_u32 m0, s{s_wl}, {slot * 8192 + g * 4096}"]

    def dma_w(i):
        return f"buffer_load_dwordx4 v{VW[i]}, s[{sW}:{sW + 3}], s{s_wo} offen offset:{1024 * i} lds"

    x_adv = f"s_add_u32 s{s_xo}, s{s_xo}, 128"
    w_adv = f"s_add_u32 s{s_wo}, s{s_wo}, s{s_str32}"

    for slot in range(2):
        a("\n".join(dma_x_setup(slot)) + "\ns_nop 0")
        for i in range(4):
            a(dma_x(i))
        a(x_adv)
        for g in range(2):
            a("\n".join(dma_w_setup(slot, g)) + "\ns_nop 0")
            for i in range(4):
                a(dma_w(i))
            a(w_adv)
    stamp(a, prof, 1)

    a(f"""
    v_and_b32 v{T[0]}, 31, v{vL}
    v_lshrrev_b32 v{T[1]}, 5, v{vL}
    v_bfe_u32 v{T[2]}, v{vL}, 1, 3
    v_xor_b32 v{T[2]}, v{T[2]}, v{T[1]}
    v_lshlrev_b32 v{T[2]}, 4, v{T[2]}
    v_lshl_add_u32 v{T[2]}, v{T[0]}, 7, v{T[2]}
    v_add_u32 v{AX[0][0]}, s{s_xl}, v{T[2]}
    """)
    for s in range(4):
        for tt in range(4):
            if s or tt:
                a(f"v_xor_b32 v{AX[s][tt]}, {s * 32 + tt * 4096}, v{AX[0][0]}")
    a(f"""
    v_bfe_u32 v{T[2]}, v{vL}, 2, 2
    v_cmp_eq_u32 vcc, v{T[2]}, v{T[1]}
    v_mov_b32 v{T[3]}, 0x3f803f80
    v_bfe_u32 v{T[4]}, v{vL}, 1, 1
    v_cndmask_b32 v{T[3]}, 0, v{T[3]}, vcc
    v_cmp_eq_u32 vcc, 0, v{T[4]}
    v_and_b32 v{T[4]}, 1, v{vL}
    v_mov_b32 v{T[5]}, 0xeeeeeeee
    v_cndmask_b32 v{SA}, 0, v{T[3]}, vcc
    v_cndmask_b32 v{SA + 1}, 0, v{T[3]}, vcc
    v_xor_b32 v{SA + 2}, v{SA}, v{T[3]}
    v_xor_b32 v{SA + 3}, v{SA}, v{T[3]}
    v_cmp_eq_u32 vcc, 1, v{T[4]}
    v_mov_b32 v{S1}, 0
    v_mov_b32 v{S2}, 0
    v_mov_b32 v{SI}, 0x44444444
    v_cndmask_b32 v{SI}, v{SI}, v{T[5]}, vcc
    """)
    for i in range(4):
        a(f"v_mov_b32 v{CSD + i}, 0")
    for i in range(0, 128, 2):
        a(f"v_mov_b64 v[{ACC + i}:{ACC + i + 1}], 0")

    def reads(slot, s, b):
        wo = slot * 8192 + s * 2048
        xo = LDS_X + slot * 16384
        return [
            f"ds_read_b64_tr_b16 {vr(WF[b], 2)}, v{AW[0]} offset:{wo}",
            f"ds_read_b64_tr_b16 {vr(WF[b] + 2, 2)}, v{AW[0]} offset:{wo + 512}",
            f"ds_read_b128 {vr(XF[b][0], 4)}, v{AX[s][0]} offset:{xo}",
            f"ds_read_b64_tr_b16 {vr(WF[b] + 4, 2)}, v{AW[1]} offset:{wo}",
            f"ds_read_b64_tr_b16 {vr(WF[b] + 6, 2)}, v{AW[1]} offset:{wo + 512}",
            f"ds_read_b128 {vr(XF[b][1], 4)}, v{AX[s][1]} offset:{xo}",
            f"ds_read_b128 {vr(XF[b][2], 4)}, v{AX[s][2]} offset:{xo}",
            f"ds_read_b128 {vr(XF[b][3], 4)}, v{AX[s][3]} offset:{xo}",
        ]

    def stats(b):
        o = []
        for i in range(4):
            x = XF[b][0] + i
            lo, hi = T[2 * (i & 1)], T[2 * (i & 1) + 1]
            o += [
                f"v_lshlrev_b32 v{lo}, 16, v{x}",
                f"v_and_b32 v{hi}, 0xffff0000, v{x}",
                f"v_add_f32 v{S1}, v{S1}, v{lo}",
                f"v_fmac_f32 v{S2}, v{lo}, v{lo}",
                f"v_add_f32 v{S1}, v{S1}, v{hi}",
                f"v_fmac_f32 v{S2}, v{hi}, v{hi}",
            ]
        return o

    a(f"""
    s_mov_b32 s{s_c}, 0
    s_waitcnt vmcnt(12)
    s_barrier
    """)
    stamp(a, prof, 2)
    for r in reads(0, 0, 0):
        a(r)
    a(f"""
    s_sub_u32 s{s_t0}, s{s_u}, 20
    s_cmp_lt_u32 s{s_t0}, 10
    s_waitcnt lgkmcnt(0)
    s_cbranch_scc1 {label}_loopV
    """)

    def mainloop(tag, vtype):
        a(f".p2align 3\n{label}_loop{tag}:")
        for slot in range(3):
            nslot = (slot + 1) % 3
            dslot = (slot + 2) % 3
            for s in range(4):
                b, nb = s & 1, (s + 1) & 1
                rd = reads(slot, s + 1, nb) if s < 3 else reads(nslot, 0, nb)
                st = stats(b)
                fill = [[] for _ in range(9)]
                if s == 3:
                    fill[0] += ["s_waitcnt vmcnt(12)", "s_barrier"]
                for m in range(4):
                    fill[m] += rd[2 * m:2 * m + 2] + st[4 * m:4 * m + 4]
                if s == 0:
                    fill[2] = [f"s_cmp_lt_u32 s{s_c}, 8"] + fill[2]
                    fill[3] = [f"s_cselect_b32 s{sX + 2}, {S * D * 2}, 0"] + fill[3]
                    fill[1] = dma_x_setup(dslot) + fill[1]
                    dm, adv = [dma_x(i) for i in range(4)], x_adv
                elif s < 3:
                    fill[1] = dma_w_setup(dslot, s - 1) + fill[1]
                    dm, adv = [dma_w(i) for i in range(4)], w_adv
                else:
                    dm, adv = None, f"s_add_u32 s{s_c}, s{s_c}, 1"
                for m in range(4, 8):
                    if dm:
                        fill[m].append(dm[m - 4])
                    fill[m] += st[16 + 2 * (m - 4):16 + 2 * (m - 4) + 2]
                fill[8] += [adv, "s_waitcnt lgkmcnt(0)"]
                for m in range(8):
                    tt, ct = m >> 1, m & 1
                    wf, xf = vr(WF[b] + 4 * ct, 4), vr(XF[b][tt], 4)
                    A, B = (xf, wf) if vtype else (wf, xf)
                    a(f"v_mfma_f32_32x32x16_bf16 {vr(acc(tt, ct), 16)}, {A}, {B}, {vr(acc(tt, ct), 16)}")
                    for f in fill[m]:
                        a(f)
                a(f"v_smfmac_f32_16x16x64_bf16 {vr(CSD, 4)}, {vr(SA, 4)}, {vr(WF[b], 8)}, v{SI}")
                for f in fill[8]:
                    a(f)
            if slot == 0:
                a(f"s_cmp_eq_u32 s{s_c}, 10\ns_cbranch_scc1 {label}_epi")
        a(f"s_branch {label}_loop{tag}")

    mainloop("N", False)
    mainloop("V", True)

    a(f"{label}_epi:")
    stamp(a, prof, 3)
    srd(a, sB, 14, F * 2)
    a(f"""
    v_lshrrev_b32 v{T[4]}, 5, v{vL}
    s_sub_u32 s{s_t0}, s{s_u}, 30
    s_max_i32 s{s_t0}, s{s_t0}, 0
    s_lshl_b32 s{s_t0}, s{s_t0}, 7
    v_lshlrev_b32 v{T[5]}, 4, v{T[4]}
    """)
    for q in range(4):
        a(f"buffer_load_dwordx4 {vr(BR + 4 * q, 4)}, v{T[5]}, s[{sB}:{sB + 3}], s{s_t0} offen offset:{32 * q}")
    a(f"""
    v_mov_b32 v{T[0]}, v{S1}
    v_mov_b32 v{T[1]}, v{S2}
    v_and_b32 v{T[5]}, 31, v{vL}
    s_lshl_b32 s{s_t1}, s{s_w}, 7
    v_permlane32_swap_b32 v{S1}, v{T[0]}
    v_permlane32_swap_b32 v{S2}, v{T[1]}
    s_add_u32 s{s_t1}, s{s_t1}, {LDS_ST}
    v_add_f32 v{S1}, v{S1}, v{T[0]}
    v_add_f32 v{S2}, v{S2}, v{T[1]}
    v_mul_f32 v{S1}, {INV_D | 0x80000000}, v{S1}
    v_mul_f32 v{S2}, {INV_D}, v{S2}
    v_fma_f32 v{S2}, -v{S1}, v{S1}, v{S2}
    v_max_f32 v{S2}, 0, v{S2}
    v_add_f32 v{S2}, {EPS}, v{S2}
    v_rsq_f32 v{S2}, v{S2}
    v_lshl_add_u32 v{T[2]}, v{T[5]}, 2, s{s_t1}
    ds_write2_b32 v{T[2]}, v{S1}, v{S2} offset0:0 offset1:128
    """)
    a(f"v_and_b32 v{T[0]}, 15, v{vL}")
    swap23(a, T[0], T[0], T[1], T[3])
    a(f"""
    v_lshrrev_b32 v{T[1]}, 4, v{vL}
    v_lshl_add_u32 v{T[0]}, v{T[1]}, 5, v{T[0]}
    s_lshl_b32 s{s_t2}, s{s_w}, 9
    s_add_u32 s{s_t2}, s{s_t2}, {LDS_ST + 1024}
    v_lshl_add_u32 v{T[0]}, v{T[0]}, 2, s{s_t2}
    v_add_f32 v{CSD}, v{CSD}, v{CSD + 1}
    v_add_f32 v{CSD + 2}, v{CSD + 2}, v{CSD + 3}
    ds_write2_b32 v{T[0]}, v{CSD}, v{CSD + 2} offset0:0 offset1:16
    s_sub_u32 s{s_t0}, s{s_u}, 20
    s_cmp_lt_u32 s{s_t0}, 10
    s_waitcnt lgkmcnt(0)
    s_barrier
    s_cbranch_scc1 {label}_epiV
    """)
    CSr = tmp0
    NR = tmp0 + 32
    OB = tmp0 + 40
    Bf = EX
    VS = AX[0]
    a(f"v_lshl_add_u32 v{T[0]}, v{T[4]}, 5, s{s_t2}")
    for q in range(4):
        for hq in range(2):
            a(f"ds_read_b128 {vr(CSr + 8 * q + 4 * hq, 4)}, v{T[0]} offset:{64 * q + 16 * hq}")
    for tt in range(4):
        a(f"v_xor_b32 v{T[1]}, {tt * 128}, v{T[2]}\nds_read2_b32 {vr(NR + 2 * tt, 2)}, v{T[1]} offset0:0 offset1:128")
    a(f"""
    s_lshl_b32 s{s_t1}, s{s_rb}, 2
    s_add_u32 s{s_t1}, s{s_t1}, s{s_w}
    s_lshl_b32 s{s_t1}, s{s_t1}, 9
    v_lshlrev_b32 v{T[0]}, 15, v{T[4]}
    v_lshl_add_u32 v{T[0]}, v{T[5]}, 4, v{T[0]}
    v_add_u32 v{VS[0]}, s{s_t1}, v{T[0]}
    v_xor_b32 v{VS[1]}, 512, v{VS[0]}
    v_xor_b32 v{VS[2]}, 1024, v{VS[0]}
    v_xor_b32 v{VS[3]}, 1536, v{VS[0]}
    s_cmp_lt_u32 s{s_u}, 20
    s_cselect_b32 s{s_t0}, 0, 10
    s_sub_u32 s{s_t0}, s{s_u}, s{s_t0}
    s_lshl_b32 s56, s{s_t0}, 18
    s_add_u32 s57, s56, {2 * CH}
    s_add_u32 s58, s56, {4 * CH}
    s_add_u32 s59, s56, {6 * CH}
    s_cmp_lt_u32 s{s_u}, 20
    s_cbranch_scc0 {label}_epiF
    s_cmp_lt_u32 s{s_u}, 10
    s_cselect_b32 s{s_t0}, {QSCALE}, 1.0
    s_waitcnt lgkmcnt(0)
    """)
    for tt in range(4):
        a(f"v_mul_f32 v{NR + 2 * tt + 1}, s{s_t0}, v{NR + 2 * tt + 1}")

    def plain_tiles(ffn):
        k = 0
        for tt in range(4):
            nr = vr(NR + 2 * tt, 2)
            for ct in range(2):
                for jj in range(2):
                    ob = OB + 4 * (k & 1)
                    k += 1
                    base = acc(tt, ct) + 8 * jj
                    q = ct * 2 + jj
                    for p in range(4):
                        r = vr(base + 2 * p, 2)
                        a(f"v_pk_fma_f32 {r}, {vr(CSr + 8 * q + 2 * p, 2)}, {nr}, {r} op_sel:[0,0,0] op_sel_hi:[1,0,1]")
                    for p in range(4):
                        r = vr(base + 2 * p, 2)
                        if ffn:
                            a(f"v_pk_fma_f32 {r}, {r}, {nr}, {vr(Bf + 8 * q + 2 * p, 2)} op_sel:[0,1,0] op_sel_hi:[1,1,1]")
                        else:
                            a(f"v_pk_mul_f32 {r}, {r}, {nr} op_sel:[0,1] op_sel_hi:[1,1]")
                    if ffn:
                        for i in range(8):
                            a(f"v_max_f32 v{base + i}, 0, v{base + i}")
                        for p in range(4):
                            r = vr(base + 2 * p, 2)
                            a(f"v_pk_mul_f32 {r}, {r}, {r}")
                    for p in range(4):
                        a(f"v_cvt_pk_bf16_f32 v{ob + p}, v{base + 2 * p}, v{base + 2 * p + 1}")
                    a(f"buffer_store_dwordx4 {vr(ob, 4)}, v{VS[tt]}, s[{sWS}:{sWS + 3}], s{56 + q} offen")

    plain_tiles(False)
    a(f"s_branch {label}_fill")
    a(f"{label}_epiF:\ns_waitcnt vmcnt(0)")
    for i in range(16):
        a(f"v_lshlrev_b32 v{Bf + 2 * i}, 16, v{BR + i}\nv_and_b32 v{Bf + 2 * i + 1}, 0xffff0000, v{BR + i}")
    a("s_waitcnt lgkmcnt(0)")
    plain_tiles(True)
    a(f"s_branch {label}_fill")

    a(f"{label}_epiV:")
    CP = NR
    ST = [tmp0, EX]
    swap23(a, T[0], T[5], T[1], T[3])
    a(f"""
    v_lshl_add_u32 v{T[1]}, v{T[0]}, 2, s{s_t2}
    ds_read2_b32 {vr(CP, 2)}, v{T[1]} offset0:0 offset1:32
    s_lshl_b32 s{s_t1}, s{s_w}, 7
    s_add_u32 s{s_t1}, s{s_t1}, {LDS_ST}
    v_lshl_add_u32 v{T[2]}, v{T[4]}, 4, s{s_t1}
    s_sub_u32 s{s_t0}, s{s_u}, 20
    s_lshl_b32 s{s_t0}, s{s_t0}, 10
    v_mul_u32_u24 v{T[3]}, 10240, v{T[4]}
    v_lshl_add_u32 v{T[3]}, v{T[0]}, 4, v{T[3]}
    v_add_u32 v{VS[0]}, s{s_t0}, v{T[3]}
    """)

    def v_reads(tt):
        a(f"v_xor_b32 v{T[1]}, {tt * 128}, v{T[2]}")
        for j in range(4):
            a(f"ds_read_b128 {vr(ST[tt & 1] + 4 * j, 4)}, v{T[1]} offset:{32 * j}")
            a(f"ds_read_b128 {vr(ST[tt & 1] + 16 + 4 * j, 4)}, v{T[1]} offset:{512 + 32 * j}")

    v_reads(0)
    k = 0
    for tt in range(4):
        if tt < 3:
            a("s_waitcnt lgkmcnt(7)")
            v_reads(tt + 1)
        a(f"""
        s_xor_b32 s{s_t0}, s{s_w}, {tt}
        s_lshl_b32 s{s_t1}, s{s_rb}, 2
        s_add_u32 s{s_t0}, s{s_t0}, s{s_t1}
        s_mul_i32 s{s_t0}, s{s_t0}, 40960
        s_add_u32 s56, s{s_t0}, {WS_V}
        s_add_u32 s57, s56, 20480
        s_waitcnt lgkmcnt({8 if tt < 3 else 0})
        """)
        st = ST[tt & 1]
        for ct in range(2):
            for j in range(2):
                ob = OB + 4 * (k & 1)
                k += 1
                base = acc(tt, ct) + 8 * j
                for p in range(4):
                    r = vr(base + 2 * p, 2)
                    a(f"v_pk_fma_f32 {r}, {vr(st + 8 * j + 2 * p, 2)}, {vr(CP, 2)}, {r} op_sel:[0,{ct},0] op_sel_hi:[1,{ct},1]")
                for p in range(4):
                    r = vr(base + 2 * p, 2)
                    a(f"v_pk_mul_f32 {r}, {r}, {vr(st + 16 + 8 * j + 2 * p, 2)}")
                for p in range(4):
                    a(f"v_cvt_pk_bf16_f32 v{ob + p}, v{base + 2 * p}, v{base + 2 * p + 1}")
                a(f"buffer_store_dwordx4 {vr(ob, 4)}, v{VS[0]}, s[{sWS}:{sWS + 3}], s{56 + j} offen offset:{512 * ct}")
    a(f"s_branch {label}_fill")

    a(f"{label}_tr:")
    for i in (1, 2, 3):
        stamp(a, prof, i)
    s_q, s_kc, s_cu, s_rnd = 56, 57, 58, 59
    TF = ACC
    a(f"""
    s_lshl_b32 s{s_q}, s{s_rb}, 2
    s_add_u32 s{s_q}, s{s_q}, s{s_w}
    s_mov_b32 s{s_rnd}, 0
    s_mov_b32 s{sW + 3}, 0x00020000
    v_lshlrev_b32 v{T[0]}, 4, v{vL}
    v_add_u32 v{T[1]}, 20480, v{T[0]}
    v_add_u32 v{T[2]}, 40960, v{T[0]}
    v_add_u32 v{T[3]}, 61440, v{T[0]}
    {label}_trloop:
    """)
    for slot in range(3):
        a(f"""
        s_min_u32 s{s_t0}, s{s_q}, 369
        s_mul_i32 s{s_kc}, s{s_t0}, 6554
        s_lshr_b32 s{s_kc}, s{s_kc}, 16
        s_mul_i32 s{s_t1}, s{s_kc}, 10
        s_sub_u32 s{s_cu}, s{s_t0}, s{s_t1}
        s_mul_i32 s{60 + slot}, s{s_kc}, 81920
        s_lshl_b32 s{s_t1}, s{s_cu}, 11
        s_add_u32 s{60 + slot}, s{60 + slot}, s{s_t1}
        s_add_u32 s{60 + slot}, s{60 + slot}, {WS_WT}
        s_cmp_lt_u32 s{s_kc}, 27
        s_cselect_b32 s{sW}, s16, s8
        s_cselect_b32 s{sW + 1}, s17, s9
        s_mov_b32 s{sW + 2}, {F * D * 2}
        s_cselect_b32 s{sW + 2}, s{sW + 2}, {D * D * 2}
        s_cselect_b32 s{s_t1}, 0, 27
        s_sub_u32 s{s_t1}, s{s_kc}, s{s_t1}
        s_mul_i32 s{s_wo}, s{s_t1}, {64 * 1280}
        s_lshl_b32 s{s_t1}, s{s_cu}, 7
        s_add_u32 s{s_wo}, s{s_wo}, s{s_t1}
        s_add_u32 s{s_q}, s{s_q}, 64
        """)
        for g in range(2):
            a("\n".join(dma_w_setup(slot, g)) + "\ns_nop 0")
            for i in range(4):
                a(dma_w(i))
            a(w_adv)
    for slot in range(3):
        a("s_waitcnt vmcnt(16)")
        for s in range(4):
            wo = slot * 8192 + s * 2048
            for ct in range(2):
                f = TF + slot * 32 + s * 8 + ct * 4
                a(f"ds_read_b64_tr_b16 {vr(f, 2)}, v{AW[ct]} offset:{wo}")
                a(f"ds_read_b64_tr_b16 {vr(f + 2, 2)}, v{AW[ct]} offset:{wo + 512}")
            if s == 1:
                a("s_waitcnt lgkmcnt(0)")
        a("s_waitcnt lgkmcnt(0)")
        for s in range(4):
            for ct in range(2):
                f = TF + slot * 32 + s * 8 + ct * 4
                a(f"buffer_store_dwordx4 {vr(f, 4)}, v{T[s]}, s[{sWS}:{sWS + 3}], s{60 + slot} offen offset:{1024 * ct}")
    a(f"""
    s_add_u32 s{s_rnd}, s{s_rnd}, 1
    s_cmp_lt_u32 s{s_rnd}, 2
    s_waitcnt vmcnt(0)
    s_cbranch_scc1 {label}_trloop
    """)

    a(f"{label}_fill:")
    stamp(a, prof, 4)
    a(f"""
    s_lshl_b32 s{s_t0}, s2, 2
    s_add_u32 s{s_t0}, s{s_t0}, s{s_w}
    s_mul_i32 s{s_t0}, s{s_t0}, 2560
    s_add_u32 s{s_t0}, s{s_t0}, {C_O * CH}
    v_lshlrev_b32 v{T[0]}, 4, v{vL}
    v_mov_b32 v{SA}, -1
    v_mov_b32 v{SA + 1}, -1
    v_mov_b32 v{SA + 2}, -1
    v_mov_b32 v{SA + 3}, -1
    buffer_store_dwordx4 {vr(SA, 4)}, v{T[0]}, s[{sWS}:{sWS + 3}], s{s_t0} offen
    buffer_store_dwordx4 {vr(SA, 4)}, v{T[0]}, s[{sWS}:{sWS + 3}], s{s_t0} offen offset:1024
    buffer_store_dwordx4 {vr(SA, 4)}, v{T[0]}, s[{sWS}:{sWS + 3}], s{s_t0} offen offset:1536
    """)
    if prof:
        a("s_waitcnt vmcnt(0)")
        stamp(a, prof, 5)
        dump_stamps(a, 6, sWS, 0, s_w, 4, T[0], T[1])
    a(f"{label}_end:\ns_endpgm")
    return kernel_header(label) + a.text(), kernel_desc(label, nv), K1_LDS


def dump_stamps(a, n, sws, kidx, s_wave, nwaves, t0, t1, sbase=80):
    a(f"""
    s_memrealtime s[78:79]
    s_waitcnt lgkmcnt(0)
    s_mov_b32 s{sws + 2}, {WS_SIZE}
    s_mul_i32 s3, s2, {nwaves}
    s_add_u32 s3, s3, s{s_wave}
    s_lshl_b32 s3, s3, 6
    s_add_u32 s3, s3, {WS_DBG + kidx * 1024 * 1024}
    v_mov_b32 v{t0}, 0
    """)
    for i in range(n):
        a(f"v_mov_b32 v{t1}, s{sbase + 2 * i}\nbuffer_store_dword v{t1}, v{t0}, s[{sws}:{sws + 3}], s3 offen offset:{4 * i}")
    for i in range(2):
        a(f"v_mov_b32 v{t1}, s{76 + 2 * i}\nbuffer_store_dword v{t1}, v{t0}, s[{sws}:{sws + 3}], s3 offen offset:{56 + 4 * i}")
    a("s_waitcnt vmcnt(0)")
    a(f"""
    s_load_dwordx2 s[72:73], s[0:1], 72
    s_waitcnt lgkmcnt(0)
    s_sub_u32 s{sws}, s72, {512 * kidx}
    s_subb_u32 s{sws + 1}, s73, 0
    s_mov_b32 s{sws + 2}, 256
    s_not_b32 s74, s76
    s_not_b32 s75, s78
    s_mov_b64 exec, 1
    """)
    for i, r in enumerate((74, 76, 75, 78)):
        a(f"v_mov_b32 v{t1}, s{r}\nbuffer_atomic_umax v{t1}, v{t0}, s[{sws}:{sws + 3}], 0 offen offset:{32 * kidx + 4 * i}")
    for i, j in enumerate((2, 3, 4, 5) if kidx == 0 else (1, 3, 4, 7)):
        a(f"s_sub_u32 s74, s{sbase + 2 * j}, s{sbase}\nv_mov_b32 v{t1}, s74\nbuffer_atomic_umax v{t1}, v{t0}, s[{sws}:{sws + 3}], 0 offen offset:{32 * kidx + 16 + 4 * i}")
    a("s_waitcnt vmcnt(0)")
```

```python
import struct
from common import *
from k1 import dump_stamps

SLOT = 8192 + 4096 + 16 * 656
OFF_R, OFF_V = 8192, 12288
LDS_WO = 3 * SLOT
P_STRIDE = 656
P_SIZE = 32 * P_STRIDE
P_BASE = [0, P_SIZE, 2 * P_SIZE, LDS_WO + 3 * 20480]
K2_LDS = P_BASE[3] + P_SIZE
SHIFT = 88.0
f32 = lambda x: struct.unpack("<I", struct.pack("<f", x))[0]

sWS, sH, sW2, sX, sB2, sOUT = 24, 28, 32, 36, 40, 44
s_w, s_head, s_qb, s_tt, s_cg, s_cm, s_cr, s_par, s_c, s_slot = 48, 49, 50, 51, 52, 53, 54, 55, 56, 57
s_t0, s_t1, s_t2, s_t3, s_hw, s_ko, s_vo, s_ho, s_wo, s_spin = 58, 59, 60, 61, 62, 63, 64, 65, 66, 67


def gen_k2(label, prof=False, force_fallback=False):
    a = Asm()
    vL = 1
    T = [2, 3, 4, 5, 6, 7]
    XR, B2R = 96, 104
    RB = 112

    a(f"""
    s_cmp_ge_u32 s2, 256
    s_cbranch_scc1 {label}_end
    s_load_dwordx2 s[12:13], s[0:1], 80
    s_load_dwordx2 s[4:5], s[0:1], 0
    s_load_dwordx4 s[8:11], s[0:1], 56
    """)
    stamp(a, prof, 0)
    a(f"""
    v_and_b32 v{vL}, 63, v0
    v_lshrrev_b32 v{T[0]}, 6, v0
    s_and_b32 s{s_t0}, s2, 7
    v_readfirstlane_b32 s{s_w}, v{T[0]}
    s_lshr_b32 s{s_t1}, s2, 3
    s_and_b32 s{s_t2}, s{s_t1}, 3
    s_lshl_b32 s{s_head}, s{s_t0}, 2
    s_add_u32 s{s_head}, s{s_head}, s{s_t2}
    s_lshr_b32 s{s_qb}, s{s_t1}, 2
    s_and_b32 s{s_t2}, s{s_t1}, 7
    s_lshl_b32 s{s_tt}, s{s_t0}, 3
    s_add_u32 s{s_tt}, s{s_tt}, s{s_t2}
    s_lshr_b32 s{s_cg}, s{s_t1}, 3
    s_and_b32 s{s_par}, s{s_head}, 1
    s_lshr_b32 s{s_t2}, s{s_head}, 1
    s_mul_i32 s{s_t2}, s{s_t2}, 5
    s_add_u32 s{s_cr}, s{s_t2}, 2
    s_mul_i32 s{s_t3}, s{s_par}, 3
    s_add_u32 s{s_cm}, s{s_t2}, s{s_t3}
    s_lshl_b32 s{s_cm}, s{s_cm}, 15
    s_lshl_b32 s{s_cr}, s{s_cr}, 15
    s_mov_b32 s{s_c}, 0
    s_mov_b32 s{s_slot}, 0
    v_and_b32 v{T[0]}, 31, v{vL}
    v_lshrrev_b32 v{T[1]}, 5, v{vL}
    s_cmp_ge_u32 s{s_w}, 4
    s_cbranch_scc1 {label}_help
    """)

    R = Regs(8)
    IDX = R.get()
    AK0, AR0, AV0, AK, AR, AV = (R.get() for _ in range(6))
    VQ = R.get()
    VQR = R.get()
    MX = [R.get(), R.get()]
    Q1 = [R.get(4), R.get(4)]
    Q2 = [[R.get(2), R.get(2)], [R.get(2), R.get(2)]]
    K1 = [R.get(4), R.get(4)]
    K2 = [R.get(2), R.get(2)]
    V0 = [R.get(4), R.get(4)]
    V1 = [R.get(4), R.get(4)]
    R.next = 128
    SS = [R.get(16), R.get(16)]
    OO = [R.get(16), R.get(16)]
    CM = [R.get(16), R.get(16)]
    TS = R.get(16)

    a(f"""
    s_lshl_b32 s{s_t0}, s{s_qb}, 2
    s_add_u32 s{s_t0}, s{s_t0}, s{s_w}
    s_lshl_b32 s{s_t0}, s{s_t0}, 10
    s_lshl_b32 s{s_t1}, s{s_par}, 3
    s_add_u32 s{s_t2}, s{s_t0}, s{s_t1}
    v_lshlrev_b32 v{T[2]}, 4, v{T[0]}
    v_lshl_add_u32 v{VQ}, v{T[1]}, 15, v{T[2]}
    v_add_u32 v{VQ}, s{s_t0}, v{VQ}
    v_add_u32 v{VQR}, s{s_t2}, v{T[2]}
    s_waitcnt lgkmcnt(0)
    """)
    srd(a, sWS, 12, WS_END)
    for ab in range(2):
        a(f"buffer_load_dwordx4 {vr(Q1[ab], 4)}, v{VQ}, s[{sWS}:{sWS + 3}], s{s_cm} offen offset:{512 * ab}")
        a(f"buffer_load_dwordx2 {vr(Q2[ab][0], 2)}, v{VQR}, s[{sWS}:{sWS + 3}], s{s_cr} offen offset:{512 * ab}")
    a(f"""
    v_mov_b32 v{IDX}, 0xdddddddd
    v_lshlrev_b32 v{AK0}, 4, v{vL}
    v_add_u32 v{AR0}, s{s_t1}, v{AK0}
    v_min_u32 v{T[2]}, 19, v{T[0]}
    v_mad_u32_u24 v{T[2]}, v{T[1]}, 20, v{T[2]}
    v_and_b32 v{T[3]}, 27, v{T[0]}
    v_cmp_eq_u32 vcc, 24, v{T[3]}
    v_mov_b32 v{AK}, v{AK0}
    v_mov_b32 v{AR}, v{AR0}
    v_cndmask_b32 v{T[2]}, v{T[2]}, 40, vcc
    v_lshlrev_b32 v{AV0}, 4, v{T[2]}
    v_mov_b32 v{AV}, v{AV0}
    """)
    for r in list(range(OO[0], OO[0] + 32, 2)) + list(range(SS[1], SS[1] + 16, 2)) + [V1[1], V1[1] + 2]:
        a(f"v_mov_b64 {vr(r, 2)}, 0")
    a("s_waitcnt vmcnt(0)")
    for ab in range(2):
        a(f"v_mov_b64 {vr(Q2[ab][1], 2)}, {vr(Q2[ab][0], 2)}")
    a("s_mov_b32 exec_hi, 0")
    for ab in range(2):
        a(f"v_mov_b64 {vr(Q2[ab][1], 2)}, 0")
    a("s_not_b64 exec, exec")
    for ab in range(2):
        a(f"v_mov_b64 {vr(Q2[ab][0], 2)}, 0")
    a("s_mov_b64 exec, -1\ns_barrier")
    stamp(a, prof, 1)

    def rdK1(t):
        return f"ds_read_b128 {vr(K1[t & 1], 4)}, v{AK} offset:{(t & 7) * 1024}"

    def rdK2(p):
        return f"ds_read_b64 {vr(K2[p & 1], 2)}, v{AR} offset:{OFF_R + (p & 3) * 1024}"

    def rdV(j, t):
        return f"ds_read_b128 {vr((V0, V1)[j][t & 1], 4)}, v{AV} offset:{OFF_V + ((t & 7) * 2 + j) * 656}"

    def qk1(dst, ab, t, c):
        return f"v_mfma_f32_32x32x16_bf16 {vr(dst, 16)}, {vr(K1[t & 1], 4)}, {vr(Q1[ab], 4)}, {c}"

    def qk2(dst, ab, t):
        return f"v_mfma_f32_32x32x8_bf16 {vr(dst, 16)}, {vr(K2[(t >> 1) & 1], 2)}, {vr(Q2[ab][t & 1], 2)}, {vr(dst, 16)}"

    def pv(ab, j, t):
        return f"v_smfmac_f32_32x32x32_bf16 {vr(OO[ab], 16)}, {vr((V0, V1)[j][t & 1], 4)}, {vr(SS[ab] + 8 * j, 8)}, v{IDX}"

    def row_max(dst, bufs):
        regs = [b + i for b in bufs for i in range(16)]
        a(f"v_max3_f32 v{dst}, v{regs[0]}, v{regs[1]}, v{regs[2]}")
        rest = regs[3:]
        while len(rest) >= 2:
            a(f"v_max3_f32 v{dst}, v{dst}, v{rest[0]}, v{rest[1]}")
            rest = rest[2:]
        if rest:
            a(f"v_max_f32 v{dst}, v{dst}, v{rest[0]}")

    def set_shift(ab, shift):
        m = MX[ab]
        a(f"""
        v_mov_b32 v{T[2]}, v{m}
        s_nop 1
        v_permlane32_swap_b32 v{m}, v{T[2]}
        v_max_f32 v{m}, v{m}, v{T[2]}
        v_sub_f32 v{CM[ab]}, {f32(-shift) if shift else 0}, v{m}
        v_mov_b32 v{CM[ab] + 1}, v{CM[ab]}
        """)
        for i in range(2, 16, 2):
            a(f"v_mov_b64 {vr(CM[ab] + i, 2)}, {vr(CM[ab], 2)}")

    a("\n".join([rdK1(0), rdK2(0), rdK1(1), rdV(0, 0), rdV(1, 0)]))
    a("s_waitcnt lgkmcnt(0)" if prof else "s_waitcnt lgkmcnt(2)")
    est = {(0, 0): SS[0], (0, 1): CM[0], (1, 0): TS, (1, 1): CM[1]}
    for ab in range(2):
        for t in range(2):
            a(qk1(est[ab, t], ab, t, 0))
            a(qk2(est[ab, t], ab, t))
    a("s_nop 7")
    row_max(MX[0], [SS[0], CM[0]])
    set_shift(0, SHIFT)
    a("s_nop 1")
    a(qk1(SS[0], 0, 0, vr(CM[0], 16)))
    a(qk2(SS[0], 0, 0))
    row_max(MX[1], [TS, CM[1]])
    set_shift(1, SHIFT)
    a("s_waitcnt lgkmcnt(0)")
    stamp(a, prof, 2)
    if prof:
        a("s_waitcnt lgkmcnt(0)")

    def slot_events(ab, t):
        o = 1 - ab
        tp = t - 1 if ab == 0 else t
        tn = t if ab == 0 else t + 1
        e = [("i", f"v_exp_f32 v{SS[ab] + i}, v{SS[ab] + i}") for i in range(16)]
        ev = []
        if ab == 0 and t % 8 == 7:
            ev += [("i", f"v_add_u32 v{AV}, s{s_slot}, v{AV0}")]
        ev += e[0:2]
        ev += [("use", ("V1", tp)), ("i", pv(o, 1, tp)), ("wait",)]
        if ab == 0 and t % 8 == 6:
            ev += [("i", "s_barrier")]
        if ab == 0 and t % 8 == 4:
            ev += [("i", f"s_add_u32 s{s_slot}, s{s_slot}, {SLOT}")]
        if ab == 1 and t % 8 == 4:
            ev += [("i", f"s_cmp_eq_u32 s{s_slot}, {3 * SLOT}")]
        if ab == 1 and t % 8 == 6:
            ev += [("i", f"s_add_u32 s{s_c}, s{s_c}, 1")]
        if ab == 0:
            ev += [("rd", rdV(1, t + 1), ("V1", t + 1))]
        ev += e[2:5]
        if ab == 0 and t % 8 == 6:
            ev += [("i", f"v_add_u32 v{AK}, s{s_slot}, v{AK0}"), ("i", f"v_add_u32 v{AR}, s{s_slot}, v{AR0}")]
        ev += [("use", ("K1", tn)), ("i", qk1(SS[o], o, tn, vr(CM[o], 16)))]
        if ab == 0:
            ev += [("rd", rdK1(t + 2), ("K1", t + 2))]
        else:
            ev += [("rd", rdV(0, t + 1), ("V0", t + 1))]
        ev += e[5:8]
        ev += [("use", ("K2", tn >> 1)), ("i", qk2(SS[o], o, tn))]
        ev += e[8:12]
        ev += [("use", ("V0", t)), ("i", pv(ab, 0, t))]
        if ab == 1 and t % 8 == 4:
            ev += [("i", f"s_cselect_b32 s{s_slot}, 0, s{s_slot}")]
        if ab == 1 and t % 8 == 7:
            ev += [("i", f"s_cmp_lt_u32 s{s_c}, 8")]
        if ab == 1 and t % 2 == 0:
            ev += [("rd", rdK2(t // 2 + 1), ("K2", t // 2 + 1))]
        ev += e[12:16]
        return ev

    evs = []
    for t in range(24):
        for ab in range(2):
            evs += [(t, x) for x in slot_events(ab, t)]
    issue_idx = {}
    n = 0
    for t, x in evs:
        if x[0] == "rd":
            issue_idx[x[2]] = n
            n += 1
    a(f".p2align 3\n{label}_aloop:")
    n = 0
    for k, (t, x) in enumerate(evs):
        emit = 8 <= t < 16
        if x[0] == "rd":
            n += 1
            if emit:
                a(x[1])
        elif x[0] == "i":
            if emit:
                a(x[1])
        elif x[0] == "wait" and emit:
            need = -1
            for t2, y in evs[k + 1:]:
                if y[0] == "wait":
                    break
                if y[0] == "use":
                    assert issue_idx[y[1]] < n, (t, y)
                    need = max(need, issue_idx[y[1]])
            a(f"s_waitcnt lgkmcnt({n - 1 - need})")
    a(f"s_cbranch_scc1 {label}_aloop")
    a("s_nop 1")
    a(pv(1, 1, 7))
    stamp(a, prof, 3)

    a("s_waitcnt lgkmcnt(0)\ns_nop 7\ns_nop 3")
    a(f"s_mov_b32 s{s_t0}, {f32(2.0 ** 126)}\ns_mov_b32 s{s_t1}, {f32(2.0 ** -95)}")
    for ab in range(2):
        o = OO[ab]
        a(f"v_max3_f32 v{T[2 + ab]}, |v{o}|, |v{o + 1}|, |v{o + 2}|")
        for i in (3, 5):
            a(f"v_max3_f32 v{T[2 + ab]}, v{T[2 + ab]}, |v{o + i}|, |v{o + i + 1}|")
        a(f"v_max_f32 v{T[2 + ab]}, v{T[2 + ab]}, |v{o + 7}|")
        a(f"v_add_f32 v{T[4 + ab]}, |v{o + 8}|, |v{o + 9}|")
        for i in list(range(8)) + [10, 11, 12]:
            a(f"v_add_f32 v{T[4 + ab]}, v{T[4 + ab]}, |v{o + i}|")
    a(f"""
    v_min_f32 v{T[2]}, v{T[2]}, v{T[3]}
    v_add_f32 v{T[4]}, v{T[4]}, v{T[5]}
    v_cmp_le_f32 vcc, s{s_t1}, v{T[2]}
    v_cmp_gt_f32 s[{s_t2}:{s_t2 + 1}], s{s_t0}, v{T[4]}
    s_nop 1
    s_and_b64 vcc, vcc, s[{s_t2}:{s_t2 + 1}]
    s_cmp_eq_u64 vcc, exec
    """)
    a(f"s_branch {label}_slow" if force_fallback else f"s_cbranch_scc0 {label}_slow")

    a(f"{label}_norm:")
    a(f"s_add_u32 s{s_t0}, s{s_cm}, {C_O * CH}\ns_add_u32 s{s_t1}, s{s_cr}, {C_O * CH}")
    for ab in range(2):
        o = OO[ab]
        a(f"v_rcp_f32 v{o + 12}, v{o + 12}\ns_nop 0")
        for p in range(6):
            a(f"v_pk_mul_f32 {vr(o + 2 * p, 2)}, {vr(o + 2 * p, 2)}, {vr(o + 12, 2)} op_sel:[0,0] op_sel_hi:[1,0]")
        for p in range(6):
            a(f"v_cvt_pk_bf16_f32 v{SS[ab] + p}, v{o + 2 * p}, v{o + 2 * p + 1}")
        for p in (1, 3, 5):
            a(f"v_min_u32 v{SS[ab] + p}, -2, v{SS[ab] + p}")
        a(f"buffer_store_dwordx4 {vr(SS[ab], 4)}, v{VQ}, s[{sWS}:{sWS + 3}], s{s_t0} offen offset:{512 * ab} sc1")
    a("s_mov_b32 exec_hi, 0")
    for ab in range(2):
        a(f"buffer_store_dwordx2 {vr(SS[ab] + 4, 2)}, v{VQR}, s[{sWS}:{sWS + 3}], s{s_t1} offen offset:{512 * ab} sc1")
    a("s_mov_b64 exec, -1\ns_barrier")
    stamp(a, prof, 4)

    def final_addr():
        srd(a, sX, 4, S * D * 2)
        srd(a, sB2, 8, D * 2)
        srd(a, sOUT, 10, S * D * 2)
        a(f"""
        v_cmp_le_u32 vcc, 20, v{vL}
        s_lshl_b32 s{s_t0}, s{s_w}, 2
        s_mul_i32 s{s_t2}, s{s_cg}, 320
        v_cndmask_b32 v{T[3]}, 0, 1, vcc
        v_mul_u32_u24 v{T[4]}, 20, v{T[3]}
        v_sub_u32 v{T[4]}, v{vL}, v{T[4]}
        v_min_u32 v{T[4]}, 19, v{T[4]}
        v_add_u32 v{T[3]}, s{s_t0}, v{T[3]}
        v_lshl_add_u32 v{T[1]}, v{T[4]}, 4, s{s_t2}
        v_mul_u32_u24 v{T[2]}, {P_STRIDE}, v{T[3]}
        v_lshl_add_u32 v{T[2]}, v{T[4]}, 5, v{T[2]}
        s_lshl_b32 s{s_t1}, s{s_tt}, 5
        v_add_u32 v{T[3]}, s{s_t1}, v{T[3]}
        v_mul_u32_u24 v{T[0]}, 1280, v{T[3]}
        v_add_u32 v{T[0]}, v{T[0]}, v{T[1]}
        """)

    def final_loads():
        a(f"""
        buffer_load_dwordx4 {vr(XR, 4)}, v{T[0]}, s[{sX}:{sX + 3}], 0 offen
        buffer_load_dwordx4 {vr(XR + 4, 4)}, v{T[0]}, s[{sX}:{sX + 3}], 0 offen offset:2560
        buffer_load_dwordx4 {vr(B2R, 4)}, v{T[1]}, s[{sB2}:{sB2 + 3}], 0 offen
        """)

    final_addr()
    final_loads()
    a(f"s_branch {label}_final")

    a(f"{label}_slow:")
    GK, GR, GV = AK, AR, AV
    swap23(a, T[2], T[0], T[3], T[4])
    a(f"""
    v_lshlrev_b32 v{T[3]}, 4, v{T[2]}
    v_lshl_add_u32 v{GK}, v{T[1]}, 15, v{T[3]}
    v_add_u32 v{GK}, s{s_cm}, v{GK}
    s_lshl_b32 s{s_t0}, s{s_par}, 3
    s_add_u32 s{s_t0}, s{s_t0}, s{s_cr}
    v_add_u32 v{GR}, s{s_t0}, v{T[3]}
    s_lshl_b32 s{s_t0}, s{s_par}, 2
    s_mul_i32 s{s_t1}, s{s_par}, -16
    v_add_u32 v{T[2]}, s{s_t0}, v{T[2]}
    v_add_u32 v{T[3]}, s{s_t1}, v{T[0]}
    v_cmp_gt_u32 vcc, 16, v{T[0]}
    s_mul_i32 s{s_t0}, s{s_head}, 320
    v_mul_u32_u24 v{T[4]}, 10240, v{T[1]}
    v_cndmask_b32 v{T[2]}, v{T[3]}, v{T[2]}, vcc
    v_lshl_add_u32 v{T[2]}, v{T[2]}, 4, v{T[4]}
    v_add_u32 v{GV}, s{s_t0}, v{T[2]}
    v_mov_b32 v{MX[0]}, 0xff800000
    v_mov_b32 v{MX[1]}, 0xff800000
    s_mov_b32 s{s_ko}, {C_K * CH}
    {label}_slow1:
    buffer_load_dwordx4 {vr(K1[0], 4)}, v{GK}, s[{sWS}:{sWS + 3}], s{s_ko} offen
    buffer_load_dwordx2 {vr(K2[0], 2)}, v{GR}, s[{sWS}:{sWS + 3}], s{s_ko} offen
    s_add_u32 s{s_ko}, s{s_ko}, 512
    s_waitcnt vmcnt(0)
    """)
    for ab in range(2):
        a(qk1(SS[ab], ab, 0, 0))
        a(qk2(SS[ab], ab, 0))
    a("s_nop 7\ns_nop 3")
    for ab in range(2):
        for i in range(0, 16, 2):
            a(f"v_max3_f32 v{MX[ab]}, v{MX[ab]}, v{SS[ab] + i}, v{SS[ab] + i + 1}")
    a(f"s_cmp_lt_u32 s{s_ko}, {(C_K + 1) * CH}\ns_cbranch_scc1 {label}_slow1")
    for ab in range(2):
        set_shift(ab, 0)
    for r in range(OO[0], OO[0] + 32, 2):
        a(f"v_mov_b64 {vr(r, 2)}, 0")
    for r in range(4):
        a(f"v_mov_b32 v{V0[0] + r}, 0x3f803f80\nv_mov_b32 v{V1[0] + r}, 0x3f803f80")
    a(f"""
    s_mov_b32 s{s_ko}, {C_K * CH}
    s_mov_b32 s{s_vo}, {WS_V}
    {label}_slow2:
    buffer_load_dwordx4 {vr(K1[0], 4)}, v{GK}, s[{sWS}:{sWS + 3}], s{s_ko} offen
    buffer_load_dwordx2 {vr(K2[0], 2)}, v{GR}, s[{sWS}:{sWS + 3}], s{s_ko} offen
    s_mov_b32 exec_lo, 0xfffff
    s_mov_b32 exec_hi, 0xfffff
    buffer_load_dwordx4 {vr(V0[0], 4)}, v{GV}, s[{sWS}:{sWS + 3}], s{s_vo} offen
    s_add_u32 s{s_vo}, s{s_vo}, 20480
    buffer_load_dwordx4 {vr(V1[0], 4)}, v{GV}, s[{sWS}:{sWS + 3}], s{s_vo} offen
    s_mov_b64 exec, -1
    s_add_u32 s{s_vo}, s{s_vo}, 20480
    s_add_u32 s{s_ko}, s{s_ko}, 512
    s_waitcnt vmcnt(0)
    """)
    for ab in range(2):
        a(qk1(SS[ab], ab, 0, vr(CM[ab], 16)))
        a(qk2(SS[ab], ab, 0))
    a("s_nop 7\ns_nop 3")
    for ab in range(2):
        for i in range(16):
            a(f"v_exp_f32 v{SS[ab] + i}, v{SS[ab] + i}")
    a("s_nop 1")
    for ab in range(2):
        a(pv(ab, 0, 0))
        a(pv(ab, 1, 0))
    a(f"""
    s_cmp_lt_u32 s{s_ko}, {(C_K + 1) * CH}
    s_cbranch_scc1 {label}_slow2
    s_nop 7
    s_nop 3
    s_branch {label}_norm
    """)

    a(f"{label}_help:")
    vK, vR_, vV, vH, vW0, vW1, vP, vWl = 8, 9, 10, 11, 12, 13, 14, 15
    ACC = 16
    LB = [96 + 24 * i for i in range(4)]
    WOR = 96
    OF = 216
    swap23(a, T[2], T[0], T[3], T[4])
    a(f"""
    s_sub_u32 s{s_hw}, s{s_w}, 4
    v_lshlrev_b32 v{T[3]}, 4, v{T[2]}
    v_lshl_add_u32 v{vK}, v{T[1]}, 15, v{T[3]}
    v_add_u32 v{vK}, s{s_cm}, v{vK}
    v_lshl_add_u32 v{vR_}, v{T[1]}, 9, v{T[3]}
    v_add_u32 v{vR_}, s{s_cr}, v{vR_}
    v_cmp_le_u32 vcc, 20, v{vL}
    s_lshl_b32 s{s_ko}, s{s_hw}, 10
    s_add_u32 s{s_ko}, s{s_ko}, {C_K * CH}
    v_cndmask_b32 v{T[2]}, 0, 1, vcc
    v_mul_u32_u24 v{T[3]}, 20, v{T[2]}
    v_sub_u32 v{T[3]}, v{vL}, v{T[3]}
    v_mul_u32_u24 v{vV}, 10240, v{T[2]}
    """)
    swap23(a, T[2], T[3], T[4], T[5])
    a(f"""
    s_lshl_b32 s{s_t0}, s{s_par}, 2
    s_mul_i32 s{s_t1}, s{s_par}, -16
    v_cmp_gt_u32 vcc, 16, v{T[3]}
    v_add_u32 v{T[2]}, s{s_t0}, v{T[2]}
    v_add_u32 v{T[3]}, s{s_t1}, v{T[3]}
    s_mul_i32 s{s_t0}, s{s_head}, 320
    v_cndmask_b32 v{T[2]}, v{T[3]}, v{T[2]}, vcc
    v_lshl_add_u32 v{vV}, v{T[2]}, 4, v{vV}
    v_add_u32 v{vV}, s{s_t0}, v{vV}
    s_mul_i32 s{s_vo}, s{s_hw}, 81920
    s_add_u32 s{s_vo}, s{s_vo}, {WS_V}
    s_lshl_b32 s{s_t0}, s{s_tt}, 9
    v_lshlrev_b32 v{T[3]}, 4, v{T[0]}
    v_lshl_add_u32 v{vH}, v{T[1]}, 15, v{T[3]}
    v_add_u32 v{vH}, s{s_t0}, v{vH}
    s_mul_i32 s{s_t0}, s{s_cg}, 5120
    v_lshl_add_u32 v{vW0}, v{vL}, 4, s{s_t0}
    v_add_u32 v{vW1}, 4096, v{vW0}
    s_lshl_b32 s{s_ho}, s{s_hw}, 16
    s_mul_i32 s{s_wo}, s{s_hw}, 20480
    s_waitcnt lgkmcnt(0)
    """)
    srd(a, sWS, 12, WS_END)

    def kv_dma():
        a(f"""
        s_lshl_b32 s{s_t0}, s{s_hw}, 11
        s_add_u32 s{s_t0}, s{s_t0}, s{s_slot}
        s_mov_b32 m0, s{s_t0}
        s_lshl_b32 s{s_t1}, s{s_hw}, 10
        buffer_load_dwordx4 v{vK}, s[{sWS}:{sWS + 3}], s{s_ko} offen lds
        s_add_u32 m0, s{s_t0}, 512
        s_add_u32 s{s_t1}, s{s_t1}, s{s_slot}
        buffer_load_dwordx4 v{vK}, s[{sWS}:{sWS + 3}], s{s_ko} offen offset:512 lds
        s_add_u32 m0, s{s_t1}, {OFF_R}
        s_mul_i32 s{s_t0}, s{s_hw}, {4 * 656}
        buffer_load_dwordx4 v{vR_}, s[{sWS}:{sWS + 3}], s{s_ko} offen lds
        s_add_u32 s{s_t0}, s{s_t0}, s{s_slot}
        s_add_u32 s{s_ko}, s{s_ko}, 4096
        s_mov_b32 exec_hi, 0xff
        """)
        for i in range(4):
            a(f"""
            s_add_u32 m0, s{s_t0}, {OFF_V + 656 * i}
            s_add_u32 s{s_t1}, s{s_vo}, {20480 * i}
            buffer_load_dwordx4 v{vV}, s[{sWS}:{sWS + 3}], s{s_t1} offen lds
            """)
        a(f"""
        s_mov_b32 exec_hi, -1
        s_add_u32 s{s_vo}, s{s_vo}, {16 * 20480}
        s_add_u32 s{s_slot}, s{s_slot}, {SLOT}
        s_cmp_eq_u32 s{s_slot}, {3 * SLOT}
        s_cselect_b32 s{s_slot}, 0, s{s_slot}
        """)

    def ffn_loads(b):
        a(f"buffer_load_dwordx4 {vr(LB[b], 4)}, v{vH}, s[{sH}:{sH + 3}], s{s_ho} offen")
        for c in range(5):
            va, off = (vW0, 1024 * c) if c < 4 else (vW1, 0)
            a(f"buffer_load_dwordx4 {vr(LB[b] + 4 + 4 * c, 4)}, v{va}, s[{sW2}:{sW2 + 3}], s{s_wo} offen offset:{off}")
        a(f"s_add_u32 s{s_ho}, s{s_ho}, {8 * CH}\ns_add_u32 s{s_wo}, s{s_wo}, {4 * 20480}")

    kv_dma()
    a(f"""
    s_add_u32 s{sH}, s12, {C_H * CH}
    s_addc_u32 s{sH + 1}, s13, 0
    s_mov_b32 s{sH + 2}, {216 * CH}
    s_mov_b32 s{sH + 3}, 0x00020000
    s_add_u32 s{sW2}, s12, {WS_WT}
    s_addc_u32 s{sW2 + 1}, s13, 0
    s_mov_b32 s{sW2 + 2}, {108 * 20480}
    s_mov_b32 s{sW2 + 3}, 0x00020000
    """)
    for b in range(4):
        ffn_loads(b)
    a(f"""
    v_min_u32 v{T[2]}, 47, v{vL}
    v_lshrrev_b32 v{T[3]}, 4, v{T[2]}
    v_and_b32 v{T[2]}, 15, v{T[2]}
    v_mul_u32_u24 v{T[3]}, {SLOT}, v{T[3]}
    v_mul_u32_u24 v{T[2]}, 656, v{T[2]}
    v_add_u32 v{T[2]}, v{T[2]}, v{T[3]}
    """)
    for r in range(4):
        a(f"v_mov_b32 v{ACC + r}, 0x3f803f80")
    a(f"ds_write_b128 v{T[2]}, {vr(ACC, 4)} offset:{OFF_V + 640}\ns_waitcnt lgkmcnt(0)")
    for r in range(0, 80, 2):
        a(f"v_mov_b64 {vr(ACC + r, 2)}, 0")
    a("s_waitcnt vmcnt(24)\ns_barrier")
    stamp(a, prof, 1)
    a(f"{label}_hloop:")
    kv_dma()
    for b in range(4):
        a("s_waitcnt vmcnt(25)")
        if b == 3:
            a(f"s_cmp_eq_u32 s{s_c}, 6\ns_cbranch_scc1 {label}_hskip")
        for c in range(5):
            a(f"v_mfma_f32_32x32x16_bf16 {vr(ACC + 16 * c, 16)}, {vr(LB[b] + 4 + 4 * c, 4)}, {vr(LB[b], 4)}, {vr(ACC + 16 * c, 16)}")
        if b == 3:
            a(f"{label}_hskip:")
        ffn_loads(b)
    a(f"""
    s_add_u32 s{s_c}, s{s_c}, 1
    s_cmp_lt_u32 s{s_c}, 7
    s_waitcnt vmcnt(24)
    s_barrier
    s_cbranch_scc1 {label}_hloop
    """)
    stamp(a, prof, 2)
    a(f"""
    s_mul_i32 s{s_wo}, s{s_hw}, {10 * 20480}
    s_add_u32 s{s_wo}, s{s_wo}, {WS_WT + 108 * 20480}
    s_mul_i32 s{s_t2}, s{s_hw}, 20480
    s_add_u32 s{s_t2}, s{s_t2}, {LDS_WO}
    s_waitcnt vmcnt(0)
    """)
    for i in range(10):
        if i >= 6:
            a(f"s_add_u32 m0, s{s_t2}, {(i - 6) * 5120}\ns_nop 0")
        for c in range(5):
            va, off = (vW0, 1024 * c) if c < 4 else (vW1, 0)
            if i < 6:
                a(f"buffer_load_dwordx4 {vr(WOR + 20 * i + 4 * c, 4)}, v{va}, s[{sWS}:{sWS + 3}], s{s_wo} offen offset:{off}")
            else:
                if c == 4:
                    a(f"s_add_u32 m0, s{s_t2}, {(i - 6) * 5120 + 4096}\ns_nop 0")
                a(f"buffer_load_dwordx4 v{va}, s[{sWS}:{sWS + 3}], s{s_wo} offen offset:{off} lds")
        a(f"s_add_u32 s{s_wo}, s{s_wo}, 20480")
    a(f"""
    v_lshl_add_u32 v{vWl}, v{vL}, 4, s{s_t2}
    s_mov_b32 s{s_t3}, {P_BASE[3]}
    s_mul_i32 s{s_t0}, s{s_hw}, {P_SIZE}
    s_cmp_eq_u32 s{s_hw}, 3
    s_cselect_b32 s{s_t0}, s{s_t3}, s{s_t0}
    v_mul_u32_u24 v{vP}, {P_STRIDE}, v{T[0]}
    v_lshl_add_u32 v{vP}, v{T[1]}, 5, v{vP}
    v_add_u32 v{vP}, s{s_t0}, v{vP}
    s_mul_i32 s{s_ho}, s{s_hw}, {20 * CH}
    s_add_u32 s{s_ho}, s{s_ho}, {C_O * CH}
    s_mov_b32 s{s_spin}, 0x40000
    """)
    final_addr()
    a("s_barrier")
    stamp(a, prof, 3)
    a("s_barrier")
    stamp(a, prof, 4)
    a(f"{label}_poll:\ns_mov_b32 s{s_t0}, s{s_ho}")
    for i in range(10):
        a(f"buffer_load_dwordx4 {vr(OF + 4 * i, 4)}, v{vH}, s[{sWS}:{sWS + 3}], s{s_t0} offen sc1")
        a(f"s_add_u32 s{s_t0}, s{s_t0}, {2 * CH}")
    a(f"s_sub_u32 s{s_spin}, s{s_spin}, 1\ns_waitcnt vmcnt(0)")
    a(f"v_max_u32 v{T[3]}, v{OF + 1}, v{OF + 3}")
    for i in range(1, 10):
        a(f"v_max3_u32 v{T[3]}, v{T[3]}, v{OF + 4 * i + 1}, v{OF + 4 * i + 3}")
    a(f"""
    v_cmp_eq_u32 vcc, -1, v{T[3]}
    s_cmp_eq_u32 s{s_spin}, 0
    s_cbranch_scc1 {label}_got
    s_cbranch_vccnz {label}_poll
    {label}_got:
    """)
    stamp(a, prof, 5)
    if prof:
        a("s_waitcnt lgkmcnt(0)")
    for i in range(10):
        wbase = WOR + 20 * (i if i < 6 else i - 5)
        if i >= 6:
            a(f"s_waitcnt lgkmcnt({(10, 10, 5, 0)[i - 6]})")
        for c in range(5):
            a(f"v_mfma_f32_32x32x16_bf16 {vr(ACC + 16 * c, 16)}, {vr(wbase + 4 * c, 4)}, {vr(OF + 4 * i, 4)}, {vr(ACC + 16 * c, 16)}")
        if i == 0:
            final_loads()
        ld = {1: 6, 2: 7, 3: 8, 6: 9}.get(i)
        if ld is not None:
            for c in range(5):
                a(f"ds_read_b128 {vr(WOR + 20 * (ld - 5) + 4 * c, 4)}, v{vWl} offset:{(ld - 6) * 5120 + 1024 * c}")
    a("s_nop 7")
    for c in range(5):
        if c == 3:
            a("s_waitcnt lgkmcnt(4)")
        for q in range(4):
            a(f"ds_write_b128 v{vP}, {vr(ACC + 16 * c + 4 * q, 4)} offset:{128 * c + 64 * (q >> 1) + 16 * (q & 1)}")
    a("s_waitcnt lgkmcnt(0)")

    a(f"{label}_final:\ns_barrier")
    stamp(a, prof, 6)
    if prof:
        a("s_waitcnt lgkmcnt(0)")
    a(f"v_add_u32 v{T[3]}, {P_BASE[3]}, v{T[2]}")
    for ps in range(2):
        for p in range(4):
            va, off = (T[2], P_BASE[p]) if p < 3 else (T[3], 0)
            for hq in range(2):
                a(f"ds_read_b128 {vr(RB + 32 * ps + 8 * p + 4 * hq, 4)}, v{va} offset:{off + 2 * P_STRIDE * ps + 16 * hq}")
        if ps == 0:
            a("s_waitcnt vmcnt(0)")
            U = RB + 64
            for i in range(12):
                a(f"v_lshlrev_b32 v{U + 2 * i}, 16, v{XR + i}\nv_and_b32 v{U + 2 * i + 1}, 0xffff0000, v{XR + i}")
            for k in range(2):
                for p in range(4):
                    a(f"v_pk_add_f32 {vr(U + 8 * k + 2 * p, 2)}, {vr(U + 8 * k + 2 * p, 2)}, {vr(U + 16 + 2 * p, 2)}")
            a("s_waitcnt lgkmcnt(7)")
    a("s_mov_b32 exec_hi, 0xff")
    for ps in range(2):
        a(f"s_waitcnt lgkmcnt({8 if ps == 0 else 0})")
        r = RB + 32 * ps
        for p in range(4):
            a(f"v_pk_add_f32 {vr(r + 2 * p, 2)}, {vr(r + 2 * p, 2)}, {vr(r + 8 + 2 * p, 2)}")
            a(f"v_pk_add_f32 {vr(r + 16 + 2 * p, 2)}, {vr(r + 16 + 2 * p, 2)}, {vr(r + 24 + 2 * p, 2)}")
        for p in range(4):
            a(f"v_pk_add_f32 {vr(r + 2 * p, 2)}, {vr(r + 2 * p, 2)}, {vr(U + 8 * ps + 2 * p, 2)}")
        for p in range(4):
            a(f"v_pk_add_f32 {vr(r + 2 * p, 2)}, {vr(r + 2 * p, 2)}, {vr(r + 16 + 2 * p, 2)}")
        for p in range(4):
            a(f"v_cvt_pk_bf16_f32 v{r + 8 + p}, v{r + 2 * p}, v{r + 2 * p + 1}")
        a(f"buffer_store_dwordx4 {vr(r + 8, 4)}, v{T[0]}, s[{sOUT}:{sOUT + 3}], 0 offen offset:{2560 * ps}")
    if prof:
        a("s_mov_b64 exec, -1\ns_waitcnt vmcnt(0)")
        stamp(a, prof, 7)
        dump_stamps(a, 8, sWS, 1, s_w, 8, T[0], T[1])
    a(f"{label}_end:\ns_endpgm")
    return kernel_header(label) + a.text(), kernel_desc(label, 256), K2_LDS
```

```python
import sys
from common import *
from k1 import gen_k1
from k2 import gen_k2


def build(prof=False, **kw):
    ref = open(f"cdna_kernels/{NAME}.s.ref").read().split("\n")
    head = [ln for ln in ref if ln.startswith(";") and "launch" not in ln.lower() and "grid=" not in ln]
    c1, d1, l1 = gen_k1("proj_kernel", prof)
    c2, d2, l2 = gen_k2("attn_kernel", prof, **kw)
    out = "\n".join(head) + "\n"
    out += f"; @launch kernel=proj_kernel grid=(256,1,1) block=(256,1,1) lds={l1}\n"
    out += f"; @launch kernel=attn_kernel grid=(256,1,1) block=(512,1,1) lds={l2}\n"
    out += '.amdgcn_target "amdgcn-amd-amdhsa--gfx950"\n.text\n'
    out += c1 + c2
    out += '.section .rodata,"a"\n' + d1 + d2
    return out


if __name__ == "__main__":
    path = sys.argv[1] if len(sys.argv) > 1 else f"cdna_kernels/{NAME}.s"
    opts = sys.argv[2:]
    open(path, "w").write(build(prof="prof" in opts, force_fallback="slow" in opts))
```

```python
import math
import struct
from common import *

LDS_X = 0
LDS_W = 3 * 16384
LDS_ST = LDS_W + 4 * 3 * 8192
K1_LDS = LDS_ST + 1024 + 2048
QSCALE = struct.unpack("<I", struct.pack("<f", math.log2(math.e) / math.sqrt(20.0)))[0]
INV_D = struct.unpack("<I", struct.pack("<f", 1.0 / 640.0))[0]
EPS = struct.unpack("<I", struct.pack("<f", 1e-5))[0]

sX, sW, sWS, sB = 24, 28, 32, 36
s_rb, s_cg, s_w, s_u, s_str, s_wo, s_xo, s_wl, s_xl, s_c, s_str32 = 40, 41, 42, 43, 44, 45, 46, 47, 48, 49, 50
s_t0, s_t1, s_t2, s_t3 = 52, 53, 54, 55


def gen_k1(label, prof=False):
    a = Asm()
    R = Regs(1)
    vL = R.get()
    T = [R.get() for _ in range(6)]
    S1, S2 = R.get(), R.get()
    SI = R.get()
    AW = [R.get(), R.get()]
    VW = [R.get() for _ in range(4)]
    SA = R.get(4)
    CSD = R.get(4)
    AX = [[R.get() for _ in range(4)] for _ in range(4)]
    VX = [R.get() for _ in range(4)]
    BR = AX[1][0]
    tmp0 = R.get(0, 2)
    XF = [[R.get(4) for _ in range(4)] for _ in range(2)]
    WF = [R.get(8) for _ in range(2)]
    EX = R.get(32)
    ACC = R.get(128)
    nv = R.next

    def acc(tt, ct):
        return ACC + (tt * 2 + ct) * 16

    a(f"""
    s_cmp_ge_u32 s2, 256
    s_cbranch_scc1 {label}_end
    s_load_dwordx16 s[4:19], s[0:1], 0
    s_load_dwordx2 s[20:21], s[0:1], 80
    """)
    stamp(a, prof, 0)
    a(f"""
    v_and_b32 v{vL}, 63, v0
    v_lshrrev_b32 v{T[0]}, 6, v0
    s_and_b32 s{s_t0}, s2, 7
    v_readfirstlane_b32 s{s_w}, v{T[0]}
    s_lshr_b32 s{s_t1}, s2, 3
    s_and_b32 s{s_rb}, s{s_t0}, 1
    s_lshl_b32 s{s_rb}, s{s_rb}, 3
    s_and_b32 s{s_t2}, s{s_t1}, 7
    s_add_u32 s{s_rb}, s{s_rb}, s{s_t2}
    s_lshr_b32 s{s_cg}, s{s_t0}, 1
    s_lshl_b32 s{s_cg}, s{s_cg}, 2
    s_lshr_b32 s{s_t2}, s{s_t1}, 3
    s_add_u32 s{s_cg}, s{s_cg}, s{s_t2}
    s_lshl_b32 s{s_u}, s{s_cg}, 2
    s_add_u32 s{s_u}, s{s_u}, s{s_w}
    s_min_u32 s{s_u}, s{s_u}, 56
    s_mul_i32 s{s_wl}, s{s_w}, 24576
    s_add_u32 s{s_wl}, s{s_wl}, {LDS_W}
    s_lshl_b32 s{s_xl}, s{s_w}, 12
    """)
    a(f"""
    s_cmp_lt_u32 s{s_u}, 30
    s_mov_b32 s{s_str}, 3840
    s_cselect_b32 s{s_str}, s{s_str}, 3456
    s_cselect_b32 s{s_t0}, 0, 30
    s_sub_u32 s{s_t0}, s{s_u}, s{s_t0}
    s_lshl_b32 s{s_t0}, s{s_t0}, 7
    s_cmp_eq_u32 s{s_cg}, 15
    s_cselect_b32 s{s_str}, 1280, s{s_str}
    s_cselect_b32 s{s_t0}, 0, s{s_t0}
    s_lshl_b32 s{s_str32}, s{s_str}, 5
    """)
    a(f"""
    v_lshrrev_b32 v{T[0]}, 3, v{vL}
    v_and_b32 v{T[1]}, 7, v{vL}
    v_lshrrev_b32 v{T[2]}, 2, v{vL}
    v_and_b32 v{T[2]}, 4, v{T[2]}
    v_xor_b32 v{T[2]}, v{T[2]}, v{T[1]}
    v_lshlrev_b32 v{T[2]}, 4, v{T[2]}
    v_mul_u32_u24 v{T[3]}, s{s_str}, v{T[0]}
    v_add3_u32 v{VW[0]}, v{T[3]}, v{T[2]}, s{s_t0}
    s_lshl_b32 s{s_t1}, s{s_str}, 3
    s_sub_u32 s{s_t1}, s{s_t1}, 1024
    v_add_u32 v{VW[1]}, s{s_t1}, v{VW[0]}
    v_add_u32 v{VW[2]}, s{s_t1}, v{VW[1]}
    v_add_u32 v{VW[3]}, s{s_t1}, v{VW[2]}
    """)
    a(f"""
    v_lshrrev_b32 v{T[2]}, 5, v{vL}
    v_lshlrev_b32 v{T[2]}, 10, v{T[2]}
    v_bfe_u32 v{T[3]}, v{vL}, 2, 2
    v_lshl_add_u32 v{T[2]}, v{T[3]}, 7, v{T[2]}
    v_bfe_u32 v{T[3]}, v{vL}, 3, 1
    v_lshl_add_u32 v{T[2]}, v{T[3]}, 6, v{T[2]}
    v_bfe_u32 v{T[3]}, v{vL}, 4, 1
    v_lshl_add_u32 v{T[2]}, v{T[3]}, 5, v{T[2]}
    v_and_b32 v{T[3]}, 1, v{vL}
    v_lshl_add_u32 v{T[2]}, v{T[3]}, 4, v{T[2]}
    v_bfe_u32 v{T[3]}, v{vL}, 1, 1
    v_lshl_add_u32 v{T[2]}, v{T[3]}, 3, v{T[2]}
    v_add_u32 v{AW[0]}, s{s_wl}, v{T[2]}
    v_xor_b32 v{AW[1]}, 64, v{AW[0]}
    """)
    a(f"""
    s_lshl_b32 s{s_t1}, s{s_rb}, 2
    s_add_u32 s{s_t1}, s{s_t1}, s{s_w}
    s_mul_i32 s{s_t1}, s{s_t1}, {32 * 1280}
    v_lshrrev_b32 v{T[2]}, 4, v{vL}
    v_xor_b32 v{T[2]}, v{T[2]}, v{T[1]}
    v_lshlrev_b32 v{T[2]}, 4, v{T[2]}
    v_mul_u32_u24 v{T[3]}, 1280, v{T[0]}
    v_add3_u32 v{VX[0]}, v{T[3]}, v{T[2]}, s{s_t1}
    v_xor_b32 v{T[2]}, 64, v{T[2]}
    v_add3_u32 v{VX[1]}, v{T[3]}, v{T[2]}, s{s_t1}
    v_add_u32 v{VX[1]}, {8 * 1280 - 1024}, v{VX[1]}
    v_add_u32 v{VX[2]}, {2 * (8 * 1280 - 1024)}, v{VX[0]}
    v_add_u32 v{VX[3]}, {2 * (8 * 1280 - 1024)}, v{VX[1]}
    s_waitcnt lgkmcnt(0)
    """)
    srd(a, sWS, 20, WS_END)
    a(f"""
    s_cmp_eq_u32 s{s_cg}, 15
    s_cbranch_scc1 {label}_tr
    """)
    srd(a, sX, 4, S * D * 2)
    a(f"""
    s_cmp_lt_u32 s{s_u}, 30
    s_cselect_b32 s{sW}, s6, s12
    s_cselect_b32 s{sW + 1}, s7, s13
    s_mov_b32 s{sW + 2}, {D * 3 * D * 2}
    s_cselect_b32 s{sW + 2}, s{sW + 2}, {D * F * 2}
    s_mov_b32 s{sW + 3}, 0x00020000
    s_mov_b32 s{s_wo}, 0
    s_mov_b32 s{s_xo}, 0
    """)

    def dma_x_setup(slot):
        return [f"s_add_u32 m0, s{s_xl}, {LDS_X + slot * 16384}"]

    def dma_x(i):
        return f"buffer_load_dwordx4 v{VX[i]}, s[{sX}:{sX + 3}], s{s_xo} offen offset:{1024 * i} lds"

    def dma_w_setup(slot, g):
        return [f"s_add_u32 m0, s{s_wl}, {slot * 8192 + g * 4096}"]

    def dma_w(i):
        return f"buffer_load_dwordx4 v{VW[i]}, s[{sW}:{sW + 3}], s{s_wo} offen offset:{1024 * i} lds"

    x_adv = f"s_add_u32 s{s_xo}, s{s_xo}, 128"
    w_adv = f"s_add_u32 s{s_wo}, s{s_wo}, s{s_str32}"

    for slot in range(2):
        a("\n".join(dma_x_setup(slot)) + "\ns_nop 0")
        for i in range(4):
            a(dma_x(i))
        a(x_adv)
        for g in range(2):
            a("\n".join(dma_w_setup(slot, g)) + "\ns_nop 0")
            for i in range(4):
                a(dma_w(i))
            a(w_adv)
    stamp(a, prof, 1)

    a(f"""
    v_and_b32 v{T[0]}, 31, v{vL}
    v_lshrrev_b32 v{T[1]}, 5, v{vL}
    v_bfe_u32 v{T[2]}, v{vL}, 1, 3
    v_xor_b32 v{T[2]}, v{T[2]}, v{T[1]}
    v_lshlrev_b32 v{T[2]}, 4, v{T[2]}
    v_lshl_add_u32 v{T[2]}, v{T[0]}, 7, v{T[2]}
    v_add_u32 v{AX[0][0]}, s{s_xl}, v{T[2]}
    """)
    for s in range(4):
        for tt in range(4):
            if s or tt:
                a(f"v_xor_b32 v{AX[s][tt]}, {s * 32 + tt * 4096}, v{AX[0][0]}")
    a(f"""
    v_bfe_u32 v{T[2]}, v{vL}, 2, 2
    v_cmp_eq_u32 vcc, v{T[2]}, v{T[1]}
    v_mov_b32 v{T[3]}, 0x3f803f80
    v_bfe_u32 v{T[4]}, v{vL}, 1, 1
    v_cndmask_b32 v{T[3]}, 0, v{T[3]}, vcc
    v_cmp_eq_u32 vcc, 0, v{T[4]}
    v_and_b32 v{T[4]}, 1, v{vL}
    v_mov_b32 v{T[5]}, 0xeeeeeeee
    v_cndmask_b32 v{SA}, 0, v{T[3]}, vcc
    v_cndmask_b32 v{SA + 1}, 0, v{T[3]}, vcc
    v_xor_b32 v{SA + 2}, v{SA}, v{T[3]}
    v_xor_b32 v{SA + 3}, v{SA}, v{T[3]}
    v_cmp_eq_u32 vcc, 1, v{T[4]}
    v_mov_b32 v{S1}, 0
    v_mov_b32 v{S2}, 0
    v_mov_b32 v{SI}, 0x44444444
    v_cndmask_b32 v{SI}, v{SI}, v{T[5]}, vcc
    """)
    for i in range(4):
        a(f"v_mov_b32 v{CSD + i}, 0")
    for i in range(0, 128, 2):
        a(f"v_mov_b64 v[{ACC + i}:{ACC + i + 1}], 0")

    def reads(slot, s, b):
        wo = slot * 8192 + s * 2048
        xo = LDS_X + slot * 16384
        return [
            f"ds_read_b64_tr_b16 {vr(WF[b], 2)}, v{AW[0]} offset:{wo}",
            f"ds_read_b64_tr_b16 {vr(WF[b] + 2, 2)}, v{AW[0]} offset:{wo + 512}",
            f"ds_read_b128 {vr(XF[b][0], 4)}, v{AX[s][0]} offset:{xo}",
            f"ds_read_b64_tr_b16 {vr(WF[b] + 4, 2)}, v{AW[1]} offset:{wo}",
            f"ds_read_b64_tr_b16 {vr(WF[b] + 6, 2)}, v{AW[1]} offset:{wo + 512}",
            f"ds_read_b128 {vr(XF[b][1], 4)}, v{AX[s][1]} offset:{xo}",
            f"ds_read_b128 {vr(XF[b][2], 4)}, v{AX[s][2]} offset:{xo}",
            f"ds_read_b128 {vr(XF[b][3], 4)}, v{AX[s][3]} offset:{xo}",
        ]

    def stats(b):
        o = []
        for i in range(4):
            x = XF[b][0] + i
            lo, hi = T[2 * (i & 1)], T[2 * (i & 1) + 1]
            o += [
                f"v_lshlrev_b32 v{lo}, 16, v{x}",
                f"v_and_b32 v{hi}, 0xffff0000, v{x}",
                f"v_add_f32 v{S1}, v{S1}, v{lo}",
                f"v_fmac_f32 v{S2}, v{lo}, v{lo}",
                f"v_add_f32 v{S1}, v{S1}, v{hi}",
                f"v_fmac_f32 v{S2}, v{hi}, v{hi}",
            ]
        return o

    a(f"""
    s_mov_b32 s{s_c}, 0
    s_waitcnt vmcnt(12)
    s_barrier
    """)
    stamp(a, prof, 2)
    for r in reads(0, 0, 0):
        a(r)
    a(f"""
    s_sub_u32 s{s_t0}, s{s_u}, 20
    s_cmp_lt_u32 s{s_t0}, 10
    s_waitcnt lgkmcnt(0)
    s_cbranch_scc1 {label}_loopV
    """)

    def mainloop(tag, vtype):
        a(f".p2align 3\n{label}_loop{tag}:")
        for slot in range(3):
            nslot = (slot + 1) % 3
            dslot = (slot + 2) % 3
            for s in range(4):
                b, nb = s & 1, (s + 1) & 1
                rd = reads(slot, s + 1, nb) if s < 3 else reads(nslot, 0, nb)
                st = stats(b)
                fill = [[] for _ in range(9)]
                if s == 3:
                    fill[0] += ["s_waitcnt vmcnt(12)", "s_barrier"]
                for m in range(4):
                    fill[m] += rd[2 * m:2 * m + 2] + st[4 * m:4 * m + 4]
                if s == 0:
                    fill[2] = [f"s_cmp_lt_u32 s{s_c}, 8"] + fill[2]
                    fill[3] = [f"s_cselect_b32 s{sX + 2}, {S * D * 2}, 0"] + fill[3]
                    fill[1] = dma_x_setup(dslot) + fill[1]
                    dm, adv = [dma_x(i) for i in range(4)], x_adv
                elif s < 3:
                    fill[1] = dma_w_setup(dslot, s - 1) + fill[1]
                    dm, adv = [dma_w(i) for i in range(4)], w_adv
                else:
                    dm, adv = None, f"s_add_u32 s{s_c}, s{s_c}, 1"
                for m in range(4, 8):
                    if dm:
                        fill[m].append(dm[m - 4])
                    fill[m] += st[16 + 2 * (m - 4):16 + 2 * (m - 4) + 2]
                fill[8] += [adv, "s_waitcnt lgkmcnt(0)"]
                for m in range(8):
                    tt, ct = m >> 1, m & 1
                    wf, xf = vr(WF[b] + 4 * ct, 4), vr(XF[b][tt], 4)
                    A, B = (xf, wf) if vtype else (wf, xf)
                    a(f"v_mfma_f32_32x32x16_bf16 {vr(acc(tt, ct), 16)}, {A}, {B}, {vr(acc(tt, ct), 16)}")
                    for f in fill[m]:
                        a(f)
                a(f"v_smfmac_f32_16x16x64_bf16 {vr(CSD, 4)}, {vr(SA, 4)}, {vr(WF[b], 8)}, v{SI}")
                for f in fill[8]:
                    a(f)
            if slot == 0:
                a(f"s_cmp_eq_u32 s{s_c}, 10\ns_cbranch_scc1 {label}_epi")
        a(f"s_branch {label}_loop{tag}")

    mainloop("N", False)
    mainloop("V", True)

    a(f"{label}_epi:")
    stamp(a, prof, 3)
    srd(a, sB, 14, F * 2)
    a(f"""
    v_lshrrev_b32 v{T[4]}, 5, v{vL}
    s_sub_u32 s{s_t0}, s{s_u}, 30
    s_max_i32 s{s_t0}, s{s_t0}, 0
    s_lshl_b32 s{s_t0}, s{s_t0}, 7
    v_lshlrev_b32 v{T[5]}, 4, v{T[4]}
    """)
    for q in range(4):
        a(f"buffer_load_dwordx4 {vr(BR + 4 * q, 4)}, v{T[5]}, s[{sB}:{sB + 3}], s{s_t0} offen offset:{32 * q}")
    a(f"""
    v_mov_b32 v{T[0]}, v{S1}
    v_mov_b32 v{T[1]}, v{S2}
    v_and_b32 v{T[5]}, 31, v{vL}
    s_lshl_b32 s{s_t1}, s{s_w}, 7
    v_permlane32_swap_b32 v{S1}, v{T[0]}
    v_permlane32_swap_b32 v{S2}, v{T[1]}
    s_add_u32 s{s_t1}, s{s_t1}, {LDS_ST}
    v_add_f32 v{S1}, v{S1}, v{T[0]}
    v_add_f32 v{S2}, v{S2}, v{T[1]}
    v_mul_f32 v{S1}, {INV_D | 0x80000000}, v{S1}
    v_mul_f32 v{S2}, {INV_D}, v{S2}
    v_fma_f32 v{S2}, -v{S1}, v{S1}, v{S2}
    v_max_f32 v{S2}, 0, v{S2}
    v_add_f32 v{S2}, {EPS}, v{S2}
    v_rsq_f32 v{S2}, v{S2}
    v_lshl_add_u32 v{T[2]}, v{T[5]}, 2, s{s_t1}
    ds_write2_b32 v{T[2]}, v{S1}, v{S2} offset0:0 offset1:128
    """)
    a(f"v_and_b32 v{T[0]}, 15, v{vL}")
    swap23(a, T[0], T[0], T[1], T[3])
    a(f"""
    v_lshrrev_b32 v{T[1]}, 4, v{vL}
    v_lshl_add_u32 v{T[0]}, v{T[1]}, 5, v{T[0]}
    s_lshl_b32 s{s_t2}, s{s_w}, 9
    s_add_u32 s{s_t2}, s{s_t2}, {LDS_ST + 1024}
    v_lshl_add_u32 v{T[0]}, v{T[0]}, 2, s{s_t2}
    v_add_f32 v{CSD}, v{CSD}, v{CSD + 1}
    v_add_f32 v{CSD + 2}, v{CSD + 2}, v{CSD + 3}
    ds_write2_b32 v{T[0]}, v{CSD}, v{CSD + 2} offset0:0 offset1:16
    s_sub_u32 s{s_t0}, s{s_u}, 20
    s_cmp_lt_u32 s{s_t0}, 10
    s_waitcnt lgkmcnt(0)
    s_barrier
    s_cbranch_scc1 {label}_epiV
    """)
    CSr = tmp0
    NR = tmp0 + 32
    OB = tmp0 + 40
    Bf = EX
    VS = AX[0]
    a(f"v_lshl_add_u32 v{T[0]}, v{T[4]}, 5, s{s_t2}")
    for q in range(4):
        for hq in range(2):
            a(f"ds_read_b128 {vr(CSr + 8 * q + 4 * hq, 4)}, v{T[0]} offset:{64 * q + 16 * hq}")
    for tt in range(4):
        a(f"v_xor_b32 v{T[1]}, {tt * 128}, v{T[2]}\nds_read2_b32 {vr(NR + 2 * tt, 2)}, v{T[1]} offset0:0 offset1:128")
    a(f"""
    s_lshl_b32 s{s_t1}, s{s_rb}, 2
    s_add_u32 s{s_t1}, s{s_t1}, s{s_w}
    s_lshl_b32 s{s_t1}, s{s_t1}, 9
    v_lshlrev_b32 v{T[0]}, 15, v{T[4]}
    v_lshl_add_u32 v{T[0]}, v{T[5]}, 4, v{T[0]}
    v_add_u32 v{VS[0]}, s{s_t1}, v{T[0]}
    v_xor_b32 v{VS[1]}, 512, v{VS[0]}
    v_xor_b32 v{VS[2]}, 1024, v{VS[0]}
    v_xor_b32 v{VS[3]}, 1536, v{VS[0]}
    s_cmp_lt_u32 s{s_u}, 20
    s_cselect_b32 s{s_t0}, 0, 10
    s_sub_u32 s{s_t0}, s{s_u}, s{s_t0}
    s_lshl_b32 s56, s{s_t0}, 18
    s_add_u32 s57, s56, {2 * CH}
    s_add_u32 s58, s56, {4 * CH}
    s_add_u32 s59, s56, {6 * CH}
    s_cmp_lt_u32 s{s_u}, 20
    s_cbranch_scc0 {label}_epiF
    s_cmp_lt_u32 s{s_u}, 10
    s_cselect_b32 s{s_t0}, {QSCALE}, 1.0
    s_waitcnt lgkmcnt(0)
    """)
    for tt in range(4):
        a(f"v_mul_f32 v{NR + 2 * tt + 1}, s{s_t0}, v{NR + 2 * tt + 1}")

    def plain_tiles(ffn):
        k = 0
        for tt in range(4):
            nr = vr(NR + 2 * tt, 2)
            for ct in range(2):
                for jj in range(2):
                    ob = OB + 4 * (k & 1)
                    k += 1
                    base = acc(tt, ct) + 8 * jj
                    q = ct * 2 + jj
                    for p in range(4):
                        r = vr(base + 2 * p, 2)
                        a(f"v_pk_fma_f32 {r}, {vr(CSr + 8 * q + 2 * p, 2)}, {nr}, {r} op_sel:[0,0,0] op_sel_hi:[1,0,1]")
                    for p in range(4):
                        r = vr(base + 2 * p, 2)
                        if ffn:
                            a(f"v_pk_fma_f32 {r}, {r}, {nr}, {vr(Bf + 8 * q + 2 * p, 2)} op_sel:[0,1,0] op_sel_hi:[1,1,1]")
                        else:
                            a(f"v_pk_mul_f32 {r}, {r}, {nr} op_sel:[0,1] op_sel_hi:[1,1]")
                    if ffn:
                        for i in range(8):
                            a(f"v_max_f32 v{base + i}, 0, v{base + i}")
                        for p in range(4):
                            r = vr(base + 2 * p, 2)
                            a(f"v_pk_mul_f32 {r}, {r}, {r}")
                    for p in range(4):
                        a(f"v_cvt_pk_bf16_f32 v{ob + p}, v{base + 2 * p}, v{base + 2 * p + 1}")
                    a(f"buffer_store_dwordx4 {vr(ob, 4)}, v{VS[tt]}, s[{sWS}:{sWS + 3}], s{56 + q} offen")

    plain_tiles(False)
    a(f"s_branch {label}_fill")
    a(f"{label}_epiF:\ns_waitcnt vmcnt(0)")
    for i in range(16):
        a(f"v_lshlrev_b32 v{Bf + 2 * i}, 16, v{BR + i}\nv_and_b32 v{Bf + 2 * i + 1}, 0xffff0000, v{BR + i}")
    a("s_waitcnt lgkmcnt(0)")
    plain_tiles(True)
    a(f"s_branch {label}_fill")

    a(f"{label}_epiV:")
    CP = NR
    ST = [tmp0, EX]
    swap23(a, T[0], T[5], T[1], T[3])
    a(f"""
    v_lshl_add_u32 v{T[1]}, v{T[0]}, 2, s{s_t2}
    ds_read2_b32 {vr(CP, 2)}, v{T[1]} offset0:0 offset1:32
    s_lshl_b32 s{s_t1}, s{s_w}, 7
    s_add_u32 s{s_t1}, s{s_t1}, {LDS_ST}
    v_lshl_add_u32 v{T[2]}, v{T[4]}, 4, s{s_t1}
    s_sub_u32 s{s_t0}, s{s_u}, 20
    s_lshl_b32 s{s_t0}, s{s_t0}, 10
    v_mul_u32_u24 v{T[3]}, 10240, v{T[4]}
    v_lshl_add_u32 v{T[3]}, v{T[0]}, 4, v{T[3]}
    v_add_u32 v{VS[0]}, s{s_t0}, v{T[3]}
    """)

    def v_reads(tt):
        a(f"v_xor_b32 v{T[1]}, {tt * 128}, v{T[2]}")
        for j in range(4):
            a(f"ds_read_b128 {vr(ST[tt & 1] + 4 * j, 4)}, v{T[1]} offset:{32 * j}")
            a(f"ds_read_b128 {vr(ST[tt & 1] + 16 + 4 * j, 4)}, v{T[1]} offset:{512 + 32 * j}")

    v_reads(0)
    k = 0
    for tt in range(4):
        if tt < 3:
            a("s_waitcnt lgkmcnt(7)")
            v_reads(tt + 1)
        a(f"""
        s_xor_b32 s{s_t0}, s{s_w}, {tt}
        s_lshl_b32 s{s_t1}, s{s_rb}, 2
        s_add_u32 s{s_t0}, s{s_t0}, s{s_t1}
        s_mul_i32 s{s_t0}, s{s_t0}, 40960
        s_add_u32 s56, s{s_t0}, {WS_V}
        s_add_u32 s57, s56, 20480
        s_waitcnt lgkmcnt({8 if tt < 3 else 0})
        """)
        st = ST[tt & 1]
        for ct in range(2):
            for j in range(2):
                ob = OB + 4 * (k & 1)
                k += 1
                base = acc(tt, ct) + 8 * j
                for p in range(4):
                    r = vr(base + 2 * p, 2)
                    a(f"v_pk_fma_f32 {r}, {vr(st + 8 * j + 2 * p, 2)}, {vr(CP, 2)}, {r} op_sel:[0,{ct},0] op_sel_hi:[1,{ct},1]")
                for p in range(4):
                    r = vr(base + 2 * p, 2)
                    a(f"v_pk_mul_f32 {r}, {r}, {vr(st + 16 + 8 * j + 2 * p, 2)}")
                for p in range(4):
                    a(f"v_cvt_pk_bf16_f32 v{ob + p}, v{base + 2 * p}, v{base + 2 * p + 1}")
                a(f"buffer_store_dwordx4 {vr(ob, 4)}, v{VS[0]}, s[{sWS}:{sWS + 3}], s{56 + j} offen offset:{512 * ct}")
    a(f"s_branch {label}_fill")

    a(f"{label}_tr:")
    for i in (1, 2, 3):
        stamp(a, prof, i)
    s_q, s_kc, s_cu, s_rnd = 56, 57, 58, 59
    TF = ACC
    a(f"""
    s_lshl_b32 s{s_q}, s{s_rb}, 2
    s_add_u32 s{s_q}, s{s_q}, s{s_w}
    s_mov_b32 s{s_rnd}, 0
    s_mov_b32 s{sW + 3}, 0x00020000
    v_lshlrev_b32 v{T[0]}, 4, v{vL}
    v_add_u32 v{T[1]}, 20480, v{T[0]}
    v_add_u32 v{T[2]}, 40960, v{T[0]}
    v_add_u32 v{T[3]}, 61440, v{T[0]}
    {label}_trloop:
    """)
    for slot in range(3):
        a(f"""
        s_min_u32 s{s_t0}, s{s_q}, 369
        s_mul_i32 s{s_kc}, s{s_t0}, 6554
        s_lshr_b32 s{s_kc}, s{s_kc}, 16
        s_mul_i32 s{s_t1}, s{s_kc}, 10
        s_sub_u32 s{s_cu}, s{s_t0}, s{s_t1}
        s_mul_i32 s{60 + slot}, s{s_kc}, 81920
        s_lshl_b32 s{s_t1}, s{s_cu}, 11
        s_add_u32 s{60 + slot}, s{60 + slot}, s{s_t1}
        s_add_u32 s{60 + slot}, s{60 + slot}, {WS_WT}
        s_cmp_lt_u32 s{s_kc}, 27
        s_cselect_b32 s{sW}, s16, s8
        s_cselect_b32 s{sW + 1}, s17, s9
        s_mov_b32 s{sW + 2}, {F * D * 2}
        s_cselect_b32 s{sW + 2}, s{sW + 2}, {D * D * 2}
        s_cselect_b32 s{s_t1}, 0, 27
        s_sub_u32 s{s_t1}, s{s_kc}, s{s_t1}
        s_mul_i32 s{s_wo}, s{s_t1}, {64 * 1280}
        s_lshl_b32 s{s_t1}, s{s_cu}, 7
        s_add_u32 s{s_wo}, s{s_wo}, s{s_t1}
        s_add_u32 s{s_q}, s{s_q}, 64
        """)
        for g in range(2):
            a("\n".join(dma_w_setup(slot, g)) + "\ns_nop 0")
            for i in range(4):
                a(dma_w(i))
            a(w_adv)
    for slot in range(3):
        a("s_waitcnt vmcnt(16)")
        for s in range(4):
            wo = slot * 8192 + s * 2048
            for ct in range(2):
                f = TF + slot * 32 + s * 8 + ct * 4
                a(f"ds_read_b64_tr_b16 {vr(f, 2)}, v{AW[ct]} offset:{wo}")
                a(f"ds_read_b64_tr_b16 {vr(f + 2, 2)}, v{AW[ct]} offset:{wo + 512}")
            if s == 1:
                a("s_waitcnt lgkmcnt(0)")
        a("s_waitcnt lgkmcnt(0)")
        for s in range(4):
            for ct in range(2):
                f = TF + slot * 32 + s * 8 + ct * 4
                a(f"buffer_store_dwordx4 {vr(f, 4)}, v{T[s]}, s[{sWS}:{sWS + 3}], s{60 + slot} offen offset:{1024 * ct}")
    a(f"""
    s_add_u32 s{s_rnd}, s{s_rnd}, 1
    s_cmp_lt_u32 s{s_rnd}, 2
    s_waitcnt vmcnt(0)
    s_cbranch_scc1 {label}_trloop
    """)

    a(f"{label}_fill:")
    stamp(a, prof, 4)
    a(f"""
    s_lshl_b32 s{s_t0}, s2, 2
    s_add_u32 s{s_t0}, s{s_t0}, s{s_w}
    s_mul_i32 s{s_t0}, s{s_t0}, 2560
    s_add_u32 s{s_t0}, s{s_t0}, {C_O * CH}
    v_lshlrev_b32 v{T[0]}, 4, v{vL}
    v_mov_b32 v{SA}, -1
    v_mov_b32 v{SA + 1}, -1
    v_mov_b32 v{SA + 2}, -1
    v_mov_b32 v{SA + 3}, -1
    buffer_store_dwordx4 {vr(SA, 4)}, v{T[0]}, s[{sWS}:{sWS + 3}], s{s_t0} offen
    buffer_store_dwordx4 {vr(SA, 4)}, v{T[0]}, s[{sWS}:{sWS + 3}], s{s_t0} offen offset:1024
    buffer_store_dwordx4 {vr(SA, 4)}, v{T[0]}, s[{sWS}:{sWS + 3}], s{s_t0} offen offset:1536
    """)
    if prof:
        a("s_waitcnt vmcnt(0)")
        stamp(a, prof, 5)
        dump_stamps(a, 6, sWS, 0, s_w, 4, T[0], T[1])
    a(f"{label}_end:\ns_endpgm")
    return kernel_header(label) + a.text(), kernel_desc(label, nv), K1_LDS


def dump_stamps(a, n, sws, kidx, s_wave, nwaves, t0, t1, sbase=80):
    a(f"""
    s_memrealtime s[78:79]
    s_waitcnt lgkmcnt(0)
    s_mov_b32 s{sws + 2}, {WS_SIZE}
    s_mul_i32 s3, s2, {nwaves}
    s_add_u32 s3, s3, s{s_wave}
    s_lshl_b32 s3, s3, 6
    s_add_u32 s3, s3, {WS_DBG + kidx * 1024 * 1024}
    v_mov_b32 v{t0}, 0
    """)
    for i in range(n):
        a(f"v_mov_b32 v{t1}, s{sbase + 2 * i}\nbuffer_store_dword v{t1}, v{t0}, s[{sws}:{sws + 3}], s3 offen offset:{4 * i}")
    for i in range(2):
        a(f"v_mov_b32 v{t1}, s{76 + 2 * i}\nbuffer_store_dword v{t1}, v{t0}, s[{sws}:{sws + 3}], s3 offen offset:{56 + 4 * i}")
    a("s_waitcnt vmcnt(0)")
    if kidx == 1:
        a(f"""
        s_cmp_eq_u32 s2, 8
        s_cselect_b32 s74, s{s_wave}, 1
        s_cmp_eq_u32 s74, 0
        s_cbranch_scc0 dbg_skip
        s_load_dwordx2 s[72:73], s[0:1], 72
        v_mbcnt_lo_u32_b32 v{t0}, -1, 0
        v_and_b32 v10, 7, v{t0}
        v_cmp_gt_u32 vcc, 6, v10
        v_add_u32 v11, 8, v10
        s_nop 1
        v_cndmask_b32 v10, v11, v10, vcc
        v_bfe_u32 v11, v{t0}, 3, 1
        v_mul_u32_u24 v11, {1024 * 1024 + 8 * 8 * 64 - 8 * 4 * 64}, v11
        v_lshl_add_u32 v10, v10, 2, v11
        s_mov_b32 s74, {WS_DBG + 8 * 4 * 64}
        buffer_load_dword v11, v10, s[{sws}:{sws + 3}], s74 offen
        s_waitcnt vmcnt(0) lgkmcnt(0)
        s_mov_b32 s{sws}, s72
        s_mov_b32 s{sws + 1}, s73
        s_mov_b32 s{sws + 2}, 64
        v_lshlrev_b32 v10, 2, v{t0}
        s_mov_b64 exec, 0xffff
        buffer_store_dword v11, v10, s[{sws}:{sws + 3}], 0 offen
        s_waitcnt vmcnt(0)
        dbg_skip:
        """)
```

```python
NAME = "parallel_sum__softmax_full_mha__dense_activation_squared_relu__prompt"

S, D, F, H, DH = 2048, 640, 1728, 32, 20
CH = 32768
C_Q, C_K, C_H, C_O = 0, 80, 160, 376
WS_V = 456 * CH
WS_WT = WS_V + 64 * 4 * 10240
WS_END = WS_WT + 148 * 20 * 1024
WS_DBG = 24 * 1024 * 1024
WS_SIZE = 268435456


class Asm:
    def __init__(self):
        self.lines = []

    def __call__(self, text):
        for ln in text.strip("\n").split("\n"):
            ln = ln.strip()
            if not ln:
                continue
            if ln.endswith(":") or ln.startswith("."):
                self.lines.append(ln)
            else:
                self.lines.append("    " + ln)

    def text(self):
        return "\n".join(self.lines) + "\n"


def vr(base, n=1):
    return f"v{base}" if n == 1 else f"v[{base}:{base + n - 1}]"


def sr(base, n=1):
    return f"s{base}" if n == 1 else f"s[{base}:{base + n - 1}]"


class Regs:
    def __init__(self, start=0, limit=256):
        self.next = start
        self.limit = limit

    def get(self, n=1, align=None):
        if align is None:
            align = 1 if n == 1 else 2
        self.next = (self.next + align - 1) // align * align
        r = self.next
        self.next += n
        assert self.next <= self.limit, f"out of VGPRs: {self.next}"
        return r


def srd(a, d, base, nbytes):
    a(f"""
    s_mov_b32 s{d}, s{base}
    s_mov_b32 s{d + 1}, s{base + 1}
    s_mov_b32 s{d + 2}, {nbytes}
    s_mov_b32 s{d + 3}, 0x00020000
    """)


def swap23(a, dst, src, t0, t1):
    a(f"""
    v_lshrrev_b32 v{t0}, 1, v{src}
    v_xor_b32 v{t0}, v{t0}, v{src}
    v_and_b32 v{t0}, 4, v{t0}
    v_lshlrev_b32 v{t1}, 1, v{t0}
    v_or_b32 v{t0}, v{t0}, v{t1}
    v_xor_b32 v{dst}, v{t0}, v{src}
    """)


def kernel_header(label):
    return f""".globl {label}
.p2align 8
.type {label},@function
{label}:
"""


def kernel_desc(label, vgpr, sgpr=96):
    acc = (vgpr + 3) // 4 * 4
    return f""".p2align 6
.amdhsa_kernel {label}
  .amdhsa_next_free_vgpr {vgpr}
  .amdhsa_next_free_sgpr {sgpr}
  .amdhsa_accum_offset {acc}
  .amdhsa_group_segment_fixed_size 0
  .amdhsa_kernarg_size 88
  .amdhsa_user_sgpr_count 2
  .amdhsa_user_sgpr_kernarg_segment_ptr 1
  .amdhsa_system_sgpr_workgroup_id_x 1
.end_amdhsa_kernel
"""


def stamp(a, prof, idx, wait=True):
    if not prof:
        return
    if idx == 0:
        a("s_memtime s[98:99]\ns_memrealtime s[76:77]\ns_mov_b32 s96, 0")
        return
    if prof == "span":
        return
    if wait:
        a("s_waitcnt lgkmcnt(0)")
    a(f"""
    s_pack_ll_b32_b16 s97, s98, s96
    v_mov_b32_dpp v0, v0 wave_shr:1 row_mask:0xf bank_mask:0xf
    v_writelane_b32 v0, s97, 0
    s_memtime s[98:99]
    s_mov_b32 s96, {idx}
    """)
```

```python
import math
import struct
from common import *

f32 = lambda x: struct.unpack("<I", struct.pack("<f", x))[0]
QSCALE = f32(math.log2(math.e) / math.sqrt(20.0))
SHIFT = 88.0

WS_RS = WS_END
WS_CP = WS_RS + 2048 * 16
CP_ROW = 3648 * 8
WS_FA = WS_CP + 8 * CP_ROW
WS_FB = WS_FA + 1024 * 128
WS_E = WS_FB + 1024 * 128
WS_TOP = WS_E + 128

STG = 49152
LX, LW, LF = 0, 16384, 32768
SLOT = 32768
OFF_R, OFF_V = 8192, 12288
KV = 65536
L_NM = KV + 2 * SLOT + OFF_V + 16 * 656
L_RS, L_CSA, L_CSB, L_BI = L_NM + 512, L_NM + 1024, L_NM + 1536, L_NM + 2048
L_Q = 0
WO3 = KV + SLOT
P_STRIDE = 656
P_SIZE = 32 * P_STRIDE
P_BASE = [61440, WO3 + P_SIZE, WO3 + 2 * P_SIZE, WO3]
LDS_SIZE = WO3 + 3 * P_SIZE
LDS_OOB = 0x28000
assert L_BI + 512 <= LDS_SIZE <= 163840 and LDS_OOB + 3 * SLOT <= 0x40000

sWS, sX, sW, sA, sB = 24, 28, 32, 36, 40
(s_w, s_wj, s_rb, s_cg, s_head, s_qb, s_tt, s_ocg, s_cm, s_cr, s_par, s_tag, s_c, s_slot,
 s_t0, s_t1, s_t2, s_t3, s_xo, s_wo, s_ring, s_wstep, s_ko, s_vo, s_ho, s_spin, s_fl) = range(44, 71)
assert s_t2 % 2 == 0
s_o = [71, 72, 73]
s_kc, s_hook = 74, 75
SPIN = 0x20000


def gen(label, prof=False, force_fallback=False, cfg=None):
    cfg = {**dict(rot=0, touch=1, tfirst=0, fprio=2, flag=-1, krot=0, plf=0, fsf=0, slp=2), **(cfg or {})}
    STF = ('sc1', '', 'nt')[cfg.get('plain', 0)]
    PLF = ('sc1', 'sc0 sc1', 'sc1 nt', 'sc0 sc1 nt')[cfg['plf']]
    FSF = ('sc1', 'sc0 sc1')[cfg['fsf']]
    a = Asm()
    L = lambda n: f"{label}_{n}"
    WSD = f"s[{sWS}:{sWS + 3}]"
    vL = 1
    T = [2, 3, 4, 5, 6, 7]
    vK, vR_, vV = 8, 9, 10
    AX = [11, 12]
    AW = [13, 14, 15, 16]
    XF = [[32 + 16 * b + 4 * t for t in range(4)] for b in range(2)]
    WF = [[64 + 16 * b + 4 * c for c in range(4)] for b in range(2)]
    GA, GB = 96, 160
    XR, B2R, RB = 96, 104, 112

    def capture(fn):
        keep, a.lines = a.lines, []
        fn()
        got, a.lines = a.lines, keep
        units, masked = [], False
        for ln in got:
            t = ln.strip()
            if units and (masked or t.startswith("s_cselect") or units[-1].split("\n")[-1].strip().startswith("s_cmp")):
                units[-1] += "\n" + ln
            else:
                units.append(ln)
            if t.startswith("s_") and " exec" in t.split(",")[0]:
                masked = not t.endswith("-1")
        return units

    def gacc(tt, ci, base=GA):
        return base + (tt * 4 + ci) * 4

    a(f"""
    s_cmp_ge_u32 s2, 256
    s_cbranch_scc1 {L('end')}
    s_load_dwordx16 s[4:19], s[0:1], 0
    s_load_dwordx2 s[22:23], s[0:1], 80
    s_load_dwordx2 s[20:21], s[0:1], 64
    """)
    stamp(a, prof, 0)
    a(f"""
    v_lshrrev_b32 v{T[0]}, 6, v0
    v_and_b32 v{vL}, 63, v0
    s_and_b32 s{s_t0}, s2, 7
    v_readfirstlane_b32 s{s_w}, v{T[0]}
    s_lshr_b32 s{s_t1}, s2, 3
    s_and_b32 s{s_t2}, s{s_t1}, 7
    s_lshr_b32 s{s_ocg}, s{s_t1}, 3
    s_lshr_b32 s{s_cg}, s{s_t0}, 1
    s_mul_i32 s{s_cg}, s{s_cg}, 30
    s_add_u32 s{s_cg}, s{s_cg}, s{s_t1}
    s_and_b32 s{s_rb}, s{s_t0}, 1
    s_lshl_b32 s{s_rb}, s{s_rb}, 3
    s_and_b32 s{s_t3}, s{s_cg}, 7
    s_add_u32 s{s_rb}, s{s_rb}, s{s_t3}
    s_lshr_b32 s{s_cg}, s{s_cg}, 3
    s_cmp_lt_u32 s2, 240
    s_cselect_b32 s{s_cg}, s{s_cg}, 15
    s_lshl_b32 s{s_tt}, s{s_t0}, 3
    s_add_u32 s{s_tt}, s{s_tt}, s{s_t2}
    s_and_b32 s{s_wj}, s{s_w}, 3
    {'v_mov_b32 v0, -1' if prof else ''}
    s_mov_b32 s3, 0
    s_cmp_ge_u32 s{s_w}, 4
    s_cbranch_scc1 {L('g1')}
    """)

    def attn_ids():
        a(f"""
        s_and_b32 s{s_t0}, s2, 7
        s_lshr_b32 s{s_t1}, s2, 3
        s_and_b32 s{s_t2}, s{s_t1}, 3
        s_lshl_b32 s{s_head}, s{s_t0}, 2
        s_add_u32 s{s_head}, s{s_head}, s{s_t2}
        s_lshr_b32 s{s_qb}, s{s_t1}, 2
        s_and_b32 s{s_par}, s{s_head}, 1
        s_lshr_b32 s{s_t2}, s{s_head}, 1
        s_mul_i32 s{s_t2}, s{s_t2}, 5
        s_add_u32 s{s_cr}, s{s_t2}, 2
        s_mul_i32 s{s_t3}, s{s_par}, 3
        s_add_u32 s{s_cm}, s{s_t2}, s{s_t3}
        s_lshl_b32 s{s_cm}, s{s_cm}, 15
        s_lshl_b32 s{s_cr}, s{s_cr}, 15
        """)

    def load_tag():
        a(f"""
        s_mov_b32 s{s_t0}, {WS_E}
        s_load_dword s{s_tag}, s[22:23], s{s_t0}
        """)

    def frag_addr():
        a(f"""
        v_and_b32 v{T[0]}, 15, v{vL}
        v_lshrrev_b32 v{T[1]}, 4, v{vL}
        v_bfe_u32 v{T[2]}, v{vL}, 1, 3
        v_xor_b32 v{T[2]}, v{T[2]}, v{T[1]}
        v_lshlrev_b32 v{T[2]}, 4, v{T[2]}
        v_lshl_add_u32 v{T[2]}, v{T[0]}, 7, v{T[2]}
        s_and_b32 s{s_t0}, s{s_wj}, 1
        s_lshl_b32 s{s_t0}, s{s_t0}, 13
        v_add_u32 v{AX[0]}, s{s_t0}, v{T[2]}
        v_xor_b32 v{AX[1]}, 64, v{AX[0]}
        v_bfe_u32 v{T[2]}, v{vL}, 2, 2
        v_lshl_add_u32 v{T[3]}, v{T[1]}, 3, v{T[2]}
        v_lshlrev_b32 v{T[3]}, 8, v{T[3]}
        v_bfe_u32 v{T[2]}, v{vL}, 2, 3
        s_lshr_b32 s{s_t0}, s{s_wj}, 1
        s_lshl_b32 s{s_t0}, s{s_t0}, 2
        v_xor_b32 v{T[2]}, s{s_t0}, v{T[2]}
        v_lshl_add_u32 v{T[3]}, v{T[2]}, 5, v{T[3]}
        v_and_b32 v{T[2]}, 3, v{vL}
        v_lshl_add_u32 v{AW[0]}, v{T[2]}, 3, v{T[3]}
        v_xor_b32 v{AW[1]}, 32, v{AW[0]}
        v_xor_b32 v{AW[2]}, 64, v{AW[0]}
        v_xor_b32 v{AW[3]}, 96, v{AW[0]}
        """)

    def zero(base, n):
        for r in range(base, base + n, 2):
            a(f"v_mov_b64 {vr(r, 2)}, 0")

    def wreads(part, s, b):
        return [f"ds_read_b64_tr_b16 {vr(WF[b][c] + 2 * h, 2)}, v{AW[c]} offset:{part + s * 8192 + 1024 * h}"
                for c in range(4) for h in range(2)]

    def xreads(s):
        return [f"ds_read_b128 {vr(XF[s][t], 4)}, v{AX[s]} offset:{LX + 2048 * t}" for t in range(4)]

    def both(part, s, b):
        w, x = wreads(part, s, b), xreads(s)
        return w[:2] + x[:1] + w[2:] + x[1:]

    def gemm_body(name, halves, barrier, count_to):
        a(f".p2align 3\n{L(name)}:")
        for k, (xs, wb, acc, swapped, rd) in enumerate(halves):
            fill = [[] for _ in range(16)]
            if k == len(halves) - 1:
                if barrier:
                    if prof and cfg.get("trace", 0) > 2:
                        fill[0] += capture(lambda: stamp(a, prof, 25))
                    fill[0].append("s_barrier")
                fill[13].append(f"s_add_u32 s{s_c}, s{s_c}, 1")
                fill[14].append(f"s_cmp_lt_u32 s{s_c}, {count_to}")
            if k == len(halves) - 2:
                fill[8].append(f"s_add_u32 s{s_ring}, s{s_ring}, 1")
                fill[9].append(f"s_cmp_eq_u32 s{s_ring}, 3")
                fill[10].append(f"s_cselect_b32 s{s_xo}, {-2 * STG & 0xffffffff}, s{s_wstep}")
                fill[11].append(f"s_cselect_b32 s{s_ring}, 0, s{s_ring}")
            for m, x in enumerate(rd):
                fill[m].append(x)
            if k == len(halves) - 2:
                for m, r in enumerate(AX + AW):
                    fill[12 + m // 2].append(f"v_add_u32 v{r}, s{s_xo}, v{r}")
            fill[15].append("s_waitcnt lgkmcnt(0)")
            for m in range(16):
                tt, ci = m >> 2, m & 3
                wf, xf = vr(WF[wb][ci], 4), vr(XF[xs][tt], 4)
                A, B = (xf, wf) if swapped else (wf, xf)
                a(f"v_mfma_f32_16x16x32_bf16 {vr(gacc(tt, ci, acc), 4)}, {A}, {B}, {vr(gacc(tt, ci, acc), 4)}")
                a("\n".join(fill[m]))
        if 0 < cfg.get("trace", 0) < 3:
            stamp(a, prof, 20)
        a(f"s_cbranch_scc1 {L(name)}")

    def joint(name, sw):
        gemm_body(name, [(0, 0, GA, sw, wreads(LF, 0, 1)), (0, 1, GB, False, both(LW, 1, 0)),
                         (1, 0, GA, sw, wreads(LF, 1, 1)), (1, 1, GB, False, both(LW, 0, 0))], True, 7)

    def single(name, part, acc, sw, barrier, count_to):
        gemm_body(name, [(0, 0, acc, sw, both(part, 1, 1)), (1, 1, acc, sw, both(part, 0, 0))], barrier, count_to)

    def tile_addr(e_reg, e_lane, e_st):
        a(f"""
        v_and_b32 v{T[0]}, 15, v{vL}
        v_lshrrev_b32 v{T[1]}, 4, v{vL}
        s_lshr_b32 s{s_t0}, s{s_wj}, 1
        s_lshl_b32 s{s_t0}, s{s_t0}, 8
        s_add_u32 s{s_t0}, s{s_t0}, {L_NM}
        v_lshl_add_u32 v{e_reg}, v{T[1]}, 4, s{s_t0}
        s_and_b32 s{s_t1}, s{s_wj}, 1
        s_lshl_b32 s{s_t0}, s{s_t1}, 8
        s_add_u32 s{s_t0}, s{s_t0}, {L_NM}
        v_lshl_add_u32 v{e_lane}, v{T[0]}, 2, s{s_t0}
        v_bfrev_b32 v{T[1]}, v{T[1]}
        v_lshrrev_b32 v{T[1]}, 15, v{T[1]}
        v_lshl_add_u32 v{T[1]}, v{T[0]}, 4, v{T[1]}
        s_lshl_b32 s{s_t0}, s{s_rb}, 1
        s_add_u32 s{s_t0}, s{s_t0}, s{s_t1}
        s_lshl_b32 s{s_t0}, s{s_t0}, 10
        v_add_u32 v{e_st}, s{s_t0}, v{T[1]}
        """)

    def put_piece(src, addr, x, y):
        return f"buffer_store_dwordx4 {vr(src, 4)}, v{addr}, {WSD}, s{s_o[x]} offen offset:{256 * y} {STF}"

    def pack_tiles(acc, math, dst, addr=None, between=None):
        pend = []
        for tt in range(4):
            for cp in range(2):
                ob = dst(cp, tt)
                r0 = gacc(tt, 2 * cp, acc)
                math(tt, [(r0 + 2 * p, 8 * cp + 2 * p) for p in range(4)])
                a("\n".join(pend))
                for p in range(4):
                    a(f"v_cvt_pk_bf16_f32 v{ob + p}, v{r0 + 2 * p}, v{r0 + 2 * p + 1}")
                pend = [f"v_permlane16_swap_b32 v{ob}, v{ob + 2}", f"v_permlane16_swap_b32 v{ob + 1}, v{ob + 3}"]
                if addr:
                    pend.append(put_piece(ob, addr, cp, tt))
            if between:
                between(tt)
        a("s_nop 1\n" + "\n".join(pend))

    def key_perm(dst, src, t0, t1):
        a(f"""
        v_bfe_u32 v{t0}, v{src}, 2, 1
        v_bfe_u32 v{t1}, v{src}, 3, 2
        v_lshl_add_u32 v{t0}, v{t0}, 2, v{t1}
        v_and_b32 v{t1}, 3, v{src}
        v_lshl_add_u32 v{dst}, v{t0}, 2, v{t1}
        """)

    def v_feature(dst, row, t0, t1):
        swap23(a, dst, row, t0, t1)
        a(f"""
        s_lshl_b32 s{s_t0}, s{s_par}, 2
        s_mul_i32 s{s_t1}, s{s_par}, -16
        v_cmp_gt_u32 vcc, 16, v{row}
        v_add_u32 v{dst}, s{s_t0}, v{dst}
        v_add_u32 v{t0}, s{s_t1}, v{row}
        v_cndmask_b32 v{dst}, v{t0}, v{dst}, vcc
        """)

    def kv_addr(first_chunk):
        a(f"v_and_b32 v{T[0]}, 31, v{vL}\nv_lshrrev_b32 v{T[1]}, 5, v{vL}")
        key_perm(T[2], T[0], T[3], T[4])
        a(f"""
        v_lshlrev_b32 v{T[3]}, 4, v{T[2]}
        v_lshl_add_u32 v{vK}, v{T[1]}, 15, v{T[3]}
        v_add_u32 v{vK}, s{s_cm}, v{vK}
        v_lshl_add_u32 v{vR_}, v{T[1]}, 9, v{T[3]}
        v_add_u32 v{vR_}, s{s_cr}, v{vR_}
        v_cmp_le_u32 vcc, 20, v{vL}
        s_lshl_b32 s{s_t0}, s{s_wj}, 10
        s_mul_i32 s{s_kc}, s{s_qb}, {cfg['krot']}
        v_cndmask_b32 v{T[2]}, 0, 1, vcc
        v_mul_u32_u24 v{T[3]}, 20, v{T[2]}
        v_sub_u32 v{T[3]}, v{vL}, v{T[3]}
        v_mul_u32_u24 v{vV}, 10240, v{T[2]}
        """)
        v_feature(T[2], T[3], T[4], T[5])
        a(f"""
        s_mul_i32 s{s_t0}, s{s_head}, 320
        v_lshl_add_u32 v{vV}, v{T[2]}, 4, v{vV}
        v_add_u32 v{vV}, s{s_t0}, v{vV}
        """)

    def kv_dma(chunk):
        base = KV + ((chunk + 2) % 3) * SLOT
        a(f"""
        s_and_b32 s{s_t0}, s{s_kc}, 7
        s_lshl_b32 s{s_t0}, s{s_t0}, 2
        s_add_u32 s{s_t0}, s{s_t0}, s{s_wj}
        s_lshl_b32 s{s_ko}, s{s_t0}, 10
        s_add_u32 s{s_ko}, s{s_ko}, {C_K * CH}
        s_mul_i32 s{s_vo}, s{s_t0}, 81920
        s_add_u32 s{s_vo}, s{s_vo}, {WS_V}
        s_add_u32 s{s_kc}, s{s_kc}, 1
        s_lshl_b32 s{s_t0}, s{s_wj}, 11
        s_add_u32 m0, s{s_t0}, {base}
        s_lshl_b32 s{s_t1}, s{s_wj}, 10
        buffer_load_dwordx4 v{vK}, {WSD}, s{s_ko} offen sc1 lds
        s_add_u32 m0, s{s_t0}, {base + 512}
        s_mul_i32 s{s_t0}, s{s_wj}, {4 * 656}
        buffer_load_dwordx4 v{vK}, {WSD}, s{s_ko} offen offset:512 sc1 lds
        s_add_u32 m0, s{s_t1}, {base + OFF_R}
        s_nop 0
        buffer_load_dwordx4 v{vR_}, {WSD}, s{s_ko} offen sc1 lds
        s_mov_b32 exec_hi, 0xff
        """)
        for i in range(4):
            a(f"""
            s_add_u32 m0, s{s_t0}, {base + OFF_V + 656 * i}
            s_add_u32 s{s_t1}, s{s_vo}, {20480 * i}
            buffer_load_dwordx4 v{vV}, {WSD}, s{s_t1} offen sc1 lds
            """)
        a("s_mov_b32 exec_hi, -1")

    def ones_addr(dst, first_slot, nslots):
        a(f"""
        v_min_u32 v{dst}, {16 * nslots - 1}, v{vL}
        v_lshrrev_b32 v{T[3]}, 4, v{dst}
        v_and_b32 v{dst}, 15, v{dst}
        v_mul_u32_u24 v{T[3]}, {SLOT}, v{T[3]}
        v_mul_u32_u24 v{dst}, 656, v{dst}
        v_add_u32 v{dst}, v{dst}, v{T[3]}
        v_add_u32 v{dst}, {KV + first_slot * SLOT + OFF_V + 640}, v{dst}
        """)

    def ones_write(addr, tmp):
        for r in range(4):
            a(f"v_mov_b32 v{tmp + r}, 0x3f803f80")
        a(f"ds_write_b128 v{addr}, {vr(tmp, 4)}")

    def set_flag(base):
        a(f"""
        s_lshl_b32 s{s_t0}, s{s_fl}, 7
        s_add_u32 s{s_t0}, s{s_t0}, {base}
        v_mov_b32 v{T[4]}, 0
        v_mov_b32 v{T[3]}, s{s_tag}
        s_mov_b64 exec, 1
        buffer_store_dword v{T[3]}, v{T[4]}, {WSD}, s{s_t0} offen {FSF}
        s_mov_b64 exec, -1
        """)

    def flag_of_tile(dst, rh, unit):
        a(f"v_lshl_add_u32 v{dst}, v{unit}, 5, {rh}\nv_lshlrev_b32 v{dst}, 7, v{dst}")

    def head_unit(dst, sel):
        a(f"""
        s_mul_i32 s{s_t0}, s{s_head}, 20
        v_mad_u32_u24 v{dst}, v{sel}, 19, s{s_t0}
        v_lshrrev_b32 v{dst}, 6, v{dst}
        """)

    def wait_flags(name, base, offs):
        a(f"""
        s_mov_b32 s{s_t0}, {base}
        s_mov_b32 s{s_spin}, {SPIN}
        s_branch {L(name + '_ld')}
        {L(name)}:
        s_sleep {cfg['slp']}
        {L(name + '_ld')}:
        buffer_load_dword v{T[3]}, v{offs[0]}, {WSD}, s{s_t0} offen {PLF}
        """)
        if len(offs) > 1:
            a(f"buffer_load_dword v{T[4]}, v{offs[1]}, {WSD}, s{s_t0} offen {PLF}")
        a(f"s_sub_u32 s{s_spin}, s{s_spin}, 1\ns_waitcnt vmcnt(0)")
        if len(offs) == 1:
            a(f"v_mov_b32 v{T[4]}, v{T[3]}")
        retry(name)

    def retry(name):
        a(f"""
        v_cmp_ne_u32 vcc, s{s_tag}, v{T[3]}
        v_cmp_ne_u32 s[{s_t2}:{s_t2 + 1}], s{s_tag}, v{T[4]}
        s_cmp_eq_u32 s{s_spin}, 0
        s_cbranch_scc1 {L(name + '_done')}
        s_or_b64 vcc, vcc, s[{s_t2}:{s_t2 + 1}]
        s_cbranch_scc1 {L(name)}
        {L(name + '_done')}:
        """)

    def relayout():
        TF, TA, TV, TS = 64, [11, 12], [13, 14, 15, 16], [32, 33, 34, 35]
        s_q, s_kb, s_cu, s_wl = s_xo, s_ring, s_wstep, s_ho
        a(f"""
        s_sub_u32 s{s_q}, s2, 240
        s_lshl_b32 s{s_q}, s{s_q}, 3
        s_add_u32 s{s_q}, s{s_q}, s{s_w}
        s_mul_i32 s{s_wl}, s{s_w}, 16384
        s_mov_b32 s{sW + 3}, 0x00020000
        v_lshrrev_b32 v{T[0]}, 3, v{vL}
        v_and_b32 v{T[1]}, 7, v{vL}
        v_lshrrev_b32 v{T[2]}, 2, v{vL}
        v_and_b32 v{T[2]}, 4, v{T[2]}
        v_xor_b32 v{T[2]}, v{T[2]}, v{T[1]}
        v_mul_u32_u24 v{T[3]}, 1280, v{T[0]}
        v_lshl_add_u32 v{TV[0]}, v{T[2]}, 4, v{T[3]}
        v_add_u32 v{TV[1]}, {10240 - 1024}, v{TV[0]}
        v_add_u32 v{TV[2]}, {2 * (10240 - 1024)}, v{TV[0]}
        v_add_u32 v{TV[3]}, {3 * (10240 - 1024)}, v{TV[0]}
        v_lshrrev_b32 v{T[2]}, 5, v{vL}
        v_lshlrev_b32 v{T[2]}, 10, v{T[2]}
        v_bfe_u32 v{T[3]}, v{vL}, 2, 2
        v_lshl_add_u32 v{T[2]}, v{T[3]}, 7, v{T[2]}
        v_bfe_u32 v{T[3]}, v{vL}, 3, 1
        v_lshl_add_u32 v{T[2]}, v{T[3]}, 6, v{T[2]}
        v_bfe_u32 v{T[3]}, v{vL}, 4, 1
        v_lshl_add_u32 v{T[2]}, v{T[3]}, 5, v{T[2]}
        v_and_b32 v{T[3]}, 1, v{vL}
        v_lshl_add_u32 v{T[2]}, v{T[3]}, 4, v{T[2]}
        v_bfe_u32 v{T[3]}, v{vL}, 1, 1
        v_lshl_add_u32 v{T[2]}, v{T[3]}, 3, v{T[2]}
        v_add_u32 v{TA[0]}, s{s_wl}, v{T[2]}
        v_xor_b32 v{TA[1]}, 64, v{TA[0]}
        v_lshlrev_b32 v{TS[0]}, 4, v{vL}
        v_add_u32 v{TS[1]}, 20480, v{TS[0]}
        v_add_u32 v{TS[2]}, 40960, v{TS[0]}
        v_add_u32 v{TS[3]}, 61440, v{TS[0]}
        """)

        def fetch(u):
            a(f"""
            s_min_u32 s{s_t0}, s{s_q}, 369
            s_mul_i32 s{s_kb}, s{s_t0}, 6554
            s_lshr_b32 s{s_kb}, s{s_kb}, 16
            s_mul_i32 s{s_t1}, s{s_kb}, 10
            s_sub_u32 s{s_cu}, s{s_t0}, s{s_t1}
            s_mul_i32 s{s_o[u]}, s{s_kb}, 81920
            s_lshl_b32 s{s_t1}, s{s_cu}, 11
            s_add_u32 s{s_o[u]}, s{s_o[u]}, s{s_t1}
            s_add_u32 s{s_o[u]}, s{s_o[u]}, {WS_WT}
            s_cmp_lt_u32 s{s_kb}, 27
            s_cselect_b32 s{sW}, s16, s8
            s_cselect_b32 s{sW + 1}, s17, s9
            s_mov_b32 s{sW + 2}, {F * D * 2}
            s_cselect_b32 s{sW + 2}, s{sW + 2}, {D * D * 2}
            s_cselect_b32 s{s_t1}, 0, 27
            s_sub_u32 s{s_t1}, s{s_kb}, s{s_t1}
            s_mul_i32 s{s_wo}, s{s_t1}, {64 * 1280}
            s_lshl_b32 s{s_t1}, s{s_cu}, 7
            s_add_u32 s{s_wo}, s{s_wo}, s{s_t1}
            s_add_u32 s{s_q}, s{s_q}, 128
            """)
            for g in range(2):
                a(f"s_add_u32 m0, s{s_wl}, {(u & 1) * 8192 + g * 4096}\ns_nop 0")
                for i in range(4):
                    a(f"buffer_load_dwordx4 v{TV[i]}, s[{sW}:{sW + 3}], s{s_wo} offen offset:{1024 * i} lds")
                a(f"s_add_u32 s{s_wo}, s{s_wo}, {32 * 1280}")

        def turn(u):
            for s in range(4):
                for ct in range(2):
                    f = TF + u * 32 + s * 8 + ct * 4
                    o = (u & 1) * 8192 + s * 2048
                    a(f"ds_read_b64_tr_b16 {vr(f, 2)}, v{TA[ct]} offset:{o}")
                    a(f"ds_read_b64_tr_b16 {vr(f + 2, 2)}, v{TA[ct]} offset:{o + 512}")
                if s & 1:
                    a("s_waitcnt lgkmcnt(0)")

        def put(u):
            for s in range(4):
                for ct in range(2):
                    f = TF + u * 32 + s * 8 + ct * 4
                    a(f"buffer_store_dwordx4 {vr(f, 4)}, v{TS[s]}, {WSD}, s{s_o[u]} offen offset:{1024 * ct} sc1")

        fetch(0)
        fetch(1)
        stamp(a, prof, 30)
        a("s_waitcnt vmcnt(8)")
        stamp(a, prof, 31)
        turn(0)
        fetch(2)
        put(0)
        a("s_waitcnt vmcnt(16)")
        turn(1)
        put(1)
        stamp(a, prof, 32)
        a("s_waitcnt vmcnt(16)")
        stamp(a, prof, 33)
        turn(2)
        put(2)
        stamp(a, prof, 34)

    def q_addr(vq, vqr):
        a(f"""
        v_and_b32 v{T[0]}, 31, v{vL}
        v_lshrrev_b32 v{T[1]}, 5, v{vL}
        s_lshl_b32 s{s_t0}, s{s_qb}, 2
        s_add_u32 s{s_t0}, s{s_t0}, s{s_wj}
        s_lshl_b32 s{s_t0}, s{s_t0}, 10
        s_lshl_b32 s{s_t1}, s{s_par}, 3
        s_add_u32 s{s_t2}, s{s_t0}, s{s_t1}
        v_lshlrev_b32 v{T[2]}, 4, v{T[0]}
        v_lshl_add_u32 v{vq}, v{T[1]}, 15, v{T[2]}
        v_add_u32 v{vq}, s{s_t0}, v{vq}
        v_add_u32 v{vqr}, s{s_t2}, v{T[2]}
        """)

    def final_addr(t0, t1, t2):
        a(f"""
        v_cmp_le_u32 vcc, 20, v{vL}
        s_lshl_b32 s{s_t0}, s{s_w}, 2
        s_mul_i32 s{s_t2}, s{s_ocg}, 320
        v_cndmask_b32 v{T[3]}, 0, 1, vcc
        v_mul_u32_u24 v{T[4]}, 20, v{T[3]}
        v_sub_u32 v{T[4]}, v{vL}, v{T[4]}
        v_min_u32 v{T[4]}, 19, v{T[4]}
        v_add_u32 v{T[3]}, s{s_t0}, v{T[3]}
        v_lshl_add_u32 v{t1}, v{T[4]}, 4, s{s_t2}
        v_mul_u32_u24 v{t2}, {P_STRIDE}, v{T[3]}
        v_lshl_add_u32 v{t2}, v{T[4]}, 5, v{t2}
        s_lshl_b32 s{s_t1}, s{s_tt}, 5
        v_add_u32 v{T[3]}, s{s_t1}, v{T[3]}
        v_mul_u32_u24 v{t0}, 1280, v{T[3]}
        v_add_u32 v{t0}, v{t0}, v{t1}
        """)

    def final_srds():
        srd(a, sX, 4, S * D * 2)
        srd(a, sA, 18, D * 2)
        srd(a, sB, 20, S * D * 2)

    eR, eL, eS, hR, hL, hS = 17, 18, 19, 8, 9, 10
    IDX, AK0, AR0, AV0, VQ, VQR, AQ = 20, 21, 22, 23, 24, 25, 26
    AK, AR, AV = 27, 28, 29
    R = Regs(216)
    MX = [R.get(), R.get()]
    Q1 = [R.get(4), R.get(4)]
    Q2 = [[R.get(2), R.get(2)], [R.get(2), R.get(2)]]
    K1 = [R.get(4), R.get(4)]
    K2 = [R.get(2), R.get(2)]
    V0 = [R.get(4), R.get(4)]
    PH = 32
    SS, CM, TS, OO, V1 = [96, 160], [112, 128], 144, [176, 192], [208, 212]

    SD, AC, SO = 32, 72, 80
    a(f"""
    s_and_b32 s{s_t2}, s2, 1
    s_lshl_b32 s{s_t2}, s{s_t2}, 7
    s_lshr_b32 s{s_t0}, s2, 1
    s_add_u32 s{s_t0}, s{s_t0}, s{s_t2}
    s_lshl_b32 s{s_t0}, s{s_t0}, 1
    s_add_u32 s{s_t0}, s{s_t0}, s{s_wj}
    s_mul_i32 s{s_t1}, s{s_t0}, {4 * 1280}
    v_lshrrev_b32 v{T[0]}, 4, v{vL}
    v_and_b32 v{T[1]}, 15, v{vL}
    v_mul_u32_u24 v{T[2]}, 1280, v{T[0]}
    v_lshl_add_u32 v{T[2]}, v{T[1]}, 4, v{T[2]}
    s_lshl_b32 s{s_o[0]}, s{s_t0}, 6
    s_add_u32 s{s_o[0]}, s{s_o[0]}, {WS_RS}
    v_lshlrev_b32 v{SO}, 4, v{T[0]}
    s_cmp_ge_u32 s{s_wj}, 2
    s_waitcnt lgkmcnt(0)
    s_cbranch_scc1 {L('st_n')}
    """)
    srd(a, sX, 4, S * D * 2)
    for q in range(5):
        a(f"buffer_load_dwordx4 {vr(SD + 4 * q, 4)}, v{T[2]}, s[{sX}:{sX + 3}], s{s_t1} offen offset:{256 * q}")
    a(f"{L('st_n')}:")
    srd(a, sWS, 22, WS_TOP)
    load_tag()
    frag_addr()
    zero(GA, 128)
    attn_ids()
    tile_addr(hR, hL, hS)
    a(f"""
    v_mov_b32 v{eR}, v{hR}
    v_mov_b32 v{eS}, v{hS}
    s_cmp_lt_u32 s{s_cg}, 10
    s_cbranch_scc1 {L('ad_j')}
    v_lshrrev_b32 v{T[1]}, 4, v{vL}
    s_lshl_b32 s{s_t0}, s{s_t1}, 8
    s_add_u32 s{s_t0}, s{s_t0}, {L_NM}
    v_lshl_add_u32 v{eR}, v{T[1]}, 4, s{s_t0}
    s_lshr_b32 s{s_t2}, s{s_wj}, 1
    s_lshl_b32 s{s_t0}, s{s_t2}, 8
    s_add_u32 s{s_t0}, s{s_t0}, {L_CSA}
    v_lshl_add_u32 v{eL}, v{T[0]}, 2, s{s_t0}
    s_sub_u32 s{s_t0}, s{s_cg}, 10
    s_lshl_b32 s{s_t0}, s{s_t0}, 1
    s_add_u32 s{s_t0}, s{s_t0}, s{s_t2}
    s_lshl_b32 s{s_t0}, s{s_t0}, 10
    v_mul_u32_u24 v{T[1]}, 10240, v{T[1]}
    v_lshl_add_u32 v{T[1]}, v{T[0]}, 4, v{T[1]}
    v_add_u32 v{eS}, s{s_t0}, v{T[1]}
    {L('ad_j')}:
    """)
    q_addr(VQ, VQR)
    a(f"""
    v_mov_b32 v{IDX}, 0xdddddddd
    v_lshlrev_b32 v{AK0}, 4, v{vL}
    s_mul_i32 s{s_t0}, s{s_wj}, 3072
    v_add_u32 v{AQ}, s{s_t0}, v{AK0}
    v_add_u32 v{AK0}, {KV}, v{AK0}
    v_add_u32 v{AR0}, s{s_t1}, v{AK0}
    v_mad_u32_u24 v{T[2]}, v{T[1]}, 20, v{T[0]}
    v_lshlrev_b32 v{T[2]}, 4, v{T[2]}
    v_add_u32 v{T[2]}, {KV}, v{T[2]}
    v_cmp_gt_u32 vcc, 20, v{T[0]}
    v_mov_b32 v{T[4]}, {LDS_OOB}
    v_and_b32 v{T[3]}, 27, v{T[0]}
    v_cndmask_b32 v{T[2]}, v{T[4]}, v{T[2]}, vcc
    v_cmp_eq_u32 vcc, 24, v{T[3]}
    v_mov_b32 v{T[4]}, {KV + 640}
    s_mov_b32 s{s_slot}, {2 * SLOT}
    v_cndmask_b32 v{AV0}, v{T[2]}, v{T[4]}, vcc
    v_add_u32 v{AK}, s{s_slot}, v{AK0}
    v_add_u32 v{AR}, s{s_slot}, v{AR0}
    v_add_u32 v{AV}, s{s_slot}, v{AV0}
    """)
    a(f"""
    s_add_u32 s{s_t0}, s{s_t0}, s{s_t1}
    v_lshl_add_u32 v30, v{T[0]}, 4, s{s_t0}
    v_mov_b32 v31, v30
    s_mov_b32 exec_hi, 0
    v_mov_b32 v31, {LDS_OOB}
    s_not_b64 exec, exec
    v_mov_b32 v30, {LDS_OOB}
    s_mov_b64 exec, -1
    """)
    a("v_mov_b32 v84, 0x3f803f80")
    a(f"""
    s_lshl_b32 s{s_o[2]}, s{s_cg}, 1
    s_lshr_b32 s{s_t0}, s{s_wj}, 1
    s_add_u32 s{s_o[2]}, s{s_o[2]}, s{s_t0}
    s_lshl_b32 s{s_fl}, s{s_o[2]}, 4
    s_add_u32 s{s_fl}, s{s_fl}, s{s_rb}
    s_lshl_b32 s{s_fl}, s{s_fl}, 1
    s_and_b32 s{s_t0}, s{s_wj}, 1
    s_add_u32 s{s_fl}, s{s_fl}, s{s_t0}
    s_mov_b32 s{s_c}, 0
    s_mov_b32 s{s_ring}, 0
    s_mov_b32 s{s_wstep}, {STG}
    s_waitcnt lgkmcnt(0)
    s_add_u32 s{s_tag}, s{s_tag}, 1
    s_cmp_ge_u32 s{s_wj}, 2
    s_cbranch_scc1 {L('st_m')}
    v_mov_b32 v{AC}, 0
    v_mov_b32 v{AC + 2}, 0
    v_mov_b32 v{AC + 1}, s{s_tag}
    v_mov_b32 v{AC + 3}, s{s_tag}
    """)
    for q in range(5):
        a(f"s_waitcnt vmcnt({4 - q})")
        for r in range(SD + 4 * q, SD + 4 * q + 4):
            a(f"v_dot2c_f32_bf16 v{AC}, v{r}, v84\nv_dot2c_f32_bf16 v{AC + 2}, v{r}, v{r}")
    a("s_nop 1")
    for sh in (8, 4, 2, 1):
        a(f"""
        s_nop 0
        v_add_f32_dpp v{AC}, v{AC}, v{AC} row_ror:{sh} row_mask:0xf bank_mask:0xf
        v_add_f32_dpp v{AC + 2}, v{AC + 2}, v{AC + 2} row_ror:{sh} row_mask:0xf bank_mask:0xf
        """)
    a(f"""
    v_mul_f32 v{AC}, {f32(-1.0 / D)}, v{AC}
    v_mul_f32 v{AC + 2}, {f32(1.0 / D)}, v{AC + 2}
    v_fma_f32 v{AC + 2}, -v{AC}, v{AC}, v{AC + 2}
    v_max_f32 v{AC + 2}, 0, v{AC + 2}
    v_add_f32 v{AC + 2}, {f32(1e-5)}, v{AC + 2}
    v_rsq_f32 v{AC + 2}, v{AC + 2}
    s_mov_b32 exec_lo, 0x00010001
    s_mov_b32 exec_hi, 0x00010001
    buffer_store_dwordx4 {vr(AC, 4)}, v{SO}, {WSD}, s{s_o[0]} offen sc1
    s_mov_b64 exec, -1
    {L('st_m')}:
    s_cmp_eq_u32 s{s_cg}, 15
    s_cbranch_scc1 {L('tr')}
    """)
    stamp(a, prof, 1)
    a("s_barrier")
    stamp(a, prof, 2)
    a("\n".join(both(LW, 0, 0)))
    a(f"""
    s_cmp_ge_u32 s{s_cg}, 10
    s_waitcnt lgkmcnt(0)
    s_cbranch_scc0 {L('jN')}
    s_cmp_ge_u32 s{s_o[2]}, 27
    s_cbranch_scc1 {L('sV')}
    """)

    def lane_stats(dst, addr):
        for tt in range(4):
            a(f"ds_read2_b32 {vr(dst + 2 * tt, 2)}, v{addr} offset0:{16 * tt} offset1:{128 + 16 * tt}")

    def reg_stats(dst, addr, off):
        for i in range(4):
            a(f"ds_read_b128 {vr(dst + 4 * i, 4)}, v{addr} offset:{off + 64 * i}")

    def centre(cs, nr, tt, prs):
        for r, q in prs:
            a(f"v_pk_fma_f32 {vr(r, 2)}, {vr(cs + q, 2)}, {vr(nr + 2 * tt, 2)}, {vr(r, 2)} op_sel:[0,0,0] op_sel_hi:[1,0,1]")

    E0, E1 = 224, 240
    F0, F1, F2 = 96, 112, 128

    def qk_math(tt, prs):
        centre(E0, E1, tt, prs)
        for r, q in prs:
            a(f"v_pk_mul_f32 {vr(r, 2)}, {vr(r, 2)}, {vr(E1 + 2 * tt, 2)} op_sel:[0,1] op_sel_hi:[1,1]")

    def ffn_math(tt, prs):
        centre(F0, F2, tt, prs)
        for r, q in prs:
            a(f"v_pk_fma_f32 {vr(r, 2)}, {vr(r, 2)}, {vr(F2 + 2 * tt, 2)}, {vr(F1 + q, 2)} op_sel:[0,1,0] op_sel_hi:[1,1,1]")
        for r, q in prs:
            a(f"v_max_f32 v{r}, 0, v{r}\nv_max_f32 v{r + 1}, 0, v{r + 1}")
        for r, q in prs:
            a(f"v_pk_mul_f32 {vr(r, 2)}, {vr(r, 2)}, {vr(r, 2)}")

    joint("jV", True)
    single("sV", LW, GA, True, True, 10)
    CV = 80
    a(f"ds_read2_b32 {vr(CV, 2)}, v{eL} offset0:0 offset1:16\nds_read2_b32 {vr(CV + 2, 2)}, v{eL} offset0:32 offset1:48")
    reg_stats(E0, eR, 0)
    reg_stats(E1, eR, 512)
    a(f"""
    s_and_b32 s{s_t1}, s{s_wj}, 1
    s_lshl_b32 s{s_t0}, s{s_rb}, 1
    s_add_u32 s{s_t0}, s{s_t0}, s{s_t1}
    s_mul_i32 s{s_o[0]}, s{s_t0}, 81920
    s_add_u32 s{s_o[0]}, s{s_o[0]}, {WS_V}
    s_add_u32 s{s_o[1]}, s{s_o[0]}, 40960
    s_waitcnt lgkmcnt(0)
    """)
    a("\n".join(wreads(LF, 0, 0)))
    stamp(a, prof, 3)
    for kt in range(2):
        for ci in range(4):
            ob = 88 + 4 * (ci & 1)
            prs = [(gacc(tt, ci) + i, 4 * tt + i) for tt in (2 * kt, 2 * kt + 1) for i in (0, 2)]
            for r, q in prs:
                a(f"v_pk_fma_f32 {vr(r, 2)}, {vr(E0 + q, 2)}, {vr(CV + (ci & 2), 2)}, {vr(r, 2)} op_sel:[0,{ci & 1},0] op_sel_hi:[1,{ci & 1},1]")
            for r, q in prs:
                a(f"v_pk_mul_f32 {vr(r, 2)}, {vr(r, 2)}, {vr(E1 + q, 2)}")
            for p in range(4):
                a(f"v_cvt_pk_bf16_f32 v{ob + p}, v{prs[p][0]}, v{prs[p][0] + 1}")
            a(put_piece(ob, eS, kt, ci))
    a(f"""
    s_cmp_ge_u32 s{s_o[2]}, 27
    s_cbranch_scc0 {L('a_done')}
    s_waitcnt vmcnt(0) lgkmcnt(0)
    """)
    set_flag(WS_FA)
    a(f"""
    s_barrier
    {L('a_none')}:
    s_mov_b32 s{s_o[0]}, {WS_TOP}
    s_mov_b32 s{s_o[1]}, {WS_TOP}
    s_branch {L('a_go')}
    """)
    joint("jN", False)
    single("sN", LW, GA, False, True, 10)
    reg_stats(E0, eR, L_CSA - L_NM)
    lane_stats(E1, hL)
    a(f"""
    s_lshl_b32 s{s_o[0]}, s{s_o[2]}, 18
    s_add_u32 s{s_o[1]}, s{s_o[0]}, {4 * CH}
    s_cmp_lt_u32 s{s_cg}, 5
    s_cselect_b32 s{s_t0}, {QSCALE}, 1.0
    s_waitcnt lgkmcnt(0)
    """)
    a("\n".join(wreads(LF, 0, 0)))
    stamp(a, prof, 3)
    for tt in range(4):
        a(f"v_mul_f32 v{E1 + 2 * tt + 1}, s{s_t0}, v{E1 + 2 * tt + 1}")
    pack_tiles(GA, qk_math, lambda cp, tt: 248 + 4 * cp, eS)
    a(f"{L('a_done')}:")
    stamp(a, prof, 4)
    a("s_waitcnt lgkmcnt(0)")
    reg_stats(F0, hR, L_CSB - L_NM)
    reg_stats(F1, hR, L_BI - L_NM)
    lane_stats(F2, hL)
    if cfg["flag"] == -2:
        a("s_waitcnt vmcnt(0)")
        stamp(a, prof, 14)
    a("s_waitcnt lgkmcnt(3)")
    single("sF", LF, GB, False, False, 13)
    stamp(a, prof, 12)

    def hand_over(tt):
        if tt == max(cfg["flag"], -1):
            a("s_waitcnt vmcnt(0)")
            set_flag(WS_FA)
            stamp(a, prof, 5)
            a("s_barrier")

    hand_over(-1)

    pack_tiles(GB, ffn_math, lambda cp, tt: PH + 16 * cp + 4 * tt, between=hand_over)
    a(f"""
    s_add_u32 s{s_o[0]}, s{s_o[2]}, 20
    s_lshl_b32 s{s_o[0]}, s{s_o[0]}, 18
    s_add_u32 s{s_o[1]}, s{s_o[0]}, {4 * CH}
    {L('a_go')}:
    s_setprio 1
    s_mov_b32 s{s_c}, 0
    """)
    zero(SS[1], 16 + 32 + 8)
    stamp(a, prof, 13)
    a("s_barrier")
    stamp(a, prof, 6)
    for ab in range(2):
        a(f"ds_read_b128 {vr(Q1[ab], 4)}, v{AQ} offset:{L_Q + 1024 * ab}")
        for par in range(2):
            a(f"ds_read_b64 {vr(Q2[ab][par], 2)}, v{30 + par} offset:{L_Q + 2048 + 512 * ab}")

    def rdK1(t):
        return f"ds_read_b128 {vr(K1[t & 1], 4)}, v{AK} offset:{(t & 7) * 1024}"

    def rdK2(p):
        return f"ds_read_b64 {vr(K2[p & 1], 2)}, v{AR} offset:{OFF_R + (p & 3) * 1024}"

    def rdV(j, t):
        return f"ds_read_b128 {vr((V0, V1)[j][t & 1], 4)}, v{AV} offset:{OFF_V + ((t & 7) * 2 + j) * 656}"

    def qk1(dst, ab, t, c):
        return f"v_mfma_f32_32x32x16_bf16 {vr(dst, 16)}, {vr(K1[t & 1], 4)}, {vr(Q1[ab], 4)}, {c}"

    def qk2(dst, ab, t):
        return f"v_mfma_f32_32x32x8_bf16 {vr(dst, 16)}, {vr(K2[(t >> 1) & 1], 2)}, {vr(Q2[ab][t & 1], 2)}, {vr(dst, 16)}"

    def pv(ab, j, t):
        return f"v_smfmac_f32_32x32x32_bf16 {vr(OO[ab], 16)}, {vr((V0, V1)[j][t & 1], 4)}, {vr(SS[ab] + 8 * j, 8)}, v{IDX}"

    def row_max(dst, bufs):
        regs = [b + i for b in bufs for i in range(16)]
        a(f"v_max3_f32 v{dst}, v{regs[0]}, v{regs[1]}, v{regs[2]}")
        rest = regs[3:]
        while len(rest) >= 2:
            a(f"v_max3_f32 v{dst}, v{dst}, v{rest[0]}, v{rest[1]}")
            rest = rest[2:]
        if rest:
            a(f"v_max_f32 v{dst}, v{dst}, v{rest[0]}")

    def set_shift(ab, shift):
        m = MX[ab]
        a(f"""
        v_mov_b32 v{T[2]}, v{m}
        s_nop 1
        v_permlane32_swap_b32 v{m}, v{T[2]}
        v_max_f32 v{m}, v{m}, v{T[2]}
        v_sub_f32 v{CM[ab]}, {f32(-shift) if shift else 0}, v{m}
        v_mov_b32 v{CM[ab] + 1}, v{CM[ab]}
        """)
        for i in range(2, 16, 2):
            a(f"v_mov_b64 {vr(CM[ab] + i, 2)}, {vr(CM[ab], 2)}")

    a("\n".join([rdK1(0), rdK2(0), rdK1(1), rdV(0, 0), rdV(1, 0)]))
    a("s_waitcnt lgkmcnt(0)" if prof else "s_waitcnt lgkmcnt(2)")
    est = {(0, 0): SS[0], (0, 1): CM[0], (1, 0): TS, (1, 1): CM[1]}
    for ab in range(2):
        for t in range(2):
            a(qk1(est[ab, t], ab, t, 0))
            a(put_piece(PH + 4 * (2 * ab + t), hS, (2 * ab + t) >> 2, (2 * ab + t) & 3))
            a(qk2(est[ab, t], ab, t))
    a("s_nop 7")
    row_max(MX[0], [SS[0], CM[0]])
    a(put_piece(PH + 4 * (4), hS, (4) >> 2, (4) & 3))
    set_shift(0, SHIFT)
    a("s_nop 1")
    a(qk1(SS[0], 0, 0, vr(CM[0], 16)))
    a(put_piece(PH + 4 * (5), hS, (5) >> 2, (5) & 3))
    a(qk2(SS[0], 0, 0))
    row_max(MX[1], [TS, CM[1]])
    a(put_piece(PH + 4 * (6), hS, (6) >> 2, (6) & 3))
    set_shift(1, SHIFT)
    a(put_piece(PH + 4 * (7), hS, (7) >> 2, (7) & 3))
    a("s_waitcnt lgkmcnt(0)")

    def slot_events(ab, t):
        o = 1 - ab
        tp = t - 1 if ab == 0 else t
        tn = t if ab == 0 else t + 1
        e = [("i", f"v_exp_f32 v{SS[ab] + i}, v{SS[ab] + i}") for i in range(16)]
        ev = []
        if ab == 0 and t % 8 == 7:
            ev += [("i", f"v_add_u32 v{AV}, s{s_slot}, v{AV0}")]
        ev += e[0:2]
        ev += [("use", ("V1", tp)), ("i", pv(o, 1, tp)), ("wait",)]
        if ab == 1 and t % 8 == 5:
            ev += [("i", "s_waitcnt vmcnt(0)")]
        if ab == 0 and t % 8 == 6:
            ev += [("i", "s_barrier")]
        if ab == 0 and t % 8 == 4:
            ev += [("i", f"s_add_u32 s{s_slot}, s{s_slot}, {SLOT}")]
        if ab == 1 and t % 8 == 4:
            ev += [("i", f"s_cmp_eq_u32 s{s_slot}, {3 * SLOT}")]
        if ab == 1 and t % 8 == 6:
            ev += [("i", f"s_add_u32 s{s_c}, s{s_c}, 1")]
        if ab == 0:
            ev += [("rd", rdV(1, t + 1), ("V1", t + 1))]
        ev += e[2:5]
        if ab == 0 and t % 8 == 6:
            ev += [("i", f"v_add_u32 v{AK}, s{s_slot}, v{AK0}"), ("i", f"v_add_u32 v{AR}, s{s_slot}, v{AR0}")]
        ev += [("use", ("K1", tn)), ("i", qk1(SS[o], o, tn, vr(CM[o], 16)))]
        if ab == 0:
            ev += [("rd", rdK1(t + 2), ("K1", t + 2))]
        else:
            ev += [("rd", rdV(0, t + 1), ("V0", t + 1))]
        ev += e[5:8]
        ev += [("use", ("K2", tn >> 1)), ("i", qk2(SS[o], o, tn))]
        ev += e[8:12]
        ev += [("use", ("V0", t)), ("i", pv(ab, 0, t))]
        if ab == 1 and t % 8 == 4:
            ev += [("i", f"s_cselect_b32 s{s_slot}, 0, s{s_slot}")]
        if ab == 1 and t % 8 == 7:
            ev += [("i", f"s_cmp_lt_u32 s{s_c}, 8")]
        if ab == 1 and t % 2 == 0:
            ev += [("rd", rdK2(t // 2 + 1), ("K2", t // 2 + 1))]
        ev += e[12:16]
        return ev

    evs = []
    for t in range(24):
        for ab in range(2):
            evs += [(t, x) for x in slot_events(ab, t)]
    issue_idx = {}
    n = 0
    for t, x in evs:
        if x[0] == "rd":
            issue_idx[x[2]] = n
            n += 1
    a(f".p2align 3\n{L('aloop')}:")
    n = 0
    for k, (t, x) in enumerate(evs):
        emit = 8 <= t < 16
        if x[0] == "rd":
            n += 1
            if emit:
                a(x[1])
        elif x[0] == "i":
            if emit:
                a(x[1])
        elif x[0] == "wait" and emit:
            need = -1
            for t2, y in evs[k + 1:]:
                if y[0] == "wait":
                    break
                if y[0] == "use":
                    assert issue_idx[y[1]] < n, (t, y)
                    need = max(need, issue_idx[y[1]])
            a(f"s_waitcnt lgkmcnt({n - 1 - need})")
    if cfg.get("trace"):
        stamp(a, prof, 23)
        a("s_waitcnt lgkmcnt(0)")
    a(f"s_cbranch_scc1 {L('aloop')}")
    a("s_nop 1")
    a(pv(1, 1, 7))
    stamp(a, prof, 7)

    a("s_waitcnt lgkmcnt(0)\ns_nop 7\ns_nop 3")
    a(f"s_mov_b32 s{s_t0}, {f32(2.0 ** 126)}\ns_mov_b32 s{s_t1}, {f32(2.0 ** -95)}")
    for ab in range(2):
        o = OO[ab]
        a(f"v_max3_f32 v{T[2 + ab]}, |v{o}|, |v{o + 1}|, |v{o + 2}|")
        for i in (3, 5):
            a(f"v_max3_f32 v{T[2 + ab]}, v{T[2 + ab]}, |v{o + i}|, |v{o + i + 1}|")
        a(f"v_max_f32 v{T[2 + ab]}, v{T[2 + ab]}, |v{o + 7}|")
        a(f"v_add_f32 v{T[4 + ab]}, |v{o + 8}|, |v{o + 9}|")
        for i in list(range(8)) + [10, 11, 12]:
            a(f"v_add_f32 v{T[4 + ab]}, v{T[4 + ab]}, |v{o + i}|")
    a(f"""
    v_min_f32 v{T[2]}, v{T[2]}, v{T[3]}
    v_add_f32 v{T[4]}, v{T[4]}, v{T[5]}
    v_cmp_le_f32 vcc, s{s_t1}, v{T[2]}
    v_cmp_gt_f32 s[{s_t2}:{s_t2 + 1}], s{s_t0}, v{T[4]}
    s_nop 1
    s_and_b64 vcc, vcc, s[{s_t2}:{s_t2 + 1}]
    s_cmp_eq_u64 vcc, exec
    """)
    a(f"s_branch {L('slow')}" if force_fallback else f"s_cbranch_scc0 {L('slow')}")

    a(f"{L('norm')}:")
    a(f"s_add_u32 s{s_t0}, s{s_cm}, {C_O * CH}\ns_add_u32 s{s_t1}, s{s_cr}, {C_O * CH}")
    for ab in range(2):
        o = OO[ab]
        a(f"v_rcp_f32 v{o + 12}, v{o + 12}\ns_nop 0")
        for p in range(6):
            a(f"v_pk_mul_f32 {vr(o + 2 * p, 2)}, {vr(o + 2 * p, 2)}, {vr(o + 12, 2)} op_sel:[0,0] op_sel_hi:[1,0]")
        for p in range(6):
            a(f"v_cvt_pk_bf16_f32 v{SS[ab] + p}, v{o + 2 * p}, v{o + 2 * p + 1}")
        for p in (1, 3, 5):
            a(f"v_min_u32 v{SS[ab] + p}, -2, v{SS[ab] + p}")
        a(f"buffer_store_dwordx4 {vr(SS[ab], 4)}, v{VQ}, {WSD}, s{s_t0} offen offset:{512 * ab} sc1")
    a("s_mov_b32 exec_hi, 0")
    for ab in range(2):
        a(f"buffer_store_dwordx2 {vr(SS[ab] + 4, 2)}, v{VQR}, {WSD}, s{s_t1} offen offset:{512 * ab} sc1")
    a("s_mov_b64 exec, -1\ns_barrier")
    stamp(a, prof, 8)

    def final_loads():
        a(f"""
        buffer_load_dwordx4 {vr(XR, 4)}, v{T[0]}, s[{sX}:{sX + 3}], 0 offen
        buffer_load_dwordx4 {vr(XR + 4, 4)}, v{T[0]}, s[{sX}:{sX + 3}], 0 offen offset:2560
        buffer_load_dwordx4 {vr(B2R, 4)}, v{T[1]}, s[{sA}:{sA + 3}], 0 offen
        """)

    final_addr(T[0], T[1], T[2])
    final_srds()
    final_loads()
    a(f"s_branch {L('final')}")

    a(f"{L('slow')}:")
    GR, GV = AR, AV
    a(f"v_and_b32 v{T[0]}, 31, v{vL}\nv_lshrrev_b32 v{T[1]}, 5, v{vL}")
    key_perm(T[2], T[0], T[3], T[4])
    a(f"""
    s_lshl_b32 s{s_t0}, s{s_par}, 3
    s_add_u32 s{s_t0}, s{s_t0}, s{s_cr}
    v_lshl_add_u32 v{GR}, v{T[2]}, 4, s{s_t0}
    v_lshl_add_u32 v{vK}, v{T[2]}, 4, s{s_cm}
    v_lshl_add_u32 v{vK}, v{T[1]}, 15, v{vK}
    """)
    v_feature(T[2], T[0], T[3], T[4])
    a(f"""
    s_mul_i32 s{s_t0}, s{s_head}, 320
    v_mul_u32_u24 v{T[4]}, 10240, v{T[1]}
    v_lshl_add_u32 v{T[2]}, v{T[2]}, 4, v{T[4]}
    v_add_u32 v{GV}, s{s_t0}, v{T[2]}
    v_mov_b32 v{MX[0]}, 0xff800000
    v_mov_b32 v{MX[1]}, 0xff800000
    s_mov_b32 s{s_ko}, {C_K * CH}
    {L('slow1')}:
    buffer_load_dwordx4 {vr(K1[0], 4)}, v{vK}, {WSD}, s{s_ko} offen sc1
    buffer_load_dwordx2 {vr(K2[0], 2)}, v{GR}, {WSD}, s{s_ko} offen sc1
    s_add_u32 s{s_ko}, s{s_ko}, 512
    s_waitcnt vmcnt(0)
    """)
    for ab in range(2):
        a(qk1(SS[ab], ab, 0, 0))
        a(qk2(SS[ab], ab, 0))
    a("s_nop 7\ns_nop 3")
    for ab in range(2):
        for i in range(0, 16, 2):
            a(f"v_max3_f32 v{MX[ab]}, v{MX[ab]}, v{SS[ab] + i}, v{SS[ab] + i + 1}")
    a(f"s_cmp_lt_u32 s{s_ko}, {(C_K + 1) * CH}\ns_cbranch_scc1 {L('slow1')}")
    for ab in range(2):
        set_shift(ab, 0)
    zero(OO[0], 32)
    for r in range(4):
        a(f"v_mov_b32 v{V0[0] + r}, 0x3f803f80\nv_mov_b32 v{V1[0] + r}, 0x3f803f80")
    a(f"""
    s_mov_b32 s{s_ko}, {C_K * CH}
    s_mov_b32 s{s_vo}, {WS_V}
    {L('slow2')}:
    buffer_load_dwordx4 {vr(K1[0], 4)}, v{vK}, {WSD}, s{s_ko} offen sc1
    buffer_load_dwordx2 {vr(K2[0], 2)}, v{GR}, {WSD}, s{s_ko} offen sc1
    s_mov_b32 exec_lo, 0xfffff
    s_mov_b32 exec_hi, 0xfffff
    buffer_load_dwordx4 {vr(V0[0], 4)}, v{GV}, {WSD}, s{s_vo} offen sc1
    s_add_u32 s{s_vo}, s{s_vo}, 20480
    buffer_load_dwordx4 {vr(V1[0], 4)}, v{GV}, {WSD}, s{s_vo} offen sc1
    s_mov_b64 exec, -1
    s_add_u32 s{s_vo}, s{s_vo}, 20480
    s_add_u32 s{s_ko}, s{s_ko}, 512
    s_waitcnt vmcnt(0)
    """)
    for ab in range(2):
        a(qk1(SS[ab], ab, 0, vr(CM[ab], 16)))
        a(qk2(SS[ab], ab, 0))
    a("s_nop 7\ns_nop 3")
    for ab in range(2):
        for i in range(16):
            a(f"v_exp_f32 v{SS[ab] + i}, v{SS[ab] + i}")
    a("s_nop 1")
    for ab in range(2):
        a(pv(ab, 0, 0))
        a(pv(ab, 1, 0))
    a(f"""
    s_cmp_lt_u32 s{s_ko}, {(C_K + 1) * CH}
    s_cbranch_scc1 {L('slow2')}
    s_nop 7
    s_nop 3
    s_branch {L('norm')}
    """)

    a(f"{L('tr')}:")
    relayout()
    a(f"""
    s_cmp_eq_u32 s3, 1
    s_waitcnt vmcnt(0)
    s_barrier
    s_cbranch_scc1 {L('b_last')}
    """)
    stamp(a, prof, 4)
    a(f"s_branch {L('a_none')}")

    a(f"{L('g1')}:\ns_setprio 2\ns_mov_b32 s3, 1")
    SD, AC, SO, MK, G = 32, 72, 80, 84, 96
    VX, VW, VG = [11, 12, 13, 14], [15, 16, 17, 18], [19, 20, 21, 22]
    gR, gL, gA, gB = 24, 25, 26, 27
    mQ, mQR, mQD, fB, FK, FO, pT0, pT1, pT2, one, pH, pW, pP = range(243, 256)

    def w_addr(VF, stride):
        a(f"""
        v_lshrrev_b32 v{T[0]}, 4, v{vL}
        v_lshlrev_b32 v{T[1]}, 1, v{T[0]}
        v_xor_b32 v{T[1]}, v{T[1]}, v{vL}
        v_and_b32 v{T[1]}, 15, v{T[1]}
        s_lshl_b32 s{s_t1}, s{s_cg}, 8
        s_mul_i32 s{s_t0}, s{s_wj}, {16 * stride}
        s_add_u32 s{s_t1}, s{s_t1}, s{s_t0}
        v_mul_u32_u24 v{T[0]}, {stride}, v{T[0]}
        v_add_u32 v{T[0]}, s{s_t1}, v{T[0]}
        v_lshl_add_u32 v{VF[0]}, v{T[1]}, 4, v{T[0]}
        v_xor_b32 v{T[1]}, 8, v{T[1]}
        v_lshl_add_u32 v{VF[2]}, v{T[1]}, 4, v{T[0]}
        v_add_u32 v{VF[1]}, {4 * stride - 1024}, v{VF[0]}
        v_add_u32 v{VF[3]}, {3 * (4 * stride - 1024)}, v{VF[2]}
        v_add_u32 v{VF[2]}, {2 * (4 * stride - 1024)}, v{VF[2]}
        """)

    def later_addr():
        attn_ids()
        kv_addr(0)
        ones_addr(one, 0, 3)
        a(f"v_and_b32 v{T[0]}, 1, v{vL}")
        head_unit(T[1], T[0])
        a(f"""
        v_bfe_u32 v{T[0]}, v{vL}, 1, 2
        v_min_u32 v{T[0]}, 2, v{T[0]}
        v_mad_u32_u24 v{T[1]}, v{T[0]}, 10, v{T[1]}
        s_lshl_b32 s{s_t0}, s{s_qb}, 2
        s_add_u32 s{s_t0}, s{s_t0}, s{s_wj}
        """)
        flag_of_tile(FO, f"s{s_t0}", T[1])
        a(f"v_and_b32 v{T[0]}, 1, v{vL}")
        head_unit(T[1], T[0])
        a(f"""
        v_bfe_u32 v{T[0]}, v{vL}, 1, 1
        v_mad_u32_u24 v{T[1]}, v{T[0]}, 10, v{T[1]}
        v_add_u32 v{T[1]}, 10, v{T[1]}
        v_and_b32 v{T[0]}, 28, v{vL}
        v_add_u32 v{T[0]}, s{s_wj}, v{T[0]}
        """)
        flag_of_tile(FK, f"v{T[0]}", T[1])
        final_addr(pT0, pT1, pT2)
        q_addr(mQ, mQR)
        a(f"""
        v_lshl_add_u32 v{mQD}, v{vL}, 4, s{s_t0}
        s_lshl_b32 s{s_t0}, s{s_tt}, 9
        v_lshl_add_u32 v{pH}, v{T[1]}, 15, v{T[2]}
        v_add_u32 v{pH}, s{s_t0}, v{pH}
        s_mul_i32 s{s_t0}, s{s_ocg}, 5120
        v_lshl_add_u32 v{pW}, v{vL}, 4, s{s_t0}
        s_mul_i32 s{s_t0}, s{s_wj}, {P_SIZE}
        s_cmp_eq_u32 s{s_wj}, 3
        s_cselect_b32 s{s_t0}, 0, s{s_t0}
        s_add_u32 s{s_t0}, s{s_t0}, {WO3}
        s_cmp_eq_u32 s{s_wj}, 0
        s_cselect_b32 s{s_t0}, {P_BASE[0]}, s{s_t0}
        v_mul_u32_u24 v{pP}, {P_STRIDE}, v{T[0]}
        v_lshl_add_u32 v{pP}, v{T[1]}, 5, v{pP}
        v_add_u32 v{pP}, s{s_t0}, v{pP}
        """)
        a(f"""
        s_bfe_u32 s{s_t0}, s{s_tt}, 0x30002
        s_lshr_b32 s{s_t1}, s{s_tt}, 5
        v_min_u32 v{T[3]}, 13, v{vL}
        v_lshl_add_u32 v{T[3]}, v{T[3]}, 3, s{s_t0}
        v_mul_u32_u24 v{T[4]}, 137, v{T[3]}
        v_lshrrev_b32 v{T[4]}, 12, v{T[4]}
        v_mul_u32_u24 v{T[4]}, 238, v{T[4]}
        v_lshl_add_u32 v{T[3]}, v{T[3]}, 3, s{s_t1}
        v_sub_u32 v{fB}, v{T[3]}, v{T[4]}
        s_lshr_b32 s{s_t0}, s{s_tt}, 3
        s_lshl_b32 s{s_t0}, s{s_t0}, 5
        s_lshl_b32 s{s_t1}, s{s_wj}, 1
        s_add_u32 s{s_t0}, s{s_t0}, s{s_t1}
        v_and_b32 v{T[3]}, 3, v{vL}
        v_bfe_u32 v{T[4]}, v{vL}, 2, 1
        v_lshl_add_u32 v{T[3]}, v{T[3]}, 3, v{T[4]}
        s_mov_b32 exec_lo, 0xffff0000
        v_add_u32 v{fB}, 224, v{vL}
        s_mov_b32 exec_lo, 0
        v_add_u32 v{fB}, s{s_t0}, v{T[3]}
        s_mov_b32 exec_lo, -1
        v_lshlrev_b32 v{fB}, 7, v{fB}
        """)

    def boundary(wait=None):
        if wait is not None:
            a(f"s_waitcnt vmcnt({wait})")
        if cfg.get("trace", 0) > 1:
            stamp(a, prof, 21)
        a("s_barrier")

    def ask_tag():
        srd(a, sWS, 22, WS_TOP)
        load_tag()

    def take_tag():
        a(f"s_waitcnt lgkmcnt(0)\ns_add_u32 s{s_tag}, s{s_tag}, 1")

    def split(ops, n):
        k = -(-len(ops) // n)
        return [ops[i * k:(i + 1) * k] for i in range(n)]

    def feed():
        for part, va, sd, so in ((LX, VX, sX, s_xo), (LW, VW, sW, s_wo), (LF, VG, sB, s_wstep)):
            a(f"s_add_u32 m0, s{s_ring}, {part}\ns_nop 0")
            for i in range(4):
                a(f"buffer_load_dwordx4 v{va[i]}, s[{sd}:{sd + 3}], s{so} offen offset:{1024 * i} lds")
        a(f"""
        s_add_u32 s{s_xo}, s{s_xo}, 128
        s_add_u32 s{s_wo}, s{s_wo}, {64 * 3840}
        s_add_u32 s{s_wstep}, s{s_wstep}, {64 * 3456}
        s_add_u32 s{s_ring}, s{s_ring}, {STG}
        s_cmp_ge_u32 s{s_ring}, {3 * STG}
        s_cselect_b32 s{s_t0}, {3 * STG}, 0
        s_sub_u32 s{s_ring}, s{s_ring}, s{s_t0}
        """)
        if cfg["rot"]:
            a(f"s_cmp_eq_u32 s{s_xo}, 1280")
            for r in (s_xo, s_wo, s_wstep):
                a(f"s_cselect_b32 s{r}, 0, s{r}")

    def only(name, cond, fn):
        a(f"{cond}\ns_cbranch_scc0 {L(name)}")
        fn()
        a(f"{L(name)}:")

    a(f"""
    s_lshl_b32 s{s_ring}, s{s_wj}, 12
    s_add_u32 s{s_hook}, s{s_rb}, s{s_cg}
    s_mul_i32 s{s_hook}, s{s_hook}, {cfg['rot']}
    s_mul_i32 s{s_t0}, s{s_hook}, 6554
    s_lshr_b32 s{s_t0}, s{s_t0}, 16
    s_mul_i32 s{s_t0}, s{s_t0}, 10
    s_sub_u32 s{s_hook}, s{s_hook}, s{s_t0}
    s_lshl_b32 s{s_xo}, s{s_hook}, 7
    s_mul_i32 s{s_wo}, s{s_hook}, {64 * 3840}
    s_mul_i32 s{s_wstep}, s{s_hook}, {64 * 3456}
    """)
    w_addr(VW, 3840)
    w_addr(VG, 3456)
    a(f"""
    v_lshrrev_b32 v{T[0]}, 3, v{vL}
    v_and_b32 v{T[1]}, 7, v{vL}
    v_lshrrev_b32 v{T[2]}, 4, v{vL}
    v_xor_b32 v{T[2]}, v{T[2]}, v{T[1]}
    s_lshl_b32 s{s_t1}, s{s_rb}, 2
    s_add_u32 s{s_t1}, s{s_t1}, s{s_wj}
    s_mul_i32 s{s_t1}, s{s_t1}, {32 * 1280}
    v_mul_u32_u24 v{T[3]}, 1280, v{T[0]}
    v_add_u32 v{T[3]}, s{s_t1}, v{T[3]}
    v_lshl_add_u32 v{VX[0]}, v{T[2]}, 4, v{T[3]}
    v_xor_b32 v{T[2]}, 4, v{T[2]}
    v_lshl_add_u32 v{VX[1]}, v{T[2]}, 4, v{T[3]}
    v_add_u32 v{VX[2]}, {2 * (10240 - 1024)}, v{VX[0]}
    v_add_u32 v{VX[3]}, {3 * (10240 - 1024)}, v{VX[1]}
    v_add_u32 v{VX[1]}, {10240 - 1024}, v{VX[1]}
    s_waitcnt lgkmcnt(0)
    """)
    srd(a, sX, 4, S * D * 2)
    srd(a, sW, 6, D * 3 * D * 2)

    srd(a, sB, 12, D * F * 2)
    a(f"s_cmp_lt_u32 s{s_cg}, 14\ns_cselect_b32 s{sB + 2}, s{sB + 2}, 0")

    def touch():
        a(f"""
        s_getpc_b64 s[{sA}:{sA + 1}]
        {L('pc')}:
        s_sub_u32 s{sA}, s{sA}, {L('pc')}-{label}
        s_subb_u32 s{sA + 1}, s{sA + 1}, 0
        s_mov_b32 s{sA + 2}, {L('end')}-{label}
        s_mov_b32 s{sA + 3}, 0x00020000
        s_lshr_b32 s{s_t0}, s2, 3
        s_lshl_b32 s{s_t0}, s{s_t0}, 10
        v_lshlrev_b32 v{T[2]}, 7, v{vL}
        s_mov_b64 exec, 0xff
        buffer_load_dword v226, v{T[2]}, s[{sA}:{sA + 3}], s{s_t0} offen
        s_mov_b64 exec, -1
        """)

    def sum_loads():
        a(f"""
        s_bfe_u32 s{s_t0}, s2, 0x30004
        s_bfe_u32 s{s_t1}, s2, 0x20001
        s_lshl_b32 s{s_t1}, s{s_t1}, 3
        s_add_u32 s{s_t0}, s{s_t0}, s{s_t1}
        s_and_b32 s{s_t1}, s2, 1
        s_lshl_b32 s{s_t1}, s{s_t1}, 1
        s_bfe_u32 s{s_t2}, s2, 0x10003
        s_add_u32 s{s_t1}, s{s_t1}, s{s_t2}
        s_lshl_b32 s{s_t1}, s{s_t1}, 1
        s_add_u32 s{s_t1}, s{s_t1}, s{s_wj}
        s_sub_u32 s{s_t1}, s{s_t1}, 2
        s_cmp_lt_u32 s2, 128
        s_cselect_b32 s{sA}, s6, s12
        s_cselect_b32 s{sA + 1}, s7, s13
        s_mov_b32 s{sA + 2}, {D * 3 * D * 2}
        s_cselect_b32 s{sA + 2}, s{sA + 2}, {D * F * 2}
        s_mov_b32 s{sA + 3}, 0x00020000
        s_cselect_b32 s{s_t3}, 29, 26
        s_mov_b32 s{s_t2}, 3840
        s_cselect_b32 s{s_t2}, s{s_t2}, 3456
        s_cselect_b32 s{s_o[0]}, 0, 30
        s_min_u32 s{s_t0}, s{s_t0}, s{s_t3}
        s_add_u32 s{s_o[0]}, s{s_o[0]}, s{s_t0}
        s_lshl_b32 s{s_o[0]}, s{s_o[0]}, 9
        s_mul_i32 s{s_t3}, s{s_t1}, {CP_ROW}
        s_add_u32 s{s_o[0]}, s{s_o[0]}, s{s_t3}
        s_add_u32 s{s_o[0]}, s{s_o[0]}, {WS_CP}
        s_lshl_b32 s{s_t0}, s{s_t0}, 7
        s_mul_i32 s{s_t1}, s{s_t1}, 80
        s_mul_i32 s{s_t1}, s{s_t1}, s{s_t2}
        s_add_u32 s{s_t1}, s{s_t1}, s{s_t0}
        v_mul_u32_u24 v{T[2]}, s{s_t2}, v{T[0]}
        v_lshl_add_u32 v{T[2]}, v{T[1]}, 4, v{T[2]}
        s_lshl_b32 s{s_t2}, s{s_t2}, 3
        """)
        for q in range(10):
            a(f"buffer_load_dwordx4 {vr(SD + 4 * q, 4)}, v{T[2]}, s[{sA}:{sA + 3}], s{s_t1} offen")
            a(f"s_add_u32 s{s_t1}, s{s_t1}, s{s_t2}")

    owner = f"s_cmp_ge_u32 s{s_wj}, 2"
    feeding = f"s_cmp_lt_u32 s{s_cg}, 15"
    a(f"v_and_b32 v{SO}, 48, v{vL}\nv_lshl_add_u32 v{SO}, v{T[1]}, 6, v{SO}")
    if cfg["tfirst"]:
        only("sl", owner, sum_loads)
    only("f0", feeding, feed)
    if not cfg["tfirst"]:
        only("sl", owner, sum_loads)
    if cfg["touch"]:
        only("tc", f"s_cmp_eq_u32 s{s_wj}, 0", touch)
    ask_tag()
    later_addr()
    srd(a, sA, 14, F * 2)
    a(f"""
    s_and_b32 s{s_t1}, s{s_wj}, 1
    v_lshl_add_u32 v{gL}, s{s_t1}, 6, v{vL}
    s_lshl_b32 s{s_t3}, s{s_rb}, 11
    v_lshl_add_u32 v{gR}, v{gL}, 4, s{s_t3}
    s_lshl_b32 s{s_t2}, s{s_cg}, 6
    v_add_u32 v{gB}, s{s_t2}, v{vL}
    s_mul_i32 s{s_t1}, s{s_t1}, 960
    v_add_u32 v{gA}, s{s_t1}, v{gB}
    v_lshlrev_b32 v{gB}, 2, v{gB}
    v_min_u32 v{gA}, 1823, v{gA}
    v_lshlrev_b32 v{gA}, 4, v{gA}
    s_mov_b32 s{s_spin}, {SPIN}
    """)
    zero(AC, 8)
    take_tag()
    ops = []
    for r in range(40):
        lo, hi = T[2 + 2 * (r & 1)], T[3 + 2 * (r & 1)]
        c = AC + 2 * (r & 3)
        ops.append(f"v_lshlrev_b32 v{lo}, 16, v{SD + r}\nv_and_b32 v{hi}, 0xffff0000, v{SD + r}\n"
                   f"v_add_f32 v{c}, v{c}, v{lo}\nv_add_f32 v{c + 1}, v{c + 1}, v{hi}")
    fin = ["s_nop 1"] + [f"v_permlane32_swap_b32 v{AC + i}, v{AC + 4 + i}" for i in range(4)]
    fin += [f"v_add_f32 v{AC + i}, v{AC + i}, v{AC + 4 + i}" for i in range(4)]
    fin += ["s_nop 1"] + [f"v_permlane16_swap_b32 v{AC + i}, v{AC + 2 + i}" for i in range(2)]
    fin += [f"v_add_f32 v{AC}, v{AC}, v{AC + 2}", f"v_add_f32 v{AC + 2}, v{AC + 1}, v{AC + 3}", "s_nop 1"]
    fin += [f"v_add_f32_dpp v{r}, v{r}, v{r} row_ror:8 row_mask:0xf bank_mask:0xf" for r in (AC, AC + 2)]
    fin += [f"v_mov_b32 v{AC + 1}, s{s_tag}", f"v_mov_b32 v{AC + 3}, s{s_tag}",
            "s_mov_b32 exec_lo, 0x00ff00ff\ns_mov_b32 exec_hi, 0x00ff00ff\n"
            f"buffer_store_dwordx4 {vr(AC, 4)}, v{SO}, {WSD}, s{s_o[0]} offen sc1\ns_mov_b64 exec, -1"]
    parts = [ops[:12], ops[12:24], ops[24:34], ops[34:] + fin]

    def gather_loads():
        a(f"s_mov_b32 s{s_t0}, {WS_RS}\nbuffer_load_dwordx4 {vr(G + 32, 4)}, v{gR}, {WSD}, s{s_t0} offen sc1")
        a(f"s_mov_b32 s{s_t0}, {WS_CP}")
        for p in range(8):
            a(f"buffer_load_dwordx4 {vr(G + 4 * p, 4)}, v{gA}, {WSD}, s{s_t0} offen sc1")
            a(f"s_add_u32 s{s_t0}, s{s_t0}, {CP_ROW}")

    def gather_first():
        a(f"buffer_load_dword v{T[1]}, v{gB}, s[{sA}:{sA + 3}], 0 offen")
        gather_loads()

    def gather_put():
        a(f"s_branch {L('ga_chk')}\n{L('ga')}:")
        gather_loads()
        a(f"s_sub_u32 s{s_spin}, s{s_spin}, 1\ns_waitcnt vmcnt(0)\n{L('ga_chk')}:")
        a(f"v_min_u32 v{T[3]}, v{G + 1}, v{G + 3}\nv_max_u32 v{T[4]}, v{G + 1}, v{G + 3}")
        for p in range(1, 9):
            b = G + 4 * p
            a(f"v_min3_u32 v{T[3]}, v{T[3]}, v{b + 1}, v{b + 3}\nv_max3_u32 v{T[4]}, v{T[4]}, v{b + 1}, v{b + 3}")
        retry("ga")
        a(f"v_add_f32 v{G + 1}, v{G + 2}, v{G + 6}\nv_add_f32 v{G}, v{G}, v{G + 4}")
        for p in range(2, 8):
            b = G + 4 * p
            a(f"v_add_f32 v{G}, v{G}, v{b}\nv_add_f32 v{G + 1}, v{G + 1}, v{b + 2}")
        a(f"""
        s_mov_b32 s{s_t0}, {L_NM}
        v_lshlrev_b32 v{G + 2}, 16, v{T[1]}
        v_and_b32 v{G + 3}, 0xffff0000, v{T[1]}
        v_lshl_add_u32 v{T[3]}, v{gL}, 2, s{s_t0}
        v_lshl_add_u32 v{T[4]}, v{gL}, 3, s{s_t0}
        v_lshl_add_u32 v{T[5]}, v{vL}, 3, s{s_t0}
        ds_write2_b32 v{T[3]}, v{G + 32}, v{G + 34} offset0:0 offset1:128
        ds_write_b64 v{T[4]}, {vr(G, 2)} offset:{L_CSA - L_NM}
        ds_write_b64 v{T[5]}, {vr(G + 2, 2)} offset:{L_BI - L_NM}
        s_waitcnt lgkmcnt(0)
        """)

    def mark_unwritten():
        a(f"""
        s_add_u32 s{s_ko}, s{s_cm}, {C_O * CH}
        s_add_u32 s{s_vo}, s{s_cr}, {C_O * CH}
        v_mov_b64 {vr(MK, 2)}, -1
        v_mov_b64 {vr(MK + 2, 2)}, -1
        buffer_store_dwordx4 {vr(MK, 4)}, v{mQ}, {WSD}, s{s_ko} offen sc1
        buffer_store_dwordx4 {vr(MK, 4)}, v{mQ}, {WSD}, s{s_ko} offen offset:512 sc1
        s_mov_b32 exec_hi, 0
        buffer_store_dwordx2 {vr(MK, 2)}, v{mQR}, {WSD}, s{s_vo} offen sc1
        buffer_store_dwordx2 {vr(MK, 2)}, v{mQR}, {WSD}, s{s_vo} offen offset:512 sc1
        s_mov_b32 exec_hi, -1
        """)

    a(f"{feeding}\ns_cbranch_scc1 {L('g1_on')}")
    mark_unwritten()
    only("trs", owner, lambda: a("s_waitcnt vmcnt(0)\n" + "\n".join(ops + fin)))
    a(f"s_branch {L('tr')}\n{L('g1_on')}:")
    feed()
    boundary(12)
    a(f"s_setprio {cfg['fprio']}")
    gath = f"s_cmp_lt_u32 s{s_wj}, 2"
    for c in range(-1, 10):
        if c >= 0:
            boundary({7: 16, 8: 8, 9: 4}.get(c, 12))
        if c == 5:
            only("gf", gath, gather_first)
        if c < 7:
            feed()
        if c == 6:
            mark_unwritten()
        if c < 3:
            only(f"ax{c + 1}", owner, lambda: a("\n".join(parts[c + 1])))
        if c == 7:
            only("gp", gath, gather_put)
    boundary()

    def first_fetch():
        a(f"""
        s_mul_i32 s{s_t0}, s{s_wj}, 3072
        s_add_u32 m0, s{s_t0}, {L_Q}
        s_nop 0
        buffer_load_dwordx4 v{mQ}, {WSD}, s{s_cm} offen sc1 lds
        s_add_u32 m0, s{s_t0}, {L_Q + 512}
        s_nop 0
        buffer_load_dwordx4 v{mQ}, {WSD}, s{s_cm} offen offset:512 sc1 lds
        s_add_u32 m0, s{s_t0}, {L_Q + 2048}
        s_nop 0
        buffer_load_dwordx4 v{mQD}, {WSD}, s{s_cr} offen sc1 lds
        """)
        kv_dma(0)

    a(f"{L('b_last')}:\ns_setprio 2")
    stamp(a, prof, 40)
    ones_write(one, 20)
    wait_flags("wa", WS_FA, [FO, FK])
    stamp(a, prof, 41)
    if prof:
        a(f"s_sub_u32 s{s_t0}, {SPIN}, s{s_spin}\ns_add_u32 s96, s{s_t0}, 100")
    first_fetch()
    kv_dma(1)
    stamp(a, prof, 4)
    a("s_waitcnt vmcnt(7) lgkmcnt(0)")
    stamp(a, prof, 3)
    a("s_barrier")

    vH, vW0, vW1, vP, vWl = 11, 12, 13, 14, 15
    ACC = 16
    LB = [96 + 24 * i for i in range(4)]
    WOR, OF = 96, 216
    a(f"""
    v_mov_b32 v{vH}, v{pH}
    v_mov_b32 v{vW0}, v{pW}
    v_add_u32 v{vW1}, 4096, v{pW}
    v_mov_b32 v{vP}, v{pP}
    v_mov_b32 v{T[0]}, v{pT0}
    v_mov_b32 v{T[1]}, v{pT1}
    v_mov_b32 v{T[2]}, v{pT2}
    s_mul_i32 s{s_t2}, s{s_wj}, 20480
    s_add_u32 s{s_wo}, s{s_t2}, {WS_WT}
    s_cmp_eq_u32 s{s_wj}, 3
    s_cselect_b32 s{s_ring}, {WO3}, s{s_t2}
    v_lshl_add_u32 v{vWl}, v{vL}, 4, s{s_ring}
    s_lshl_b32 s{s_ho}, s{s_wj}, 16
    s_add_u32 s{s_ho}, s{s_ho}, {C_H * CH}
    """)
    final_srds()
    a("s_waitcnt vmcnt(0) lgkmcnt(0)\ns_barrier")
    stamp(a, prof, 5)
    a(f"s_mov_b32 s{s_fl}, s2\ns_cmp_lg_u32 s{s_wj}, 0\ns_cbranch_scc1 {L('fb_set')}")
    set_flag(WS_FB)
    a(f"{L('fb_set')}:")
    kv_dma(2)
    wait_flags("wb", WS_FB, [fB])
    a("s_setprio 0")
    stamp(a, prof, 6)

    def ffn_loads(b):
        a(f"buffer_load_dwordx4 {vr(LB[b], 4)}, v{vH}, {WSD}, s{s_ho} offen sc1")
        for c in range(5):
            va, off = (vW0, 1024 * c) if c < 4 else (vW1, 0)
            a(f"buffer_load_dwordx4 {vr(LB[b] + 4 + 4 * c, 4)}, v{va}, {WSD}, s{s_wo} offen offset:{off} sc1")
        a(f"s_add_u32 s{s_ho}, s{s_ho}, {8 * CH}\ns_add_u32 s{s_wo}, s{s_wo}, {4 * 20480}")

    queue = []

    def need(tag):
        last = max(i for i, q in enumerate(queue) if q == tag)
        a(f"s_waitcnt vmcnt({len(queue) - 1 - last})")
        del queue[:last + 1]

    for b in range(4):
        ffn_loads(b)
        queue += [("L", b)] * 6
    a("s_barrier")
    step = 0
    for iv in range(2, 8):
        if iv < 7:
            kv_dma(iv + 1)
            queue += [("D", iv)] * 7
        for _ in range((5, 5, 5, 5, 5, 2)[iv - 2]):
            b = step & 3
            need(("L", step))
            for c in range(5):
                cin = vr(ACC + 16 * c, 16) if step else "0"
                a(f"v_mfma_f32_32x32x16_bf16 {vr(ACC + 16 * c, 16)}, {vr(LB[b] + 4 + 4 * c, 4)}, {vr(LB[b], 4)}, {cin}")
            if step + 4 < 27:
                ffn_loads(b)
                queue += [("L", step + 4)] * 6
            step += 1
        if iv < 7:
            if ("D", iv) in queue:
                need(("D", iv))
            if cfg.get("trace"):
                stamp(a, prof, 24)
            a("s_barrier")
    assert step == 27 and not queue
    a(f"""
    s_mul_i32 s{s_wo}, s{s_wj}, {10 * 20480}
    s_add_u32 s{s_wo}, s{s_wo}, {WS_WT + 108 * 20480}
    """)
    for i in range(10):
        if i >= 6:
            a(f"s_add_u32 m0, s{s_ring}, {(i - 6) * 5120}\ns_nop 0")
        for c in range(5):
            va, off = (vW0, 1024 * c) if c < 4 else (vW1, 0)
            if i < 6:
                a(f"buffer_load_dwordx4 {vr(WOR + 20 * i + 4 * c, 4)}, v{va}, {WSD}, s{s_wo} offen offset:{off} sc1")
            else:
                if c == 4:
                    a(f"s_add_u32 m0, s{s_ring}, {(i - 6) * 5120 + 4096}\ns_nop 0")
                a(f"buffer_load_dwordx4 v{va}, {WSD}, s{s_wo} offen offset:{off} sc1 lds")
        a(f"s_add_u32 s{s_wo}, s{s_wo}, 20480")
        if i == 4:
            a("s_barrier")
    a(f"""
    s_mul_i32 s{s_ho}, s{s_wj}, {20 * CH}
    s_add_u32 s{s_ho}, s{s_ho}, {C_O * CH}
    """)
    a(f"""
    s_cmp_lg_u32 s2, 0
    s_cbranch_scc1 {L('we_done')}
    s_lshl_b32 s{s_t0}, s{s_wj}, 6
    v_add_u32 v{T[5]}, s{s_t0}, v{vL}
    v_lshlrev_b32 v{T[5]}, 7, v{T[5]}
    """)
    wait_flags("we", WS_FB, [T[5]])
    a(f"s_mov_b32 s{s_spin}, {SPIN}")
    stamp(a, prof, 7)
    a(f"""
    s_barrier
    s_cmp_lg_u32 s{s_fl}, 0
    s_cbranch_scc1 {L('poll')}
    v_mov_b32 v{T[4]}, 0
    v_mov_b32 v{T[5]}, s{s_tag}
    s_mov_b32 s{s_t0}, {WS_E}
    buffer_store_dword v{T[5]}, v{T[4]}, {WSD}, s{s_t0} offen sc1
    """)
    a(f"{L('poll')}:\ns_mov_b32 s{s_t0}, s{s_ho}")
    for i in range(10):
        a(f"buffer_load_dwordx4 {vr(OF + 4 * i, 4)}, v{vH}, {WSD}, s{s_t0} offen sc1")
        a(f"s_add_u32 s{s_t0}, s{s_t0}, {2 * CH}")
    a(f"s_sub_u32 s{s_spin}, s{s_spin}, 1\ns_waitcnt vmcnt(0)")
    a(f"v_max_u32 v{T[3]}, v{OF + 1}, v{OF + 3}")
    for i in range(1, 10):
        a(f"v_max3_u32 v{T[3]}, v{T[3]}, v{OF + 4 * i + 1}, v{OF + 4 * i + 3}")
    a(f"""
    v_cmp_eq_u32 vcc, -1, v{T[3]}
    s_cmp_eq_u32 s{s_spin}, 0
    s_cbranch_scc1 {L('got')}
    s_cbranch_vccnz {L('poll')}
    {L('got')}:
    """)
    stamp(a, prof, 8)
    if prof:
        a("s_waitcnt lgkmcnt(0)")
    for i in range(10):
        wbase = WOR + 20 * (i if i < 6 else i - 5)
        if i >= 6:
            a(f"s_waitcnt lgkmcnt({(10, 10, 5, 0)[i - 6]})")
        for c in range(5):
            a(f"v_mfma_f32_32x32x16_bf16 {vr(ACC + 16 * c, 16)}, {vr(wbase + 4 * c, 4)}, {vr(OF + 4 * i, 4)}, {vr(ACC + 16 * c, 16)}")
        if i == 0:
            final_loads()
        ld = {1: 6, 2: 7, 3: 8, 6: 9}.get(i)
        if ld is not None:
            for c in range(5):
                a(f"ds_read_b128 {vr(WOR + 20 * (ld - 5) + 4 * c, 4)}, v{vWl} offset:{(ld - 6) * 5120 + 1024 * c}")
    a("s_nop 7")
    for c in range(5):
        if c == 3:
            a("s_waitcnt lgkmcnt(4)")
        for q in range(4):
            a(f"ds_write_b128 v{vP}, {vr(ACC + 16 * c + 4 * q, 4)} offset:{128 * c + 64 * (q >> 1) + 16 * (q & 1)}")
    a("s_waitcnt lgkmcnt(0)")

    a(f"{L('final')}:\ns_barrier")
    stamp(a, prof, 9)
    if prof:
        a("s_waitcnt lgkmcnt(0)")
    a(f"v_add_u32 v{T[3]}, {P_BASE[3]}, v{T[2]}\nv_add_u32 v{T[2]}, {P_BASE[0]}, v{T[2]}")
    U = RB + 64
    for ps in range(2):
        for p in range(4):
            va, off = (T[2], 0) if p == 0 else (T[3], P_BASE[p] - P_BASE[3])
            for hq in range(2):
                a(f"ds_read_b128 {vr(RB + 32 * ps + 8 * p + 4 * hq, 4)}, v{va} offset:{off + 2 * P_STRIDE * ps + 16 * hq}")
        if ps == 0:
            a("s_waitcnt vmcnt(0)")
            for i in range(12):
                a(f"v_lshlrev_b32 v{U + 2 * i}, 16, v{XR + i}\nv_and_b32 v{U + 2 * i + 1}, 0xffff0000, v{XR + i}")
            for k in range(2):
                for p in range(4):
                    a(f"v_pk_add_f32 {vr(U + 8 * k + 2 * p, 2)}, {vr(U + 8 * k + 2 * p, 2)}, {vr(U + 16 + 2 * p, 2)}")
            a("s_waitcnt lgkmcnt(7)")
    a("s_mov_b32 exec_hi, 0xff")
    for ps in range(2):
        a(f"s_waitcnt lgkmcnt({8 if ps == 0 else 0})")
        r = RB + 32 * ps
        for p in range(4):
            a(f"v_pk_add_f32 {vr(r + 2 * p, 2)}, {vr(r + 2 * p, 2)}, {vr(r + 8 + 2 * p, 2)}")
            a(f"v_pk_add_f32 {vr(r + 16 + 2 * p, 2)}, {vr(r + 16 + 2 * p, 2)}, {vr(r + 24 + 2 * p, 2)}")
        for p in range(4):
            a(f"v_pk_add_f32 {vr(r + 2 * p, 2)}, {vr(r + 2 * p, 2)}, {vr(U + 8 * ps + 2 * p, 2)}")
        for p in range(4):
            a(f"v_pk_add_f32 {vr(r + 2 * p, 2)}, {vr(r + 2 * p, 2)}, {vr(r + 16 + 2 * p, 2)}")
        for p in range(4):
            a(f"v_cvt_pk_bf16_f32 v{r + 8 + p}, v{r + 2 * p}, v{r + 2 * p + 1}")
        a(f"buffer_store_dwordx4 {vr(r + 8, 4)}, v{T[0]}, s[{sB}:{sB + 3}], 0 offen offset:{2560 * ps}")
    if prof:
        a("s_mov_b64 exec, -1\ns_waitcnt vmcnt(0)")
        stamp(a, prof, 10)
        stamp(a, prof, 11)
        a(f"""
        s_memrealtime s[78:79]
        s_waitcnt lgkmcnt(0)
        s_mov_b32 s{sWS + 2}, {WS_SIZE}
        s_lshl_b32 s95, s2, 3
        s_add_u32 s95, s95, s{s_w}
        s_lshl_b32 s95, s95, 8
        s_add_u32 s95, s95, {WS_DBG}
        v_writelane_b32 v0, s76, 62
        v_writelane_b32 v0, s78, 63
        v_lshlrev_b32 v{T[0]}, 2, v{vL}
        buffer_store_dword v0, v{T[0]}, {WSD}, s95 offen
        s_waitcnt vmcnt(0)
        """)
    a(f"{L('end')}:\ns_endpgm")
    return kernel_header(label) + a.text(), kernel_desc(label, 256, 102 if prof else 80), LDS_SIZE


def build(as_list=False, **kw):
    ref = open(f"cdna_kernels/{NAME}.s.ref").read().split("\n")
    head = [ln for ln in ref if ln.startswith(";") and "launch" not in ln.lower() and "grid=" not in ln]
    label = NAME + "_kernel"
    c, d, lds = gen(label, **kw)
    c = c.replace(label + "_", "L_")
    out = "\n".join(head) + "\n"
    out += f"; @launch {'kernel=' + label + ' ' if as_list else ''}grid=(256,1,1) block=(512,1,1) lds={lds}\n"
    out += '.amdgcn_target "amdgcn-amd-amdhsa--gfx950"\n.text\n' + c + '.section .rodata,"a"\n' + d
    return out


if __name__ == "__main__":
    import sys
    opts = sys.argv[2:]
    cfg = {o.split("=")[0]: int(o.split("=")[1]) for o in opts if "=" in o}
    open(sys.argv[1], "w").write(build(as_list="list" in opts, prof="prof" in opts, force_fallback="slow" in opts, cfg=cfg))
```

```python
import math
import struct
from common import *

f32 = lambda x: struct.unpack("<I", struct.pack("<f", x))[0]
QSCALE = f32(math.log2(math.e) / math.sqrt(20.0))
SHIFT = 88.0

WS_RS = WS_END
WS_CP = WS_RS + 2048 * 16
CP_ROW = 3648 * 8
WS_FA = WS_CP + 4 * CP_ROW
WS_FB = WS_FA + 1024 * 128
WS_E = WS_FB + 1024 * 128
WS_TOP = WS_E + 128

STG = 49152
LX, LW, LF = 0, 16384, 32768
L_NM = 3 * STG
L_RS, L_CSA, L_CSB, L_BI = L_NM + 512, L_NM + 1024, L_NM + 1536, L_NM + 2048
L_CP = L_NM + 2560
L_RP = L_CP + 1024
LDS_SIZE = 163840
SLOT = 8192 + 4096 + 16 * 656
OFF_R, OFF_V = 8192, 12288
KV = LDS_SIZE - 3 * SLOT
L_Q = 0
L_WO = 0
LDS_OOB = 0x28000
assert L_WO + 18 * 5120 <= KV and LDS_OOB + 3 * SLOT <= 0x40000
KS_ROW = 40 * 1024

sWS, sX, sW, sA, sB = 24, 28, 32, 36, 40
(s_w, s_wj, s_rb, s_cg, s_head, s_qb, s_tt, s_ocg, s_cm, s_cr, s_par, s_tag, s_c, s_slot,
 s_t0, s_t1, s_t2, s_t3, s_xo, s_wo, s_ring, s_wstep, s_ko, s_vo, s_ho, s_spin, s_fl) = range(44, 71)
assert s_t2 % 2 == 0
s_o = [71, 72, 73]
s_kc, s_hook = 74, 75
SPIN = 0x20000


def gen(label, prof=False, force_fallback=False, cfg=None):
    cfg = {**dict(touch=3, gat=3, pre=2, mk=8, early=0, fprio=2, flag=-1, krot=0, plf=0, fsf=0, slp=2, fbr=2, cut0=44, cutd=50, grp=4, osf=0), **(cfg or {})}
    STF = ('sc1', '', 'nt')[cfg.get('plain', 0)]
    PLF = ('sc1', 'sc0 sc1', 'sc1 nt', 'sc0 sc1 nt')[cfg['plf']]
    FSF = ('sc1', 'sc0 sc1')[cfg['fsf']]
    OSF = ('', 'sc1', 'nt')[cfg['osf']]
    a = Asm()
    L = lambda n: f"{label}_{n}"
    WSD = f"s[{sWS}:{sWS + 3}]"
    vL = 1
    T = [2, 3, 4, 5, 6, 7]
    vK, vR_, vV = 8, 9, 10
    AX = [11, 12]
    AW = [13, 14, 15, 16]
    XF = [[32 + 16 * b + 4 * t for t in range(4)] for b in range(2)]
    WF = [[64 + 16 * b + 4 * c for c in range(4)] for b in range(2)]
    GA, GB = 96, 160

    def capture(fn):
        keep, a.lines = a.lines, []
        fn()
        got, a.lines = a.lines, keep
        units, masked = [], False
        for ln in got:
            t = ln.strip()
            if units and (masked or t.startswith("s_cselect") or units[-1].split("\n")[-1].strip().startswith("s_cmp")):
                units[-1] += "\n" + ln
            else:
                units.append(ln)
            if t.startswith("s_") and " exec" in t.split(",")[0]:
                masked = not t.endswith("-1")
        return units

    def gacc(tt, ci, base=GA):
        return base + (tt * 4 + ci) * 4

    SD = 32
    a(f"""
    s_cmp_ge_u32 s2, 256
    s_cbranch_scc1 {L('end')}
    s_load_dwordx16 s[4:19], s[0:1], 0
    s_load_dwordx2 s[22:23], s[0:1], 80
    s_load_dwordx2 s[20:21], s[0:1], 64
    """)
    stamp(a, prof, 0)
    a(f"""
    v_lshrrev_b32 v{T[0]}, 6, v0
    v_and_b32 v{vL}, 63, v0
    s_and_b32 s{s_t3}, s2, 1
    v_readfirstlane_b32 s{s_w}, v{T[0]}
    s_bfe_u32 s{s_cg}, s2, 0x20001
    s_mov_b32 s{sA + 3}, 0x00020000
    {'v_mov_b32 v0, -1' if prof else ''}
    s_and_b32 s{s_wj}, s{s_w}, 3
    s_cmp_ge_u32 s{s_w}, 4
    s_cbranch_scc1 {L('p_col')}
    s_mov_b32 s3, 0
    s_lshl_b32 s{s_t0}, s{s_t3}, 8
    s_and_b32 s{s_t1}, s2, 0xfe
    s_add_u32 s{s_t0}, s{s_t0}, s{s_t1}
    s_add_u32 s{s_t0}, s{s_t0}, s{s_wj}
    s_mul_i32 s{s_t1}, s{s_t0}, {4 * 1280}
    s_lshl_b32 s{s_o[0]}, s{s_t0}, 6
    v_lshrrev_b32 v{T[0]}, 4, v{vL}
    v_and_b32 v{T[1]}, 15, v{vL}
    v_mul_u32_u24 v{T[2]}, 1280, v{T[0]}
    s_movk_i32 s{s_t2}, 256
    s_mov_b32 s{sA + 2}, {S * D * 2}
    s_cmp_lt_u32 s{s_wj}, 2
    s_waitcnt lgkmcnt(0)
    s_mov_b64 s[{sA}:{sA + 1}], s[4:5]
    s_branch {L('p_ld')}
    {L('p_col')}:
    s_setprio 2
    s_mov_b32 s3, 1
    s_lshr_b32 s{s_t1}, s2, 5
    s_lshl_b32 s{s_t0}, s{s_cg}, 3
    s_add_u32 s{s_t1}, s{s_t1}, s{s_t0}
    s_bfe_u32 s{s_t0}, s2, 0x10003
    s_lshl_b32 s{s_t2}, s{s_t3}, 1
    s_add_u32 s{s_t0}, s{s_t0}, s{s_t2}
    s_mul_i32 s{s_o[0]}, s{s_t0}, {CP_ROW // 512 * 512}
    s_lshl_b32 s{s_t0}, s{s_t0}, 2
    s_add_u32 s{s_t0}, s{s_t0}, s{s_wj}
    s_mul_i32 s{s_t0}, s{s_t0}, 40
    v_lshrrev_b32 v{T[0]}, 3, v{vL}
    v_and_b32 v{T[1]}, 7, v{vL}
    s_bitcmp0_b32 s2, 4
    s_cselect_b32 s{s_hook}, 30, 57
    s_movk_i32 s{s_t2}, 3840
    s_cselect_b32 s{s_t2}, s{s_t2}, 3456
    s_cselect_b32 s{s_o[1]}, 0, 30
    s_mul_i32 s{sA + 2}, s{s_t2}, 640
    s_mul_i32 s{s_t0}, s{s_t0}, s{s_t2}
    v_mul_u32_u24 v{T[2]}, s{s_t2}, v{T[0]}
    s_waitcnt lgkmcnt(0)
    s_cselect_b64 s[{sA}:{sA + 1}], s[6:7], s[12:13]
    s_add_u32 s{s_o[1]}, s{s_o[1]}, s{s_t1}
    s_lshl_b32 s{s_t1}, s{s_t1}, 7
    s_add_u32 s{s_t1}, s{s_t1}, s{s_t0}
    s_lshl_b32 s{s_t2}, s{s_t2}, 3
    s_cmp_lt_u32 s{s_o[1]}, s{s_hook}
    s_cselect_b32 s{s_hook}, 3, 7
    {L('p_ld')}:
    v_lshl_add_u32 v{T[2]}, v{T[1]}, 4, v{T[2]}
    s_cbranch_scc0 {L('p_id')}
    """)
    assert CP_ROW % 512 == 0
    for q in range(5):
        a(f"buffer_load_dwordx4 {vr(SD + 4 * q, 4)}, v{T[2]}, s[{sA}:{sA + 3}], s{s_t1} offen")
        a(f"s_add_u32 s{s_t1}, s{s_t1}, s{s_t2}")
    a(f"""
    {L('p_id')}:
    s_lshr_b32 s{s_t1}, s2, 3
    s_lshr_b32 s{s_ocg}, s{s_t1}, 3
    s_and_b32 s{s_t2}, s{s_t1}, 7
    s_lshl_b32 s{s_cg}, s{s_cg}, 2
    s_add_u32 s{s_cg}, s{s_cg}, s{s_ocg}
    s_lshl_b32 s{s_rb}, s{s_t3}, 3
    s_add_u32 s{s_rb}, s{s_rb}, s{s_t2}
    s_cmp_eq_u32 s3, 0
    s_cbranch_scc1 {L('g0')}
    """)
    head_lines, a.lines = a.lines, []

    def attn_ids():
        a(f"""
        s_and_b32 s{s_t0}, s2, 7
        s_lshr_b32 s{s_t1}, s2, 3
        s_and_b32 s{s_t2}, s{s_t1}, 3
        s_lshl_b32 s{s_head}, s{s_t0}, 2
        s_add_u32 s{s_head}, s{s_head}, s{s_t2}
        s_lshr_b32 s{s_qb}, s{s_t1}, 2
        s_and_b32 s{s_par}, s{s_head}, 1
        s_lshr_b32 s{s_t2}, s{s_head}, 1
        s_mul_i32 s{s_t2}, s{s_t2}, 5
        s_add_u32 s{s_cr}, s{s_t2}, 2
        s_mul_i32 s{s_t3}, s{s_par}, 3
        s_add_u32 s{s_cm}, s{s_t2}, s{s_t3}
        s_lshl_b32 s{s_cm}, s{s_cm}, 15
        s_lshl_b32 s{s_cr}, s{s_cr}, 15
        """)

    def load_tag():
        a(f"""
        s_mov_b32 s{s_t0}, {WS_E}
        s_load_dword s{s_tag}, s[22:23], s{s_t0}
        """)

    def frag_addr():
        a(f"""
        v_and_b32 v{T[0]}, 15, v{vL}
        v_lshrrev_b32 v{T[1]}, 4, v{vL}
        v_bfe_u32 v{T[2]}, v{vL}, 1, 3
        v_xor_b32 v{T[2]}, v{T[2]}, v{T[1]}
        v_lshlrev_b32 v{T[2]}, 4, v{T[2]}
        v_lshl_add_u32 v{T[2]}, v{T[0]}, 7, v{T[2]}
        s_and_b32 s{s_t0}, s{s_wj}, 1
        s_lshl_b32 s{s_t0}, s{s_t0}, 13
        v_add_u32 v{AX[0]}, s{s_t0}, v{T[2]}
        v_xor_b32 v{AX[1]}, 64, v{AX[0]}
        v_bfe_u32 v{T[2]}, v{vL}, 2, 2
        v_lshl_add_u32 v{T[3]}, v{T[1]}, 3, v{T[2]}
        v_lshlrev_b32 v{T[3]}, 8, v{T[3]}
        v_bfe_u32 v{T[2]}, v{vL}, 2, 3
        s_lshr_b32 s{s_t0}, s{s_wj}, 1
        s_lshl_b32 s{s_t0}, s{s_t0}, 2
        v_xor_b32 v{T[2]}, s{s_t0}, v{T[2]}
        v_lshl_add_u32 v{T[3]}, v{T[2]}, 5, v{T[3]}
        v_and_b32 v{T[2]}, 3, v{vL}
        v_lshl_add_u32 v{AW[0]}, v{T[2]}, 3, v{T[3]}
        v_xor_b32 v{AW[1]}, 32, v{AW[0]}
        v_xor_b32 v{AW[2]}, 64, v{AW[0]}
        v_xor_b32 v{AW[3]}, 96, v{AW[0]}
        """)

    def zero(base, n):
        for r in range(base, base + n, 2):
            a(f"v_mov_b64 {vr(r, 2)}, 0")

    def wreads(part, s, b):
        return [f"ds_read_b64_tr_b16 {vr(WF[b][c] + 2 * h, 2)}, v{AW[c]} offset:{part + s * 8192 + 1024 * h}"
                for c in range(4) for h in range(2)]

    def xreads(s):
        return [f"ds_read_b128 {vr(XF[s][t], 4)}, v{AX[s]} offset:{LX + 2048 * t}" for t in range(4)]

    def both(part, s, b):
        w, x = wreads(part, s, b), xreads(s)
        return w[:2] + x[:1] + w[2:] + x[1:]

    def gemm_body(name, halves, barrier, count_to):
        a(f".p2align 3\n{L(name)}:")
        for k, (xs, wb, acc, swapped, rd) in enumerate(halves):
            fill = [[] for _ in range(16)]
            if k == len(halves) - 1:
                if barrier:
                    if prof and cfg.get("trace", 0) > 2:
                        fill[0] += capture(lambda: stamp(a, prof, 25))
                    fill[0].append("s_barrier")
                fill[13].append(f"s_add_u32 s{s_c}, s{s_c}, 1")
                fill[14].append(f"s_cmp_lt_u32 s{s_c}, {count_to}")
            if k == len(halves) - 2:
                fill[8].append(f"s_add_u32 s{s_ring}, s{s_ring}, 1")
                fill[9].append(f"s_cmp_eq_u32 s{s_ring}, 3")
                fill[10].append(f"s_cselect_b32 s{s_xo}, {-2 * STG & 0xffffffff}, s{s_wstep}")
                fill[11].append(f"s_cselect_b32 s{s_ring}, 0, s{s_ring}")
            for m, x in enumerate(rd):
                fill[m].append(x)
            if k == len(halves) - 2:
                for m, r in enumerate(AX + AW):
                    fill[12 + m // 2].append(f"v_add_u32 v{r}, s{s_xo}, v{r}")
            fill[15].append("s_waitcnt lgkmcnt(0)")
            for m in range(16):
                tt, ci = m >> 2, m & 3
                wf, xf = vr(WF[wb][ci], 4), vr(XF[xs][tt], 4)
                A, B = (xf, wf) if swapped else (wf, xf)
                a(f"v_mfma_f32_16x16x32_bf16 {vr(gacc(tt, ci, acc), 4)}, {A}, {B}, {vr(gacc(tt, ci, acc), 4)}")
                a("\n".join(fill[m]))
        if 0 < cfg.get("trace", 0) < 3:
            stamp(a, prof, 20)
        a(f"s_cbranch_scc1 {L(name)}")

    def joint(name, sw):
        gemm_body(name, [(0, 0, GA, sw, wreads(LF, 0, 1)), (0, 1, GB, False, both(LW, 1, 0)),
                         (1, 0, GA, sw, wreads(LF, 1, 1)), (1, 1, GB, False, both(LW, 0, 0))], True, 7)

    def single(name, part, acc, sw, barrier, count_to):
        gemm_body(name, [(0, 0, acc, sw, both(part, 1, 1)), (1, 1, acc, sw, both(part, 0, 0))], barrier, count_to)

    def tile_addr(e_reg, e_lane, e_st):
        a(f"""
        v_and_b32 v{T[0]}, 15, v{vL}
        v_lshrrev_b32 v{T[1]}, 4, v{vL}
        s_lshr_b32 s{s_t0}, s{s_wj}, 1
        s_lshl_b32 s{s_t0}, s{s_t0}, 8
        s_add_u32 s{s_t0}, s{s_t0}, {L_NM}
        v_lshl_add_u32 v{e_reg}, v{T[1]}, 4, s{s_t0}
        s_and_b32 s{s_t1}, s{s_wj}, 1
        s_lshl_b32 s{s_t0}, s{s_t1}, 8
        s_add_u32 s{s_t0}, s{s_t0}, {L_NM}
        v_lshl_add_u32 v{e_lane}, v{T[0]}, 2, s{s_t0}
        v_bfrev_b32 v{T[1]}, v{T[1]}
        v_lshrrev_b32 v{T[1]}, 15, v{T[1]}
        v_lshl_add_u32 v{T[1]}, v{T[0]}, 4, v{T[1]}
        s_lshl_b32 s{s_t0}, s{s_rb}, 1
        s_add_u32 s{s_t0}, s{s_t0}, s{s_t1}
        s_lshl_b32 s{s_t0}, s{s_t0}, 10
        v_add_u32 v{e_st}, s{s_t0}, v{T[1]}
        """)

    def put_piece(src, addr, x, y):
        return f"buffer_store_dwordx4 {vr(src, 4)}, v{addr}, {WSD}, s{s_o[x]} offen offset:{256 * y} {STF}"

    def pack_tiles(acc, math, dst, addr=None, between=None):
        pend = []
        for tt in range(4):
            for cp in range(2):
                ob = dst(cp, tt)
                r0 = gacc(tt, 2 * cp, acc)
                math(tt, [(r0 + 2 * p, 8 * cp + 2 * p) for p in range(4)])
                a("\n".join(pend))
                for p in range(4):
                    a(f"v_cvt_pk_bf16_f32 v{ob + p}, v{r0 + 2 * p}, v{r0 + 2 * p + 1}")
                pend = [f"v_permlane16_swap_b32 v{ob}, v{ob + 2}", f"v_permlane16_swap_b32 v{ob + 1}, v{ob + 3}"]
                if addr:
                    pend.append(put_piece(ob, addr, cp, tt))
            if between:
                between(tt)
        a("s_nop 1\n" + "\n".join(pend))

    def key_perm(dst, src, t0, t1):
        a(f"""
        v_bfe_u32 v{t0}, v{src}, 2, 1
        v_bfe_u32 v{t1}, v{src}, 3, 2
        v_lshl_add_u32 v{t0}, v{t0}, 2, v{t1}
        v_and_b32 v{t1}, 3, v{src}
        v_lshl_add_u32 v{dst}, v{t0}, 2, v{t1}
        """)

    def v_feature(dst, row, t0, t1):
        swap23(a, dst, row, t0, t1)
        a(f"""
        s_lshl_b32 s{s_t0}, s{s_par}, 2
        s_mul_i32 s{s_t1}, s{s_par}, -16
        v_cmp_gt_u32 vcc, 16, v{row}
        v_add_u32 v{dst}, s{s_t0}, v{dst}
        v_add_u32 v{t0}, s{s_t1}, v{row}
        v_cndmask_b32 v{dst}, v{t0}, v{dst}, vcc
        """)

    def kv_addr(first_chunk):
        a(f"v_and_b32 v{T[0]}, 31, v{vL}\nv_lshrrev_b32 v{T[1]}, 5, v{vL}")
        key_perm(T[2], T[0], T[3], T[4])
        a(f"""
        v_lshlrev_b32 v{T[3]}, 4, v{T[2]}
        v_lshl_add_u32 v{vK}, v{T[1]}, 15, v{T[3]}
        v_add_u32 v{vK}, s{s_cm}, v{vK}
        v_lshl_add_u32 v{vR_}, v{T[1]}, 9, v{T[3]}
        v_add_u32 v{vR_}, s{s_cr}, v{vR_}
        v_cmp_le_u32 vcc, 20, v{vL}
        s_lshl_b32 s{s_t0}, s{s_wj}, 10
        s_mul_i32 s{s_kc}, s{s_qb}, {cfg['krot']}
        v_cndmask_b32 v{T[2]}, 0, 1, vcc
        v_mul_u32_u24 v{T[3]}, 20, v{T[2]}
        v_sub_u32 v{T[3]}, v{vL}, v{T[3]}
        v_mul_u32_u24 v{vV}, 10240, v{T[2]}
        """)
        v_feature(T[2], T[3], T[4], T[5])
        a(f"""
        s_mul_i32 s{s_t0}, s{s_head}, 320
        v_lshl_add_u32 v{vV}, v{T[2]}, 4, v{vV}
        v_add_u32 v{vV}, s{s_t0}, v{vV}
        """)

    def kv_dma(chunk):
        base = KV + ((chunk + 2) % 3) * SLOT
        a(f"""
        s_and_b32 s{s_t0}, s{s_kc}, 7
        s_lshl_b32 s{s_t0}, s{s_t0}, 2
        s_add_u32 s{s_t0}, s{s_t0}, s{s_wj}
        s_lshl_b32 s{s_ko}, s{s_t0}, 10
        s_add_u32 s{s_ko}, s{s_ko}, {C_K * CH}
        s_mul_i32 s{s_vo}, s{s_t0}, 81920
        s_add_u32 s{s_vo}, s{s_vo}, {WS_V}
        s_add_u32 s{s_kc}, s{s_kc}, 1
        s_lshl_b32 s{s_t0}, s{s_wj}, 11
        s_add_u32 m0, s{s_t0}, {base}
        s_lshl_b32 s{s_t1}, s{s_wj}, 10
        buffer_load_dwordx4 v{vK}, {WSD}, s{s_ko} offen sc1 lds
        s_add_u32 m0, s{s_t0}, {base + 512}
        s_mul_i32 s{s_t0}, s{s_wj}, {4 * 656}
        buffer_load_dwordx4 v{vK}, {WSD}, s{s_ko} offen offset:512 sc1 lds
        s_add_u32 m0, s{s_t1}, {base + OFF_R}
        s_nop 0
        buffer_load_dwordx4 v{vR_}, {WSD}, s{s_ko} offen sc1 lds
        s_mov_b32 exec_hi, 0xff
        """)
        for i in range(4):
            a(f"""
            s_add_u32 m0, s{s_t0}, {base + OFF_V + 656 * i}
            s_add_u32 s{s_t1}, s{s_vo}, {20480 * i}
            buffer_load_dwordx4 v{vV}, {WSD}, s{s_t1} offen sc1 lds
            """)
        a("s_mov_b32 exec_hi, -1")

    def ones_addr(dst, first_slot, nslots):
        a(f"""
        v_min_u32 v{dst}, {16 * nslots - 1}, v{vL}
        v_lshrrev_b32 v{T[3]}, 4, v{dst}
        v_and_b32 v{dst}, 15, v{dst}
        v_mul_u32_u24 v{T[3]}, {SLOT}, v{T[3]}
        v_mul_u32_u24 v{dst}, 656, v{dst}
        v_add_u32 v{dst}, v{dst}, v{T[3]}
        v_add_u32 v{dst}, {KV + first_slot * SLOT + OFF_V + 640}, v{dst}
        """)

    def ones_write(addr, tmp):
        for r in range(4):
            a(f"v_mov_b32 v{tmp + r}, 0x3f803f80")
        a(f"ds_write_b128 v{addr}, {vr(tmp, 4)}")

    def set_flag(base):
        a(f"""
        s_lshl_b32 s{s_t0}, s{s_fl}, 7
        s_add_u32 s{s_t0}, s{s_t0}, {base}
        v_mov_b32 v{T[4]}, 0
        v_mov_b32 v{T[3]}, s{s_tag}
        s_mov_b64 exec, 1
        buffer_store_dword v{T[3]}, v{T[4]}, {WSD}, s{s_t0} offen {FSF}
        s_mov_b64 exec, -1
        """)

    def flag_of_tile(dst, rh, unit):
        a(f"v_lshl_add_u32 v{dst}, v{unit}, 5, {rh}\nv_lshlrev_b32 v{dst}, 7, v{dst}")

    def head_unit(dst, sel):
        a(f"""
        s_mul_i32 s{s_t0}, s{s_head}, 20
        v_mad_u32_u24 v{dst}, v{sel}, 19, s{s_t0}
        v_lshrrev_b32 v{dst}, 6, v{dst}
        """)

    def wait_flags(name, base, offs, rounds=SPIN):
        a(f"""
        s_mov_b32 s{s_t0}, {base}
        s_mov_b32 s{s_spin}, {rounds}
        s_branch {L(name + '_ld')}
        {L(name)}:
        s_sleep {cfg['slp']}
        {L(name + '_ld')}:
        buffer_load_dword v{T[3]}, v{offs[0]}, {WSD}, s{s_t0} offen {PLF}
        """)
        if len(offs) > 1:
            a(f"buffer_load_dword v{T[4]}, v{offs[1]}, {WSD}, s{s_t0} offen {PLF}")
        a(f"s_sub_u32 s{s_spin}, s{s_spin}, 1\ns_waitcnt vmcnt(0)")
        if len(offs) == 1:
            a(f"v_mov_b32 v{T[4]}, v{T[3]}")
        retry(name)

    def retry(name):
        a(f"""
        v_cmp_ne_u32 vcc, s{s_tag}, v{T[3]}
        v_cmp_ne_u32 s[{s_t2}:{s_t2 + 1}], s{s_tag}, v{T[4]}
        s_cmp_eq_u32 s{s_spin}, 0
        s_cbranch_scc1 {L(name + '_done')}
        s_or_b64 vcc, vcc, s[{s_t2}:{s_t2 + 1}]
        s_cbranch_scc1 {L(name)}
        {L(name + '_done')}:
        """)

    def relayout():
        TF, TA, TV, TS = 40, [11, 12], [13, 14, 15, 16, 32], [33, 34, 35]
        s_q, s_wl = s_xo, s_ho
        a(f"""
        s_lshl_b32 s{s_q}, s{s_rb}, 3
        s_add_u32 s{s_q}, s{s_q}, s{s_w}
        s_mul_i32 s{s_wl}, s{s_w}, 20480
        s_mov_b32 s{sW + 3}, 0x00020000
        s_add_u32 s{sB}, s22, {WS_WT}
        s_addc_u32 s{sB + 1}, s23, 0
        s_mov_b32 s{sB + 2}, {74 * KS_ROW}
        s_mov_b32 s{sB + 3}, 0x00020000
        """)
        for i in range(5):
            a(f"""
            v_add_u32 v{T[0]}, {64 * i}, v{vL}
            v_mul_u32_u24 v{T[1]}, 3277, v{T[0]}
            v_lshrrev_b32 v{T[1]}, 16, v{T[1]}
            v_mul_u32_u24 v{T[1]}, {1280 - 320}, v{T[1]}
            v_lshl_add_u32 v{TV[i]}, v{T[0]}, 4, v{T[1]}
            """)
        a(f"""
        v_lshrrev_b32 v{T[0]}, 4, v{vL}
        v_bfe_u32 v{T[1]}, v{vL}, 2, 2
        v_lshl_add_u32 v{T[0]}, v{T[0]}, 3, v{T[1]}
        v_mul_u32_u24 v{T[0]}, 320, v{T[0]}
        v_add_u32 v{T[0]}, s{s_wl}, v{T[0]}
        v_and_b32 v{T[1]}, 3, v{vL}
        v_lshl_add_u32 v{TA[0]}, v{T[1]}, 4, v{T[0]}
        v_lshl_add_u32 v{TA[1]}, v{T[1]}, 3, v{T[0]}
        v_lshlrev_b32 v{TS[0]}, 4, v{vL}
        v_add_u32 v{TS[1]}, 4096, v{TS[0]}
        v_add_u32 v{TS[2]}, 8192, v{TS[0]}
        """)

        def fetch(u):
            a(f"""
            s_mul_i32 s{s_o[u]}, s{s_q}, 10240
            s_lshr_b32 s{s_t0}, s{s_q}, 2
            s_cmp_lt_u32 s{s_t0}, 54
            s_cselect_b32 s{sW}, s16, s8
            s_cselect_b32 s{sW + 1}, s17, s9
            s_mov_b32 s{sW + 2}, {F * D * 2}
            s_cselect_b32 s{sW + 2}, s{sW + 2}, {D * D * 2}
            s_cselect_b32 s{s_t1}, 0, 54
            s_sub_u32 s{s_t0}, s{s_t0}, s{s_t1}
            s_mul_i32 s{s_wo}, s{s_t0}, {32 * 1280}
            s_and_b32 s{s_t1}, s{s_q}, 3
            s_mul_i32 s{s_t1}, s{s_t1}, 320
            s_add_u32 s{s_wo}, s{s_wo}, s{s_t1}
            s_add_u32 s{s_q}, s{s_q}, 128
            """)
            for g in range(2):
                for i in range(5):
                    a(f"s_add_u32 m0, s{s_wl}, {(u & 1) * 10240 + g * 5120 + i * 1024}\ns_nop 0")
                    a(f"buffer_load_dwordx4 v{TV[i]}, s[{sW}:{sW + 3}], s{s_wo} offen lds")
                a(f"s_add_u32 s{s_wo}, s{s_wo}, {16 * 1280}")

        def turn(u):
            for f in range(10):
                c = f % 5
                va, off = (TA[0], 64 * (c >> 1) + 8 * (c & 1)) if c < 4 else (TA[1], 128)
                for h in range(2):
                    a(f"ds_read_b64_tr_b16 {vr(TF + u * 40 + 4 * f + 2 * h, 2)}, v{va} offset:{(u & 1) * 10240 + 160 * (f // 5) + off + 1280 * h}")
                if c == 4:
                    a("s_waitcnt lgkmcnt(0)")

        def put(u):
            for f in range(10):
                a(f"buffer_store_dwordx4 {vr(TF + u * 40 + 4 * f, 4)}, v{TS[f >> 2]}, s[{sB}:{sB + 3}], s{s_o[u]} offen offset:{1024 * (f & 3)} sc1")

        fetch(0)
        fetch(1)
        a("s_waitcnt vmcnt(10)")
        turn(0)
        fetch(2)
        put(0)
        a("s_waitcnt vmcnt(20)")
        turn(1)
        put(1)
        a("s_waitcnt vmcnt(20)")
        turn(2)
        put(2)

    def q_addr(vq, vqr):
        a(f"""
        v_and_b32 v{T[0]}, 31, v{vL}
        v_lshrrev_b32 v{T[1]}, 5, v{vL}
        s_lshl_b32 s{s_t0}, s{s_qb}, 2
        s_add_u32 s{s_t0}, s{s_t0}, s{s_wj}
        s_lshl_b32 s{s_t0}, s{s_t0}, 10
        s_lshl_b32 s{s_t1}, s{s_par}, 3
        s_add_u32 s{s_t2}, s{s_t0}, s{s_t1}
        v_lshlrev_b32 v{T[2]}, 4, v{T[0]}
        v_lshl_add_u32 v{vq}, v{T[1]}, 15, v{T[2]}
        v_add_u32 v{vq}, s{s_t0}, v{vq}
        v_add_u32 v{vqr}, s{s_t2}, v{T[2]}
        """)

    eR, eL, eS, hR, hL, hS = 17, 18, 19, 8, 9, 10
    IDX, AK0, AR0, AV0, VQ, VQR, AQ = 20, 21, 22, 23, 24, 25, 26
    AK, AR, AV = 27, 28, 29
    R = Regs(216)
    MX = [R.get(), R.get()]
    Q1 = [R.get(4), R.get(4)]
    Q2 = [[R.get(2), R.get(2)], [R.get(2), R.get(2)]]
    K1 = [R.get(4), R.get(4)]
    K2 = [R.get(2), R.get(2)]
    V0 = [R.get(4), R.get(4)]
    PH = 32
    SS, CM, TS, OO, V1 = [96, 160], [112, 128], 144, [176, 192], [208, 212]

    AC, SO = 72, 80
    a(f"""
    {L('g0')}:
    s_add_u32 s{s_o[0]}, s{s_o[0]}, {WS_RS}
    v_lshlrev_b32 v{SO}, 4, v{T[0]}
    """)
    srd(a, sWS, 22, WS_TOP)
    load_tag()
    frag_addr()
    zero(GA, 128)
    attn_ids()
    tile_addr(hR, hL, hS)
    a(f"""
    v_mov_b32 v{eR}, v{hR}
    v_mov_b32 v{eS}, v{hS}
    s_cmp_lt_u32 s{s_cg}, 10
    s_cbranch_scc1 {L('ad_j')}
    v_lshrrev_b32 v{T[1]}, 4, v{vL}
    s_lshl_b32 s{s_t0}, s{s_t1}, 8
    s_add_u32 s{s_t0}, s{s_t0}, {L_NM}
    v_lshl_add_u32 v{eR}, v{T[1]}, 4, s{s_t0}
    s_lshr_b32 s{s_t2}, s{s_wj}, 1
    s_lshl_b32 s{s_t0}, s{s_t2}, 8
    s_add_u32 s{s_t0}, s{s_t0}, {L_CSA}
    v_lshl_add_u32 v{eL}, v{T[0]}, 2, s{s_t0}
    s_sub_u32 s{s_t0}, s{s_cg}, 10
    s_lshl_b32 s{s_t0}, s{s_t0}, 1
    s_add_u32 s{s_t0}, s{s_t0}, s{s_t2}
    s_lshl_b32 s{s_t0}, s{s_t0}, 10
    v_mul_u32_u24 v{T[1]}, 10240, v{T[1]}
    v_lshl_add_u32 v{T[1]}, v{T[0]}, 4, v{T[1]}
    v_add_u32 v{eS}, s{s_t0}, v{T[1]}
    {L('ad_j')}:
    """)
    q_addr(VQ, VQR)
    a(f"""
    v_mov_b32 v{IDX}, 0xdddddddd
    v_lshlrev_b32 v{AK0}, 4, v{vL}
    s_mul_i32 s{s_t0}, s{s_wj}, 3072
    v_add_u32 v{AQ}, s{s_t0}, v{AK0}
    v_add_u32 v{AK0}, {KV}, v{AK0}
    v_add_u32 v{AR0}, s{s_t1}, v{AK0}
    v_mad_u32_u24 v{T[2]}, v{T[1]}, 20, v{T[0]}
    v_lshlrev_b32 v{T[2]}, 4, v{T[2]}
    v_add_u32 v{T[2]}, {KV}, v{T[2]}
    v_cmp_gt_u32 vcc, 20, v{T[0]}
    v_mov_b32 v{T[4]}, {LDS_OOB}
    v_and_b32 v{T[3]}, 27, v{T[0]}
    v_cndmask_b32 v{T[2]}, v{T[4]}, v{T[2]}, vcc
    v_cmp_eq_u32 vcc, 24, v{T[3]}
    v_mov_b32 v{T[4]}, {KV + 640}
    s_mov_b32 s{s_slot}, {2 * SLOT}
    v_cndmask_b32 v{AV0}, v{T[2]}, v{T[4]}, vcc
    v_add_u32 v{AK}, s{s_slot}, v{AK0}
    v_add_u32 v{AR}, s{s_slot}, v{AR0}
    v_add_u32 v{AV}, s{s_slot}, v{AV0}
    """)
    a(f"""
    s_add_u32 s{s_t0}, s{s_t0}, s{s_t1}
    v_lshl_add_u32 v30, v{T[0]}, 4, s{s_t0}
    v_mov_b32 v31, v30
    s_mov_b32 exec_hi, 0
    v_mov_b32 v31, {LDS_OOB}
    s_not_b64 exec, exec
    v_mov_b32 v30, {LDS_OOB}
    s_mov_b64 exec, -1
    """)
    a("v_mov_b32 v84, 0x3f803f80")
    a(f"""
    s_lshl_b32 s{s_o[2]}, s{s_cg}, 1
    s_lshr_b32 s{s_t0}, s{s_wj}, 1
    s_add_u32 s{s_o[2]}, s{s_o[2]}, s{s_t0}
    s_lshl_b32 s{s_fl}, s{s_o[2]}, 4
    s_add_u32 s{s_fl}, s{s_fl}, s{s_rb}
    s_lshl_b32 s{s_fl}, s{s_fl}, 1
    s_and_b32 s{s_t0}, s{s_wj}, 1
    s_add_u32 s{s_fl}, s{s_fl}, s{s_t0}
    s_mov_b32 s{s_c}, 0
    s_mov_b32 s{s_ring}, 0
    s_mov_b32 s{s_wstep}, {STG}
    s_waitcnt lgkmcnt(0)
    s_add_u32 s{s_tag}, s{s_tag}, 1
    s_cmp_ge_u32 s{s_wj}, 2
    s_cbranch_scc1 {L('st_m')}
    v_mov_b32 v{AC}, 0
    v_mov_b32 v{AC + 2}, 0
    v_mov_b32 v{AC + 1}, s{s_tag}
    v_mov_b32 v{AC + 3}, s{s_tag}
    """)
    for q in range(5):
        a(f"s_waitcnt vmcnt({4 - q})")
        for r in range(SD + 4 * q, SD + 4 * q + 4):
            a(f"v_dot2c_f32_bf16 v{AC}, v{r}, v84\nv_dot2c_f32_bf16 v{AC + 2}, v{r}, v{r}")
    a("s_nop 1")
    for sh in (8, 4, 2, 1):
        a(f"""
        s_nop 0
        v_add_f32_dpp v{AC}, v{AC}, v{AC} row_ror:{sh} row_mask:0xf bank_mask:0xf
        v_add_f32_dpp v{AC + 2}, v{AC + 2}, v{AC + 2} row_ror:{sh} row_mask:0xf bank_mask:0xf
        """)
    a(f"""
    v_mul_f32 v{AC}, {f32(-1.0 / D)}, v{AC}
    v_mul_f32 v{AC + 2}, {f32(1.0 / D)}, v{AC + 2}
    v_fma_f32 v{AC + 2}, -v{AC}, v{AC}, v{AC + 2}
    v_max_f32 v{AC + 2}, 0, v{AC + 2}
    v_add_f32 v{AC + 2}, {f32(1e-5)}, v{AC + 2}
    v_rsq_f32 v{AC + 2}, v{AC + 2}
    s_lshl_b32 s{s_t0}, s{s_wj}, 6
    s_add_u32 s{s_t0}, s{s_t0}, {L_RP}
    v_add_u32 v{T[2]}, s{s_t0}, v{SO}
    s_mov_b32 exec_lo, 0x00010001
    s_mov_b32 exec_hi, 0x00010001
    s_cmp_eq_u32 s{s_cg}, 15
    s_cbranch_scc0 {L('st_l')}
    buffer_store_dwordx4 {vr(AC, 4)}, v{SO}, {WSD}, s{s_o[0]} offen sc1
    s_branch {L('st_k')}
    {L('st_l')}:
    ds_write_b128 v{T[2]}, {vr(AC, 4)}
    {L('st_k')}:
    s_mov_b64 exec, -1
    s_waitcnt lgkmcnt(0)
    {L('st_m')}:
    s_cmp_eq_u32 s{s_cg}, 15
    s_cbranch_scc1 {L('tr')}
    """)
    stamp(a, prof, 1)
    a("s_barrier")
    stamp(a, prof, 2)
    a("\n".join(both(LW, 0, 0)))
    a(f"""
    s_cmp_ge_u32 s{s_cg}, 10
    s_waitcnt lgkmcnt(0)
    s_cbranch_scc0 {L('jN')}
    s_cmp_ge_u32 s{s_o[2]}, 27
    s_cbranch_scc1 {L('sV')}
    """)

    def lane_stats(dst, addr):
        for tt in range(4):
            a(f"ds_read2_b32 {vr(dst + 2 * tt, 2)}, v{addr} offset0:{16 * tt} offset1:{128 + 16 * tt}")

    def reg_stats(dst, addr, off):
        for i in range(4):
            a(f"ds_read_b128 {vr(dst + 4 * i, 4)}, v{addr} offset:{off + 64 * i}")

    def centre(cs, nr, tt, prs):
        for r, q in prs:
            a(f"v_pk_fma_f32 {vr(r, 2)}, {vr(cs + q, 2)}, {vr(nr + 2 * tt, 2)}, {vr(r, 2)} op_sel:[0,0,0] op_sel_hi:[1,0,1]")

    E0, E1 = 224, 240
    F0, F1, F2 = 96, 112, 128

    def qk_math(tt, prs):
        centre(E0, E1, tt, prs)
        for r, q in prs:
            a(f"v_pk_mul_f32 {vr(r, 2)}, {vr(r, 2)}, {vr(E1 + 2 * tt, 2)} op_sel:[0,1] op_sel_hi:[1,1]")

    def ffn_math(tt, prs):
        centre(F0, F2, tt, prs)
        for r, q in prs:
            a(f"v_pk_fma_f32 {vr(r, 2)}, {vr(r, 2)}, {vr(F2 + 2 * tt, 2)}, {vr(F1 + q, 2)} op_sel:[0,1,0] op_sel_hi:[1,1,1]")
        for r, q in prs:
            a(f"v_max_f32 v{r}, 0, v{r}\nv_max_f32 v{r + 1}, 0, v{r + 1}")
        for r, q in prs:
            a(f"v_pk_mul_f32 {vr(r, 2)}, {vr(r, 2)}, {vr(r, 2)}")

    joint("jV", True)
    single("sV", LW, GA, True, True, 10)
    CV = 80
    a(f"ds_read2_b32 {vr(CV, 2)}, v{eL} offset0:0 offset1:16\nds_read2_b32 {vr(CV + 2, 2)}, v{eL} offset0:32 offset1:48")
    reg_stats(E0, eR, 0)
    reg_stats(E1, eR, 512)
    a(f"""
    s_and_b32 s{s_t1}, s{s_wj}, 1
    s_lshl_b32 s{s_t0}, s{s_rb}, 1
    s_add_u32 s{s_t0}, s{s_t0}, s{s_t1}
    s_mul_i32 s{s_o[0]}, s{s_t0}, 81920
    s_add_u32 s{s_o[0]}, s{s_o[0]}, {WS_V}
    s_add_u32 s{s_o[1]}, s{s_o[0]}, 40960
    s_waitcnt lgkmcnt(0)
    """)
    a("\n".join(wreads(LF, 0, 0)))
    stamp(a, prof, 3)
    for kt in range(2):
        for ci in range(4):
            ob = 88 + 4 * (ci & 1)
            prs = [(gacc(tt, ci) + i, 4 * tt + i) for tt in (2 * kt, 2 * kt + 1) for i in (0, 2)]
            for r, q in prs:
                a(f"v_pk_fma_f32 {vr(r, 2)}, {vr(E0 + q, 2)}, {vr(CV + (ci & 2), 2)}, {vr(r, 2)} op_sel:[0,{ci & 1},0] op_sel_hi:[1,{ci & 1},1]")
            for r, q in prs:
                a(f"v_pk_mul_f32 {vr(r, 2)}, {vr(r, 2)}, {vr(E1 + q, 2)}")
            for p in range(4):
                a(f"v_cvt_pk_bf16_f32 v{ob + p}, v{prs[p][0]}, v{prs[p][0] + 1}")
            a(put_piece(ob, eS, kt, ci))
    a(f"""
    s_cmp_ge_u32 s{s_o[2]}, 27
    s_cbranch_scc0 {L('a_done')}
    s_barrier
    s_waitcnt vmcnt(0) lgkmcnt(0)
    """)
    set_flag(WS_FA)
    a(f"""
    s_barrier
    {L('a_none')}:
    s_mov_b32 s{s_o[0]}, {WS_TOP}
    s_mov_b32 s{s_o[1]}, {WS_TOP}
    s_branch {L('a_go')}
    """)
    joint("jN", False)
    single("sN", LW, GA, False, True, 10)
    reg_stats(E0, eR, L_CSA - L_NM)
    lane_stats(E1, hL)
    a(f"""
    s_lshl_b32 s{s_o[0]}, s{s_o[2]}, 18
    s_add_u32 s{s_o[1]}, s{s_o[0]}, {4 * CH}
    s_cmp_lt_u32 s{s_cg}, 5
    s_cselect_b32 s{s_t0}, {QSCALE}, 1.0
    s_waitcnt lgkmcnt(0)
    """)
    a("\n".join(wreads(LF, 0, 0)))
    stamp(a, prof, 3)
    for tt in range(4):
        a(f"v_mul_f32 v{E1 + 2 * tt + 1}, s{s_t0}, v{E1 + 2 * tt + 1}")
    pack_tiles(GA, qk_math, lambda cp, tt: 248 + 4 * cp, eS)
    a(f"{L('a_done')}:")
    stamp(a, prof, 4)
    a("s_waitcnt lgkmcnt(0)\ns_barrier")
    reg_stats(F0, hR, L_CSB - L_NM)
    reg_stats(F1, hR, L_BI - L_NM)
    lane_stats(F2, hL)
    if cfg["flag"] == -2:
        a("s_waitcnt vmcnt(0)")
        stamp(a, prof, 14)
    a("s_waitcnt lgkmcnt(3)")
    single("sF", LF, GB, False, False, 13)
    stamp(a, prof, 12)

    def hand_over(tt):
        if tt == max(cfg["flag"], -1):
            a("s_waitcnt vmcnt(0)")
            set_flag(WS_FA)
            stamp(a, prof, 5)
            a("s_barrier")

    hand_over(-1)

    pack_tiles(GB, ffn_math, lambda cp, tt: PH + 16 * cp + 4 * tt, between=hand_over)
    a(f"""
    s_add_u32 s{s_o[0]}, s{s_o[2]}, 20
    s_lshl_b32 s{s_o[0]}, s{s_o[0]}, 18
    s_add_u32 s{s_o[1]}, s{s_o[0]}, {4 * CH}
    {L('a_go')}:
    s_setprio 1
    s_mov_b32 s{s_c}, 0
    """)
    zero(SS[1], 16 + 32 + 8)
    stamp(a, prof, 13)
    a("s_barrier")
    stamp(a, prof, 6)
    for ab in range(2):
        a(f"ds_read_b128 {vr(Q1[ab], 4)}, v{AQ} offset:{L_Q + 1024 * ab}")
        for par in range(2):
            a(f"ds_read_b64 {vr(Q2[ab][par], 2)}, v{30 + par} offset:{L_Q + 2048 + 512 * ab}")

    def rdK1(t):
        return f"ds_read_b128 {vr(K1[t & 1], 4)}, v{AK} offset:{(t & 7) * 1024}"

    def rdK2(p):
        return f"ds_read_b64 {vr(K2[p & 1], 2)}, v{AR} offset:{OFF_R + (p & 3) * 1024}"

    def rdV(j, t):
        return f"ds_read_b128 {vr((V0, V1)[j][t & 1], 4)}, v{AV} offset:{OFF_V + ((t & 7) * 2 + j) * 656}"

    def qk1(dst, ab, t, c):
        return f"v_mfma_f32_32x32x16_bf16 {vr(dst, 16)}, {vr(K1[t & 1], 4)}, {vr(Q1[ab], 4)}, {c}"

    def qk2(dst, ab, t):
        return f"v_mfma_f32_32x32x8_bf16 {vr(dst, 16)}, {vr(K2[(t >> 1) & 1], 2)}, {vr(Q2[ab][t & 1], 2)}, {vr(dst, 16)}"

    def pv(ab, j, t):
        return f"v_smfmac_f32_32x32x32_bf16 {vr(OO[ab], 16)}, {vr((V0, V1)[j][t & 1], 4)}, {vr(SS[ab] + 8 * j, 8)}, v{IDX}"

    def row_max(dst, bufs):
        regs = [b + i for b in bufs for i in range(16)]
        a(f"v_max3_f32 v{dst}, v{regs[0]}, v{regs[1]}, v{regs[2]}")
        rest = regs[3:]
        while len(rest) >= 2:
            a(f"v_max3_f32 v{dst}, v{dst}, v{rest[0]}, v{rest[1]}")
            rest = rest[2:]
        if rest:
            a(f"v_max_f32 v{dst}, v{dst}, v{rest[0]}")

    def set_shift(ab, shift):
        m = MX[ab]
        a(f"""
        v_mov_b32 v{T[2]}, v{m}
        s_nop 1
        v_permlane32_swap_b32 v{m}, v{T[2]}
        v_max_f32 v{m}, v{m}, v{T[2]}
        v_sub_f32 v{CM[ab]}, {f32(-shift) if shift else 0}, v{m}
        v_mov_b32 v{CM[ab] + 1}, v{CM[ab]}
        """)
        for i in range(2, 16, 2):
            a(f"v_mov_b64 {vr(CM[ab] + i, 2)}, {vr(CM[ab], 2)}")

    a("\n".join([rdK1(0), rdK2(0), rdK1(1), rdV(0, 0), rdV(1, 0)]))
    a("s_waitcnt lgkmcnt(0)" if prof else "s_waitcnt lgkmcnt(2)")
    est = {(0, 0): SS[0], (0, 1): CM[0], (1, 0): TS, (1, 1): CM[1]}
    for ab in range(2):
        for t in range(2):
            a(qk1(est[ab, t], ab, t, 0))
            a(put_piece(PH + 4 * (2 * ab + t), hS, (2 * ab + t) >> 2, (2 * ab + t) & 3))
            a(qk2(est[ab, t], ab, t))
    a("s_nop 7")
    row_max(MX[0], [SS[0], CM[0]])
    a(put_piece(PH + 4 * (4), hS, (4) >> 2, (4) & 3))
    set_shift(0, SHIFT)
    a("s_nop 1")
    a(qk1(SS[0], 0, 0, vr(CM[0], 16)))
    a(put_piece(PH + 4 * (5), hS, (5) >> 2, (5) & 3))
    a(qk2(SS[0], 0, 0))
    row_max(MX[1], [TS, CM[1]])
    a(put_piece(PH + 4 * (6), hS, (6) >> 2, (6) & 3))
    set_shift(1, SHIFT)
    a(put_piece(PH + 4 * (7), hS, (7) >> 2, (7) & 3))
    a("s_waitcnt lgkmcnt(0)")

    def slot_events(ab, t):
        o = 1 - ab
        tp = t - 1 if ab == 0 else t
        tn = t if ab == 0 else t + 1
        e = [("i", f"v_exp_f32 v{SS[ab] + i}, v{SS[ab] + i}") for i in range(16)]
        ev = []
        if ab == 0 and t % 8 == 7:
            ev += [("i", f"v_add_u32 v{AV}, s{s_slot}, v{AV0}")]
        ev += e[0:2]
        ev += [("use", ("V1", tp)), ("i", pv(o, 1, tp)), ("wait",)]
        if ab == 1 and t % 8 == 5:
            ev += [("i", "s_waitcnt vmcnt(0)")]
        if ab == 0 and t % 8 == 6:
            ev += [("i", "s_barrier")]
        if ab == 0 and t % 8 == 4:
            ev += [("i", f"s_add_u32 s{s_slot}, s{s_slot}, {SLOT}")]
        if ab == 1 and t % 8 == 4:
            ev += [("i", f"s_cmp_eq_u32 s{s_slot}, {3 * SLOT}")]
        if ab == 1 and t % 8 == 6:
            ev += [("i", f"s_add_u32 s{s_c}, s{s_c}, 1")]
        if ab == 0:
            ev += [("rd", rdV(1, t + 1), ("V1", t + 1))]
        ev += e[2:5]
        if ab == 0 and t % 8 == 6:
            ev += [("i", f"v_add_u32 v{AK}, s{s_slot}, v{AK0}"), ("i", f"v_add_u32 v{AR}, s{s_slot}, v{AR0}")]
        ev += [("use", ("K1", tn)), ("i", qk1(SS[o], o, tn, vr(CM[o], 16)))]
        if ab == 0:
            ev += [("rd", rdK1(t + 2), ("K1", t + 2))]
        else:
            ev += [("rd", rdV(0, t + 1), ("V0", t + 1))]
        ev += e[5:8]
        ev += [("use", ("K2", tn >> 1)), ("i", qk2(SS[o], o, tn))]
        ev += e[8:12]
        ev += [("use", ("V0", t)), ("i", pv(ab, 0, t))]
        if ab == 1 and t % 8 == 4:
            ev += [("i", f"s_cselect_b32 s{s_slot}, 0, s{s_slot}")]
        if ab == 1 and t % 8 == 7:
            ev += [("i", f"s_cmp_lt_u32 s{s_c}, 8")]
        if ab == 1 and t % 2 == 0:
            ev += [("rd", rdK2(t // 2 + 1), ("K2", t // 2 + 1))]
        ev += e[12:16]
        return ev

    evs = []
    for t in range(24):
        for ab in range(2):
            evs += [(t, x) for x in slot_events(ab, t)]
    issue_idx = {}
    n = 0
    for t, x in evs:
        if x[0] == "rd":
            issue_idx[x[2]] = n
            n += 1
    a(f".p2align 3\n{L('aloop')}:")
    n = 0
    for k, (t, x) in enumerate(evs):
        emit = 8 <= t < 16
        if x[0] == "rd":
            n += 1
            if emit:
                a(x[1])
        elif x[0] == "i":
            if emit:
                a(x[1])
        elif x[0] == "wait" and emit:
            need = -1
            for t2, y in evs[k + 1:]:
                if y[0] == "wait":
                    break
                if y[0] == "use":
                    assert issue_idx[y[1]] < n, (t, y)
                    need = max(need, issue_idx[y[1]])
            a(f"s_waitcnt lgkmcnt({n - 1 - need})")
    if cfg.get("trace"):
        stamp(a, prof, 23)
        a("s_waitcnt lgkmcnt(0)")
    a(f"s_cbranch_scc1 {L('aloop')}")
    a("s_nop 1")
    a(pv(1, 1, 7))
    stamp(a, prof, 7)

    a("s_waitcnt lgkmcnt(0)\ns_barrier\ns_nop 7\ns_nop 2")
    a(f"s_mov_b32 s{s_t0}, {f32(2.0 ** 126)}\ns_mov_b32 s{s_t1}, {f32(2.0 ** -95)}")
    for ab in range(2):
        o = OO[ab]
        a(f"v_max3_f32 v{T[2 + ab]}, |v{o}|, |v{o + 1}|, |v{o + 2}|")
        for i in (3, 5):
            a(f"v_max3_f32 v{T[2 + ab]}, v{T[2 + ab]}, |v{o + i}|, |v{o + i + 1}|")
        a(f"v_max_f32 v{T[2 + ab]}, v{T[2 + ab]}, |v{o + 7}|")
        a(f"v_add_f32 v{T[4 + ab]}, |v{o + 8}|, |v{o + 9}|")
        for i in list(range(8)) + [10, 11, 12]:
            a(f"v_add_f32 v{T[4 + ab]}, v{T[4 + ab]}, |v{o + i}|")
    a(f"""
    v_min_f32 v{T[2]}, v{T[2]}, v{T[3]}
    v_add_f32 v{T[4]}, v{T[4]}, v{T[5]}
    v_cmp_le_f32 vcc, s{s_t1}, v{T[2]}
    v_cmp_gt_f32 s[{s_t2}:{s_t2 + 1}], s{s_t0}, v{T[4]}
    s_nop 1
    s_and_b64 vcc, vcc, s[{s_t2}:{s_t2 + 1}]
    s_cmp_eq_u64 vcc, exec
    """)
    a(f"s_branch {L('slow')}" if force_fallback else f"s_cbranch_scc0 {L('slow')}")

    a(f"{L('norm')}:")
    a(f"s_add_u32 s{s_t0}, s{s_cm}, {C_O * CH}\ns_add_u32 s{s_t1}, s{s_cr}, {C_O * CH}")
    for ab in range(2):
        o = OO[ab]
        a(f"v_rcp_f32 v{o + 12}, v{o + 12}\ns_nop 0")
        for p in range(6):
            a(f"v_pk_mul_f32 {vr(o + 2 * p, 2)}, {vr(o + 2 * p, 2)}, {vr(o + 12, 2)} op_sel:[0,0] op_sel_hi:[1,0]")
        for p in range(6):
            a(f"v_cvt_pk_bf16_f32 v{SS[ab] + p}, v{o + 2 * p}, v{o + 2 * p + 1}")
        for p in (1, 3, 5):
            a(f"v_min_u32 v{SS[ab] + p}, -2, v{SS[ab] + p}")
        a(f"buffer_store_dwordx4 {vr(SS[ab], 4)}, v{VQ}, {WSD}, s{s_t0} offen offset:{512 * ab} sc1")
    a("s_mov_b32 exec_hi, 0")
    for ab in range(2):
        a(f"buffer_store_dwordx2 {vr(SS[ab] + 4, 2)}, v{VQR}, {WSD}, s{s_t1} offen offset:{512 * ab} sc1")
    a("s_mov_b64 exec, -1\ns_barrier")
    stamp(a, prof, 8)

    a(f"s_branch {L('dump')}" if prof else "s_endpgm")

    a(f"{L('slow')}:")
    GR, GV = AR, AV
    a(f"v_and_b32 v{T[0]}, 31, v{vL}\nv_lshrrev_b32 v{T[1]}, 5, v{vL}")
    key_perm(T[2], T[0], T[3], T[4])
    a(f"""
    s_lshl_b32 s{s_t0}, s{s_par}, 3
    s_add_u32 s{s_t0}, s{s_t0}, s{s_cr}
    v_lshl_add_u32 v{GR}, v{T[2]}, 4, s{s_t0}
    v_lshl_add_u32 v{vK}, v{T[2]}, 4, s{s_cm}
    v_lshl_add_u32 v{vK}, v{T[1]}, 15, v{vK}
    """)
    v_feature(T[2], T[0], T[3], T[4])
    a(f"""
    s_mul_i32 s{s_t0}, s{s_head}, 320
    v_mul_u32_u24 v{T[4]}, 10240, v{T[1]}
    v_lshl_add_u32 v{T[2]}, v{T[2]}, 4, v{T[4]}
    v_add_u32 v{GV}, s{s_t0}, v{T[2]}
    v_mov_b32 v{MX[0]}, 0xff800000
    v_mov_b32 v{MX[1]}, 0xff800000
    s_mov_b32 s{s_ko}, {C_K * CH}
    {L('slow1')}:
    buffer_load_dwordx4 {vr(K1[0], 4)}, v{vK}, {WSD}, s{s_ko} offen sc1
    buffer_load_dwordx2 {vr(K2[0], 2)}, v{GR}, {WSD}, s{s_ko} offen sc1
    s_add_u32 s{s_ko}, s{s_ko}, 512
    s_waitcnt vmcnt(0)
    """)
    for ab in range(2):
        a(qk1(SS[ab], ab, 0, 0))
        a(qk2(SS[ab], ab, 0))
    a("s_nop 7\ns_nop 3")
    for ab in range(2):
        for i in range(0, 16, 2):
            a(f"v_max3_f32 v{MX[ab]}, v{MX[ab]}, v{SS[ab] + i}, v{SS[ab] + i + 1}")
    a(f"s_cmp_lt_u32 s{s_ko}, {(C_K + 1) * CH}\ns_cbranch_scc1 {L('slow1')}")
    for ab in range(2):
        set_shift(ab, 0)
    zero(OO[0], 32)
    for r in range(4):
        a(f"v_mov_b32 v{V0[0] + r}, 0x3f803f80\nv_mov_b32 v{V1[0] + r}, 0x3f803f80")
    a(f"""
    s_mov_b32 s{s_ko}, {C_K * CH}
    s_mov_b32 s{s_vo}, {WS_V}
    {L('slow2')}:
    buffer_load_dwordx4 {vr(K1[0], 4)}, v{vK}, {WSD}, s{s_ko} offen sc1
    buffer_load_dwordx2 {vr(K2[0], 2)}, v{GR}, {WSD}, s{s_ko} offen sc1
    s_mov_b32 exec_lo, 0xfffff
    s_mov_b32 exec_hi, 0xfffff
    buffer_load_dwordx4 {vr(V0[0], 4)}, v{GV}, {WSD}, s{s_vo} offen sc1
    s_add_u32 s{s_vo}, s{s_vo}, 20480
    buffer_load_dwordx4 {vr(V1[0], 4)}, v{GV}, {WSD}, s{s_vo} offen sc1
    s_mov_b64 exec, -1
    s_add_u32 s{s_vo}, s{s_vo}, 20480
    s_add_u32 s{s_ko}, s{s_ko}, 512
    s_waitcnt vmcnt(0)
    """)
    for ab in range(2):
        a(qk1(SS[ab], ab, 0, vr(CM[ab], 16)))
        a(qk2(SS[ab], ab, 0))
    a("s_nop 7\ns_nop 3")
    for ab in range(2):
        for i in range(16):
            a(f"v_exp_f32 v{SS[ab] + i}, v{SS[ab] + i}")
    a("s_nop 1")
    for ab in range(2):
        a(pv(ab, 0, 0))
        a(pv(ab, 1, 0))
    a(f"""
    s_cmp_lt_u32 s{s_ko}, {(C_K + 1) * CH}
    s_cbranch_scc1 {L('slow2')}
    s_nop 7
    s_nop 3
    s_branch {L('norm')}
    """)

    a(f"{L('tr')}:")
    relayout()
    a(f"""
    s_cmp_eq_u32 s3, 1
    s_waitcnt vmcnt(0)
    s_barrier
    s_cbranch_scc1 {L('b_last')}
    """)
    stamp(a, prof, 4)
    a(f"s_branch {L('a_none')}")

    g0_lines, a.lines = a.lines, []
    MK, G = 84, 96
    VX, VW, VG = [11, 12, 13, 14], [15, 16, 17, 18], [19, 20, 21, 22]
    gR, gL, gA, gB = 24, 25, 26, 27
    mQ, mQR, mQD, fB, FK, FO, one, pH, pO = range(247, 256)

    def w_addr(VF, stride):
        a(f"""
        v_lshrrev_b32 v{T[0]}, 4, v{vL}
        v_lshlrev_b32 v{T[1]}, 1, v{T[0]}
        v_xor_b32 v{T[1]}, v{T[1]}, v{vL}
        v_and_b32 v{T[1]}, 15, v{T[1]}
        s_lshl_b32 s{s_t1}, s{s_cg}, 8
        s_mul_i32 s{s_t0}, s{s_wj}, {16 * stride}
        s_add_u32 s{s_t1}, s{s_t1}, s{s_t0}
        v_mul_u32_u24 v{T[0]}, {stride}, v{T[0]}
        v_add_u32 v{T[0]}, s{s_t1}, v{T[0]}
        v_lshl_add_u32 v{VF[0]}, v{T[1]}, 4, v{T[0]}
        v_xor_b32 v{T[1]}, 8, v{T[1]}
        v_lshl_add_u32 v{VF[2]}, v{T[1]}, 4, v{T[0]}
        v_add_u32 v{VF[1]}, {4 * stride - 1024}, v{VF[0]}
        v_add_u32 v{VF[3]}, {3 * (4 * stride - 1024)}, v{VF[2]}
        v_add_u32 v{VF[2]}, {2 * (4 * stride - 1024)}, v{VF[2]}
        """)

    def later_addr():
        attn_ids()
        kv_addr(0)
        ones_addr(one, 0, 3)
        a(f"v_and_b32 v{T[0]}, 1, v{vL}")
        head_unit(T[1], T[0])
        a(f"""
        v_bfe_u32 v{T[0]}, v{vL}, 1, 2
        v_min_u32 v{T[0]}, 2, v{T[0]}
        v_mad_u32_u24 v{T[1]}, v{T[0]}, 10, v{T[1]}
        s_lshl_b32 s{s_t0}, s{s_qb}, 2
        s_add_u32 s{s_t0}, s{s_t0}, s{s_wj}
        """)
        flag_of_tile(FO, f"s{s_t0}", T[1])
        a(f"v_and_b32 v{T[0]}, 1, v{vL}")
        head_unit(T[1], T[0])
        a(f"""
        v_bfe_u32 v{T[0]}, v{vL}, 1, 1
        v_mad_u32_u24 v{T[1]}, v{T[0]}, 10, v{T[1]}
        v_add_u32 v{T[1]}, 10, v{T[1]}
        v_and_b32 v{T[0]}, 28, v{vL}
        v_add_u32 v{T[0]}, s{s_wj}, v{T[0]}
        """)
        flag_of_tile(FK, f"v{T[0]}", T[1])
        q_addr(mQ, mQR)
        a(f"""
        v_lshl_add_u32 v{mQD}, v{vL}, 4, s{s_t0}
        s_lshl_b32 s{s_t0}, s{s_head}, 2
        s_add_u32 s{s_t0}, s{s_t0}, s{s_wj}
        v_and_b32 v{T[2]}, 15, v{vL}
        v_lshl_add_u32 v{T[2]}, s{s_t0}, 4, v{T[2]}
        v_lshrrev_b32 v{T[3]}, 4, v{vL}
        v_lshlrev_b32 v{pH}, 15, v{T[3]}
        v_lshl_add_u32 v{pH}, v{T[2]}, 4, v{pH}
        v_mul_u32_u24 v{pO}, 1280, v{T[2]}
        """)
        a(f"""
        s_bfe_u32 s{s_t0}, s{s_head}, 0x30001
        s_lshl_b32 s{s_t0}, s{s_t0}, 3
        s_lshr_b32 s{s_t1}, s{s_head}, 4
        s_add_u32 s{s_t0}, s{s_t0}, s{s_t1}
        v_and_b32 v{T[3]}, 3, v{vL}
        v_bfe_u32 v{T[4]}, v{vL}, 2, 2
        v_lshl_add_u32 v{T[3]}, v{T[3]}, 5, v{T[4]}
        v_lshl_add_u32 v{fB}, v{T[3]}, 1, s{s_t0}
        v_and_b32 v{T[2]}, 7, v{vL}
        v_bfe_u32 v{T[4]}, v{vL}, 3, 1
        v_lshl_add_u32 v{T[2]}, v{T[2]}, 3, v{T[4]}
        s_lshr_b32 s{s_t0}, s{s_head}, 2
        s_lshl_b32 s{s_t0}, s{s_t0}, 5
        s_mov_b32 exec_lo, 0xffff0000
        v_add_u32 v{fB}, 198, v{T[2]}
        s_mov_b32 exec_lo, 0
        v_add_u32 v{fB}, s{s_t0}, v{T[0]}
        s_mov_b32 exec_lo, -1
        v_lshlrev_b32 v{fB}, 7, v{fB}
        """)

    def boundary(wait=None):
        if wait is not None:
            a(f"s_waitcnt vmcnt({wait})")
        if cfg.get("trace", 0) > 1:
            stamp(a, prof, 21)
        a("s_barrier")

    def ask_tag():
        srd(a, sWS, 22, WS_TOP)
        load_tag()

    def take_tag():
        a(f"s_waitcnt lgkmcnt(0)\ns_add_u32 s{s_tag}, s{s_tag}, 1")

    def split(ops, n):
        k = -(-len(ops) // n)
        return [ops[i * k:(i + 1) * k] for i in range(n)]

    def feed(c, which="xwf", mix=()):
        mix = list(mix)
        per = -(-len(mix) // max(4 * len(which), 1))
        for key, part, va, sd, step in (("x", LX, VX, sX, 128), ("w", LW, VW, sW, 64 * 3840), ("f", LF, VG, sB, 64 * 3456)):
            if key in which:
                half = {"x": s_xo, "w": s_wstep, "f": s_ho}[key]
                a(f"s_add_u32 m0, s{s_ring}, {(c % 3) * STG + part}")
                a(f"s_add_u32 s{s_wo}, s{half}, {c * step}" if c < 5 else f"s_sub_u32 s{s_wo}, {c * step}, s{half}")
                for i in range(4):
                    a(f"buffer_load_dwordx4 v{va[i]}, s[{sd}:{sd + 3}], s{s_wo} offen offset:{1024 * i} lds")
                    a("\n".join(mix[:per]))
                    mix = mix[per:]

    def only(name, cond, fn):
        a(f"{cond}\ns_cbranch_scc0 {L(name)}")
        fn()
        a(f"{L(name)}:")

    feeding = f"s_cmp_lt_u32 s{s_cg}, 15"
    a(f"""
    s_lshl_b32 s{s_ring}, s{s_wj}, 12
    s_mul_i32 s{s_xo}, s{s_t3}, {5 * 128}
    s_mul_i32 s{s_wstep}, s{s_t3}, {5 * 64 * 3840}
    s_mul_i32 s{s_ho}, s{s_t3}, {5 * 64 * 3456}
    v_lshrrev_b32 v{T[2]}, 4, v{vL}
    v_xor_b32 v{T[2]}, v{T[2]}, v{T[1]}
    s_lshl_b32 s{s_t1}, s{s_rb}, 2
    s_add_u32 s{s_t1}, s{s_t1}, s{s_wj}
    s_mul_i32 s{s_t1}, s{s_t1}, {32 * 1280}
    v_mul_u32_u24 v{T[3]}, 1280, v{T[0]}
    v_add_u32 v{T[3]}, s{s_t1}, v{T[3]}
    v_lshl_add_u32 v{VX[0]}, v{T[2]}, 4, v{T[3]}
    v_xor_b32 v{T[2]}, 4, v{T[2]}
    v_lshl_add_u32 v{VX[1]}, v{T[2]}, 4, v{T[3]}
    v_add_u32 v{VX[2]}, {2 * (10240 - 1024)}, v{VX[0]}
    v_add_u32 v{VX[3]}, {3 * (10240 - 1024)}, v{VX[1]}
    v_add_u32 v{VX[1]}, {10240 - 1024}, v{VX[1]}
    v_and_b32 v{SO}, 48, v{vL}
    v_lshl_add_u32 v{SO}, v{T[1]}, 6, v{SO}
    """)
    srd(a, sX, 4, S * D * 2)

    def touch():
        a(f"""
        s_getpc_b64 s[{sA}:{sA + 1}]
        {L('pc')}:
        s_sub_u32 s{sA}, s{sA}, {L('pc')}-{label}
        s_subb_u32 s{sA + 1}, s{sA + 1}, 0
        s_mov_b32 s{sA + 2}, {L('end')}-{label}
        s_lshr_b32 s{s_t0}, s2, 3
        s_lshl_b32 s{s_t0}, s{s_t0}, 10
        v_lshlrev_b32 v{T[2]}, 7, v{vL}
        s_mov_b64 exec, 0xff
        buffer_load_dword v226, v{T[2]}, s[{sA}:{sA + 3}], s{s_t0} offen
        s_mov_b64 exec, -1
        """)

    def touch_x():
        a(f"""
        s_lshl_b32 s{s_t0}, s{s_rb}, 2
        s_add_u32 s{s_t0}, s{s_t0}, s{s_ocg}
        s_mul_i32 s{s_t0}, s{s_t0}, {32 * 1280}
        s_add_u32 s{s_t0}, s{s_t0}, s{s_xo}
        v_lshrrev_b32 v{T[2]}, 1, v{vL}
        v_mul_u32_u24 v{T[2]}, 1280, v{T[2]}
        v_and_b32 v{T[3]}, 1, v{vL}
        v_lshl_add_u32 v{T[2]}, v{T[3]}, 7, v{T[2]}
        buffer_load_dword v226, v{T[2]}, s[{sX}:{sX + 3}], s{s_t0} offen
        """)

    if cfg["touch"] & 1:
        only("tc", f"s_cmp_eq_u32 s{s_wj}, 0", touch)
    if cfg["touch"] & 2:
        only("tx", f"s_cmp_eq_u32 s{s_wj}, 1", touch_x)
    srd(a, sA, 14, F * 2)
    a(f"""
    s_lshl_b32 s{s_t2}, s{s_cg}, 8
    v_lshlrev_b32 v{T[2]}, 2, v{vL}
    buffer_load_dword v28, v{T[2]}, s[{sA}:{sA + 3}], s{s_t2} offen
    """)
    ask_tag()
    w_addr(VW, 3840)
    w_addr(VG, 3456)
    srd(a, sW, 6, D * 3 * D * 2)
    srd(a, sB, 12, D * F * 2)
    a(f"""
    s_cmp_lt_u32 s{s_cg}, 14
    s_cselect_b32 s{sB + 2}, s{sB + 2}, 0
    s_lshl_b32 s{s_o[1]}, s{s_o[1]}, 9
    s_add_u32 s{s_o[0]}, s{s_o[0]}, s{s_o[1]}
    s_add_u32 s{s_o[0]}, s{s_o[0]}, {WS_CP}
    s_and_b32 s{s_t1}, s{s_wj}, 1
    v_lshl_add_u32 v{gL}, s{s_t1}, 6, v{vL}
    s_lshl_b32 s{s_t3}, s{s_rb}, 11
    v_lshl_add_u32 v{gR}, v{gL}, 4, s{s_t3}
    s_lshl_b32 s{s_t2}, s{s_cg}, 6
    s_mul_i32 s{s_t1}, s{s_t1}, 960
    s_add_u32 s{s_t1}, s{s_t1}, s{s_t2}
    v_add_u32 v{gA}, s{s_t1}, v{vL}
    v_min_u32 v{gA}, 1823, v{gA}
    v_lshlrev_b32 v{gA}, 4, v{gA}
    s_mov_b32 s{s_spin}, {SPIN}
    v_lshrrev_b32 v23, 1, v{SO}
    v_add_u32 v23, {L_CP}, v23
    """)
    if cfg["early"]:
        later_addr()
    take_tag()
    stamp(a, prof, 44)

    def sums():
        for r in range(20):
            c = AC + 2 * (r & 3)
            if r < 4:
                a(f"v_lshlrev_b32 v{c}, 16, v{SD + r}\nv_and_b32 v{c + 1}, 0xffff0000, v{SD + r}")
            else:
                lo, hi = T[2 + 2 * (r & 1)], T[3 + 2 * (r & 1)]
                a(f"v_lshlrev_b32 v{lo}, 16, v{SD + r}\nv_and_b32 v{hi}, 0xffff0000, v{SD + r}\n"
                  f"v_add_f32 v{c}, v{c}, v{lo}\nv_add_f32 v{c + 1}, v{c + 1}, v{hi}")
        a(f"s_lshl_b32 s{s_t0}, s{s_wj}, 8\nv_add_u32 v{T[2]}, s{s_t0}, v23")
        for i in range(4):
            a(f"v_permlane32_swap_b32 v{AC + i}, v{AC + 4 + i}")
        for i in range(4):
            a(f"v_add_f32 v{AC + i}, v{AC + i}, v{AC + 4 + i}")
        a("s_nop 1")
        for i in range(2):
            a(f"v_permlane16_swap_b32 v{AC + i}, v{AC + 2 + i}")
        a(f"v_add_f32 v{AC}, v{AC}, v{AC + 2}\nv_add_f32 v{AC + 1}, v{AC + 1}, v{AC + 3}\ns_nop 1")
        for r in (AC, AC + 1):
            a(f"v_add_f32_dpp v{r}, v{r}, v{r} row_ror:8 row_mask:0xf bank_mask:0xf")
        a(f"ds_write_b64 v{T[2]}, {vr(AC, 2)}")

    def publish():
        for i in range(4):
            a(f"ds_read_b64 {vr(AC + 2 * i, 2)}, v23 offset:{256 * i}")
        a(f"""
        s_waitcnt lgkmcnt(0)
        v_add_f32 v{AC}, v{AC}, v{AC + 2}
        v_add_f32 v{AC + 2}, v{AC + 1}, v{AC + 3}
        v_add_f32 v{AC + 4}, v{AC + 4}, v{AC + 6}
        v_add_f32 v{AC + 5}, v{AC + 5}, v{AC + 7}
        v_add_f32 v{AC}, v{AC}, v{AC + 4}
        v_add_f32 v{AC + 2}, v{AC + 2}, v{AC + 5}
        v_mov_b32 v{AC + 1}, s{s_tag}
        v_mov_b32 v{AC + 3}, s{s_tag}
        s_mov_b32 exec_lo, 0x00ff00ff
        s_mov_b32 exec_hi, 0x00ff00ff
        buffer_store_dwordx4 {vr(AC, 4)}, v{SO}, {WSD}, s{s_o[0]} offen sc1
        s_mov_b64 exec, -1
        """)

    def publish_rows():
        a(f"""
        s_and_b32 s{s_t0}, s2, 1
        s_lshl_b32 s{s_t0}, s{s_t0}, 8
        s_and_b32 s{s_t1}, s2, 0xfe
        s_add_u32 s{s_t0}, s{s_t0}, s{s_t1}
        s_lshl_b32 s{s_t0}, s{s_t0}, 6
        s_add_u32 s{s_t0}, s{s_t0}, {WS_RS}
        v_lshlrev_b32 v{T[2]}, 4, v{vL}
        v_add_u32 v{T[3]}, {L_RP}, v{T[2]}
        s_mov_b64 exec, 0xff
        ds_read_b128 {vr(AC, 4)}, v{T[3]}
        s_waitcnt lgkmcnt(0)
        buffer_store_dwordx4 {vr(AC, 4)}, v{T[2]}, {WSD}, s{s_t0} offen sc1
        s_mov_b64 exec, -1
        """)

    def gather_loads():
        a(f"s_mov_b32 s{s_slot}, {WS_RS}\nbuffer_load_dwordx4 {vr(G + 16, 4)}, v{gR}, {WSD}, s{s_slot} offen sc1")
        a(f"s_mov_b32 s{s_slot}, {WS_CP}")
        for p in range(4):
            a(f"buffer_load_dwordx4 {vr(G + 4 * p, 4)}, v{gA}, {WSD}, s{s_slot} offen sc1")
            a(f"s_add_u32 s{s_slot}, s{s_slot}, {CP_ROW}")

    def gather_put():
        a(f"s_branch {L('ga_chk')}\n{L('ga')}:")
        gather_loads()
        a(f"s_sub_u32 s{s_spin}, s{s_spin}, 1\ns_waitcnt vmcnt(0)\n{L('ga_chk')}:")
        a(f"v_min_u32 v{T[3]}, v{G + 1}, v{G + 3}\nv_max_u32 v{T[4]}, v{G + 1}, v{G + 3}")
        for p in range(1, 5):
            b = G + 4 * p
            a(f"v_min3_u32 v{T[3]}, v{T[3]}, v{b + 1}, v{b + 3}\nv_max3_u32 v{T[4]}, v{T[4]}, v{b + 1}, v{b + 3}")
        retry("ga")
        a(f"v_add_f32 v{G + 1}, v{G + 2}, v{G + 6}\nv_add_f32 v{G}, v{G}, v{G + 4}")
        for p in range(2, 4):
            b = G + 4 * p
            a(f"v_add_f32 v{G}, v{G}, v{b}\nv_add_f32 v{G + 1}, v{G + 1}, v{b + 2}")
        a(f"""
        s_mov_b32 s{s_t0}, {L_NM}
        v_lshlrev_b32 v{G + 2}, 16, v28
        v_and_b32 v{G + 3}, 0xffff0000, v28
        v_lshl_add_u32 v{T[3]}, v{gL}, 2, s{s_t0}
        v_lshl_add_u32 v{T[4]}, v{gL}, 3, s{s_t0}
        v_lshl_add_u32 v{T[5]}, v{vL}, 3, s{s_t0}
        ds_write2_b32 v{T[3]}, v{G + 16}, v{G + 18} offset0:0 offset1:128
        ds_write_b64 v{T[4]}, {vr(G, 2)} offset:{L_CSA - L_NM}
        ds_write_b64 v{T[5]}, {vr(G + 2, 2)} offset:{L_BI - L_NM}
        s_waitcnt lgkmcnt(0)
        """)

    def mark_unwritten():
        a(f"""
        s_add_u32 s{s_ko}, s{s_cm}, {C_O * CH}
        s_add_u32 s{s_vo}, s{s_cr}, {C_O * CH}
        v_mov_b64 {vr(MK, 2)}, -1
        v_mov_b64 {vr(MK + 2, 2)}, -1
        buffer_store_dwordx4 {vr(MK, 4)}, v{mQ}, {WSD}, s{s_ko} offen sc1
        buffer_store_dwordx4 {vr(MK, 4)}, v{mQ}, {WSD}, s{s_ko} offen offset:512 sc1
        s_mov_b32 exec_hi, 0
        buffer_store_dwordx2 {vr(MK, 2)}, v{mQR}, {WSD}, s{s_vo} offen sc1
        buffer_store_dwordx2 {vr(MK, 2)}, v{mQR}, {WSD}, s{s_vo} offen offset:512 sc1
        s_mov_b32 exec_hi, -1
        """)

    a(f"{feeding}\ns_cbranch_scc1 {L('g1_on')}")
    if not cfg["early"]:
        later_addr()
    mark_unwritten()
    a(f"s_branch {L('tr')}\n{L('g1_on')}:")
    feed(0)
    stamp(a, prof, 43)
    pre = "xwf"[:cfg["pre"]]
    feed(1, pre)
    boundary(4 * len(pre))
    a(f"s_setprio {cfg['fprio']}")
    sm = capture(sums)
    k = len(sm) * (3 - len(pre)) // 3
    feed(1, "xwf"[len(pre):], sm[:k])
    feed(2, pre, sm[k:])
    only("pr", f"s_cmp_eq_u32 s{s_wj}, 2", publish_rows)
    a("s_waitcnt lgkmcnt(0)")
    late = [[]] + (split(capture(later_addr), 4) if not cfg["early"] else [[]] * 4)
    gath = f"s_cmp_lt_u32 s{s_wj}, 2"
    for c in range(10):
        if c - cfg["gat"] in (1, 2):
            a(f"{gath}\ns_cbranch_scc1 {L('bw' + str(c))}\ns_waitcnt vmcnt(12)\n{L('bw' + str(c))}:")
            boundary(17)
            assert c <= 5
        else:
            boundary({0: 4 * len(pre), 6: 8, 7: 8, 8: 4, 9: None}.get(c, 12))
        if c == 0:
            feed(2, "xwf"[len(pre):])
        if c < 5:
            feed(c + 3, mix=late[c])
        elif c < 7:
            feed(c + 3, "xw")
        elif c < 9:
            feed(c + 1, "f")
        if c == 0:
            only("pb", f"s_cmp_eq_u32 s{s_wj}, s{s_hook}", publish)
        if c == cfg["mk"]:
            mark_unwritten()
        if c == cfg["gat"]:
            only("gf", gath, gather_loads)
        if c == cfg["gat"] + 3:
            only("gp", gath, gather_put)
    boundary(4)
    boundary()

    def first_fetch():
        a(f"""
        s_mul_i32 s{s_t0}, s{s_wj}, 3072
        s_add_u32 m0, s{s_t0}, {L_Q}
        s_nop 0
        buffer_load_dwordx4 v{mQ}, {WSD}, s{s_cm} offen sc1 lds
        s_add_u32 m0, s{s_t0}, {L_Q + 512}
        s_nop 0
        buffer_load_dwordx4 v{mQ}, {WSD}, s{s_cm} offen offset:512 sc1 lds
        s_add_u32 m0, s{s_t0}, {L_Q + 2048}
        s_nop 0
        buffer_load_dwordx4 v{mQD}, {WSD}, s{s_cr} offen sc1 lds
        """)
        kv_dma(0)

    a(f"{L('b_last')}:\ns_setprio 2")
    stamp(a, prof, 40)
    ones_write(one, 20)
    wait_flags("wa", WS_FA, [FO, FK])
    stamp(a, prof, 41)
    if prof:
        a(f"s_sub_u32 s{s_t0}, {SPIN}, s{s_spin}\ns_add_u32 s96, s{s_t0}, 100")
    first_fetch()
    kv_dma(1)
    stamp(a, prof, 4)
    a("s_waitcnt vmcnt(7) lgkmcnt(0)")
    stamp(a, prof, 3)
    a("s_barrier")

    vH, vW, vO, vB, vLn = [11, 12, 13, 14], [15, 16], [17, 18], [T[0], T[1]], 19
    ACC = 20
    LB = [100 + 36 * i for i in range(3)]
    RX, OF, WR, XR, BR = 40, 100, 180, 220, 230
    sH, sT = sW, sA
    a(f"""
    v_mov_b32 v{vH[0]}, v{pH}
    v_xor_b32 v{vH[1]}, 256, v{pH}
    v_xor_b32 v{vH[2]}, 512, v{pH}
    v_xor_b32 v{vH[3]}, 768, v{pH}
    v_lshlrev_b32 v{vLn}, 4, v{vL}
    s_mul_i32 s{s_t0}, s{s_qb}, 5120
    v_add_u32 v{vW[0]}, s{s_t0}, v{vLn}
    v_add_u32 v{vW[1]}, 4096, v{vW[0]}
    s_mul_i32 s{s_t0}, s{s_qb}, 160
    v_lshrrev_b32 v{T[2]}, 4, v{vL}
    v_lshl_add_u32 v{vB[0]}, v{T[2]}, 4, s{s_t0}
    v_lshl_add_u32 v{vB[1]}, v{T[2]}, 3, s{s_t0}
    v_add_u32 v{vO[0]}, v{pO}, v{vB[0]}
    v_add_u32 v{vO[1]}, v{pO}, v{vB[1]}
    s_add_u32 s{sH}, s22, {C_H * CH}
    s_addc_u32 s{sH + 1}, s23, 0
    s_mov_b32 s{sH + 2}, {216 * CH}
    s_mov_b32 s{sH + 3}, 0x00020000
    s_add_u32 s{sT}, s22, {WS_WT}
    s_addc_u32 s{sT + 1}, s23, 0
    s_mov_b32 s{sT + 2}, {54 * KS_ROW}
    s_mov_b32 s{sT + 3}, 0x00020000
    s_lshl_b32 s{s_ho}, s{s_wj}, 17
    s_mul_i32 s{s_wo}, s{s_wj}, {KS_ROW}
    s_add_u32 s{s_xo}, s{s_wo}, {WS_WT + 54 * KS_ROW}
    s_mul_i32 s{s_ring}, s{s_wj}, 5120
    s_waitcnt vmcnt(0) lgkmcnt(0)
    s_barrier
    """)
    stamp(a, prof, 5)
    a(f"s_mov_b32 s{s_fl}, s2\ns_cmp_lg_u32 s{s_wj}, 0\ns_cbranch_scc1 {L('fb_set')}")
    set_flag(WS_FB)
    a(f"{L('fb_set')}:")
    kv_dma(2)

    def w_frag(c):
        return (vW[0], 1024 * c) if c < 4 else (vW[1], 0)

    def ffn_loads(b):
        for t in range(4):
            a(f"buffer_load_dwordx4 {vr(LB[b] + 4 * t, 4)}, v{vH[t]}, s[{sH}:{sH + 3}], s{s_ho} offen sc1")
        for c in range(5):
            va, off = w_frag(c)
            a(f"buffer_load_dwordx4 {vr(LB[b] + 16 + 4 * c, 4)}, v{va}, s[{sT}:{sT + 3}], s{s_wo} offen offset:{off} sc1")
        a(f"s_add_u32 s{s_ho}, s{s_ho}, {16 * CH}\ns_add_u32 s{s_wo}, s{s_wo}, {4 * KS_ROW}")

    def wo_stage(i):
        for c in range(5):
            va, off = w_frag(c)
            if c in (0, 4):
                a(f"s_add_u32 m0, s{s_ring}, {L_WO + i * 20480 + 1024 * c}\ns_nop 0")
            a(f"buffer_load_dwordx4 v{va}, {WSD}, s{s_xo} offen offset:{off} sc1 lds")
        a(f"s_add_u32 s{s_xo}, s{s_xo}, {4 * KS_ROW}")

    queue = []

    def need(tag):
        if tag not in queue:
            return
        last = max(i for i, q in enumerate(queue) if q == tag)
        a(f"s_waitcnt vmcnt({len(queue) - 1 - last})")
        del queue[:last + 1]

    def send(r, slot):
        a(f"s_add_u32 s{s_t0}, s{s_ring}, {KV + slot * SLOT}\nv_add_u32 v{T[2]}, s{s_t0}, v{vLn}")
        for c in range(5):
            a(f"ds_write_b128 v{T[2]}, {vr(ACC + 20 * r + 4 * c, 4)} offset:{1024 * c}")

    wait_flags("wb", WS_FB, [fB], cfg["fbr"])
    a(f"s_cbranch_vccnz {L('fb_late')}")
    ffn_loads(0)
    stamp(a, prof, 6)
    a("s_barrier")
    ffn_loads(1)
    kv_dma(3)
    a(f"s_branch {L('fb_go')}\n{L('fb_late')}:\ns_barrier")
    kv_dma(3)
    wait_flags("wc", WS_FB, [fB])
    ffn_loads(0)
    ffn_loads(1)
    stamp(a, prof, 16)
    a(f"s_waitcnt vmcnt(0)\n{L('fb_go')}:\ns_setprio 0")
    queue += [("L", 0)] * 9 + [("L", 1)] * 9 + [("D", 2)] * 7

    def vm_units(fn, tag):
        out, cur = [], []
        for u in capture(fn):
            cur.append(u)
            n = u.count("buffer_load")
            if n:
                out.append(("\n".join(cur), [tag] * n))
                cur = []
        out[-1] = (out[-1][0] + "\n" + "\n".join(cur), out[-1][1])
        return out

    cuts = [cfg["cut0"] + cfg["cutd"] * k for k in range(5)]
    side = vm_units(lambda: wo_stage(0), ("W", 0))
    iv, m = 2, 0
    for step in range(14):
        b = step % 3
        main = vm_units(lambda: ffn_loads((step + 2) % 3), ("L", step + 2)) if step + 2 < 14 else []
        need(("L", step))
        if step == 13:
            assert not side and iv == 7
            a(f"s_cmp_lt_u32 s{s_wj}, 2\ns_cbranch_scc0 {L('m13')}")
        for k in range(20):
            t, c = divmod(k, 5)
            d = vr(ACC + 20 * t + 4 * c, 4)
            a(f"v_mfma_f32_16x16x32_bf16 {d}, {vr(LB[b] + 16 + 4 * c, 4)}, {vr(LB[b] + 4 * t, 4)}, {d if step else 0}")
            m += 1
            src = main if (main and (k & 1 or not side)) else side
            if src:
                text, tags = src.pop(0)
                a(text)
                queue += tags
            if iv < 7 and m == cuts[iv - 2]:
                assert not side
                need(("D", iv))
                if cfg.get("trace"):
                    stamp(a, prof, 24)
                a("s_barrier")
                iv += 1
                if iv < 7:
                    side = vm_units(lambda: kv_dma(iv + 1), ("D", iv))
                if iv < 6:
                    side += vm_units(lambda: wo_stage(iv - 2), ("W", iv))
                if iv == 7:
                    only("w5", f"s_cmp_lt_u32 s{s_wj}, 2", lambda: wo_stage(4))
        assert not main
    a(f"{L('m13')}:")
    srd(a, sX, 4, S * D * 2)
    srd(a, sA, 18, D * 2)
    srd(a, sB, 20, S * D * 2)
    for i in range(2):
        a(f"s_mov_b32 s{s_t0}, {WS_WT + (72 + i) * KS_ROW}")
        for c in range(5):
            va, off = w_frag(c)
            a(f"buffer_load_dwordx4 {vr(WR + 20 * i + 4 * c, 4)}, v{va}, {WSD}, s{s_t0} offen offset:{off} sc1")
    for dst, va, sd in ((XR, vO, sX), (BR, vB, sA)):
        a(f"""
        buffer_load_dwordx4 {vr(dst, 4)}, v{va[0]}, s[{sd}:{sd + 3}], 0 offen
        buffer_load_dwordx4 {vr(dst + 4, 4)}, v{va[0]}, s[{sd}:{sd + 3}], 0 offen offset:64
        buffer_load_dwordx2 {vr(dst + 8, 2)}, v{va[1]}, s[{sd}:{sd + 3}], 0 offen offset:128
        """)
    send(1, 1)
    if cfg.get("trace"):
        stamp(a, prof, 24)
    a("s_barrier")
    send(2, 2)
    a(f"""
    s_cmp_lg_u32 s2, 0
    s_cbranch_scc1 {L('we_done')}
    s_lshl_b32 s{s_t0}, s{s_wj}, 6
    v_add_u32 v{T[5]}, s{s_t0}, v{vL}
    v_lshlrev_b32 v{T[5]}, 7, v{T[5]}
    """)
    wait_flags("we", WS_FB, [T[5]])
    stamp(a, prof, 7)
    a("s_barrier")
    send(3, 0)
    a("s_waitcnt vmcnt(0)")
    for src in (XR, BR):
        for i in range(10):
            t = T[2 + 2 * (i & 1)]
            a(f"v_lshlrev_b32 v{t}, 16, v{src + i}\nv_and_b32 v{t + 1}, 0xffff0000, v{src + i}")
            a(f"v_pk_add_f32 {vr(ACC + 2 * i, 2)}, {vr(ACC + 2 * i, 2)}, {vr(t, 2)}")
    a(f"""
    v_bfe_u32 v{T[2]}, v{vL}, 1, 4
    v_mul_u32_u24 v{T[2]}, 5, v{T[2]}
    v_and_b32 v{T[3]}, 1, v{vL}
    s_cmp_eq_u32 s{s_wj}, 2
    s_cselect_b32 s{s_t1}, 8, {3 * CH}
    s_cselect_b32 s{s_t2}, 4, 12
    s_cmp_eq_u32 s{s_wj}, 3
    s_cselect_b32 s{s_t0}, 0, s{s_wj}
    v_add_u32 v{T[2]}, s{s_t0}, v{T[2]}
    v_lshlrev_b32 v{T[2]}, 15, v{T[2]}
    v_mad_u32_u24 v{T[0]}, v{T[3]}, s{s_t1}, v{T[2]}
    s_lshl_b32 s{s_t0}, s{s_head}, 3
    s_add_u32 s{s_t0}, s{s_t0}, s{s_qb}
    s_lshl_b32 s{s_t0}, s{s_t0}, 7
    s_add_u32 s{s_t0}, s{s_t0}, s{s_t2}
    s_add_u32 s{s_ko}, s{s_t0}, {C_O * CH}
    s_mov_b32 s{s_spin}, {SPIN}
    s_waitcnt lgkmcnt(0)
    s_barrier
    """)
    stamp(a, prof, 8)
    a(f"""
    s_cmp_lg_u32 s2, 0
    s_cbranch_scc1 {L('tag_kept')}
    v_mov_b32 v{T[4]}, 0
    v_mov_b32 v{T[5]}, s{s_tag}
    s_mov_b32 s{s_t0}, {WS_E}
    buffer_store_dword v{T[5]}, v{T[4]}, {WSD}, s{s_t0} offen sc1
    {L('tag_kept')}:
    """)
    for r, slot in ((1, 1), (2, 2), (3, 0)):
        a(f"""
        s_xor_b32 s{s_t0}, s{s_wj}, {r}
        s_mul_i32 s{s_t0}, s{s_t0}, 5120
        s_add_u32 s{s_t0}, s{s_t0}, {KV + slot * SLOT}
        v_add_u32 v{T[2]}, s{s_t0}, v{vLn}
        """)
        for c in range(5):
            a(f"ds_read_b128 {vr(ACC + 20 * r + 4 * c, 4)}, v{T[2]} offset:{1024 * c}")
    for r in range(1, 4):
        a(f"s_waitcnt lgkmcnt({5 * (3 - r)})")
        for i in range(0, 20, 2):
            a(f"v_pk_add_f32 {vr(ACC + i, 2)}, {vr(ACC + i, 2)}, {vr(ACC + 20 * r + i, 2)}")
    a(f"v_add_u32 v{T[2]}, {L_WO + 10 * 5120}, v{vLn}")

    def wo_reads(i):
        va, off = (vLn, L_WO + 5120 * i) if i < 10 else (T[2], 5120 * (i - 10))
        return [f"ds_read_b128 {vr(RX + 20 * (i % 3) + 4 * c, 4)}, v{va} offset:{off + 1024 * c}" for c in range(5)] if i < 18 else []

    def o_loads(lo, hi):
        for i in range(lo, hi):
            a(f"s_mov_b32 s{s_t0}, {(C_O + 4 * i) * CH}")
            a(f"buffer_load_dwordx4 {vr(OF + 4 * i, 4)}, v{vH[0]}, {WSD}, s{s_t0} offen sc1")

    a("\n".join(wo_reads(0) + wo_reads(1)))
    a(f"""
    s_mov_b32 exec_hi, 0
    {L('poll')}:
    buffer_load_dword v{T[3]}, v{T[0]}, {WSD}, s{s_ko} offen sc1
    s_sub_u32 s{s_spin}, s{s_spin}, 1
    s_cmp_eq_u32 s{s_spin}, 0
    s_waitcnt vmcnt(0)
    v_cmp_eq_u32 vcc, -1, v{T[3]}
    s_cbranch_scc1 {L('got')}
    s_nop 2
    s_cbranch_vccnz {L('poll')}
    {L('got')}:
    s_mov_b32 exec_hi, -1
    """)
    if cfg.get("trace"):
        stamp(a, prof, 50)
        if prof:
            a(f"s_sub_u32 s96, {SPIN + 200}, s{s_spin}\ns_waitcnt lgkmcnt(0)")
    o_loads(0, 20)
    GS = cfg["grp"]
    again = []
    for i in range(20):
        if i % GS == 0:
            b = OF + 4 * i
            a(f"s_waitcnt vmcnt({20 - GS - i})\n{L('ck' + str(i))}:\nv_max_u32 v{T[3]}, v{b + 1}, v{b + 3}")
            for k in range(1, GS):
                a(f"v_max3_u32 v{T[3]}, v{T[3]}, v{b + 4 * k + 1}, v{b + 4 * k + 3}")
            a(f"v_cmp_eq_u32 vcc, -1, v{T[3]}\ns_nop 1\ns_cbranch_vccnz {L('re' + str(i))}\n{L('go' + str(i))}:")
            again.append(i)
        if i < 18:
            a(f"s_waitcnt lgkmcnt({5 if i < 17 else 0})")
        nxt = wo_reads(i + 2)
        w = RX + 20 * (i % 3) if i < 18 else WR + 20 * (i - 18)
        for c in range(5):
            d = vr(ACC + 4 * c, 4)
            a(f"v_mfma_f32_16x16x32_bf16 {d}, {vr(w + 4 * c, 4)}, {vr(OF + 4 * i, 4)}, {d}")
            a("\n".join(nxt[c:c + 1]))
    stamp(a, prof, 9)
    a("s_nop 7")
    for i in range(10):
        a(f"v_cvt_pk_bf16_f32 v{XR + i}, v{ACC + 2 * i}, v{ACC + 2 * i + 1}")
    a(f"""
    buffer_store_dwordx4 {vr(XR, 4)}, v{vO[0]}, s[{sB}:{sB + 3}], 0 offen {OSF}
    buffer_store_dwordx4 {vr(XR + 4, 4)}, v{vO[0]}, s[{sB}:{sB + 3}], 0 offen offset:64 {OSF}
    buffer_store_dwordx2 {vr(XR + 8, 2)}, v{vO[1]}, s[{sB}:{sB + 3}], 0 offen offset:128 {OSF}
    """)
    if prof:
        a(f"{L('dump')}:\ns_waitcnt vmcnt(0)")
        stamp(a, prof, 10)
        stamp(a, prof, 11)
        a(f"""
        s_memrealtime s[78:79]
        s_waitcnt lgkmcnt(0)
        s_mov_b32 s{sWS + 2}, {WS_SIZE}
        s_lshl_b32 s95, s2, 3
        s_add_u32 s95, s95, s{s_w}
        s_lshl_b32 s95, s95, 8
        s_add_u32 s95, s95, {WS_DBG}
        v_writelane_b32 v0, s76, 62
        v_writelane_b32 v0, s78, 63
        v_lshlrev_b32 v{T[0]}, 2, v{vL}
        buffer_store_dword v0, v{T[0]}, {WSD}, s95 offen
        s_waitcnt vmcnt(0)
        """)
    a("s_endpgm")
    for i in again:
        a(f"{L('re' + str(i))}:\ns_sub_u32 s{s_spin}, s{s_spin}, 1\ns_cmp_lt_i32 s{s_spin}, 0\ns_cbranch_scc1 {L('go' + str(i))}")
        o_loads(i, i + GS)
        a(f"s_waitcnt vmcnt(0)\ns_branch {L('ck' + str(i))}")
    a.lines = head_lines + a.lines + g0_lines
    a(f"{L('end')}:\ns_endpgm")
    return kernel_header(label) + a.text(), kernel_desc(label, 256, 102 if prof else 80), LDS_SIZE


def build(as_list=False, **kw):
    ref = open(f"cdna_kernels/{NAME}.s.ref").read().split("\n")
    head = [ln for ln in ref if ln.startswith(";") and "launch" not in ln.lower() and "grid=" not in ln]
    label = NAME + "_kernel"
    c, d, lds = gen(label, **kw)
    c = c.replace(label + "_", "L_")
    if (kw.get("cfg") or {}).get("rt"):
        c = c.replace("s_memtime", "s_memrealtime")
    out = "\n".join(head) + "\n"
    out += f"; @launch {'kernel=' + label + ' ' if as_list else ''}grid=(256,1,1) block=(512,1,1) lds={lds}\n"
    out += '.amdgcn_target "amdgcn-amd-amdhsa--gfx950"\n.text\n' + c + '.section .rodata,"a"\n' + d
    return out


if __name__ == "__main__":
    import sys
    opts = sys.argv[2:]
    cfg = {o.split("=")[0]: int(o.split("=")[1], 0) for o in opts if "=" in o}
    open(sys.argv[1], "w").write(build(as_list="list" in opts, prof="prof" in opts, force_fallback="slow" in opts, cfg=cfg))
```

```python
import math
import struct
from common import *

f32 = lambda x: struct.unpack("<I", struct.pack("<f", x))[0]
QSCALE = f32(math.log2(math.e) / math.sqrt(20.0))
SHIFT = 88.0

WS_RS = WS_END
WS_CP = WS_RS + 2048 * 16
CP_ROW = 3648 * 8
WS_FA = WS_CP + 4 * CP_ROW
WS_FB = WS_FA + 1024 * 128
WS_E = WS_FB + 1024 * 128
WS_TOP = WS_E + 128

STG = 49152
LX, LW, LF = 0, 16384, 32768
L_NM = 3 * STG
L_RS, L_CSA, L_CSB, L_BI = L_NM + 512, L_NM + 1024, L_NM + 1536, L_NM + 2048
L_CP = L_NM + 2560
L_RP = L_CP + 1024
LDS_SIZE = 163840
SLOT = 8192 + 4096 + 16 * 656
OFF_R, OFF_V = 8192, 12288
KV = LDS_SIZE - 3 * SLOT
L_Q = 0
L_WO = 0
LDS_OOB = 0x28000
assert L_WO + 18 * 5120 <= KV and LDS_OOB + 3 * SLOT <= 0x40000
KS_ROW = 40 * 1024

sWS, sX, sW, sA, sB = 24, 28, 32, 36, 40
(s_w, s_wj, s_rb, s_cg, s_head, s_qb, s_tt, s_ocg, s_cm, s_cr, s_par, s_tag, s_c, s_slot,
 s_t0, s_t1, s_t2, s_t3, s_xo, s_wo, s_ring, s_wstep, s_ko, s_vo, s_ho, s_spin, s_fl) = range(44, 71)
assert s_t2 % 2 == 0
s_o = [71, 72, 73]
s_kc, s_hook = 74, 75
SPIN = 0x20000


def gen(label, prof=False, force_fallback=False, cfg=None):
    cfg = {**dict(touch=1, gat=3, pre=3, mk=8, early=0, fprio=2, flag=-1, krot=0, plf=0, fsf=0, slp=2, fbr=2, cut0=44, cutd=50, grp=4, osf=0), **(cfg or {})}
    STF = ('sc1', '', 'nt')[cfg.get('plain', 0)]
    PLF = ('sc1', 'sc0 sc1', 'sc1 nt', 'sc0 sc1 nt')[cfg['plf']]
    FSF = ('sc1', 'sc0 sc1')[cfg['fsf']]
    OSF = ('', 'sc1', 'nt')[cfg['osf']]
    a = Asm()
    L = lambda n: f"{label}_{n}"
    WSD = f"s[{sWS}:{sWS + 3}]"
    vL = 1
    T = [2, 3, 4, 5, 6, 7]
    vK, vR_, vV = 8, 9, 10
    AX = [11, 12]
    AW = [13, 14, 15, 16]
    XF = [[32 + 16 * b + 4 * t for t in range(4)] for b in range(2)]
    WF = [[64 + 16 * b + 4 * c for c in range(4)] for b in range(2)]
    GA, GB = 96, 160

    def capture(fn):
        keep, a.lines = a.lines, []
        fn()
        got, a.lines = a.lines, keep
        units, masked = [], False
        for ln in got:
            t = ln.strip()
            if units and (masked or t.startswith("s_cselect") or units[-1].split("\n")[-1].strip().startswith("s_cmp")):
                units[-1] += "\n" + ln
            else:
                units.append(ln)
            if t.startswith("s_") and " exec" in t.split(",")[0]:
                masked = not t.endswith("-1")
        return units

    def gacc(tt, ci, base=GA):
        return base + (tt * 4 + ci) * 4

    SD = 32
    a(f"""
    s_cmp_ge_u32 s2, 256
    s_cbranch_scc1 {L('end')}
    s_load_dwordx16 s[4:19], s[0:1], 0
    s_load_dwordx2 s[22:23], s[0:1], 80
    s_load_dwordx2 s[20:21], s[0:1], 64
    """)
    stamp(a, prof, 0)
    a(f"""
    v_lshrrev_b32 v{T[0]}, 6, v0
    v_and_b32 v{vL}, 63, v0
    s_and_b32 s{s_t3}, s2, 1
    v_readfirstlane_b32 s{s_w}, v{T[0]}
    s_bfe_u32 s{s_cg}, s2, 0x20001
    s_mov_b32 s{sA + 3}, 0x00020000
    {'v_mov_b32 v0, -1' if prof else ''}
    s_and_b32 s{s_wj}, s{s_w}, 3
    s_cmp_ge_u32 s{s_w}, 4
    s_cbranch_scc1 {L('p_col')}
    s_mov_b32 s3, 0
    s_lshl_b32 s{s_t0}, s{s_t3}, 8
    s_and_b32 s{s_t1}, s2, 0xfe
    s_add_u32 s{s_t0}, s{s_t0}, s{s_t1}
    s_cmp_lt_u32 s{s_wj}, 2
    s_cselect_b32 s{s_t1}, 0, 62
    s_add_u32 s{s_t0}, s{s_t0}, s{s_t1}
    s_add_u32 s{s_t0}, s{s_t0}, s{s_wj}
    s_mul_i32 s{s_t1}, s{s_t0}, {4 * 1280}
    s_and_b32 s{s_t0}, s2, 0xc6
    s_cmp_eq_u32 s{s_t0}, 0xc6
    s_cselect_b32 s{s_hook}, 0, 2
    s_cmp_eq_u32 s{s_t0}, 0x86
    s_cselect_b32 s{s_hook}, 4, s{s_hook}
    v_lshrrev_b32 v{T[0]}, 4, v{vL}
    v_and_b32 v{T[1]}, 15, v{vL}
    v_mul_u32_u24 v{T[2]}, 1280, v{T[0]}
    s_movk_i32 s{s_t2}, 256
    s_mov_b32 s{sA + 2}, {S * D * 2}
    s_cmp_lt_u32 s{s_wj}, s{s_hook}
    s_waitcnt lgkmcnt(0)
    s_mov_b64 s[{sA}:{sA + 1}], s[4:5]
    s_branch {L('p_ld')}
    {L('p_col')}:
    s_setprio 2
    s_mov_b32 s3, 1
    s_lshr_b32 s{s_t1}, s2, 5
    s_lshl_b32 s{s_t0}, s{s_cg}, 3
    s_add_u32 s{s_t1}, s{s_t1}, s{s_t0}
    s_bfe_u32 s{s_t0}, s2, 0x10003
    s_lshl_b32 s{s_t2}, s{s_t3}, 1
    s_add_u32 s{s_t0}, s{s_t0}, s{s_t2}
    s_mul_i32 s{s_o[0]}, s{s_t0}, {CP_ROW // 512 * 512}
    s_lshl_b32 s{s_t0}, s{s_t0}, 2
    s_add_u32 s{s_t0}, s{s_t0}, s{s_wj}
    s_mul_i32 s{s_t0}, s{s_t0}, 40
    v_lshrrev_b32 v{T[0]}, 3, v{vL}
    v_and_b32 v{T[1]}, 7, v{vL}
    s_bitcmp0_b32 s2, 4
    s_cselect_b32 s{s_hook}, 30, 57
    s_movk_i32 s{s_t2}, 3840
    s_cselect_b32 s{s_t2}, s{s_t2}, 3456
    s_cselect_b32 s{s_o[1]}, 0, 30
    s_mul_i32 s{sA + 2}, s{s_t2}, 640
    s_mul_i32 s{s_t0}, s{s_t0}, s{s_t2}
    v_mul_u32_u24 v{T[2]}, s{s_t2}, v{T[0]}
    s_waitcnt lgkmcnt(0)
    s_cselect_b64 s[{sA}:{sA + 1}], s[6:7], s[12:13]
    s_add_u32 s{s_o[1]}, s{s_o[1]}, s{s_t1}
    s_lshl_b32 s{s_t1}, s{s_t1}, 7
    s_add_u32 s{s_t1}, s{s_t1}, s{s_t0}
    s_lshl_b32 s{s_t2}, s{s_t2}, 3
    s_cmp_lt_u32 s{s_o[1]}, s{s_hook}
    s_cselect_b32 s{s_hook}, 3, 7
    {L('p_ld')}:
    v_lshl_add_u32 v{T[2]}, v{T[1]}, 4, v{T[2]}
    s_cbranch_scc0 {L('p_id')}
    """)
    assert CP_ROW % 512 == 0
    for q in range(5):
        a(f"buffer_load_dwordx4 {vr(SD + 4 * q, 4)}, v{T[2]}, s[{sA}:{sA + 3}], s{s_t1} offen")
        a(f"s_add_u32 s{s_t1}, s{s_t1}, s{s_t2}")
    a(f"""
    {L('p_id')}:
    s_lshr_b32 s{s_t1}, s2, 3
    s_lshr_b32 s{s_ocg}, s{s_t1}, 3
    s_and_b32 s{s_t2}, s{s_t1}, 7
    s_lshl_b32 s{s_cg}, s{s_cg}, 2
    s_add_u32 s{s_cg}, s{s_cg}, s{s_ocg}
    s_lshl_b32 s{s_rb}, s{s_t3}, 3
    s_add_u32 s{s_rb}, s{s_rb}, s{s_t2}
    s_cmp_eq_u32 s{s_cg}, 15
    s_cbranch_scc1 {L('near')}
    {L('p_go')}:
    s_cmp_eq_u32 s3, 0
    s_cbranch_scc1 {L('g0')}
    """)
    head_lines, a.lines = a.lines, []

    def attn_ids():
        a(f"""
        s_and_b32 s{s_t0}, s2, 7
        s_lshr_b32 s{s_t1}, s2, 3
        s_and_b32 s{s_t2}, s{s_t1}, 3
        s_lshl_b32 s{s_head}, s{s_t0}, 2
        s_add_u32 s{s_head}, s{s_head}, s{s_t2}
        s_lshr_b32 s{s_qb}, s{s_t1}, 2
        s_and_b32 s{s_par}, s{s_head}, 1
        s_lshr_b32 s{s_t2}, s{s_head}, 1
        s_mul_i32 s{s_t2}, s{s_t2}, 5
        s_add_u32 s{s_cr}, s{s_t2}, 2
        s_mul_i32 s{s_t3}, s{s_par}, 3
        s_add_u32 s{s_cm}, s{s_t2}, s{s_t3}
        s_lshl_b32 s{s_cm}, s{s_cm}, 15
        s_lshl_b32 s{s_cr}, s{s_cr}, 15
        """)

    def load_tag():
        a(f"""
        s_mov_b32 s{s_t0}, {WS_E}
        s_load_dword s{s_tag}, s[22:23], s{s_t0}
        """)

    def frag_addr():
        a(f"""
        v_and_b32 v{T[0]}, 15, v{vL}
        v_lshrrev_b32 v{T[1]}, 4, v{vL}
        v_bfe_u32 v{T[2]}, v{vL}, 1, 3
        v_xor_b32 v{T[2]}, v{T[2]}, v{T[1]}
        v_lshlrev_b32 v{T[2]}, 4, v{T[2]}
        v_lshl_add_u32 v{T[2]}, v{T[0]}, 7, v{T[2]}
        s_and_b32 s{s_t0}, s{s_wj}, 1
        s_lshl_b32 s{s_t0}, s{s_t0}, 13
        v_add_u32 v{AX[0]}, s{s_t0}, v{T[2]}
        v_xor_b32 v{AX[1]}, 64, v{AX[0]}
        v_bfe_u32 v{T[2]}, v{vL}, 2, 2
        v_lshl_add_u32 v{T[3]}, v{T[1]}, 3, v{T[2]}
        v_lshlrev_b32 v{T[3]}, 8, v{T[3]}
        v_bfe_u32 v{T[2]}, v{vL}, 2, 3
        s_lshr_b32 s{s_t0}, s{s_wj}, 1
        s_lshl_b32 s{s_t0}, s{s_t0}, 2
        v_xor_b32 v{T[2]}, s{s_t0}, v{T[2]}
        v_lshl_add_u32 v{T[3]}, v{T[2]}, 5, v{T[3]}
        v_and_b32 v{T[2]}, 3, v{vL}
        v_lshl_add_u32 v{AW[0]}, v{T[2]}, 3, v{T[3]}
        v_xor_b32 v{AW[1]}, 32, v{AW[0]}
        v_xor_b32 v{AW[2]}, 64, v{AW[0]}
        v_xor_b32 v{AW[3]}, 96, v{AW[0]}
        """)

    def zero(base, n):
        for r in range(base, base + n, 2):
            a(f"v_mov_b64 {vr(r, 2)}, 0")

    def wreads(part, s, b):
        return [f"ds_read_b64_tr_b16 {vr(WF[b][c] + 2 * h, 2)}, v{AW[c]} offset:{part + s * 8192 + 1024 * h}"
                for c in range(4) for h in range(2)]

    def xreads(s):
        return [f"ds_read_b128 {vr(XF[s][t], 4)}, v{AX[s]} offset:{LX + 2048 * t}" for t in range(4)]

    def both(part, s, b):
        w, x = wreads(part, s, b), xreads(s)
        return w[:2] + x[:1] + w[2:] + x[1:]

    def gemm_body(name, halves, barrier, count_to):
        a(f".p2align 3\n{L(name)}:")
        for k, (xs, wb, acc, swapped, rd) in enumerate(halves):
            fill = [[] for _ in range(16)]
            if k == len(halves) - 1:
                if barrier:
                    if prof and cfg.get("trace", 0) > 2:
                        fill[0] += capture(lambda: stamp(a, prof, 25))
                    fill[0].append("s_barrier")
                fill[13].append(f"s_add_u32 s{s_c}, s{s_c}, 1")
                fill[14].append(f"s_cmp_lt_u32 s{s_c}, {count_to}")
            if k == len(halves) - 2:
                fill[8].append(f"s_add_u32 s{s_ring}, s{s_ring}, 1")
                fill[9].append(f"s_cmp_eq_u32 s{s_ring}, 3")
                fill[10].append(f"s_cselect_b32 s{s_xo}, {-2 * STG & 0xffffffff}, s{s_wstep}")
                fill[11].append(f"s_cselect_b32 s{s_ring}, 0, s{s_ring}")
            for m, x in enumerate(rd):
                fill[m].append(x)
            if k == len(halves) - 2:
                for m, r in enumerate(AX + AW):
                    fill[12 + m // 2].append(f"v_add_u32 v{r}, s{s_xo}, v{r}")
            fill[15].append("s_waitcnt lgkmcnt(0)")
            for m in range(16):
                tt, ci = m >> 2, m & 3
                wf, xf = vr(WF[wb][ci], 4), vr(XF[xs][tt], 4)
                A, B = (xf, wf) if swapped else (wf, xf)
                a(f"v_mfma_f32_16x16x32_bf16 {vr(gacc(tt, ci, acc), 4)}, {A}, {B}, {vr(gacc(tt, ci, acc), 4)}")
                a("\n".join(fill[m]))
        if 0 < cfg.get("trace", 0) < 3:
            stamp(a, prof, 20)
        a(f"s_cbranch_scc1 {L(name)}")

    def joint(name, sw):
        gemm_body(name, [(0, 0, GA, sw, wreads(LF, 0, 1)), (0, 1, GB, False, both(LW, 1, 0)),
                         (1, 0, GA, sw, wreads(LF, 1, 1)), (1, 1, GB, False, both(LW, 0, 0))], True, 7)

    def single(name, part, acc, sw, barrier, count_to):
        gemm_body(name, [(0, 0, acc, sw, both(part, 1, 1)), (1, 1, acc, sw, both(part, 0, 0))], barrier, count_to)

    def tile_addr(e_reg, e_lane, e_st):
        a(f"""
        v_and_b32 v{T[0]}, 15, v{vL}
        v_lshrrev_b32 v{T[1]}, 4, v{vL}
        s_lshr_b32 s{s_t0}, s{s_wj}, 1
        s_lshl_b32 s{s_t0}, s{s_t0}, 8
        s_add_u32 s{s_t0}, s{s_t0}, {L_NM}
        v_lshl_add_u32 v{e_reg}, v{T[1]}, 4, s{s_t0}
        s_and_b32 s{s_t1}, s{s_wj}, 1
        s_lshl_b32 s{s_t0}, s{s_t1}, 8
        s_add_u32 s{s_t0}, s{s_t0}, {L_NM}
        v_lshl_add_u32 v{e_lane}, v{T[0]}, 2, s{s_t0}
        v_bfrev_b32 v{T[1]}, v{T[1]}
        v_lshrrev_b32 v{T[1]}, 15, v{T[1]}
        v_lshl_add_u32 v{T[1]}, v{T[0]}, 4, v{T[1]}
        s_lshl_b32 s{s_t0}, s{s_rb}, 1
        s_add_u32 s{s_t0}, s{s_t0}, s{s_t1}
        s_lshl_b32 s{s_t0}, s{s_t0}, 10
        v_add_u32 v{e_st}, s{s_t0}, v{T[1]}
        """)

    def put_piece(src, addr, x, y):
        return f"buffer_store_dwordx4 {vr(src, 4)}, v{addr}, {WSD}, s{s_o[x]} offen offset:{256 * y} {STF}"

    def pack_tiles(acc, math, dst, addr=None, between=None):
        pend = []
        for tt in range(4):
            for cp in range(2):
                ob = dst(cp, tt)
                r0 = gacc(tt, 2 * cp, acc)
                math(tt, [(r0 + 2 * p, 8 * cp + 2 * p) for p in range(4)])
                a("\n".join(pend))
                for p in range(4):
                    a(f"v_cvt_pk_bf16_f32 v{ob + p}, v{r0 + 2 * p}, v{r0 + 2 * p + 1}")
                pend = [f"v_permlane16_swap_b32 v{ob}, v{ob + 2}", f"v_permlane16_swap_b32 v{ob + 1}, v{ob + 3}"]
                if addr:
                    pend.append(put_piece(ob, addr, cp, tt))
            if between:
                between(tt)
        a("s_nop 1\n" + "\n".join(pend))

    def key_perm(dst, src, t0, t1):
        a(f"""
        v_bfe_u32 v{t0}, v{src}, 2, 1
        v_bfe_u32 v{t1}, v{src}, 3, 2
        v_lshl_add_u32 v{t0}, v{t0}, 2, v{t1}
        v_and_b32 v{t1}, 3, v{src}
        v_lshl_add_u32 v{dst}, v{t0}, 2, v{t1}
        """)

    def v_feature(dst, row, t0, t1):
        swap23(a, dst, row, t0, t1)
        a(f"""
        s_lshl_b32 s{s_t0}, s{s_par}, 2
        s_mul_i32 s{s_t1}, s{s_par}, -16
        v_cmp_gt_u32 vcc, 16, v{row}
        v_add_u32 v{dst}, s{s_t0}, v{dst}
        v_add_u32 v{t0}, s{s_t1}, v{row}
        v_cndmask_b32 v{dst}, v{t0}, v{dst}, vcc
        """)

    def kv_addr(first_chunk):
        a(f"v_and_b32 v{T[0]}, 31, v{vL}\nv_lshrrev_b32 v{T[1]}, 5, v{vL}")
        key_perm(T[2], T[0], T[3], T[4])
        a(f"""
        v_lshlrev_b32 v{T[3]}, 4, v{T[2]}
        v_lshl_add_u32 v{vK}, v{T[1]}, 15, v{T[3]}
        v_add_u32 v{vK}, s{s_cm}, v{vK}
        v_lshl_add_u32 v{vR_}, v{T[1]}, 9, v{T[3]}
        v_add_u32 v{vR_}, s{s_cr}, v{vR_}
        v_cmp_le_u32 vcc, 20, v{vL}
        s_lshl_b32 s{s_t0}, s{s_wj}, 10
        s_mul_i32 s{s_kc}, s{s_qb}, {cfg['krot']}
        v_cndmask_b32 v{T[2]}, 0, 1, vcc
        v_mul_u32_u24 v{T[3]}, 20, v{T[2]}
        v_sub_u32 v{T[3]}, v{vL}, v{T[3]}
        v_mul_u32_u24 v{vV}, 10240, v{T[2]}
        """)
        v_feature(T[2], T[3], T[4], T[5])
        a(f"""
        s_mul_i32 s{s_t0}, s{s_head}, 320
        v_lshl_add_u32 v{vV}, v{T[2]}, 4, v{vV}
        v_add_u32 v{vV}, s{s_t0}, v{vV}
        """)

    def kv_dma(chunk):
        base = KV + ((chunk + 2) % 3) * SLOT
        a(f"""
        s_and_b32 s{s_t0}, s{s_kc}, 7
        s_lshl_b32 s{s_t0}, s{s_t0}, 2
        s_add_u32 s{s_t0}, s{s_t0}, s{s_wj}
        s_lshl_b32 s{s_ko}, s{s_t0}, 10
        s_add_u32 s{s_ko}, s{s_ko}, {C_K * CH}
        s_mul_i32 s{s_vo}, s{s_t0}, 81920
        s_add_u32 s{s_vo}, s{s_vo}, {WS_V}
        s_add_u32 s{s_kc}, s{s_kc}, 1
        s_lshl_b32 s{s_t0}, s{s_wj}, 11
        s_add_u32 m0, s{s_t0}, {base}
        s_lshl_b32 s{s_t1}, s{s_wj}, 10
        buffer_load_dwordx4 v{vK}, {WSD}, s{s_ko} offen sc1 lds
        s_add_u32 m0, s{s_t0}, {base + 512}
        s_mul_i32 s{s_t0}, s{s_wj}, {4 * 656}
        buffer_load_dwordx4 v{vK}, {WSD}, s{s_ko} offen offset:512 sc1 lds
        s_add_u32 m0, s{s_t1}, {base + OFF_R}
        s_nop 0
        buffer_load_dwordx4 v{vR_}, {WSD}, s{s_ko} offen sc1 lds
        s_mov_b32 exec_hi, 0xff
        """)
        for i in range(4):
            a(f"""
            s_add_u32 m0, s{s_t0}, {base + OFF_V + 656 * i}
            s_add_u32 s{s_t1}, s{s_vo}, {20480 * i}
            buffer_load_dwordx4 v{vV}, {WSD}, s{s_t1} offen sc1 lds
            """)
        a("s_mov_b32 exec_hi, -1")

    def ones_addr(dst, first_slot, nslots):
        a(f"""
        v_min_u32 v{dst}, {16 * nslots - 1}, v{vL}
        v_lshrrev_b32 v{T[3]}, 4, v{dst}
        v_and_b32 v{dst}, 15, v{dst}
        v_mul_u32_u24 v{T[3]}, {SLOT}, v{T[3]}
        v_mul_u32_u24 v{dst}, 656, v{dst}
        v_add_u32 v{dst}, v{dst}, v{T[3]}
        v_add_u32 v{dst}, {KV + first_slot * SLOT + OFF_V + 640}, v{dst}
        """)

    def ones_write(addr, tmp):
        for r in range(4):
            a(f"v_mov_b32 v{tmp + r}, 0x3f803f80")
        a(f"ds_write_b128 v{addr}, {vr(tmp, 4)}")

    def set_flag(base):
        a(f"""
        s_lshl_b32 s{s_t0}, s{s_fl}, 7
        s_add_u32 s{s_t0}, s{s_t0}, {base}
        v_mov_b32 v{T[4]}, 0
        v_mov_b32 v{T[3]}, s{s_tag}
        s_mov_b64 exec, 1
        buffer_store_dword v{T[3]}, v{T[4]}, {WSD}, s{s_t0} offen {FSF}
        s_mov_b64 exec, -1
        """)

    def flag_of_tile(dst, rh, unit):
        a(f"v_lshl_add_u32 v{dst}, v{unit}, 5, {rh}\nv_lshlrev_b32 v{dst}, 7, v{dst}")

    def head_unit(dst, sel):
        a(f"""
        s_mul_i32 s{s_t0}, s{s_head}, 20
        v_mad_u32_u24 v{dst}, v{sel}, 19, s{s_t0}
        v_lshrrev_b32 v{dst}, 6, v{dst}
        """)

    def wait_flags(name, base, offs, rounds=SPIN):
        a(f"""
        s_mov_b32 s{s_t0}, {base}
        s_mov_b32 s{s_spin}, {rounds}
        s_branch {L(name + '_ld')}
        {L(name)}:
        s_sleep {cfg['slp']}
        {L(name + '_ld')}:
        buffer_load_dword v{T[3]}, v{offs[0]}, {WSD}, s{s_t0} offen {PLF}
        """)
        if len(offs) > 1:
            a(f"buffer_load_dword v{T[4]}, v{offs[1]}, {WSD}, s{s_t0} offen {PLF}")
        a(f"s_sub_u32 s{s_spin}, s{s_spin}, 1\ns_waitcnt vmcnt(0)")
        if len(offs) == 1:
            a(f"v_mov_b32 v{T[4]}, v{T[3]}")
        retry(name)

    def retry(name):
        a(f"""
        v_cmp_ne_u32 vcc, s{s_tag}, v{T[3]}
        v_cmp_ne_u32 s[{s_t2}:{s_t2 + 1}], s{s_tag}, v{T[4]}
        s_cmp_eq_u32 s{s_spin}, 0
        s_cbranch_scc1 {L(name + '_done')}
        s_or_b64 vcc, vcc, s[{s_t2}:{s_t2 + 1}]
        s_cbranch_scc1 {L(name)}
        {L(name + '_done')}:
        """)

    def q_addr(vq, vqr):
        a(f"""
        v_and_b32 v{T[0]}, 31, v{vL}
        v_lshrrev_b32 v{T[1]}, 5, v{vL}
        s_lshl_b32 s{s_t0}, s{s_qb}, 2
        s_add_u32 s{s_t0}, s{s_t0}, s{s_wj}
        s_lshl_b32 s{s_t0}, s{s_t0}, 10
        s_lshl_b32 s{s_t1}, s{s_par}, 3
        s_add_u32 s{s_t2}, s{s_t0}, s{s_t1}
        v_lshlrev_b32 v{T[2]}, 4, v{T[0]}
        v_lshl_add_u32 v{vq}, v{T[1]}, 15, v{T[2]}
        v_add_u32 v{vq}, s{s_t0}, v{vq}
        v_add_u32 v{vqr}, s{s_t2}, v{T[2]}
        """)

    eR, eL, eS, hR, hL, hS = 17, 18, 19, 8, 9, 10
    IDX, AK0, AR0, AV0, VQ, VQR, AQ = 20, 21, 22, 23, 24, 25, 26
    AK, AR, AV = 27, 28, 29
    R = Regs(216)
    MX = [R.get(), R.get()]
    Q1 = [R.get(4), R.get(4)]
    Q2 = [[R.get(2), R.get(2)], [R.get(2), R.get(2)]]
    K1 = [R.get(4), R.get(4)]
    K2 = [R.get(2), R.get(2)]
    V0 = [R.get(4), R.get(4)]
    PH = 32
    SS, CM, TS, OO, V1 = [96, 160], [112, 128], 144, [176, 192], [208, 212]

    AC, SO = 72, 80
    a(f"""
    {L('g0')}:
    v_lshlrev_b32 v{SO}, 4, v{T[0]}
    """)
    srd(a, sWS, 22, WS_TOP)
    load_tag()
    frag_addr()
    zero(GA, 128)
    attn_ids()
    tile_addr(hR, hL, hS)
    a(f"""
    v_mov_b32 v{eR}, v{hR}
    v_mov_b32 v{eS}, v{hS}
    s_cmp_lt_u32 s{s_cg}, 10
    s_cbranch_scc1 {L('ad_j')}
    v_lshrrev_b32 v{T[1]}, 4, v{vL}
    s_lshl_b32 s{s_t0}, s{s_t1}, 8
    s_add_u32 s{s_t0}, s{s_t0}, {L_NM}
    v_lshl_add_u32 v{eR}, v{T[1]}, 4, s{s_t0}
    s_lshr_b32 s{s_t2}, s{s_wj}, 1
    s_lshl_b32 s{s_t0}, s{s_t2}, 8
    s_add_u32 s{s_t0}, s{s_t0}, {L_CSA}
    v_lshl_add_u32 v{eL}, v{T[0]}, 2, s{s_t0}
    s_sub_u32 s{s_t0}, s{s_cg}, 10
    s_lshl_b32 s{s_t0}, s{s_t0}, 1
    s_add_u32 s{s_t0}, s{s_t0}, s{s_t2}
    s_lshl_b32 s{s_t0}, s{s_t0}, 10
    v_mul_u32_u24 v{T[1]}, 10240, v{T[1]}
    v_lshl_add_u32 v{T[1]}, v{T[0]}, 4, v{T[1]}
    v_add_u32 v{eS}, s{s_t0}, v{T[1]}
    {L('ad_j')}:
    """)
    q_addr(VQ, VQR)
    a(f"""
    v_mov_b32 v{IDX}, 0xdddddddd
    v_lshlrev_b32 v{AK0}, 4, v{vL}
    s_mul_i32 s{s_t0}, s{s_wj}, 3072
    v_add_u32 v{AQ}, s{s_t0}, v{AK0}
    v_add_u32 v{AK0}, {KV}, v{AK0}
    v_add_u32 v{AR0}, s{s_t1}, v{AK0}
    v_mad_u32_u24 v{T[2]}, v{T[1]}, 20, v{T[0]}
    v_lshlrev_b32 v{T[2]}, 4, v{T[2]}
    v_add_u32 v{T[2]}, {KV}, v{T[2]}
    v_cmp_gt_u32 vcc, 20, v{T[0]}
    v_mov_b32 v{T[4]}, {LDS_OOB}
    v_and_b32 v{T[3]}, 27, v{T[0]}
    v_cndmask_b32 v{T[2]}, v{T[4]}, v{T[2]}, vcc
    v_cmp_eq_u32 vcc, 24, v{T[3]}
    v_mov_b32 v{T[4]}, {KV + 640}
    s_mov_b32 s{s_slot}, {2 * SLOT}
    v_cndmask_b32 v{AV0}, v{T[2]}, v{T[4]}, vcc
    v_add_u32 v{AK}, s{s_slot}, v{AK0}
    v_add_u32 v{AR}, s{s_slot}, v{AR0}
    v_add_u32 v{AV}, s{s_slot}, v{AV0}
    """)
    a(f"""
    s_add_u32 s{s_t0}, s{s_t0}, s{s_t1}
    v_lshl_add_u32 v30, v{T[0]}, 4, s{s_t0}
    v_mov_b32 v31, v30
    s_mov_b32 exec_hi, 0
    v_mov_b32 v31, {LDS_OOB}
    s_not_b64 exec, exec
    v_mov_b32 v30, {LDS_OOB}
    s_mov_b64 exec, -1
    """)
    a("v_mov_b32 v84, 0x3f803f80")
    a(f"""
    s_lshl_b32 s{s_o[2]}, s{s_cg}, 1
    s_lshr_b32 s{s_t0}, s{s_wj}, 1
    s_add_u32 s{s_o[2]}, s{s_o[2]}, s{s_t0}
    s_lshl_b32 s{s_fl}, s{s_o[2]}, 4
    s_add_u32 s{s_fl}, s{s_fl}, s{s_rb}
    s_lshl_b32 s{s_fl}, s{s_fl}, 1
    s_and_b32 s{s_t0}, s{s_wj}, 1
    s_add_u32 s{s_fl}, s{s_fl}, s{s_t0}
    s_mov_b32 s{s_c}, 0
    s_mov_b32 s{s_ring}, 0
    s_mov_b32 s{s_wstep}, {STG}
    s_waitcnt lgkmcnt(0)
    s_add_u32 s{s_tag}, s{s_tag}, 1
    s_cmp_ge_u32 s{s_wj}, s{s_hook}
    s_cbranch_scc1 {L('st_m')}
    v_mov_b32 v{AC}, 0
    v_mov_b32 v{AC + 2}, 0
    v_mov_b32 v{AC + 1}, s{s_tag}
    v_mov_b32 v{AC + 3}, s{s_tag}
    """)
    for q in range(5):
        a(f"s_waitcnt vmcnt({4 - q})")
        for r in range(SD + 4 * q, SD + 4 * q + 4):
            a(f"v_dot2c_f32_bf16 v{AC}, v{r}, v84\nv_dot2c_f32_bf16 v{AC + 2}, v{r}, v{r}")
    a("s_nop 1")
    for sh in (8, 4, 2, 1):
        a(f"""
        s_nop 0
        v_add_f32_dpp v{AC}, v{AC}, v{AC} row_ror:{sh} row_mask:0xf bank_mask:0xf
        v_add_f32_dpp v{AC + 2}, v{AC + 2}, v{AC + 2} row_ror:{sh} row_mask:0xf bank_mask:0xf
        """)
    a(f"""
    v_mul_f32 v{AC}, {f32(-1.0 / D)}, v{AC}
    v_mul_f32 v{AC + 2}, {f32(1.0 / D)}, v{AC + 2}
    v_fma_f32 v{AC + 2}, -v{AC}, v{AC}, v{AC + 2}
    v_max_f32 v{AC + 2}, 0, v{AC + 2}
    v_add_f32 v{AC + 2}, {f32(1e-5)}, v{AC + 2}
    v_rsq_f32 v{AC + 2}, v{AC + 2}
    s_lshl_b32 s{s_t0}, s{s_wj}, 6
    s_add_u32 s{s_t0}, s{s_t0}, {L_RP}
    v_add_u32 v{T[2]}, s{s_t0}, v{SO}
    s_mov_b32 exec_lo, 0x00010001
    s_mov_b32 exec_hi, 0x00010001
    ds_write_b128 v{T[2]}, {vr(AC, 4)}
    s_mov_b64 exec, -1
    s_waitcnt lgkmcnt(0)
    {L('st_m')}:
    s_cmp_eq_u32 s{s_cg}, 15
    s_cbranch_scc1 {L('a_none')}
    """)
    stamp(a, prof, 1)
    a("s_barrier")
    stamp(a, prof, 2)
    a("\n".join(both(LW, 0, 0)))
    a(f"""
    s_cmp_ge_u32 s{s_cg}, 10
    s_waitcnt lgkmcnt(0)
    s_cbranch_scc0 {L('jN')}
    s_cmp_ge_u32 s{s_o[2]}, 27
    s_cbranch_scc1 {L('sV')}
    """)

    def lane_stats(dst, addr):
        for tt in range(4):
            a(f"ds_read2_b32 {vr(dst + 2 * tt, 2)}, v{addr} offset0:{16 * tt} offset1:{128 + 16 * tt}")

    def reg_stats(dst, addr, off):
        for i in range(4):
            a(f"ds_read_b128 {vr(dst + 4 * i, 4)}, v{addr} offset:{off + 64 * i}")

    def centre(cs, nr, tt, prs):
        for r, q in prs:
            a(f"v_pk_fma_f32 {vr(r, 2)}, {vr(cs + q, 2)}, {vr(nr + 2 * tt, 2)}, {vr(r, 2)} op_sel:[0,0,0] op_sel_hi:[1,0,1]")

    E0, E1 = 224, 240
    F0, F1, F2 = 96, 112, 128

    def qk_math(tt, prs):
        centre(E0, E1, tt, prs)
        for r, q in prs:
            a(f"v_pk_mul_f32 {vr(r, 2)}, {vr(r, 2)}, {vr(E1 + 2 * tt, 2)} op_sel:[0,1] op_sel_hi:[1,1]")

    def ffn_math(tt, prs):
        centre(F0, F2, tt, prs)
        for r, q in prs:
            a(f"v_pk_fma_f32 {vr(r, 2)}, {vr(r, 2)}, {vr(F2 + 2 * tt, 2)}, {vr(F1 + q, 2)} op_sel:[0,1,0] op_sel_hi:[1,1,1]")
        for r, q in prs:
            a(f"v_max_f32 v{r}, 0, v{r}\nv_max_f32 v{r + 1}, 0, v{r + 1}")
        for r, q in prs:
            a(f"v_pk_mul_f32 {vr(r, 2)}, {vr(r, 2)}, {vr(r, 2)}")

    joint("jV", True)
    single("sV", LW, GA, True, True, 10)
    CV = 80
    a(f"ds_read2_b32 {vr(CV, 2)}, v{eL} offset0:0 offset1:16\nds_read2_b32 {vr(CV + 2, 2)}, v{eL} offset0:32 offset1:48")
    reg_stats(E0, eR, 0)
    reg_stats(E1, eR, 512)
    a(f"""
    s_and_b32 s{s_t1}, s{s_wj}, 1
    s_lshl_b32 s{s_t0}, s{s_rb}, 1
    s_add_u32 s{s_t0}, s{s_t0}, s{s_t1}
    s_mul_i32 s{s_o[0]}, s{s_t0}, 81920
    s_add_u32 s{s_o[0]}, s{s_o[0]}, {WS_V}
    s_add_u32 s{s_o[1]}, s{s_o[0]}, 40960
    s_waitcnt lgkmcnt(0)
    """)
    a("\n".join(wreads(LF, 0, 0)))
    stamp(a, prof, 3)
    for kt in range(2):
        for ci in range(4):
            ob = 88 + 4 * (ci & 1)
            prs = [(gacc(tt, ci) + i, 4 * tt + i) for tt in (2 * kt, 2 * kt + 1) for i in (0, 2)]
            for r, q in prs:
                a(f"v_pk_fma_f32 {vr(r, 2)}, {vr(E0 + q, 2)}, {vr(CV + (ci & 2), 2)}, {vr(r, 2)} op_sel:[0,{ci & 1},0] op_sel_hi:[1,{ci & 1},1]")
            for r, q in prs:
                a(f"v_pk_mul_f32 {vr(r, 2)}, {vr(r, 2)}, {vr(E1 + q, 2)}")
            for p in range(4):
                a(f"v_cvt_pk_bf16_f32 v{ob + p}, v{prs[p][0]}, v{prs[p][0] + 1}")
            a(put_piece(ob, eS, kt, ci))
    a(f"""
    s_cmp_ge_u32 s{s_o[2]}, 27
    s_cbranch_scc0 {L('a_done')}
    s_barrier
    s_waitcnt vmcnt(0) lgkmcnt(0)
    """)
    set_flag(WS_FA)
    a(f"""
    s_barrier
    {L('a_none')}:
    s_mov_b32 s{s_o[0]}, {WS_TOP}
    s_mov_b32 s{s_o[1]}, {WS_TOP}
    s_branch {L('a_go')}
    """)
    joint("jN", False)
    single("sN", LW, GA, False, True, 10)
    reg_stats(E0, eR, L_CSA - L_NM)
    lane_stats(E1, hL)
    a(f"""
    s_lshl_b32 s{s_o[0]}, s{s_o[2]}, 18
    s_add_u32 s{s_o[1]}, s{s_o[0]}, {4 * CH}
    s_cmp_lt_u32 s{s_cg}, 5
    s_cselect_b32 s{s_t0}, {QSCALE}, 1.0
    s_waitcnt lgkmcnt(0)
    """)
    a("\n".join(wreads(LF, 0, 0)))
    stamp(a, prof, 3)
    for tt in range(4):
        a(f"v_mul_f32 v{E1 + 2 * tt + 1}, s{s_t0}, v{E1 + 2 * tt + 1}")
    pack_tiles(GA, qk_math, lambda cp, tt: 248 + 4 * cp, eS)
    a(f"{L('a_done')}:")
    stamp(a, prof, 4)
    a("s_waitcnt lgkmcnt(0)\ns_barrier")
    reg_stats(F0, hR, L_CSB - L_NM)
    reg_stats(F1, hR, L_BI - L_NM)
    lane_stats(F2, hL)
    if cfg["flag"] == -2:
        a("s_waitcnt vmcnt(0)")
        stamp(a, prof, 14)
    a("s_waitcnt lgkmcnt(3)")
    single("sF", LF, GB, False, False, 13)
    stamp(a, prof, 12)

    def hand_over(tt):
        if tt == max(cfg["flag"], -1):
            a("s_waitcnt vmcnt(0)")
            set_flag(WS_FA)
            stamp(a, prof, 5)
            a("s_barrier")

    hand_over(-1)

    pack_tiles(GB, ffn_math, lambda cp, tt: PH + 16 * cp + 4 * tt, between=hand_over)
    a(f"""
    s_add_u32 s{s_o[0]}, s{s_o[2]}, 20
    s_lshl_b32 s{s_o[0]}, s{s_o[0]}, 18
    s_add_u32 s{s_o[1]}, s{s_o[0]}, {4 * CH}
    {L('a_go')}:
    s_setprio 1
    s_mov_b32 s{s_c}, 0
    """)
    zero(SS[1], 16 + 32 + 8)
    stamp(a, prof, 13)
    a("s_barrier")
    stamp(a, prof, 6)
    for ab in range(2):
        a(f"ds_read_b128 {vr(Q1[ab], 4)}, v{AQ} offset:{L_Q + 1024 * ab}")
        for par in range(2):
            a(f"ds_read_b64 {vr(Q2[ab][par], 2)}, v{30 + par} offset:{L_Q + 2048 + 512 * ab}")

    def rdK1(t):
        return f"ds_read_b128 {vr(K1[t & 1], 4)}, v{AK} offset:{(t & 7) * 1024}"

    def rdK2(p):
        return f"ds_read_b64 {vr(K2[p & 1], 2)}, v{AR} offset:{OFF_R + (p & 3) * 1024}"

    def rdV(j, t):
        return f"ds_read_b128 {vr((V0, V1)[j][t & 1], 4)}, v{AV} offset:{OFF_V + ((t & 7) * 2 + j) * 656}"

    def qk1(dst, ab, t, c):
        return f"v_mfma_f32_32x32x16_bf16 {vr(dst, 16)}, {vr(K1[t & 1], 4)}, {vr(Q1[ab], 4)}, {c}"

    def qk2(dst, ab, t):
        return f"v_mfma_f32_32x32x8_bf16 {vr(dst, 16)}, {vr(K2[(t >> 1) & 1], 2)}, {vr(Q2[ab][t & 1], 2)}, {vr(dst, 16)}"

    def pv(ab, j, t):
        return f"v_smfmac_f32_32x32x32_bf16 {vr(OO[ab], 16)}, {vr((V0, V1)[j][t & 1], 4)}, {vr(SS[ab] + 8 * j, 8)}, v{IDX}"

    def row_max(dst, bufs):
        regs = [b + i for b in bufs for i in range(16)]
        a(f"v_max3_f32 v{dst}, v{regs[0]}, v{regs[1]}, v{regs[2]}")
        rest = regs[3:]
        while len(rest) >= 2:
            a(f"v_max3_f32 v{dst}, v{dst}, v{rest[0]}, v{rest[1]}")
            rest = rest[2:]
        if rest:
            a(f"v_max_f32 v{dst}, v{dst}, v{rest[0]}")

    def set_shift(ab, shift):
        m = MX[ab]
        a(f"""
        v_mov_b32 v{T[2]}, v{m}
        s_nop 1
        v_permlane32_swap_b32 v{m}, v{T[2]}
        v_max_f32 v{m}, v{m}, v{T[2]}
        v_sub_f32 v{CM[ab]}, {f32(-shift) if shift else 0}, v{m}
        v_mov_b32 v{CM[ab] + 1}, v{CM[ab]}
        """)
        for i in range(2, 16, 2):
            a(f"v_mov_b64 {vr(CM[ab] + i, 2)}, {vr(CM[ab], 2)}")

    a("\n".join([rdK1(0), rdK2(0), rdK1(1), rdV(0, 0), rdV(1, 0)]))
    a("s_waitcnt lgkmcnt(0)" if prof else "s_waitcnt lgkmcnt(2)")
    est = {(0, 0): SS[0], (0, 1): CM[0], (1, 0): TS, (1, 1): CM[1]}
    for ab in range(2):
        for t in range(2):
            a(qk1(est[ab, t], ab, t, 0))
            a(put_piece(PH + 4 * (2 * ab + t), hS, (2 * ab + t) >> 2, (2 * ab + t) & 3))
            a(qk2(est[ab, t], ab, t))
    a("s_nop 7")
    row_max(MX[0], [SS[0], CM[0]])
    a(put_piece(PH + 4 * (4), hS, (4) >> 2, (4) & 3))
    set_shift(0, SHIFT)
    a("s_nop 1")
    a(qk1(SS[0], 0, 0, vr(CM[0], 16)))
    a(put_piece(PH + 4 * (5), hS, (5) >> 2, (5) & 3))
    a(qk2(SS[0], 0, 0))
    row_max(MX[1], [TS, CM[1]])
    a(put_piece(PH + 4 * (6), hS, (6) >> 2, (6) & 3))
    set_shift(1, SHIFT)
    a(put_piece(PH + 4 * (7), hS, (7) >> 2, (7) & 3))
    a("s_waitcnt lgkmcnt(0)")

    def slot_events(ab, t):
        o = 1 - ab
        tp = t - 1 if ab == 0 else t
        tn = t if ab == 0 else t + 1
        e = [("i", f"v_exp_f32 v{SS[ab] + i}, v{SS[ab] + i}") for i in range(16)]
        ev = []
        if ab == 0 and t % 8 == 7:
            ev += [("i", f"v_add_u32 v{AV}, s{s_slot}, v{AV0}")]
        ev += e[0:2]
        ev += [("use", ("V1", tp)), ("i", pv(o, 1, tp)), ("wait",)]
        if ab == 1 and t % 8 == 5:
            ev += [("i", "s_waitcnt vmcnt(0)")]
        if ab == 0 and t % 8 == 6:
            ev += [("i", "s_barrier")]
        if ab == 0 and t % 8 == 4:
            ev += [("i", f"s_add_u32 s{s_slot}, s{s_slot}, {SLOT}")]
        if ab == 1 and t % 8 == 4:
            ev += [("i", f"s_cmp_eq_u32 s{s_slot}, {3 * SLOT}")]
        if ab == 1 and t % 8 == 6:
            ev += [("i", f"s_add_u32 s{s_c}, s{s_c}, 1")]
        if ab == 0:
            ev += [("rd", rdV(1, t + 1), ("V1", t + 1))]
        ev += e[2:5]
        if ab == 0 and t % 8 == 6:
            ev += [("i", f"v_add_u32 v{AK}, s{s_slot}, v{AK0}"), ("i", f"v_add_u32 v{AR}, s{s_slot}, v{AR0}")]
        ev += [("use", ("K1", tn)), ("i", qk1(SS[o], o, tn, vr(CM[o], 16)))]
        if ab == 0:
            ev += [("rd", rdK1(t + 2), ("K1", t + 2))]
        else:
            ev += [("rd", rdV(0, t + 1), ("V0", t + 1))]
        ev += e[5:8]
        ev += [("use", ("K2", tn >> 1)), ("i", qk2(SS[o], o, tn))]
        ev += e[8:12]
        ev += [("use", ("V0", t)), ("i", pv(ab, 0, t))]
        if ab == 1 and t % 8 == 4:
            ev += [("i", f"s_cselect_b32 s{s_slot}, 0, s{s_slot}")]
        if ab == 1 and t % 8 == 7:
            ev += [("i", f"s_cmp_lt_u32 s{s_c}, 8")]
        if ab == 1 and t % 2 == 0:
            ev += [("rd", rdK2(t // 2 + 1), ("K2", t // 2 + 1))]
        ev += e[12:16]
        return ev

    evs = []
    for t in range(24):
        for ab in range(2):
            evs += [(t, x) for x in slot_events(ab, t)]
    issue_idx = {}
    n = 0
    for t, x in evs:
        if x[0] == "rd":
            issue_idx[x[2]] = n
            n += 1
    a(f".p2align 3\n{L('aloop')}:")
    n = 0
    for k, (t, x) in enumerate(evs):
        emit = 8 <= t < 16
        if x[0] == "rd":
            n += 1
            if emit:
                a(x[1])
        elif x[0] == "i":
            if emit:
                a(x[1])
        elif x[0] == "wait" and emit:
            need = -1
            for t2, y in evs[k + 1:]:
                if y[0] == "wait":
                    break
                if y[0] == "use":
                    assert issue_idx[y[1]] < n, (t, y)
                    need = max(need, issue_idx[y[1]])
            a(f"s_waitcnt lgkmcnt({n - 1 - need})")
    if cfg.get("trace"):
        stamp(a, prof, 23)
        a("s_waitcnt lgkmcnt(0)")
    a(f"s_cbranch_scc1 {L('aloop')}")
    a("s_nop 1")
    a(pv(1, 1, 7))
    stamp(a, prof, 7)

    a("s_waitcnt lgkmcnt(0)\ns_barrier\ns_nop 7\ns_nop 2")
    a(f"s_mov_b32 s{s_t0}, {f32(2.0 ** 126)}\ns_mov_b32 s{s_t1}, {f32(2.0 ** -95)}")
    for ab in range(2):
        o = OO[ab]
        a(f"v_max3_f32 v{T[2 + ab]}, |v{o}|, |v{o + 1}|, |v{o + 2}|")
        for i in (3, 5):
            a(f"v_max3_f32 v{T[2 + ab]}, v{T[2 + ab]}, |v{o + i}|, |v{o + i + 1}|")
        a(f"v_max_f32 v{T[2 + ab]}, v{T[2 + ab]}, |v{o + 7}|")
        a(f"v_add_f32 v{T[4 + ab]}, |v{o + 8}|, |v{o + 9}|")
        for i in list(range(8)) + [10, 11, 12]:
            a(f"v_add_f32 v{T[4 + ab]}, v{T[4 + ab]}, |v{o + i}|")
    a(f"""
    v_min_f32 v{T[2]}, v{T[2]}, v{T[3]}
    v_add_f32 v{T[4]}, v{T[4]}, v{T[5]}
    v_cmp_le_f32 vcc, s{s_t1}, v{T[2]}
    v_cmp_gt_f32 s[{s_t2}:{s_t2 + 1}], s{s_t0}, v{T[4]}
    s_nop 1
    s_and_b64 vcc, vcc, s[{s_t2}:{s_t2 + 1}]
    s_cmp_eq_u64 vcc, exec
    """)
    a(f"s_branch {L('slow')}" if force_fallback else f"s_cbranch_scc0 {L('slow')}")

    a(f"{L('norm')}:")
    a(f"s_add_u32 s{s_t0}, s{s_cm}, {C_O * CH}\ns_add_u32 s{s_t1}, s{s_cr}, {C_O * CH}")
    for ab in range(2):
        o = OO[ab]
        a(f"v_rcp_f32 v{o + 12}, v{o + 12}\ns_nop 0")
        for p in range(6):
            a(f"v_pk_mul_f32 {vr(o + 2 * p, 2)}, {vr(o + 2 * p, 2)}, {vr(o + 12, 2)} op_sel:[0,0] op_sel_hi:[1,0]")
        for p in range(6):
            a(f"v_cvt_pk_bf16_f32 v{SS[ab] + p}, v{o + 2 * p}, v{o + 2 * p + 1}")
        for p in (1, 3, 5):
            a(f"v_min_u32 v{SS[ab] + p}, -2, v{SS[ab] + p}")
        a(f"buffer_store_dwordx4 {vr(SS[ab], 4)}, v{VQ}, {WSD}, s{s_t0} offen offset:{512 * ab} sc1")
    a("s_mov_b32 exec_hi, 0")
    for ab in range(2):
        a(f"buffer_store_dwordx2 {vr(SS[ab] + 4, 2)}, v{VQR}, {WSD}, s{s_t1} offen offset:{512 * ab} sc1")
    a("s_mov_b64 exec, -1\ns_barrier")
    stamp(a, prof, 8)

    a(f"s_branch {L('dump')}" if prof else "s_endpgm")

    a(f"{L('slow')}:")
    GR, GV = AR, AV
    a(f"v_and_b32 v{T[0]}, 31, v{vL}\nv_lshrrev_b32 v{T[1]}, 5, v{vL}")
    key_perm(T[2], T[0], T[3], T[4])
    a(f"""
    s_lshl_b32 s{s_t0}, s{s_par}, 3
    s_add_u32 s{s_t0}, s{s_t0}, s{s_cr}
    v_lshl_add_u32 v{GR}, v{T[2]}, 4, s{s_t0}
    v_lshl_add_u32 v{vK}, v{T[2]}, 4, s{s_cm}
    v_lshl_add_u32 v{vK}, v{T[1]}, 15, v{vK}
    """)
    v_feature(T[2], T[0], T[3], T[4])
    a(f"""
    s_mul_i32 s{s_t0}, s{s_head}, 320
    v_mul_u32_u24 v{T[4]}, 10240, v{T[1]}
    v_lshl_add_u32 v{T[2]}, v{T[2]}, 4, v{T[4]}
    v_add_u32 v{GV}, s{s_t0}, v{T[2]}
    v_mov_b32 v{MX[0]}, 0xff800000
    v_mov_b32 v{MX[1]}, 0xff800000
    s_mov_b32 s{s_ko}, {C_K * CH}
    {L('slow1')}:
    buffer_load_dwordx4 {vr(K1[0], 4)}, v{vK}, {WSD}, s{s_ko} offen sc1
    buffer_load_dwordx2 {vr(K2[0], 2)}, v{GR}, {WSD}, s{s_ko} offen sc1
    s_add_u32 s{s_ko}, s{s_ko}, 512
    s_waitcnt vmcnt(0)
    """)
    for ab in range(2):
        a(qk1(SS[ab], ab, 0, 0))
        a(qk2(SS[ab], ab, 0))
    a("s_nop 7\ns_nop 3")
    for ab in range(2):
        for i in range(0, 16, 2):
            a(f"v_max3_f32 v{MX[ab]}, v{MX[ab]}, v{SS[ab] + i}, v{SS[ab] + i + 1}")
    a(f"s_cmp_lt_u32 s{s_ko}, {(C_K + 1) * CH}\ns_cbranch_scc1 {L('slow1')}")
    for ab in range(2):
        set_shift(ab, 0)
    zero(OO[0], 32)
    for r in range(4):
        a(f"v_mov_b32 v{V0[0] + r}, 0x3f803f80\nv_mov_b32 v{V1[0] + r}, 0x3f803f80")
    a(f"""
    s_mov_b32 s{s_ko}, {C_K * CH}
    s_mov_b32 s{s_vo}, {WS_V}
    {L('slow2')}:
    buffer_load_dwordx4 {vr(K1[0], 4)}, v{vK}, {WSD}, s{s_ko} offen sc1
    buffer_load_dwordx2 {vr(K2[0], 2)}, v{GR}, {WSD}, s{s_ko} offen sc1
    s_mov_b32 exec_lo, 0xfffff
    s_mov_b32 exec_hi, 0xfffff
    buffer_load_dwordx4 {vr(V0[0], 4)}, v{GV}, {WSD}, s{s_vo} offen sc1
    s_add_u32 s{s_vo}, s{s_vo}, 20480
    buffer_load_dwordx4 {vr(V1[0], 4)}, v{GV}, {WSD}, s{s_vo} offen sc1
    s_mov_b64 exec, -1
    s_add_u32 s{s_vo}, s{s_vo}, 20480
    s_add_u32 s{s_ko}, s{s_ko}, 512
    s_waitcnt vmcnt(0)
    """)
    for ab in range(2):
        a(qk1(SS[ab], ab, 0, vr(CM[ab], 16)))
        a(qk2(SS[ab], ab, 0))
    a("s_nop 7\ns_nop 3")
    for ab in range(2):
        for i in range(16):
            a(f"v_exp_f32 v{SS[ab] + i}, v{SS[ab] + i}")
    a("s_nop 1")
    for ab in range(2):
        a(pv(ab, 0, 0))
        a(pv(ab, 1, 0))
    a(f"""
    s_cmp_lt_u32 s{s_ko}, {(C_K + 1) * CH}
    s_cbranch_scc1 {L('slow2')}
    s_nop 7
    s_nop 3
    s_branch {L('norm')}
    """)

    a(f"""
    {L('near')}:
    s_lshl_b32 s{s_t0}, s{s_rb}, 3
    s_add_u32 s{s_t0}, s{s_t0}, s{s_w}
    s_mul_i32 s{s_t1}, s{s_t0}, {135 * 128}
    s_mul_i32 s{s_t0}, s{s_t0}, {50 * 128}
    v_lshlrev_b32 v{T[2]}, 7, v{vL}
    s_mov_b64 s[{sA}:{sA + 1}], s[16:17]
    s_mov_b32 s{sA + 2}, {F * D * 2}
    s_mov_b32 exec_hi, 0x1fff
    """)
    for i in range(3):
        a(f"buffer_load_dword v{88 + i}, v{T[2]}, s[{sA}:{sA + 3}], s{s_t1} offen\ns_add_u32 s{s_t1}, s{s_t1}, {45 * 128}")
    a(f"""
    s_mov_b64 s[{sA}:{sA + 1}], s[8:9]
    s_mov_b32 s{sA + 2}, {D * D * 2}
    s_mov_b32 exec_hi, 0x3ffff
    buffer_load_dword v91, v{T[2]}, s[{sA}:{sA + 3}], s{s_t0} offen
    s_mov_b32 exec_hi, -1
    s_branch {L('p_go')}
    """)

    g0_lines, a.lines = a.lines, []
    MK, G = 84, 96
    VX, VW, VG = [11, 12, 13, 14], [15, 16, 17, 18], [19, 20, 21, 22]
    gR, gL, gA, gB = 24, 25, 26, 27
    fC, mQ, mQR, mQD, fB, FK, FO, one, pH, pO = range(246, 256)

    def w_addr(VF, stride):
        a(f"""
        v_lshrrev_b32 v{T[0]}, 4, v{vL}
        v_lshlrev_b32 v{T[1]}, 1, v{T[0]}
        v_xor_b32 v{T[1]}, v{T[1]}, v{vL}
        v_and_b32 v{T[1]}, 15, v{T[1]}
        s_lshl_b32 s{s_t1}, s{s_cg}, 8
        s_mul_i32 s{s_t0}, s{s_wj}, {16 * stride}
        s_add_u32 s{s_t1}, s{s_t1}, s{s_t0}
        v_mul_u32_u24 v{T[0]}, {stride}, v{T[0]}
        v_add_u32 v{T[0]}, s{s_t1}, v{T[0]}
        v_lshl_add_u32 v{VF[0]}, v{T[1]}, 4, v{T[0]}
        v_xor_b32 v{T[1]}, 8, v{T[1]}
        v_lshl_add_u32 v{VF[2]}, v{T[1]}, 4, v{T[0]}
        v_add_u32 v{VF[1]}, {4 * stride - 1024}, v{VF[0]}
        v_add_u32 v{VF[3]}, {3 * (4 * stride - 1024)}, v{VF[2]}
        v_add_u32 v{VF[2]}, {2 * (4 * stride - 1024)}, v{VF[2]}
        """)

    TF, TA, TV = 32, [52, 53], [54, 55, 56, 57, 58]
    has_block = f"s_cmp_lt_u32 s{s_tt}, 74"

    def block_addr():
        a(f"""
        s_and_b32 s{s_tt}, s2, 31
        s_lshl_b32 s{s_t0}, s{s_wj}, 5
        s_add_u32 s{s_tt}, s{s_tt}, s{s_t0}
        s_mul_i32 s{s_c}, s{s_wj}, 5120
        s_add_u32 s{s_c}, s{s_c}, {STG + LW}
        """)
        for i in range(5):
            a(f"""
            v_add_u32 v{T[2]}, {64 * i}, v{vL}
            v_mul_u32_u24 v{T[3]}, 6554, v{T[2]}
            v_lshrrev_b32 v{T[3]}, 16, v{T[3]}
            v_mul_u32_u24 v{T[3]}, {1280 - 160}, v{T[3]}
            v_lshl_add_u32 v{TV[i]}, v{T[2]}, 4, v{T[3]}
            """)
        a(f"""
        v_lshrrev_b32 v{T[2]}, 4, v{vL}
        v_bfe_u32 v{T[3]}, v{vL}, 2, 2
        v_lshl_add_u32 v{T[2]}, v{T[2]}, 3, v{T[3]}
        v_mul_u32_u24 v{T[2]}, 160, v{T[2]}
        v_add_u32 v{T[2]}, s{s_c}, v{T[2]}
        v_and_b32 v{T[3]}, 3, v{vL}
        v_lshl_add_u32 v{TA[0]}, v{T[3]}, 4, v{T[2]}
        v_lshl_add_u32 v{TA[1]}, v{T[3]}, 3, v{T[2]}
        """)

    def block_fetch():
        a(f"""
        s_cmp_lt_u32 s{s_tt}, 54
        s_cselect_b64 s[{sA}:{sA + 1}], s[16:17], s[8:9]
        s_mov_b32 s{sA + 2}, {F * D * 2}
        s_cselect_b32 s{sA + 2}, s{sA + 2}, {D * D * 2}
        s_cselect_b32 s{s_t1}, 0, 54
        s_sub_u32 s{s_t0}, s{s_tt}, s{s_t1}
        s_mul_i32 s{s_t0}, s{s_t0}, {32 * 1280}
        s_mul_i32 s{s_t1}, s{s_qb}, 160
        s_add_u32 s{s_t0}, s{s_t0}, s{s_t1}
        """)
        for i in range(5):
            a(f"s_add_u32 m0, s{s_c}, {i * 1024}\ns_nop 0")
            a(f"buffer_load_dwordx4 v{TV[i]}, s[{sA}:{sA + 3}], s{s_t0} offen lds")

    def block_turn():
        a("s_waitcnt vmcnt(0)")
        for c in range(5):
            va, off = (TA[0], 64 * (c >> 1) + 8 * (c & 1)) if c < 4 else (TA[1], 128)
            for h in range(2):
                a(f"ds_read_b64_tr_b16 {vr(TF + 4 * c + 2 * h, 2)}, v{va} offset:{off + 640 * h}")
        a("s_waitcnt lgkmcnt(0)")

    def block_put():
        a(f"""
        s_mul_i32 s{s_t0}, s{s_tt}, {KS_ROW}
        s_mul_i32 s{s_t1}, s{s_qb}, 5120
        s_add_u32 s{s_t0}, s{s_t0}, s{s_t1}
        s_add_u32 s{s_t0}, s{s_t0}, {WS_WT}
        s_add_u32 s{s_t1}, s{s_t0}, 4096
        v_lshlrev_b32 v{T[2]}, 4, v{vL}
        """)
        for c in range(5):
            a(f"buffer_store_dwordx4 {vr(TF + 4 * c, 4)}, v{T[2]}, {WSD}, s{(s_t0, s_t1)[c >> 2]} offen offset:{1024 * (c & 3)} sc1")

    def later_addr():
        attn_ids()
        block_addr()
        kv_addr(0)
        ones_addr(one, 0, 3)
        a(f"v_and_b32 v{T[0]}, 1, v{vL}")
        head_unit(T[1], T[0])
        a(f"""
        v_bfe_u32 v{T[0]}, v{vL}, 1, 2
        v_min_u32 v{T[0]}, 2, v{T[0]}
        v_mad_u32_u24 v{T[1]}, v{T[0]}, 10, v{T[1]}
        s_lshl_b32 s{s_t0}, s{s_qb}, 2
        s_add_u32 s{s_t0}, s{s_t0}, s{s_wj}
        """)
        flag_of_tile(FO, f"s{s_t0}", T[1])
        a(f"v_and_b32 v{T[0]}, 1, v{vL}")
        head_unit(T[1], T[0])
        a(f"""
        v_bfe_u32 v{T[0]}, v{vL}, 1, 1
        v_mad_u32_u24 v{T[1]}, v{T[0]}, 10, v{T[1]}
        v_add_u32 v{T[1]}, 10, v{T[1]}
        v_and_b32 v{T[0]}, 28, v{vL}
        v_add_u32 v{T[0]}, s{s_wj}, v{T[0]}
        """)
        flag_of_tile(FK, f"v{T[0]}", T[1])
        q_addr(mQ, mQR)
        a(f"""
        v_lshl_add_u32 v{mQD}, v{vL}, 4, s{s_t0}
        s_lshl_b32 s{s_t0}, s{s_head}, 2
        s_add_u32 s{s_t0}, s{s_t0}, s{s_wj}
        v_and_b32 v{T[2]}, 15, v{vL}
        v_lshl_add_u32 v{T[2]}, s{s_t0}, 4, v{T[2]}
        v_lshrrev_b32 v{T[3]}, 4, v{vL}
        v_lshlrev_b32 v{pH}, 15, v{T[3]}
        v_lshl_add_u32 v{pH}, v{T[2]}, 4, v{pH}
        v_mul_u32_u24 v{pO}, 1280, v{T[2]}
        """)
        a(f"""
        s_bfe_u32 s{s_t0}, s{s_head}, 0x30001
        s_lshl_b32 s{s_t0}, s{s_t0}, 3
        s_lshr_b32 s{s_t1}, s{s_head}, 4
        s_add_u32 s{s_t0}, s{s_t0}, s{s_t1}
        v_and_b32 v{T[3]}, 3, v{vL}
        v_bfe_u32 v{T[4]}, v{vL}, 2, 2
        v_lshl_add_u32 v{T[3]}, v{T[3]}, 5, v{T[4]}
        v_lshl_add_u32 v{fC}, v{T[3]}, 1, s{s_t0}
        v_lshlrev_b32 v{fC}, 7, v{fC}
        s_lshr_b32 s{s_t0}, s{s_head}, 2
        v_lshl_add_u32 v{fB}, s{s_qb}, 5, v{T[0]}
        s_mov_b32 exec_lo, 0
        v_lshl_add_u32 v{fB}, s{s_t0}, 5, v{T[0]}
        s_mov_b32 exec_lo, -1
        v_lshlrev_b32 v{fB}, 7, v{fB}
        """)

    def boundary(wait=None):
        if wait is not None:
            a(f"s_waitcnt vmcnt({wait})")
        if cfg.get("trace", 0) > 1:
            stamp(a, prof, 21)
        a("s_barrier")

    def ask_tag():
        srd(a, sWS, 22, WS_TOP)
        load_tag()

    def take_tag():
        a(f"s_waitcnt lgkmcnt(0)\ns_add_u32 s{s_tag}, s{s_tag}, 1")

    def split(ops, n):
        k = -(-len(ops) // n)
        return [ops[i * k:(i + 1) * k] for i in range(n)]

    def feed(c, which="xwf", mix=()):
        mix = list(mix)
        per = -(-len(mix) // max(4 * len(which), 1))
        for key, part, va, sd, step in (("x", LX, VX, sX, 128), ("w", LW, VW, sW, 64 * 3840), ("f", LF, VG, sB, 64 * 3456)):
            if key in which:
                half = {"x": s_xo, "w": s_wstep, "f": s_ho}[key]
                a(f"s_add_u32 m0, s{s_ring}, {(c % 3) * STG + part}")
                a(f"s_add_u32 s{s_wo}, s{half}, {c * step}" if c < 5 else f"s_sub_u32 s{s_wo}, {c * step}, s{half}")
                for i in range(4):
                    a(f"buffer_load_dwordx4 v{va[i]}, s[{sd}:{sd + 3}], s{s_wo} offen offset:{1024 * i} lds")
                    a("\n".join(mix[:per]))
                    mix = mix[per:]

    def only(name, cond, fn):
        a(f"{cond}\ns_cbranch_scc0 {L(name)}")
        fn()
        a(f"{L(name)}:")

    feeding = f"s_cmp_lt_u32 s{s_cg}, 15"
    a(f"""
    s_lshl_b32 s{s_ring}, s{s_wj}, 12
    s_mul_i32 s{s_xo}, s{s_t3}, {5 * 128}
    s_mul_i32 s{s_wstep}, s{s_t3}, {5 * 64 * 3840}
    s_mul_i32 s{s_ho}, s{s_t3}, {5 * 64 * 3456}
    v_lshrrev_b32 v{T[2]}, 4, v{vL}
    v_xor_b32 v{T[2]}, v{T[2]}, v{T[1]}
    s_lshl_b32 s{s_t1}, s{s_rb}, 2
    s_add_u32 s{s_t1}, s{s_t1}, s{s_wj}
    s_mul_i32 s{s_t1}, s{s_t1}, {32 * 1280}
    v_mul_u32_u24 v{T[3]}, 1280, v{T[0]}
    v_add_u32 v{T[3]}, s{s_t1}, v{T[3]}
    v_lshl_add_u32 v{VX[0]}, v{T[2]}, 4, v{T[3]}
    v_xor_b32 v{T[2]}, 4, v{T[2]}
    v_lshl_add_u32 v{VX[1]}, v{T[2]}, 4, v{T[3]}
    v_add_u32 v{VX[2]}, {2 * (10240 - 1024)}, v{VX[0]}
    v_add_u32 v{VX[3]}, {3 * (10240 - 1024)}, v{VX[1]}
    v_add_u32 v{VX[1]}, {10240 - 1024}, v{VX[1]}
    v_and_b32 v{SO}, 48, v{vL}
    v_lshl_add_u32 v{SO}, v{T[1]}, 6, v{SO}
    """)
    srd(a, sX, 4, S * D * 2)

    def touch():
        a(f"""
        s_getpc_b64 s[{sA}:{sA + 1}]
        {L('pc')}:
        s_sub_u32 s{sA}, s{sA}, {L('pc')}-{label}
        s_subb_u32 s{sA + 1}, s{sA + 1}, 0
        s_mov_b32 s{sA + 2}, {L('end')}-{label}
        s_lshr_b32 s{s_t0}, s2, 3
        s_lshl_b32 s{s_t0}, s{s_t0}, 10
        v_lshlrev_b32 v{T[2]}, 7, v{vL}
        s_mov_b64 exec, 0xff
        buffer_load_dword v226, v{T[2]}, s[{sA}:{sA + 3}], s{s_t0} offen
        s_mov_b64 exec, -1
        """)

    def touch_x():
        a(f"""
        s_lshl_b32 s{s_t0}, s{s_rb}, 2
        s_add_u32 s{s_t0}, s{s_t0}, s{s_ocg}
        s_mul_i32 s{s_t0}, s{s_t0}, {32 * 1280}
        s_add_u32 s{s_t0}, s{s_t0}, s{s_xo}
        v_lshrrev_b32 v{T[2]}, 1, v{vL}
        v_mul_u32_u24 v{T[2]}, 1280, v{T[2]}
        v_and_b32 v{T[3]}, 1, v{vL}
        v_lshl_add_u32 v{T[2]}, v{T[3]}, 7, v{T[2]}
        buffer_load_dword v226, v{T[2]}, s[{sX}:{sX + 3}], s{s_t0} offen
        """)

    if cfg["touch"] & 1:
        only("tc", f"s_cmp_eq_u32 s{s_wj}, 0", touch)
    if cfg["touch"] & 2:
        only("tx", f"s_cmp_eq_u32 s{s_wj}, 1", touch_x)
    srd(a, sA, 14, F * 2)
    a(f"""
    s_lshl_b32 s{s_t2}, s{s_cg}, 8
    v_lshlrev_b32 v{T[2]}, 2, v{vL}
    buffer_load_dword v28, v{T[2]}, s[{sA}:{sA + 3}], s{s_t2} offen
    """)
    ask_tag()
    w_addr(VW, 3840)
    w_addr(VG, 3456)
    srd(a, sW, 6, D * 3 * D * 2)
    srd(a, sB, 12, D * F * 2)
    a(f"""
    s_cmp_lt_u32 s{s_cg}, 14
    s_cselect_b32 s{sB + 2}, s{sB + 2}, 0
    s_lshl_b32 s{s_o[1]}, s{s_o[1]}, 9
    s_add_u32 s{s_o[0]}, s{s_o[0]}, s{s_o[1]}
    s_add_u32 s{s_o[0]}, s{s_o[0]}, {WS_CP}
    s_and_b32 s{s_t1}, s{s_wj}, 1
    v_lshl_add_u32 v{gL}, s{s_t1}, 6, v{vL}
    s_lshl_b32 s{s_t3}, s{s_rb}, 11
    v_lshl_add_u32 v{gR}, v{gL}, 4, s{s_t3}
    s_lshl_b32 s{s_t2}, s{s_cg}, 6
    s_mul_i32 s{s_t1}, s{s_t1}, 960
    s_add_u32 s{s_t1}, s{s_t1}, s{s_t2}
    v_add_u32 v{gA}, s{s_t1}, v{vL}
    v_min_u32 v{gA}, 1823, v{gA}
    v_lshlrev_b32 v{gA}, 4, v{gA}
    s_mov_b32 s{s_spin}, {SPIN}
    v_lshrrev_b32 v23, 1, v{SO}
    v_add_u32 v23, {L_CP}, v23
    """)
    if cfg["early"]:
        later_addr()
    take_tag()
    stamp(a, prof, 44)

    def sums():
        for r in range(20):
            c = AC + 2 * (r & 3)
            if r < 4:
                a(f"v_lshlrev_b32 v{c}, 16, v{SD + r}\nv_and_b32 v{c + 1}, 0xffff0000, v{SD + r}")
            else:
                lo, hi = T[2 + 2 * (r & 1)], T[3 + 2 * (r & 1)]
                a(f"v_lshlrev_b32 v{lo}, 16, v{SD + r}\nv_and_b32 v{hi}, 0xffff0000, v{SD + r}\n"
                  f"v_add_f32 v{c}, v{c}, v{lo}\nv_add_f32 v{c + 1}, v{c + 1}, v{hi}")
        a(f"s_lshl_b32 s{s_t0}, s{s_wj}, 8\nv_add_u32 v{T[2]}, s{s_t0}, v23")
        for i in range(4):
            a(f"v_permlane32_swap_b32 v{AC + i}, v{AC + 4 + i}")
        for i in range(4):
            a(f"v_add_f32 v{AC + i}, v{AC + i}, v{AC + 4 + i}")
        a("s_nop 1")
        for i in range(2):
            a(f"v_permlane16_swap_b32 v{AC + i}, v{AC + 2 + i}")
        a(f"v_add_f32 v{AC}, v{AC}, v{AC + 2}\nv_add_f32 v{AC + 1}, v{AC + 1}, v{AC + 3}\ns_nop 1")
        for r in (AC, AC + 1):
            a(f"v_add_f32_dpp v{r}, v{r}, v{r} row_ror:8 row_mask:0xf bank_mask:0xf")
        a(f"ds_write_b64 v{T[2]}, {vr(AC, 2)}")

    def publish():
        for i in range(4):
            a(f"ds_read_b64 {vr(AC + 2 * i, 2)}, v23 offset:{256 * i}")
        a(f"""
        s_waitcnt lgkmcnt(0)
        v_add_f32 v{AC}, v{AC}, v{AC + 2}
        v_add_f32 v{AC + 2}, v{AC + 1}, v{AC + 3}
        v_add_f32 v{AC + 4}, v{AC + 4}, v{AC + 6}
        v_add_f32 v{AC + 5}, v{AC + 5}, v{AC + 7}
        v_add_f32 v{AC}, v{AC}, v{AC + 4}
        v_add_f32 v{AC + 2}, v{AC + 2}, v{AC + 5}
        v_mov_b32 v{AC + 1}, s{s_tag}
        v_mov_b32 v{AC + 3}, s{s_tag}
        s_mov_b32 exec_lo, 0x00ff00ff
        s_mov_b32 exec_hi, 0x00ff00ff
        buffer_store_dwordx4 {vr(AC, 4)}, v{SO}, {WSD}, s{s_o[0]} offen sc1
        s_mov_b64 exec, -1
        """)

    def publish_rows():
        a(f"""
        s_and_b32 s{s_t0}, s2, 1
        s_lshl_b32 s{s_t0}, s{s_t0}, 8
        s_and_b32 s{s_t1}, s2, 0xfe
        s_add_u32 s{s_t0}, s{s_t0}, s{s_t1}
        s_lshl_b32 s{s_t0}, s{s_t0}, 6
        s_add_u32 s{s_t0}, s{s_t0}, {WS_RS}
        v_lshlrev_b32 v{T[2]}, 4, v{vL}
        v_add_u32 v{T[3]}, {L_RP}, v{T[2]}
        v_bfe_u32 v{T[4]}, v{vL}, 3, 1
        v_mul_u32_u24 v{T[4]}, {4096 - 128}, v{T[4]}
        v_add_u32 v{T[2]}, v{T[2]}, v{T[4]}
        s_cmp_eq_u32 s{s_cg}, 14
        s_movk_i32 s{s_t1}, 0xff
        s_cselect_b32 exec_lo, 0xffff, s{s_t1}
        s_mov_b32 exec_hi, 0
        ds_read_b128 {vr(AC, 4)}, v{T[3]}
        s_waitcnt lgkmcnt(0)
        buffer_store_dwordx4 {vr(AC, 4)}, v{T[2]}, {WSD}, s{s_t0} offen sc1
        s_mov_b64 exec, -1
        """)

    def gather_loads():
        a(f"s_mov_b32 s{s_slot}, {WS_RS}\nbuffer_load_dwordx4 {vr(G + 16, 4)}, v{gR}, {WSD}, s{s_slot} offen sc1")
        a(f"s_mov_b32 s{s_slot}, {WS_CP}")
        for p in range(4):
            a(f"buffer_load_dwordx4 {vr(G + 4 * p, 4)}, v{gA}, {WSD}, s{s_slot} offen sc1")
            a(f"s_add_u32 s{s_slot}, s{s_slot}, {CP_ROW}")

    def gather_put():
        a(f"s_branch {L('ga_chk')}\n{L('ga')}:")
        gather_loads()
        a(f"s_sub_u32 s{s_spin}, s{s_spin}, 1\ns_waitcnt vmcnt(0)\n{L('ga_chk')}:")
        a(f"v_min_u32 v{T[3]}, v{G + 1}, v{G + 3}\nv_max_u32 v{T[4]}, v{G + 1}, v{G + 3}")
        for p in range(1, 5):
            b = G + 4 * p
            a(f"v_min3_u32 v{T[3]}, v{T[3]}, v{b + 1}, v{b + 3}\nv_max3_u32 v{T[4]}, v{T[4]}, v{b + 1}, v{b + 3}")
        retry("ga")
        a(f"v_add_f32 v{G + 1}, v{G + 2}, v{G + 6}\nv_add_f32 v{G}, v{G}, v{G + 4}")
        for p in range(2, 4):
            b = G + 4 * p
            a(f"v_add_f32 v{G}, v{G}, v{b}\nv_add_f32 v{G + 1}, v{G + 1}, v{b + 2}")
        a(f"""
        s_mov_b32 s{s_t0}, {L_NM}
        v_lshlrev_b32 v{G + 2}, 16, v28
        v_and_b32 v{G + 3}, 0xffff0000, v28
        v_lshl_add_u32 v{T[3]}, v{gL}, 2, s{s_t0}
        v_lshl_add_u32 v{T[4]}, v{gL}, 3, s{s_t0}
        v_lshl_add_u32 v{T[5]}, v{vL}, 3, s{s_t0}
        ds_write2_b32 v{T[3]}, v{G + 16}, v{G + 18} offset0:0 offset1:128
        ds_write_b64 v{T[4]}, {vr(G, 2)} offset:{L_CSA - L_NM}
        ds_write_b64 v{T[5]}, {vr(G + 2, 2)} offset:{L_BI - L_NM}
        s_waitcnt lgkmcnt(0)
        """)

    def mark_unwritten():
        a(f"""
        s_add_u32 s{s_ko}, s{s_cm}, {C_O * CH}
        s_add_u32 s{s_vo}, s{s_cr}, {C_O * CH}
        v_mov_b64 {vr(MK, 2)}, -1
        v_mov_b64 {vr(MK + 2, 2)}, -1
        buffer_store_dwordx4 {vr(MK, 4)}, v{mQ}, {WSD}, s{s_ko} offen sc1
        buffer_store_dwordx4 {vr(MK, 4)}, v{mQ}, {WSD}, s{s_ko} offen offset:512 sc1
        s_mov_b32 exec_hi, 0
        buffer_store_dwordx2 {vr(MK, 2)}, v{mQR}, {WSD}, s{s_vo} offen sc1
        buffer_store_dwordx2 {vr(MK, 2)}, v{mQR}, {WSD}, s{s_vo} offen offset:512 sc1
        s_mov_b32 exec_hi, -1
        """)

    a(f"{feeding}\ns_cbranch_scc1 {L('g1_on')}")
    if not cfg["early"]:
        later_addr()
    mark_unwritten()
    only("bf0", has_block, block_fetch)
    only("bt0", has_block, block_turn)
    a(f"s_branch {L('b_last')}\n{L('g1_on')}:")
    feed(0)
    stamp(a, prof, 43)
    pre = "xwf"[:cfg["pre"]]
    feed(1, pre)
    boundary(4 * len(pre))
    a(f"s_setprio {cfg['fprio']}")
    sm = capture(sums)
    k = len(sm) * (3 - len(pre)) // 3
    feed(1, "xwf"[len(pre):], sm[:k])
    feed(2, pre, sm[k:])
    only("pr", f"s_cmp_eq_u32 s{s_wj}, 2", publish_rows)
    a("s_waitcnt lgkmcnt(0)")
    late = [[]] + (split(capture(later_addr), 4) if not cfg["early"] else [[]] * 4)
    gath = f"s_cmp_lt_u32 s{s_wj}, 2"
    for c in range(10):
        if c - cfg["gat"] in (1, 2):
            a(f"{gath}\ns_cbranch_scc1 {L('bw' + str(c))}\ns_waitcnt vmcnt(12)\n{L('bw' + str(c))}:")
            boundary(17)
            assert c <= 5
        else:
            boundary({0: 4 * len(pre), 6: 8, 7: 8, 8: 4, 9: None}.get(c, 12))
        if c == 0:
            feed(2, "xwf"[len(pre):])
        if c < 5:
            feed(c + 3, mix=late[c])
        elif c < 7:
            feed(c + 3, "xw")
        elif c < 9:
            feed(c + 1, "f")
        if c == 0:
            only("pb", f"s_cmp_eq_u32 s{s_wj}, s{s_hook}", publish)
        if c == cfg["mk"]:
            mark_unwritten()
            only("bf", has_block, block_fetch)
        if c == cfg["gat"]:
            only("gf", gath, gather_loads)
        if c == cfg["gat"] + 3:
            only("gp", gath, gather_put)
    a(f"{has_block}\ns_cbranch_scc1 {L('bwa')}\ns_waitcnt vmcnt(4)\n{L('bwa')}:")
    boundary(9)
    only("bt", has_block, block_turn)
    boundary()

    def first_fetch():
        a(f"""
        s_mul_i32 s{s_t0}, s{s_wj}, 3072
        s_add_u32 m0, s{s_t0}, {L_Q}
        s_nop 0
        buffer_load_dwordx4 v{mQ}, {WSD}, s{s_cm} offen sc1 lds
        s_add_u32 m0, s{s_t0}, {L_Q + 512}
        s_nop 0
        buffer_load_dwordx4 v{mQ}, {WSD}, s{s_cm} offen offset:512 sc1 lds
        s_add_u32 m0, s{s_t0}, {L_Q + 2048}
        s_nop 0
        buffer_load_dwordx4 v{mQD}, {WSD}, s{s_cr} offen sc1 lds
        """)
        kv_dma(0)

    a(f"{L('b_last')}:\ns_setprio 2")
    stamp(a, prof, 40)
    ones_write(one, 20)
    wait_flags("wa", WS_FA, [FO, FK])
    stamp(a, prof, 41)
    if prof:
        a(f"s_sub_u32 s{s_t0}, {SPIN}, s{s_spin}\ns_add_u32 s96, s{s_t0}, 100")
    first_fetch()
    kv_dma(1)
    stamp(a, prof, 4)
    a(f"{has_block}\ns_cbranch_scc1 {L('bp')}\ns_waitcnt vmcnt(7)\ns_branch {L('bq')}\n{L('bp')}:")
    block_put()
    a(f"{L('bq')}:\ns_waitcnt vmcnt(12) lgkmcnt(0)")
    stamp(a, prof, 3)
    a("s_barrier")

    vH, vW, vO, vB, vLn = [11, 12, 13, 14], [15, 16], [17, 18], [T[0], T[1]], 19
    ACC = 20
    LB = [100 + 36 * i for i in range(3)]
    RX, OF, WR, XR, BR = 40, 100, 180, 220, 230
    sH, sT = sW, sA
    a(f"""
    v_mov_b32 v{vH[0]}, v{pH}
    v_xor_b32 v{vH[1]}, 256, v{pH}
    v_xor_b32 v{vH[2]}, 512, v{pH}
    v_xor_b32 v{vH[3]}, 768, v{pH}
    v_lshlrev_b32 v{vLn}, 4, v{vL}
    s_mul_i32 s{s_t0}, s{s_qb}, 5120
    v_add_u32 v{vW[0]}, s{s_t0}, v{vLn}
    v_add_u32 v{vW[1]}, 4096, v{vW[0]}
    s_mul_i32 s{s_t0}, s{s_qb}, 160
    v_lshrrev_b32 v{T[2]}, 4, v{vL}
    v_lshl_add_u32 v{vB[0]}, v{T[2]}, 4, s{s_t0}
    v_lshl_add_u32 v{vB[1]}, v{T[2]}, 3, s{s_t0}
    v_add_u32 v{vO[0]}, v{pO}, v{vB[0]}
    v_add_u32 v{vO[1]}, v{pO}, v{vB[1]}
    s_add_u32 s{sH}, s22, {C_H * CH}
    s_addc_u32 s{sH + 1}, s23, 0
    s_mov_b32 s{sH + 2}, {216 * CH}
    s_mov_b32 s{sH + 3}, 0x00020000
    s_add_u32 s{sT}, s22, {WS_WT}
    s_addc_u32 s{sT + 1}, s23, 0
    s_mov_b32 s{sT + 2}, {54 * KS_ROW}
    s_mov_b32 s{sT + 3}, 0x00020000
    s_lshl_b32 s{s_ho}, s{s_wj}, 17
    s_mul_i32 s{s_wo}, s{s_wj}, {KS_ROW}
    s_add_u32 s{s_xo}, s{s_wo}, {WS_WT + 54 * KS_ROW}
    s_mul_i32 s{s_ring}, s{s_wj}, 5120
    s_waitcnt vmcnt(0) lgkmcnt(0)
    s_barrier
    """)
    stamp(a, prof, 5)
    a(f"s_mov_b32 s{s_fl}, s2\ns_cmp_lg_u32 s{s_wj}, 0\ns_cbranch_scc1 {L('fb_set')}")
    set_flag(WS_FB)
    a(f"{L('fb_set')}:")
    kv_dma(2)

    def w_frag(c):
        return (vW[0], 1024 * c) if c < 4 else (vW[1], 0)

    def ffn_loads(b):
        for t in range(4):
            a(f"buffer_load_dwordx4 {vr(LB[b] + 4 * t, 4)}, v{vH[t]}, s[{sH}:{sH + 3}], s{s_ho} offen sc1")
        for c in range(5):
            va, off = w_frag(c)
            a(f"buffer_load_dwordx4 {vr(LB[b] + 16 + 4 * c, 4)}, v{va}, s[{sT}:{sT + 3}], s{s_wo} offen offset:{off} sc1")
        a(f"s_add_u32 s{s_ho}, s{s_ho}, {16 * CH}\ns_add_u32 s{s_wo}, s{s_wo}, {4 * KS_ROW}")

    def wo_stage(i):
        for c in range(5):
            va, off = w_frag(c)
            if c in (0, 4):
                a(f"s_add_u32 m0, s{s_ring}, {L_WO + i * 20480 + 1024 * c}\ns_nop 0")
            a(f"buffer_load_dwordx4 v{va}, {WSD}, s{s_xo} offen offset:{off} sc1 lds")
        a(f"s_add_u32 s{s_xo}, s{s_xo}, {4 * KS_ROW}")

    queue = []

    def need(tag):
        if tag not in queue:
            return
        last = max(i for i, q in enumerate(queue) if q == tag)
        a(f"s_waitcnt vmcnt({len(queue) - 1 - last})")
        del queue[:last + 1]

    def send(r, slot):
        a(f"s_add_u32 s{s_t0}, s{s_ring}, {KV + slot * SLOT}\nv_add_u32 v{T[2]}, s{s_t0}, v{vLn}")
        for c in range(5):
            a(f"ds_write_b128 v{T[2]}, {vr(ACC + 20 * r + 4 * c, 4)} offset:{1024 * c}")

    wait_flags("wb", WS_FB, [fB, fC], cfg["fbr"])
    a(f"s_or_b64 vcc, vcc, s[{s_t2}:{s_t2 + 1}]\ns_cbranch_scc1 {L('fb_late')}")
    ffn_loads(0)
    stamp(a, prof, 6)
    a("s_barrier")
    ffn_loads(1)
    kv_dma(3)
    a(f"s_branch {L('fb_go')}\n{L('fb_late')}:\ns_barrier")
    kv_dma(3)
    wait_flags("wc", WS_FB, [fB, fC])
    ffn_loads(0)
    ffn_loads(1)
    stamp(a, prof, 16)
    a(f"s_waitcnt vmcnt(0)\n{L('fb_go')}:\ns_setprio 0")
    queue += [("L", 0)] * 9 + [("L", 1)] * 9 + [("D", 2)] * 7

    def vm_units(fn, tag):
        out, cur = [], []
        for u in capture(fn):
            cur.append(u)
            n = u.count("buffer_load")
            if n:
                out.append(("\n".join(cur), [tag] * n))
                cur = []
        out[-1] = (out[-1][0] + "\n" + "\n".join(cur), out[-1][1])
        return out

    cuts = [cfg["cut0"] + cfg["cutd"] * k for k in range(5)]
    side = vm_units(lambda: wo_stage(0), ("W", 0))
    iv, m = 2, 0
    for step in range(14):
        b = step % 3
        main = vm_units(lambda: ffn_loads((step + 2) % 3), ("L", step + 2)) if step + 2 < 14 else []
        need(("L", step))
        if step == 13:
            assert not side and iv == 7
            a(f"s_cmp_lt_u32 s{s_wj}, 2\ns_cbranch_scc0 {L('m13')}")
        for k in range(20):
            t, c = divmod(k, 5)
            d = vr(ACC + 20 * t + 4 * c, 4)
            a(f"v_mfma_f32_16x16x32_bf16 {d}, {vr(LB[b] + 16 + 4 * c, 4)}, {vr(LB[b] + 4 * t, 4)}, {d if step else 0}")
            m += 1
            src = main if (main and (k & 1 or not side)) else side
            if src:
                text, tags = src.pop(0)
                a(text)
                queue += tags
            if iv < 7 and m == cuts[iv - 2]:
                assert not side
                need(("D", iv))
                if cfg.get("trace"):
                    stamp(a, prof, 24)
                a("s_barrier")
                iv += 1
                if iv < 7:
                    side = vm_units(lambda: kv_dma(iv + 1), ("D", iv))
                if iv < 6:
                    side += vm_units(lambda: wo_stage(iv - 2), ("W", iv))
                if iv == 7:
                    only("w5", f"s_cmp_lt_u32 s{s_wj}, 2", lambda: wo_stage(4))
        assert not main
    a(f"{L('m13')}:")
    srd(a, sX, 4, S * D * 2)
    srd(a, sA, 18, D * 2)
    srd(a, sB, 20, S * D * 2)
    for i in range(2):
        a(f"s_mov_b32 s{s_t0}, {WS_WT + (72 + i) * KS_ROW}")
        for c in range(5):
            va, off = w_frag(c)
            a(f"buffer_load_dwordx4 {vr(WR + 20 * i + 4 * c, 4)}, v{va}, {WSD}, s{s_t0} offen offset:{off} sc1")
    for dst, va, sd in ((XR, vO, sX), (BR, vB, sA)):
        a(f"""
        buffer_load_dwordx4 {vr(dst, 4)}, v{va[0]}, s[{sd}:{sd + 3}], 0 offen
        buffer_load_dwordx4 {vr(dst + 4, 4)}, v{va[0]}, s[{sd}:{sd + 3}], 0 offen offset:64
        buffer_load_dwordx2 {vr(dst + 8, 2)}, v{va[1]}, s[{sd}:{sd + 3}], 0 offen offset:128
        """)
    send(1, 1)
    if cfg.get("trace"):
        stamp(a, prof, 24)
    a("s_barrier")
    send(2, 2)
    a(f"""
    s_cmp_lg_u32 s2, 0
    s_cbranch_scc1 {L('we_done')}
    s_lshl_b32 s{s_t0}, s{s_wj}, 6
    v_add_u32 v{T[5]}, s{s_t0}, v{vL}
    v_lshlrev_b32 v{T[5]}, 7, v{T[5]}
    """)
    wait_flags("we", WS_FB, [T[5]])
    stamp(a, prof, 7)
    a("s_barrier")
    send(3, 0)
    a("s_waitcnt vmcnt(0)")
    for src in (XR, BR):
        for i in range(10):
            t = T[2 + 2 * (i & 1)]
            a(f"v_lshlrev_b32 v{t}, 16, v{src + i}\nv_and_b32 v{t + 1}, 0xffff0000, v{src + i}")
            a(f"v_pk_add_f32 {vr(ACC + 2 * i, 2)}, {vr(ACC + 2 * i, 2)}, {vr(t, 2)}")
    a(f"""
    v_bfe_u32 v{T[2]}, v{vL}, 1, 4
    v_mul_u32_u24 v{T[2]}, 5, v{T[2]}
    v_and_b32 v{T[3]}, 1, v{vL}
    s_cmp_eq_u32 s{s_wj}, 2
    s_cselect_b32 s{s_t1}, 8, {3 * CH}
    s_cselect_b32 s{s_t2}, 4, 12
    s_cmp_eq_u32 s{s_wj}, 3
    s_cselect_b32 s{s_t0}, 0, s{s_wj}
    v_add_u32 v{T[2]}, s{s_t0}, v{T[2]}
    v_lshlrev_b32 v{T[2]}, 15, v{T[2]}
    v_mad_u32_u24 v{T[0]}, v{T[3]}, s{s_t1}, v{T[2]}
    s_lshl_b32 s{s_t0}, s{s_head}, 3
    s_add_u32 s{s_t0}, s{s_t0}, s{s_qb}
    s_lshl_b32 s{s_t0}, s{s_t0}, 7
    s_add_u32 s{s_t0}, s{s_t0}, s{s_t2}
    s_add_u32 s{s_ko}, s{s_t0}, {C_O * CH}
    s_mov_b32 s{s_spin}, {SPIN}
    s_waitcnt lgkmcnt(0)
    s_barrier
    """)
    stamp(a, prof, 8)
    a(f"""
    s_cmp_lg_u32 s2, 0
    s_cbranch_scc1 {L('tag_kept')}
    v_mov_b32 v{T[4]}, 0
    v_mov_b32 v{T[5]}, s{s_tag}
    s_mov_b32 s{s_t0}, {WS_E}
    buffer_store_dword v{T[5]}, v{T[4]}, {WSD}, s{s_t0} offen sc1
    {L('tag_kept')}:
    """)
    for r, slot in ((1, 1), (2, 2), (3, 0)):
        a(f"""
        s_xor_b32 s{s_t0}, s{s_wj}, {r}
        s_mul_i32 s{s_t0}, s{s_t0}, 5120
        s_add_u32 s{s_t0}, s{s_t0}, {KV + slot * SLOT}
        v_add_u32 v{T[2]}, s{s_t0}, v{vLn}
        """)
        for c in range(5):
            a(f"ds_read_b128 {vr(ACC + 20 * r + 4 * c, 4)}, v{T[2]} offset:{1024 * c}")
    for r in range(1, 4):
        a(f"s_waitcnt lgkmcnt({5 * (3 - r)})")
        for i in range(0, 20, 2):
            a(f"v_pk_add_f32 {vr(ACC + i, 2)}, {vr(ACC + i, 2)}, {vr(ACC + 20 * r + i, 2)}")
    a(f"v_add_u32 v{T[2]}, {L_WO + 10 * 5120}, v{vLn}")

    def wo_reads(i):
        va, off = (vLn, L_WO + 5120 * i) if i < 10 else (T[2], 5120 * (i - 10))
        return [f"ds_read_b128 {vr(RX + 20 * (i % 3) + 4 * c, 4)}, v{va} offset:{off + 1024 * c}" for c in range(5)] if i < 18 else []

    def o_loads(lo, hi):
        for i in range(lo, hi):
            a(f"s_mov_b32 s{s_t0}, {(C_O + 4 * i) * CH}")
            a(f"buffer_load_dwordx4 {vr(OF + 4 * i, 4)}, v{vH[0]}, {WSD}, s{s_t0} offen sc1")

    a("\n".join(wo_reads(0) + wo_reads(1)))
    a(f"""
    s_mov_b32 exec_hi, 0
    {L('poll')}:
    buffer_load_dword v{T[3]}, v{T[0]}, {WSD}, s{s_ko} offen sc1
    s_sub_u32 s{s_spin}, s{s_spin}, 1
    s_cmp_eq_u32 s{s_spin}, 0
    s_waitcnt vmcnt(0)
    v_cmp_eq_u32 vcc, -1, v{T[3]}
    s_cbranch_scc1 {L('got')}
    s_nop 2
    s_cbranch_vccnz {L('poll')}
    {L('got')}:
    s_mov_b32 exec_hi, -1
    """)
    if cfg.get("trace"):
        stamp(a, prof, 50)
        if prof:
            a(f"s_sub_u32 s96, {SPIN + 200}, s{s_spin}\ns_waitcnt lgkmcnt(0)")
    o_loads(0, 20)
    GS = cfg["grp"]
    again = []
    for i in range(20):
        if i % GS == 0:
            b = OF + 4 * i
            a(f"s_waitcnt vmcnt({20 - GS - i})\n{L('ck' + str(i))}:\nv_max_u32 v{T[3]}, v{b + 1}, v{b + 3}")
            for k in range(1, GS):
                a(f"v_max3_u32 v{T[3]}, v{T[3]}, v{b + 4 * k + 1}, v{b + 4 * k + 3}")
            a(f"v_cmp_eq_u32 vcc, -1, v{T[3]}\ns_nop 1\ns_cbranch_vccnz {L('re' + str(i))}\n{L('go' + str(i))}:")
            again.append(i)
        if i < 18:
            a(f"s_waitcnt lgkmcnt({5 if i < 17 else 0})")
        nxt = wo_reads(i + 2)
        w = RX + 20 * (i % 3) if i < 18 else WR + 20 * (i - 18)
        for c in range(5):
            d = vr(ACC + 4 * c, 4)
            a(f"v_mfma_f32_16x16x32_bf16 {d}, {vr(w + 4 * c, 4)}, {vr(OF + 4 * i, 4)}, {d}")
            a("\n".join(nxt[c:c + 1]))
    stamp(a, prof, 9)
    a("s_nop 7")
    for i in range(10):
        a(f"v_cvt_pk_bf16_f32 v{XR + i}, v{ACC + 2 * i}, v{ACC + 2 * i + 1}")
    a(f"""
    buffer_store_dwordx4 {vr(XR, 4)}, v{vO[0]}, s[{sB}:{sB + 3}], 0 offen {OSF}
    buffer_store_dwordx4 {vr(XR + 4, 4)}, v{vO[0]}, s[{sB}:{sB + 3}], 0 offen offset:64 {OSF}
    buffer_store_dwordx2 {vr(XR + 8, 2)}, v{vO[1]}, s[{sB}:{sB + 3}], 0 offen offset:128 {OSF}
    """)
    if prof:
        a(f"{L('dump')}:\ns_waitcnt vmcnt(0)")
        stamp(a, prof, 10)
        stamp(a, prof, 11)
        a(f"""
        s_memrealtime s[78:79]
        s_waitcnt lgkmcnt(0)
        s_mov_b32 s{sWS + 2}, {WS_SIZE}
        s_lshl_b32 s95, s2, 3
        s_add_u32 s95, s95, s{s_w}
        s_lshl_b32 s95, s95, 8
        s_add_u32 s95, s95, {WS_DBG}
        v_writelane_b32 v0, s76, 62
        v_writelane_b32 v0, s78, 63
        v_lshlrev_b32 v{T[0]}, 2, v{vL}
        buffer_store_dword v0, v{T[0]}, {WSD}, s95 offen
        s_waitcnt vmcnt(0)
        """)
    a("s_endpgm")
    for i in again:
        a(f"{L('re' + str(i))}:\ns_sub_u32 s{s_spin}, s{s_spin}, 1\ns_cmp_lt_i32 s{s_spin}, 0\ns_cbranch_scc1 {L('go' + str(i))}")
        o_loads(i, i + GS)
        a(f"s_waitcnt vmcnt(0)\ns_branch {L('ck' + str(i))}")
    a.lines = head_lines + a.lines + g0_lines
    a(f"{L('end')}:\ns_endpgm")
    return kernel_header(label) + a.text(), kernel_desc(label, 256, 102 if prof else 80), LDS_SIZE


def build(as_list=False, **kw):
    ref = open(f"cdna_kernels/{NAME}.s.ref").read().split("\n")
    head = [ln for ln in ref if ln.startswith(";") and "launch" not in ln.lower() and "grid=" not in ln]
    label = NAME + "_kernel"
    c, d, lds = gen(label, **kw)
    c = c.replace(label + "_", "L_")
    if (kw.get("cfg") or {}).get("rt"):
        c = c.replace("s_memtime", "s_memrealtime")
    out = "\n".join(head) + "\n"
    out += f"; @launch {'kernel=' + label + ' ' if as_list else ''}grid=(256,1,1) block=(512,1,1) lds={lds}\n"
    out += '.amdgcn_target "amdgcn-amd-amdhsa--gfx950"\n.text\n' + c + '.section .rodata,"a"\n' + d
    return out


if __name__ == "__main__":
    import sys
    opts = sys.argv[2:]
    cfg = {o.split("=")[0]: int(o.split("=")[1], 0) for o in opts if "=" in o}
    open(sys.argv[1], "w").write(build(as_list="list" in opts, prof="prof" in opts, force_fallback="slow" in opts, cfg=cfg))
```

```python
import math
import struct
from common import *

f32 = lambda x: struct.unpack("<I", struct.pack("<f", x))[0]
QSCALE = f32(math.log2(math.e) / math.sqrt(20.0))
SHIFT = 88.0

WS_RS = WS_END
WS_CP = WS_RS + 2048 * 16
CP_ROW = 3648 * 8
WS_FA = WS_CP + 4 * CP_ROW
WS_FH = WS_FA + 1024 * 128
WS_FB = WS_FH + 2048 * 128
WS_E = WS_FB + 256 * 128
WS_TOP = WS_E + 128

STG = 49152
LX, LW, LF = 0, 16384, 32768
L_NM = 3 * STG
L_RS, L_CSA, L_CSB, L_BI = L_NM + 512, L_NM + 1024, L_NM + 1536, L_NM + 2048
L_CP = L_NM + 2560
L_RP = L_CP + 1024
LDS_SIZE = 163840
SLOT = 8192 + 4096 + 16 * 656
OFF_R, OFF_V = 8192, 12288
KV = LDS_SIZE - 3 * SLOT
L_Q = 0
L_WO = 0
L_EX = [None, 122880, 143360, 102400]
LDS_OOB = 0x28000
assert L_WO + 18 * 5120 <= KV and LDS_OOB + 3 * SLOT <= 0x40000
KS_ROW = 40 * 1024

sWS, sX, sW, sA, sB = 24, 28, 32, 36, 40
(s_w, s_wj, s_rb, s_cg, s_head, s_qb, s_tt, s_ocg, s_cm, s_cr, s_par, s_tag, s_c, s_slot,
 s_t0, s_t1, s_t2, s_t3, s_xo, s_wo, s_ring, s_wstep, s_ko, s_vo, s_ho, s_spin, s_fl) = range(44, 71)
assert s_t2 % 2 == 0
s_o = [71, 72, 73]
s_kc, s_hook = 74, 75
SPIN = 0x20000


def gen(label, prof=False, force_fallback=False, cfg=None):
    cfg = {**dict(touch=1, gat=3, pre=3, mk=8, early=0, fprio=2, flag=-1, krot=0, plf=0, fsf=0, slp=2, cut0=10, cutd=47, hk=3, hpos=0, ahead=6, osf=0), **(cfg or {})}
    STF = ('sc1', '', 'nt')[cfg.get('plain', 0)]
    PLF = ('sc1', 'sc0 sc1', 'sc1 nt', 'sc0 sc1 nt')[cfg['plf']]
    FSF = ('sc1', 'sc0 sc1')[cfg['fsf']]
    OSF = ('', 'sc1', 'nt')[cfg['osf']]
    a = Asm()
    L = lambda n: f"{label}_{n}"
    WSD = f"s[{sWS}:{sWS + 3}]"
    vL = 1
    T = [2, 3, 4, 5, 6, 7]
    vK, vR_, vV = 8, 9, 10
    AX = [11, 12]
    AW = [13, 14, 15, 16]
    XF = [[32 + 16 * b + 4 * t for t in range(4)] for b in range(2)]
    WF = [[64 + 16 * b + 4 * c for c in range(4)] for b in range(2)]
    GA, GB = 96, 160

    def capture(fn):
        keep, a.lines = a.lines, []
        fn()
        got, a.lines = a.lines, keep
        units, masked = [], False
        for ln in got:
            t = ln.strip()
            if units and (masked or t.startswith("s_cselect") or units[-1].split("\n")[-1].strip().startswith("s_cmp")):
                units[-1] += "\n" + ln
            else:
                units.append(ln)
            if t.startswith("s_") and " exec" in t.split(",")[0]:
                masked = not t.endswith("-1")
        return units

    def gacc(tt, ci, base=GA):
        return base + (tt * 4 + ci) * 4

    SD = 32
    a(f"""
    s_cmp_ge_u32 s2, 256
    s_cbranch_scc1 {L('end')}
    s_load_dwordx16 s[4:19], s[0:1], 0
    s_load_dwordx2 s[22:23], s[0:1], 80
    s_load_dwordx2 s[20:21], s[0:1], 64
    """)
    stamp(a, prof, 0)
    a(f"""
    v_lshrrev_b32 v{T[0]}, 6, v0
    v_and_b32 v{vL}, 63, v0
    s_and_b32 s{s_t3}, s2, 1
    v_readfirstlane_b32 s{s_w}, v{T[0]}
    s_bfe_u32 s{s_cg}, s2, 0x20001
    s_mov_b32 s{sA + 3}, 0x00020000
    {'v_mov_b32 v0, -1' if prof else ''}
    s_and_b32 s{s_wj}, s{s_w}, 3
    s_cmp_ge_u32 s{s_w}, 4
    s_cbranch_scc1 {L('p_col')}
    s_mov_b32 s3, 0
    s_lshl_b32 s{s_t0}, s{s_t3}, 8
    s_and_b32 s{s_t1}, s2, 0xfe
    s_add_u32 s{s_t0}, s{s_t0}, s{s_t1}
    s_cmp_lt_u32 s{s_wj}, 2
    s_cselect_b32 s{s_t1}, 0, 62
    s_add_u32 s{s_t0}, s{s_t0}, s{s_t1}
    s_add_u32 s{s_t0}, s{s_t0}, s{s_wj}
    s_mul_i32 s{s_t1}, s{s_t0}, {4 * 1280}
    s_and_b32 s{s_t0}, s2, 0xc6
    s_cmp_eq_u32 s{s_t0}, 0xc6
    s_cselect_b32 s{s_hook}, 0, 2
    s_cmp_eq_u32 s{s_t0}, 0x86
    s_cselect_b32 s{s_hook}, 4, s{s_hook}
    v_lshrrev_b32 v{T[0]}, 4, v{vL}
    v_and_b32 v{T[1]}, 15, v{vL}
    v_mul_u32_u24 v{T[2]}, 1280, v{T[0]}
    s_movk_i32 s{s_t2}, 256
    s_mov_b32 s{sA + 2}, {S * D * 2}
    s_cmp_lt_u32 s{s_wj}, s{s_hook}
    s_waitcnt lgkmcnt(0)
    s_mov_b64 s[{sA}:{sA + 1}], s[4:5]
    s_branch {L('p_ld')}
    {L('p_col')}:
    s_setprio 2
    s_mov_b32 s3, 1
    s_lshr_b32 s{s_t1}, s2, 5
    s_lshl_b32 s{s_t0}, s{s_cg}, 3
    s_add_u32 s{s_t1}, s{s_t1}, s{s_t0}
    s_bfe_u32 s{s_t0}, s2, 0x10003
    s_lshl_b32 s{s_t2}, s{s_t3}, 1
    s_add_u32 s{s_t0}, s{s_t0}, s{s_t2}
    s_mul_i32 s{s_o[0]}, s{s_t0}, {CP_ROW // 512 * 512}
    s_lshl_b32 s{s_t0}, s{s_t0}, 2
    s_add_u32 s{s_t0}, s{s_t0}, s{s_wj}
    s_mul_i32 s{s_t0}, s{s_t0}, 40
    v_lshrrev_b32 v{T[0]}, 3, v{vL}
    v_and_b32 v{T[1]}, 7, v{vL}
    s_bitcmp0_b32 s2, 4
    s_cselect_b32 s{s_hook}, 30, 57
    s_movk_i32 s{s_t2}, 3840
    s_cselect_b32 s{s_t2}, s{s_t2}, 3456
    s_cselect_b32 s{s_o[1]}, 0, 30
    s_mul_i32 s{sA + 2}, s{s_t2}, 640
    s_mul_i32 s{s_t0}, s{s_t0}, s{s_t2}
    v_mul_u32_u24 v{T[2]}, s{s_t2}, v{T[0]}
    s_waitcnt lgkmcnt(0)
    s_cselect_b64 s[{sA}:{sA + 1}], s[6:7], s[12:13]
    s_add_u32 s{s_o[1]}, s{s_o[1]}, s{s_t1}
    s_lshl_b32 s{s_t1}, s{s_t1}, 7
    s_add_u32 s{s_t1}, s{s_t1}, s{s_t0}
    s_lshl_b32 s{s_t2}, s{s_t2}, 3
    s_cmp_lt_u32 s{s_o[1]}, s{s_hook}
    s_cselect_b32 s{s_hook}, 3, 7
    {L('p_ld')}:
    v_lshl_add_u32 v{T[2]}, v{T[1]}, 4, v{T[2]}
    s_cbranch_scc0 {L('p_id')}
    """)
    assert CP_ROW % 512 == 0
    for q in range(5):
        a(f"buffer_load_dwordx4 {vr(SD + 4 * q, 4)}, v{T[2]}, s[{sA}:{sA + 3}], s{s_t1} offen")
        a(f"s_add_u32 s{s_t1}, s{s_t1}, s{s_t2}")
    a(f"""
    {L('p_id')}:
    s_lshr_b32 s{s_t1}, s2, 3
    s_lshr_b32 s{s_ocg}, s{s_t1}, 3
    s_and_b32 s{s_t2}, s{s_t1}, 7
    s_lshl_b32 s{s_cg}, s{s_cg}, 2
    s_add_u32 s{s_cg}, s{s_cg}, s{s_ocg}
    s_lshl_b32 s{s_rb}, s{s_t3}, 3
    s_add_u32 s{s_rb}, s{s_rb}, s{s_t2}
    s_cmp_eq_u32 s{s_cg}, 15
    s_cbranch_scc1 {L('near')}
    {L('p_go')}:
    s_cmp_eq_u32 s3, 0
    s_cbranch_scc1 {L('g0')}
    """)
    head_lines, a.lines = a.lines, []

    def attn_ids():
        a(f"""
        s_and_b32 s{s_t0}, s2, 7
        s_lshr_b32 s{s_t1}, s2, 3
        s_and_b32 s{s_t2}, s{s_t1}, 3
        s_lshl_b32 s{s_head}, s{s_t0}, 2
        s_add_u32 s{s_head}, s{s_head}, s{s_t2}
        s_lshr_b32 s{s_qb}, s{s_t1}, 2
        s_and_b32 s{s_par}, s{s_head}, 1
        s_lshr_b32 s{s_t2}, s{s_head}, 1
        s_mul_i32 s{s_t2}, s{s_t2}, 5
        s_add_u32 s{s_cr}, s{s_t2}, 2
        s_mul_i32 s{s_t3}, s{s_par}, 3
        s_add_u32 s{s_cm}, s{s_t2}, s{s_t3}
        s_lshl_b32 s{s_cm}, s{s_cm}, 15
        s_lshl_b32 s{s_cr}, s{s_cr}, 15
        """)

    def load_tag():
        a(f"""
        s_mov_b32 s{s_t0}, {WS_E}
        s_load_dword s{s_tag}, s[22:23], s{s_t0}
        """)

    def frag_addr():
        a(f"""
        v_and_b32 v{T[0]}, 15, v{vL}
        v_lshrrev_b32 v{T[1]}, 4, v{vL}
        v_bfe_u32 v{T[2]}, v{vL}, 1, 3
        v_xor_b32 v{T[2]}, v{T[2]}, v{T[1]}
        v_lshlrev_b32 v{T[2]}, 4, v{T[2]}
        v_lshl_add_u32 v{T[2]}, v{T[0]}, 7, v{T[2]}
        s_and_b32 s{s_t0}, s{s_wj}, 1
        s_lshl_b32 s{s_t0}, s{s_t0}, 13
        v_add_u32 v{AX[0]}, s{s_t0}, v{T[2]}
        v_xor_b32 v{AX[1]}, 64, v{AX[0]}
        v_bfe_u32 v{T[2]}, v{vL}, 2, 2
        v_lshl_add_u32 v{T[3]}, v{T[1]}, 3, v{T[2]}
        v_lshlrev_b32 v{T[3]}, 8, v{T[3]}
        v_bfe_u32 v{T[2]}, v{vL}, 2, 3
        s_lshr_b32 s{s_t0}, s{s_wj}, 1
        s_lshl_b32 s{s_t0}, s{s_t0}, 2
        v_xor_b32 v{T[2]}, s{s_t0}, v{T[2]}
        v_lshl_add_u32 v{T[3]}, v{T[2]}, 5, v{T[3]}
        v_and_b32 v{T[2]}, 3, v{vL}
        v_lshl_add_u32 v{AW[0]}, v{T[2]}, 3, v{T[3]}
        v_xor_b32 v{AW[1]}, 32, v{AW[0]}
        v_xor_b32 v{AW[2]}, 64, v{AW[0]}
        v_xor_b32 v{AW[3]}, 96, v{AW[0]}
        """)

    def zero(base, n):
        for r in range(base, base + n, 2):
            a(f"v_mov_b64 {vr(r, 2)}, 0")

    def wreads(part, s, b):
        return [f"ds_read_b64_tr_b16 {vr(WF[b][c] + 2 * h, 2)}, v{AW[c]} offset:{part + s * 8192 + 1024 * h}"
                for c in range(4) for h in range(2)]

    def xreads(s):
        return [f"ds_read_b128 {vr(XF[s][t], 4)}, v{AX[s]} offset:{LX + 2048 * t}" for t in range(4)]

    def both(part, s, b):
        w, x = wreads(part, s, b), xreads(s)
        return w[:2] + x[:1] + w[2:] + x[1:]

    def gemm_body(name, halves, barrier, count_to):
        a(f".p2align 3\n{L(name)}:")
        for k, (xs, wb, acc, swapped, rd) in enumerate(halves):
            fill = [[] for _ in range(16)]
            if k == len(halves) - 1:
                if barrier:
                    if prof and cfg.get("trace", 0) == 3:
                        fill[0] += capture(lambda: stamp(a, prof, 25))
                    fill[0].append("s_barrier")
                fill[13].append(f"s_add_u32 s{s_c}, s{s_c}, 1")
                fill[14].append(f"s_cmp_lt_u32 s{s_c}, {count_to}")
            if k == len(halves) - 2:
                fill[8].append(f"s_add_u32 s{s_ring}, s{s_ring}, 1")
                fill[9].append(f"s_cmp_eq_u32 s{s_ring}, 3")
                fill[10].append(f"s_cselect_b32 s{s_xo}, {-2 * STG & 0xffffffff}, s{s_wstep}")
                fill[11].append(f"s_cselect_b32 s{s_ring}, 0, s{s_ring}")
            for m, x in enumerate(rd):
                fill[m].append(x)
            if k == len(halves) - 2:
                for m, r in enumerate(AX + AW):
                    fill[12 + m // 2].append(f"v_add_u32 v{r}, s{s_xo}, v{r}")
            fill[15].append("s_waitcnt lgkmcnt(0)")
            for m in range(16):
                tt, ci = m >> 2, m & 3
                wf, xf = vr(WF[wb][ci], 4), vr(XF[xs][tt], 4)
                A, B = (xf, wf) if swapped else (wf, xf)
                a(f"v_mfma_f32_16x16x32_bf16 {vr(gacc(tt, ci, acc), 4)}, {A}, {B}, {vr(gacc(tt, ci, acc), 4)}")
                a("\n".join(fill[m]))
        if 0 < cfg.get("trace", 0) < 3:
            stamp(a, prof, 20)
        a(f"s_cbranch_scc1 {L(name)}")

    def joint(name, sw):
        gemm_body(name, [(0, 0, GA, sw, wreads(LF, 0, 1)), (0, 1, GB, False, both(LW, 1, 0)),
                         (1, 0, GA, sw, wreads(LF, 1, 1)), (1, 1, GB, False, both(LW, 0, 0))], True, 7)

    def single(name, part, acc, sw, barrier, count_to):
        gemm_body(name, [(0, 0, acc, sw, both(part, 1, 1)), (1, 1, acc, sw, both(part, 0, 0))], barrier, count_to)

    def tile_addr(e_reg, e_lane, e_st):
        a(f"""
        v_and_b32 v{T[0]}, 15, v{vL}
        v_lshrrev_b32 v{T[1]}, 4, v{vL}
        s_lshr_b32 s{s_t0}, s{s_wj}, 1
        s_lshl_b32 s{s_t0}, s{s_t0}, 8
        s_add_u32 s{s_t0}, s{s_t0}, {L_NM}
        v_lshl_add_u32 v{e_reg}, v{T[1]}, 4, s{s_t0}
        s_and_b32 s{s_t1}, s{s_wj}, 1
        s_lshl_b32 s{s_t0}, s{s_t1}, 8
        s_add_u32 s{s_t0}, s{s_t0}, {L_NM}
        v_lshl_add_u32 v{e_lane}, v{T[0]}, 2, s{s_t0}
        v_bfrev_b32 v{T[1]}, v{T[1]}
        v_lshrrev_b32 v{T[1]}, 15, v{T[1]}
        v_lshl_add_u32 v{T[1]}, v{T[0]}, 4, v{T[1]}
        s_lshl_b32 s{s_t0}, s{s_rb}, 1
        s_add_u32 s{s_t0}, s{s_t0}, s{s_t1}
        s_lshl_b32 s{s_t0}, s{s_t0}, 10
        v_add_u32 v{e_st}, s{s_t0}, v{T[1]}
        """)

    def put_piece(src, addr, x, y):
        return f"buffer_store_dwordx4 {vr(src, 4)}, v{addr}, {WSD}, s{s_o[x]} offen offset:{256 * y} {STF}"

    def pack_tiles(acc, math, dst, addr=None, between=None):
        pend = []
        for tt in range(4):
            for cp in range(2):
                ob = dst(cp, tt)
                r0 = gacc(tt, 2 * cp, acc)
                math(tt, [(r0 + 2 * p, 8 * cp + 2 * p) for p in range(4)])
                a("\n".join(pend))
                for p in range(4):
                    a(f"v_cvt_pk_bf16_f32 v{ob + p}, v{r0 + 2 * p}, v{r0 + 2 * p + 1}")
                pend = [f"v_permlane16_swap_b32 v{ob}, v{ob + 2}", f"v_permlane16_swap_b32 v{ob + 1}, v{ob + 3}"]
                if addr:
                    pend.append(put_piece(ob, addr, cp, tt))
            if between:
                between(tt)
        a("s_nop 1\n" + "\n".join(pend))

    def key_perm(dst, src, t0, t1):
        a(f"""
        v_bfe_u32 v{t0}, v{src}, 2, 1
        v_bfe_u32 v{t1}, v{src}, 3, 2
        v_lshl_add_u32 v{t0}, v{t0}, 2, v{t1}
        v_and_b32 v{t1}, 3, v{src}
        v_lshl_add_u32 v{dst}, v{t0}, 2, v{t1}
        """)

    def v_feature(dst, row, t0, t1):
        swap23(a, dst, row, t0, t1)
        a(f"""
        s_lshl_b32 s{s_t0}, s{s_par}, 2
        s_mul_i32 s{s_t1}, s{s_par}, -16
        v_cmp_gt_u32 vcc, 16, v{row}
        v_add_u32 v{dst}, s{s_t0}, v{dst}
        v_add_u32 v{t0}, s{s_t1}, v{row}
        v_cndmask_b32 v{dst}, v{t0}, v{dst}, vcc
        """)

    def kv_addr(first_chunk):
        a(f"v_and_b32 v{T[0]}, 31, v{vL}\nv_lshrrev_b32 v{T[1]}, 5, v{vL}")
        key_perm(T[2], T[0], T[3], T[4])
        a(f"""
        v_lshlrev_b32 v{T[3]}, 4, v{T[2]}
        v_lshl_add_u32 v{vK}, v{T[1]}, 15, v{T[3]}
        v_add_u32 v{vK}, s{s_cm}, v{vK}
        v_lshl_add_u32 v{vR_}, v{T[1]}, 9, v{T[3]}
        v_add_u32 v{vR_}, s{s_cr}, v{vR_}
        v_cmp_le_u32 vcc, 20, v{vL}
        s_lshl_b32 s{s_t0}, s{s_wj}, 10
        s_mul_i32 s{s_kc}, s{s_qb}, {cfg['krot']}
        v_cndmask_b32 v{T[2]}, 0, 1, vcc
        v_mul_u32_u24 v{T[3]}, 20, v{T[2]}
        v_sub_u32 v{T[3]}, v{vL}, v{T[3]}
        v_mul_u32_u24 v{vV}, 10240, v{T[2]}
        """)
        v_feature(T[2], T[3], T[4], T[5])
        a(f"""
        s_mul_i32 s{s_t0}, s{s_head}, 320
        v_lshl_add_u32 v{vV}, v{T[2]}, 4, v{vV}
        v_add_u32 v{vV}, s{s_t0}, v{vV}
        """)

    def kv_dma(chunk):
        base = KV + ((chunk + 2) % 3) * SLOT
        a(f"""
        s_and_b32 s{s_t0}, s{s_kc}, 7
        s_lshl_b32 s{s_t0}, s{s_t0}, 2
        s_add_u32 s{s_t0}, s{s_t0}, s{s_wj}
        s_lshl_b32 s{s_ko}, s{s_t0}, 10
        s_add_u32 s{s_ko}, s{s_ko}, {C_K * CH}
        s_mul_i32 s{s_vo}, s{s_t0}, 81920
        s_add_u32 s{s_vo}, s{s_vo}, {WS_V}
        s_add_u32 s{s_kc}, s{s_kc}, 1
        s_lshl_b32 s{s_t0}, s{s_wj}, 11
        s_add_u32 m0, s{s_t0}, {base}
        s_lshl_b32 s{s_t1}, s{s_wj}, 10
        buffer_load_dwordx4 v{vK}, {WSD}, s{s_ko} offen sc1 lds
        s_add_u32 m0, s{s_t0}, {base + 512}
        s_mul_i32 s{s_t0}, s{s_wj}, {4 * 656}
        buffer_load_dwordx4 v{vK}, {WSD}, s{s_ko} offen offset:512 sc1 lds
        s_add_u32 m0, s{s_t1}, {base + OFF_R}
        s_nop 0
        buffer_load_dwordx4 v{vR_}, {WSD}, s{s_ko} offen sc1 lds
        s_mov_b32 exec_hi, 0xff
        """)
        for i in range(4):
            a(f"""
            s_add_u32 m0, s{s_t0}, {base + OFF_V + 656 * i}
            s_add_u32 s{s_t1}, s{s_vo}, {20480 * i}
            buffer_load_dwordx4 v{vV}, {WSD}, s{s_t1} offen sc1 lds
            """)
        a("s_mov_b32 exec_hi, -1")

    def ones_addr(dst, first_slot, nslots):
        a(f"""
        v_min_u32 v{dst}, {16 * nslots - 1}, v{vL}
        v_lshrrev_b32 v{T[3]}, 4, v{dst}
        v_and_b32 v{dst}, 15, v{dst}
        v_mul_u32_u24 v{T[3]}, {SLOT}, v{T[3]}
        v_mul_u32_u24 v{dst}, 656, v{dst}
        v_add_u32 v{dst}, v{dst}, v{T[3]}
        v_add_u32 v{dst}, {KV + first_slot * SLOT + OFF_V + 640}, v{dst}
        """)

    def ones_write(addr, tmp):
        for r in range(4):
            a(f"v_mov_b32 v{tmp + r}, 0x3f803f80")
        a(f"ds_write_b128 v{addr}, {vr(tmp, 4)}")

    def set_flag(base):
        a(f"""
        s_lshl_b32 s{s_t0}, s{s_fl}, 7
        s_add_u32 s{s_t0}, s{s_t0}, {base}
        v_mov_b32 v{T[4]}, 0
        v_mov_b32 v{T[3]}, s{s_tag}
        s_mov_b64 exec, 1
        buffer_store_dword v{T[3]}, v{T[4]}, {WSD}, s{s_t0} offen {FSF}
        s_mov_b64 exec, -1
        """)

    def flag_of_tile(dst, rh, unit):
        a(f"v_lshl_add_u32 v{dst}, v{unit}, 5, {rh}\nv_lshlrev_b32 v{dst}, 7, v{dst}")

    def head_unit(dst, sel):
        a(f"""
        s_mul_i32 s{s_t0}, s{s_head}, 20
        v_mad_u32_u24 v{dst}, v{sel}, 19, s{s_t0}
        v_lshrrev_b32 v{dst}, 6, v{dst}
        """)

    def wait_flags(name, base, offs, rounds=SPIN):
        a(f"""
        s_mov_b32 s{s_t0}, {base}
        s_mov_b32 s{s_spin}, {rounds}
        s_branch {L(name + '_ld')}
        {L(name)}:
        s_sleep {cfg['slp']}
        {L(name + '_ld')}:
        buffer_load_dword v{T[3]}, v{offs[0]}, {WSD}, s{s_t0} offen {PLF}
        """)
        if len(offs) > 1:
            a(f"buffer_load_dword v{T[4]}, v{offs[1]}, {WSD}, s{s_t0} offen {PLF}")
        a(f"s_sub_u32 s{s_spin}, s{s_spin}, 1\ns_waitcnt vmcnt(0)")
        if len(offs) == 1:
            a(f"v_mov_b32 v{T[4]}, v{T[3]}")
        retry(name)

    def retry(name):
        a(f"""
        v_cmp_ne_u32 vcc, s{s_tag}, v{T[3]}
        v_cmp_ne_u32 s[{s_t2}:{s_t2 + 1}], s{s_tag}, v{T[4]}
        s_cmp_eq_u32 s{s_spin}, 0
        s_cbranch_scc1 {L(name + '_done')}
        s_or_b64 vcc, vcc, s[{s_t2}:{s_t2 + 1}]
        s_cbranch_scc1 {L(name)}
        {L(name + '_done')}:
        """)

    def q_addr(vq, vqr):
        a(f"""
        v_and_b32 v{T[0]}, 31, v{vL}
        v_lshrrev_b32 v{T[1]}, 5, v{vL}
        s_lshl_b32 s{s_t0}, s{s_qb}, 2
        s_add_u32 s{s_t0}, s{s_t0}, s{s_wj}
        s_lshl_b32 s{s_t0}, s{s_t0}, 10
        s_lshl_b32 s{s_t1}, s{s_par}, 3
        s_add_u32 s{s_t2}, s{s_t0}, s{s_t1}
        v_lshlrev_b32 v{T[2]}, 4, v{T[0]}
        v_lshl_add_u32 v{vq}, v{T[1]}, 15, v{T[2]}
        v_add_u32 v{vq}, s{s_t0}, v{vq}
        v_add_u32 v{vqr}, s{s_t2}, v{T[2]}
        """)

    eR, eL, eS, hR, hL, hS = 17, 18, 19, 8, 9, 10
    IDX, AK0, AR0, AV0, VQ, VQR, AQ = 20, 21, 22, 23, 24, 25, 26
    AK, AR, AV = 27, 28, 29
    R = Regs(216)
    MX = [R.get(), R.get()]
    Q1 = [R.get(4), R.get(4)]
    Q2 = [[R.get(2), R.get(2)], [R.get(2), R.get(2)]]
    K1 = [R.get(4), R.get(4)]
    K2 = [R.get(2), R.get(2)]
    V0 = [R.get(4), R.get(4)]
    PH = 32
    SS, CM, TS, OO, V1 = [96, 160], [112, 128], 144, [176, 192], [208, 212]

    AC, SO = 72, 80
    a(f"""
    {L('g0')}:
    v_lshlrev_b32 v{SO}, 4, v{T[0]}
    """)
    srd(a, sWS, 22, WS_TOP)
    load_tag()
    frag_addr()
    zero(GA, 128)
    attn_ids()
    tile_addr(hR, hL, hS)
    a(f"""
    v_mov_b32 v{eR}, v{hR}
    v_mov_b32 v{eS}, v{hS}
    s_cmp_lt_u32 s{s_cg}, 10
    s_cbranch_scc1 {L('ad_j')}
    v_lshrrev_b32 v{T[1]}, 4, v{vL}
    s_lshl_b32 s{s_t0}, s{s_t1}, 8
    s_add_u32 s{s_t0}, s{s_t0}, {L_NM}
    v_lshl_add_u32 v{eR}, v{T[1]}, 4, s{s_t0}
    s_lshr_b32 s{s_t2}, s{s_wj}, 1
    s_lshl_b32 s{s_t0}, s{s_t2}, 8
    s_add_u32 s{s_t0}, s{s_t0}, {L_CSA}
    v_lshl_add_u32 v{eL}, v{T[0]}, 2, s{s_t0}
    s_sub_u32 s{s_t0}, s{s_cg}, 10
    s_lshl_b32 s{s_t0}, s{s_t0}, 1
    s_add_u32 s{s_t0}, s{s_t0}, s{s_t2}
    s_lshl_b32 s{s_t0}, s{s_t0}, 10
    v_mul_u32_u24 v{T[1]}, 10240, v{T[1]}
    v_lshl_add_u32 v{T[1]}, v{T[0]}, 4, v{T[1]}
    v_add_u32 v{eS}, s{s_t0}, v{T[1]}
    {L('ad_j')}:
    """)
    q_addr(VQ, VQR)
    a(f"""
    v_mov_b32 v{IDX}, 0xdddddddd
    v_lshlrev_b32 v{AK0}, 4, v{vL}
    s_mul_i32 s{s_t0}, s{s_wj}, 3072
    v_add_u32 v{AQ}, s{s_t0}, v{AK0}
    v_add_u32 v{AK0}, {KV}, v{AK0}
    v_add_u32 v{AR0}, s{s_t1}, v{AK0}
    v_mad_u32_u24 v{T[2]}, v{T[1]}, 20, v{T[0]}
    v_lshlrev_b32 v{T[2]}, 4, v{T[2]}
    v_add_u32 v{T[2]}, {KV}, v{T[2]}
    v_cmp_gt_u32 vcc, 20, v{T[0]}
    v_mov_b32 v{T[4]}, {LDS_OOB}
    v_and_b32 v{T[3]}, 27, v{T[0]}
    v_cndmask_b32 v{T[2]}, v{T[4]}, v{T[2]}, vcc
    v_cmp_eq_u32 vcc, 24, v{T[3]}
    v_mov_b32 v{T[4]}, {KV + 640}
    s_mov_b32 s{s_slot}, {2 * SLOT}
    v_cndmask_b32 v{AV0}, v{T[2]}, v{T[4]}, vcc
    v_add_u32 v{AK}, s{s_slot}, v{AK0}
    v_add_u32 v{AR}, s{s_slot}, v{AR0}
    v_add_u32 v{AV}, s{s_slot}, v{AV0}
    """)
    a(f"""
    s_add_u32 s{s_t0}, s{s_t0}, s{s_t1}
    v_lshl_add_u32 v30, v{T[0]}, 4, s{s_t0}
    v_mov_b32 v31, v30
    s_mov_b32 exec_hi, 0
    v_mov_b32 v31, {LDS_OOB}
    s_not_b64 exec, exec
    v_mov_b32 v30, {LDS_OOB}
    s_mov_b64 exec, -1
    """)
    a("v_mov_b32 v84, 0x3f803f80")
    a(f"""
    s_lshl_b32 s{s_o[2]}, s{s_cg}, 1
    s_lshr_b32 s{s_t0}, s{s_wj}, 1
    s_add_u32 s{s_o[2]}, s{s_o[2]}, s{s_t0}
    s_lshl_b32 s{s_fl}, s{s_o[2]}, 4
    s_add_u32 s{s_fl}, s{s_fl}, s{s_rb}
    s_lshl_b32 s{s_fl}, s{s_fl}, 1
    s_and_b32 s{s_t0}, s{s_wj}, 1
    s_add_u32 s{s_fl}, s{s_fl}, s{s_t0}
    s_mov_b32 s{s_c}, 0
    s_mov_b32 s{s_ring}, 0
    s_mov_b32 s{s_wstep}, {STG}
    s_waitcnt lgkmcnt(0)
    s_add_u32 s{s_tag}, s{s_tag}, 1
    s_cmp_ge_u32 s{s_wj}, s{s_hook}
    s_cbranch_scc1 {L('st_m')}
    v_mov_b32 v{AC}, 0
    v_mov_b32 v{AC + 2}, 0
    v_mov_b32 v{AC + 1}, s{s_tag}
    v_mov_b32 v{AC + 3}, s{s_tag}
    """)
    for q in range(5):
        a(f"s_waitcnt vmcnt({4 - q})")
        for r in range(SD + 4 * q, SD + 4 * q + 4):
            a(f"v_dot2c_f32_bf16 v{AC}, v{r}, v84\nv_dot2c_f32_bf16 v{AC + 2}, v{r}, v{r}")
    a("s_nop 1")
    for sh in (8, 4, 2, 1):
        a(f"""
        s_nop 0
        v_add_f32_dpp v{AC}, v{AC}, v{AC} row_ror:{sh} row_mask:0xf bank_mask:0xf
        v_add_f32_dpp v{AC + 2}, v{AC + 2}, v{AC + 2} row_ror:{sh} row_mask:0xf bank_mask:0xf
        """)
    a(f"""
    v_mul_f32 v{AC}, {f32(-1.0 / D)}, v{AC}
    v_mul_f32 v{AC + 2}, {f32(1.0 / D)}, v{AC + 2}
    v_fma_f32 v{AC + 2}, -v{AC}, v{AC}, v{AC + 2}
    v_max_f32 v{AC + 2}, 0, v{AC + 2}
    v_add_f32 v{AC + 2}, {f32(1e-5)}, v{AC + 2}
    v_rsq_f32 v{AC + 2}, v{AC + 2}
    s_lshl_b32 s{s_t0}, s{s_wj}, 6
    s_add_u32 s{s_t0}, s{s_t0}, {L_RP}
    v_add_u32 v{T[2]}, s{s_t0}, v{SO}
    s_mov_b32 exec_lo, 0x00010001
    s_mov_b32 exec_hi, 0x00010001
    ds_write_b128 v{T[2]}, {vr(AC, 4)}
    s_mov_b64 exec, -1
    s_waitcnt lgkmcnt(0)
    {L('st_m')}:
    s_cmp_eq_u32 s{s_cg}, 15
    s_cbranch_scc1 {L('a_none')}
    """)
    stamp(a, prof, 1)
    a("s_barrier")
    stamp(a, prof, 2)
    a("\n".join(both(LW, 0, 0)))
    a(f"""
    s_cmp_ge_u32 s{s_cg}, 10
    s_waitcnt lgkmcnt(0)
    s_cbranch_scc0 {L('jN')}
    s_cmp_ge_u32 s{s_o[2]}, 27
    s_cbranch_scc1 {L('sV')}
    """)

    def lane_stats(dst, addr):
        for tt in range(4):
            a(f"ds_read2_b32 {vr(dst + 2 * tt, 2)}, v{addr} offset0:{16 * tt} offset1:{128 + 16 * tt}")

    def reg_stats(dst, addr, off):
        for i in range(4):
            a(f"ds_read_b128 {vr(dst + 4 * i, 4)}, v{addr} offset:{off + 64 * i}")

    def centre(cs, nr, tt, prs):
        for r, q in prs:
            a(f"v_pk_fma_f32 {vr(r, 2)}, {vr(cs + q, 2)}, {vr(nr + 2 * tt, 2)}, {vr(r, 2)} op_sel:[0,0,0] op_sel_hi:[1,0,1]")

    E0, E1 = 224, 240
    F0, F1, F2 = 96, 112, 128

    def qk_math(tt, prs):
        centre(E0, E1, tt, prs)
        for r, q in prs:
            a(f"v_pk_mul_f32 {vr(r, 2)}, {vr(r, 2)}, {vr(E1 + 2 * tt, 2)} op_sel:[0,1] op_sel_hi:[1,1]")

    def ffn_math(tt, prs):
        centre(F0, F2, tt, prs)
        for r, q in prs:
            a(f"v_pk_fma_f32 {vr(r, 2)}, {vr(r, 2)}, {vr(F2 + 2 * tt, 2)}, {vr(F1 + q, 2)} op_sel:[0,1,0] op_sel_hi:[1,1,1]")
        for r, q in prs:
            a(f"v_max_f32 v{r}, 0, v{r}\nv_max_f32 v{r + 1}, 0, v{r + 1}")
        for r, q in prs:
            a(f"v_pk_mul_f32 {vr(r, 2)}, {vr(r, 2)}, {vr(r, 2)}")

    joint("jV", True)
    single("sV", LW, GA, True, True, 10)
    CV = 80
    a(f"ds_read2_b32 {vr(CV, 2)}, v{eL} offset0:0 offset1:16\nds_read2_b32 {vr(CV + 2, 2)}, v{eL} offset0:32 offset1:48")
    reg_stats(E0, eR, 0)
    reg_stats(E1, eR, 512)
    a(f"""
    s_and_b32 s{s_t1}, s{s_wj}, 1
    s_lshl_b32 s{s_t0}, s{s_rb}, 1
    s_add_u32 s{s_t0}, s{s_t0}, s{s_t1}
    s_mul_i32 s{s_o[0]}, s{s_t0}, 81920
    s_add_u32 s{s_o[0]}, s{s_o[0]}, {WS_V}
    s_add_u32 s{s_o[1]}, s{s_o[0]}, 40960
    s_waitcnt lgkmcnt(0)
    """)
    a("\n".join(wreads(LF, 0, 0)))
    stamp(a, prof, 3)
    for kt in range(2):
        for ci in range(4):
            ob = 88 + 4 * (ci & 1)
            prs = [(gacc(tt, ci) + i, 4 * tt + i) for tt in (2 * kt, 2 * kt + 1) for i in (0, 2)]
            for r, q in prs:
                a(f"v_pk_fma_f32 {vr(r, 2)}, {vr(E0 + q, 2)}, {vr(CV + (ci & 2), 2)}, {vr(r, 2)} op_sel:[0,{ci & 1},0] op_sel_hi:[1,{ci & 1},1]")
            for r, q in prs:
                a(f"v_pk_mul_f32 {vr(r, 2)}, {vr(r, 2)}, {vr(E1 + q, 2)}")
            for p in range(4):
                a(f"v_cvt_pk_bf16_f32 v{ob + p}, v{prs[p][0]}, v{prs[p][0] + 1}")
            a(put_piece(ob, eS, kt, ci))
    a(f"""
    s_cmp_ge_u32 s{s_o[2]}, 27
    s_cbranch_scc0 {L('a_done')}
    s_barrier
    s_waitcnt vmcnt(0) lgkmcnt(0)
    """)
    set_flag(WS_FA)
    a(f"""
    s_barrier
    {L('a_none')}:
    s_mov_b32 s{s_o[0]}, {WS_TOP}
    s_mov_b32 s{s_o[1]}, {WS_TOP}
    s_branch {L('a_go')}
    """)
    joint("jN", False)
    single("sN", LW, GA, False, True, 10)
    reg_stats(E0, eR, L_CSA - L_NM)
    lane_stats(E1, hL)
    a(f"""
    s_lshl_b32 s{s_o[0]}, s{s_o[2]}, 18
    s_add_u32 s{s_o[1]}, s{s_o[0]}, {4 * CH}
    s_cmp_lt_u32 s{s_cg}, 5
    s_cselect_b32 s{s_t0}, {QSCALE}, 1.0
    s_waitcnt lgkmcnt(0)
    """)
    a("\n".join(wreads(LF, 0, 0)))
    stamp(a, prof, 3)
    for tt in range(4):
        a(f"v_mul_f32 v{E1 + 2 * tt + 1}, s{s_t0}, v{E1 + 2 * tt + 1}")
    pack_tiles(GA, qk_math, lambda cp, tt: 248 + 4 * cp, eS)
    a(f"{L('a_done')}:")
    stamp(a, prof, 4)
    a("s_waitcnt lgkmcnt(0)\ns_barrier")
    reg_stats(F0, hR, L_CSB - L_NM)
    reg_stats(F1, hR, L_BI - L_NM)
    lane_stats(F2, hL)
    if cfg["flag"] == -2:
        a("s_waitcnt vmcnt(0)")
        stamp(a, prof, 14)
    a("s_waitcnt lgkmcnt(3)")
    single("sF", LF, GB, False, False, 13)
    stamp(a, prof, 12)

    def hand_over(tt):
        if tt == max(cfg["flag"], -1):
            a("s_waitcnt vmcnt(0)")
            set_flag(WS_FA)
            stamp(a, prof, 5)
            a("s_barrier")

    hand_over(-1)

    pack_tiles(GB, ffn_math, lambda cp, tt: PH + 16 * cp + 4 * tt, between=hand_over)
    a(f"""
    s_add_u32 s{s_o[0]}, s{s_o[2]}, 20
    s_lshl_b32 s{s_o[0]}, s{s_o[0]}, 18
    s_add_u32 s{s_o[1]}, s{s_o[0]}, {4 * CH}
    {L('a_go')}:
    s_setprio 1
    s_mov_b32 s{s_c}, 0
    """)
    zero(SS[1], 16 + 32 + 8)
    stamp(a, prof, 13)
    hput = [put_piece(PH + 4 * k, hS, k >> 2, k & 3) for k in range(8)]
    if cfg["hpos"] == 0:
        a("s_barrier\n" + "\n".join(hput))
        hput = [""] * 8
    a("s_barrier")
    stamp(a, prof, 6)
    for ab in range(2):
        a(f"ds_read_b128 {vr(Q1[ab], 4)}, v{AQ} offset:{L_Q + 1024 * ab}")
        for par in range(2):
            a(f"ds_read_b64 {vr(Q2[ab][par], 2)}, v{30 + par} offset:{L_Q + 2048 + 512 * ab}")

    def rdK1(t):
        return f"ds_read_b128 {vr(K1[t & 1], 4)}, v{AK} offset:{(t & 7) * 1024}"

    def rdK2(p):
        return f"ds_read_b64 {vr(K2[p & 1], 2)}, v{AR} offset:{OFF_R + (p & 3) * 1024}"

    def rdV(j, t):
        return f"ds_read_b128 {vr((V0, V1)[j][t & 1], 4)}, v{AV} offset:{OFF_V + ((t & 7) * 2 + j) * 656}"

    def qk1(dst, ab, t, c):
        return f"v_mfma_f32_32x32x16_bf16 {vr(dst, 16)}, {vr(K1[t & 1], 4)}, {vr(Q1[ab], 4)}, {c}"

    def qk2(dst, ab, t):
        return f"v_mfma_f32_32x32x8_bf16 {vr(dst, 16)}, {vr(K2[(t >> 1) & 1], 2)}, {vr(Q2[ab][t & 1], 2)}, {vr(dst, 16)}"

    def pv(ab, j, t):
        return f"v_smfmac_f32_32x32x32_bf16 {vr(OO[ab], 16)}, {vr((V0, V1)[j][t & 1], 4)}, {vr(SS[ab] + 8 * j, 8)}, v{IDX}"

    def row_max(dst, bufs):
        regs = [b + i for b in bufs for i in range(16)]
        a(f"v_max3_f32 v{dst}, v{regs[0]}, v{regs[1]}, v{regs[2]}")
        rest = regs[3:]
        while len(rest) >= 2:
            a(f"v_max3_f32 v{dst}, v{dst}, v{rest[0]}, v{rest[1]}")
            rest = rest[2:]
        if rest:
            a(f"v_max_f32 v{dst}, v{dst}, v{rest[0]}")

    def set_shift(ab, shift):
        m = MX[ab]
        a(f"""
        v_mov_b32 v{T[2]}, v{m}
        s_nop 1
        v_permlane32_swap_b32 v{m}, v{T[2]}
        v_max_f32 v{m}, v{m}, v{T[2]}
        v_sub_f32 v{CM[ab]}, {f32(-shift) if shift else 0}, v{m}
        v_mov_b32 v{CM[ab] + 1}, v{CM[ab]}
        """)
        for i in range(2, 16, 2):
            a(f"v_mov_b64 {vr(CM[ab] + i, 2)}, {vr(CM[ab], 2)}")

    a("\n".join([rdK1(0), rdK2(0), rdK1(1), rdV(0, 0), rdV(1, 0)]))
    a("s_waitcnt lgkmcnt(0)" if prof else "s_waitcnt lgkmcnt(2)")
    est = {(0, 0): SS[0], (0, 1): CM[0], (1, 0): TS, (1, 1): CM[1]}
    for ab in range(2):
        for t in range(2):
            a(qk1(est[ab, t], ab, t, 0))
            a(hput[2 * ab + t])
            a(qk2(est[ab, t], ab, t))
    a("s_nop 7")
    row_max(MX[0], [SS[0], CM[0]])
    a(hput[4])
    set_shift(0, SHIFT)
    a("s_nop 1")
    a(qk1(SS[0], 0, 0, vr(CM[0], 16)))
    a(hput[5])
    a(qk2(SS[0], 0, 0))
    row_max(MX[1], [TS, CM[1]])
    a(hput[6])
    set_shift(1, SHIFT)
    a(hput[7])
    a("s_waitcnt lgkmcnt(0)")

    def slot_events(ab, t):
        o = 1 - ab
        tp = t - 1 if ab == 0 else t
        tn = t if ab == 0 else t + 1
        e = [("i", f"v_exp_f32 v{SS[ab] + i}, v{SS[ab] + i}") for i in range(16)]
        ev = []
        if ab == 0 and t % 8 == 7:
            ev += [("i", f"v_add_u32 v{AV}, s{s_slot}, v{AV0}")]
        ev += e[0:2]
        ev += [("use", ("V1", tp)), ("i", pv(o, 1, tp)), ("wait",)]
        if ab == 1 and t % 8 == cfg["hk"]:
            ev += [("i", f"s_cmp_eq_u32 s{s_c}, 0")]
        if ab == 0 and t % 8 == 6:
            ev += [("i", "s_barrier")]
        if ab == 0 and t % 8 == 4:
            ev += [("i", f"s_add_u32 s{s_slot}, s{s_slot}, {SLOT}")]
        if ab == 1 and t % 8 == 4:
            ev += [("i", f"s_cmp_eq_u32 s{s_slot}, {3 * SLOT}")]
        if ab == 1 and t % 8 == 6:
            ev += [("i", f"s_add_u32 s{s_c}, s{s_c}, 1")]
        if ab == 0:
            ev += [("rd", rdV(1, t + 1), ("V1", t + 1))]
        ev += e[2:5]
        if ab == 0 and t % 8 == 6:
            ev += [("i", f"v_add_u32 v{AK}, s{s_slot}, v{AK0}"), ("i", f"v_add_u32 v{AR}, s{s_slot}, v{AR0}")]
        ev += [("use", ("K1", tn)), ("i", qk1(SS[o], o, tn, vr(CM[o], 16))), ("wait",)]
        if ab == 0:
            ev += [("rd", rdK1(t + 2), ("K1", t + 2))]
        else:
            ev += [("rd", rdV(0, t + 1), ("V0", t + 1))]
        ev += e[5:8]
        ev += [("use", ("K2", tn >> 1)), ("i", qk2(SS[o], o, tn))]
        ev += e[8:12]
        ev += [("use", ("V0", t)), ("i", pv(ab, 0, t)), ("wait",)]
        if ab == 1 and t % 8 == 4:
            ev += [("i", f"s_cselect_b32 s{s_slot}, 0, s{s_slot}")]
        if ab == 1 and t % 8 == cfg["hk"]:
            ev += [("i", f"s_cbranch_scc1 {L('hk')}\n{L('hk_r')}:")]
        if ab == 1 and t % 8 == 7:
            ev += [("i", f"s_cmp_lt_u32 s{s_c}, 8")]
        if ab == 1 and t % 2 == 0:
            ev += [("rd", rdK2(t // 2 + 1), ("K2", t // 2 + 1))]
        ev += e[12:16]
        return ev

    evs = []
    for t in range(24):
        for ab in range(2):
            evs += [(t, x) for x in slot_events(ab, t)]
    issue_idx = {}
    n = 0
    for t, x in evs:
        if x[0] == "rd":
            issue_idx[x[2]] = n
            n += 1
    tail4 = "\n".join(f"v_exp_f32 v{SS[1] + i}, v{SS[1] + i}" for i in range(12, 16))
    a(f"s_branch {L('aent')}\n.p2align 3\n{L('aloop')}:\n{tail4}\n{L('aent')}:")
    n, have = 0, -1
    for k, (t, x) in enumerate(evs):
        emit = 8 <= t < 16
        if x[0] == "rd":
            n += 1
            if emit:
                a(x[1])
        elif x[0] == "i":
            if emit:
                a(x[1])
        elif x[0] == "wait" and t >= 4:
            need = -1
            for t2, y in evs[k + 1:]:
                if y[0] == "wait":
                    break
                if y[0] == "use":
                    assert issue_idx[y[1]] < n, (t, y)
                    need = max(need, issue_idx[y[1]])
            if need > have and emit:
                a(f"s_waitcnt lgkmcnt({n - 1 - need})")
            have = max(have, need)
    del a.lines[-4:]
    if 0 < cfg.get("trace", 0) < 4:
        stamp(a, prof, 23)
        a("s_waitcnt lgkmcnt(0)")
    a(f"s_cbranch_scc1 {L('aloop')}")
    a(tail4)

    def magnitude(ab):
        o, t = OO[ab], T[2 + ab]
        a(f"v_maximum3_f32 v{t}, |v{o}|, |v{o + 1}|, |v{o + 2}|")
        for i in (3, 5, 7, 9):
            a(f"v_maximum3_f32 v{t}, v{t}, |v{o + i}|, |v{o + i + 1}|")
        a(f"v_maximum3_f32 v{t}, v{t}, |v{o + 11}|, |v{o + 11}|")

    def normalise(ab, guard):
        o = OO[ab]
        for p in range(6):
            a(f"v_pk_mul_f32 {vr(o + 2 * p, 2)}, {vr(o + 2 * p, 2)}, {vr(o + 12, 2)} op_sel:[0,1] op_sel_hi:[1,1]")
        for p in range(6):
            a(f"v_cvt_pk_bf16_f32 v{CM[ab] + p}, v{o + 2 * p}, v{o + 2 * p + 1}")
        if guard:
            for p in (1, 3, 5):
                a(f"v_min_u32 v{CM[ab] + p}, -2, v{CM[ab] + p}")

    a(f"v_rcp_f32 v{OO[0] + 13}, v{OO[0] + 12}\ns_waitcnt lgkmcnt(0)")
    a(pv(1, 1, 7))
    stamp(a, prof, 7)
    a(f"""
    s_barrier
    s_mov_b32 s{s_t0}, {f32(2.0 ** 126)}
    s_mov_b32 s{s_t1}, {f32(2.0 ** (-7 - SHIFT))}
    """)
    magnitude(0)
    normalise(0, False)
    a(f"v_rcp_f32 v{OO[1] + 13}, v{OO[1] + 12}")
    magnitude(1)
    a(f"""
    v_maximum3_f32 v{T[4]}, v{T[2]}, v{T[3]}, v{OO[0] + 12}
    v_min_f32 v{T[2]}, v{T[2]}, v{T[3]}
    v_maximum3_f32 v{T[4]}, v{T[4]}, v{OO[1] + 12}, v{OO[1] + 12}
    v_cmp_le_f32 vcc, s{s_t1}, v{T[2]}
    v_cmp_gt_f32 s[{s_t2}:{s_t2 + 1}], s{s_t0}, v{T[4]}
    s_add_u32 s{s_t0}, s{s_cm}, {C_O * CH}
    s_add_u32 s{s_t1}, s{s_cr}, {C_O * CH}
    s_and_b64 vcc, vcc, s[{s_t2}:{s_t2 + 1}]
    s_cmp_eq_u64 vcc, exec
    """)
    a(f"s_branch {L('slow')}" if force_fallback else f"s_cbranch_scc0 {L('slow')}")

    def put_out(ab):
        a(f"""
        buffer_store_dwordx4 {vr(CM[ab], 4)}, v{VQ}, {WSD}, s{s_t0} offen offset:{512 * ab} sc1
        s_mov_b32 exec_hi, 0
        buffer_store_dwordx2 {vr(CM[ab] + 4, 2)}, v{VQR}, {WSD}, s{s_t1} offen offset:{512 * ab} sc1
        s_mov_b32 exec_hi, -1
        """)

    put_out(0)
    normalise(1, False)
    a(f"{L('norm')}:")
    put_out(1)
    stamp(a, prof, 17)
    a("s_barrier")
    stamp(a, prof, 8)
    a(f"s_branch {L('dump')}" if prof else "s_endpgm")

    a(f"{L('hk')}:\ns_waitcnt vmcnt(0)")
    set_flag(WS_FH)
    a(f"s_branch {L('hk_r')}")

    a(f"{L('slow')}:")
    GR, GV = AR, AV
    a(f"v_and_b32 v{T[0]}, 31, v{vL}\nv_lshrrev_b32 v{T[1]}, 5, v{vL}")
    key_perm(T[2], T[0], T[3], T[4])
    a(f"""
    s_lshl_b32 s{s_t0}, s{s_par}, 3
    s_add_u32 s{s_t0}, s{s_t0}, s{s_cr}
    v_lshl_add_u32 v{GR}, v{T[2]}, 4, s{s_t0}
    v_lshl_add_u32 v{vK}, v{T[2]}, 4, s{s_cm}
    v_lshl_add_u32 v{vK}, v{T[1]}, 15, v{vK}
    """)
    v_feature(T[2], T[0], T[3], T[4])
    a(f"""
    s_mul_i32 s{s_t0}, s{s_head}, 320
    v_mul_u32_u24 v{T[4]}, 10240, v{T[1]}
    v_lshl_add_u32 v{T[2]}, v{T[2]}, 4, v{T[4]}
    v_add_u32 v{GV}, s{s_t0}, v{T[2]}
    v_mov_b32 v{MX[0]}, 0xff800000
    v_mov_b32 v{MX[1]}, 0xff800000
    s_mov_b32 s{s_ko}, {C_K * CH}
    {L('slow1')}:
    buffer_load_dwordx4 {vr(K1[0], 4)}, v{vK}, {WSD}, s{s_ko} offen sc1
    buffer_load_dwordx2 {vr(K2[0], 2)}, v{GR}, {WSD}, s{s_ko} offen sc1
    s_add_u32 s{s_ko}, s{s_ko}, 512
    s_waitcnt vmcnt(0)
    """)
    for ab in range(2):
        a(qk1(SS[ab], ab, 0, 0))
        a(qk2(SS[ab], ab, 0))
    a("s_nop 7\ns_nop 3")
    for ab in range(2):
        for i in range(0, 16, 2):
            a(f"v_max3_f32 v{MX[ab]}, v{MX[ab]}, v{SS[ab] + i}, v{SS[ab] + i + 1}")
    a(f"s_cmp_lt_u32 s{s_ko}, {(C_K + 1) * CH}\ns_cbranch_scc1 {L('slow1')}")
    for ab in range(2):
        set_shift(ab, 0)
    zero(OO[0], 32)
    for r in range(4):
        a(f"v_mov_b32 v{V0[0] + r}, 0x3f803f80\nv_mov_b32 v{V1[0] + r}, 0x3f803f80")
    a(f"""
    s_mov_b32 s{s_ko}, {C_K * CH}
    s_mov_b32 s{s_vo}, {WS_V}
    {L('slow2')}:
    buffer_load_dwordx4 {vr(K1[0], 4)}, v{vK}, {WSD}, s{s_ko} offen sc1
    buffer_load_dwordx2 {vr(K2[0], 2)}, v{GR}, {WSD}, s{s_ko} offen sc1
    s_mov_b32 exec_lo, 0xfffff
    s_mov_b32 exec_hi, 0xfffff
    buffer_load_dwordx4 {vr(V0[0], 4)}, v{GV}, {WSD}, s{s_vo} offen sc1
    s_add_u32 s{s_vo}, s{s_vo}, 20480
    buffer_load_dwordx4 {vr(V1[0], 4)}, v{GV}, {WSD}, s{s_vo} offen sc1
    s_mov_b64 exec, -1
    s_add_u32 s{s_vo}, s{s_vo}, 20480
    s_add_u32 s{s_ko}, s{s_ko}, 512
    s_waitcnt vmcnt(0)
    """)
    for ab in range(2):
        a(qk1(SS[ab], ab, 0, vr(CM[ab], 16)))
        a(qk2(SS[ab], ab, 0))
    a("s_nop 7\ns_nop 3")
    for ab in range(2):
        for i in range(16):
            a(f"v_exp_f32 v{SS[ab] + i}, v{SS[ab] + i}")
    a("s_nop 1")
    for ab in range(2):
        a(pv(ab, 0, 0))
        a(pv(ab, 1, 0))
    a(f"""
    s_cmp_lt_u32 s{s_ko}, {(C_K + 1) * CH}
    s_cbranch_scc1 {L('slow2')}
    s_nop 7
    s_nop 3
    v_rcp_f32 v{OO[0] + 13}, v{OO[0] + 12}
    v_rcp_f32 v{OO[1] + 13}, v{OO[1] + 12}
    s_add_u32 s{s_t0}, s{s_cm}, {C_O * CH}
    s_add_u32 s{s_t1}, s{s_cr}, {C_O * CH}
    """)
    normalise(0, True)
    normalise(1, True)
    put_out(0)
    a(f"s_branch {L('norm')}")

    a(f"""
    {L('near')}:
    s_lshl_b32 s{s_t0}, s{s_rb}, 3
    s_add_u32 s{s_t0}, s{s_t0}, s{s_w}
    s_mul_i32 s{s_t1}, s{s_t0}, {135 * 128}
    s_mul_i32 s{s_t0}, s{s_t0}, {50 * 128}
    v_lshlrev_b32 v{T[2]}, 7, v{vL}
    s_mov_b64 s[{sA}:{sA + 1}], s[16:17]
    s_mov_b32 s{sA + 2}, {F * D * 2}
    s_mov_b32 exec_hi, 0x1fff
    """)
    for i in range(3):
        a(f"buffer_load_dword v{88 + i}, v{T[2]}, s[{sA}:{sA + 3}], s{s_t1} offen\ns_add_u32 s{s_t1}, s{s_t1}, {45 * 128}")
    a(f"""
    s_mov_b64 s[{sA}:{sA + 1}], s[8:9]
    s_mov_b32 s{sA + 2}, {D * D * 2}
    s_mov_b32 exec_hi, 0x3ffff
    buffer_load_dword v91, v{T[2]}, s[{sA}:{sA + 3}], s{s_t0} offen
    s_mov_b32 exec_hi, -1
    s_branch {L('p_go')}
    """)

    g0_lines, a.lines = a.lines, []
    MK, G = 84, 96
    VX, VW, VG = [11, 12, 13, 14], [15, 16, 17, 18], [19, 20, 21, 22]
    gR, gL, gA, gB = 24, 25, 26, 27
    fC, mQ, mQR, mQD, fB, FK, FO, one, pH, pO = range(246, 256)

    def w_addr(VF, stride):
        a(f"""
        v_lshrrev_b32 v{T[0]}, 4, v{vL}
        v_lshlrev_b32 v{T[1]}, 1, v{T[0]}
        v_xor_b32 v{T[1]}, v{T[1]}, v{vL}
        v_and_b32 v{T[1]}, 15, v{T[1]}
        s_lshl_b32 s{s_t1}, s{s_cg}, 8
        s_mul_i32 s{s_t0}, s{s_wj}, {16 * stride}
        s_add_u32 s{s_t1}, s{s_t1}, s{s_t0}
        v_mul_u32_u24 v{T[0]}, {stride}, v{T[0]}
        v_add_u32 v{T[0]}, s{s_t1}, v{T[0]}
        v_lshl_add_u32 v{VF[0]}, v{T[1]}, 4, v{T[0]}
        v_xor_b32 v{T[1]}, 8, v{T[1]}
        v_lshl_add_u32 v{VF[2]}, v{T[1]}, 4, v{T[0]}
        v_add_u32 v{VF[1]}, {4 * stride - 1024}, v{VF[0]}
        v_add_u32 v{VF[3]}, {3 * (4 * stride - 1024)}, v{VF[2]}
        v_add_u32 v{VF[2]}, {2 * (4 * stride - 1024)}, v{VF[2]}
        """)

    TF, TA, TV = 32, [52, 53], [54, 55, 56, 57, 58]
    has_block = f"s_cmp_lt_u32 s{s_tt}, 74"

    def block_addr():
        a(f"""
        s_and_b32 s{s_tt}, s2, 31
        s_lshl_b32 s{s_t0}, s{s_wj}, 5
        s_add_u32 s{s_tt}, s{s_tt}, s{s_t0}
        s_mul_i32 s{s_c}, s{s_wj}, 5120
        s_add_u32 s{s_c}, s{s_c}, {STG + LW}
        """)
        for i in range(5):
            a(f"""
            v_add_u32 v{T[2]}, {64 * i}, v{vL}
            v_mul_u32_u24 v{T[3]}, 6554, v{T[2]}
            v_lshrrev_b32 v{T[3]}, 16, v{T[3]}
            v_mul_u32_u24 v{T[3]}, {1280 - 160}, v{T[3]}
            v_lshl_add_u32 v{TV[i]}, v{T[2]}, 4, v{T[3]}
            """)
        a(f"""
        v_lshrrev_b32 v{T[2]}, 4, v{vL}
        v_bfe_u32 v{T[3]}, v{vL}, 2, 2
        v_lshl_add_u32 v{T[2]}, v{T[2]}, 3, v{T[3]}
        v_mul_u32_u24 v{T[2]}, 160, v{T[2]}
        v_add_u32 v{T[2]}, s{s_c}, v{T[2]}
        v_and_b32 v{T[3]}, 3, v{vL}
        v_lshl_add_u32 v{TA[0]}, v{T[3]}, 4, v{T[2]}
        v_lshl_add_u32 v{TA[1]}, v{T[3]}, 3, v{T[2]}
        """)

    def block_fetch():
        a(f"""
        s_cmp_lt_u32 s{s_tt}, 54
        s_cselect_b64 s[{sA}:{sA + 1}], s[16:17], s[8:9]
        s_mov_b32 s{sA + 2}, {F * D * 2}
        s_cselect_b32 s{sA + 2}, s{sA + 2}, {D * D * 2}
        s_cselect_b32 s{s_t1}, 0, 54
        s_sub_u32 s{s_t0}, s{s_tt}, s{s_t1}
        s_mul_i32 s{s_t0}, s{s_t0}, {32 * 1280}
        s_mul_i32 s{s_t1}, s{s_qb}, 160
        s_add_u32 s{s_t0}, s{s_t0}, s{s_t1}
        """)
        for i in range(5):
            a(f"s_add_u32 m0, s{s_c}, {i * 1024}\ns_nop 0")
            a(f"buffer_load_dwordx4 v{TV[i]}, s[{sA}:{sA + 3}], s{s_t0} offen lds")

    def block_turn():
        a("s_waitcnt vmcnt(0)")
        for c in range(5):
            va, off = (TA[0], 64 * (c >> 1) + 8 * (c & 1)) if c < 4 else (TA[1], 128)
            for h in range(2):
                a(f"ds_read_b64_tr_b16 {vr(TF + 4 * c + 2 * h, 2)}, v{va} offset:{off + 640 * h}")
        a("s_waitcnt lgkmcnt(0)")

    def block_put():
        a(f"""
        s_mul_i32 s{s_t0}, s{s_tt}, {KS_ROW}
        s_mul_i32 s{s_t1}, s{s_qb}, 5120
        s_add_u32 s{s_t0}, s{s_t0}, s{s_t1}
        s_add_u32 s{s_t0}, s{s_t0}, {WS_WT}
        s_add_u32 s{s_t1}, s{s_t0}, 4096
        v_lshlrev_b32 v{T[2]}, 4, v{vL}
        """)
        for c in range(5):
            a(f"buffer_store_dwordx4 {vr(TF + 4 * c, 4)}, v{T[2]}, {WSD}, s{(s_t0, s_t1)[c >> 2]} offen offset:{1024 * (c & 3)} sc1")

    def later_addr():
        attn_ids()
        block_addr()
        kv_addr(0)
        ones_addr(one, 0, 3)
        a(f"v_and_b32 v{T[0]}, 1, v{vL}")
        head_unit(T[1], T[0])
        a(f"""
        v_bfe_u32 v{T[0]}, v{vL}, 1, 2
        v_min_u32 v{T[0]}, 2, v{T[0]}
        v_mad_u32_u24 v{T[1]}, v{T[0]}, 10, v{T[1]}
        s_lshl_b32 s{s_t0}, s{s_qb}, 2
        s_add_u32 s{s_t0}, s{s_t0}, s{s_wj}
        """)
        flag_of_tile(FO, f"s{s_t0}", T[1])
        a(f"v_and_b32 v{T[0]}, 1, v{vL}")
        head_unit(T[1], T[0])
        a(f"""
        v_bfe_u32 v{T[0]}, v{vL}, 1, 1
        v_mad_u32_u24 v{T[1]}, v{T[0]}, 10, v{T[1]}
        v_add_u32 v{T[1]}, 10, v{T[1]}
        v_and_b32 v{T[0]}, 28, v{vL}
        v_add_u32 v{T[0]}, s{s_wj}, v{T[0]}
        """)
        flag_of_tile(FK, f"v{T[0]}", T[1])
        q_addr(mQ, mQR)
        a(f"""
        v_lshl_add_u32 v{mQD}, v{vL}, 4, s{s_t0}
        s_lshl_b32 s{s_t0}, s{s_head}, 2
        s_add_u32 s{s_t0}, s{s_t0}, s{s_wj}
        v_and_b32 v{T[2]}, 15, v{vL}
        v_lshl_add_u32 v{T[2]}, s{s_t0}, 4, v{T[2]}
        v_lshrrev_b32 v{T[3]}, 4, v{vL}
        v_lshlrev_b32 v{pH}, 15, v{T[3]}
        v_lshl_add_u32 v{pH}, v{T[2]}, 4, v{pH}
        v_mul_u32_u24 v{pO}, 1280, v{T[2]}
        """)
        a(f"""
        v_min_u32 v{T[3]}, 26, v{T[0]}
        v_lshl_add_u32 v{fC}, v{T[3]}, 5, s{s_head}
        v_lshl_add_u32 v{T[3]}, v{T[0]}, 2, s{s_wj}
        v_min_u32 v{T[3]}, 53, v{T[3]}
        v_subrev_u32 v{T[4]}, 16, v{T[0]}
        v_min_u32 v{T[4]}, 4, v{T[4]}
        v_lshl_add_u32 v{T[4]}, v{T[4]}, 2, s{s_wj}
        s_lshl_b32 s{s_t0}, s{s_qb}, 7
        s_add_u32 s{s_t0}, s{s_t0}, 1024
        s_add_u32 s{s_fl}, s{s_t0}, s{s_tt}
        s_add_u32 s{s_t1}, s{s_t0}, 54
        s_mov_b32 exec_lo, 0
        v_add_u32 v{fC}, s{s_t0}, v{T[3]}
        s_mov_b32 exec_hi, 0xffff0000
        v_add_u32 v{fC}, s{s_t1}, v{T[4]}
        s_mov_b64 exec, -1
        v_lshlrev_b32 v{fC}, 7, v{fC}
        s_lshr_b32 s{s_t0}, s{s_head}, 2
        v_lshl_add_u32 v{fB}, s{s_t0}, 5, v{T[0]}
        v_lshlrev_b32 v{fB}, 7, v{fB}
        """)

    def boundary(wait=None):
        if wait is not None:
            a(f"s_waitcnt vmcnt({wait})")
        if 1 < cfg.get("trace", 0) < 4:
            stamp(a, prof, 21)
        a("s_barrier")

    def ask_tag():
        srd(a, sWS, 22, WS_TOP)
        load_tag()

    def take_tag():
        a(f"s_waitcnt lgkmcnt(0)\ns_add_u32 s{s_tag}, s{s_tag}, 1")

    def split(ops, n):
        k = -(-len(ops) // n)
        return [ops[i * k:(i + 1) * k] for i in range(n)]

    def feed(c, which="xwf", mix=()):
        mix = list(mix)
        per = -(-len(mix) // max(4 * len(which), 1))
        for key, part, va, sd, step in (("x", LX, VX, sX, 128), ("w", LW, VW, sW, 64 * 3840), ("f", LF, VG, sB, 64 * 3456)):
            if key in which:
                half = {"x": s_xo, "w": s_wstep, "f": s_ho}[key]
                a(f"s_add_u32 m0, s{s_ring}, {(c % 3) * STG + part}")
                a(f"s_add_u32 s{s_wo}, s{half}, {c * step}" if c < 5 else f"s_sub_u32 s{s_wo}, {c * step}, s{half}")
                for i in range(4):
                    a(f"buffer_load_dwordx4 v{va[i]}, s[{sd}:{sd + 3}], s{s_wo} offen offset:{1024 * i} lds")
                    a("\n".join(mix[:per]))
                    mix = mix[per:]

    def only(name, cond, fn):
        a(f"{cond}\ns_cbranch_scc0 {L(name)}")
        fn()
        a(f"{L(name)}:")

    feeding = f"s_cmp_lt_u32 s{s_cg}, 15"
    a(f"""
    s_lshl_b32 s{s_ring}, s{s_wj}, 12
    s_mul_i32 s{s_xo}, s{s_t3}, {5 * 128}
    s_mul_i32 s{s_wstep}, s{s_t3}, {5 * 64 * 3840}
    s_mul_i32 s{s_ho}, s{s_t3}, {5 * 64 * 3456}
    v_lshrrev_b32 v{T[2]}, 4, v{vL}
    v_xor_b32 v{T[2]}, v{T[2]}, v{T[1]}
    s_lshl_b32 s{s_t1}, s{s_rb}, 2
    s_add_u32 s{s_t1}, s{s_t1}, s{s_wj}
    s_mul_i32 s{s_t1}, s{s_t1}, {32 * 1280}
    v_mul_u32_u24 v{T[3]}, 1280, v{T[0]}
    v_add_u32 v{T[3]}, s{s_t1}, v{T[3]}
    v_lshl_add_u32 v{VX[0]}, v{T[2]}, 4, v{T[3]}
    v_xor_b32 v{T[2]}, 4, v{T[2]}
    v_lshl_add_u32 v{VX[1]}, v{T[2]}, 4, v{T[3]}
    v_add_u32 v{VX[2]}, {2 * (10240 - 1024)}, v{VX[0]}
    v_add_u32 v{VX[3]}, {3 * (10240 - 1024)}, v{VX[1]}
    v_add_u32 v{VX[1]}, {10240 - 1024}, v{VX[1]}
    v_and_b32 v{SO}, 48, v{vL}
    v_lshl_add_u32 v{SO}, v{T[1]}, 6, v{SO}
    """)
    srd(a, sX, 4, S * D * 2)

    def touch():
        a(f"""
        s_getpc_b64 s[{sA}:{sA + 1}]
        {L('pc')}:
        s_sub_u32 s{sA}, s{sA}, {L('pc')}-{label}
        s_subb_u32 s{sA + 1}, s{sA + 1}, 0
        s_mov_b32 s{sA + 2}, {L('end')}-{label}
        s_lshr_b32 s{s_t0}, s2, 3
        s_lshl_b32 s{s_t0}, s{s_t0}, 10
        v_lshlrev_b32 v{T[2]}, 7, v{vL}
        s_mov_b64 exec, 0xff
        buffer_load_dword v226, v{T[2]}, s[{sA}:{sA + 3}], s{s_t0} offen
        s_mov_b64 exec, -1
        """)

    def touch_x():
        a(f"""
        s_lshl_b32 s{s_t0}, s{s_rb}, 2
        s_add_u32 s{s_t0}, s{s_t0}, s{s_ocg}
        s_mul_i32 s{s_t0}, s{s_t0}, {32 * 1280}
        s_add_u32 s{s_t0}, s{s_t0}, s{s_xo}
        v_lshrrev_b32 v{T[2]}, 1, v{vL}
        v_mul_u32_u24 v{T[2]}, 1280, v{T[2]}
        v_and_b32 v{T[3]}, 1, v{vL}
        v_lshl_add_u32 v{T[2]}, v{T[3]}, 7, v{T[2]}
        buffer_load_dword v226, v{T[2]}, s[{sX}:{sX + 3}], s{s_t0} offen
        """)

    if cfg["touch"] & 1:
        only("tc", f"s_cmp_eq_u32 s{s_wj}, 0", touch)
    if cfg["touch"] & 2:
        only("tx", f"s_cmp_eq_u32 s{s_wj}, 1", touch_x)
    srd(a, sA, 14, F * 2)
    a(f"""
    s_lshl_b32 s{s_t2}, s{s_cg}, 8
    v_lshlrev_b32 v{T[2]}, 2, v{vL}
    buffer_load_dword v28, v{T[2]}, s[{sA}:{sA + 3}], s{s_t2} offen
    """)
    ask_tag()
    w_addr(VW, 3840)
    w_addr(VG, 3456)
    srd(a, sW, 6, D * 3 * D * 2)
    srd(a, sB, 12, D * F * 2)
    a(f"""
    s_cmp_lt_u32 s{s_cg}, 14
    s_cselect_b32 s{sB + 2}, s{sB + 2}, 0
    s_lshl_b32 s{s_o[1]}, s{s_o[1]}, 9
    s_add_u32 s{s_o[0]}, s{s_o[0]}, s{s_o[1]}
    s_add_u32 s{s_o[0]}, s{s_o[0]}, {WS_CP}
    s_and_b32 s{s_t1}, s{s_wj}, 1
    v_lshl_add_u32 v{gL}, s{s_t1}, 6, v{vL}
    s_lshl_b32 s{s_t3}, s{s_rb}, 11
    v_lshl_add_u32 v{gR}, v{gL}, 4, s{s_t3}
    s_lshl_b32 s{s_t2}, s{s_cg}, 6
    s_mul_i32 s{s_t1}, s{s_t1}, 960
    s_add_u32 s{s_t1}, s{s_t1}, s{s_t2}
    v_add_u32 v{gA}, s{s_t1}, v{vL}
    v_min_u32 v{gA}, 1823, v{gA}
    v_lshlrev_b32 v{gA}, 4, v{gA}
    s_mov_b32 s{s_spin}, {SPIN}
    v_lshrrev_b32 v23, 1, v{SO}
    v_add_u32 v23, {L_CP}, v23
    """)
    if cfg["early"]:
        later_addr()
    take_tag()
    stamp(a, prof, 44)

    def sums():
        for r in range(20):
            c = AC + 2 * (r & 3)
            if r < 4:
                a(f"v_lshlrev_b32 v{c}, 16, v{SD + r}\nv_and_b32 v{c + 1}, 0xffff0000, v{SD + r}")
            else:
                lo, hi = T[2 + 2 * (r & 1)], T[3 + 2 * (r & 1)]
                a(f"v_lshlrev_b32 v{lo}, 16, v{SD + r}\nv_and_b32 v{hi}, 0xffff0000, v{SD + r}\n"
                  f"v_add_f32 v{c}, v{c}, v{lo}\nv_add_f32 v{c + 1}, v{c + 1}, v{hi}")
        a(f"s_lshl_b32 s{s_t0}, s{s_wj}, 8\nv_add_u32 v{T[2]}, s{s_t0}, v23")
        for i in range(4):
            a(f"v_permlane32_swap_b32 v{AC + i}, v{AC + 4 + i}")
        for i in range(4):
            a(f"v_add_f32 v{AC + i}, v{AC + i}, v{AC + 4 + i}")
        a("s_nop 1")
        for i in range(2):
            a(f"v_permlane16_swap_b32 v{AC + i}, v{AC + 2 + i}")
        a(f"v_add_f32 v{AC}, v{AC}, v{AC + 2}\nv_add_f32 v{AC + 1}, v{AC + 1}, v{AC + 3}\ns_nop 1")
        for r in (AC, AC + 1):
            a(f"v_add_f32_dpp v{r}, v{r}, v{r} row_ror:8 row_mask:0xf bank_mask:0xf")
        a(f"ds_write_b64 v{T[2]}, {vr(AC, 2)}")

    def publish():
        for i in range(4):
            a(f"ds_read_b64 {vr(AC + 2 * i, 2)}, v23 offset:{256 * i}")
        a(f"""
        s_waitcnt lgkmcnt(0)
        v_add_f32 v{AC}, v{AC}, v{AC + 2}
        v_add_f32 v{AC + 2}, v{AC + 1}, v{AC + 3}
        v_add_f32 v{AC + 4}, v{AC + 4}, v{AC + 6}
        v_add_f32 v{AC + 5}, v{AC + 5}, v{AC + 7}
        v_add_f32 v{AC}, v{AC}, v{AC + 4}
        v_add_f32 v{AC + 2}, v{AC + 2}, v{AC + 5}
        v_mov_b32 v{AC + 1}, s{s_tag}
        v_mov_b32 v{AC + 3}, s{s_tag}
        s_mov_b32 exec_lo, 0x00ff00ff
        s_mov_b32 exec_hi, 0x00ff00ff
        buffer_store_dwordx4 {vr(AC, 4)}, v{SO}, {WSD}, s{s_o[0]} offen sc1
        s_mov_b64 exec, -1
        """)

    def publish_rows():
        a(f"""
        s_and_b32 s{s_t0}, s2, 1
        s_lshl_b32 s{s_t0}, s{s_t0}, 8
        s_and_b32 s{s_t1}, s2, 0xfe
        s_add_u32 s{s_t0}, s{s_t0}, s{s_t1}
        s_lshl_b32 s{s_t0}, s{s_t0}, 6
        s_add_u32 s{s_t0}, s{s_t0}, {WS_RS}
        v_lshlrev_b32 v{T[2]}, 4, v{vL}
        v_add_u32 v{T[3]}, {L_RP}, v{T[2]}
        v_bfe_u32 v{T[4]}, v{vL}, 3, 1
        v_mul_u32_u24 v{T[4]}, {4096 - 128}, v{T[4]}
        v_add_u32 v{T[2]}, v{T[2]}, v{T[4]}
        s_cmp_eq_u32 s{s_cg}, 14
        s_movk_i32 s{s_t1}, 0xff
        s_cselect_b32 exec_lo, 0xffff, s{s_t1}
        s_mov_b32 exec_hi, 0
        ds_read_b128 {vr(AC, 4)}, v{T[3]}
        s_waitcnt lgkmcnt(0)
        buffer_store_dwordx4 {vr(AC, 4)}, v{T[2]}, {WSD}, s{s_t0} offen sc1
        s_mov_b64 exec, -1
        """)

    def gather_loads():
        a(f"s_mov_b32 s{s_slot}, {WS_RS}\nbuffer_load_dwordx4 {vr(G + 16, 4)}, v{gR}, {WSD}, s{s_slot} offen sc1")
        a(f"s_mov_b32 s{s_slot}, {WS_CP}")
        for p in range(4):
            a(f"buffer_load_dwordx4 {vr(G + 4 * p, 4)}, v{gA}, {WSD}, s{s_slot} offen sc1")
            a(f"s_add_u32 s{s_slot}, s{s_slot}, {CP_ROW}")

    def gather_put():
        a(f"s_branch {L('ga_chk')}\n{L('ga')}:")
        gather_loads()
        a(f"s_sub_u32 s{s_spin}, s{s_spin}, 1\ns_waitcnt vmcnt(0)\n{L('ga_chk')}:")
        a(f"v_min_u32 v{T[3]}, v{G + 1}, v{G + 3}\nv_max_u32 v{T[4]}, v{G + 1}, v{G + 3}")
        for p in range(1, 5):
            b = G + 4 * p
            a(f"v_min3_u32 v{T[3]}, v{T[3]}, v{b + 1}, v{b + 3}\nv_max3_u32 v{T[4]}, v{T[4]}, v{b + 1}, v{b + 3}")
        retry("ga")
        a(f"v_add_f32 v{G + 1}, v{G + 2}, v{G + 6}\nv_add_f32 v{G}, v{G}, v{G + 4}")
        for p in range(2, 4):
            b = G + 4 * p
            a(f"v_add_f32 v{G}, v{G}, v{b}\nv_add_f32 v{G + 1}, v{G + 1}, v{b + 2}")
        a(f"""
        s_mov_b32 s{s_t0}, {L_NM}
        v_lshlrev_b32 v{G + 2}, 16, v28
        v_and_b32 v{G + 3}, 0xffff0000, v28
        v_lshl_add_u32 v{T[3]}, v{gL}, 2, s{s_t0}
        v_lshl_add_u32 v{T[4]}, v{gL}, 3, s{s_t0}
        v_lshl_add_u32 v{T[5]}, v{vL}, 3, s{s_t0}
        ds_write2_b32 v{T[3]}, v{G + 16}, v{G + 18} offset0:0 offset1:128
        ds_write_b64 v{T[4]}, {vr(G, 2)} offset:{L_CSA - L_NM}
        ds_write_b64 v{T[5]}, {vr(G + 2, 2)} offset:{L_BI - L_NM}
        s_waitcnt lgkmcnt(0)
        """)

    def mark_unwritten():
        a(f"""
        s_add_u32 s{s_ko}, s{s_cm}, {C_O * CH}
        s_add_u32 s{s_vo}, s{s_cr}, {C_O * CH}
        v_mov_b64 {vr(MK, 2)}, -1
        v_mov_b64 {vr(MK + 2, 2)}, -1
        buffer_store_dwordx4 {vr(MK, 4)}, v{mQ}, {WSD}, s{s_ko} offen sc1
        buffer_store_dwordx4 {vr(MK, 4)}, v{mQ}, {WSD}, s{s_ko} offen offset:512 sc1
        s_mov_b32 exec_hi, 0
        buffer_store_dwordx2 {vr(MK, 2)}, v{mQR}, {WSD}, s{s_vo} offen sc1
        buffer_store_dwordx2 {vr(MK, 2)}, v{mQR}, {WSD}, s{s_vo} offen offset:512 sc1
        s_mov_b32 exec_hi, -1
        """)

    a(f"{feeding}\ns_cbranch_scc1 {L('g1_on')}")
    if not cfg["early"]:
        later_addr()
    mark_unwritten()
    only("bf0", has_block, block_fetch)
    only("bt0", has_block, block_turn)
    a(f"s_branch {L('b_last')}\n{L('g1_on')}:")
    feed(0)
    stamp(a, prof, 43)
    pre = "xwf"[:cfg["pre"]]
    feed(1, pre)
    boundary(4 * len(pre))
    a(f"s_setprio {cfg['fprio']}")
    sm = capture(sums)
    k = len(sm) * (3 - len(pre)) // 3
    feed(1, "xwf"[len(pre):], sm[:k])
    feed(2, pre, sm[k:])
    only("pr", f"s_cmp_eq_u32 s{s_wj}, 2", publish_rows)
    a("s_waitcnt lgkmcnt(0)")
    late = [[]] + (split(capture(later_addr), 4) if not cfg["early"] else [[]] * 4)
    gath = f"s_cmp_lt_u32 s{s_wj}, 2"
    for c in range(10):
        if c - cfg["gat"] in (1, 2):
            a(f"{gath}\ns_cbranch_scc1 {L('bw' + str(c))}\ns_waitcnt vmcnt(12)\n{L('bw' + str(c))}:")
            boundary(17)
            assert c <= 5
        else:
            boundary({0: 4 * len(pre), 6: 8, 7: 8, 8: 4, 9: None}.get(c, 12))
        if c == 0:
            feed(2, "xwf"[len(pre):])
        if c < 5:
            feed(c + 3, mix=late[c])
        elif c < 7:
            feed(c + 3, "xw")
        elif c < 9:
            feed(c + 1, "f")
        if c == 0:
            only("pb", f"s_cmp_eq_u32 s{s_wj}, s{s_hook}", publish)
        if c == cfg["mk"]:
            mark_unwritten()
            only("bf", has_block, block_fetch)
        if c == cfg["gat"]:
            only("gf", gath, gather_loads)
        if c == cfg["gat"] + 3:
            only("gp", gath, gather_put)
    a(f"{has_block}\ns_cbranch_scc1 {L('bwa')}\ns_waitcnt vmcnt(4)\n{L('bwa')}:")
    boundary(9)
    only("bt", has_block, block_turn)
    boundary()

    def first_fetch():
        a(f"""
        s_mul_i32 s{s_t0}, s{s_wj}, 3072
        s_add_u32 m0, s{s_t0}, {L_Q}
        s_nop 0
        buffer_load_dwordx4 v{mQ}, {WSD}, s{s_cm} offen sc1 lds
        s_add_u32 m0, s{s_t0}, {L_Q + 512}
        s_nop 0
        buffer_load_dwordx4 v{mQ}, {WSD}, s{s_cm} offen offset:512 sc1 lds
        s_add_u32 m0, s{s_t0}, {L_Q + 2048}
        s_nop 0
        buffer_load_dwordx4 v{mQD}, {WSD}, s{s_cr} offen sc1 lds
        """)
        kv_dma(0)

    a(f"{L('b_last')}:\ns_setprio 2")
    stamp(a, prof, 40)
    ones_write(one, 20)
    wait_flags("wa", WS_FA, [FO, FK])
    stamp(a, prof, 41)
    if prof:
        a(f"s_sub_u32 s{s_t0}, {SPIN}, s{s_spin}\ns_add_u32 s96, s{s_t0}, 100")
    first_fetch()
    if cfg["hpos"] == 0:
        stamp(a, prof, 4)
        a("s_barrier\ns_waitcnt vmcnt(0) lgkmcnt(0)")
        stamp(a, prof, 3)
        a("s_barrier")
        kv_dma(1)
        only("bp", has_block, block_put)
    else:
        kv_dma(1)
        stamp(a, prof, 4)
        only("bp", has_block, block_put)
        a(f"{has_block}\ns_cbranch_scc1 {L('bq')}\ns_waitcnt vmcnt(7)\n{L('bq')}:\ns_waitcnt vmcnt(12) lgkmcnt(0)")
        stamp(a, prof, 3)
        a("s_barrier")

    vH, vW, vO, vB, vLn = [11, 12, 13, 14], [15, 16], [17, 18], [T[0], T[1]], 19
    ACC = 20
    LB = [100 + 36 * i for i in range(3)]
    WR, XR, BR = 180, 220, 230
    sH, sT = sW, sA
    a(f"""
    v_mov_b32 v{vH[0]}, v{pH}
    v_xor_b32 v{vH[1]}, 256, v{pH}
    v_xor_b32 v{vH[2]}, 512, v{pH}
    v_xor_b32 v{vH[3]}, 768, v{pH}
    v_lshlrev_b32 v{vLn}, 4, v{vL}
    s_mul_i32 s{s_t0}, s{s_qb}, 5120
    v_add_u32 v{vW[0]}, s{s_t0}, v{vLn}
    v_add_u32 v{vW[1]}, 4096, v{vW[0]}
    s_mul_i32 s{s_t0}, s{s_qb}, 160
    v_lshrrev_b32 v{T[2]}, 4, v{vL}
    v_lshl_add_u32 v{vB[0]}, v{T[2]}, 4, s{s_t0}
    v_lshl_add_u32 v{vB[1]}, v{T[2]}, 3, s{s_t0}
    v_add_u32 v{vO[0]}, v{pO}, v{vB[0]}
    v_add_u32 v{vO[1]}, v{pO}, v{vB[1]}
    s_add_u32 s{sH}, s22, {C_H * CH}
    s_addc_u32 s{sH + 1}, s23, 0
    s_mov_b32 s{sH + 2}, {216 * CH}
    s_mov_b32 s{sH + 3}, 0x00020000
    s_add_u32 s{sT}, s22, {WS_WT}
    s_addc_u32 s{sT + 1}, s23, 0
    s_mov_b32 s{sT + 2}, {54 * KS_ROW}
    s_mov_b32 s{sT + 3}, 0x00020000
    s_lshl_b32 s{s_ho}, s{s_wj}, 17
    s_mul_i32 s{s_wo}, s{s_wj}, {KS_ROW}
    s_add_u32 s{s_xo}, s{s_wo}, {WS_WT + 54 * KS_ROW}
    s_mul_i32 s{s_ring}, s{s_wj}, 5120
    s_waitcnt vmcnt(0)
    """)
    only("fw", has_block, lambda: set_flag(WS_FH))
    kv_dma(2)
    a(f"s_mov_b32 s{s_fl}, s2\ns_barrier")
    stamp(a, prof, 5)

    def w_frag(c):
        return (vW[0], 1024 * c) if c < 4 else (vW[1], 0)

    def ffn_loads(b):
        for t in range(4):
            a(f"buffer_load_dwordx4 {vr(LB[b] + 4 * t, 4)}, v{vH[t]}, s[{sH}:{sH + 3}], s{s_ho} offen sc1")
        for c in range(5):
            va, off = w_frag(c)
            a(f"buffer_load_dwordx4 {vr(LB[b] + 16 + 4 * c, 4)}, v{va}, s[{sT}:{sT + 3}], s{s_wo} offen offset:{off} sc1")
        a(f"s_add_u32 s{s_ho}, s{s_ho}, {16 * CH}\ns_add_u32 s{s_wo}, s{s_wo}, {4 * KS_ROW}")

    def wo_stage(i):
        for c in range(5):
            va, off = w_frag(c)
            if c in (0, 4):
                a(f"s_add_u32 m0, s{s_ring}, {L_WO + i * 20480 + 1024 * c}\ns_nop 0")
            a(f"buffer_load_dwordx4 v{va}, {WSD}, s{s_xo} offen offset:{off} sc1 lds")
        a(f"s_add_u32 s{s_xo}, s{s_xo}, {4 * KS_ROW}")

    queue = []

    def need(tag):
        if tag not in queue:
            return
        last = max(i for i, q in enumerate(queue) if q == tag)
        a(f"s_waitcnt vmcnt({len(queue) - 1 - last})")
        del queue[:last + 1]

    def send(r):
        a(f"s_add_u32 s{s_t0}, s{s_ring}, {L_EX[r]}\nv_add_u32 v{T[2]}, s{s_t0}, v{vLn}")
        for c in range(5):
            a(f"ds_write_b128 v{T[2]}, {vr(ACC + 20 * r + 4 * c, 4)} offset:{1024 * c}")

    wait_flags("wb", WS_FH, [fC])
    stamp(a, prof, 6)
    ffn_loads(0)
    only("fb", f"s_cmp_eq_u32 s{s_wj}, 0", lambda: set_flag(WS_FB))
    a("s_setprio 0")
    queue += [("L", 0)] * 9

    def vm_units(fn, tag):
        out, cur = [], []
        for u in capture(fn):
            cur.append(u)
            n = u.count("buffer_load")
            if n:
                out.append(("\n".join(cur), [tag] * n))
                cur = []
        out[-1] = (out[-1][0] + "\n" + "\n".join(cur), out[-1][1])
        return out

    cuts = [cfg["cut0"] + cfg["cutd"] * k for k in range(6)]
    side = []
    iv, m = 1, 0
    for step in range(14):
        b = step % 3
        main = vm_units(lambda: ffn_loads((step + 2) % 3), ("L", step + 2)) if step + 2 < 14 else []
        if step == 0:
            ffn_loads(1)
            queue += [("L", 1)] * 9
        need(("L", step))
        if step == 13:
            assert not side and iv == 7
            a(f"s_cmp_lt_u32 s{s_wj}, 2\ns_cbranch_scc0 {L('m13')}")
        for k in range(20):
            t, c = divmod(k, 5)
            d = vr(ACC + 20 * t + 4 * c, 4)
            a(f"v_mfma_f32_16x16x32_bf16 {d}, {vr(LB[b] + 16 + 4 * c, 4)}, {vr(LB[b] + 4 * t, 4)}, {d if step else 0}")
            m += 1
            src = main if (main and (k & 1 or not side)) else side
            if src:
                text, tags = src.pop(0)
                a(text)
                queue += tags
            if iv < 7 and m == cuts[iv - 1]:
                assert not side
                need(("D", iv))
                if cfg.get("trace"):
                    stamp(a, prof, 24)
                a("s_barrier")
                iv += 1
                if iv < 7:
                    side = vm_units(lambda: kv_dma(iv + 1), ("D", iv))
                if iv < 6:
                    side += vm_units(lambda: wo_stage(iv - 2), ("W", iv))
                if iv == 7:
                    only("w5", f"s_cmp_lt_u32 s{s_wj}, 2", lambda: wo_stage(4))
        assert not main
    a(f"{L('m13')}:")
    srd(a, sX, 4, S * D * 2)
    srd(a, sA, 18, D * 2)
    srd(a, sB, 20, S * D * 2)
    upper = f"s_cmp_ge_u32 s{s_wj}, 2"

    def wo_last():
        for c in range(5):
            va, off = w_frag(c)
            a(f"buffer_load_dwordx4 {vr(WR + 4 * c, 4)}, v{va}, {WSD}, s{s_xo} offen offset:{off} sc1")

    def wo_last_put():
        a(f"s_add_u32 s{s_t0}, s{s_ring}, {L_WO + 4 * 20480}\nv_add_u32 v{T[2]}, s{s_t0}, v{vLn}")
        for c in range(5):
            a(f"ds_write_b128 v{T[2]}, {vr(WR + 4 * c, 4)} offset:{1024 * c}")

    only("wl", upper, wo_last)
    for dst, va, sd in ((XR, vO, sX), (BR, vB, sA)):
        a(f"""
        buffer_load_dwordx4 {vr(dst, 4)}, v{va[0]}, s[{sd}:{sd + 3}], 0 offen
        buffer_load_dwordx4 {vr(dst + 4, 4)}, v{va[0]}, s[{sd}:{sd + 3}], 0 offen offset:64
        buffer_load_dwordx2 {vr(dst + 8, 2)}, v{va[1]}, s[{sd}:{sd + 3}], 0 offen offset:128
        """)
    NW, AH = 7, cfg["ahead"]
    AC2, WG, OF = 40, 60, 200
    assert OF + 4 * (AH + 1) <= 256

    def wo_read(i, c):
        va, off = (vLn, L_WO + 5120 * i) if i < 10 else (T[2], 5120 * (i - 10))
        return f"ds_read_b128 {vr(WG + 20 * (i % NW) + 4 * c, 4)}, v{va} offset:{off + 1024 * c}"

    def o_load(i):
        a(f"s_mov_b32 s{s_t0}, {(C_O + 4 * i) * CH}")
        a(f"buffer_load_dwordx4 {vr(OF + 4 * (i % (AH + 1)), 4)}, v{vH[0]}, {WSD}, s{s_t0} offen sc1")

    def prime(steps):
        for i in steps:
            a("s_waitcnt lgkmcnt(10)\n" + "\n".join(wo_read(i, c) for c in range(5)))

    prime(range(2, 6))
    wait_flags("wm", WS_FB, [fB])
    a(f"""
    s_cmp_lg_u32 s2, 0
    s_cbranch_scc1 {L('we_done')}
    s_lshl_b32 s{s_t0}, s{s_wj}, 6
    v_add_u32 v{T[5]}, s{s_t0}, v{vL}
    v_lshlrev_b32 v{T[5]}, 7, v{T[5]}
    """)
    wait_flags("we", WS_FB, [T[5]])
    a(f"""
    v_bfe_u32 v{T[2]}, v{vL}, 1, 4
    v_mul_u32_u24 v{T[2]}, 5, v{T[2]}
    v_and_b32 v{T[3]}, 1, v{vL}
    s_cmp_eq_u32 s{s_wj}, 2
    s_cselect_b32 s{s_t1}, 8, {3 * CH}
    s_cselect_b32 s{s_t2}, 4, 12
    s_cmp_eq_u32 s{s_wj}, 3
    s_cselect_b32 s{s_t0}, 0, s{s_wj}
    v_add_u32 v{T[2]}, s{s_t0}, v{T[2]}
    v_lshlrev_b32 v{T[2]}, 15, v{T[2]}
    v_mad_u32_u24 v{T[0]}, v{T[3]}, s{s_t1}, v{T[2]}
    s_lshl_b32 s{s_t0}, s{s_head}, 3
    s_add_u32 s{s_t0}, s{s_t0}, s{s_qb}
    s_lshl_b32 s{s_t0}, s{s_t0}, 7
    s_add_u32 s{s_t0}, s{s_t0}, s{s_t2}
    s_add_u32 s{s_ko}, s{s_t0}, {C_O * CH}
    s_mov_b32 s{s_spin}, {SPIN}
    """)
    a("s_waitcnt lgkmcnt(0)")
    if cfg.get("trace"):
        stamp(a, prof, 24)
    a("s_barrier")
    send(1)
    send(2)
    stamp(a, prof, 7)
    a("s_barrier")
    a("s_waitcnt vmcnt(0) lgkmcnt(0)")
    send(3)
    only("wp", upper, wo_last_put)
    a("s_waitcnt lgkmcnt(0)\ns_barrier")
    stamp(a, prof, 8)
    a(f"""
    s_cmp_lg_u32 s2, 0
    s_cbranch_scc1 {L('tag_kept')}
    v_mov_b32 v{T[4]}, 0
    v_mov_b32 v{T[5]}, s{s_tag}
    s_mov_b32 s{s_t0}, {WS_E}
    buffer_store_dword v{T[5]}, v{T[4]}, {WSD}, s{s_t0} offen sc1
    {L('tag_kept')}:
    """)
    for r in range(1, 4):
        a(f"""
        s_xor_b32 s{s_t0}, s{s_wj}, {r}
        s_mul_i32 s{s_t0}, s{s_t0}, 5120
        s_add_u32 s{s_t0}, s{s_t0}, {L_EX[r]}
        v_add_u32 v{T[2]}, s{s_t0}, v{vLn}
        """)
        for c in range(5):
            a(f"ds_read_b128 {vr(ACC + 20 * r + 4 * c, 4)}, v{T[2]} offset:{1024 * c}")
    for src in (XR, BR):
        for i in range(10):
            t = T[2 + 2 * (i & 1)]
            a(f"v_lshlrev_b32 v{t}, 16, v{src + i}\nv_and_b32 v{t + 1}, 0xffff0000, v{src + i}")
            a(f"v_pk_add_f32 {vr(ACC + 2 * i, 2)}, {vr(ACC + 2 * i, 2)}, {vr(t, 2)}")
    for r in range(1, 4):
        a(f"s_waitcnt lgkmcnt({5 * (3 - r)})")
        for i in range(0, 20, 2):
            a(f"v_pk_add_f32 {vr(ACC + i, 2)}, {vr(ACC + i, 2)}, {vr(ACC + 20 * r + i, 2)}")
    a(f"v_add_u32 v{T[2]}, {L_WO + 10 * 5120}, v{vLn}")

    look = f"buffer_load_dword v{T[3]}, v{T[0]}, {WSD}, s{s_ko} offen sc1"
    a(f"{L('first')}:\ns_mov_b32 exec_hi, 0\n{look}\ns_mov_b32 exec_hi, -1")
    prime((0, 1, 6))
    a(f"""
    v_mov_b32 v{T[4]}, 0
    s_mov_b32 exec_hi, 0
    s_branch {L('seen')}
    {L('poll')}:
    {look}
    {L('seen')}:
    s_sub_u32 s{s_spin}, s{s_spin}, 1
    s_cmp_lt_i32 s{s_spin}, 0
    s_waitcnt vmcnt(0) lgkmcnt(0)
    v_cmp_eq_u32 vcc, -1, v{T[3]}
    s_cbranch_scc1 {L('got')}
    s_nop 2
    s_cbranch_vccnz {L('poll')}
    {L('got')}:
    s_mov_b32 exec_hi, -1
    """)
    if prof:
        stamp(a, prof, 50)
        a(f"s_sub_u32 s96, {SPIN + 200}, s{s_spin}\ns_waitcnt lgkmcnt(0)")
    for i in range(AH):
        o_load(i)
    todo = [(i, c) for i in range(NW, 20) for c in range(5)]
    issued = 0
    for i in range(20):
        lg = f" lgkmcnt({min(15, issued - 5 * (i - NW + 1))})" if i >= NW else ""
        assert i < NW or issued >= 5 * (i - NW + 1)
        a(f"s_waitcnt vmcnt({min(20, i + AH) - i - 1}){lg}")
        o = OF + 4 * (i % (AH + 1))
        for c in range(5):
            d = vr(AC2 + 4 * c, 4)
            a(f"v_mfma_f32_16x16x32_bf16 {d}, {vr(WG + 20 * (i % NW) + 4 * c, 4)}, {vr(o, 4)}, {d if i else 0}")
            if c == 0:
                if i + AH < 20:
                    o_load(i + AH)
            elif todo and (todo[0][0] - NW, todo[0][1]) <= (i, c):
                a(wo_read(*todo.pop(0)))
                issued += 1
            if c == 4:
                a(f"v_max3_u32 v{T[4]}, v{T[4]}, v{o + 1}, v{o + 3}")
    assert not todo
    stamp(a, prof, 9)
    a(f"""
    v_cmp_eq_u32 vcc, -1, v{T[4]}
    s_cmp_lt_i32 s{s_spin}, 0
    s_cbranch_scc1 {L('sum')}
    s_nop 1
    s_cbranch_vccnz {L('again')}
    {L('sum')}:
    s_nop 3
    """)
    for i in range(0, 20, 2):
        a(f"v_pk_add_f32 {vr(ACC + i, 2)}, {vr(ACC + i, 2)}, {vr(AC2 + i, 2)}")
    for i in range(10):
        a(f"v_cvt_pk_bf16_f32 v{XR + i}, v{ACC + 2 * i}, v{ACC + 2 * i + 1}")
    a(f"""
    buffer_store_dwordx4 {vr(XR, 4)}, v{vO[0]}, s[{sB}:{sB + 3}], 0 offen {OSF}
    buffer_store_dwordx4 {vr(XR + 4, 4)}, v{vO[0]}, s[{sB}:{sB + 3}], 0 offen offset:64 {OSF}
    buffer_store_dwordx2 {vr(XR + 8, 2)}, v{vO[1]}, s[{sB}:{sB + 3}], 0 offen offset:128 {OSF}
    """)
    if prof:
        a(f"{L('dump')}:\ns_waitcnt vmcnt(0)")
        stamp(a, prof, 10)
        stamp(a, prof, 11)
        a(f"""
        s_memrealtime s[78:79]
        s_waitcnt lgkmcnt(0)
        s_mov_b32 s{sWS + 2}, {WS_SIZE}
        s_lshl_b32 s95, s2, 3
        s_add_u32 s95, s95, s{s_w}
        s_lshl_b32 s95, s95, 8
        s_add_u32 s95, s95, {WS_DBG}
        v_writelane_b32 v0, s76, 62
        v_writelane_b32 v0, s78, 63
        v_lshlrev_b32 v{T[0]}, 2, v{vL}
        buffer_store_dword v0, v{T[0]}, {WSD}, s95 offen
        s_waitcnt vmcnt(0)
        """)
    a(f"s_endpgm\n{L('again')}:")
    prime(range(2, 6))
    a(f"s_branch {L('first')}")
    a.lines = head_lines + a.lines + g0_lines
    a(f"{L('end')}:\ns_endpgm")
    return kernel_header(label) + a.text(), kernel_desc(label, 256, 102 if prof else 80), LDS_SIZE


def build(as_list=False, **kw):
    ref = open(f"cdna_kernels/{NAME}.s.ref").read().split("\n")
    head = [ln for ln in ref if ln.startswith(";") and "launch" not in ln.lower() and "grid=" not in ln]
    label = NAME + "_kernel"
    c, d, lds = gen(label, **kw)
    c = c.replace(label + "_", "L_")
    if (kw.get("cfg") or {}).get("rt"):
        c = c.replace("s_memtime", "s_memrealtime")
    out = "\n".join(head) + "\n"
    out += f"; @launch {'kernel=' + label + ' ' if as_list else ''}grid=(256,1,1) block=(512,1,1) lds={lds}\n"
    out += '.amdgcn_target "amdgcn-amd-amdhsa--gfx950"\n.text\n' + c + '.section .rodata,"a"\n' + d
    return out


if __name__ == "__main__":
    import sys
    opts = sys.argv[2:]
    cfg = {o.split("=")[0]: int(o.split("=")[1], 0) for o in opts if "=" in o}
    open(sys.argv[1], "w").write(build(as_list="list" in opts, prof="prof" in opts, force_fallback="slow" in opts, cfg=cfg))
```

```python
import math
import struct
from common import *

f32 = lambda x: struct.unpack("<I", struct.pack("<f", x))[0]
QSCALE = f32(math.log2(math.e) / math.sqrt(20.0))
SHIFT = 92.0

WS_RS = WS_END
WS_CP = WS_RS + 2048 * 16
CP_ROW = 3648 * 8
WS_FA = WS_CP + 4 * CP_ROW
WS_FH = WS_FA + 1024 * 128
WS_FB = WS_FH + 2048 * 128
WS_E = WS_FB + 256 * 128
WS_TOP = WS_E + 128

STG = 49152
LX, LW, LF = 0, 16384, 32768
L_NM = 3 * STG
L_RS, L_CSA, L_CSB, L_BI = L_NM + 512, L_NM + 1024, L_NM + 1536, L_NM + 2048
L_CP = L_NM + 2560
L_RP = L_CP + 1024
LDS_SIZE = 163840
SLOT = 8192 + 4096 + 16 * 656
OFF_R, OFF_V = 8192, 12288
KV = LDS_SIZE - 3 * SLOT
L_Q = 0
L_WO = 0
L_EX = [None, 122880, 143360, 102400]
LDS_OOB = 0x28000
assert L_WO + 18 * 5120 <= KV and LDS_OOB + 3 * SLOT <= 0x40000
KS_ROW = 40 * 1024

sWS, sX, sW, sA, sB = 24, 28, 32, 36, 40
(s_w, s_wj, s_rb, s_cg, s_head, s_qb, s_tt, s_ocg, s_cm, s_cr, s_par, s_tag, s_c, s_slot,
 s_t0, s_t1, s_t2, s_t3, s_xo, s_wo, s_ring, s_wstep, s_ko, s_vo, s_ho, s_spin, s_fl) = range(44, 71)
assert s_t2 % 2 == 0
s_o = [71, 72, 73]
s_kc, s_hook = 74, 75
SPIN = 0x20000


def gen(label, prof=False, force_fallback=False, cfg=None):
    cfg = {**dict(touch=1, gat=3, pre=3, mk=13, early=0, fprio=2, flag=-1, krot=0, lean=1, plf=0, fsf=0, slp=1, cut0=46, cutd=49, fbr=2, hk=3, hpos=0, ahead=6, osf=0), **(cfg or {})}
    STF = ('sc1', '', 'nt')[cfg.get('plain', 0)]
    PLF = ('sc1', 'sc0 sc1', 'sc1 nt', 'sc0 sc1 nt')[cfg['plf']]
    FSF = ('sc1', 'sc0 sc1')[cfg['fsf']]
    OSF = ('', 'sc1', 'nt')[cfg['osf']]
    a = Asm()
    L = lambda n: f"{label}_{n}"
    WSD = f"s[{sWS}:{sWS + 3}]"
    vL = 1
    T = [2, 3, 4, 5, 6, 7]
    vK, vR_, vV = 8, 9, 10
    AX = [11, 12]
    AW = [13, 14, 15, 16]
    XF = [[32 + 16 * b + 4 * t for t in range(4)] for b in range(2)]
    WF = [[64 + 16 * b + 4 * c for c in range(4)] for b in range(2)]
    GA, GB = 96, 160

    def capture(fn):
        keep, a.lines = a.lines, []
        fn()
        got, a.lines = a.lines, keep
        units, masked = [], False
        for ln in got:
            t = ln.strip()
            if units and (masked or t.startswith("s_cselect") or units[-1].split("\n")[-1].strip().startswith("s_cmp")):
                units[-1] += "\n" + ln
            else:
                units.append(ln)
            if t.startswith("s_") and " exec" in t.split(",")[0]:
                masked = not t.endswith("-1")
        return units

    def gacc(tt, ci, base=GA):
        return base + (tt * 4 + ci) * 4

    SD = 32
    a(f"""
    s_cmp_ge_u32 s2, 256
    s_cbranch_scc1 {L('end')}
    s_load_dwordx16 s[4:19], s[0:1], 0
    s_load_dwordx2 s[22:23], s[0:1], 80
    s_load_dwordx2 s[20:21], s[0:1], 64
    """)
    stamp(a, prof, 0)
    a(f"""
    v_lshrrev_b32 v{T[0]}, 6, v0
    v_and_b32 v{vL}, 63, v0
    s_and_b32 s{s_t3}, s2, 1
    v_readfirstlane_b32 s{s_w}, v{T[0]}
    s_bfe_u32 s{s_cg}, s2, 0x20001
    s_mov_b32 s{sA + 3}, 0x00020000
    {'v_mov_b32 v0, -1' if prof else ''}
    s_and_b32 s{s_wj}, s{s_w}, 3
    s_cmp_ge_u32 s{s_w}, 4
    s_cbranch_scc1 {L('p_col')}
    s_mov_b32 s3, 0
    s_lshl_b32 s{s_t0}, s{s_t3}, 8
    s_and_b32 s{s_t1}, s2, 0xfe
    s_add_u32 s{s_t0}, s{s_t0}, s{s_t1}
    s_cmp_lt_u32 s{s_wj}, 2
    s_cselect_b32 s{s_t1}, 0, 62
    s_add_u32 s{s_t0}, s{s_t0}, s{s_t1}
    s_add_u32 s{s_t0}, s{s_t0}, s{s_wj}
    s_mul_i32 s{s_t1}, s{s_t0}, {4 * 1280}
    s_and_b32 s{s_t0}, s2, 0xc6
    s_cmp_eq_u32 s{s_t0}, 0xc6
    s_cselect_b32 s{s_hook}, 0, 2
    s_cmp_eq_u32 s{s_t0}, 0x86
    s_cselect_b32 s{s_hook}, 4, s{s_hook}
    v_lshrrev_b32 v{T[0]}, 4, v{vL}
    v_and_b32 v{T[1]}, 15, v{vL}
    v_mul_u32_u24 v{T[2]}, 1280, v{T[0]}
    s_movk_i32 s{s_t2}, 256
    s_mov_b32 s{sA + 2}, {S * D * 2}
    s_cmp_lt_u32 s{s_wj}, s{s_hook}
    s_waitcnt lgkmcnt(0)
    s_mov_b64 s[{sA}:{sA + 1}], s[4:5]
    s_branch {L('p_ld')}
    {L('p_col')}:
    s_setprio 2
    s_mov_b32 s3, 1
    s_lshr_b32 s{s_t1}, s2, 5
    s_lshl_b32 s{s_t0}, s{s_cg}, 3
    s_add_u32 s{s_t1}, s{s_t1}, s{s_t0}
    s_bfe_u32 s{s_t0}, s2, 0x10003
    s_lshl_b32 s{s_t2}, s{s_t3}, 1
    s_add_u32 s{s_t0}, s{s_t0}, s{s_t2}
    s_mul_i32 s{s_o[0]}, s{s_t0}, {CP_ROW // 512 * 512}
    s_lshl_b32 s{s_t0}, s{s_t0}, 2
    s_add_u32 s{s_t0}, s{s_t0}, s{s_wj}
    s_mul_i32 s{s_t0}, s{s_t0}, 40
    v_lshrrev_b32 v{T[0]}, 3, v{vL}
    v_and_b32 v{T[1]}, 7, v{vL}
    s_bitcmp0_b32 s2, 4
    s_cselect_b32 s{s_hook}, 30, 57
    s_movk_i32 s{s_t2}, 3840
    s_cselect_b32 s{s_t2}, s{s_t2}, 3456
    s_cselect_b32 s{s_o[1]}, 0, 30
    s_mul_i32 s{sA + 2}, s{s_t2}, 640
    s_mul_i32 s{s_t0}, s{s_t0}, s{s_t2}
    v_mul_u32_u24 v{T[2]}, s{s_t2}, v{T[0]}
    s_waitcnt lgkmcnt(0)
    s_cselect_b64 s[{sA}:{sA + 1}], s[6:7], s[12:13]
    s_add_u32 s{s_o[1]}, s{s_o[1]}, s{s_t1}
    s_lshl_b32 s{s_t1}, s{s_t1}, 7
    s_add_u32 s{s_t1}, s{s_t1}, s{s_t0}
    s_lshl_b32 s{s_t2}, s{s_t2}, 3
    s_cmp_lt_u32 s{s_o[1]}, s{s_hook}
    s_cselect_b32 s{s_hook}, 3, 7
    {L('p_ld')}:
    v_lshl_add_u32 v{T[2]}, v{T[1]}, 4, v{T[2]}
    s_cbranch_scc0 {L('p_id')}
    """)
    assert CP_ROW % 512 == 0
    for q in range(5):
        a(f"buffer_load_dwordx4 {vr(SD + 4 * q, 4)}, v{T[2]}, s[{sA}:{sA + 3}], s{s_t1} offen")
        a(f"s_add_u32 s{s_t1}, s{s_t1}, s{s_t2}")
    a(f"""
    {L('p_id')}:
    s_lshr_b32 s{s_t1}, s2, 3
    s_lshr_b32 s{s_ocg}, s{s_t1}, 3
    s_and_b32 s{s_t2}, s{s_t1}, 7
    s_lshl_b32 s{s_cg}, s{s_cg}, 2
    s_add_u32 s{s_cg}, s{s_cg}, s{s_ocg}
    s_lshl_b32 s{s_rb}, s{s_t3}, 3
    s_add_u32 s{s_rb}, s{s_rb}, s{s_t2}
    s_cmp_eq_u32 s{s_cg}, 15
    s_cbranch_scc1 {L('near')}
    {L('p_go')}:
    s_cmp_eq_u32 s3, 0
    s_cbranch_scc1 {L('g0')}
    """)
    head_lines, a.lines = a.lines, []

    def attn_ids():
        a(f"""
        s_and_b32 s{s_t0}, s2, 7
        s_lshr_b32 s{s_t1}, s2, 3
        s_and_b32 s{s_t2}, s{s_t1}, 3
        s_lshl_b32 s{s_head}, s{s_t0}, 2
        s_add_u32 s{s_head}, s{s_head}, s{s_t2}
        s_lshr_b32 s{s_qb}, s{s_t1}, 2
        s_and_b32 s{s_par}, s{s_head}, 1
        s_lshr_b32 s{s_t2}, s{s_head}, 1
        s_mul_i32 s{s_t2}, s{s_t2}, 5
        s_add_u32 s{s_cr}, s{s_t2}, 2
        s_mul_i32 s{s_t3}, s{s_par}, 3
        s_add_u32 s{s_cm}, s{s_t2}, s{s_t3}
        s_lshl_b32 s{s_cm}, s{s_cm}, 15
        s_lshl_b32 s{s_cr}, s{s_cr}, 15
        """)

    def load_tag():
        a(f"""
        s_mov_b32 s{s_t0}, {WS_E}
        s_load_dword s{s_tag}, s[22:23], s{s_t0}
        """)

    def frag_addr():
        a(f"""
        v_and_b32 v{T[0]}, 15, v{vL}
        v_lshrrev_b32 v{T[1]}, 4, v{vL}
        v_bfe_u32 v{T[2]}, v{vL}, 1, 3
        v_xor_b32 v{T[2]}, v{T[2]}, v{T[1]}
        v_lshlrev_b32 v{T[2]}, 4, v{T[2]}
        v_lshl_add_u32 v{T[2]}, v{T[0]}, 7, v{T[2]}
        s_and_b32 s{s_t0}, s{s_wj}, 1
        s_lshl_b32 s{s_t0}, s{s_t0}, 13
        v_add_u32 v{AX[0]}, s{s_t0}, v{T[2]}
        v_xor_b32 v{AX[1]}, 64, v{AX[0]}
        v_bfe_u32 v{T[2]}, v{vL}, 2, 2
        v_lshl_add_u32 v{T[3]}, v{T[1]}, 3, v{T[2]}
        v_lshlrev_b32 v{T[3]}, 8, v{T[3]}
        v_bfe_u32 v{T[2]}, v{vL}, 2, 3
        s_lshr_b32 s{s_t0}, s{s_wj}, 1
        s_lshl_b32 s{s_t0}, s{s_t0}, 2
        v_xor_b32 v{T[2]}, s{s_t0}, v{T[2]}
        v_lshl_add_u32 v{T[3]}, v{T[2]}, 5, v{T[3]}
        v_and_b32 v{T[2]}, 3, v{vL}
        v_lshl_add_u32 v{AW[0]}, v{T[2]}, 3, v{T[3]}
        v_xor_b32 v{AW[1]}, 32, v{AW[0]}
        v_xor_b32 v{AW[2]}, 64, v{AW[0]}
        v_xor_b32 v{AW[3]}, 96, v{AW[0]}
        """)

    def zero(base, n):
        for r in range(base, base + n, 2):
            a(f"v_mov_b64 {vr(r, 2)}, 0")

    def wreads(part, s, b):
        return [f"ds_read_b64_tr_b16 {vr(WF[b][c] + 2 * h, 2)}, v{AW[c]} offset:{part + s * 8192 + 1024 * h}"
                for c in range(4) for h in range(2)]

    def xreads(s):
        return [f"ds_read_b128 {vr(XF[s][t], 4)}, v{AX[s]} offset:{LX + 2048 * t}" for t in range(4)]

    def both(part, s, b):
        w, x = wreads(part, s, b), xreads(s)
        return w[:2] + x[:1] + w[2:] + x[1:]

    def gemm_body(name, halves, barrier, count_to):
        a(f".p2align 3\n{L(name)}:")
        for k, (xs, wb, acc, swapped, rd) in enumerate(halves):
            fill = [[] for _ in range(16)]
            if k == len(halves) - 1:
                if barrier:
                    if prof and cfg.get("trace", 0) == 3:
                        fill[0] += capture(lambda: stamp(a, prof, 25))
                    fill[0].append("s_barrier")
                fill[13].append(f"s_add_u32 s{s_c}, s{s_c}, 1")
                fill[14].append(f"s_cmp_lt_u32 s{s_c}, {count_to}")
            if k == len(halves) - 2:
                fill[8].append(f"s_add_u32 s{s_ring}, s{s_ring}, 1")
                fill[9].append(f"s_cmp_eq_u32 s{s_ring}, 3")
                fill[10].append(f"s_cselect_b32 s{s_xo}, {-2 * STG & 0xffffffff}, s{s_wstep}")
                fill[11].append(f"s_cselect_b32 s{s_ring}, 0, s{s_ring}")
            for m, x in enumerate(rd):
                fill[m].append(x)
            if k == len(halves) - 2:
                for m, r in enumerate(AX + AW):
                    fill[12 + m // 2].append(f"v_add_u32 v{r}, s{s_xo}, v{r}")
            fill[15].append("s_waitcnt lgkmcnt(0)")
            for m in range(16):
                tt, ci = m >> 2, m & 3
                wf, xf = vr(WF[wb][ci], 4), vr(XF[xs][tt], 4)
                A, B = (xf, wf) if swapped else (wf, xf)
                a(f"v_mfma_f32_16x16x32_bf16 {vr(gacc(tt, ci, acc), 4)}, {A}, {B}, {vr(gacc(tt, ci, acc), 4)}")
                a("\n".join(fill[m]))
        if 0 < cfg.get("trace", 0) < 3:
            stamp(a, prof, 20)
        a(f"s_cbranch_scc1 {L(name)}")

    def joint(name, sw):
        gemm_body(name, [(0, 0, GA, sw, wreads(LF, 0, 1)), (0, 1, GB, False, both(LW, 1, 0)),
                         (1, 0, GA, sw, wreads(LF, 1, 1)), (1, 1, GB, False, both(LW, 0, 0))], True, 7)

    def single(name, part, acc, sw, barrier, count_to):
        gemm_body(name, [(0, 0, acc, sw, both(part, 1, 1)), (1, 1, acc, sw, both(part, 0, 0))], barrier, count_to)

    def tile_addr(e_reg, e_lane, e_st):
        a(f"""
        v_and_b32 v{T[0]}, 15, v{vL}
        v_lshrrev_b32 v{T[1]}, 4, v{vL}
        s_lshr_b32 s{s_t0}, s{s_wj}, 1
        s_lshl_b32 s{s_t0}, s{s_t0}, 8
        s_add_u32 s{s_t0}, s{s_t0}, {L_NM}
        v_lshl_add_u32 v{e_reg}, v{T[1]}, 4, s{s_t0}
        s_and_b32 s{s_t1}, s{s_wj}, 1
        s_lshl_b32 s{s_t0}, s{s_t1}, 8
        s_add_u32 s{s_t0}, s{s_t0}, {L_NM}
        v_lshl_add_u32 v{e_lane}, v{T[0]}, 2, s{s_t0}
        v_bfrev_b32 v{T[1]}, v{T[1]}
        v_lshrrev_b32 v{T[1]}, 15, v{T[1]}
        v_lshl_add_u32 v{T[1]}, v{T[0]}, 4, v{T[1]}
        s_lshl_b32 s{s_t0}, s{s_rb}, 1
        s_add_u32 s{s_t0}, s{s_t0}, s{s_t1}
        s_lshl_b32 s{s_t0}, s{s_t0}, 10
        v_add_u32 v{e_st}, s{s_t0}, v{T[1]}
        """)

    def put_piece(src, addr, x, y):
        return f"buffer_store_dwordx4 {vr(src, 4)}, v{addr}, {WSD}, s{s_o[x]} offen offset:{256 * y} {STF}"

    def pack_tiles(acc, math, dst, addr=None, between=None):
        pend = []
        for tt in range(4):
            for cp in range(2):
                ob = dst(cp, tt)
                r0 = gacc(tt, 2 * cp, acc)
                math(tt, [(r0 + 2 * p, 8 * cp + 2 * p) for p in range(4)])
                a("\n".join(pend))
                for p in range(4):
                    a(f"v_cvt_pk_bf16_f32 v{ob + p}, v{r0 + 2 * p}, v{r0 + 2 * p + 1}")
                pend = [f"v_permlane16_swap_b32 v{ob}, v{ob + 2}", f"v_permlane16_swap_b32 v{ob + 1}, v{ob + 3}"]
                if addr:
                    pend.append(put_piece(ob, addr, cp, tt))
            if between:
                between(tt)
        a("s_nop 1\n" + "\n".join(pend))

    def key_perm(dst, src, t0, t1):
        a(f"""
        v_bfe_u32 v{t0}, v{src}, 2, 1
        v_bfe_u32 v{t1}, v{src}, 3, 2
        v_lshl_add_u32 v{t0}, v{t0}, 2, v{t1}
        v_and_b32 v{t1}, 3, v{src}
        v_lshl_add_u32 v{dst}, v{t0}, 2, v{t1}
        """)

    def v_feature(dst, row, t0, t1):
        swap23(a, dst, row, t0, t1)
        a(f"""
        s_lshl_b32 s{s_t0}, s{s_par}, 2
        s_mul_i32 s{s_t1}, s{s_par}, -16
        v_cmp_gt_u32 vcc, 16, v{row}
        v_add_u32 v{dst}, s{s_t0}, v{dst}
        v_add_u32 v{t0}, s{s_t1}, v{row}
        v_cndmask_b32 v{dst}, v{t0}, v{dst}, vcc
        """)

    def kv_addr(first_chunk):
        a(f"v_and_b32 v{T[0]}, 31, v{vL}\nv_lshrrev_b32 v{T[1]}, 5, v{vL}")
        key_perm(T[2], T[0], T[3], T[4])
        a(f"""
        v_lshlrev_b32 v{T[3]}, 4, v{T[2]}
        v_lshl_add_u32 v{vK}, v{T[1]}, 15, v{T[3]}
        v_add_u32 v{vK}, s{s_cm}, v{vK}
        v_lshl_add_u32 v{vR_}, v{T[1]}, 9, v{T[3]}
        v_add_u32 v{vR_}, s{s_cr}, v{vR_}
        v_cmp_le_u32 vcc, 20, v{vL}
        s_lshl_b32 s{s_t0}, s{s_wj}, 10
        s_andn2_b32 s{s_kc}, 1, s2
        s_mul_i32 s{s_kc}, s{s_kc}, {cfg['krot']}
        v_cndmask_b32 v{T[2]}, 0, 1, vcc
        v_mul_u32_u24 v{T[3]}, 20, v{T[2]}
        v_sub_u32 v{T[3]}, v{vL}, v{T[3]}
        v_mul_u32_u24 v{vV}, 10240, v{T[2]}
        """)
        v_feature(T[2], T[3], T[4], T[5])
        a(f"""
        s_mul_i32 s{s_t0}, s{s_head}, 320
        v_lshl_add_u32 v{vV}, v{T[2]}, 4, v{vV}
        v_add_u32 v{vV}, s{s_t0}, v{vV}
        """)

    def kv_dma(chunk):
        base = KV + ((chunk + 2) % 3) * SLOT
        a(f"""
        s_and_b32 s{s_t0}, s{s_kc}, 7
        s_lshl_b32 s{s_t0}, s{s_t0}, 2
        s_add_u32 s{s_t0}, s{s_t0}, s{s_wj}
        s_lshl_b32 s{s_ko}, s{s_t0}, 10
        s_add_u32 s{s_ko}, s{s_ko}, {C_K * CH}
        s_mul_i32 s{s_vo}, s{s_t0}, 81920
        s_add_u32 s{s_vo}, s{s_vo}, {WS_V}
        s_add_u32 s{s_kc}, s{s_kc}, 1
        s_lshl_b32 s{s_t0}, s{s_wj}, 11
        s_add_u32 m0, s{s_t0}, {base}
        s_lshl_b32 s{s_t1}, s{s_wj}, 10
        buffer_load_dwordx4 v{vK}, {WSD}, s{s_ko} offen sc1 lds
        s_add_u32 m0, s{s_t0}, {base + 512}
        s_mul_i32 s{s_t0}, s{s_wj}, {4 * 656}
        buffer_load_dwordx4 v{vK}, {WSD}, s{s_ko} offen offset:512 sc1 lds
        s_add_u32 m0, s{s_t1}, {base + OFF_R}
        s_nop 0
        buffer_load_dwordx4 v{vR_}, {WSD}, s{s_ko} offen sc1 lds
        s_mov_b32 exec_hi, 0xff
        """)
        for i in range(4):
            a(f"""
            s_add_u32 m0, s{s_t0}, {base + OFF_V + 656 * i}
            s_add_u32 s{s_t1}, s{s_vo}, {20480 * i}
            buffer_load_dwordx4 v{vV}, {WSD}, s{s_t1} offen sc1 lds
            """)
        a("s_mov_b32 exec_hi, -1")

    def ones_addr(dst, first_slot, nslots):
        a(f"""
        v_min_u32 v{dst}, {16 * nslots - 1}, v{vL}
        v_lshrrev_b32 v{T[3]}, 4, v{dst}
        v_and_b32 v{dst}, 15, v{dst}
        v_mul_u32_u24 v{T[3]}, {SLOT}, v{T[3]}
        v_mul_u32_u24 v{dst}, 656, v{dst}
        v_add_u32 v{dst}, v{dst}, v{T[3]}
        v_add_u32 v{dst}, {KV + first_slot * SLOT + OFF_V + 640}, v{dst}
        """)

    def ones_write(addr, tmp):
        for r in range(4):
            a(f"v_mov_b32 v{tmp + r}, 0x3f803f80")
        a(f"ds_write_b128 v{addr}, {vr(tmp, 4)}")

    def set_flag(base):
        a(f"""
        s_lshl_b32 s{s_t0}, s{s_fl}, 7
        s_add_u32 s{s_t0}, s{s_t0}, {base}
        v_mov_b32 v{T[4]}, 0
        v_mov_b32 v{T[3]}, s{s_tag}
        s_mov_b64 exec, 1
        buffer_store_dword v{T[3]}, v{T[4]}, {WSD}, s{s_t0} offen {FSF}
        s_mov_b64 exec, -1
        """)

    def flag_of_tile(dst, rh, unit):
        a(f"v_lshl_add_u32 v{dst}, v{unit}, 5, {rh}\nv_lshlrev_b32 v{dst}, 7, v{dst}")

    def head_unit(dst, sel):
        a(f"""
        s_mul_i32 s{s_t0}, s{s_head}, 20
        v_mad_u32_u24 v{dst}, v{sel}, 19, s{s_t0}
        v_lshrrev_b32 v{dst}, 6, v{dst}
        """)

    def wait_flags(name, base, offs, rounds=SPIN):
        a(f"""
        s_mov_b32 s{s_t0}, {base}
        s_mov_b32 s{s_spin}, {rounds}
        s_branch {L(name + '_ld')}
        {L(name)}:
        s_sleep {cfg['slp']}
        {L(name + '_ld')}:
        buffer_load_dword v{T[3]}, v{offs[0]}, {WSD}, s{s_t0} offen {PLF}
        """)
        if len(offs) > 1:
            a(f"buffer_load_dword v{T[4]}, v{offs[1]}, {WSD}, s{s_t0} offen {PLF}")
        a(f"s_sub_u32 s{s_spin}, s{s_spin}, 1\ns_waitcnt vmcnt(0)")
        if len(offs) == 1:
            a(f"v_mov_b32 v{T[4]}, v{T[3]}")
        retry(name)

    def retry(name):
        a(f"""
        v_cmp_ne_u32 vcc, s{s_tag}, v{T[3]}
        v_cmp_ne_u32 s[{s_t2}:{s_t2 + 1}], s{s_tag}, v{T[4]}
        s_cmp_eq_u32 s{s_spin}, 0
        s_cbranch_scc1 {L(name + '_done')}
        s_or_b64 vcc, vcc, s[{s_t2}:{s_t2 + 1}]
        s_cbranch_scc1 {L(name)}
        {L(name + '_done')}:
        """)

    def q_addr(vq, vqr):
        a(f"""
        v_and_b32 v{T[0]}, 31, v{vL}
        v_lshrrev_b32 v{T[1]}, 5, v{vL}
        s_lshl_b32 s{s_t0}, s{s_qb}, 2
        s_add_u32 s{s_t0}, s{s_t0}, s{s_wj}
        s_lshl_b32 s{s_t0}, s{s_t0}, 10
        s_lshl_b32 s{s_t1}, s{s_par}, 3
        s_add_u32 s{s_t2}, s{s_t0}, s{s_t1}
        v_lshlrev_b32 v{T[2]}, 4, v{T[0]}
        v_lshl_add_u32 v{vq}, v{T[1]}, 15, v{T[2]}
        v_add_u32 v{vq}, s{s_t0}, v{vq}
        v_add_u32 v{vqr}, s{s_t2}, v{T[2]}
        """)

    eR, eL, eS, hR, hL, hS = 17, 18, 19, 8, 9, 10
    IDX, AK0, AR0, AV0, VQ, VQR, AQ = 20, 21, 22, 23, 24, 25, 26
    AK, AR, AV = 27, 28, 29
    R = Regs(216)
    MX = [R.get(), R.get()]
    Q1 = [R.get(4), R.get(4)]
    Q2 = [[R.get(2), R.get(2)], [R.get(2), R.get(2)]]
    K1 = [R.get(4), R.get(4)]
    K2 = [R.get(2), R.get(2)]
    V0 = [R.get(4), R.get(4)]
    PH = 32
    SS, CM, TS, OO, V1 = [96, 160], [112, 128], 144, [176, 192], [208, 212]

    AC, SO = 72, 80
    a(f"""
    {L('g0')}:
    v_lshlrev_b32 v{SO}, 4, v{T[0]}
    """)
    srd(a, sWS, 22, WS_TOP)
    load_tag()
    frag_addr()
    zero(GA, 128)
    attn_ids()
    tile_addr(hR, hL, hS)
    a(f"""
    v_mov_b32 v{eR}, v{hR}
    v_mov_b32 v{eS}, v{hS}
    s_cmp_lt_u32 s{s_cg}, 10
    s_cbranch_scc1 {L('ad_j')}
    v_lshrrev_b32 v{T[1]}, 4, v{vL}
    s_lshl_b32 s{s_t0}, s{s_t1}, 8
    s_add_u32 s{s_t0}, s{s_t0}, {L_NM}
    v_lshl_add_u32 v{eR}, v{T[1]}, 4, s{s_t0}
    s_lshr_b32 s{s_t2}, s{s_wj}, 1
    s_lshl_b32 s{s_t0}, s{s_t2}, 8
    s_add_u32 s{s_t0}, s{s_t0}, {L_CSA}
    v_lshl_add_u32 v{eL}, v{T[0]}, 2, s{s_t0}
    s_sub_u32 s{s_t0}, s{s_cg}, 10
    s_lshl_b32 s{s_t0}, s{s_t0}, 1
    s_add_u32 s{s_t0}, s{s_t0}, s{s_t2}
    s_lshl_b32 s{s_t0}, s{s_t0}, 10
    v_mul_u32_u24 v{T[1]}, 10240, v{T[1]}
    v_lshl_add_u32 v{T[1]}, v{T[0]}, 4, v{T[1]}
    v_add_u32 v{eS}, s{s_t0}, v{T[1]}
    {L('ad_j')}:
    """)
    q_addr(VQ, VQR)
    a(f"""
    v_mov_b32 v{IDX}, 0xdddddddd
    v_lshlrev_b32 v{AK0}, 4, v{vL}
    s_mul_i32 s{s_t0}, s{s_wj}, 3072
    v_add_u32 v{AQ}, s{s_t0}, v{AK0}
    v_add_u32 v{AK0}, {KV}, v{AK0}
    v_add_u32 v{AR0}, s{s_t1}, v{AK0}
    v_mad_u32_u24 v{T[2]}, v{T[1]}, 20, v{T[0]}
    v_lshlrev_b32 v{T[2]}, 4, v{T[2]}
    v_add_u32 v{T[2]}, {KV}, v{T[2]}
    v_cmp_gt_u32 vcc, 20, v{T[0]}
    v_mov_b32 v{T[4]}, {LDS_OOB}
    v_and_b32 v{T[3]}, 27, v{T[0]}
    v_cndmask_b32 v{T[2]}, v{T[4]}, v{T[2]}, vcc
    v_cmp_eq_u32 vcc, 24, v{T[3]}
    v_mov_b32 v{T[4]}, {KV + 640}
    s_mov_b32 s{s_slot}, {2 * SLOT}
    v_cndmask_b32 v{AV0}, v{T[2]}, v{T[4]}, vcc
    v_add_u32 v{AK}, s{s_slot}, v{AK0}
    v_add_u32 v{AR}, s{s_slot}, v{AR0}
    v_add_u32 v{AV}, s{s_slot}, v{AV0}
    """)
    a(f"""
    s_add_u32 s{s_t0}, s{s_t0}, s{s_t1}
    v_lshl_add_u32 v30, v{T[0]}, 4, s{s_t0}
    v_mov_b32 v31, v30
    s_mov_b32 exec_hi, 0
    v_mov_b32 v31, {LDS_OOB}
    s_not_b64 exec, exec
    v_mov_b32 v30, {LDS_OOB}
    s_mov_b64 exec, -1
    """)
    a("v_mov_b32 v84, 0x3f803f80")
    a(f"""
    s_lshl_b32 s{s_o[2]}, s{s_cg}, 1
    s_lshr_b32 s{s_t0}, s{s_wj}, 1
    s_add_u32 s{s_o[2]}, s{s_o[2]}, s{s_t0}
    s_lshl_b32 s{s_fl}, s{s_o[2]}, 4
    s_add_u32 s{s_fl}, s{s_fl}, s{s_rb}
    s_lshl_b32 s{s_fl}, s{s_fl}, 1
    s_and_b32 s{s_t0}, s{s_wj}, 1
    s_add_u32 s{s_fl}, s{s_fl}, s{s_t0}
    s_mov_b32 s{s_c}, 0
    s_mov_b32 s{s_ring}, 0
    s_mov_b32 s{s_wstep}, {STG}
    s_waitcnt lgkmcnt(0)
    s_add_u32 s{s_tag}, s{s_tag}, 1
    s_cmp_ge_u32 s{s_wj}, s{s_hook}
    s_cbranch_scc1 {L('st_m')}
    v_mov_b32 v{AC}, 0
    v_mov_b32 v{AC + 2}, 0
    v_mov_b32 v{AC + 1}, s{s_tag}
    v_mov_b32 v{AC + 3}, s{s_tag}
    """)
    for q in range(5):
        a(f"s_waitcnt vmcnt({4 - q})")
        for r in range(SD + 4 * q, SD + 4 * q + 4):
            a(f"v_dot2c_f32_bf16 v{AC}, v{r}, v84\nv_dot2c_f32_bf16 v{AC + 2}, v{r}, v{r}")
    a("s_nop 1")
    for sh in (8, 4, 2, 1):
        a(f"""
        s_nop 0
        v_add_f32_dpp v{AC}, v{AC}, v{AC} row_ror:{sh} row_mask:0xf bank_mask:0xf
        v_add_f32_dpp v{AC + 2}, v{AC + 2}, v{AC + 2} row_ror:{sh} row_mask:0xf bank_mask:0xf
        """)
    a(f"""
    v_mul_f32 v{AC}, {f32(-1.0 / D)}, v{AC}
    v_mul_f32 v{AC + 2}, {f32(1.0 / D)}, v{AC + 2}
    v_fma_f32 v{AC + 2}, -v{AC}, v{AC}, v{AC + 2}
    v_max_f32 v{AC + 2}, 0, v{AC + 2}
    v_add_f32 v{AC + 2}, {f32(1e-5)}, v{AC + 2}
    v_rsq_f32 v{AC + 2}, v{AC + 2}
    s_lshl_b32 s{s_t0}, s{s_wj}, 6
    s_add_u32 s{s_t0}, s{s_t0}, {L_RP}
    v_add_u32 v{T[2]}, s{s_t0}, v{SO}
    s_mov_b32 exec_lo, 0x00010001
    s_mov_b32 exec_hi, 0x00010001
    ds_write_b128 v{T[2]}, {vr(AC, 4)}
    s_mov_b64 exec, -1
    s_waitcnt lgkmcnt(0)
    {L('st_m')}:
    s_cmp_eq_u32 s{s_cg}, 15
    s_cbranch_scc1 {L('a_none')}
    """)
    stamp(a, prof, 1)
    a("s_barrier")
    stamp(a, prof, 2)
    a("\n".join(both(LW, 0, 0)))
    a(f"""
    s_cmp_ge_u32 s{s_cg}, 10
    s_waitcnt lgkmcnt(0)
    s_cbranch_scc0 {L('jN')}
    s_cmp_ge_u32 s{s_o[2]}, 27
    s_cbranch_scc1 {L('sV')}
    """)

    def lane_stats(dst, addr):
        for tt in range(4):
            a(f"ds_read2_b32 {vr(dst + 2 * tt, 2)}, v{addr} offset0:{16 * tt} offset1:{128 + 16 * tt}")

    def reg_stats(dst, addr, off):
        for i in range(4):
            a(f"ds_read_b128 {vr(dst + 4 * i, 4)}, v{addr} offset:{off + 64 * i}")

    def centre(cs, nr, tt, prs):
        for r, q in prs:
            a(f"v_pk_fma_f32 {vr(r, 2)}, {vr(cs + q, 2)}, {vr(nr + 2 * tt, 2)}, {vr(r, 2)} op_sel:[0,0,0] op_sel_hi:[1,0,1]")

    E0, E1 = 224, 240
    F0, F1, F2 = 96, 112, 128

    def qk_math(tt, prs):
        centre(E0, E1, tt, prs)
        for r, q in prs:
            a(f"v_pk_mul_f32 {vr(r, 2)}, {vr(r, 2)}, {vr(E1 + 2 * tt, 2)} op_sel:[0,1] op_sel_hi:[1,1]")

    def ffn_math(tt, prs):
        centre(F0, F2, tt, prs)
        for r, q in prs:
            a(f"v_pk_fma_f32 {vr(r, 2)}, {vr(r, 2)}, {vr(F2 + 2 * tt, 2)}, {vr(F1 + q, 2)} op_sel:[0,1,0] op_sel_hi:[1,1,1]")
        for r, q in prs:
            a(f"v_max_f32 v{r}, 0, v{r}\nv_max_f32 v{r + 1}, 0, v{r + 1}")
        for r, q in prs:
            a(f"v_pk_mul_f32 {vr(r, 2)}, {vr(r, 2)}, {vr(r, 2)}")

    joint("jV", True)
    single("sV", LW, GA, True, True, 10)
    CV = 80
    a(f"ds_read2_b32 {vr(CV, 2)}, v{eL} offset0:0 offset1:16\nds_read2_b32 {vr(CV + 2, 2)}, v{eL} offset0:32 offset1:48")
    reg_stats(E0, eR, 0)
    reg_stats(E1, eR, 512)
    a(f"""
    s_and_b32 s{s_t1}, s{s_wj}, 1
    s_lshl_b32 s{s_t0}, s{s_rb}, 1
    s_add_u32 s{s_t0}, s{s_t0}, s{s_t1}
    s_mul_i32 s{s_o[0]}, s{s_t0}, 81920
    s_add_u32 s{s_o[0]}, s{s_o[0]}, {WS_V}
    s_add_u32 s{s_o[1]}, s{s_o[0]}, 40960
    s_waitcnt lgkmcnt(0)
    """)
    a("\n".join(wreads(LF, 0, 0)))
    stamp(a, prof, 3)
    for kt in range(2):
        for ci in range(4):
            ob = 88 + 4 * (ci & 1)
            prs = [(gacc(tt, ci) + i, 4 * tt + i) for tt in (2 * kt, 2 * kt + 1) for i in (0, 2)]
            for r, q in prs:
                a(f"v_pk_fma_f32 {vr(r, 2)}, {vr(E0 + q, 2)}, {vr(CV + (ci & 2), 2)}, {vr(r, 2)} op_sel:[0,{ci & 1},0] op_sel_hi:[1,{ci & 1},1]")
            for r, q in prs:
                a(f"v_pk_mul_f32 {vr(r, 2)}, {vr(r, 2)}, {vr(E1 + q, 2)}")
            for p in range(4):
                a(f"v_cvt_pk_bf16_f32 v{ob + p}, v{prs[p][0]}, v{prs[p][0] + 1}")
            a(put_piece(ob, eS, kt, ci))
    a(f"""
    s_cmp_ge_u32 s{s_o[2]}, 27
    s_cbranch_scc0 {L('a_done')}
    s_barrier
    s_waitcnt vmcnt(0) lgkmcnt(0)
    """)
    set_flag(WS_FA)
    a(f"""
    s_barrier
    {L('a_none')}:
    s_mov_b32 s{s_o[0]}, {WS_TOP}
    s_mov_b32 s{s_o[1]}, {WS_TOP}
    s_branch {L('a_go')}
    """)
    joint("jN", False)
    single("sN", LW, GA, False, True, 10)
    reg_stats(E0, eR, L_CSA - L_NM)
    lane_stats(E1, hL)
    a(f"""
    s_lshl_b32 s{s_o[0]}, s{s_o[2]}, 18
    s_add_u32 s{s_o[1]}, s{s_o[0]}, {4 * CH}
    s_cmp_lt_u32 s{s_cg}, 5
    s_cselect_b32 s{s_t0}, {QSCALE}, 1.0
    s_waitcnt lgkmcnt(0)
    """)
    a("\n".join(wreads(LF, 0, 0)))
    stamp(a, prof, 3)
    for tt in range(4):
        a(f"v_mul_f32 v{E1 + 2 * tt + 1}, s{s_t0}, v{E1 + 2 * tt + 1}")
    pack_tiles(GA, qk_math, lambda cp, tt: 248 + 4 * cp, eS)
    a(f"{L('a_done')}:")
    stamp(a, prof, 4)
    a("s_waitcnt lgkmcnt(0)\ns_barrier")
    reg_stats(F0, hR, L_CSB - L_NM)
    reg_stats(F1, hR, L_BI - L_NM)
    lane_stats(F2, hL)
    if cfg["flag"] == -2:
        a("s_waitcnt vmcnt(0)")
        stamp(a, prof, 14)
    a("s_waitcnt lgkmcnt(3)")
    single("sF", LF, GB, False, False, 13)
    stamp(a, prof, 12)

    def hand_over(tt):
        if tt == max(cfg["flag"], -1):
            a("s_waitcnt vmcnt(0)")
            set_flag(WS_FA)
            stamp(a, prof, 5)
            a("s_barrier")

    hand_over(-1)

    pack_tiles(GB, ffn_math, lambda cp, tt: PH + 16 * cp + 4 * tt, between=hand_over)
    a(f"""
    s_add_u32 s{s_o[0]}, s{s_o[2]}, 20
    s_lshl_b32 s{s_o[0]}, s{s_o[0]}, 18
    s_add_u32 s{s_o[1]}, s{s_o[0]}, {4 * CH}
    {L('a_go')}:
    s_setprio 1
    s_mov_b32 s{s_c}, 0
    """)
    zero(SS[1], 16 + 32 + 8)
    stamp(a, prof, 13)
    hput = [put_piece(PH + 4 * k, hS, k >> 2, k & 3) for k in range(8)]
    if cfg["hpos"] == 0:
        a("s_barrier")
        stamp(a, prof, 18)
        a("\n".join(hput))
        stamp(a, prof, 19)
        hput = [""] * 8
    a("s_barrier")
    stamp(a, prof, 6)
    for ab in range(2):
        a(f"ds_read_b128 {vr(Q1[ab], 4)}, v{AQ} offset:{L_Q + 1024 * ab}")
        for par in range(2):
            a(f"ds_read_b64 {vr(Q2[ab][par], 2)}, v{30 + par} offset:{L_Q + 2048 + 512 * ab}")

    def rdK1(t):
        return f"ds_read_b128 {vr(K1[t & 1], 4)}, v{AK} offset:{(t & 7) * 1024}"

    def rdK2(p):
        return f"ds_read_b64 {vr(K2[p & 1], 2)}, v{AR} offset:{OFF_R + (p & 3) * 1024}"

    def rdV(j, t):
        return f"ds_read_b128 {vr((V0, V1)[j][t & 1], 4)}, v{AV} offset:{OFF_V + ((t & 7) * 2 + j) * 656}"

    def qk1(dst, ab, t, c):
        return f"v_mfma_f32_32x32x16_bf16 {vr(dst, 16)}, {vr(K1[t & 1], 4)}, {vr(Q1[ab], 4)}, {c}"

    def qk2(dst, ab, t):
        return f"v_mfma_f32_32x32x8_bf16 {vr(dst, 16)}, {vr(K2[(t >> 1) & 1], 2)}, {vr(Q2[ab][t & 1], 2)}, {vr(dst, 16)}"

    def pv(ab, j, t):
        return f"v_smfmac_f32_32x32x32_bf16 {vr(OO[ab], 16)}, {vr((V0, V1)[j][t & 1], 4)}, {vr(SS[ab] + 8 * j, 8)}, v{IDX}"

    def row_max(dst, bufs):
        regs = [b + i for b in bufs for i in range(16)]
        a(f"v_max3_f32 v{dst}, v{regs[0]}, v{regs[1]}, v{regs[2]}")
        rest = regs[3:]
        while len(rest) >= 2:
            a(f"v_max3_f32 v{dst}, v{dst}, v{rest[0]}, v{rest[1]}")
            rest = rest[2:]
        if rest:
            a(f"v_max_f32 v{dst}, v{dst}, v{rest[0]}")

    def set_shift(ab, shift):
        m = MX[ab]
        a(f"""
        v_mov_b32 v{T[2]}, v{m}
        s_nop 1
        v_permlane32_swap_b32 v{m}, v{T[2]}
        v_max_f32 v{m}, v{m}, v{T[2]}
        v_sub_f32 v{CM[ab]}, {f32(-shift) if shift else 0}, v{m}
        v_mov_b32 v{CM[ab] + 1}, v{CM[ab]}
        """)
        for i in range(2, 16, 2):
            a(f"v_mov_b64 {vr(CM[ab] + i, 2)}, {vr(CM[ab], 2)}")

    a("\n".join([rdK1(0), rdK2(0), rdK1(1), rdV(0, 0), rdV(1, 0)]))
    a("s_waitcnt lgkmcnt(0)" if prof is True else "s_waitcnt lgkmcnt(2)")
    est = {(0, 0): SS[0], (0, 1): CM[0], (1, 0): TS, (1, 1): CM[1]}
    for ab in range(2):
        for t in range(2):
            a(qk1(est[ab, t], ab, t, 0))
            a(hput[2 * ab + t])
            a(qk2(est[ab, t], ab, t))
    a("s_nop 7")
    row_max(MX[0], [SS[0], CM[0]])
    a(hput[4])
    set_shift(0, SHIFT)
    a("s_nop 1")
    a(qk1(SS[0], 0, 0, vr(CM[0], 16)))
    a(hput[5])
    a(qk2(SS[0], 0, 0))
    row_max(MX[1], [TS, CM[1]])
    a(hput[6])
    set_shift(1, SHIFT)
    a(hput[7])
    a("s_waitcnt lgkmcnt(0)")

    def slot_events(ab, t):
        o = 1 - ab
        tp = t - 1 if ab == 0 else t
        tn = t if ab == 0 else t + 1
        e = [("i", f"v_exp_f32 v{SS[ab] + i}, v{SS[ab] + i}") for i in range(16)]
        ev = []
        if ab == 0 and t % 8 == 7:
            ev += [("i", f"v_add_u32 v{AV}, s{s_slot}, v{AV0}")]
        ev += e[0:2]
        ev += [("use", ("V1", tp)), ("i", pv(o, 1, tp)), ("wait",)]
        if ab == 1 and t % 8 == cfg["hk"]:
            ev += [("i", f"s_cmp_eq_u32 s{s_c}, 0")]
        if ab == 0 and t % 8 == 6:
            ev += [("i", "s_barrier")]
        if ab == 0 and t % 8 == 4:
            ev += [("i", f"s_add_u32 s{s_slot}, s{s_slot}, {SLOT}")]
        if ab == 1 and t % 8 == 4:
            ev += [("i", f"s_cmp_eq_u32 s{s_slot}, {3 * SLOT}")]
        if ab == 1 and t % 8 == 6:
            ev += [("i", f"s_add_u32 s{s_c}, s{s_c}, 1")]
        if ab == 0:
            ev += [("rd", rdV(1, t + 1), ("V1", t + 1))]
        ev += e[2:5]
        if ab == 0 and t % 8 == 6:
            ev += [("i", f"v_add_u32 v{AK}, s{s_slot}, v{AK0}"), ("i", f"v_add_u32 v{AR}, s{s_slot}, v{AR0}")]
        ev += [("use", ("K1", tn)), ("i", qk1(SS[o], o, tn, vr(CM[o], 16))), ("wait",)]
        if ab == 0:
            ev += [("rd", rdK1(t + 2), ("K1", t + 2))]
        else:
            ev += [("rd", rdV(0, t + 1), ("V0", t + 1))]
        ev += e[5:8]
        ev += [("use", ("K2", tn >> 1)), ("i", qk2(SS[o], o, tn))]
        ev += e[8:12]
        ev += [("use", ("V0", t)), ("i", pv(ab, 0, t)), ("wait",)]
        if ab == 1 and t % 8 == 4:
            ev += [("i", f"s_cselect_b32 s{s_slot}, 0, s{s_slot}")]
        if ab == 1 and t % 8 == cfg["hk"]:
            ev += [("i", f"s_cbranch_scc1 {L('hk')}\n{L('hk_r')}:")]
        if ab == 1 and t % 8 == 7:
            ev += [("i", f"s_cmp_lt_u32 s{s_c}, 8")]
        if ab == 1 and t % 2 == 0:
            ev += [("rd", rdK2(t // 2 + 1), ("K2", t // 2 + 1))]
        ev += e[12:16]
        return ev

    evs = []
    for t in range(24):
        for ab in range(2):
            evs += [(t, x) for x in slot_events(ab, t)]
    issue_idx = {}
    n = 0
    for t, x in evs:
        if x[0] == "rd":
            issue_idx[x[2]] = n
            n += 1
    tail4 = "\n".join(f"v_exp_f32 v{SS[1] + i}, v{SS[1] + i}" for i in range(12, 16))
    a(f"s_branch {L('aent')}\n.p2align 3\n{L('aloop')}:\n{tail4}\n{L('aent')}:")
    n, have = 0, -1
    for k, (t, x) in enumerate(evs):
        emit = 8 <= t < 16
        if x[0] == "rd":
            n += 1
            if emit:
                a(x[1])
        elif x[0] == "i":
            if emit:
                a(x[1])
        elif x[0] == "wait" and t >= 4:
            need = -1
            for t2, y in evs[k + 1:]:
                if y[0] == "wait":
                    break
                if y[0] == "use":
                    assert issue_idx[y[1]] < n, (t, y)
                    need = max(need, issue_idx[y[1]])
            if need > have and emit:
                a(f"s_waitcnt lgkmcnt({n - 1 - need})")
            have = max(have, need)
    del a.lines[-4:]
    if 0 < cfg.get("trace", 0) < 4:
        stamp(a, prof, 23)
        a("s_waitcnt lgkmcnt(0)")
    a(f"s_cbranch_scc1 {L('aloop')}")
    a(tail4)

    def magnitude(ab):
        o, t = OO[ab], T[2 + ab]
        a(f"v_maximum3_f32 v{t}, |v{o}|, |v{o + 1}|, |v{o + 2}|")
        for i in (3, 5, 7, 9):
            a(f"v_maximum3_f32 v{t}, v{t}, |v{o + i}|, |v{o + i + 1}|")
        a(f"v_maximum3_f32 v{t}, v{t}, |v{o + 11}|, |v{o + 11}|")

    def normalise(ab, guard):
        o = OO[ab]
        for p in range(6):
            a(f"v_pk_mul_f32 {vr(o + 2 * p, 2)}, {vr(o + 2 * p, 2)}, {vr(o + 12, 2)} op_sel:[0,1] op_sel_hi:[1,1]")
        for p in range(6):
            a(f"v_cvt_pk_bf16_f32 v{CM[ab] + p}, v{o + 2 * p}, v{o + 2 * p + 1}")
        if guard:
            for p in (1, 3, 5):
                a(f"v_min_u32 v{CM[ab] + p}, -2, v{CM[ab] + p}")

    a(f"v_rcp_f32 v{OO[0] + 13}, v{OO[0] + 12}\ns_waitcnt lgkmcnt(0)")
    a(pv(1, 1, 7))
    stamp(a, prof, 7)
    a(f"""
    s_barrier
    s_mov_b32 s{s_t0}, {f32(2.0 ** 126)}
    s_mov_b32 s{s_t1}, {f32(2.0 ** (-7 - SHIFT))}
    """)
    magnitude(0)
    normalise(0, False)
    a(f"v_rcp_f32 v{OO[1] + 13}, v{OO[1] + 12}")
    magnitude(1)
    a(f"""
    v_maximum3_f32 v{T[4]}, v{T[2]}, v{T[3]}, v{OO[0] + 12}
    v_min_f32 v{T[2]}, v{T[2]}, v{T[3]}
    v_maximum3_f32 v{T[4]}, v{T[4]}, v{OO[1] + 12}, v{OO[1] + 12}
    v_cmp_le_f32 vcc, s{s_t1}, v{T[2]}
    v_cmp_gt_f32 s[{s_t2}:{s_t2 + 1}], s{s_t0}, v{T[4]}
    s_add_u32 s{s_t0}, s{s_cm}, {C_O * CH}
    s_add_u32 s{s_t1}, s{s_cr}, {C_O * CH}
    s_and_b64 vcc, vcc, s[{s_t2}:{s_t2 + 1}]
    s_cmp_eq_u64 vcc, exec
    """)
    a(f"s_branch {L('slow')}" if force_fallback else f"s_cbranch_scc0 {L('slow')}")

    def put_out(ab):
        a(f"""
        buffer_store_dwordx4 {vr(CM[ab], 4)}, v{VQ}, {WSD}, s{s_t0} offen offset:{512 * ab} sc1
        s_mov_b32 exec_hi, 0
        buffer_store_dwordx2 {vr(CM[ab] + 4, 2)}, v{VQR}, {WSD}, s{s_t1} offen offset:{512 * ab} sc1
        s_mov_b32 exec_hi, -1
        """)

    put_out(0)
    normalise(1, False)
    a(f"{L('norm')}:")
    put_out(1)
    stamp(a, prof, 17)
    a("s_barrier")
    stamp(a, prof, 8)
    a(f"s_branch {L('dump')}" if prof else "s_endpgm")

    a(f"{L('hk')}:\ns_waitcnt vmcnt(0)")
    set_flag(WS_FH)
    a(f"s_branch {L('hk_r')}")

    a(f"{L('slow')}:")
    GR, GV = AR, AV
    a(f"v_and_b32 v{T[0]}, 31, v{vL}\nv_lshrrev_b32 v{T[1]}, 5, v{vL}")
    key_perm(T[2], T[0], T[3], T[4])
    a(f"""
    s_lshl_b32 s{s_t0}, s{s_par}, 3
    s_add_u32 s{s_t0}, s{s_t0}, s{s_cr}
    v_lshl_add_u32 v{GR}, v{T[2]}, 4, s{s_t0}
    v_lshl_add_u32 v{vK}, v{T[2]}, 4, s{s_cm}
    v_lshl_add_u32 v{vK}, v{T[1]}, 15, v{vK}
    """)
    v_feature(T[2], T[0], T[3], T[4])
    a(f"""
    s_mul_i32 s{s_t0}, s{s_head}, 320
    v_mul_u32_u24 v{T[4]}, 10240, v{T[1]}
    v_lshl_add_u32 v{T[2]}, v{T[2]}, 4, v{T[4]}
    v_add_u32 v{GV}, s{s_t0}, v{T[2]}
    v_mov_b32 v{MX[0]}, 0xff800000
    v_mov_b32 v{MX[1]}, 0xff800000
    s_mov_b32 s{s_ko}, {C_K * CH}
    {L('slow1')}:
    buffer_load_dwordx4 {vr(K1[0], 4)}, v{vK}, {WSD}, s{s_ko} offen sc1
    buffer_load_dwordx2 {vr(K2[0], 2)}, v{GR}, {WSD}, s{s_ko} offen sc1
    s_add_u32 s{s_ko}, s{s_ko}, 512
    s_waitcnt vmcnt(0)
    """)
    for ab in range(2):
        a(qk1(SS[ab], ab, 0, 0))
        a(qk2(SS[ab], ab, 0))
    a("s_nop 7\ns_nop 3")
    for ab in range(2):
        for i in range(0, 16, 2):
            a(f"v_max3_f32 v{MX[ab]}, v{MX[ab]}, v{SS[ab] + i}, v{SS[ab] + i + 1}")
    a(f"s_cmp_lt_u32 s{s_ko}, {(C_K + 1) * CH}\ns_cbranch_scc1 {L('slow1')}")
    for ab in range(2):
        set_shift(ab, 0)
    zero(OO[0], 32)
    for r in range(4):
        a(f"v_mov_b32 v{V0[0] + r}, 0x3f803f80\nv_mov_b32 v{V1[0] + r}, 0x3f803f80")
    a(f"""
    s_mov_b32 s{s_ko}, {C_K * CH}
    s_mov_b32 s{s_vo}, {WS_V}
    {L('slow2')}:
    buffer_load_dwordx4 {vr(K1[0], 4)}, v{vK}, {WSD}, s{s_ko} offen sc1
    buffer_load_dwordx2 {vr(K2[0], 2)}, v{GR}, {WSD}, s{s_ko} offen sc1
    s_mov_b32 exec_lo, 0xfffff
    s_mov_b32 exec_hi, 0xfffff
    buffer_load_dwordx4 {vr(V0[0], 4)}, v{GV}, {WSD}, s{s_vo} offen sc1
    s_add_u32 s{s_vo}, s{s_vo}, 20480
    buffer_load_dwordx4 {vr(V1[0], 4)}, v{GV}, {WSD}, s{s_vo} offen sc1
    s_mov_b64 exec, -1
    s_add_u32 s{s_vo}, s{s_vo}, 20480
    s_add_u32 s{s_ko}, s{s_ko}, 512
    s_waitcnt vmcnt(0)
    """)
    for ab in range(2):
        a(qk1(SS[ab], ab, 0, vr(CM[ab], 16)))
        a(qk2(SS[ab], ab, 0))
    a("s_nop 7\ns_nop 3")
    for ab in range(2):
        for i in range(16):
            a(f"v_exp_f32 v{SS[ab] + i}, v{SS[ab] + i}")
    a("s_nop 1")
    for ab in range(2):
        a(pv(ab, 0, 0))
        a(pv(ab, 1, 0))
    a(f"""
    s_cmp_lt_u32 s{s_ko}, {(C_K + 1) * CH}
    s_cbranch_scc1 {L('slow2')}
    s_nop 7
    s_nop 3
    v_rcp_f32 v{OO[0] + 13}, v{OO[0] + 12}
    v_rcp_f32 v{OO[1] + 13}, v{OO[1] + 12}
    s_add_u32 s{s_t0}, s{s_cm}, {C_O * CH}
    s_add_u32 s{s_t1}, s{s_cr}, {C_O * CH}
    """)
    normalise(0, True)
    normalise(1, True)
    put_out(0)
    a(f"s_branch {L('norm')}")

    a(f"""
    {L('near')}:
    s_lshl_b32 s{s_t0}, s{s_rb}, 3
    s_add_u32 s{s_t0}, s{s_t0}, s{s_w}
    s_mul_i32 s{s_t1}, s{s_t0}, {135 * 128}
    s_mul_i32 s{s_t0}, s{s_t0}, {50 * 128}
    v_lshlrev_b32 v{T[2]}, 7, v{vL}
    s_mov_b64 s[{sA}:{sA + 1}], s[16:17]
    s_mov_b32 s{sA + 2}, {F * D * 2}
    s_mov_b32 exec_hi, 0x1fff
    """)
    for i in range(3):
        a(f"buffer_load_dword v{88 + i}, v{T[2]}, s[{sA}:{sA + 3}], s{s_t1} offen\ns_add_u32 s{s_t1}, s{s_t1}, {45 * 128}")
    a(f"""
    s_mov_b64 s[{sA}:{sA + 1}], s[8:9]
    s_mov_b32 s{sA + 2}, {D * D * 2}
    s_mov_b32 exec_hi, 0x3ffff
    buffer_load_dword v91, v{T[2]}, s[{sA}:{sA + 3}], s{s_t0} offen
    s_mov_b32 exec_hi, -1
    s_branch {L('p_go')}
    """)

    g0_lines, a.lines = a.lines, []
    MK, G = 240, 96
    VX, VW, VG = [11, 12, 13, 14], [15, 16, 17, 18], [19, 20, 21, 22]
    gR, gL, gA, gB = 24, 25, 26, 27
    fC, mQ, mQR, mQD, fB, FK, FO, one, pH, pO = range(246, 256)

    def w_addr(VF, stride):
        a(f"""
        v_lshrrev_b32 v{T[0]}, 4, v{vL}
        v_lshlrev_b32 v{T[1]}, 1, v{T[0]}
        v_xor_b32 v{T[1]}, v{T[1]}, v{vL}
        v_and_b32 v{T[1]}, 15, v{T[1]}
        s_lshl_b32 s{s_t1}, s{s_cg}, 8
        s_mul_i32 s{s_t0}, s{s_wj}, {16 * stride}
        s_add_u32 s{s_t1}, s{s_t1}, s{s_t0}
        v_mul_u32_u24 v{T[0]}, {stride}, v{T[0]}
        v_add_u32 v{T[0]}, s{s_t1}, v{T[0]}
        v_lshl_add_u32 v{VF[0]}, v{T[1]}, 4, v{T[0]}
        v_xor_b32 v{T[1]}, 8, v{T[1]}
        v_lshl_add_u32 v{VF[2]}, v{T[1]}, 4, v{T[0]}
        v_add_u32 v{VF[1]}, {4 * stride - 1024}, v{VF[0]}
        v_add_u32 v{VF[3]}, {3 * (4 * stride - 1024)}, v{VF[2]}
        v_add_u32 v{VF[2]}, {2 * (4 * stride - 1024)}, v{VF[2]}
        """)

    TF, TA, TV = 32, [52, 53], [54, 55, 56, 57, 58]
    has_block = f"s_cmp_lt_u32 s{s_tt}, 74"

    def block_addr():
        a(f"""
        s_and_b32 s{s_tt}, s2, 31
        s_lshl_b32 s{s_t0}, s{s_wj}, 5
        s_add_u32 s{s_tt}, s{s_tt}, s{s_t0}
        s_mul_i32 s{s_c}, s{s_wj}, 5120
        s_add_u32 s{s_c}, s{s_c}, {STG + LW}
        """)
        for i in range(5):
            a(f"""
            v_add_u32 v{T[2]}, {64 * i}, v{vL}
            v_mul_u32_u24 v{T[3]}, 6554, v{T[2]}
            v_lshrrev_b32 v{T[3]}, 16, v{T[3]}
            v_mul_u32_u24 v{T[3]}, {1280 - 160}, v{T[3]}
            v_lshl_add_u32 v{TV[i]}, v{T[2]}, 4, v{T[3]}
            """)
        a(f"""
        v_lshrrev_b32 v{T[2]}, 4, v{vL}
        v_bfe_u32 v{T[3]}, v{vL}, 2, 2
        v_lshl_add_u32 v{T[2]}, v{T[2]}, 3, v{T[3]}
        v_mul_u32_u24 v{T[2]}, 160, v{T[2]}
        v_add_u32 v{T[2]}, s{s_c}, v{T[2]}
        v_and_b32 v{T[3]}, 3, v{vL}
        v_lshl_add_u32 v{TA[0]}, v{T[3]}, 4, v{T[2]}
        v_lshl_add_u32 v{TA[1]}, v{T[3]}, 3, v{T[2]}
        """)

    def block_fetch():
        a(f"""
        s_cmp_lt_u32 s{s_tt}, 54
        s_cselect_b64 s[{sA}:{sA + 1}], s[16:17], s[8:9]
        s_mov_b32 s{sA + 2}, {F * D * 2}
        s_cselect_b32 s{sA + 2}, s{sA + 2}, {D * D * 2}
        s_cselect_b32 s{s_t1}, 0, 54
        s_sub_u32 s{s_t0}, s{s_tt}, s{s_t1}
        s_mul_i32 s{s_t0}, s{s_t0}, {32 * 1280}
        s_mul_i32 s{s_t1}, s{s_qb}, 160
        s_add_u32 s{s_t0}, s{s_t0}, s{s_t1}
        """)
        for i in range(5):
            a(f"s_add_u32 m0, s{s_c}, {i * 1024}\ns_nop 0")
            a(f"buffer_load_dwordx4 v{TV[i]}, s[{sA}:{sA + 3}], s{s_t0} offen lds")

    def block_turn():
        a("s_waitcnt vmcnt(0)")
        for c in range(5):
            va, off = (TA[0], 64 * (c >> 1) + 8 * (c & 1)) if c < 4 else (TA[1], 128)
            for h in range(2):
                a(f"ds_read_b64_tr_b16 {vr(TF + 4 * c + 2 * h, 2)}, v{va} offset:{off + 640 * h}")
        a("s_waitcnt lgkmcnt(0)")

    def block_put():
        a(f"""
        s_mul_i32 s{s_t0}, s{s_tt}, {KS_ROW}
        s_mul_i32 s{s_t1}, s{s_qb}, 5120
        s_add_u32 s{s_t0}, s{s_t0}, s{s_t1}
        s_add_u32 s{s_t0}, s{s_t0}, {WS_WT}
        s_add_u32 s{s_t1}, s{s_t0}, 4096
        v_lshlrev_b32 v{T[2]}, 4, v{vL}
        """)
        for c in range(5):
            a(f"buffer_store_dwordx4 {vr(TF + 4 * c, 4)}, v{T[2]}, {WSD}, s{(s_t0, s_t1)[c >> 2]} offen offset:{1024 * (c & 3)} sc1")

    def later_addr():
        attn_ids()
        block_addr()
        kv_addr(0)
        ones_addr(one, 0, 3)
        a(f"v_and_b32 v{T[0]}, 1, v{vL}")
        head_unit(T[1], T[0])
        a(f"""
        v_lshrrev_b32 v{T[0]}, 1, v{vL}
        v_min_u32 v{T[0]}, 2, v{T[0]}
        v_mad_u32_u24 v{T[1]}, v{T[0]}, 10, v{T[1]}
        v_mov_b32 v{T[2]}, s{s_kc}
        s_mov_b64 exec, 3
        v_mov_b32 v{T[2]}, s{s_qb}
        s_mov_b64 exec, -1
        v_lshl_add_u32 v{T[2]}, v{T[2]}, 2, s{s_wj}
        """)
        flag_of_tile(FO, f"v{T[2]}", T[1])
        a(f"v_and_b32 v{T[0]}, 1, v{vL}")
        head_unit(T[1], T[0])
        a(f"""
        v_bfe_u32 v{T[0]}, v{vL}, 1, 1
        v_mad_u32_u24 v{T[1]}, v{T[0]}, 10, v{T[1]}
        v_add_u32 v{T[1]}, 10, v{T[1]}
        v_and_b32 v{T[0]}, 28, v{vL}
        v_add_u32 v{T[0]}, s{s_wj}, v{T[0]}
        """)
        flag_of_tile(FK, f"v{T[0]}", T[1])
        q_addr(mQ, mQR)
        a(f"""
        v_lshl_add_u32 v{mQD}, v{vL}, 4, s{s_t0}
        s_lshl_b32 s{s_t0}, s{s_head}, 2
        s_add_u32 s{s_t0}, s{s_t0}, s{s_wj}
        v_and_b32 v{T[2]}, 15, v{vL}
        v_lshl_add_u32 v{T[2]}, s{s_t0}, 4, v{T[2]}
        v_lshrrev_b32 v{T[3]}, 4, v{vL}
        v_lshlrev_b32 v{pH}, 15, v{T[3]}
        v_lshl_add_u32 v{pH}, v{T[2]}, 4, v{pH}
        v_mul_u32_u24 v{pO}, 1280, v{T[2]}
        """)
        a(f"""
        v_min_u32 v{T[3]}, 26, v{T[0]}
        v_lshl_add_u32 v{fC}, v{T[3]}, 5, s{s_head}
        v_lshl_add_u32 v{T[3]}, v{T[0]}, 2, s{s_wj}
        v_min_u32 v{T[3]}, 53, v{T[3]}
        v_subrev_u32 v{T[4]}, 16, v{T[0]}
        v_min_u32 v{T[4]}, 4, v{T[4]}
        v_lshl_add_u32 v{T[4]}, v{T[4]}, 2, s{s_wj}
        s_lshl_b32 s{s_t0}, s{s_qb}, 7
        s_add_u32 s{s_t0}, s{s_t0}, 1024
        s_add_u32 s{s_fl}, s{s_t0}, s{s_tt}
        s_add_u32 s{s_t1}, s{s_t0}, 54
        s_mov_b32 exec_lo, 0
        v_add_u32 v{fC}, s{s_t0}, v{T[3]}
        s_mov_b32 exec_hi, 0xffff0000
        v_add_u32 v{fC}, s{s_t1}, v{T[4]}
        s_mov_b64 exec, -1
        v_lshlrev_b32 v{fC}, 7, v{fC}
        s_lshr_b32 s{s_t0}, s{s_head}, 2
        v_lshl_add_u32 v{fB}, s{s_t0}, 5, v{T[0]}
        v_lshlrev_b32 v{fB}, 7, v{fB}
        """)

    def boundary(wait=None):
        if wait is not None:
            a(f"s_waitcnt vmcnt({wait})")
        if 1 < cfg.get("trace", 0) < 4:
            stamp(a, prof, 21)
        a("s_barrier")

    def ask_tag():
        srd(a, sWS, 22, WS_TOP)
        load_tag()

    def take_tag():
        a(f"s_waitcnt lgkmcnt(0)\ns_add_u32 s{s_tag}, s{s_tag}, 1")

    def split(ops, n):
        k = -(-len(ops) // n)
        return [ops[i * k:(i + 1) * k] for i in range(n)]

    def feed(c, which="xwf", mix=()):
        mix = list(mix)
        per = -(-len(mix) // max(4 * len(which), 1))
        for key, part, va, sd, step in (("x", LX, VX, sX, 128), ("w", LW, VW, sW, 64 * 3840), ("f", LF, VG, sB, 64 * 3456)):
            if key in which:
                half = {"x": s_xo, "w": s_wstep, "f": s_ho}[key]
                a(f"s_add_u32 m0, s{s_ring}, {(c % 3) * STG + part}")
                a(f"s_add_u32 s{s_wo}, s{half}, {c * step}" if c < 5 else f"s_sub_u32 s{s_wo}, {c * step}, s{half}")
                for i in range(4):
                    a(f"buffer_load_dwordx4 v{va[i]}, s[{sd}:{sd + 3}], s{s_wo} offen offset:{1024 * i} lds")
                    a("\n".join(mix[:per]))
                    mix = mix[per:]

    def only(name, cond, fn):
        a(f"{cond}\ns_cbranch_scc0 {L(name)}")
        fn()
        a(f"{L(name)}:")

    feeding = f"s_cmp_lt_u32 s{s_cg}, 15"
    a(f"""
    s_lshl_b32 s{s_ring}, s{s_wj}, 12
    s_mul_i32 s{s_xo}, s{s_t3}, {5 * 128}
    s_mul_i32 s{s_wstep}, s{s_t3}, {5 * 64 * 3840}
    s_mul_i32 s{s_ho}, s{s_t3}, {5 * 64 * 3456}
    v_lshrrev_b32 v{T[2]}, 4, v{vL}
    v_xor_b32 v{T[2]}, v{T[2]}, v{T[1]}
    s_lshl_b32 s{s_t1}, s{s_rb}, 2
    s_add_u32 s{s_t1}, s{s_t1}, s{s_wj}
    s_mul_i32 s{s_t1}, s{s_t1}, {32 * 1280}
    v_mul_u32_u24 v{T[3]}, 1280, v{T[0]}
    v_add_u32 v{T[3]}, s{s_t1}, v{T[3]}
    v_lshl_add_u32 v{VX[0]}, v{T[2]}, 4, v{T[3]}
    v_xor_b32 v{T[2]}, 4, v{T[2]}
    v_lshl_add_u32 v{VX[1]}, v{T[2]}, 4, v{T[3]}
    v_add_u32 v{VX[2]}, {2 * (10240 - 1024)}, v{VX[0]}
    v_add_u32 v{VX[3]}, {3 * (10240 - 1024)}, v{VX[1]}
    v_add_u32 v{VX[1]}, {10240 - 1024}, v{VX[1]}
    v_and_b32 v{SO}, 48, v{vL}
    v_lshl_add_u32 v{SO}, v{T[1]}, 6, v{SO}
    """)
    srd(a, sX, 4, S * D * 2)

    def touch():
        a(f"""
        s_getpc_b64 s[{sA}:{sA + 1}]
        {L('pc')}:
        s_sub_u32 s{sA}, s{sA}, {L('pc')}-{label}
        s_subb_u32 s{sA + 1}, s{sA + 1}, 0
        s_mov_b32 s{sA + 2}, {L('end')}-{label}
        s_lshr_b32 s{s_t0}, s2, 3
        s_lshl_b32 s{s_t0}, s{s_t0}, 10
        v_lshlrev_b32 v{T[2]}, 7, v{vL}
        s_mov_b64 exec, 0xff
        buffer_load_dword v226, v{T[2]}, s[{sA}:{sA + 3}], s{s_t0} offen
        s_mov_b64 exec, -1
        """)

    def touch_x():
        a(f"""
        s_lshl_b32 s{s_t0}, s{s_rb}, 2
        s_add_u32 s{s_t0}, s{s_t0}, s{s_ocg}
        s_mul_i32 s{s_t0}, s{s_t0}, {32 * 1280}
        s_add_u32 s{s_t0}, s{s_t0}, s{s_xo}
        v_lshrrev_b32 v{T[2]}, 1, v{vL}
        v_mul_u32_u24 v{T[2]}, 1280, v{T[2]}
        v_and_b32 v{T[3]}, 1, v{vL}
        v_lshl_add_u32 v{T[2]}, v{T[3]}, 7, v{T[2]}
        buffer_load_dword v226, v{T[2]}, s[{sX}:{sX + 3}], s{s_t0} offen
        """)

    if cfg["touch"] & 1:
        only("tc", f"s_cmp_eq_u32 s{s_wj}, 0", touch)
    if cfg["touch"] & 2:
        only("tx", f"s_cmp_eq_u32 s{s_wj}, 1", touch_x)
    srd(a, sA, 14, F * 2)
    a(f"""
    s_lshl_b32 s{s_t2}, s{s_cg}, 8
    v_lshlrev_b32 v{T[2]}, 2, v{vL}
    buffer_load_dword v28, v{T[2]}, s[{sA}:{sA + 3}], s{s_t2} offen
    """)
    ask_tag()
    w_addr(VW, 3840)
    w_addr(VG, 3456)
    srd(a, sW, 6, D * 3 * D * 2)
    srd(a, sB, 12, D * F * 2)
    a(f"""
    s_cmp_lt_u32 s{s_cg}, 14
    s_cselect_b32 s{sB + 2}, s{sB + 2}, 0
    s_lshl_b32 s{s_o[1]}, s{s_o[1]}, 9
    s_add_u32 s{s_o[0]}, s{s_o[0]}, s{s_o[1]}
    s_add_u32 s{s_o[0]}, s{s_o[0]}, {WS_CP}
    s_and_b32 s{s_t1}, s{s_wj}, 1
    v_lshl_add_u32 v{gL}, s{s_t1}, 6, v{vL}
    s_lshl_b32 s{s_t3}, s{s_rb}, 11
    v_lshl_add_u32 v{gR}, v{gL}, 4, s{s_t3}
    s_lshl_b32 s{s_t2}, s{s_cg}, 6
    s_mul_i32 s{s_t1}, s{s_t1}, 960
    s_add_u32 s{s_t1}, s{s_t1}, s{s_t2}
    v_add_u32 v{gA}, s{s_t1}, v{vL}
    v_min_u32 v{gA}, 1823, v{gA}
    v_lshlrev_b32 v{gA}, 4, v{gA}
    s_mov_b32 s{s_spin}, {SPIN}
    v_lshrrev_b32 v23, 1, v{SO}
    v_add_u32 v23, {L_CP}, v23
    """)
    if cfg["early"]:
        later_addr()
    take_tag()
    stamp(a, prof, 44)

    def sums():
        for r in range(20):
            c = AC + 2 * (r & 3)
            if r < 4:
                a(f"v_lshlrev_b32 v{c}, 16, v{SD + r}\nv_and_b32 v{c + 1}, 0xffff0000, v{SD + r}")
            else:
                lo, hi = T[2 + 2 * (r & 1)], T[3 + 2 * (r & 1)]
                a(f"v_lshlrev_b32 v{lo}, 16, v{SD + r}\nv_and_b32 v{hi}, 0xffff0000, v{SD + r}\n"
                  f"v_add_f32 v{c}, v{c}, v{lo}\nv_add_f32 v{c + 1}, v{c + 1}, v{hi}")
        a(f"s_lshl_b32 s{s_t0}, s{s_wj}, 8\nv_add_u32 v{T[2]}, s{s_t0}, v23")
        for i in range(4):
            a(f"v_permlane32_swap_b32 v{AC + i}, v{AC + 4 + i}")
        for i in range(4):
            a(f"v_add_f32 v{AC + i}, v{AC + i}, v{AC + 4 + i}")
        a("s_nop 1")
        for i in range(2):
            a(f"v_permlane16_swap_b32 v{AC + i}, v{AC + 2 + i}")
        a(f"v_add_f32 v{AC}, v{AC}, v{AC + 2}\nv_add_f32 v{AC + 1}, v{AC + 1}, v{AC + 3}\ns_nop 1")
        for r in (AC, AC + 1):
            a(f"v_add_f32_dpp v{r}, v{r}, v{r} row_ror:8 row_mask:0xf bank_mask:0xf")
        a(f"ds_write_b64 v{T[2]}, {vr(AC, 2)}")

    def publish():
        for i in range(4):
            a(f"ds_read_b64 {vr(AC + 2 * i, 2)}, v23 offset:{256 * i}")
        a(f"""
        s_waitcnt lgkmcnt(0)
        v_add_f32 v{AC}, v{AC}, v{AC + 2}
        v_add_f32 v{AC + 2}, v{AC + 1}, v{AC + 3}
        v_add_f32 v{AC + 4}, v{AC + 4}, v{AC + 6}
        v_add_f32 v{AC + 5}, v{AC + 5}, v{AC + 7}
        v_add_f32 v{AC}, v{AC}, v{AC + 4}
        v_add_f32 v{AC + 2}, v{AC + 2}, v{AC + 5}
        v_mov_b32 v{AC + 1}, s{s_tag}
        v_mov_b32 v{AC + 3}, s{s_tag}
        s_mov_b32 exec_lo, 0x00ff00ff
        s_mov_b32 exec_hi, 0x00ff00ff
        buffer_store_dwordx4 {vr(AC, 4)}, v{SO}, {WSD}, s{s_o[0]} offen sc1
        s_mov_b64 exec, -1
        """)

    def publish_rows():
        a(f"""
        s_and_b32 s{s_t0}, s2, 1
        s_lshl_b32 s{s_t0}, s{s_t0}, 8
        s_and_b32 s{s_t1}, s2, 0xfe
        s_add_u32 s{s_t0}, s{s_t0}, s{s_t1}
        s_lshl_b32 s{s_t0}, s{s_t0}, 6
        s_add_u32 s{s_t0}, s{s_t0}, {WS_RS}
        v_lshlrev_b32 v{T[2]}, 4, v{vL}
        v_add_u32 v{T[3]}, {L_RP}, v{T[2]}
        v_bfe_u32 v{T[4]}, v{vL}, 3, 1
        v_mul_u32_u24 v{T[4]}, {4096 - 128}, v{T[4]}
        v_add_u32 v{T[2]}, v{T[2]}, v{T[4]}
        s_cmp_eq_u32 s{s_cg}, 14
        s_movk_i32 s{s_t1}, 0xff
        s_cselect_b32 exec_lo, 0xffff, s{s_t1}
        s_mov_b32 exec_hi, 0
        ds_read_b128 {vr(AC, 4)}, v{T[3]}
        s_waitcnt lgkmcnt(0)
        buffer_store_dwordx4 {vr(AC, 4)}, v{T[2]}, {WSD}, s{s_t0} offen sc1
        s_mov_b64 exec, -1
        """)

    def gather_loads():
        a(f"s_mov_b32 s{s_slot}, {WS_RS}\nbuffer_load_dwordx4 {vr(G + 16, 4)}, v{gR}, {WSD}, s{s_slot} offen sc1")
        a(f"s_mov_b32 s{s_slot}, {WS_CP}")
        for p in range(4):
            a(f"buffer_load_dwordx4 {vr(G + 4 * p, 4)}, v{gA}, {WSD}, s{s_slot} offen sc1")
            a(f"s_add_u32 s{s_slot}, s{s_slot}, {CP_ROW}")

    def gather_put():
        a(f"s_branch {L('ga_chk')}\n{L('ga')}:")
        gather_loads()
        a(f"s_sub_u32 s{s_spin}, s{s_spin}, 1\ns_waitcnt vmcnt(0)\n{L('ga_chk')}:")
        a(f"v_min_u32 v{T[3]}, v{G + 1}, v{G + 3}\nv_max_u32 v{T[4]}, v{G + 1}, v{G + 3}")
        for p in range(1, 5):
            b = G + 4 * p
            a(f"v_min3_u32 v{T[3]}, v{T[3]}, v{b + 1}, v{b + 3}\nv_max3_u32 v{T[4]}, v{T[4]}, v{b + 1}, v{b + 3}")
        retry("ga")
        a(f"v_add_f32 v{G + 1}, v{G + 2}, v{G + 6}\nv_add_f32 v{G}, v{G}, v{G + 4}")
        for p in range(2, 4):
            b = G + 4 * p
            a(f"v_add_f32 v{G}, v{G}, v{b}\nv_add_f32 v{G + 1}, v{G + 1}, v{b + 2}")
        a(f"""
        s_mov_b32 s{s_t0}, {L_NM}
        v_lshlrev_b32 v{G + 2}, 16, v28
        v_and_b32 v{G + 3}, 0xffff0000, v28
        v_lshl_add_u32 v{T[3]}, v{gL}, 2, s{s_t0}
        v_lshl_add_u32 v{T[4]}, v{gL}, 3, s{s_t0}
        v_lshl_add_u32 v{T[5]}, v{vL}, 3, s{s_t0}
        ds_write2_b32 v{T[3]}, v{G + 16}, v{G + 18} offset0:0 offset1:128
        ds_write_b64 v{T[4]}, {vr(G, 2)} offset:{L_CSA - L_NM}
        ds_write_b64 v{T[5]}, {vr(G + 2, 2)} offset:{L_BI - L_NM}
        s_waitcnt lgkmcnt(0)
        """)

    def mark_unwritten():
        a(f"""
        s_add_u32 s{s_ko}, s{s_cm}, {C_O * CH}
        s_add_u32 s{s_vo}, s{s_cr}, {C_O * CH}
        v_mov_b64 {vr(MK, 2)}, -1
        v_mov_b64 {vr(MK + 2, 2)}, -1
        buffer_store_dwordx4 {vr(MK, 4)}, v{mQ}, {WSD}, s{s_ko} offen sc1
        buffer_store_dwordx4 {vr(MK, 4)}, v{mQ}, {WSD}, s{s_ko} offen offset:512 sc1
        s_mov_b32 exec_hi, 0
        buffer_store_dwordx2 {vr(MK, 2)}, v{mQR}, {WSD}, s{s_vo} offen sc1
        buffer_store_dwordx2 {vr(MK, 2)}, v{mQR}, {WSD}, s{s_vo} offen offset:512 sc1
        s_mov_b32 exec_hi, -1
        """)

    a(f"{feeding}\ns_cbranch_scc1 {L('g1_on')}")
    if not cfg["early"]:
        later_addr()
    early_mark = cfg["mk"] < 10
    if early_mark:
        mark_unwritten()
    only("bf0", has_block, block_fetch)
    only("bt0", has_block, block_turn)
    a(f"s_branch {L('b_last')}\n{L('g1_on')}:")
    feed(0)
    stamp(a, prof, 43)
    pre = "xwf"[:cfg["pre"]]
    feed(1, pre)
    boundary(4 * len(pre))
    a(f"s_setprio {cfg['fprio']}")
    sm = capture(sums)
    k = len(sm) * (3 - len(pre)) // 3
    feed(1, "xwf"[len(pre):], sm[:k])
    feed(2, pre, sm[k:])
    only("pr", f"s_cmp_eq_u32 s{s_wj}, 2", publish_rows)
    a("s_waitcnt lgkmcnt(0)")
    late = [[]] + (split(capture(later_addr), 4) if not cfg["early"] else [[]] * 4)
    gath = f"s_cmp_lt_u32 s{s_wj}, 2"
    for c in range(10):
        if c - cfg["gat"] in (1, 2):
            a(f"{gath}\ns_cbranch_scc1 {L('bw' + str(c))}\ns_waitcnt vmcnt(12)\n{L('bw' + str(c))}:")
            boundary(17)
            assert c <= 5
        else:
            boundary({0: 4 * len(pre), 6: 8, 7: 8, 8: 4, 9: None}.get(c, 12))
        if c == 0:
            feed(2, "xwf"[len(pre):])
        if c < 5:
            feed(c + 3, mix=late[c])
        elif c < 7:
            feed(c + 3, "xw")
        elif c < 9:
            feed(c + 1, "f")
        if c == 0:
            only("pb", f"s_cmp_eq_u32 s{s_wj}, s{s_hook}", publish)
        if c == cfg["mk"]:
            mark_unwritten()
        if c == 8:
            only("bf", has_block, block_fetch)
        if c == cfg["gat"]:
            only("gf", gath, gather_loads)
        if c == cfg["gat"] + 3:
            only("gp", gath, gather_put)
    a(f"{has_block}\ns_cbranch_scc1 {L('bwa')}\ns_waitcnt vmcnt({4 * early_mark})\n{L('bwa')}:")
    boundary(5 + 4 * early_mark)
    only("bt", has_block, block_turn)
    boundary()

    def first_fetch():
        a(f"""
        s_mul_i32 s{s_t0}, s{s_wj}, 3072
        s_add_u32 m0, s{s_t0}, {L_Q}
        s_nop 0
        buffer_load_dwordx4 v{mQ}, {WSD}, s{s_cm} offen sc1 lds
        s_add_u32 m0, s{s_t0}, {L_Q + 512}
        s_nop 0
        buffer_load_dwordx4 v{mQ}, {WSD}, s{s_cm} offen offset:512 sc1 lds
        s_add_u32 m0, s{s_t0}, {L_Q + 2048}
        s_nop 0
        buffer_load_dwordx4 v{mQD}, {WSD}, s{s_cr} offen sc1 lds
        """)
        kv_dma(0)

    a(f"{L('b_last')}:\ns_setprio 2")
    stamp(a, prof, 40)
    ones_write(one, 20)
    wait_flags("wa", WS_FA, [FO] if cfg["lean"] else [FO, FK])
    stamp(a, prof, 41)
    if prof is True:
        a(f"s_sub_u32 s{s_t0}, {SPIN}, s{s_spin}\ns_add_u32 s96, s{s_t0}, 100")
    first_fetch()
    if cfg["hpos"] == 0:
        stamp(a, prof, 4)
        if cfg["lean"]:
            a(f"s_mov_b32 s{s_t0}, {WS_FA}\nbuffer_load_dword v{T[3]}, v{FK}, {WSD}, s{s_t0} offen sc1")
        a(f"s_barrier\ns_waitcnt vmcnt({cfg['lean']}) lgkmcnt(0)")
        stamp(a, prof, 3)
        a("s_barrier")
        if cfg["lean"]:
            a(f"s_waitcnt vmcnt(0)\nv_cmp_ne_u32 vcc, s{s_tag}, v{T[3]}\ns_nop 3\ns_cbranch_vccz {L('wk_done')}")
            wait_flags("wk", WS_FA, [FK])
        kv_dma(1)
        only("bp", has_block, block_put)
    else:
        kv_dma(1)
        stamp(a, prof, 4)
        only("bp", has_block, block_put)
        a(f"{has_block}\ns_cbranch_scc1 {L('bq')}\ns_waitcnt vmcnt(7)\n{L('bq')}:\ns_waitcnt vmcnt(12) lgkmcnt(0)")
        stamp(a, prof, 3)
        a("s_barrier")

    vH, vW, vO, vB, vLn = [11, 12, 13, 14], [15, 16], [17, 18], [T[0], T[1]], 19
    ACC = 20
    LB = [100 + 36 * i for i in range(3)]
    WR, XR, BR = 180, 220, 230
    sH, sT = sW, sA
    a(f"""
    v_mov_b32 v{vH[0]}, v{pH}
    v_xor_b32 v{vH[1]}, 256, v{pH}
    v_xor_b32 v{vH[2]}, 512, v{pH}
    v_xor_b32 v{vH[3]}, 768, v{pH}
    v_lshlrev_b32 v{vLn}, 4, v{vL}
    s_mul_i32 s{s_t0}, s{s_qb}, 5120
    v_add_u32 v{vW[0]}, s{s_t0}, v{vLn}
    v_add_u32 v{vW[1]}, 4096, v{vW[0]}
    s_mul_i32 s{s_t0}, s{s_qb}, 160
    v_lshrrev_b32 v{T[2]}, 4, v{vL}
    v_lshl_add_u32 v{vB[0]}, v{T[2]}, 4, s{s_t0}
    v_lshl_add_u32 v{vB[1]}, v{T[2]}, 3, s{s_t0}
    v_add_u32 v{vO[0]}, v{pO}, v{vB[0]}
    v_add_u32 v{vO[1]}, v{pO}, v{vB[1]}
    s_add_u32 s{sH}, s22, {C_H * CH}
    s_addc_u32 s{sH + 1}, s23, 0
    s_mov_b32 s{sH + 2}, {216 * CH}
    s_mov_b32 s{sH + 3}, 0x00020000
    s_add_u32 s{sT}, s22, {WS_WT}
    s_addc_u32 s{sT + 1}, s23, 0
    s_mov_b32 s{sT + 2}, {54 * KS_ROW}
    s_mov_b32 s{sT + 3}, 0x00020000
    s_lshl_b32 s{s_ho}, s{s_wj}, 17
    s_mul_i32 s{s_wo}, s{s_wj}, {KS_ROW}
    s_add_u32 s{s_xo}, s{s_wo}, {WS_WT + 54 * KS_ROW}
    s_mul_i32 s{s_ring}, s{s_wj}, 5120
    s_waitcnt vmcnt(0)
    """)
    only("fw", has_block, lambda: set_flag(WS_FH))
    kv_dma(2)
    a(f"s_mov_b32 s{s_fl}, s2\ns_barrier")
    stamp(a, prof, 5)

    def w_frag(c):
        return (vW[0], 1024 * c) if c < 4 else (vW[1], 0)

    def ffn_loads(b):
        for t in range(4):
            a(f"buffer_load_dwordx4 {vr(LB[b] + 4 * t, 4)}, v{vH[t]}, s[{sH}:{sH + 3}], s{s_ho} offen sc1")
        for c in range(5):
            va, off = w_frag(c)
            a(f"buffer_load_dwordx4 {vr(LB[b] + 16 + 4 * c, 4)}, v{va}, s[{sT}:{sT + 3}], s{s_wo} offen offset:{off} sc1")
        a(f"s_add_u32 s{s_ho}, s{s_ho}, {16 * CH}\ns_add_u32 s{s_wo}, s{s_wo}, {4 * KS_ROW}")

    def wo_stage(i):
        for c in range(5):
            va, off = w_frag(c)
            if c in (0, 4):
                a(f"s_add_u32 m0, s{s_ring}, {L_WO + i * 20480 + 1024 * c}\ns_nop 0")
            a(f"buffer_load_dwordx4 v{va}, {WSD}, s{s_xo} offen offset:{off} sc1 lds")
        a(f"s_add_u32 s{s_xo}, s{s_xo}, {4 * KS_ROW}")

    queue = []

    def need(tag):
        if tag not in queue:
            return
        last = max(i for i, q in enumerate(queue) if q == tag)
        a(f"s_waitcnt vmcnt({len(queue) - 1 - last})")
        del queue[:last + 1]

    def send(r):
        a(f"s_add_u32 s{s_t0}, s{s_ring}, {L_EX[r]}\nv_add_u32 v{T[2]}, s{s_t0}, v{vLn}")
        for c in range(5):
            a(f"ds_write_b128 v{T[2]}, {vr(ACC + 20 * r + 4 * c, 4)} offset:{1024 * c}")

    wait_flags("wb", WS_FH, [fC], cfg["fbr"])
    a(f"s_cbranch_vccnz {L('fb_late')}")
    stamp(a, prof, 6)
    ffn_loads(0)
    a(f"s_barrier\ns_branch {L('fb_go')}\n{L('fb_late')}:\ns_barrier")
    wait_flags("wc", WS_FH, [fC])
    stamp(a, prof, 16)
    ffn_loads(0)
    a(f"{L('fb_go')}:\ns_setprio 0")
    assert not early_mark
    queue += [("L", 0)] * 9

    def vm_units(fn, tag):
        out, cur = [], []
        for u in capture(fn):
            cur.append(u)
            n = u.count("buffer_load")
            if n:
                out.append(("\n".join(cur), [tag] * n))
                cur = []
        out[-1] = (out[-1][0] + "\n" + "\n".join(cur), out[-1][1])
        return out

    cuts = [cfg["cut0"] + cfg["cutd"] * k for k in range(5)]
    side = vm_units(lambda: kv_dma(3), ("D", 2)) + vm_units(lambda: wo_stage(0), ("W", 2))
    iv, m = 2, 0
    for step in range(14):
        b = step % 3
        main = vm_units(lambda: ffn_loads((step + 2) % 3), ("L", step + 2)) if step + 2 < 14 else []
        if step == 0:
            ffn_loads(1)
            queue += [("L", 1)] * 9
        need(("L", step))
        if step == 13:
            assert not side and iv == 7
            a(f"s_cmp_lt_u32 s{s_wj}, 2\ns_cbranch_scc0 {L('m13')}")
        for k in range(20):
            t, c = divmod(k, 5)
            d = vr(ACC + 20 * t + 4 * c, 4)
            a(f"v_mfma_f32_16x16x32_bf16 {d}, {vr(LB[b] + 16 + 4 * c, 4)}, {vr(LB[b] + 4 * t, 4)}, {d if step else 0}")
            m += 1
            src = main if (main and (k & 1 or not side)) else side
            if src:
                text, tags = src.pop(0)
                a(text)
                queue += tags
            if iv < 7 and m == cuts[iv - 2]:
                assert not side
                need(("D", iv))
                if cfg.get("trace"):
                    stamp(a, prof, 24)
                a("s_barrier")
                iv += 1
                if iv == cfg["mk"] - 10:
                    mark_unwritten()
                    queue += [("M", 0)] * 4
                if iv == cfg["mk"] - 9:
                    assert ("M", 0) not in queue
                    only("fb", f"s_cmp_eq_u32 s{s_wj}, 0", lambda: set_flag(WS_FB))
                if iv < 7:
                    side = vm_units(lambda: kv_dma(iv + 1), ("D", iv))
                if iv < 6:
                    side += vm_units(lambda: wo_stage(iv - 2), ("W", iv))
                if iv == 7:
                    only("w5", f"s_cmp_lt_u32 s{s_wj}, 2", lambda: wo_stage(4))
        assert not main
    a(f"{L('m13')}:")
    srd(a, sX, 4, S * D * 2)
    srd(a, sA, 18, D * 2)
    srd(a, sB, 20, S * D * 2)
    upper = f"s_cmp_ge_u32 s{s_wj}, 2"

    def wo_last():
        for c in range(5):
            va, off = w_frag(c)
            a(f"buffer_load_dwordx4 {vr(WR + 4 * c, 4)}, v{va}, {WSD}, s{s_xo} offen offset:{off} sc1")

    def wo_last_put():
        a(f"s_add_u32 s{s_t0}, s{s_ring}, {L_WO + 4 * 20480}\nv_add_u32 v{T[2]}, s{s_t0}, v{vLn}")
        for c in range(5):
            a(f"ds_write_b128 v{T[2]}, {vr(WR + 4 * c, 4)} offset:{1024 * c}")

    only("wl", upper, wo_last)
    for dst, va, sd in ((XR, vO, sX), (BR, vB, sA)):
        a(f"""
        buffer_load_dwordx4 {vr(dst, 4)}, v{va[0]}, s[{sd}:{sd + 3}], 0 offen
        buffer_load_dwordx4 {vr(dst + 4, 4)}, v{va[0]}, s[{sd}:{sd + 3}], 0 offen offset:64
        buffer_load_dwordx2 {vr(dst + 8, 2)}, v{va[1]}, s[{sd}:{sd + 3}], 0 offen offset:128
        """)
    NW, AH = 7, cfg["ahead"]
    AC2, WG, OF = 40, 60, 200
    assert OF + 4 * (AH + 1) <= 256

    def wo_read(i, c):
        va, off = (vLn, L_WO + 5120 * i) if i < 10 else (T[2], 5120 * (i - 10))
        return f"ds_read_b128 {vr(WG + 20 * (i % NW) + 4 * c, 4)}, v{va} offset:{off + 1024 * c}"

    def o_load(i):
        a(f"s_mov_b32 s{s_t0}, {(C_O + 4 * i) * CH}")
        a(f"buffer_load_dwordx4 {vr(OF + 4 * (i % (AH + 1)), 4)}, v{vH[0]}, {WSD}, s{s_t0} offen sc1")

    def prime(steps):
        for i in steps:
            a("s_waitcnt lgkmcnt(10)\n" + "\n".join(wo_read(i, c) for c in range(5)))

    prime(range(2, 6))
    wait_flags("wm", WS_FB, [fB])
    a(f"""
    s_cmp_lg_u32 s2, 0
    s_cbranch_scc1 {L('we_done')}
    s_lshl_b32 s{s_t0}, s{s_wj}, 6
    v_add_u32 v{T[5]}, s{s_t0}, v{vL}
    v_lshlrev_b32 v{T[5]}, 7, v{T[5]}
    """)
    wait_flags("we", WS_FB, [T[5]])
    a(f"""
    v_bfe_u32 v{T[2]}, v{vL}, 1, 4
    v_mul_u32_u24 v{T[2]}, 5, v{T[2]}
    v_and_b32 v{T[3]}, 1, v{vL}
    s_cmp_eq_u32 s{s_wj}, 2
    s_cselect_b32 s{s_t1}, 8, {3 * CH}
    s_cselect_b32 s{s_t2}, 4, 12
    s_cmp_eq_u32 s{s_wj}, 3
    s_cselect_b32 s{s_t0}, 0, s{s_wj}
    v_add_u32 v{T[2]}, s{s_t0}, v{T[2]}
    v_lshlrev_b32 v{T[2]}, 15, v{T[2]}
    v_mad_u32_u24 v{T[0]}, v{T[3]}, s{s_t1}, v{T[2]}
    s_lshl_b32 s{s_t0}, s{s_head}, 3
    s_add_u32 s{s_t0}, s{s_t0}, s{s_qb}
    s_lshl_b32 s{s_t0}, s{s_t0}, 7
    s_add_u32 s{s_t0}, s{s_t0}, s{s_t2}
    s_add_u32 s{s_ko}, s{s_t0}, {C_O * CH}
    s_mov_b32 s{s_spin}, {SPIN}
    """)
    a("s_waitcnt lgkmcnt(0)")
    if cfg.get("trace"):
        stamp(a, prof, 24)
    a("s_barrier")
    send(1)
    send(2)
    stamp(a, prof, 7)
    a("s_barrier")
    a("s_waitcnt vmcnt(0) lgkmcnt(0)")
    send(3)
    only("wp", upper, wo_last_put)
    a("s_waitcnt lgkmcnt(0)\ns_barrier")
    stamp(a, prof, 8)
    a(f"""
    s_cmp_lg_u32 s2, 0
    s_cbranch_scc1 {L('tag_kept')}
    v_mov_b32 v{T[4]}, 0
    v_mov_b32 v{T[5]}, s{s_tag}
    s_mov_b32 s{s_t0}, {WS_E}
    buffer_store_dword v{T[5]}, v{T[4]}, {WSD}, s{s_t0} offen sc1
    {L('tag_kept')}:
    """)
    for r in range(1, 4):
        a(f"""
        s_xor_b32 s{s_t0}, s{s_wj}, {r}
        s_mul_i32 s{s_t0}, s{s_t0}, 5120
        s_add_u32 s{s_t0}, s{s_t0}, {L_EX[r]}
        v_add_u32 v{T[2]}, s{s_t0}, v{vLn}
        """)
        for c in range(5):
            a(f"ds_read_b128 {vr(ACC + 20 * r + 4 * c, 4)}, v{T[2]} offset:{1024 * c}")
    for src in (XR, BR):
        for i in range(10):
            t = T[2 + 2 * (i & 1)]
            a(f"v_lshlrev_b32 v{t}, 16, v{src + i}\nv_and_b32 v{t + 1}, 0xffff0000, v{src + i}")
            a(f"v_pk_add_f32 {vr(ACC + 2 * i, 2)}, {vr(ACC + 2 * i, 2)}, {vr(t, 2)}")
    for r in range(1, 4):
        a(f"s_waitcnt lgkmcnt({5 * (3 - r)})")
        for i in range(0, 20, 2):
            a(f"v_pk_add_f32 {vr(ACC + i, 2)}, {vr(ACC + i, 2)}, {vr(ACC + 20 * r + i, 2)}")
    a(f"v_add_u32 v{T[2]}, {L_WO + 10 * 5120}, v{vLn}")

    look = f"buffer_load_dword v{T[3]}, v{T[0]}, {WSD}, s{s_ko} offen sc1"
    a(f"{L('first')}:\ns_mov_b32 exec_hi, 0\n{look}\ns_mov_b32 exec_hi, -1")
    prime((0, 1, 6))
    a(f"""
    v_mov_b32 v{T[4]}, 0
    s_mov_b32 exec_hi, 0
    s_branch {L('seen')}
    {L('poll')}:
    {look}
    {L('seen')}:
    s_sub_u32 s{s_spin}, s{s_spin}, 1
    s_cmp_lt_i32 s{s_spin}, 0
    s_waitcnt vmcnt(0) lgkmcnt(0)
    v_cmp_eq_u32 vcc, -1, v{T[3]}
    s_cbranch_scc1 {L('got')}
    s_nop 2
    s_cbranch_vccnz {L('poll')}
    {L('got')}:
    s_mov_b32 exec_hi, -1
    """)
    if prof is True:
        stamp(a, prof, 50)
        a(f"s_sub_u32 s96, {SPIN + 200}, s{s_spin}\ns_waitcnt lgkmcnt(0)")
    for i in range(AH):
        o_load(i)
    todo = [(i, c) for i in range(NW, 20) for c in range(5)]
    issued = 0
    for i in range(20):
        lg = f" lgkmcnt({min(15, issued - 5 * (i - NW + 1))})" if i >= NW else ""
        assert i < NW or issued >= 5 * (i - NW + 1)
        a(f"s_waitcnt vmcnt({min(20, i + AH) - i - 1}){lg}")
        o = OF + 4 * (i % (AH + 1))
        for c in range(5):
            d = vr(AC2 + 4 * c, 4)
            a(f"v_mfma_f32_16x16x32_bf16 {d}, {vr(WG + 20 * (i % NW) + 4 * c, 4)}, {vr(o, 4)}, {d if i else 0}")
            if c == 0:
                if i + AH < 20:
                    o_load(i + AH)
            elif todo and (todo[0][0] - NW, todo[0][1]) <= (i, c):
                a(wo_read(*todo.pop(0)))
                issued += 1
            if c == 4:
                a(f"v_max3_u32 v{T[4]}, v{T[4]}, v{o + 1}, v{o + 3}")
    assert not todo
    stamp(a, prof, 9)
    a(f"""
    v_cmp_eq_u32 vcc, -1, v{T[4]}
    s_cmp_lt_i32 s{s_spin}, 0
    s_cbranch_scc1 {L('sum')}
    s_nop 1
    s_cbranch_vccnz {L('again')}
    {L('sum')}:
    s_nop 3
    """)
    for i in range(0, 20, 2):
        a(f"v_pk_add_f32 {vr(ACC + i, 2)}, {vr(ACC + i, 2)}, {vr(AC2 + i, 2)}")
    for i in range(10):
        a(f"v_cvt_pk_bf16_f32 v{XR + i}, v{ACC + 2 * i}, v{ACC + 2 * i + 1}")
    a(f"""
    buffer_store_dwordx4 {vr(XR, 4)}, v{vO[0]}, s[{sB}:{sB + 3}], 0 offen {OSF}
    buffer_store_dwordx4 {vr(XR + 4, 4)}, v{vO[0]}, s[{sB}:{sB + 3}], 0 offen offset:64 {OSF}
    buffer_store_dwordx2 {vr(XR + 8, 2)}, v{vO[1]}, s[{sB}:{sB + 3}], 0 offen offset:128 {OSF}
    """)
    if prof:
        a(f"{L('dump')}:\ns_waitcnt vmcnt(0)")
        stamp(a, prof, 10)
        stamp(a, prof, 11)
        a(f"""
        s_memrealtime s[78:79]
        s_waitcnt lgkmcnt(0)
        s_mov_b32 s{sWS + 2}, {WS_SIZE}
        s_lshl_b32 s95, s2, 3
        s_add_u32 s95, s95, s{s_w}
        s_lshl_b32 s95, s95, 8
        s_add_u32 s95, s95, {WS_DBG}
        v_writelane_b32 v0, s76, 62
        v_writelane_b32 v0, s78, 63
        v_lshlrev_b32 v{T[0]}, 2, v{vL}
        buffer_store_dword v0, v{T[0]}, {WSD}, s95 offen
        s_waitcnt vmcnt(0)
        """)
    a(f"s_endpgm\n{L('again')}:")
    prime(range(2, 6))
    a(f"s_branch {L('first')}")
    a.lines = head_lines + a.lines + g0_lines
    a(f"{L('end')}:\ns_endpgm")
    return kernel_header(label) + a.text(), kernel_desc(label, 256, 102 if prof else 80), LDS_SIZE


def build(as_list=False, **kw):
    ref = open(f"cdna_kernels/{NAME}.s.ref").read().split("\n")
    head = [ln for ln in ref if ln.startswith(";") and "launch" not in ln.lower() and "grid=" not in ln]
    label = NAME + "_kernel"
    c, d, lds = gen(label, **kw)
    c = c.replace(label + "_", "L_")
    if (kw.get("cfg") or {}).get("rt"):
        c = c.replace("s_memtime", "s_memrealtime")
    out = "\n".join(head) + "\n"
    out += f"; @launch {'kernel=' + label + ' ' if as_list else ''}grid=(256,1,1) block=(512,1,1) lds={lds}\n"
    out += '.amdgcn_target "amdgcn-amd-amdhsa--gfx950"\n.text\n' + c + '.section .rodata,"a"\n' + d
    return out


if __name__ == "__main__":
    import sys
    opts = sys.argv[2:]
    cfg = {o.split("=")[0]: int(o.split("=")[1], 0) for o in opts if "=" in o}
    open(sys.argv[1], "w").write(build(as_list="list" in opts, prof="span" if "span" in opts else "prof" in opts, force_fallback="slow" in opts, cfg=cfg))
```

```python
import math
import struct
from common import *

f32 = lambda x: struct.unpack("<I", struct.pack("<f", x))[0]
QSCALE = f32(math.log2(math.e) / math.sqrt(20.0))
SHIFT = 92.0

WS_RS = WS_END
WS_CP = WS_RS + 2048 * 16
CP_ROW = 3648 * 8
WS_FA = WS_CP + 4 * CP_ROW
WS_FH = WS_FA + 1024 * 128
WS_FB = WS_FH + 2048 * 128
WS_E = WS_FB + 256 * 128
WS_TOP = WS_E + 128

STG = 49152
LX, LW, LF = 0, 16384, 32768
L_NM = 3 * STG
L_RS, L_CSA, L_CSB, L_BI = L_NM + 512, L_NM + 1024, L_NM + 1536, L_NM + 2048
L_CP = L_NM + 2560
L_RP = L_CP + 1024
LDS_SIZE = 163840
SLOT = 8192 + 4096 + 16 * 656
OFF_R, OFF_V = 8192, 12288
KV = LDS_SIZE - 3 * SLOT
L_Q = 0
L_WO = 0
L_EX = [None, 122880, 143360, 102400]
LDS_OOB = 0x28000
assert L_WO + 18 * 5120 <= KV and LDS_OOB + 3 * SLOT <= 0x40000
KS_ROW = 40 * 1024

sWS, sX, sW, sA, sB = 24, 28, 32, 36, 40
(s_w, s_wj, s_rb, s_cg, s_head, s_qb, s_tt, s_cf, s_cm, s_cr, s_par, s_tag, s_c, s_slot,
 s_t0, s_t1, s_t2, s_t3, s_xo, s_wo, s_ring, s_wstep, s_ko, s_vo, s_ho, s_spin, s_fl) = range(44, 71)
assert s_t2 % 2 == 0
s_o = [71, 72, 73]
s_kc, s_hook = 74, 75
SPIN = 0x20000


def gen(label, prof=False, force_fallback=False, cfg=None):
    cfg = {**dict(tlb=4, bal=1, touch=1, gat=3, pre=3, mk=13, early=0, fprio=2, flag=-1, krot=0, lean=1, plf=0, fsf=0, slp=1, cut0=46, cutd=49, fbr=2, hk=3, hpos=0, ahead=6, osf=0), **(cfg or {})}
    STF = ('sc1', '', 'nt')[cfg.get('plain', 0)]
    PLF = ('sc1', 'sc0 sc1', 'sc1 nt', 'sc0 sc1 nt')[cfg['plf']]
    FSF = ('sc1', 'sc0 sc1')[cfg['fsf']]
    OSF = ('', 'sc1', 'nt')[cfg['osf']]
    a = Asm()
    L = lambda n: f"{label}_{n}"
    WSD = f"s[{sWS}:{sWS + 3}]"
    vL = 1
    T = [2, 3, 4, 5, 6, 7]
    vK, vR_, vV = 8, 9, 10
    AX = [11, 12]
    AW = [13, 14, 15, 16]
    XF = [[32 + 16 * b + 4 * t for t in range(4)] for b in range(2)]
    WF = [[64 + 16 * b + 4 * c for c in range(4)] for b in range(2)]
    GA, GB = 96, 160

    def capture(fn):
        keep, a.lines = a.lines, []
        fn()
        got, a.lines = a.lines, keep
        units, masked = [], False
        for ln in got:
            t = ln.strip()
            if units and (masked or t.startswith("s_cselect") or units[-1].split("\n")[-1].strip().startswith("s_cmp")):
                units[-1] += "\n" + ln
            else:
                units.append(ln)
            if t.startswith("s_") and " exec" in t.split(",")[0]:
                masked = not t.endswith("-1")
        return units

    def gacc(tt, ci, base=GA):
        return base + (tt * 4 + ci) * 4

    SD = 32
    a(f"""
    s_cmp_ge_u32 s2, 256
    s_cbranch_scc1 {L('end')}
    s_load_dwordx16 s[4:19], s[0:1], 0
    s_load_dwordx2 s[22:23], s[0:1], 80
    s_load_dwordx2 s[20:21], s[0:1], 64
    """)
    stamp(a, prof, 0)
    a(f"""
    v_lshrrev_b32 v{T[0]}, 6, v0
    v_and_b32 v{vL}, 63, v0
    s_and_b32 s{s_t3}, s2, 1
    v_readfirstlane_b32 s{s_w}, v{T[0]}
    s_bfe_u32 s{s_rb}, s2, 0x30003
    s_bfe_u32 s{s_t0}, s2, 0x20001
    s_lshr_b32 s{s_t1}, s2, 6
    s_lshl2_add_u32 s{s_cf}, s{s_t0}, s{s_t1}
    {f"s_and_b32 s{s_t2}, s{s_rb}, 3" if cfg["bal"] else f"s_mov_b32 s{s_t2}, 3"}
    s_lshl2_add_u32 s{s_t2}, s{s_t2}, 3
    s_lshl3_add_u32 s{s_rb}, s{s_t3}, s{s_rb}
    s_cmp_gt_u32 s{s_cf}, s{s_t2}
    s_subb_u32 s{s_cg}, s{s_cf}, 0
    s_cmp_eq_u32 s{s_cf}, s{s_t2}
    s_cselect_b32 s{s_cg}, 15, s{s_cg}
    s_mov_b32 s{sA + 3}, 0x00020000
    {'v_mov_b32 v0, -1' if prof else ''}
    s_and_b32 s{s_wj}, s{s_w}, 3
    s_cmp_ge_u32 s{s_w}, 4
    s_cbranch_scc1 {L('p_col')}
    s_mov_b32 s3, 0
    s_lshl4_add_u32 s{s_t0}, s{s_rb}, s{s_cg}
    s_lshl1_add_u32 s{s_t0}, s{s_t0}, s{s_wj}
    s_mul_i32 s{s_t1}, s{s_t0}, {4 * 1280}
    s_cmp_eq_u32 s{s_cg}, 15
    s_cselect_b32 s{s_hook}, 0, 2
    s_cmp_eq_u32 s{s_cg}, 14
    s_cselect_b32 s{s_hook}, 4, s{s_hook}
    v_lshrrev_b32 v{T[0]}, 4, v{vL}
    v_and_b32 v{T[1]}, 15, v{vL}
    v_mul_u32_u24 v{T[2]}, 1280, v{T[0]}
    s_movk_i32 s{s_t2}, 256
    s_mov_b32 s{sA + 2}, {S * D * 2}
    s_cmp_lt_u32 s{s_wj}, s{s_hook}
    s_waitcnt lgkmcnt(0)
    s_mov_b64 s[{sA}:{sA + 1}], s[4:5]
    s_branch {L('p_ld')}
    {L('p_col')}:
    s_setprio 2
    s_mov_b32 s3, 1
    s_bfe_u32 s{s_t1}, s2, 0x10005
    s_lshl1_add_u32 s{s_t1}, s{s_cg}, s{s_t1}
    s_bfe_u32 s{s_t0}, s2, 0x10003
    s_lshl1_add_u32 s{s_t0}, s{s_t3}, s{s_t0}
    s_mul_i32 s{s_o[0]}, s{s_t0}, {CP_ROW // 512 * 512}
    s_lshl_b32 s{s_t0}, s{s_t0}, 2
    s_add_u32 s{s_t0}, s{s_t0}, s{s_wj}
    s_mul_i32 s{s_t0}, s{s_t0}, 40
    v_lshrrev_b32 v{T[0]}, 3, v{vL}
    v_and_b32 v{T[1]}, 7, v{vL}
    s_bitcmp0_b32 s2, 4
    s_cselect_b32 s{s_hook}, 30, 57
    s_movk_i32 s{s_t2}, 3840
    s_cselect_b32 s{s_t2}, s{s_t2}, 3456
    s_cselect_b32 s{s_o[1]}, 0, 30
    s_mul_i32 s{sA + 2}, s{s_t2}, 640
    s_mul_i32 s{s_t0}, s{s_t0}, s{s_t2}
    v_mul_u32_u24 v{T[2]}, s{s_t2}, v{T[0]}
    s_waitcnt lgkmcnt(0)
    s_cselect_b64 s[{sA}:{sA + 1}], s[6:7], s[12:13]
    s_add_u32 s{s_o[1]}, s{s_o[1]}, s{s_t1}
    s_lshl_b32 s{s_t1}, s{s_t1}, 7
    s_add_u32 s{s_t1}, s{s_t1}, s{s_t0}
    s_lshl_b32 s{s_t2}, s{s_t2}, 3
    s_cmp_lt_u32 s{s_o[1]}, s{s_hook}
    s_cselect_b32 s{s_hook}, 3, 7
    {L('p_ld')}:
    """)
    if cfg["tlb"]:
        for k, (p, off) in enumerate(((4, 0), (6, 0), (12, 0), (14, 0), (4, 0xffff0), (6, 0xffff0), (12, 0xffff0))[:cfg["tlb"]]):
            a(f"s_load_dword s{80 + k}, s[{p}:{p + 1}], {off}")
    a(f"""
    v_lshl_add_u32 v{T[2]}, v{T[1]}, 4, v{T[2]}
    s_cbranch_scc0 {L('p_id')}
    """)
    assert CP_ROW % 512 == 0
    for q in range(5):
        a(f"buffer_load_dwordx4 {vr(SD + 4 * q, 4)}, v{T[2]}, s[{sA}:{sA + 3}], s{s_t1} offen")
        a(f"s_add_u32 s{s_t1}, s{s_t1}, s{s_t2}")
    a(f"{L('p_id')}:")
    stamp(a, prof, 45)
    a(f"""
    {f"s_xor_b32 s{s_t2}, s{s_rb}, 2" if cfg["bal"] else ""}
    {f"s_and_b32 s{s_t2}, s{s_t2}, 3" if cfg["bal"] else f"s_mov_b32 s{s_t2}, 3"}
    s_lshl2_add_u32 s{s_t2}, s{s_t2}, {3 if cfg["bal"] else 2}
    s_cmp_eq_u32 s{s_cf}, s{s_t2}
    s_cselect_b32 s{s_t0}, 15, s{s_cg}
    s_cmp_gt_u32 s{s_cf}, s{s_t2}
    s_subb_u32 s{s_cf}, s{s_t0}, 0
    s_cmp_eq_u32 s{s_cg}, 15
    s_cbranch_scc1 {L('near')}
    {L('p_go')}:
    s_cmp_eq_u32 s3, 0
    s_cbranch_scc1 {L('g0')}
    """)
    head_lines, a.lines = a.lines, []

    def attn_ids():
        a(f"""
        s_and_b32 s{s_t0}, s2, 7
        s_lshr_b32 s{s_t1}, s2, 3
        s_and_b32 s{s_t2}, s{s_t1}, 3
        s_lshl_b32 s{s_head}, s{s_t0}, 2
        s_add_u32 s{s_head}, s{s_head}, s{s_t2}
        s_lshr_b32 s{s_qb}, s{s_t1}, 2
        s_and_b32 s{s_par}, s{s_head}, 1
        s_lshr_b32 s{s_t2}, s{s_head}, 1
        s_mul_i32 s{s_t2}, s{s_t2}, 5
        s_add_u32 s{s_cr}, s{s_t2}, 2
        s_mul_i32 s{s_t3}, s{s_par}, 3
        s_add_u32 s{s_cm}, s{s_t2}, s{s_t3}
        s_lshl_b32 s{s_cm}, s{s_cm}, 15
        s_lshl_b32 s{s_cr}, s{s_cr}, 15
        """)

    def load_tag():
        a(f"""
        s_mov_b32 s{s_t0}, {WS_E}
        s_load_dword s{s_tag}, s[22:23], s{s_t0}
        """)

    def frag_addr():
        a(f"""
        v_and_b32 v{T[0]}, 15, v{vL}
        v_lshrrev_b32 v{T[1]}, 4, v{vL}
        v_bfe_u32 v{T[2]}, v{vL}, 1, 3
        v_xor_b32 v{T[2]}, v{T[2]}, v{T[1]}
        v_lshlrev_b32 v{T[2]}, 4, v{T[2]}
        v_lshl_add_u32 v{T[2]}, v{T[0]}, 7, v{T[2]}
        s_and_b32 s{s_t0}, s{s_wj}, 1
        s_lshl_b32 s{s_t0}, s{s_t0}, 13
        v_add_u32 v{AX[0]}, s{s_t0}, v{T[2]}
        v_xor_b32 v{AX[1]}, 64, v{AX[0]}
        v_bfe_u32 v{T[2]}, v{vL}, 2, 2
        v_lshl_add_u32 v{T[3]}, v{T[1]}, 3, v{T[2]}
        v_lshlrev_b32 v{T[3]}, 8, v{T[3]}
        v_bfe_u32 v{T[2]}, v{vL}, 2, 3
        s_lshr_b32 s{s_t0}, s{s_wj}, 1
        s_lshl_b32 s{s_t0}, s{s_t0}, 2
        v_xor_b32 v{T[2]}, s{s_t0}, v{T[2]}
        v_lshl_add_u32 v{T[3]}, v{T[2]}, 5, v{T[3]}
        v_and_b32 v{T[2]}, 3, v{vL}
        v_lshl_add_u32 v{AW[0]}, v{T[2]}, 3, v{T[3]}
        v_xor_b32 v{AW[1]}, 32, v{AW[0]}
        v_xor_b32 v{AW[2]}, 64, v{AW[0]}
        v_xor_b32 v{AW[3]}, 96, v{AW[0]}
        """)

    def zero(base, n):
        for r in range(base, base + n, 2):
            a(f"v_mov_b64 {vr(r, 2)}, 0")

    def wreads(part, s, b):
        return [f"ds_read_b64_tr_b16 {vr(WF[b][c] + 2 * h, 2)}, v{AW[c]} offset:{part + s * 8192 + 1024 * h}"
                for c in range(4) for h in range(2)]

    def xreads(s):
        return [f"ds_read_b128 {vr(XF[s][t], 4)}, v{AX[s]} offset:{LX + 2048 * t}" for t in range(4)]

    def both(part, s, b):
        w, x = wreads(part, s, b), xreads(s)
        return w[:2] + x[:1] + w[2:] + x[1:]

    def gemm_body(name, halves, barrier, count_to):
        a(f".p2align 3\n{L(name)}:")
        for k, (xs, wb, acc, swapped, rd) in enumerate(halves):
            fill = [[] for _ in range(16)]
            if k == len(halves) - 1:
                if barrier:
                    if prof and cfg.get("trace", 0) == 3:
                        fill[0] += capture(lambda: stamp(a, prof, 25))
                    fill[0].append("s_barrier")
                fill[13].append(f"s_add_u32 s{s_c}, s{s_c}, 1")
                fill[14].append(f"s_cmp_lt_u32 s{s_c}, {count_to}")
            if k == len(halves) - 2:
                fill[8].append(f"s_add_u32 s{s_ring}, s{s_ring}, 1")
                fill[9].append(f"s_cmp_eq_u32 s{s_ring}, 3")
                fill[10].append(f"s_cselect_b32 s{s_xo}, {-2 * STG & 0xffffffff}, s{s_wstep}")
                fill[11].append(f"s_cselect_b32 s{s_ring}, 0, s{s_ring}")
            for m, x in enumerate(rd):
                fill[m].append(x)
            if k == len(halves) - 2:
                for m, r in enumerate(AX + AW):
                    fill[12 + m // 2].append(f"v_add_u32 v{r}, s{s_xo}, v{r}")
            fill[15].append("s_waitcnt lgkmcnt(0)")
            for m in range(16):
                tt, ci = m >> 2, m & 3
                wf, xf = vr(WF[wb][ci], 4), vr(XF[xs][tt], 4)
                A, B = (xf, wf) if swapped else (wf, xf)
                a(f"v_mfma_f32_16x16x32_bf16 {vr(gacc(tt, ci, acc), 4)}, {A}, {B}, {vr(gacc(tt, ci, acc), 4)}")
                a("\n".join(fill[m]))
        if 0 < cfg.get("trace", 0) < 3:
            stamp(a, prof, 20)
        a(f"s_cbranch_scc1 {L(name)}")

    def joint(name, sw):
        gemm_body(name, [(0, 0, GA, sw, wreads(LF, 0, 1)), (0, 1, GB, False, both(LW, 1, 0)),
                         (1, 0, GA, sw, wreads(LF, 1, 1)), (1, 1, GB, False, both(LW, 0, 0))], True, 7)

    def single(name, part, acc, sw, barrier, count_to):
        gemm_body(name, [(0, 0, acc, sw, both(part, 1, 1)), (1, 1, acc, sw, both(part, 0, 0))], barrier, count_to)

    def tile_addr(e_reg, e_lane, e_st):
        a(f"""
        v_and_b32 v{T[0]}, 15, v{vL}
        v_lshrrev_b32 v{T[1]}, 4, v{vL}
        s_lshr_b32 s{s_t0}, s{s_wj}, 1
        s_lshl_b32 s{s_t0}, s{s_t0}, 8
        s_add_u32 s{s_t0}, s{s_t0}, {L_NM}
        v_lshl_add_u32 v{e_reg}, v{T[1]}, 4, s{s_t0}
        s_and_b32 s{s_t1}, s{s_wj}, 1
        s_lshl_b32 s{s_t0}, s{s_t1}, 8
        s_add_u32 s{s_t0}, s{s_t0}, {L_NM}
        v_lshl_add_u32 v{e_lane}, v{T[0]}, 2, s{s_t0}
        v_bfrev_b32 v{T[1]}, v{T[1]}
        v_lshrrev_b32 v{T[1]}, 15, v{T[1]}
        v_lshl_add_u32 v{T[1]}, v{T[0]}, 4, v{T[1]}
        s_lshl_b32 s{s_t0}, s{s_rb}, 1
        s_add_u32 s{s_t0}, s{s_t0}, s{s_t1}
        s_lshl_b32 s{s_t0}, s{s_t0}, 10
        v_add_u32 v{e_st}, s{s_t0}, v{T[1]}
        """)

    def put_piece(src, addr, x, y):
        return f"buffer_store_dwordx4 {vr(src, 4)}, v{addr}, {WSD}, s{s_o[x]} offen offset:{256 * y} {STF}"

    def pack_tiles(acc, math, dst, addr=None, between=None):
        pend = []
        for tt in range(4):
            for cp in range(2):
                ob = dst(cp, tt)
                r0 = gacc(tt, 2 * cp, acc)
                math(tt, [(r0 + 2 * p, 8 * cp + 2 * p) for p in range(4)])
                a("\n".join(pend))
                for p in range(4):
                    a(f"v_cvt_pk_bf16_f32 v{ob + p}, v{r0 + 2 * p}, v{r0 + 2 * p + 1}")
                pend = [f"v_permlane16_swap_b32 v{ob}, v{ob + 2}", f"v_permlane16_swap_b32 v{ob + 1}, v{ob + 3}"]
                if addr:
                    pend.append(put_piece(ob, addr, cp, tt))
            if between:
                between(tt)
        a("s_nop 1\n" + "\n".join(pend))

    def key_perm(dst, src, t0, t1):
        a(f"""
        v_bfe_u32 v{t0}, v{src}, 2, 1
        v_bfe_u32 v{t1}, v{src}, 3, 2
        v_lshl_add_u32 v{t0}, v{t0}, 2, v{t1}
        v_and_b32 v{t1}, 3, v{src}
        v_lshl_add_u32 v{dst}, v{t0}, 2, v{t1}
        """)

    def v_feature(dst, row, t0, t1):
        swap23(a, dst, row, t0, t1)
        a(f"""
        s_lshl_b32 s{s_t0}, s{s_par}, 2
        s_mul_i32 s{s_t1}, s{s_par}, -16
        v_cmp_gt_u32 vcc, 16, v{row}
        v_add_u32 v{dst}, s{s_t0}, v{dst}
        v_add_u32 v{t0}, s{s_t1}, v{row}
        v_cndmask_b32 v{dst}, v{t0}, v{dst}, vcc
        """)

    def kv_addr(first_chunk):
        a(f"v_and_b32 v{T[0]}, 31, v{vL}\nv_lshrrev_b32 v{T[1]}, 5, v{vL}")
        key_perm(T[2], T[0], T[3], T[4])
        a(f"""
        v_lshlrev_b32 v{T[3]}, 4, v{T[2]}
        v_lshl_add_u32 v{vK}, v{T[1]}, 15, v{T[3]}
        v_add_u32 v{vK}, s{s_cm}, v{vK}
        v_lshl_add_u32 v{vR_}, v{T[1]}, 9, v{T[3]}
        v_add_u32 v{vR_}, s{s_cr}, v{vR_}
        v_cmp_le_u32 vcc, 20, v{vL}
        s_lshl_b32 s{s_t0}, s{s_wj}, 10
        s_andn2_b32 s{s_kc}, 1, s2
        s_mul_i32 s{s_kc}, s{s_kc}, {cfg['krot']}
        v_cndmask_b32 v{T[2]}, 0, 1, vcc
        v_mul_u32_u24 v{T[3]}, 20, v{T[2]}
        v_sub_u32 v{T[3]}, v{vL}, v{T[3]}
        v_mul_u32_u24 v{vV}, 10240, v{T[2]}
        """)
        v_feature(T[2], T[3], T[4], T[5])
        a(f"""
        s_mul_i32 s{s_t0}, s{s_head}, 320
        v_lshl_add_u32 v{vV}, v{T[2]}, 4, v{vV}
        v_add_u32 v{vV}, s{s_t0}, v{vV}
        """)

    def kv_dma(chunk):
        base = KV + ((chunk + 2) % 3) * SLOT
        a(f"""
        s_and_b32 s{s_t0}, s{s_kc}, 7
        s_lshl_b32 s{s_t0}, s{s_t0}, 2
        s_add_u32 s{s_t0}, s{s_t0}, s{s_wj}
        s_lshl_b32 s{s_ko}, s{s_t0}, 10
        s_add_u32 s{s_ko}, s{s_ko}, {C_K * CH}
        s_mul_i32 s{s_vo}, s{s_t0}, 81920
        s_add_u32 s{s_vo}, s{s_vo}, {WS_V}
        s_add_u32 s{s_kc}, s{s_kc}, 1
        s_lshl_b32 s{s_t0}, s{s_wj}, 11
        s_add_u32 m0, s{s_t0}, {base}
        s_lshl_b32 s{s_t1}, s{s_wj}, 10
        buffer_load_dwordx4 v{vK}, {WSD}, s{s_ko} offen sc1 lds
        s_add_u32 m0, s{s_t0}, {base + 512}
        s_mul_i32 s{s_t0}, s{s_wj}, {4 * 656}
        buffer_load_dwordx4 v{vK}, {WSD}, s{s_ko} offen offset:512 sc1 lds
        s_add_u32 m0, s{s_t1}, {base + OFF_R}
        s_nop 0
        buffer_load_dwordx4 v{vR_}, {WSD}, s{s_ko} offen sc1 lds
        s_mov_b32 exec_hi, 0xff
        """)
        for i in range(4):
            a(f"""
            s_add_u32 m0, s{s_t0}, {base + OFF_V + 656 * i}
            s_add_u32 s{s_t1}, s{s_vo}, {20480 * i}
            buffer_load_dwordx4 v{vV}, {WSD}, s{s_t1} offen sc1 lds
            """)
        a("s_mov_b32 exec_hi, -1")

    def ones_addr(dst, first_slot, nslots):
        a(f"""
        v_min_u32 v{dst}, {16 * nslots - 1}, v{vL}
        v_lshrrev_b32 v{T[3]}, 4, v{dst}
        v_and_b32 v{dst}, 15, v{dst}
        v_mul_u32_u24 v{T[3]}, {SLOT}, v{T[3]}
        v_mul_u32_u24 v{dst}, 656, v{dst}
        v_add_u32 v{dst}, v{dst}, v{T[3]}
        v_add_u32 v{dst}, {KV + first_slot * SLOT + OFF_V + 640}, v{dst}
        """)

    def ones_write(addr, tmp):
        for r in range(4):
            a(f"v_mov_b32 v{tmp + r}, 0x3f803f80")
        a(f"ds_write_b128 v{addr}, {vr(tmp, 4)}")

    def set_flag(base):
        a(f"""
        s_lshl_b32 s{s_t0}, s{s_fl}, 7
        s_add_u32 s{s_t0}, s{s_t0}, {base}
        v_mov_b32 v{T[4]}, 0
        v_mov_b32 v{T[3]}, s{s_tag}
        s_mov_b64 exec, 1
        buffer_store_dword v{T[3]}, v{T[4]}, {WSD}, s{s_t0} offen {FSF}
        s_mov_b64 exec, -1
        """)

    def flag_of_tile(dst, rh, unit):
        a(f"v_lshl_add_u32 v{dst}, v{unit}, 5, {rh}\nv_lshlrev_b32 v{dst}, 7, v{dst}")

    def head_unit(dst, sel):
        a(f"""
        s_mul_i32 s{s_t0}, s{s_head}, 20
        v_mad_u32_u24 v{dst}, v{sel}, 19, s{s_t0}
        v_lshrrev_b32 v{dst}, 6, v{dst}
        """)

    def wait_flags(name, base, offs, rounds=SPIN):
        a(f"""
        s_mov_b32 s{s_t0}, {base}
        s_mov_b32 s{s_spin}, {rounds}
        s_branch {L(name + '_ld')}
        {L(name)}:
        s_sleep {cfg['slp']}
        {L(name + '_ld')}:
        buffer_load_dword v{T[3]}, v{offs[0]}, {WSD}, s{s_t0} offen {PLF}
        """)
        if len(offs) > 1:
            a(f"buffer_load_dword v{T[4]}, v{offs[1]}, {WSD}, s{s_t0} offen {PLF}")
        a(f"s_sub_u32 s{s_spin}, s{s_spin}, 1\ns_waitcnt vmcnt(0)")
        if len(offs) == 1:
            a(f"v_mov_b32 v{T[4]}, v{T[3]}")
        retry(name)

    def retry(name):
        a(f"""
        v_cmp_ne_u32 vcc, s{s_tag}, v{T[3]}
        v_cmp_ne_u32 s[{s_t2}:{s_t2 + 1}], s{s_tag}, v{T[4]}
        s_cmp_eq_u32 s{s_spin}, 0
        s_cbranch_scc1 {L(name + '_done')}
        s_or_b64 vcc, vcc, s[{s_t2}:{s_t2 + 1}]
        s_cbranch_scc1 {L(name)}
        {L(name + '_done')}:
        """)

    def q_addr(vq, vqr):
        a(f"""
        v_and_b32 v{T[0]}, 31, v{vL}
        v_lshrrev_b32 v{T[1]}, 5, v{vL}
        s_lshl_b32 s{s_t0}, s{s_qb}, 2
        s_add_u32 s{s_t0}, s{s_t0}, s{s_wj}
        s_lshl_b32 s{s_t0}, s{s_t0}, 10
        s_lshl_b32 s{s_t1}, s{s_par}, 3
        s_add_u32 s{s_t2}, s{s_t0}, s{s_t1}
        v_lshlrev_b32 v{T[2]}, 4, v{T[0]}
        v_lshl_add_u32 v{vq}, v{T[1]}, 15, v{T[2]}
        v_add_u32 v{vq}, s{s_t0}, v{vq}
        v_add_u32 v{vqr}, s{s_t2}, v{T[2]}
        """)

    eR, eL, eS, hR, hL, hS = 17, 18, 19, 8, 9, 10
    IDX, AK0, AR0, AV0, VQ, VQR, AQ = 20, 21, 22, 23, 24, 25, 26
    AK, AR, AV = 27, 28, 29
    R = Regs(216)
    MX = [R.get(), R.get()]
    Q1 = [R.get(4), R.get(4)]
    Q2 = [[R.get(2), R.get(2)], [R.get(2), R.get(2)]]
    K1 = [R.get(4), R.get(4)]
    K2 = [R.get(2), R.get(2)]
    V0 = [R.get(4), R.get(4)]
    PH = 32
    SS, CM, TS, OO, V1 = [96, 160], [112, 128], 144, [176, 192], [208, 212]

    AC, SO = 72, 80
    a(f"""
    {L('g0')}:
    v_lshlrev_b32 v{SO}, 4, v{T[0]}
    """)
    srd(a, sWS, 22, WS_TOP)
    load_tag()
    frag_addr()
    zero(GA, 128)
    attn_ids()
    tile_addr(hR, hL, hS)
    a(f"""
    v_mov_b32 v{eR}, v{hR}
    v_mov_b32 v{eS}, v{hS}
    s_cmp_lt_u32 s{s_cg}, 10
    s_cbranch_scc1 {L('ad_j')}
    v_lshrrev_b32 v{T[1]}, 4, v{vL}
    s_lshl_b32 s{s_t0}, s{s_t1}, 8
    s_add_u32 s{s_t0}, s{s_t0}, {L_NM}
    v_lshl_add_u32 v{eR}, v{T[1]}, 4, s{s_t0}
    s_lshr_b32 s{s_t2}, s{s_wj}, 1
    s_lshl_b32 s{s_t0}, s{s_t2}, 8
    s_add_u32 s{s_t0}, s{s_t0}, {L_CSA}
    v_lshl_add_u32 v{eL}, v{T[0]}, 2, s{s_t0}
    s_sub_u32 s{s_t0}, s{s_cg}, 10
    s_lshl_b32 s{s_t0}, s{s_t0}, 1
    s_add_u32 s{s_t0}, s{s_t0}, s{s_t2}
    s_lshl_b32 s{s_t0}, s{s_t0}, 10
    v_mul_u32_u24 v{T[1]}, 10240, v{T[1]}
    v_lshl_add_u32 v{T[1]}, v{T[0]}, 4, v{T[1]}
    v_add_u32 v{eS}, s{s_t0}, v{T[1]}
    {L('ad_j')}:
    """)
    q_addr(VQ, VQR)
    a(f"""
    v_mov_b32 v{IDX}, 0xdddddddd
    v_lshlrev_b32 v{AK0}, 4, v{vL}
    s_mul_i32 s{s_t0}, s{s_wj}, 3072
    v_add_u32 v{AQ}, s{s_t0}, v{AK0}
    v_add_u32 v{AK0}, {KV}, v{AK0}
    v_add_u32 v{AR0}, s{s_t1}, v{AK0}
    v_mad_u32_u24 v{T[2]}, v{T[1]}, 20, v{T[0]}
    v_lshlrev_b32 v{T[2]}, 4, v{T[2]}
    v_add_u32 v{T[2]}, {KV}, v{T[2]}
    v_cmp_gt_u32 vcc, 20, v{T[0]}
    v_mov_b32 v{T[4]}, {LDS_OOB}
    v_and_b32 v{T[3]}, 27, v{T[0]}
    v_cndmask_b32 v{T[2]}, v{T[4]}, v{T[2]}, vcc
    v_cmp_eq_u32 vcc, 24, v{T[3]}
    v_mov_b32 v{T[4]}, {KV + 640}
    s_mov_b32 s{s_slot}, {2 * SLOT}
    v_cndmask_b32 v{AV0}, v{T[2]}, v{T[4]}, vcc
    v_add_u32 v{AK}, s{s_slot}, v{AK0}
    v_add_u32 v{AR}, s{s_slot}, v{AR0}
    v_add_u32 v{AV}, s{s_slot}, v{AV0}
    """)
    a(f"""
    s_add_u32 s{s_t0}, s{s_t0}, s{s_t1}
    v_lshl_add_u32 v30, v{T[0]}, 4, s{s_t0}
    v_mov_b32 v31, v30
    s_mov_b32 exec_hi, 0
    v_mov_b32 v31, {LDS_OOB}
    s_not_b64 exec, exec
    v_mov_b32 v30, {LDS_OOB}
    s_mov_b64 exec, -1
    """)
    a("v_mov_b32 v84, 0x3f803f80")
    a(f"""
    s_lshl_b32 s{s_o[2]}, s{s_cg}, 1
    s_lshr_b32 s{s_t0}, s{s_wj}, 1
    s_add_u32 s{s_o[2]}, s{s_o[2]}, s{s_t0}
    s_lshl1_add_u32 s{s_ho}, s{s_cf}, s{s_t0}
    s_lshl_b32 s{s_fl}, s{s_o[2]}, 4
    s_add_u32 s{s_fl}, s{s_fl}, s{s_rb}
    s_lshl_b32 s{s_fl}, s{s_fl}, 1
    s_and_b32 s{s_t0}, s{s_wj}, 1
    s_add_u32 s{s_fl}, s{s_fl}, s{s_t0}
    s_mov_b32 s{s_c}, 0
    s_mov_b32 s{s_ring}, 0
    s_mov_b32 s{s_wstep}, {STG}
    s_waitcnt lgkmcnt(0)
    s_add_u32 s{s_tag}, s{s_tag}, 1
    s_cmp_ge_u32 s{s_wj}, s{s_hook}
    s_cbranch_scc1 {L('st_m')}
    v_mov_b32 v{AC}, 0
    v_mov_b32 v{AC + 2}, 0
    v_mov_b32 v{AC + 1}, s{s_tag}
    v_mov_b32 v{AC + 3}, s{s_tag}
    """)
    for q in range(5):
        a(f"s_waitcnt vmcnt({4 - q})")
        for r in range(SD + 4 * q, SD + 4 * q + 4):
            a(f"v_dot2c_f32_bf16 v{AC}, v{r}, v84\nv_dot2c_f32_bf16 v{AC + 2}, v{r}, v{r}")
    a("s_nop 1")
    for sh in (8, 4, 2, 1):
        a(f"""
        s_nop 0
        v_add_f32_dpp v{AC}, v{AC}, v{AC} row_ror:{sh} row_mask:0xf bank_mask:0xf
        v_add_f32_dpp v{AC + 2}, v{AC + 2}, v{AC + 2} row_ror:{sh} row_mask:0xf bank_mask:0xf
        """)
    a(f"""
    v_mul_f32 v{AC}, {f32(-1.0 / D)}, v{AC}
    v_mul_f32 v{AC + 2}, {f32(1.0 / D)}, v{AC + 2}
    v_fma_f32 v{AC + 2}, -v{AC}, v{AC}, v{AC + 2}
    v_max_f32 v{AC + 2}, 0, v{AC + 2}
    v_add_f32 v{AC + 2}, {f32(1e-5)}, v{AC + 2}
    v_rsq_f32 v{AC + 2}, v{AC + 2}
    s_lshl_b32 s{s_t0}, s{s_wj}, 6
    s_add_u32 s{s_t0}, s{s_t0}, {L_RP}
    v_add_u32 v{T[2]}, s{s_t0}, v{SO}
    s_mov_b32 exec_lo, 0x00010001
    s_mov_b32 exec_hi, 0x00010001
    ds_write_b128 v{T[2]}, {vr(AC, 4)}
    s_mov_b64 exec, -1
    s_waitcnt lgkmcnt(0)
    {L('st_m')}:
    s_cmp_eq_u32 s{s_cg}, 15
    s_cbranch_scc1 {L('a_none')}
    """)
    stamp(a, prof, 1)
    a("s_barrier")
    stamp(a, prof, 2)
    a("\n".join(both(LW, 0, 0)))
    a(f"""
    s_cmp_ge_u32 s{s_cg}, 10
    s_waitcnt lgkmcnt(0)
    s_cbranch_scc0 {L('aN')}
    s_cmp_ge_u32 s{s_ho}, 27
    s_cbranch_scc1 {L('sV')}
    """)

    def lane_stats(dst, addr):
        for tt in range(4):
            a(f"ds_read2_b32 {vr(dst + 2 * tt, 2)}, v{addr} offset0:{16 * tt} offset1:{128 + 16 * tt}")

    def reg_stats(dst, addr, off):
        for i in range(4):
            a(f"ds_read_b128 {vr(dst + 4 * i, 4)}, v{addr} offset:{off + 64 * i}")

    def centre(cs, nr, tt, prs):
        for r, q in prs:
            a(f"v_pk_fma_f32 {vr(r, 2)}, {vr(cs + q, 2)}, {vr(nr + 2 * tt, 2)}, {vr(r, 2)} op_sel:[0,0,0] op_sel_hi:[1,0,1]")

    E0, E1 = 224, 240
    F0, F1, F2 = 96, 112, 128

    def qk_math(tt, prs):
        centre(E0, E1, tt, prs)
        for r, q in prs:
            a(f"v_pk_mul_f32 {vr(r, 2)}, {vr(r, 2)}, {vr(E1 + 2 * tt, 2)} op_sel:[0,1] op_sel_hi:[1,1]")

    def ffn_math(tt, prs):
        centre(F0, F2, tt, prs)
        for r, q in prs:
            a(f"v_pk_fma_f32 {vr(r, 2)}, {vr(r, 2)}, {vr(F2 + 2 * tt, 2)}, {vr(F1 + q, 2)} op_sel:[0,1,0] op_sel_hi:[1,1,1]")
        for r, q in prs:
            a(f"v_max_f32 v{r}, 0, v{r}\nv_max_f32 v{r + 1}, 0, v{r + 1}")
        for r, q in prs:
            a(f"v_pk_mul_f32 {vr(r, 2)}, {vr(r, 2)}, {vr(r, 2)}")

    joint("jV", True)
    single("sV", LW, GA, True, True, 10)
    CV = 80
    a(f"ds_read2_b32 {vr(CV, 2)}, v{eL} offset0:0 offset1:16\nds_read2_b32 {vr(CV + 2, 2)}, v{eL} offset0:32 offset1:48")
    reg_stats(E0, eR, 0)
    reg_stats(E1, eR, 512)
    a(f"""
    s_and_b32 s{s_t1}, s{s_wj}, 1
    s_lshl_b32 s{s_t0}, s{s_rb}, 1
    s_add_u32 s{s_t0}, s{s_t0}, s{s_t1}
    s_mul_i32 s{s_o[0]}, s{s_t0}, 81920
    s_add_u32 s{s_o[0]}, s{s_o[0]}, {WS_V}
    s_add_u32 s{s_o[1]}, s{s_o[0]}, 40960
    s_waitcnt lgkmcnt(0)
    """)
    a("\n".join(wreads(LF, 0, 0)))
    stamp(a, prof, 3)
    for kt in range(2):
        for ci in range(4):
            ob = 88 + 4 * (ci & 1)
            prs = [(gacc(tt, ci) + i, 4 * tt + i) for tt in (2 * kt, 2 * kt + 1) for i in (0, 2)]
            for r, q in prs:
                a(f"v_pk_fma_f32 {vr(r, 2)}, {vr(E0 + q, 2)}, {vr(CV + (ci & 2), 2)}, {vr(r, 2)} op_sel:[0,{ci & 1},0] op_sel_hi:[1,{ci & 1},1]")
            for r, q in prs:
                a(f"v_pk_mul_f32 {vr(r, 2)}, {vr(r, 2)}, {vr(E1 + q, 2)}")
            for p in range(4):
                a(f"v_cvt_pk_bf16_f32 v{ob + p}, v{prs[p][0]}, v{prs[p][0] + 1}")
            a(put_piece(ob, eS, kt, ci))
    a(f"""
    s_cmp_ge_u32 s{s_ho}, 27
    s_cbranch_scc0 {L('a_done')}
    {L('a_only')}:
    s_barrier
    s_waitcnt vmcnt(0) lgkmcnt(0)
    """)
    set_flag(WS_FA)
    a(f"""
    s_barrier
    {L('a_none')}:
    s_mov_b32 s{s_o[0]}, {WS_TOP}
    s_mov_b32 s{s_o[1]}, {WS_TOP}
    s_branch {L('a_go')}
    """)
    a(f"{L('aN')}:\ns_cmp_ge_u32 s{s_ho}, 27\ns_cbranch_scc1 {L('sN')}")
    joint("jN", False)
    single("sN", LW, GA, False, True, 10)
    reg_stats(E0, eR, L_CSA - L_NM)
    lane_stats(E1, hL)
    a(f"""
    s_lshl_b32 s{s_o[0]}, s{s_o[2]}, 18
    s_add_u32 s{s_o[1]}, s{s_o[0]}, {4 * CH}
    s_cmp_lt_u32 s{s_cg}, 5
    s_cselect_b32 s{s_t0}, {QSCALE}, 1.0
    s_waitcnt lgkmcnt(0)
    """)
    a("\n".join(wreads(LF, 0, 0)))
    stamp(a, prof, 3)
    for tt in range(4):
        a(f"v_mul_f32 v{E1 + 2 * tt + 1}, s{s_t0}, v{E1 + 2 * tt + 1}")
    pack_tiles(GA, qk_math, lambda cp, tt: 248 + 4 * cp, eS)
    a(f"s_cmp_ge_u32 s{s_ho}, 27\ns_cbranch_scc1 {L('a_only')}\n{L('a_done')}:")
    stamp(a, prof, 4)
    a("s_waitcnt lgkmcnt(0)\ns_barrier")
    reg_stats(F0, hR, L_CSB - L_NM)
    reg_stats(F1, hR, L_BI - L_NM)
    lane_stats(F2, hL)
    if cfg["flag"] == -2:
        a("s_waitcnt vmcnt(0)")
        stamp(a, prof, 14)
    a("s_waitcnt lgkmcnt(3)")
    single("sF", LF, GB, False, False, 13)
    stamp(a, prof, 12)

    def hand_over(tt):
        if tt == max(cfg["flag"], -1):
            a("s_waitcnt vmcnt(0)")
            set_flag(WS_FA)
            stamp(a, prof, 5)
            a("s_barrier")

    hand_over(-1)

    pack_tiles(GB, ffn_math, lambda cp, tt: PH + 16 * cp + 4 * tt, between=hand_over)
    a(f"""
    s_add_u32 s{s_o[0]}, s{s_ho}, 20
    s_lshl_b32 s{s_o[0]}, s{s_o[0]}, 18
    s_add_u32 s{s_o[1]}, s{s_o[0]}, {4 * CH}
    {L('a_go')}:
    s_and_b32 s{s_fl}, s{s_fl}, 31
    s_lshl_b32 s{s_t0}, s{s_ho}, 5
    s_add_u32 s{s_fl}, s{s_fl}, s{s_t0}
    s_setprio 1
    s_mov_b32 s{s_c}, 0
    """)
    zero(SS[1], 16 + 32 + 8)
    stamp(a, prof, 13)
    hput = [put_piece(PH + 4 * k, hS, k >> 2, k & 3) for k in range(8)]
    if cfg["hpos"] == 0:
        a("s_barrier")
        stamp(a, prof, 18)
        a("\n".join(hput))
        stamp(a, prof, 19)
        hput = [""] * 8
    a("s_barrier")
    stamp(a, prof, 6)
    for ab in range(2):
        a(f"ds_read_b128 {vr(Q1[ab], 4)}, v{AQ} offset:{L_Q + 1024 * ab}")
        for par in range(2):
            a(f"ds_read_b64 {vr(Q2[ab][par], 2)}, v{30 + par} offset:{L_Q + 2048 + 512 * ab}")

    def rdK1(t):
        return f"ds_read_b128 {vr(K1[t & 1], 4)}, v{AK} offset:{(t & 7) * 1024}"

    def rdK2(p):
        return f"ds_read_b64 {vr(K2[p & 1], 2)}, v{AR} offset:{OFF_R + (p & 3) * 1024}"

    def rdV(j, t):
        return f"ds_read_b128 {vr((V0, V1)[j][t & 1], 4)}, v{AV} offset:{OFF_V + ((t & 7) * 2 + j) * 656}"

    def qk1(dst, ab, t, c):
        return f"v_mfma_f32_32x32x16_bf16 {vr(dst, 16)}, {vr(K1[t & 1], 4)}, {vr(Q1[ab], 4)}, {c}"

    def qk2(dst, ab, t):
        return f"v_mfma_f32_32x32x8_bf16 {vr(dst, 16)}, {vr(K2[(t >> 1) & 1], 2)}, {vr(Q2[ab][t & 1], 2)}, {vr(dst, 16)}"

    def pv(ab, j, t):
        return f"v_smfmac_f32_32x32x32_bf16 {vr(OO[ab], 16)}, {vr((V0, V1)[j][t & 1], 4)}, {vr(SS[ab] + 8 * j, 8)}, v{IDX}"

    def row_max(dst, bufs):
        regs = [b + i for b in bufs for i in range(16)]
        a(f"v_max3_f32 v{dst}, v{regs[0]}, v{regs[1]}, v{regs[2]}")
        rest = regs[3:]
        while len(rest) >= 2:
            a(f"v_max3_f32 v{dst}, v{dst}, v{rest[0]}, v{rest[1]}")
            rest = rest[2:]
        if rest:
            a(f"v_max_f32 v{dst}, v{dst}, v{rest[0]}")

    def set_shift(ab, shift):
        m = MX[ab]
        a(f"""
        v_mov_b32 v{T[2]}, v{m}
        s_nop 1
        v_permlane32_swap_b32 v{m}, v{T[2]}
        v_max_f32 v{m}, v{m}, v{T[2]}
        v_sub_f32 v{CM[ab]}, {f32(-shift) if shift else 0}, v{m}
        v_mov_b32 v{CM[ab] + 1}, v{CM[ab]}
        """)
        for i in range(2, 16, 2):
            a(f"v_mov_b64 {vr(CM[ab] + i, 2)}, {vr(CM[ab], 2)}")

    a("\n".join([rdK1(0), rdK2(0), rdK1(1), rdV(0, 0), rdV(1, 0)]))
    a("s_waitcnt lgkmcnt(0)" if prof is True else "s_waitcnt lgkmcnt(2)")
    est = {(0, 0): SS[0], (0, 1): CM[0], (1, 0): TS, (1, 1): CM[1]}
    for ab in range(2):
        for t in range(2):
            a(qk1(est[ab, t], ab, t, 0))
            a(hput[2 * ab + t])
            a(qk2(est[ab, t], ab, t))
    a("s_nop 7")
    row_max(MX[0], [SS[0], CM[0]])
    a(hput[4])
    set_shift(0, SHIFT)
    a("s_nop 1")
    a(qk1(SS[0], 0, 0, vr(CM[0], 16)))
    a(hput[5])
    a(qk2(SS[0], 0, 0))
    row_max(MX[1], [TS, CM[1]])
    a(hput[6])
    set_shift(1, SHIFT)
    a(hput[7])
    a("s_waitcnt lgkmcnt(0)")

    def slot_events(ab, t):
        o = 1 - ab
        tp = t - 1 if ab == 0 else t
        tn = t if ab == 0 else t + 1
        e = [("i", f"v_exp_f32 v{SS[ab] + i}, v{SS[ab] + i}") for i in range(16)]
        ev = []
        if ab == 0 and t % 8 == 7:
            ev += [("i", f"v_add_u32 v{AV}, s{s_slot}, v{AV0}")]
        ev += e[0:2]
        ev += [("use", ("V1", tp)), ("i", pv(o, 1, tp)), ("wait",)]
        if ab == 1 and t % 8 == cfg["hk"]:
            ev += [("i", f"s_cmp_eq_u32 s{s_c}, 0")]
        if ab == 0 and t % 8 == 6:
            ev += [("i", "s_barrier")]
        if ab == 0 and t % 8 == 4:
            ev += [("i", f"s_add_u32 s{s_slot}, s{s_slot}, {SLOT}")]
        if ab == 1 and t % 8 == 4:
            ev += [("i", f"s_cmp_eq_u32 s{s_slot}, {3 * SLOT}")]
        if ab == 1 and t % 8 == 6:
            ev += [("i", f"s_add_u32 s{s_c}, s{s_c}, 1")]
        if ab == 0:
            ev += [("rd", rdV(1, t + 1), ("V1", t + 1))]
        ev += e[2:5]
        if ab == 0 and t % 8 == 6:
            ev += [("i", f"v_add_u32 v{AK}, s{s_slot}, v{AK0}"), ("i", f"v_add_u32 v{AR}, s{s_slot}, v{AR0}")]
        ev += [("use", ("K1", tn)), ("i", qk1(SS[o], o, tn, vr(CM[o], 16))), ("wait",)]
        if ab == 0:
            ev += [("rd", rdK1(t + 2), ("K1", t + 2))]
        else:
            ev += [("rd", rdV(0, t + 1), ("V0", t + 1))]
        ev += e[5:8]
        ev += [("use", ("K2", tn >> 1)), ("i", qk2(SS[o], o, tn))]
        ev += e[8:12]
        ev += [("use", ("V0", t)), ("i", pv(ab, 0, t)), ("wait",)]
        if ab == 1 and t % 8 == 4:
            ev += [("i", f"s_cselect_b32 s{s_slot}, 0, s{s_slot}")]
        if ab == 1 and t % 8 == cfg["hk"]:
            ev += [("i", f"s_cbranch_scc1 {L('hk')}\n{L('hk_r')}:")]
        if ab == 1 and t % 8 == 7:
            ev += [("i", f"s_cmp_lt_u32 s{s_c}, 8")]
        if ab == 1 and t % 2 == 0:
            ev += [("rd", rdK2(t // 2 + 1), ("K2", t // 2 + 1))]
        ev += e[12:16]
        return ev

    evs = []
    for t in range(24):
        for ab in range(2):
            evs += [(t, x) for x in slot_events(ab, t)]
    issue_idx = {}
    n = 0
    for t, x in evs:
        if x[0] == "rd":
            issue_idx[x[2]] = n
            n += 1
    tail4 = "\n".join(f"v_exp_f32 v{SS[1] + i}, v{SS[1] + i}" for i in range(12, 16))
    a(f"s_branch {L('aent')}\n.p2align 3\n{L('aloop')}:\n{tail4}\n{L('aent')}:")
    n, have = 0, -1
    for k, (t, x) in enumerate(evs):
        emit = 8 <= t < 16
        if x[0] == "rd":
            n += 1
            if emit:
                a(x[1])
        elif x[0] == "i":
            if emit:
                a(x[1])
        elif x[0] == "wait" and t >= 4:
            need = -1
            for t2, y in evs[k + 1:]:
                if y[0] == "wait":
                    break
                if y[0] == "use":
                    assert issue_idx[y[1]] < n, (t, y)
                    need = max(need, issue_idx[y[1]])
            if need > have and emit:
                a(f"s_waitcnt lgkmcnt({n - 1 - need})")
            have = max(have, need)
    del a.lines[-4:]
    if 0 < cfg.get("trace", 0) < 4:
        stamp(a, prof, 23)
        a("s_waitcnt lgkmcnt(0)")
    a(f"s_cbranch_scc1 {L('aloop')}")
    a(tail4)

    def magnitude(ab):
        o, t = OO[ab], T[2 + ab]
        a(f"v_maximum3_f32 v{t}, |v{o}|, |v{o + 1}|, |v{o + 2}|")
        for i in (3, 5, 7, 9):
            a(f"v_maximum3_f32 v{t}, v{t}, |v{o + i}|, |v{o + i + 1}|")
        a(f"v_maximum3_f32 v{t}, v{t}, |v{o + 11}|, |v{o + 11}|")

    def normalise(ab, guard):
        o = OO[ab]
        for p in range(6):
            a(f"v_pk_mul_f32 {vr(o + 2 * p, 2)}, {vr(o + 2 * p, 2)}, {vr(o + 12, 2)} op_sel:[0,1] op_sel_hi:[1,1]")
        for p in range(6):
            a(f"v_cvt_pk_bf16_f32 v{CM[ab] + p}, v{o + 2 * p}, v{o + 2 * p + 1}")
        if guard:
            for p in (1, 3, 5):
                a(f"v_min_u32 v{CM[ab] + p}, -2, v{CM[ab] + p}")

    a(f"v_rcp_f32 v{OO[0] + 13}, v{OO[0] + 12}\ns_waitcnt lgkmcnt(0)")
    a(pv(1, 1, 7))
    stamp(a, prof, 7)
    a(f"""
    s_barrier
    s_mov_b32 s{s_t0}, {f32(2.0 ** 126)}
    s_mov_b32 s{s_t1}, {f32(2.0 ** (-7 - SHIFT))}
    """)
    magnitude(0)
    normalise(0, False)
    a(f"v_rcp_f32 v{OO[1] + 13}, v{OO[1] + 12}")
    magnitude(1)
    a(f"""
    v_maximum3_f32 v{T[4]}, v{T[2]}, v{T[3]}, v{OO[0] + 12}
    v_min_f32 v{T[2]}, v{T[2]}, v{T[3]}
    v_maximum3_f32 v{T[4]}, v{T[4]}, v{OO[1] + 12}, v{OO[1] + 12}
    v_cmp_le_f32 vcc, s{s_t1}, v{T[2]}
    v_cmp_gt_f32 s[{s_t2}:{s_t2 + 1}], s{s_t0}, v{T[4]}
    s_add_u32 s{s_t0}, s{s_cm}, {C_O * CH}
    s_add_u32 s{s_t1}, s{s_cr}, {C_O * CH}
    s_and_b64 vcc, vcc, s[{s_t2}:{s_t2 + 1}]
    s_cmp_eq_u64 vcc, exec
    """)
    a(f"s_branch {L('slow')}" if force_fallback else f"s_cbranch_scc0 {L('slow')}")

    def put_out(ab):
        a(f"""
        buffer_store_dwordx4 {vr(CM[ab], 4)}, v{VQ}, {WSD}, s{s_t0} offen offset:{512 * ab} sc1
        s_mov_b32 exec_hi, 0
        buffer_store_dwordx2 {vr(CM[ab] + 4, 2)}, v{VQR}, {WSD}, s{s_t1} offen offset:{512 * ab} sc1
        s_mov_b32 exec_hi, -1
        """)

    put_out(0)
    normalise(1, False)
    a(f"{L('norm')}:")
    put_out(1)
    stamp(a, prof, 17)
    a("s_barrier")
    stamp(a, prof, 8)
    a(f"s_branch {L('dump')}" if prof else "s_endpgm")

    a(f"{L('hk')}:\ns_waitcnt vmcnt(0)")
    set_flag(WS_FH)
    a(f"s_branch {L('hk_r')}")

    a(f"{L('slow')}:")
    GR, GV = AR, AV
    a(f"v_and_b32 v{T[0]}, 31, v{vL}\nv_lshrrev_b32 v{T[1]}, 5, v{vL}")
    key_perm(T[2], T[0], T[3], T[4])
    a(f"""
    s_lshl_b32 s{s_t0}, s{s_par}, 3
    s_add_u32 s{s_t0}, s{s_t0}, s{s_cr}
    v_lshl_add_u32 v{GR}, v{T[2]}, 4, s{s_t0}
    v_lshl_add_u32 v{vK}, v{T[2]}, 4, s{s_cm}
    v_lshl_add_u32 v{vK}, v{T[1]}, 15, v{vK}
    """)
    v_feature(T[2], T[0], T[3], T[4])
    a(f"""
    s_mul_i32 s{s_t0}, s{s_head}, 320
    v_mul_u32_u24 v{T[4]}, 10240, v{T[1]}
    v_lshl_add_u32 v{T[2]}, v{T[2]}, 4, v{T[4]}
    v_add_u32 v{GV}, s{s_t0}, v{T[2]}
    v_mov_b32 v{MX[0]}, 0xff800000
    v_mov_b32 v{MX[1]}, 0xff800000
    s_mov_b32 s{s_ko}, {C_K * CH}
    {L('slow1')}:
    buffer_load_dwordx4 {vr(K1[0], 4)}, v{vK}, {WSD}, s{s_ko} offen sc1
    buffer_load_dwordx2 {vr(K2[0], 2)}, v{GR}, {WSD}, s{s_ko} offen sc1
    s_add_u32 s{s_ko}, s{s_ko}, 512
    s_waitcnt vmcnt(0)
    """)
    for ab in range(2):
        a(qk1(SS[ab], ab, 0, 0))
        a(qk2(SS[ab], ab, 0))
    a("s_nop 7\ns_nop 3")
    for ab in range(2):
        for i in range(0, 16, 2):
            a(f"v_max3_f32 v{MX[ab]}, v{MX[ab]}, v{SS[ab] + i}, v{SS[ab] + i + 1}")
    a(f"s_cmp_lt_u32 s{s_ko}, {(C_K + 1) * CH}\ns_cbranch_scc1 {L('slow1')}")
    for ab in range(2):
        set_shift(ab, 0)
    zero(OO[0], 32)
    for r in range(4):
        a(f"v_mov_b32 v{V0[0] + r}, 0x3f803f80\nv_mov_b32 v{V1[0] + r}, 0x3f803f80")
    a(f"""
    s_mov_b32 s{s_ko}, {C_K * CH}
    s_mov_b32 s{s_vo}, {WS_V}
    {L('slow2')}:
    buffer_load_dwordx4 {vr(K1[0], 4)}, v{vK}, {WSD}, s{s_ko} offen sc1
    buffer_load_dwordx2 {vr(K2[0], 2)}, v{GR}, {WSD}, s{s_ko} offen sc1
    s_mov_b32 exec_lo, 0xfffff
    s_mov_b32 exec_hi, 0xfffff
    buffer_load_dwordx4 {vr(V0[0], 4)}, v{GV}, {WSD}, s{s_vo} offen sc1
    s_add_u32 s{s_vo}, s{s_vo}, 20480
    buffer_load_dwordx4 {vr(V1[0], 4)}, v{GV}, {WSD}, s{s_vo} offen sc1
    s_mov_b64 exec, -1
    s_add_u32 s{s_vo}, s{s_vo}, 20480
    s_add_u32 s{s_ko}, s{s_ko}, 512
    s_waitcnt vmcnt(0)
    """)
    for ab in range(2):
        a(qk1(SS[ab], ab, 0, vr(CM[ab], 16)))
        a(qk2(SS[ab], ab, 0))
    a("s_nop 7\ns_nop 3")
    for ab in range(2):
        for i in range(16):
            a(f"v_exp_f32 v{SS[ab] + i}, v{SS[ab] + i}")
    a("s_nop 1")
    for ab in range(2):
        a(pv(ab, 0, 0))
        a(pv(ab, 1, 0))
    a(f"""
    s_cmp_lt_u32 s{s_ko}, {(C_K + 1) * CH}
    s_cbranch_scc1 {L('slow2')}
    s_nop 7
    s_nop 3
    v_rcp_f32 v{OO[0] + 13}, v{OO[0] + 12}
    v_rcp_f32 v{OO[1] + 13}, v{OO[1] + 12}
    s_add_u32 s{s_t0}, s{s_cm}, {C_O * CH}
    s_add_u32 s{s_t1}, s{s_cr}, {C_O * CH}
    """)
    normalise(0, True)
    normalise(1, True)
    put_out(0)
    a(f"s_branch {L('norm')}")

    a(f"""
    {L('near')}:
    s_lshl_b32 s{s_t0}, s{s_rb}, 3
    s_add_u32 s{s_t0}, s{s_t0}, s{s_w}
    s_mul_i32 s{s_t1}, s{s_t0}, {135 * 128}
    s_mul_i32 s{s_t0}, s{s_t0}, {50 * 128}
    v_lshlrev_b32 v{T[2]}, 7, v{vL}
    s_mov_b64 s[{sA}:{sA + 1}], s[16:17]
    s_mov_b32 s{sA + 2}, {F * D * 2}
    s_mov_b32 exec_hi, 0x1fff
    """)
    for i in range(3):
        a(f"buffer_load_dword v{88 + i}, v{T[2]}, s[{sA}:{sA + 3}], s{s_t1} offen\ns_add_u32 s{s_t1}, s{s_t1}, {45 * 128}")
    a(f"""
    s_mov_b64 s[{sA}:{sA + 1}], s[8:9]
    s_mov_b32 s{sA + 2}, {D * D * 2}
    s_mov_b32 exec_hi, 0x3ffff
    buffer_load_dword v91, v{T[2]}, s[{sA}:{sA + 3}], s{s_t0} offen
    s_mov_b32 exec_hi, -1
    s_branch {L('p_go')}
    """)

    g0_lines, a.lines = a.lines, []
    MK, G = 240, 96
    VX, VW, VG = [11, 12, 13, 14], [15, 16, 17, 18], [19, 20, 21, 22]
    gR, gL, gA, gB = 24, 25, 26, 27
    fC, mQ, mQR, mQD, fB, FK, FO, one, pH, pO = range(246, 256)

    def w_addr(VF, stride, grp):
        a(f"""
        v_lshrrev_b32 v{T[0]}, 4, v{vL}
        v_lshlrev_b32 v{T[1]}, 1, v{T[0]}
        v_xor_b32 v{T[1]}, v{T[1]}, v{vL}
        v_and_b32 v{T[1]}, 15, v{T[1]}
        s_lshl_b32 s{s_t1}, s{grp}, 8
        s_mul_i32 s{s_t0}, s{s_wj}, {16 * stride}
        s_add_u32 s{s_t1}, s{s_t1}, s{s_t0}
        v_mul_u32_u24 v{T[0]}, {stride}, v{T[0]}
        v_add_u32 v{T[0]}, s{s_t1}, v{T[0]}
        v_lshl_add_u32 v{VF[0]}, v{T[1]}, 4, v{T[0]}
        v_xor_b32 v{T[1]}, 8, v{T[1]}
        v_lshl_add_u32 v{VF[2]}, v{T[1]}, 4, v{T[0]}
        v_add_u32 v{VF[1]}, {4 * stride - 1024}, v{VF[0]}
        v_add_u32 v{VF[3]}, {3 * (4 * stride - 1024)}, v{VF[2]}
        v_add_u32 v{VF[2]}, {2 * (4 * stride - 1024)}, v{VF[2]}
        """)

    TF, TA, TV = 32, [52, 53], [54, 55, 56, 57, 58]
    has_block = f"s_cmp_lt_u32 s{s_tt}, 74"

    def block_addr():
        a(f"""
        s_and_b32 s{s_tt}, s2, 31
        s_lshl_b32 s{s_t0}, s{s_wj}, 5
        s_add_u32 s{s_tt}, s{s_tt}, s{s_t0}
        s_mul_i32 s{s_c}, s{s_wj}, 5120
        s_add_u32 s{s_c}, s{s_c}, {STG + LW}
        """)
        for i in range(5):
            a(f"""
            v_add_u32 v{T[2]}, {64 * i}, v{vL}
            v_mul_u32_u24 v{T[3]}, 6554, v{T[2]}
            v_lshrrev_b32 v{T[3]}, 16, v{T[3]}
            v_mul_u32_u24 v{T[3]}, {1280 - 160}, v{T[3]}
            v_lshl_add_u32 v{TV[i]}, v{T[2]}, 4, v{T[3]}
            """)
        a(f"""
        v_lshrrev_b32 v{T[2]}, 4, v{vL}
        v_bfe_u32 v{T[3]}, v{vL}, 2, 2
        v_lshl_add_u32 v{T[2]}, v{T[2]}, 3, v{T[3]}
        v_mul_u32_u24 v{T[2]}, 160, v{T[2]}
        v_add_u32 v{T[2]}, s{s_c}, v{T[2]}
        v_and_b32 v{T[3]}, 3, v{vL}
        v_lshl_add_u32 v{TA[0]}, v{T[3]}, 4, v{T[2]}
        v_lshl_add_u32 v{TA[1]}, v{T[3]}, 3, v{T[2]}
        """)

    def block_fetch():
        a(f"""
        s_cmp_lt_u32 s{s_tt}, 54
        s_cselect_b64 s[{sA}:{sA + 1}], s[16:17], s[8:9]
        s_mov_b32 s{sA + 2}, {F * D * 2}
        s_cselect_b32 s{sA + 2}, s{sA + 2}, {D * D * 2}
        s_cselect_b32 s{s_t1}, 0, 54
        s_sub_u32 s{s_t0}, s{s_tt}, s{s_t1}
        s_mul_i32 s{s_t0}, s{s_t0}, {32 * 1280}
        s_mul_i32 s{s_t1}, s{s_qb}, 160
        s_add_u32 s{s_t0}, s{s_t0}, s{s_t1}
        """)
        for i in range(5):
            a(f"s_add_u32 m0, s{s_c}, {i * 1024}\ns_nop 0")
            a(f"buffer_load_dwordx4 v{TV[i]}, s[{sA}:{sA + 3}], s{s_t0} offen lds")

    def block_turn():
        a("s_waitcnt vmcnt(0)")
        for c in range(5):
            va, off = (TA[0], 64 * (c >> 1) + 8 * (c & 1)) if c < 4 else (TA[1], 128)
            for h in range(2):
                a(f"ds_read_b64_tr_b16 {vr(TF + 4 * c + 2 * h, 2)}, v{va} offset:{off + 640 * h}")
        a("s_waitcnt lgkmcnt(0)")

    def block_put():
        a(f"""
        s_mul_i32 s{s_t0}, s{s_tt}, {KS_ROW}
        s_mul_i32 s{s_t1}, s{s_qb}, 5120
        s_add_u32 s{s_t0}, s{s_t0}, s{s_t1}
        s_add_u32 s{s_t0}, s{s_t0}, {WS_WT}
        s_add_u32 s{s_t1}, s{s_t0}, 4096
        v_lshlrev_b32 v{T[2]}, 4, v{vL}
        """)
        for c in range(5):
            a(f"buffer_store_dwordx4 {vr(TF + 4 * c, 4)}, v{T[2]}, {WSD}, s{(s_t0, s_t1)[c >> 2]} offen offset:{1024 * (c & 3)} sc1")

    def later_addr():
        attn_ids()
        block_addr()
        kv_addr(0)
        ones_addr(one, 0, 3)
        a(f"v_and_b32 v{T[0]}, 1, v{vL}")
        head_unit(T[1], T[0])
        a(f"""
        v_lshrrev_b32 v{T[0]}, 1, v{vL}
        v_min_u32 v{T[0]}, 2, v{T[0]}
        v_mad_u32_u24 v{T[1]}, v{T[0]}, 10, v{T[1]}
        v_mov_b32 v{T[2]}, s{s_kc}
        s_mov_b64 exec, 3
        v_mov_b32 v{T[2]}, s{s_qb}
        s_mov_b64 exec, -1
        v_lshl_add_u32 v{T[2]}, v{T[2]}, 2, s{s_wj}
        """)
        flag_of_tile(FO, f"v{T[2]}", T[1])
        a(f"v_and_b32 v{T[0]}, 1, v{vL}")
        head_unit(T[1], T[0])
        a(f"""
        v_bfe_u32 v{T[0]}, v{vL}, 1, 1
        v_mad_u32_u24 v{T[1]}, v{T[0]}, 10, v{T[1]}
        v_add_u32 v{T[1]}, 10, v{T[1]}
        v_and_b32 v{T[0]}, 28, v{vL}
        v_add_u32 v{T[0]}, s{s_wj}, v{T[0]}
        """)
        flag_of_tile(FK, f"v{T[0]}", T[1])
        q_addr(mQ, mQR)
        a(f"""
        v_lshl_add_u32 v{mQD}, v{vL}, 4, s{s_t0}
        s_lshl_b32 s{s_t0}, s{s_head}, 2
        s_add_u32 s{s_t0}, s{s_t0}, s{s_wj}
        v_and_b32 v{T[2]}, 15, v{vL}
        v_lshl_add_u32 v{T[2]}, s{s_t0}, 4, v{T[2]}
        v_lshrrev_b32 v{T[3]}, 4, v{vL}
        v_lshlrev_b32 v{pH}, 15, v{T[3]}
        v_lshl_add_u32 v{pH}, v{T[2]}, 4, v{pH}
        v_mul_u32_u24 v{pO}, 1280, v{T[2]}
        """)
        a(f"""
        v_min_u32 v{T[3]}, 26, v{T[0]}
        v_lshl_add_u32 v{fC}, v{T[3]}, 5, s{s_head}
        v_lshl_add_u32 v{T[3]}, v{T[0]}, 2, s{s_wj}
        v_min_u32 v{T[3]}, 53, v{T[3]}
        v_subrev_u32 v{T[4]}, 16, v{T[0]}
        v_min_u32 v{T[4]}, 4, v{T[4]}
        v_lshl_add_u32 v{T[4]}, v{T[4]}, 2, s{s_wj}
        s_lshl_b32 s{s_t0}, s{s_qb}, 7
        s_add_u32 s{s_t0}, s{s_t0}, 1024
        s_add_u32 s{s_fl}, s{s_t0}, s{s_tt}
        s_add_u32 s{s_t1}, s{s_t0}, 54
        s_mov_b32 exec_lo, 0
        v_add_u32 v{fC}, s{s_t0}, v{T[3]}
        s_mov_b32 exec_hi, 0xffff0000
        v_add_u32 v{fC}, s{s_t1}, v{T[4]}
        s_mov_b64 exec, -1
        v_lshlrev_b32 v{fC}, 7, v{fC}
        s_lshr_b32 s{s_t0}, s{s_head}, 2
        v_lshl_add_u32 v{fB}, s{s_t0}, 5, v{T[0]}
        v_lshlrev_b32 v{fB}, 7, v{fB}
        """)

    def boundary(wait=None):
        if wait is not None:
            a(f"s_waitcnt vmcnt({wait})")
        if 1 < cfg.get("trace", 0) < 4:
            stamp(a, prof, 21)
        a("s_barrier")

    def ask_tag():
        srd(a, sWS, 22, WS_TOP)
        load_tag()

    def take_tag():
        a(f"s_waitcnt lgkmcnt(0)\ns_add_u32 s{s_tag}, s{s_tag}, 1")

    def split(ops, n):
        k = -(-len(ops) // n)
        return [ops[i * k:(i + 1) * k] for i in range(n)]

    def feed(c, which="xwf", mix=()):
        mix = list(mix)
        per = -(-len(mix) // max(4 * len(which), 1))
        for key, part, va, sd, step in (("x", LX, VX, sX, 128), ("w", LW, VW, sW, 64 * 3840), ("f", LF, VG, sB, 64 * 3456)):
            if key in which:
                half = {"x": s_xo, "w": s_wstep, "f": s_ho}[key]
                a(f"s_add_u32 m0, s{s_ring}, {(c % 3) * STG + part}")
                a(f"s_add_u32 s{s_wo}, s{half}, {c * step}" if c < 5 else f"s_sub_u32 s{s_wo}, {c * step}, s{half}")
                for i in range(4):
                    a(f"buffer_load_dwordx4 v{va[i]}, s[{sd}:{sd + 3}], s{s_wo} offen offset:{1024 * i} lds")
                    a("\n".join(mix[:per]))
                    mix = mix[per:]

    def only(name, cond, fn):
        a(f"{cond}\ns_cbranch_scc0 {L(name)}")
        fn()
        a(f"{L(name)}:")

    feeding = f"s_cmp_lt_u32 s{s_cg}, 15"
    a(f"""
    s_lshl_b32 s{s_ring}, s{s_wj}, 12
    s_mul_i32 s{s_xo}, s{s_t3}, {5 * 128}
    s_mul_i32 s{s_wstep}, s{s_t3}, {5 * 64 * 3840}
    s_mul_i32 s{s_ho}, s{s_t3}, {5 * 64 * 3456}
    v_lshrrev_b32 v{T[2]}, 4, v{vL}
    v_xor_b32 v{T[2]}, v{T[2]}, v{T[1]}
    s_lshl_b32 s{s_t1}, s{s_rb}, 2
    s_add_u32 s{s_t1}, s{s_t1}, s{s_wj}
    s_mul_i32 s{s_t1}, s{s_t1}, {32 * 1280}
    v_mul_u32_u24 v{T[3]}, 1280, v{T[0]}
    v_add_u32 v{T[3]}, s{s_t1}, v{T[3]}
    v_lshl_add_u32 v{VX[0]}, v{T[2]}, 4, v{T[3]}
    v_xor_b32 v{T[2]}, 4, v{T[2]}
    v_lshl_add_u32 v{VX[1]}, v{T[2]}, 4, v{T[3]}
    v_add_u32 v{VX[2]}, {2 * (10240 - 1024)}, v{VX[0]}
    v_add_u32 v{VX[3]}, {3 * (10240 - 1024)}, v{VX[1]}
    v_add_u32 v{VX[1]}, {10240 - 1024}, v{VX[1]}
    v_and_b32 v{SO}, 48, v{vL}
    v_lshl_add_u32 v{SO}, v{T[1]}, 6, v{SO}
    """)
    srd(a, sX, 4, S * D * 2)

    def touch():
        a(f"""
        s_getpc_b64 s[{sA}:{sA + 1}]
        {L('pc')}:
        s_sub_u32 s{sA}, s{sA}, {L('pc')}-{label}
        s_subb_u32 s{sA + 1}, s{sA + 1}, 0
        s_mov_b32 s{sA + 2}, {L('end')}-{label}
        s_lshr_b32 s{s_t0}, s2, 3
        s_lshl_b32 s{s_t0}, s{s_t0}, 10
        v_lshlrev_b32 v{T[2]}, 7, v{vL}
        s_mov_b64 exec, 0xff
        buffer_load_dword v226, v{T[2]}, s[{sA}:{sA + 3}], s{s_t0} offen
        s_mov_b64 exec, -1
        """)

    if cfg["touch"] & 1:
        only("tc", f"s_cmp_eq_u32 s{s_wj}, 0", touch)
    srd(a, sA, 14, F * 2)
    a(f"""
    s_lshl_b32 s{s_t2}, s{s_cf}, 8
    v_lshlrev_b32 v{T[2]}, 2, v{vL}
    buffer_load_dword v28, v{T[2]}, s[{sA}:{sA + 3}], s{s_t2} offen
    """)
    ask_tag()
    w_addr(VW, 3840, s_cg)
    w_addr(VG, 3456, s_cf)
    srd(a, sW, 6, D * 3 * D * 2)
    srd(a, sB, 12, D * F * 2)
    a(f"""
    s_cmp_lt_u32 s{s_cf}, 14
    s_cselect_b32 s{sB + 2}, s{sB + 2}, 0
    s_lshl_b32 s{s_o[1]}, s{s_o[1]}, 9
    s_add_u32 s{s_o[0]}, s{s_o[0]}, s{s_o[1]}
    s_add_u32 s{s_o[0]}, s{s_o[0]}, {WS_CP}
    s_and_b32 s{s_t1}, s{s_wj}, 1
    v_lshl_add_u32 v{gL}, s{s_t1}, 6, v{vL}
    s_lshl_b32 s{s_t3}, s{s_rb}, 11
    v_lshl_add_u32 v{gR}, v{gL}, 4, s{s_t3}
    s_add_u32 s{s_t2}, s{s_cf}, 15
    s_cmp_eq_u32 s{s_t1}, 0
    s_cselect_b32 s{s_t1}, s{s_cg}, s{s_t2}
    s_lshl_b32 s{s_t1}, s{s_t1}, 6
    v_add_u32 v{gA}, s{s_t1}, v{vL}
    v_min_u32 v{gA}, 1823, v{gA}
    v_lshlrev_b32 v{gA}, 4, v{gA}
    s_mov_b32 s{s_spin}, {SPIN}
    v_lshrrev_b32 v23, 1, v{SO}
    v_add_u32 v23, {L_CP}, v23
    """)
    if cfg["early"]:
        later_addr()
    take_tag()
    stamp(a, prof, 44)

    def sums():
        for r in range(20):
            c = AC + 2 * (r & 3)
            if r < 4:
                a(f"v_lshlrev_b32 v{c}, 16, v{SD + r}\nv_and_b32 v{c + 1}, 0xffff0000, v{SD + r}")
            else:
                lo, hi = T[2 + 2 * (r & 1)], T[3 + 2 * (r & 1)]
                a(f"v_lshlrev_b32 v{lo}, 16, v{SD + r}\nv_and_b32 v{hi}, 0xffff0000, v{SD + r}\n"
                  f"v_add_f32 v{c}, v{c}, v{lo}\nv_add_f32 v{c + 1}, v{c + 1}, v{hi}")
        a(f"s_lshl_b32 s{s_t0}, s{s_wj}, 8\nv_add_u32 v{T[2]}, s{s_t0}, v23")
        for i in range(4):
            a(f"v_permlane32_swap_b32 v{AC + i}, v{AC + 4 + i}")
        for i in range(4):
            a(f"v_add_f32 v{AC + i}, v{AC + i}, v{AC + 4 + i}")
        a("s_nop 1")
        for i in range(2):
            a(f"v_permlane16_swap_b32 v{AC + i}, v{AC + 2 + i}")
        a(f"v_add_f32 v{AC}, v{AC}, v{AC + 2}\nv_add_f32 v{AC + 1}, v{AC + 1}, v{AC + 3}\ns_nop 1")
        for r in (AC, AC + 1):
            a(f"v_add_f32_dpp v{r}, v{r}, v{r} row_ror:8 row_mask:0xf bank_mask:0xf")
        a(f"ds_write_b64 v{T[2]}, {vr(AC, 2)}")

    def publish():
        for i in range(4):
            a(f"ds_read_b64 {vr(AC + 2 * i, 2)}, v23 offset:{256 * i}")
        a(f"""
        s_waitcnt lgkmcnt(0)
        v_add_f32 v{AC}, v{AC}, v{AC + 2}
        v_add_f32 v{AC + 2}, v{AC + 1}, v{AC + 3}
        v_add_f32 v{AC + 4}, v{AC + 4}, v{AC + 6}
        v_add_f32 v{AC + 5}, v{AC + 5}, v{AC + 7}
        v_add_f32 v{AC}, v{AC}, v{AC + 4}
        v_add_f32 v{AC + 2}, v{AC + 2}, v{AC + 5}
        v_mov_b32 v{AC + 1}, s{s_tag}
        v_mov_b32 v{AC + 3}, s{s_tag}
        s_mov_b32 exec_lo, 0x00ff00ff
        s_mov_b32 exec_hi, 0x00ff00ff
        buffer_store_dwordx4 {vr(AC, 4)}, v{SO}, {WSD}, s{s_o[0]} offen sc1
        s_mov_b64 exec, -1
        """)

    def publish_rows():
        a(f"""
        s_lshl4_add_u32 s{s_t0}, s{s_rb}, s{s_cg}
        s_lshl_b32 s{s_t0}, s{s_t0}, 7
        s_add_u32 s{s_t0}, s{s_t0}, {WS_RS}
        v_lshlrev_b32 v{T[2]}, 4, v{vL}
        v_add_u32 v{T[3]}, {L_RP}, v{T[2]}
        s_cmp_eq_u32 s{s_cg}, 14
        s_movk_i32 s{s_t1}, 0xff
        s_cselect_b32 exec_lo, 0xffff, s{s_t1}
        s_mov_b32 exec_hi, 0
        ds_read_b128 {vr(AC, 4)}, v{T[3]}
        s_waitcnt lgkmcnt(0)
        buffer_store_dwordx4 {vr(AC, 4)}, v{T[2]}, {WSD}, s{s_t0} offen sc1
        s_mov_b64 exec, -1
        """)

    def gather_loads():
        a(f"s_mov_b32 s{s_slot}, {WS_RS}\nbuffer_load_dwordx4 {vr(G + 16, 4)}, v{gR}, {WSD}, s{s_slot} offen sc1")
        a(f"s_mov_b32 s{s_slot}, {WS_CP}")
        for p in range(4):
            a(f"buffer_load_dwordx4 {vr(G + 4 * p, 4)}, v{gA}, {WSD}, s{s_slot} offen sc1")
            a(f"s_add_u32 s{s_slot}, s{s_slot}, {CP_ROW}")

    def gather_put():
        a(f"s_branch {L('ga_chk')}\n{L('ga')}:")
        gather_loads()
        a(f"s_sub_u32 s{s_spin}, s{s_spin}, 1\ns_waitcnt vmcnt(0)\n{L('ga_chk')}:")
        a(f"v_min_u32 v{T[3]}, v{G + 1}, v{G + 3}\nv_max_u32 v{T[4]}, v{G + 1}, v{G + 3}")
        for p in range(1, 5):
            b = G + 4 * p
            a(f"v_min3_u32 v{T[3]}, v{T[3]}, v{b + 1}, v{b + 3}\nv_max3_u32 v{T[4]}, v{T[4]}, v{b + 1}, v{b + 3}")
        retry("ga")
        a(f"v_add_f32 v{G + 1}, v{G + 2}, v{G + 6}\nv_add_f32 v{G}, v{G}, v{G + 4}")
        for p in range(2, 4):
            b = G + 4 * p
            a(f"v_add_f32 v{G}, v{G}, v{b}\nv_add_f32 v{G + 1}, v{G + 1}, v{b + 2}")
        a(f"""
        s_mov_b32 s{s_t0}, {L_NM}
        v_lshlrev_b32 v{G + 2}, 16, v28
        v_and_b32 v{G + 3}, 0xffff0000, v28
        v_lshl_add_u32 v{T[3]}, v{gL}, 2, s{s_t0}
        v_lshl_add_u32 v{T[4]}, v{gL}, 3, s{s_t0}
        v_lshl_add_u32 v{T[5]}, v{vL}, 3, s{s_t0}
        ds_write2_b32 v{T[3]}, v{G + 16}, v{G + 18} offset0:0 offset1:128
        ds_write_b64 v{T[4]}, {vr(G, 2)} offset:{L_CSA - L_NM}
        ds_write_b64 v{T[5]}, {vr(G + 2, 2)} offset:{L_BI - L_NM}
        s_waitcnt lgkmcnt(0)
        """)

    def mark_unwritten():
        a(f"""
        s_add_u32 s{s_ko}, s{s_cm}, {C_O * CH}
        s_add_u32 s{s_vo}, s{s_cr}, {C_O * CH}
        v_mov_b64 {vr(MK, 2)}, -1
        v_mov_b64 {vr(MK + 2, 2)}, -1
        buffer_store_dwordx4 {vr(MK, 4)}, v{mQ}, {WSD}, s{s_ko} offen sc1
        buffer_store_dwordx4 {vr(MK, 4)}, v{mQ}, {WSD}, s{s_ko} offen offset:512 sc1
        s_mov_b32 exec_hi, 0
        buffer_store_dwordx2 {vr(MK, 2)}, v{mQR}, {WSD}, s{s_vo} offen sc1
        buffer_store_dwordx2 {vr(MK, 2)}, v{mQR}, {WSD}, s{s_vo} offen offset:512 sc1
        s_mov_b32 exec_hi, -1
        """)

    a(f"{feeding}\ns_cbranch_scc1 {L('g1_on')}")
    if not cfg["early"]:
        later_addr()
    early_mark = cfg["mk"] < 10
    if early_mark:
        mark_unwritten()
    only("bf0", has_block, block_fetch)
    only("bt0", has_block, block_turn)
    a(f"s_branch {L('b_last')}\n{L('g1_on')}:")
    feed(0)
    stamp(a, prof, 43)
    pre = "xwf"[:cfg["pre"]]
    feed(1, pre)
    boundary(4 * len(pre))
    a(f"s_setprio {cfg['fprio']}")
    sm = capture(sums)
    k = len(sm) * (3 - len(pre)) // 3
    feed(1, "xwf"[len(pre):], sm[:k])
    feed(2, pre, sm[k:])
    only("pr", f"s_cmp_eq_u32 s{s_wj}, 2", publish_rows)
    a("s_waitcnt lgkmcnt(0)")
    late = [[]] + (split(capture(later_addr), 4) if not cfg["early"] else [[]] * 4)
    gath = f"s_cmp_lt_u32 s{s_wj}, 2"
    for c in range(10):
        if c - cfg["gat"] in (1, 2):
            a(f"{gath}\ns_cbranch_scc1 {L('bw' + str(c))}\ns_waitcnt vmcnt(12)\n{L('bw' + str(c))}:")
            boundary(17)
            assert c <= 5
        else:
            boundary({0: 4 * len(pre), 6: 8, 7: 8, 8: 4, 9: None}.get(c, 12))
        if c == 0:
            feed(2, "xwf"[len(pre):])
        if c < 5:
            feed(c + 3, mix=late[c])
        elif c < 7:
            feed(c + 3, "xw")
        elif c < 9:
            feed(c + 1, "f")
        if c == 0:
            only("pb", f"s_cmp_eq_u32 s{s_wj}, s{s_hook}", publish)
        if c == cfg["mk"]:
            mark_unwritten()
        if c == 8:
            only("bf", has_block, block_fetch)
        if c == cfg["gat"]:
            only("gf", gath, gather_loads)
        if c == cfg["gat"] + 3:
            only("gp", gath, gather_put)
    a(f"{has_block}\ns_cbranch_scc1 {L('bwa')}\ns_waitcnt vmcnt({4 * early_mark})\n{L('bwa')}:")
    boundary(5 + 4 * early_mark)
    only("bt", has_block, block_turn)
    boundary()

    def first_fetch():
        a(f"""
        s_mul_i32 s{s_t0}, s{s_wj}, 3072
        s_add_u32 m0, s{s_t0}, {L_Q}
        s_nop 0
        buffer_load_dwordx4 v{mQ}, {WSD}, s{s_cm} offen sc1 lds
        s_add_u32 m0, s{s_t0}, {L_Q + 512}
        s_nop 0
        buffer_load_dwordx4 v{mQ}, {WSD}, s{s_cm} offen offset:512 sc1 lds
        s_add_u32 m0, s{s_t0}, {L_Q + 2048}
        s_nop 0
        buffer_load_dwordx4 v{mQD}, {WSD}, s{s_cr} offen sc1 lds
        """)
        kv_dma(0)

    a(f"{L('b_last')}:\ns_setprio 2")
    stamp(a, prof, 40)
    ones_write(one, 20)
    wait_flags("wa", WS_FA, [FO] if cfg["lean"] else [FO, FK])
    stamp(a, prof, 41)
    if prof is True:
        a(f"s_sub_u32 s{s_t0}, {SPIN}, s{s_spin}\ns_add_u32 s96, s{s_t0}, 100")
    first_fetch()
    if cfg["hpos"] == 0:
        stamp(a, prof, 4)
        if cfg["lean"]:
            a(f"s_mov_b32 s{s_t0}, {WS_FA}\nbuffer_load_dword v{T[3]}, v{FK}, {WSD}, s{s_t0} offen sc1")
        a(f"s_barrier\ns_waitcnt vmcnt({cfg['lean']}) lgkmcnt(0)")
        stamp(a, prof, 3)
        a("s_barrier")
        if cfg["lean"]:
            a(f"s_waitcnt vmcnt(0)\nv_cmp_ne_u32 vcc, s{s_tag}, v{T[3]}\ns_nop 3\ns_cbranch_vccz {L('wk_done')}")
            wait_flags("wk", WS_FA, [FK])
        kv_dma(1)
        only("bp", has_block, block_put)
    else:
        kv_dma(1)
        stamp(a, prof, 4)
        only("bp", has_block, block_put)
        a(f"{has_block}\ns_cbranch_scc1 {L('bq')}\ns_waitcnt vmcnt(7)\n{L('bq')}:\ns_waitcnt vmcnt(12) lgkmcnt(0)")
        stamp(a, prof, 3)
        a("s_barrier")

    vH, vW, vO, vB, vLn = [11, 12, 13, 14], [15, 16], [17, 18], [T[0], T[1]], 19
    ACC = 20
    LB = [100 + 36 * i for i in range(3)]
    WR, XR, BR = 180, 220, 230
    sH, sT = sW, sA
    a(f"""
    v_mov_b32 v{vH[0]}, v{pH}
    v_xor_b32 v{vH[1]}, 256, v{pH}
    v_xor_b32 v{vH[2]}, 512, v{pH}
    v_xor_b32 v{vH[3]}, 768, v{pH}
    v_lshlrev_b32 v{vLn}, 4, v{vL}
    s_mul_i32 s{s_t0}, s{s_qb}, 5120
    v_add_u32 v{vW[0]}, s{s_t0}, v{vLn}
    v_add_u32 v{vW[1]}, 4096, v{vW[0]}
    s_mul_i32 s{s_t0}, s{s_qb}, 160
    v_lshrrev_b32 v{T[2]}, 4, v{vL}
    v_lshl_add_u32 v{vB[0]}, v{T[2]}, 4, s{s_t0}
    v_lshl_add_u32 v{vB[1]}, v{T[2]}, 3, s{s_t0}
    v_add_u32 v{vO[0]}, v{pO}, v{vB[0]}
    v_add_u32 v{vO[1]}, v{pO}, v{vB[1]}
    s_add_u32 s{sH}, s22, {C_H * CH}
    s_addc_u32 s{sH + 1}, s23, 0
    s_mov_b32 s{sH + 2}, {216 * CH}
    s_mov_b32 s{sH + 3}, 0x00020000
    s_add_u32 s{sT}, s22, {WS_WT}
    s_addc_u32 s{sT + 1}, s23, 0
    s_mov_b32 s{sT + 2}, {54 * KS_ROW}
    s_mov_b32 s{sT + 3}, 0x00020000
    s_lshl_b32 s{s_ho}, s{s_wj}, 17
    s_mul_i32 s{s_wo}, s{s_wj}, {KS_ROW}
    s_add_u32 s{s_xo}, s{s_wo}, {WS_WT + 54 * KS_ROW}
    s_mul_i32 s{s_ring}, s{s_wj}, 5120
    s_waitcnt vmcnt(0)
    """)
    only("fw", has_block, lambda: set_flag(WS_FH))
    kv_dma(2)
    a(f"s_mov_b32 s{s_fl}, s2\ns_barrier")
    stamp(a, prof, 5)

    def w_frag(c):
        return (vW[0], 1024 * c) if c < 4 else (vW[1], 0)

    def ffn_loads(b):
        for t in range(4):
            a(f"buffer_load_dwordx4 {vr(LB[b] + 4 * t, 4)}, v{vH[t]}, s[{sH}:{sH + 3}], s{s_ho} offen sc1")
        for c in range(5):
            va, off = w_frag(c)
            a(f"buffer_load_dwordx4 {vr(LB[b] + 16 + 4 * c, 4)}, v{va}, s[{sT}:{sT + 3}], s{s_wo} offen offset:{off} sc1")
        a(f"s_add_u32 s{s_ho}, s{s_ho}, {16 * CH}\ns_add_u32 s{s_wo}, s{s_wo}, {4 * KS_ROW}")

    def wo_stage(i):
        for c in range(5):
            va, off = w_frag(c)
            if c in (0, 4):
                a(f"s_add_u32 m0, s{s_ring}, {L_WO + i * 20480 + 1024 * c}\ns_nop 0")
            a(f"buffer_load_dwordx4 v{va}, {WSD}, s{s_xo} offen offset:{off} sc1 lds")
        a(f"s_add_u32 s{s_xo}, s{s_xo}, {4 * KS_ROW}")

    queue = []

    def need(tag):
        if tag not in queue:
            return
        last = max(i for i, q in enumerate(queue) if q == tag)
        a(f"s_waitcnt vmcnt({len(queue) - 1 - last})")
        del queue[:last + 1]

    def send(r):
        a(f"s_add_u32 s{s_t0}, s{s_ring}, {L_EX[r]}\nv_add_u32 v{T[2]}, s{s_t0}, v{vLn}")
        for c in range(5):
            a(f"ds_write_b128 v{T[2]}, {vr(ACC + 20 * r + 4 * c, 4)} offset:{1024 * c}")

    wait_flags("wb", WS_FH, [fC], cfg["fbr"])
    a(f"s_cbranch_vccnz {L('fb_late')}")
    stamp(a, prof, 6)
    ffn_loads(0)
    a(f"s_barrier\ns_branch {L('fb_go')}\n{L('fb_late')}:\ns_barrier")
    wait_flags("wc", WS_FH, [fC])
    stamp(a, prof, 16)
    ffn_loads(0)
    a(f"{L('fb_go')}:\ns_setprio 0")
    assert not early_mark
    queue += [("L", 0)] * 9

    def vm_units(fn, tag):
        out, cur = [], []
        for u in capture(fn):
            cur.append(u)
            n = u.count("buffer_load")
            if n:
                out.append(("\n".join(cur), [tag] * n))
                cur = []
        out[-1] = (out[-1][0] + "\n" + "\n".join(cur), out[-1][1])
        return out

    cuts = [cfg["cut0"] + cfg["cutd"] * k for k in range(5)]
    side = vm_units(lambda: kv_dma(3), ("D", 2)) + vm_units(lambda: wo_stage(0), ("W", 2))
    iv, m = 2, 0
    for step in range(14):
        b = step % 3
        main = vm_units(lambda: ffn_loads((step + 2) % 3), ("L", step + 2)) if step + 2 < 14 else []
        if step == 0:
            ffn_loads(1)
            queue += [("L", 1)] * 9
        need(("L", step))
        if step == 13:
            assert not side and iv == 7
            a(f"s_cmp_lt_u32 s{s_wj}, 2\ns_cbranch_scc0 {L('m13')}")
        for k in range(20):
            t, c = divmod(k, 5)
            d = vr(ACC + 20 * t + 4 * c, 4)
            a(f"v_mfma_f32_16x16x32_bf16 {d}, {vr(LB[b] + 16 + 4 * c, 4)}, {vr(LB[b] + 4 * t, 4)}, {d if step else 0}")
            m += 1
            src = main if (main and (k & 1 or not side)) else side
            if src:
                text, tags = src.pop(0)
                a(text)
                queue += tags
            if iv < 7 and m == cuts[iv - 2]:
                assert not side
                need(("D", iv))
                if cfg.get("trace"):
                    stamp(a, prof, 24)
                a("s_barrier")
                iv += 1
                if iv == cfg["mk"] - 10:
                    mark_unwritten()
                    queue += [("M", 0)] * 4
                if iv == cfg["mk"] - 9:
                    assert ("M", 0) not in queue
                    only("fb", f"s_cmp_eq_u32 s{s_wj}, 0", lambda: set_flag(WS_FB))
                if iv < 7:
                    side = vm_units(lambda: kv_dma(iv + 1), ("D", iv))
                if iv < 6:
                    side += vm_units(lambda: wo_stage(iv - 2), ("W", iv))
                if iv == 7:
                    only("w5", f"s_cmp_lt_u32 s{s_wj}, 2", lambda: wo_stage(4))
        assert not main
    a(f"{L('m13')}:")
    srd(a, sX, 4, S * D * 2)
    srd(a, sA, 18, D * 2)
    srd(a, sB, 20, S * D * 2)
    upper = f"s_cmp_ge_u32 s{s_wj}, 2"

    def wo_last():
        for c in range(5):
            va, off = w_frag(c)
            a(f"buffer_load_dwordx4 {vr(WR + 4 * c, 4)}, v{va}, {WSD}, s{s_xo} offen offset:{off} sc1")

    def wo_last_put():
        a(f"s_add_u32 s{s_t0}, s{s_ring}, {L_WO + 4 * 20480}\nv_add_u32 v{T[2]}, s{s_t0}, v{vLn}")
        for c in range(5):
            a(f"ds_write_b128 v{T[2]}, {vr(WR + 4 * c, 4)} offset:{1024 * c}")

    only("wl", upper, wo_last)
    for dst, va, sd in ((XR, vO, sX), (BR, vB, sA)):
        a(f"""
        buffer_load_dwordx4 {vr(dst, 4)}, v{va[0]}, s[{sd}:{sd + 3}], 0 offen
        buffer_load_dwordx4 {vr(dst + 4, 4)}, v{va[0]}, s[{sd}:{sd + 3}], 0 offen offset:64
        buffer_load_dwordx2 {vr(dst + 8, 2)}, v{va[1]}, s[{sd}:{sd + 3}], 0 offen offset:128
        """)
    NW, AH = 7, cfg["ahead"]
    AC2, WG, OF = 40, 60, 200
    assert OF + 4 * (AH + 1) <= 256

    def wo_read(i, c):
        va, off = (vLn, L_WO + 5120 * i) if i < 10 else (T[2], 5120 * (i - 10))
        return f"ds_read_b128 {vr(WG + 20 * (i % NW) + 4 * c, 4)}, v{va} offset:{off + 1024 * c}"

    def o_load(i):
        a(f"s_mov_b32 s{s_t0}, {(C_O + 4 * i) * CH}")
        a(f"buffer_load_dwordx4 {vr(OF + 4 * (i % (AH + 1)), 4)}, v{vH[0]}, {WSD}, s{s_t0} offen sc1")

    def prime(steps):
        for i in steps:
            a("s_waitcnt lgkmcnt(10)\n" + "\n".join(wo_read(i, c) for c in range(5)))

    prime(range(2, 6))
    wait_flags("wm", WS_FB, [fB])
    a(f"""
    s_cmp_lg_u32 s2, 0
    s_cbranch_scc1 {L('we_done')}
    s_lshl_b32 s{s_t0}, s{s_wj}, 6
    v_add_u32 v{T[5]}, s{s_t0}, v{vL}
    v_lshlrev_b32 v{T[5]}, 7, v{T[5]}
    """)
    wait_flags("we", WS_FB, [T[5]])
    a(f"""
    v_bfe_u32 v{T[2]}, v{vL}, 1, 4
    v_mul_u32_u24 v{T[2]}, 5, v{T[2]}
    v_and_b32 v{T[3]}, 1, v{vL}
    s_cmp_eq_u32 s{s_wj}, 2
    s_cselect_b32 s{s_t1}, 8, {3 * CH}
    s_cselect_b32 s{s_t2}, 4, 12
    s_cmp_eq_u32 s{s_wj}, 3
    s_cselect_b32 s{s_t0}, 0, s{s_wj}
    v_add_u32 v{T[2]}, s{s_t0}, v{T[2]}
    v_lshlrev_b32 v{T[2]}, 15, v{T[2]}
    v_mad_u32_u24 v{T[0]}, v{T[3]}, s{s_t1}, v{T[2]}
    s_lshl_b32 s{s_t0}, s{s_head}, 3
    s_add_u32 s{s_t0}, s{s_t0}, s{s_qb}
    s_lshl_b32 s{s_t0}, s{s_t0}, 7
    s_add_u32 s{s_t0}, s{s_t0}, s{s_t2}
    s_add_u32 s{s_ko}, s{s_t0}, {C_O * CH}
    s_mov_b32 s{s_spin}, {SPIN}
    """)
    a("s_waitcnt lgkmcnt(0)")
    if cfg.get("trace"):
        stamp(a, prof, 24)
    a("s_barrier")
    send(1)
    send(2)
    stamp(a, prof, 7)
    a("s_barrier")
    a("s_waitcnt vmcnt(0) lgkmcnt(0)")
    send(3)
    only("wp", upper, wo_last_put)
    a("s_waitcnt lgkmcnt(0)\ns_barrier")
    stamp(a, prof, 8)
    a(f"""
    s_cmp_lg_u32 s2, 0
    s_cbranch_scc1 {L('tag_kept')}
    v_mov_b32 v{T[4]}, 0
    v_mov_b32 v{T[5]}, s{s_tag}
    s_mov_b32 s{s_t0}, {WS_E}
    buffer_store_dword v{T[5]}, v{T[4]}, {WSD}, s{s_t0} offen sc1
    {L('tag_kept')}:
    """)
    for r in range(1, 4):
        a(f"""
        s_xor_b32 s{s_t0}, s{s_wj}, {r}
        s_mul_i32 s{s_t0}, s{s_t0}, 5120
        s_add_u32 s{s_t0}, s{s_t0}, {L_EX[r]}
        v_add_u32 v{T[2]}, s{s_t0}, v{vLn}
        """)
        for c in range(5):
            a(f"ds_read_b128 {vr(ACC + 20 * r + 4 * c, 4)}, v{T[2]} offset:{1024 * c}")
    for src in (XR, BR):
        for i in range(10):
            t = T[2 + 2 * (i & 1)]
            a(f"v_lshlrev_b32 v{t}, 16, v{src + i}\nv_and_b32 v{t + 1}, 0xffff0000, v{src + i}")
            a(f"v_pk_add_f32 {vr(ACC + 2 * i, 2)}, {vr(ACC + 2 * i, 2)}, {vr(t, 2)}")
    for r in range(1, 4):
        a(f"s_waitcnt lgkmcnt({5 * (3 - r)})")
        for i in range(0, 20, 2):
            a(f"v_pk_add_f32 {vr(ACC + i, 2)}, {vr(ACC + i, 2)}, {vr(ACC + 20 * r + i, 2)}")
    a(f"v_add_u32 v{T[2]}, {L_WO + 10 * 5120}, v{vLn}")

    look = f"buffer_load_dword v{T[3]}, v{T[0]}, {WSD}, s{s_ko} offen sc1"
    a(f"{L('first')}:\ns_mov_b32 exec_hi, 0\n{look}\ns_mov_b32 exec_hi, -1")
    prime((0, 1, 6))
    a(f"""
    v_mov_b32 v{T[4]}, 0
    s_mov_b32 exec_hi, 0
    s_branch {L('seen')}
    {L('poll')}:
    {look}
    {L('seen')}:
    s_sub_u32 s{s_spin}, s{s_spin}, 1
    s_cmp_lt_i32 s{s_spin}, 0
    s_waitcnt vmcnt(0) lgkmcnt(0)
    v_cmp_eq_u32 vcc, -1, v{T[3]}
    s_cbranch_scc1 {L('got')}
    s_nop 2
    s_cbranch_vccnz {L('poll')}
    {L('got')}:
    s_mov_b32 exec_hi, -1
    """)
    if prof is True:
        stamp(a, prof, 50)
        a(f"s_sub_u32 s96, {SPIN + 200}, s{s_spin}\ns_waitcnt lgkmcnt(0)")
    for i in range(AH):
        o_load(i)
    todo = [(i, c) for i in range(NW, 20) for c in range(5)]
    issued = 0
    for i in range(20):
        lg = f" lgkmcnt({min(15, issued - 5 * (i - NW + 1))})" if i >= NW else ""
        assert i < NW or issued >= 5 * (i - NW + 1)
        a(f"s_waitcnt vmcnt({min(20, i + AH) - i - 1}){lg}")
        o = OF + 4 * (i % (AH + 1))
        for c in range(5):
            d = vr(AC2 + 4 * c, 4)
            a(f"v_mfma_f32_16x16x32_bf16 {d}, {vr(WG + 20 * (i % NW) + 4 * c, 4)}, {vr(o, 4)}, {d if i else 0}")
            if c == 0:
                if i + AH < 20:
                    o_load(i + AH)
            elif todo and (todo[0][0] - NW, todo[0][1]) <= (i, c):
                a(wo_read(*todo.pop(0)))
                issued += 1
            if c == 4:
                a(f"v_max3_u32 v{T[4]}, v{T[4]}, v{o + 1}, v{o + 3}")
    assert not todo
    stamp(a, prof, 9)
    a(f"""
    v_cmp_eq_u32 vcc, -1, v{T[4]}
    s_cmp_lt_i32 s{s_spin}, 0
    s_cbranch_scc1 {L('sum')}
    s_nop 1
    s_cbranch_vccnz {L('again')}
    {L('sum')}:
    s_nop 3
    """)
    for i in range(0, 20, 2):
        a(f"v_pk_add_f32 {vr(ACC + i, 2)}, {vr(ACC + i, 2)}, {vr(AC2 + i, 2)}")
    for i in range(10):
        a(f"v_cvt_pk_bf16_f32 v{XR + i}, v{ACC + 2 * i}, v{ACC + 2 * i + 1}")
    a(f"""
    buffer_store_dwordx4 {vr(XR, 4)}, v{vO[0]}, s[{sB}:{sB + 3}], 0 offen {OSF}
    buffer_store_dwordx4 {vr(XR + 4, 4)}, v{vO[0]}, s[{sB}:{sB + 3}], 0 offen offset:64 {OSF}
    buffer_store_dwordx2 {vr(XR + 8, 2)}, v{vO[1]}, s[{sB}:{sB + 3}], 0 offen offset:128 {OSF}
    """)
    if prof:
        a(f"{L('dump')}:\ns_waitcnt vmcnt(0)")
        stamp(a, prof, 10)
        stamp(a, prof, 11)
        a(f"""
        s_memrealtime s[78:79]
        s_waitcnt lgkmcnt(0)
        s_mov_b32 s{sWS + 2}, {WS_SIZE}
        s_lshl_b32 s95, s2, 3
        s_add_u32 s95, s95, s{s_w}
        s_lshl_b32 s95, s95, 8
        s_add_u32 s95, s95, {WS_DBG}
        v_writelane_b32 v0, s76, 62
        v_writelane_b32 v0, s78, 63
        v_lshlrev_b32 v{T[0]}, 2, v{vL}
        buffer_store_dword v0, v{T[0]}, {WSD}, s95 offen
        s_waitcnt vmcnt(0)
        """)
    a(f"s_endpgm\n{L('again')}:")
    prime(range(2, 6))
    a(f"s_branch {L('first')}")
    a.lines = head_lines + a.lines + g0_lines
    a(f"{L('end')}:\ns_endpgm")
    return kernel_header(label) + a.text(), kernel_desc(label, 256, 102 if prof else 90), LDS_SIZE


def build(as_list=False, **kw):
    ref = open(f"cdna_kernels/{NAME}.s.ref").read().split("\n")
    head = [ln for ln in ref if ln.startswith(";") and "launch" not in ln.lower() and "grid=" not in ln]
    label = NAME + "_kernel"
    c, d, lds = gen(label, **kw)
    c = c.replace(label + "_", "L_")
    if (kw.get("cfg") or {}).get("rt"):
        c = c.replace("s_memtime", "s_memrealtime")
    out = "\n".join(head) + "\n"
    out += f"; @launch {'kernel=' + label + ' ' if as_list else ''}grid=(256,1,1) block=(512,1,1) lds={lds}\n"
    out += '.amdgcn_target "amdgcn-amd-amdhsa--gfx950"\n.text\n' + c + '.section .rodata,"a"\n' + d
    return out


if __name__ == "__main__":
    import sys
    opts = sys.argv[2:]
    cfg = {o.split("=")[0]: int(o.split("=")[1], 0) for o in opts if "=" in o}
    open(sys.argv[1], "w").write(build(as_list="list" in opts, prof="span" if "span" in opts else "prof" in opts, force_fallback="slow" in opts, cfg=cfg))
```

```python
import math
import struct
from common import *

f32 = lambda x: struct.unpack("<I", struct.pack("<f", x))[0]
QSCALE = f32(math.log2(math.e) / math.sqrt(20.0))
SHIFT = 92.0

WS_RS = WS_END
WS_CP = WS_RS + 2048 * 16
CP_ROW = 3648 * 8
WS_FA = WS_CP + 4 * CP_ROW
WS_FH = WS_FA + 1024 * 128
WS_FB = WS_FH + 2048 * 128
WS_E = WS_FB + 256 * 128
WS_TOP = WS_E + 128

STG = 49152
LX, LW, LF = 0, 16384, 32768
L_NM = 3 * STG
L_RS, L_CSA, L_CSB, L_BI = L_NM + 512, L_NM + 1024, L_NM + 1536, L_NM + 2048
L_CP = L_NM + 2560
L_RP = L_CP + 1024
LDS_SIZE = 163840
SLOT = 8192 + 4096 + 16 * 656
OFF_R, OFF_V = 8192, 12288
KV = LDS_SIZE - 3 * SLOT
L_Q = LW
L_WO = 0
L_EX = [None, 122880, 143360, 102400]
LDS_OOB = 0x28000
assert L_WO + 18 * 5120 <= KV and LDS_OOB + 3 * SLOT <= 0x40000
KS_ROW = 40 * 1024

sWS, sX, sW, sA, sB = 24, 28, 32, 36, 40
(s_w, s_wj, s_rb, s_cg, s_head, s_qb, s_tt, s_cf, s_cm, s_cr, s_par, s_tag, s_c, s_slot,
 s_t0, s_t1, s_t2, s_t3, s_xo, s_wo, s_ring, s_wstep, s_ko, s_vo, s_ho, s_spin, s_fl) = range(44, 71)
assert s_t2 % 2 == 0
s_o = [71, 72, 73]
s_kc, s_hook = 74, 75
SPIN = 0x20000


def gen(label, prof=False, force_fallback=False, cfg=None):
    cfg = {**dict(wsoff=0, rot=0, late=0, bal=1, touch=1, gat=3, pre=3, mk=13, early=0, fprio=2, flag=1, krot=0, lean=1, plf=0, fsf=0, slp=1, cut0=46, cutd=49, fbr=2, hk=3, hpos=0, ahead=6, osf=0), **(cfg or {})}
    STF = ('sc1', '', 'nt')[cfg.get('plain', 0)]
    PLF = ('sc1', 'sc0 sc1', 'sc1 nt', 'sc0 sc1 nt')[cfg['plf']]
    FSF = ('sc1', 'sc0 sc1')[cfg['fsf']]
    OSF = ('', 'sc1', 'nt')[cfg['osf']]
    a = Asm()
    L = lambda n: f"{label}_{n}"
    WSD = f"s[{sWS}:{sWS + 3}]"
    vL = 1
    T = [2, 3, 4, 5, 6, 7]
    vK, vR_, vV = 8, 9, 10
    AX = [11, 12]
    AW = [13, 14, 15, 16]
    XF = [[32 + 16 * b + 4 * t for t in range(4)] for b in range(2)]
    WF = [[64 + 16 * b + 4 * c for c in range(4)] for b in range(2)]
    GA, GB = 96, 160

    def capture(fn):
        keep, a.lines = a.lines, []
        fn()
        got, a.lines = a.lines, keep
        units, masked = [], False
        for ln in got:
            t = ln.strip()
            if units and (masked or t.startswith("s_cselect") or units[-1].split("\n")[-1].strip().startswith("s_cmp")):
                units[-1] += "\n" + ln
            else:
                units.append(ln)
            if t.startswith("s_") and " exec" in t.split(",")[0]:
                masked = not t.endswith("-1")
        return units

    def gacc(tt, ci, base=GA):
        return base + (tt * 4 + ci) * 4

    SD = 32
    a(f"""
    s_cmp_ge_u32 s2, 256
    s_cbranch_scc1 {L('end')}
    s_load_dwordx16 s[4:19], s[0:1], 0
    s_load_dwordx2 s[22:23], s[0:1], 80
    s_load_dwordx2 s[20:21], s[0:1], 64
    """)
    stamp(a, prof, 0)
    a(f"""
    v_lshrrev_b32 v{T[0]}, 6, v0
    v_and_b32 v{vL}, 63, v0
    s_and_b32 s{s_t3}, s2, 1
    v_readfirstlane_b32 s{s_w}, v{T[0]}
    s_bfe_u32 s{s_rb}, s2, 0x30003
    s_bfe_u32 s{s_t0}, s2, 0x20001
    s_lshr_b32 s{s_t1}, s2, 6
    s_lshl2_add_u32 s{s_cf}, s{s_t0}, s{s_t1}
    {f"s_and_b32 s{s_t2}, s{s_rb}, 3" if cfg["bal"] else f"s_mov_b32 s{s_t2}, 3"}
    s_lshl2_add_u32 s{s_t2}, s{s_t2}, 3
    s_lshl3_add_u32 s{s_rb}, s{s_t3}, s{s_rb}
    s_cmp_gt_u32 s{s_cf}, s{s_t2}
    s_subb_u32 s{s_cg}, s{s_cf}, 0
    s_cmp_eq_u32 s{s_cf}, s{s_t2}
    s_cselect_b32 s{s_cg}, 15, s{s_cg}
    s_mov_b32 s{sA + 3}, 0x00020000
    {'v_mov_b32 v0, -1' if prof else ''}
    s_and_b32 s{s_wj}, s{s_w}, 3
    s_cmp_ge_u32 s{s_w}, 4
    s_cbranch_scc1 {L('p_col')}
    s_mov_b32 s3, 0
    s_lshl4_add_u32 s{s_t0}, s{s_rb}, s{s_cg}
    s_lshl1_add_u32 s{s_t0}, s{s_t0}, s{s_wj}
    s_mul_i32 s{s_t1}, s{s_t0}, {4 * 1280}
    s_cmp_eq_u32 s{s_cg}, 15
    s_cselect_b32 s{s_hook}, 0, 2
    s_cmp_eq_u32 s{s_cg}, 14
    s_cselect_b32 s{s_hook}, 4, s{s_hook}
    v_lshrrev_b32 v{T[0]}, 4, v{vL}
    v_and_b32 v{T[1]}, 15, v{vL}
    v_mul_u32_u24 v{T[2]}, 1280, v{T[0]}
    s_movk_i32 s{s_t2}, 256
    s_mov_b32 s{sA + 2}, {S * D * 2}
    s_cmp_lt_u32 s{s_wj}, s{s_hook}
    s_waitcnt lgkmcnt(0)
    s_mov_b64 s[{sA}:{sA + 1}], s[4:5]
    s_branch {L('p_ld')}
    {L('p_col')}:
    s_setprio 2
    s_mov_b32 s3, 1
    s_bfe_u32 s{s_t1}, s2, 0x10005
    s_lshl1_add_u32 s{s_t1}, s{s_cg}, s{s_t1}
    s_bfe_u32 s{s_t0}, s2, 0x10003
    s_lshl1_add_u32 s{s_t0}, s{s_t3}, s{s_t0}
    s_mul_i32 s{s_o[0]}, s{s_t0}, {CP_ROW // 512 * 512}
    s_lshl_b32 s{s_t0}, s{s_t0}, 2
    s_add_u32 s{s_t0}, s{s_t0}, s{s_wj}
    s_mul_i32 s{s_t0}, s{s_t0}, 40
    v_lshrrev_b32 v{T[0]}, 3, v{vL}
    v_and_b32 v{T[1]}, 7, v{vL}
    s_bitcmp0_b32 s2, 4
    s_cselect_b32 s{s_hook}, 30, 57
    s_movk_i32 s{s_t2}, 3840
    s_cselect_b32 s{s_t2}, s{s_t2}, 3456
    s_cselect_b32 s{s_o[1]}, 0, 30
    s_mul_i32 s{sA + 2}, s{s_t2}, 640
    s_mul_i32 s{s_t0}, s{s_t0}, s{s_t2}
    v_mul_u32_u24 v{T[2]}, s{s_t2}, v{T[0]}
    s_waitcnt lgkmcnt(0)
    s_cselect_b64 s[{sA}:{sA + 1}], s[6:7], s[12:13]
    s_add_u32 s{s_o[1]}, s{s_o[1]}, s{s_t1}
    s_lshl_b32 s{s_t1}, s{s_t1}, 7
    s_add_u32 s{s_t1}, s{s_t1}, s{s_t0}
    s_lshl_b32 s{s_t2}, s{s_t2}, 3
    s_cmp_lt_u32 s{s_o[1]}, s{s_hook}
    s_cselect_b32 s{s_hook}, 3, 7
    """)
    if cfg["late"]:
        a(f"""
        s_cselect_b32 s78, s{sA + 2}, 0
        s_mov_b64 s[76:77], s[{sA}:{sA + 1}]
        s_mov_b32 s79, 0x00020000
        s_mov_b32 s10, s{s_t1}
        s_mov_b32 s11, s{s_t2}
        v_lshl_add_u32 v29, v{T[1]}, 4, v{T[2]}
        s_branch {L('p_id')}
        """.replace("s78", "s90").replace("s[76:77]", "s[88:89]").replace("s79", "s91"))
    a(f"""
    {L('p_ld')}:
    """)
    a(f"""
    v_lshl_add_u32 v{T[2]}, v{T[1]}, 4, v{T[2]}
    s_cbranch_scc0 {L('p_id')}
    """)
    assert CP_ROW % 512 == 0
    for q in range(5):
        a(f"buffer_load_dwordx4 {vr(SD + 4 * q, 4)}, v{T[2]}, s[{sA}:{sA + 3}], s{s_t1} offen")
        a(f"s_add_u32 s{s_t1}, s{s_t1}, s{s_t2}")
    a(f"{L('p_id')}:")
    if cfg["wsoff"]:
        a(f"s_add_u32 s22, s22, {cfg['wsoff'] << 20}\ns_addc_u32 s23, s23, 0")
    stamp(a, prof, 45)
    a(f"""
    {f"s_xor_b32 s{s_t2}, s{s_rb}, 2" if cfg["bal"] else ""}
    {f"s_and_b32 s{s_t2}, s{s_t2}, 3" if cfg["bal"] else f"s_mov_b32 s{s_t2}, 3"}
    s_lshl2_add_u32 s{s_t2}, s{s_t2}, {3 if cfg["bal"] else 2}
    s_cmp_eq_u32 s{s_cf}, s{s_t2}
    s_cselect_b32 s{s_t0}, 15, s{s_cg}
    s_cmp_gt_u32 s{s_cf}, s{s_t2}
    s_subb_u32 s{s_cf}, s{s_t0}, 0
    s_cmp_eq_u32 s{s_cg}, 15
    s_cbranch_scc1 {L('near')}
    {L('p_go')}:
    s_cmp_eq_u32 s3, 0
    s_cbranch_scc1 {L('g0')}
    """)
    head_lines, a.lines = a.lines, []

    def attn_ids():
        a(f"""
        s_and_b32 s{s_t0}, s2, 7
        s_lshr_b32 s{s_t1}, s2, 3
        s_and_b32 s{s_t2}, s{s_t1}, 3
        s_lshl_b32 s{s_head}, s{s_t0}, 2
        s_add_u32 s{s_head}, s{s_head}, s{s_t2}
        s_lshr_b32 s{s_qb}, s{s_t1}, 2
        s_and_b32 s{s_par}, s{s_head}, 1
        s_lshr_b32 s{s_t2}, s{s_head}, 1
        s_mul_i32 s{s_t2}, s{s_t2}, 5
        s_add_u32 s{s_cr}, s{s_t2}, 2
        s_mul_i32 s{s_t3}, s{s_par}, 3
        s_add_u32 s{s_cm}, s{s_t2}, s{s_t3}
        s_lshl_b32 s{s_cm}, s{s_cm}, 15
        s_lshl_b32 s{s_cr}, s{s_cr}, 15
        """)

    def load_tag():
        a(f"""
        s_mov_b32 s{s_t0}, {WS_E}
        s_load_dword s{s_tag}, s[22:23], s{s_t0}
        """)

    def frag_addr():
        a(f"""
        v_and_b32 v{T[0]}, 15, v{vL}
        v_lshrrev_b32 v{T[1]}, 4, v{vL}
        v_bfe_u32 v{T[2]}, v{vL}, 1, 3
        v_xor_b32 v{T[2]}, v{T[2]}, v{T[1]}
        v_lshlrev_b32 v{T[2]}, 4, v{T[2]}
        v_lshl_add_u32 v{T[2]}, v{T[0]}, 7, v{T[2]}
        s_and_b32 s{s_t0}, s{s_wj}, 1
        s_lshl_b32 s{s_t0}, s{s_t0}, 13
        v_add_u32 v{AX[0]}, s{s_t0}, v{T[2]}
        v_xor_b32 v{AX[1]}, 64, v{AX[0]}
        v_bfe_u32 v{T[2]}, v{vL}, 2, 2
        v_lshl_add_u32 v{T[3]}, v{T[1]}, 3, v{T[2]}
        v_lshlrev_b32 v{T[3]}, 8, v{T[3]}
        v_bfe_u32 v{T[2]}, v{vL}, 2, 3
        s_lshr_b32 s{s_t0}, s{s_wj}, 1
        s_lshl_b32 s{s_t0}, s{s_t0}, 2
        v_xor_b32 v{T[2]}, s{s_t0}, v{T[2]}
        v_lshl_add_u32 v{T[3]}, v{T[2]}, 5, v{T[3]}
        v_and_b32 v{T[2]}, 3, v{vL}
        v_lshl_add_u32 v{AW[0]}, v{T[2]}, 3, v{T[3]}
        v_xor_b32 v{AW[1]}, 32, v{AW[0]}
        v_xor_b32 v{AW[2]}, 64, v{AW[0]}
        v_xor_b32 v{AW[3]}, 96, v{AW[0]}
        """)

    def zero(base, n):
        for r in range(base, base + n, 2):
            a(f"v_mov_b64 {vr(r, 2)}, 0")

    def wreads(part, s, b):
        return [f"ds_read_b64_tr_b16 {vr(WF[b][c] + 2 * h, 2)}, v{AW[c]} offset:{part + s * 8192 + 1024 * h}"
                for c in range(4) for h in range(2)]

    def xreads(s):
        return [f"ds_read_b128 {vr(XF[s][t], 4)}, v{AX[s]} offset:{LX + 2048 * t}" for t in range(4)]

    def both(part, s, b):
        w, x = wreads(part, s, b), xreads(s)
        return w[:2] + x[:1] + w[2:] + x[1:]

    def gemm_body(name, halves, barrier, count_to):
        a(f".p2align 3\n{L(name)}:")
        for k, (xs, wb, acc, swapped, rd) in enumerate(halves):
            fill = [[] for _ in range(16)]
            if k == len(halves) - 1:
                if barrier:
                    if prof and cfg.get("trace", 0) == 3:
                        fill[0] += capture(lambda: stamp(a, prof, 25))
                    fill[0].append("s_barrier")
                fill[13].append(f"s_add_u32 s{s_c}, s{s_c}, 1")
                fill[14].append(f"s_cmp_lt_u32 s{s_c}, {count_to}")
            if k == len(halves) - 2:
                fill[8].append(f"s_add_u32 s{s_ring}, s{s_ring}, 1")
                fill[9].append(f"s_cmp_eq_u32 s{s_ring}, 3")
                fill[10].append(f"s_cselect_b32 s{s_xo}, {-2 * STG & 0xffffffff}, s{s_wstep}")
                fill[11].append(f"s_cselect_b32 s{s_ring}, 0, s{s_ring}")
            for m, x in enumerate(rd):
                fill[m].append(x)
            if k == len(halves) - 2:
                for m, r in enumerate(AX + AW):
                    fill[12 + m // 2].append(f"v_add_u32 v{r}, s{s_xo}, v{r}")
            fill[15].append("s_waitcnt lgkmcnt(0)")
            for m in range(16):
                tt, ci = m >> 2, m & 3
                wf, xf = vr(WF[wb][ci], 4), vr(XF[xs][tt], 4)
                A, B = (xf, wf) if swapped else (wf, xf)
                a(f"v_mfma_f32_16x16x32_bf16 {vr(gacc(tt, ci, acc), 4)}, {A}, {B}, {vr(gacc(tt, ci, acc), 4)}")
                a("\n".join(fill[m]))
        if 0 < cfg.get("trace", 0) < 3:
            stamp(a, prof, 20)
        a(f"s_cbranch_scc1 {L(name)}")

    def joint(name, sw):
        gemm_body(name, [(0, 0, GA, sw, wreads(LF, 0, 1)), (0, 1, GB, False, both(LW, 1, 0)),
                         (1, 0, GA, sw, wreads(LF, 1, 1)), (1, 1, GB, False, both(LW, 0, 0))], True, 7)

    def single(name, part, acc, sw, barrier, count_to):
        gemm_body(name, [(0, 0, acc, sw, both(part, 1, 1)), (1, 1, acc, sw, both(part, 0, 0))], barrier, count_to)

    def tile_addr(e_reg, e_lane, e_st):
        a(f"""
        v_and_b32 v{T[0]}, 15, v{vL}
        v_lshrrev_b32 v{T[1]}, 4, v{vL}
        s_lshr_b32 s{s_t0}, s{s_wj}, 1
        s_lshl_b32 s{s_t0}, s{s_t0}, 8
        s_add_u32 s{s_t0}, s{s_t0}, {L_NM}
        v_lshl_add_u32 v{e_reg}, v{T[1]}, 4, s{s_t0}
        s_and_b32 s{s_t1}, s{s_wj}, 1
        s_lshl_b32 s{s_t0}, s{s_t1}, 8
        s_add_u32 s{s_t0}, s{s_t0}, {L_NM}
        v_lshl_add_u32 v{e_lane}, v{T[0]}, 2, s{s_t0}
        v_bfrev_b32 v{T[1]}, v{T[1]}
        v_lshrrev_b32 v{T[1]}, 15, v{T[1]}
        v_lshl_add_u32 v{T[1]}, v{T[0]}, 4, v{T[1]}
        s_lshl_b32 s{s_t0}, s{s_rb}, 1
        s_add_u32 s{s_t0}, s{s_t0}, s{s_t1}
        s_lshl_b32 s{s_t0}, s{s_t0}, 10
        v_add_u32 v{e_st}, s{s_t0}, v{T[1]}
        """)

    def put_piece(src, addr, x, y):
        return f"buffer_store_dwordx4 {vr(src, 4)}, v{addr}, {WSD}, s{s_o[x]} offen offset:{256 * y} {STF}"

    def pack_tiles(acc, math, dst, addr=None, between=None):
        pend = []
        for tt in range(4):
            for cp in range(2):
                ob = dst(cp, tt)
                r0 = gacc(tt, 2 * cp, acc)
                math(tt, [(r0 + 2 * p, 8 * cp + 2 * p) for p in range(4)])
                a("\n".join(pend))
                for p in range(4):
                    a(f"v_cvt_pk_bf16_f32 v{ob + p}, v{r0 + 2 * p}, v{r0 + 2 * p + 1}")
                pend = [f"v_permlane16_swap_b32 v{ob}, v{ob + 2}", f"v_permlane16_swap_b32 v{ob + 1}, v{ob + 3}"]
                if addr:
                    pend.append(put_piece(ob, addr, cp, tt))
            if between:
                between(tt)
        a("s_nop 1\n" + "\n".join(pend))

    def key_perm(dst, src, t0, t1):
        a(f"""
        v_bfe_u32 v{t0}, v{src}, 2, 1
        v_bfe_u32 v{t1}, v{src}, 3, 2
        v_lshl_add_u32 v{t0}, v{t0}, 2, v{t1}
        v_and_b32 v{t1}, 3, v{src}
        v_lshl_add_u32 v{dst}, v{t0}, 2, v{t1}
        """)

    def v_feature(dst, row, t0, t1):
        swap23(a, dst, row, t0, t1)
        a(f"""
        s_lshl_b32 s{s_t0}, s{s_par}, 2
        s_mul_i32 s{s_t1}, s{s_par}, -16
        v_cmp_gt_u32 vcc, 16, v{row}
        v_add_u32 v{dst}, s{s_t0}, v{dst}
        v_add_u32 v{t0}, s{s_t1}, v{row}
        v_cndmask_b32 v{dst}, v{t0}, v{dst}, vcc
        """)

    def kv_addr(first_chunk):
        a(f"v_and_b32 v{T[0]}, 31, v{vL}\nv_lshrrev_b32 v{T[1]}, 5, v{vL}")
        key_perm(T[2], T[0], T[3], T[4])
        a(f"""
        v_lshlrev_b32 v{T[3]}, 4, v{T[2]}
        v_lshl_add_u32 v{vK}, v{T[1]}, 15, v{T[3]}
        v_add_u32 v{vK}, s{s_cm}, v{vK}
        v_lshl_add_u32 v{vR_}, v{T[1]}, 9, v{T[3]}
        v_add_u32 v{vR_}, s{s_cr}, v{vR_}
        v_cmp_le_u32 vcc, 20, v{vL}
        s_lshl_b32 s{s_t0}, s{s_wj}, 10
        s_andn2_b32 s{s_kc}, 1, s2
        s_mul_i32 s{s_kc}, s{s_kc}, {cfg['krot']}
        v_cndmask_b32 v{T[2]}, 0, 1, vcc
        v_mul_u32_u24 v{T[3]}, 20, v{T[2]}
        v_sub_u32 v{T[3]}, v{vL}, v{T[3]}
        v_mul_u32_u24 v{vV}, 10240, v{T[2]}
        """)
        v_feature(T[2], T[3], T[4], T[5])
        a(f"""
        s_mul_i32 s{s_t0}, s{s_head}, 320
        v_lshl_add_u32 v{vV}, v{T[2]}, 4, v{vV}
        v_add_u32 v{vV}, s{s_t0}, v{vV}
        """)

    def kv_dma(chunk):
        base = KV + ((chunk + 2) % 3) * SLOT
        a(f"""
        s_and_b32 s{s_t0}, s{s_kc}, 7
        s_lshl_b32 s{s_t0}, s{s_t0}, 2
        s_add_u32 s{s_t0}, s{s_t0}, s{s_wj}
        s_lshl_b32 s{s_ko}, s{s_t0}, 10
        s_add_u32 s{s_ko}, s{s_ko}, {C_K * CH}
        s_mul_i32 s{s_vo}, s{s_t0}, 81920
        s_add_u32 s{s_vo}, s{s_vo}, {WS_V}
        s_add_u32 s{s_kc}, s{s_kc}, 1
        s_lshl_b32 s{s_t0}, s{s_wj}, 11
        s_add_u32 m0, s{s_t0}, {base}
        s_lshl_b32 s{s_t1}, s{s_wj}, 10
        buffer_load_dwordx4 v{vK}, {WSD}, s{s_ko} offen sc1 lds
        s_add_u32 m0, s{s_t0}, {base + 512}
        s_mul_i32 s{s_t0}, s{s_wj}, {4 * 656}
        buffer_load_dwordx4 v{vK}, {WSD}, s{s_ko} offen offset:512 sc1 lds
        s_add_u32 m0, s{s_t1}, {base + OFF_R}
        s_nop 0
        buffer_load_dwordx4 v{vR_}, {WSD}, s{s_ko} offen sc1 lds
        s_mov_b32 exec_hi, 0xff
        """)
        for i in range(4):
            a(f"""
            s_add_u32 m0, s{s_t0}, {base + OFF_V + 656 * i}
            s_add_u32 s{s_t1}, s{s_vo}, {20480 * i}
            buffer_load_dwordx4 v{vV}, {WSD}, s{s_t1} offen sc1 lds
            """)
        a("s_mov_b32 exec_hi, -1")

    def ones_addr(dst, first_slot, nslots):
        a(f"""
        v_min_u32 v{dst}, {16 * nslots - 1}, v{vL}
        v_lshrrev_b32 v{T[3]}, 4, v{dst}
        v_and_b32 v{dst}, 15, v{dst}
        v_mul_u32_u24 v{T[3]}, {SLOT}, v{T[3]}
        v_mul_u32_u24 v{dst}, 656, v{dst}
        v_add_u32 v{dst}, v{dst}, v{T[3]}
        v_add_u32 v{dst}, {KV + first_slot * SLOT + OFF_V + 640}, v{dst}
        """)

    def ones_write(addr, tmp):
        for r in range(4):
            a(f"v_mov_b32 v{tmp + r}, 0x3f803f80")
        a(f"ds_write_b128 v{addr}, {vr(tmp, 4)}")

    def set_flag(base):
        a(f"""
        s_lshl_b32 s{s_t0}, s{s_fl}, 7
        s_add_u32 s{s_t0}, s{s_t0}, {base}
        v_mov_b32 v{T[4]}, 0
        v_mov_b32 v{T[3]}, s{s_tag}
        s_mov_b64 exec, 1
        buffer_store_dword v{T[3]}, v{T[4]}, {WSD}, s{s_t0} offen {FSF}
        s_mov_b64 exec, -1
        """)

    def flag_of_tile(dst, rh, unit):
        a(f"v_lshl_add_u32 v{dst}, v{unit}, 5, {rh}\nv_lshlrev_b32 v{dst}, 7, v{dst}")

    def head_unit(dst, sel):
        a(f"""
        s_mul_i32 s{s_t0}, s{s_head}, 20
        v_mad_u32_u24 v{dst}, v{sel}, 19, s{s_t0}
        v_lshrrev_b32 v{dst}, 6, v{dst}
        """)

    def wait_flags(name, base, offs, rounds=SPIN):
        a(f"""
        s_mov_b32 s{s_t0}, {base}
        s_mov_b32 s{s_spin}, {rounds}
        s_branch {L(name + '_ld')}
        {L(name)}:
        s_sleep {cfg['slp']}
        {L(name + '_ld')}:
        buffer_load_dword v{T[3]}, v{offs[0]}, {WSD}, s{s_t0} offen {PLF}
        """)
        if len(offs) > 1:
            a(f"buffer_load_dword v{T[4]}, v{offs[1]}, {WSD}, s{s_t0} offen {PLF}")
        a(f"s_sub_u32 s{s_spin}, s{s_spin}, 1\ns_waitcnt vmcnt(0)")
        if len(offs) == 1:
            a(f"v_mov_b32 v{T[4]}, v{T[3]}")
        retry(name)

    def retry(name):
        a(f"""
        v_cmp_ne_u32 vcc, s{s_tag}, v{T[3]}
        v_cmp_ne_u32 s[{s_t2}:{s_t2 + 1}], s{s_tag}, v{T[4]}
        s_cmp_eq_u32 s{s_spin}, 0
        s_cbranch_scc1 {L(name + '_done')}
        s_or_b64 vcc, vcc, s[{s_t2}:{s_t2 + 1}]
        s_cbranch_scc1 {L(name)}
        {L(name + '_done')}:
        """)

    def q_addr(vq, vqr):
        a(f"""
        v_and_b32 v{T[0]}, 31, v{vL}
        v_lshrrev_b32 v{T[1]}, 5, v{vL}
        s_lshl_b32 s{s_t0}, s{s_qb}, 2
        s_add_u32 s{s_t0}, s{s_t0}, s{s_wj}
        s_lshl_b32 s{s_t0}, s{s_t0}, 10
        s_lshl_b32 s{s_t1}, s{s_par}, 3
        s_add_u32 s{s_t2}, s{s_t0}, s{s_t1}
        v_lshlrev_b32 v{T[2]}, 4, v{T[0]}
        v_lshl_add_u32 v{vq}, v{T[1]}, 15, v{T[2]}
        v_add_u32 v{vq}, s{s_t0}, v{vq}
        v_add_u32 v{vqr}, s{s_t2}, v{T[2]}
        """)

    eR, eL, eS, hR, hL, hS = 17, 18, 19, 8, 9, 10
    IDX, AK0, AR0, AV0, VQ, VQR, AQ = 20, 21, 22, 23, 24, 25, 26
    AK, AR, AV = 27, 28, 29
    R = Regs(216)
    MX = [R.get(), R.get()]
    Q1 = [R.get(4), R.get(4)]
    Q2 = [[R.get(2), R.get(2)], [R.get(2), R.get(2)]]
    K1 = [R.get(4), R.get(4)]
    K2 = [R.get(2), R.get(2)]
    V0 = [R.get(4), R.get(4)]
    PH = 32
    SS, CM, TS, OO, V1 = [96, 160], [112, 128], 144, [176, 192], [208, 212]

    AC, SO = 72, 80
    a(f"""
    {L('g0')}:
    v_lshlrev_b32 v{SO}, 4, v{T[0]}
    """)
    srd(a, sWS, 22, WS_TOP)
    load_tag()
    frag_addr()
    zero(GA, 128)
    attn_ids()
    tile_addr(hR, hL, hS)
    a(f"""
    v_mov_b32 v{eR}, v{hR}
    v_mov_b32 v{eS}, v{hS}
    s_cmp_lt_u32 s{s_cg}, 10
    s_cbranch_scc1 {L('ad_j')}
    v_lshrrev_b32 v{T[1]}, 4, v{vL}
    s_lshl_b32 s{s_t0}, s{s_t1}, 8
    s_add_u32 s{s_t0}, s{s_t0}, {L_NM}
    v_lshl_add_u32 v{eR}, v{T[1]}, 4, s{s_t0}
    s_lshr_b32 s{s_t2}, s{s_wj}, 1
    s_lshl_b32 s{s_t0}, s{s_t2}, 8
    s_add_u32 s{s_t0}, s{s_t0}, {L_CSA}
    v_lshl_add_u32 v{eL}, v{T[0]}, 2, s{s_t0}
    s_sub_u32 s{s_t0}, s{s_cg}, 10
    s_lshl_b32 s{s_t0}, s{s_t0}, 1
    s_add_u32 s{s_t0}, s{s_t0}, s{s_t2}
    s_lshl_b32 s{s_t0}, s{s_t0}, 10
    v_mul_u32_u24 v{T[1]}, 10240, v{T[1]}
    v_lshl_add_u32 v{T[1]}, v{T[0]}, 4, v{T[1]}
    v_add_u32 v{eS}, s{s_t0}, v{T[1]}
    {L('ad_j')}:
    """)
    q_addr(VQ, VQR)
    a(f"""
    v_mov_b32 v{IDX}, 0xdddddddd
    v_lshlrev_b32 v{AK0}, 4, v{vL}
    s_mul_i32 s{s_t0}, s{s_wj}, 3072
    v_add_u32 v{AQ}, s{s_t0}, v{AK0}
    v_add_u32 v{AK0}, {KV}, v{AK0}
    v_add_u32 v{AR0}, s{s_t1}, v{AK0}
    v_mad_u32_u24 v{T[2]}, v{T[1]}, 20, v{T[0]}
    v_lshlrev_b32 v{T[2]}, 4, v{T[2]}
    v_add_u32 v{T[2]}, {KV}, v{T[2]}
    v_cmp_gt_u32 vcc, 20, v{T[0]}
    v_mov_b32 v{T[4]}, {LDS_OOB}
    v_and_b32 v{T[3]}, 27, v{T[0]}
    v_cndmask_b32 v{T[2]}, v{T[4]}, v{T[2]}, vcc
    v_cmp_eq_u32 vcc, 24, v{T[3]}
    v_mov_b32 v{T[4]}, {KV + 640}
    s_mov_b32 s{s_slot}, {2 * SLOT}
    v_cndmask_b32 v{AV0}, v{T[2]}, v{T[4]}, vcc
    v_add_u32 v{AK}, s{s_slot}, v{AK0}
    v_add_u32 v{AR}, s{s_slot}, v{AR0}
    v_add_u32 v{AV}, s{s_slot}, v{AV0}
    """)
    a(f"""
    s_add_u32 s{s_t0}, s{s_t0}, s{s_t1}
    v_lshl_add_u32 v30, v{T[0]}, 4, s{s_t0}
    v_mov_b32 v31, v30
    s_mov_b32 exec_hi, 0
    v_mov_b32 v31, {LDS_OOB}
    s_not_b64 exec, exec
    v_mov_b32 v30, {LDS_OOB}
    s_mov_b64 exec, -1
    """)
    a("v_mov_b32 v84, 0x3f803f80")
    a(f"""
    s_lshl_b32 s{s_o[2]}, s{s_cg}, 1
    s_lshr_b32 s{s_t0}, s{s_wj}, 1
    s_add_u32 s{s_o[2]}, s{s_o[2]}, s{s_t0}
    s_lshl1_add_u32 s{s_ho}, s{s_cf}, s{s_t0}
    s_lshl_b32 s{s_fl}, s{s_o[2]}, 4
    s_add_u32 s{s_fl}, s{s_fl}, s{s_rb}
    s_lshl_b32 s{s_fl}, s{s_fl}, 1
    s_and_b32 s{s_t0}, s{s_wj}, 1
    s_add_u32 s{s_fl}, s{s_fl}, s{s_t0}
    s_mov_b32 s{s_c}, 0
    s_mov_b32 s{s_ring}, 0
    s_mov_b32 s{s_wstep}, {STG}
    s_waitcnt lgkmcnt(0)
    s_add_u32 s{s_tag}, s{s_tag}, 1
    s_cmp_ge_u32 s{s_wj}, s{s_hook}
    s_cbranch_scc1 {L('st_m')}
    v_mov_b32 v{AC}, 0
    v_mov_b32 v{AC + 2}, 0
    v_mov_b32 v{AC + 1}, s{s_tag}
    v_mov_b32 v{AC + 3}, s{s_tag}
    """)
    for q in range(5):
        a(f"s_waitcnt vmcnt({4 - q})")
        for r in range(SD + 4 * q, SD + 4 * q + 4):
            a(f"v_dot2c_f32_bf16 v{AC}, v{r}, v84\nv_dot2c_f32_bf16 v{AC + 2}, v{r}, v{r}")
    a("s_nop 1")
    for sh in (8, 4, 2, 1):
        a(f"""
        s_nop 0
        v_add_f32_dpp v{AC}, v{AC}, v{AC} row_ror:{sh} row_mask:0xf bank_mask:0xf
        v_add_f32_dpp v{AC + 2}, v{AC + 2}, v{AC + 2} row_ror:{sh} row_mask:0xf bank_mask:0xf
        """)
    a(f"""
    v_mul_f32 v{AC}, {f32(-1.0 / D)}, v{AC}
    v_mul_f32 v{AC + 2}, {f32(1.0 / D)}, v{AC + 2}
    v_fma_f32 v{AC + 2}, -v{AC}, v{AC}, v{AC + 2}
    v_max_f32 v{AC + 2}, 0, v{AC + 2}
    v_add_f32 v{AC + 2}, {f32(1e-5)}, v{AC + 2}
    v_rsq_f32 v{AC + 2}, v{AC + 2}
    s_lshl_b32 s{s_t0}, s{s_wj}, 6
    s_add_u32 s{s_t0}, s{s_t0}, {L_RP}
    v_add_u32 v{T[2]}, s{s_t0}, v{SO}
    s_mov_b32 exec_lo, 0x00010001
    s_mov_b32 exec_hi, 0x00010001
    ds_write_b128 v{T[2]}, {vr(AC, 4)}
    s_mov_b64 exec, -1
    s_waitcnt lgkmcnt(0)
    {L('st_m')}:
    s_cmp_eq_u32 s{s_cg}, 15
    s_cbranch_scc1 {L('a_none')}
    """)
    stamp(a, prof, 1)
    a("s_barrier")
    stamp(a, prof, 2)
    a("\n".join(both(LW, 0, 0)))
    a(f"""
    s_cmp_ge_u32 s{s_cg}, 10
    s_waitcnt lgkmcnt(0)
    s_cbranch_scc0 {L('aN')}
    s_cmp_ge_u32 s{s_ho}, 27
    s_cbranch_scc1 {L('sV')}
    """)

    def lane_stats(dst, addr):
        for tt in range(4):
            a(f"ds_read2_b32 {vr(dst + 2 * tt, 2)}, v{addr} offset0:{16 * tt} offset1:{128 + 16 * tt}")

    def reg_stats(dst, addr, off):
        for i in range(4):
            a(f"ds_read_b128 {vr(dst + 4 * i, 4)}, v{addr} offset:{off + 64 * i}")

    def centre(cs, nr, tt, prs):
        for r, q in prs:
            a(f"v_pk_fma_f32 {vr(r, 2)}, {vr(cs + q, 2)}, {vr(nr + 2 * tt, 2)}, {vr(r, 2)} op_sel:[0,0,0] op_sel_hi:[1,0,1]")

    E0, E1 = 224, 240
    F0, F1, F2 = 96, 112, 128

    def qk_math(tt, prs):
        centre(E0, E1, tt, prs)
        for r, q in prs:
            a(f"v_pk_mul_f32 {vr(r, 2)}, {vr(r, 2)}, {vr(E1 + 2 * tt, 2)} op_sel:[0,1] op_sel_hi:[1,1]")

    def ffn_math(tt, prs):
        centre(F0, F2, tt, prs)
        for r, q in prs:
            a(f"v_pk_fma_f32 {vr(r, 2)}, {vr(r, 2)}, {vr(F2 + 2 * tt, 2)}, {vr(F1 + q, 2)} op_sel:[0,1,0] op_sel_hi:[1,1,1]")
        for r, q in prs:
            a(f"v_max_f32 v{r}, 0, v{r}\nv_max_f32 v{r + 1}, 0, v{r + 1}")
        for r, q in prs:
            a(f"v_pk_mul_f32 {vr(r, 2)}, {vr(r, 2)}, {vr(r, 2)}")

    joint("jV", True)
    single("sV", LW, GA, True, True, 10)
    CV = 80
    a(f"ds_read2_b32 {vr(CV, 2)}, v{eL} offset0:0 offset1:16\nds_read2_b32 {vr(CV + 2, 2)}, v{eL} offset0:32 offset1:48")
    reg_stats(E0, eR, 0)
    reg_stats(E1, eR, 512)
    a(f"""
    s_and_b32 s{s_t1}, s{s_wj}, 1
    s_lshl_b32 s{s_t0}, s{s_rb}, 1
    s_add_u32 s{s_t0}, s{s_t0}, s{s_t1}
    s_mul_i32 s{s_o[0]}, s{s_t0}, 81920
    s_add_u32 s{s_o[0]}, s{s_o[0]}, {WS_V}
    s_add_u32 s{s_o[1]}, s{s_o[0]}, 40960
    s_waitcnt lgkmcnt(0)
    """)
    a("\n".join(wreads(LF, 0, 0)))
    stamp(a, prof, 3)
    for kt in range(2):
        for ci in range(4):
            ob = 88 + 4 * (ci & 1)
            prs = [(gacc(tt, ci) + i, 4 * tt + i) for tt in (2 * kt, 2 * kt + 1) for i in (0, 2)]
            for r, q in prs:
                a(f"v_pk_fma_f32 {vr(r, 2)}, {vr(E0 + q, 2)}, {vr(CV + (ci & 2), 2)}, {vr(r, 2)} op_sel:[0,{ci & 1},0] op_sel_hi:[1,{ci & 1},1]")
            for r, q in prs:
                a(f"v_pk_mul_f32 {vr(r, 2)}, {vr(r, 2)}, {vr(E1 + q, 2)}")
            for p in range(4):
                a(f"v_cvt_pk_bf16_f32 v{ob + p}, v{prs[p][0]}, v{prs[p][0] + 1}")
            a(put_piece(ob, eS, kt, ci))
    a(f"""
    s_cmp_ge_u32 s{s_ho}, 27
    s_cbranch_scc0 {L('a_done')}
    {L('a_only')}:
    s_barrier
    s_waitcnt vmcnt(0) lgkmcnt(0)
    """)
    set_flag(WS_FA)
    a(f"""
    s_barrier
    {L('a_none')}:
    s_mov_b32 s{s_o[0]}, {WS_TOP}
    s_mov_b32 s{s_o[1]}, {WS_TOP}
    s_branch {L('a_go')}
    """)
    a(f"{L('aN')}:\ns_cmp_ge_u32 s{s_ho}, 27\ns_cbranch_scc1 {L('sN')}")
    joint("jN", False)
    single("sN", LW, GA, False, True, 10)
    reg_stats(E0, eR, L_CSA - L_NM)
    lane_stats(E1, hL)
    a(f"""
    s_lshl_b32 s{s_o[0]}, s{s_o[2]}, 18
    s_add_u32 s{s_o[1]}, s{s_o[0]}, {4 * CH}
    s_cmp_lt_u32 s{s_cg}, 5
    s_cselect_b32 s{s_t0}, {QSCALE}, 1.0
    s_waitcnt lgkmcnt(0)
    """)
    a("\n".join(wreads(LF, 0, 0)))
    stamp(a, prof, 3)
    for tt in range(4):
        a(f"v_mul_f32 v{E1 + 2 * tt + 1}, s{s_t0}, v{E1 + 2 * tt + 1}")
    pack_tiles(GA, qk_math, lambda cp, tt: 248 + 4 * cp, eS)
    a(f"s_cmp_ge_u32 s{s_ho}, 27\ns_cbranch_scc1 {L('a_only')}\n{L('a_done')}:")
    stamp(a, prof, 4)
    a("s_waitcnt lgkmcnt(0)\ns_barrier")
    reg_stats(F0, hR, L_CSB - L_NM)
    reg_stats(F1, hR, L_BI - L_NM)
    lane_stats(F2, hL)
    a(f"s_mov_b32 s{s_hook}, {12 if cfg['flag'] else 13}\ns_waitcnt lgkmcnt(3)")
    single("sF", LF, GB, False, False, f"s{s_hook}")
    if cfg["flag"]:
        a(f"s_cmp_eq_u32 s{s_c}, 13\ns_cbranch_scc1 {L('eF')}")
    a("s_waitcnt vmcnt(0)")
    set_flag(WS_FA)
    stamp(a, prof, 5)
    a("s_barrier")
    if cfg["flag"]:
        a(f"s_branch {L('sF')}\n{L('eF')}:")
    stamp(a, prof, 12)
    pack_tiles(GB, ffn_math, lambda cp, tt: PH + 16 * cp + 4 * tt)
    a(f"""
    s_add_u32 s{s_o[0]}, s{s_ho}, 20
    s_lshl_b32 s{s_o[0]}, s{s_o[0]}, 18
    s_add_u32 s{s_o[1]}, s{s_o[0]}, {4 * CH}
    {L('a_go')}:
    s_and_b32 s{s_fl}, s{s_fl}, 31
    s_lshl_b32 s{s_t0}, s{s_ho}, 5
    s_add_u32 s{s_fl}, s{s_fl}, s{s_t0}
    s_setprio 1
    s_mov_b32 s{s_c}, 0
    """)
    zero(SS[1], 16 + 32 + 8)
    stamp(a, prof, 13)
    hput = [put_piece(PH + 4 * k, hS, k >> 2, k & 3) for k in range(8)]
    if cfg["hpos"] == 0:
        a("s_barrier")
        stamp(a, prof, 18)
        a("\n".join(hput))
        stamp(a, prof, 19)
        hput = [""] * 8
    a("s_barrier")
    stamp(a, prof, 6)
    for ab in range(2):
        a(f"ds_read_b128 {vr(Q1[ab], 4)}, v{AQ} offset:{L_Q + 1024 * ab}")
        for par in range(2):
            a(f"ds_read_b64 {vr(Q2[ab][par], 2)}, v{30 + par} offset:{L_Q + 2048 + 512 * ab}")

    def rdK1(t):
        return f"ds_read_b128 {vr(K1[t & 1], 4)}, v{AK} offset:{(t & 7) * 1024}"

    def rdK2(p):
        return f"ds_read_b64 {vr(K2[p & 1], 2)}, v{AR} offset:{OFF_R + (p & 3) * 1024}"

    def rdV(j, t):
        return f"ds_read_b128 {vr((V0, V1)[j][t & 1], 4)}, v{AV} offset:{OFF_V + ((t & 7) * 2 + j) * 656}"

    def qk1(dst, ab, t, c):
        return f"v_mfma_f32_32x32x16_bf16 {vr(dst, 16)}, {vr(K1[t & 1], 4)}, {vr(Q1[ab], 4)}, {c}"

    def qk2(dst, ab, t):
        return f"v_mfma_f32_32x32x8_bf16 {vr(dst, 16)}, {vr(K2[(t >> 1) & 1], 2)}, {vr(Q2[ab][t & 1], 2)}, {vr(dst, 16)}"

    def pv(ab, j, t):
        return f"v_smfmac_f32_32x32x32_bf16 {vr(OO[ab], 16)}, {vr((V0, V1)[j][t & 1], 4)}, {vr(SS[ab] + 8 * j, 8)}, v{IDX}"

    def row_max(dst, bufs):
        regs = [b + i for b in bufs for i in range(16)]
        a(f"v_max3_f32 v{dst}, v{regs[0]}, v{regs[1]}, v{regs[2]}")
        rest = regs[3:]
        while len(rest) >= 2:
            a(f"v_max3_f32 v{dst}, v{dst}, v{rest[0]}, v{rest[1]}")
            rest = rest[2:]
        if rest:
            a(f"v_max_f32 v{dst}, v{dst}, v{rest[0]}")

    def set_shift(ab, shift):
        m = MX[ab]
        a(f"""
        v_mov_b32 v{T[2]}, v{m}
        s_nop 1
        v_permlane32_swap_b32 v{m}, v{T[2]}
        v_max_f32 v{m}, v{m}, v{T[2]}
        v_sub_f32 v{CM[ab]}, {f32(-shift) if shift else 0}, v{m}
        v_mov_b32 v{CM[ab] + 1}, v{CM[ab]}
        """)
        for i in range(2, 16, 2):
            a(f"v_mov_b64 {vr(CM[ab] + i, 2)}, {vr(CM[ab], 2)}")

    a("\n".join([rdK1(0), rdK2(0), rdK1(1), rdV(0, 0), rdV(1, 0)]))
    a("s_waitcnt lgkmcnt(0)" if prof is True else "s_waitcnt lgkmcnt(2)")
    est = {(0, 0): SS[0], (0, 1): CM[0], (1, 0): TS, (1, 1): CM[1]}
    assert cfg["hpos"] == 0
    for t in range(2):
        a(qk1(est[0, t], 0, t, 0) + "\n" + qk2(est[0, t], 0, t))
    a(qk1(est[1, 0], 1, 0, 0) + "\ns_nop 7\ns_nop 0")
    work = capture(lambda: (row_max(MX[0], [SS[0], CM[0]]), set_shift(0, SHIFT)))
    for k, x in enumerate((qk2(est[1, 0], 1, 0), qk1(est[1, 1], 1, 1, 0), qk2(est[1, 1], 1, 1))):
        a(x + "\n" + "\n".join(work[6 * k:6 * k + 6]))
    a("\n".join(work[18:]) + "\ns_nop 1")
    work = capture(lambda: (row_max(MX[1], [TS, CM[1]]), set_shift(1, SHIFT)))
    a(qk1(SS[0], 0, 0, vr(CM[0], 16)) + "\n" + "\n".join(work[:7]))
    a(qk2(SS[0], 0, 0) + "\n" + "\n".join(work[7:]))
    a("s_waitcnt lgkmcnt(0)")

    def slot_events(ab, t):
        o = 1 - ab
        tp = t - 1 if ab == 0 else t
        tn = t if ab == 0 else t + 1
        e = [("i", f"v_exp_f32 v{SS[ab] + i}, v{SS[ab] + i}") for i in range(16)]
        ev = []
        if ab == 0 and t % 8 == 7:
            ev += [("i", f"v_add_u32 v{AV}, s{s_slot}, v{AV0}")]
        ev += e[0:2]
        ev += [("use", ("V1", tp)), ("i", pv(o, 1, tp)), ("wait",)]
        if ab == 1 and t % 8 == cfg["hk"]:
            ev += [("i", f"s_cmp_eq_u32 s{s_c}, 0")]
        if ab == 0 and t % 8 == 6:
            ev += [("i", "s_barrier")]
        if ab == 0 and t % 8 == 4:
            ev += [("i", f"s_add_u32 s{s_slot}, s{s_slot}, {SLOT}")]
        if ab == 1 and t % 8 == 4:
            ev += [("i", f"s_cmp_eq_u32 s{s_slot}, {3 * SLOT}")]
        if ab == 1 and t % 8 == 6:
            ev += [("i", f"s_add_u32 s{s_c}, s{s_c}, 1")]
        if ab == 0:
            ev += [("rd", rdV(1, t + 1), ("V1", t + 1))]
        ev += e[2:5]
        if ab == 0 and t % 8 == 6:
            ev += [("i", f"v_add_u32 v{AK}, s{s_slot}, v{AK0}"), ("i", f"v_add_u32 v{AR}, s{s_slot}, v{AR0}")]
        ev += [("use", ("K1", tn)), ("i", qk1(SS[o], o, tn, vr(CM[o], 16))), ("wait",)]
        if ab == 0:
            ev += [("rd", rdK1(t + 2), ("K1", t + 2))]
        else:
            ev += [("rd", rdV(0, t + 1), ("V0", t + 1))]
        ev += e[5:8]
        ev += [("use", ("K2", tn >> 1)), ("i", qk2(SS[o], o, tn))]
        ev += e[8:12]
        ev += [("use", ("V0", t)), ("i", pv(ab, 0, t)), ("wait",)]
        if ab == 1 and t % 8 == 4:
            ev += [("i", f"s_cselect_b32 s{s_slot}, 0, s{s_slot}")]
        if ab == 1 and t % 8 == cfg["hk"]:
            ev += [("i", f"s_cbranch_scc1 {L('hk')}\n{L('hk_r')}:")]
        if ab == 1 and t % 8 == 7:
            ev += [("i", f"s_cmp_lt_u32 s{s_c}, 8")]
        if ab == 1 and t % 2 == 0:
            ev += [("rd", rdK2(t // 2 + 1), ("K2", t // 2 + 1))]
        ev += e[12:16]
        return ev

    evs = []
    for t in range(24):
        for ab in range(2):
            evs += [(t, x) for x in slot_events(ab, t)]
    issue_idx = {}
    n = 0
    for t, x in evs:
        if x[0] == "rd":
            issue_idx[x[2]] = n
            n += 1
    tail4 = "\n".join(f"v_exp_f32 v{SS[1] + i}, v{SS[1] + i}" for i in range(12, 16))
    a(f"s_branch {L('aent')}\n.p2align 3\n{L('aloop')}:\n{tail4}\n{L('aent')}:")
    n, have = 0, -1
    for k, (t, x) in enumerate(evs):
        emit = 8 <= t < 16
        if x[0] == "rd":
            n += 1
            if emit:
                a(x[1])
        elif x[0] == "i":
            if emit:
                a(x[1])
        elif x[0] == "wait" and t >= 4:
            need = -1
            for t2, y in evs[k + 1:]:
                if y[0] == "wait":
                    break
                if y[0] == "use":
                    assert issue_idx[y[1]] < n, (t, y)
                    need = max(need, issue_idx[y[1]])
            if need > have and emit:
                a(f"s_waitcnt lgkmcnt({n - 1 - need})")
            have = max(have, need)
    del a.lines[-4:]
    if 0 < cfg.get("trace", 0) < 4:
        stamp(a, prof, 23)
        a("s_waitcnt lgkmcnt(0)")
    a(f"s_cbranch_scc1 {L('aloop')}")
    a(tail4)

    def magnitude(ab):
        o, t = OO[ab], T[2 + ab]
        a(f"v_maximum3_f32 v{t}, |v{o}|, |v{o + 1}|, |v{o + 2}|")
        for i in (3, 5, 7, 9):
            a(f"v_maximum3_f32 v{t}, v{t}, |v{o + i}|, |v{o + i + 1}|")
        a(f"v_maximum3_f32 v{t}, v{t}, |v{o + 11}|, |v{o + 11}|")

    def normalise(ab, guard):
        o = OO[ab]
        for p in range(6):
            a(f"v_pk_mul_f32 {vr(o + 2 * p, 2)}, {vr(o + 2 * p, 2)}, {vr(o + 12, 2)} op_sel:[0,1] op_sel_hi:[1,1]")
        for p in range(6):
            a(f"v_cvt_pk_bf16_f32 v{CM[ab] + p}, v{o + 2 * p}, v{o + 2 * p + 1}")
        if guard:
            for p in (1, 3, 5):
                a(f"v_min_u32 v{CM[ab] + p}, -2, v{CM[ab] + p}")

    a(f"v_rcp_f32 v{OO[0] + 13}, v{OO[0] + 12}\ns_waitcnt lgkmcnt(0)")
    a(pv(1, 1, 7))
    stamp(a, prof, 7)
    a(f"""
    s_barrier
    s_mov_b32 s{s_t0}, {f32(2.0 ** 126)}
    s_mov_b32 s{s_t1}, {f32(2.0 ** (-7 - SHIFT))}
    """)
    magnitude(0)
    normalise(0, False)
    a(f"v_rcp_f32 v{OO[1] + 13}, v{OO[1] + 12}")
    magnitude(1)
    a(f"""
    v_maximum3_f32 v{T[4]}, v{T[2]}, v{T[3]}, v{OO[0] + 12}
    v_min_f32 v{T[2]}, v{T[2]}, v{T[3]}
    v_maximum3_f32 v{T[4]}, v{T[4]}, v{OO[1] + 12}, v{OO[1] + 12}
    v_cmp_le_f32 vcc, s{s_t1}, v{T[2]}
    v_cmp_gt_f32 s[{s_t2}:{s_t2 + 1}], s{s_t0}, v{T[4]}
    s_add_u32 s{s_t0}, s{s_cm}, {C_O * CH}
    s_add_u32 s{s_t1}, s{s_cr}, {C_O * CH}
    s_and_b64 vcc, vcc, s[{s_t2}:{s_t2 + 1}]
    s_cmp_eq_u64 vcc, exec
    """)
    a(f"s_branch {L('slow')}" if force_fallback else f"s_cbranch_scc0 {L('slow')}")

    def put_out(ab):
        a(f"""
        buffer_store_dwordx4 {vr(CM[ab], 4)}, v{VQ}, {WSD}, s{s_t0} offen offset:{512 * ab} sc1
        s_mov_b32 exec_hi, 0
        buffer_store_dwordx2 {vr(CM[ab] + 4, 2)}, v{VQR}, {WSD}, s{s_t1} offen offset:{512 * ab} sc1
        s_mov_b32 exec_hi, -1
        """)

    put_out(0)
    normalise(1, False)
    a(f"{L('norm')}:")
    put_out(1)
    stamp(a, prof, 17)
    a("s_barrier")
    stamp(a, prof, 8)
    a(f"s_branch {L('dump')}" if prof else "s_endpgm")

    a(f"{L('hk')}:\ns_waitcnt vmcnt(0)")
    set_flag(WS_FH)
    a(f"s_branch {L('hk_r')}")

    a(f"{L('slow')}:")
    GR, GV = AR, AV
    a(f"v_and_b32 v{T[0]}, 31, v{vL}\nv_lshrrev_b32 v{T[1]}, 5, v{vL}")
    key_perm(T[2], T[0], T[3], T[4])
    a(f"""
    s_lshl_b32 s{s_t0}, s{s_par}, 3
    s_add_u32 s{s_t0}, s{s_t0}, s{s_cr}
    v_lshl_add_u32 v{GR}, v{T[2]}, 4, s{s_t0}
    v_lshl_add_u32 v{vK}, v{T[2]}, 4, s{s_cm}
    v_lshl_add_u32 v{vK}, v{T[1]}, 15, v{vK}
    """)
    v_feature(T[2], T[0], T[3], T[4])
    a(f"""
    s_mul_i32 s{s_t0}, s{s_head}, 320
    v_mul_u32_u24 v{T[4]}, 10240, v{T[1]}
    v_lshl_add_u32 v{T[2]}, v{T[2]}, 4, v{T[4]}
    v_add_u32 v{GV}, s{s_t0}, v{T[2]}
    v_mov_b32 v{MX[0]}, 0xff800000
    v_mov_b32 v{MX[1]}, 0xff800000
    s_mov_b32 s{s_ko}, {C_K * CH}
    {L('slow1')}:
    buffer_load_dwordx4 {vr(K1[0], 4)}, v{vK}, {WSD}, s{s_ko} offen sc1
    buffer_load_dwordx2 {vr(K2[0], 2)}, v{GR}, {WSD}, s{s_ko} offen sc1
    s_add_u32 s{s_ko}, s{s_ko}, 512
    s_waitcnt vmcnt(0)
    """)
    for ab in range(2):
        a(qk1(SS[ab], ab, 0, 0))
        a(qk2(SS[ab], ab, 0))
    a("s_nop 7\ns_nop 3")
    for ab in range(2):
        for i in range(0, 16, 2):
            a(f"v_max3_f32 v{MX[ab]}, v{MX[ab]}, v{SS[ab] + i}, v{SS[ab] + i + 1}")
    a(f"s_cmp_lt_u32 s{s_ko}, {(C_K + 1) * CH}\ns_cbranch_scc1 {L('slow1')}")
    for ab in range(2):
        set_shift(ab, 0)
    zero(OO[0], 32)
    for r in range(4):
        a(f"v_mov_b32 v{V0[0] + r}, 0x3f803f80\nv_mov_b32 v{V1[0] + r}, 0x3f803f80")
    a(f"""
    s_mov_b32 s{s_ko}, {C_K * CH}
    s_mov_b32 s{s_vo}, {WS_V}
    {L('slow2')}:
    buffer_load_dwordx4 {vr(K1[0], 4)}, v{vK}, {WSD}, s{s_ko} offen sc1
    buffer_load_dwordx2 {vr(K2[0], 2)}, v{GR}, {WSD}, s{s_ko} offen sc1
    s_mov_b32 exec_lo, 0xfffff
    s_mov_b32 exec_hi, 0xfffff
    buffer_load_dwordx4 {vr(V0[0], 4)}, v{GV}, {WSD}, s{s_vo} offen sc1
    s_add_u32 s{s_vo}, s{s_vo}, 20480
    buffer_load_dwordx4 {vr(V1[0], 4)}, v{GV}, {WSD}, s{s_vo} offen sc1
    s_mov_b64 exec, -1
    s_add_u32 s{s_vo}, s{s_vo}, 20480
    s_add_u32 s{s_ko}, s{s_ko}, 512
    s_waitcnt vmcnt(0)
    """)
    for ab in range(2):
        a(qk1(SS[ab], ab, 0, vr(CM[ab], 16)))
        a(qk2(SS[ab], ab, 0))
    a("s_nop 7\ns_nop 3")
    for ab in range(2):
        for i in range(16):
            a(f"v_exp_f32 v{SS[ab] + i}, v{SS[ab] + i}")
    a("s_nop 1")
    for ab in range(2):
        a(pv(ab, 0, 0))
        a(pv(ab, 1, 0))
    a(f"""
    s_cmp_lt_u32 s{s_ko}, {(C_K + 1) * CH}
    s_cbranch_scc1 {L('slow2')}
    s_nop 7
    s_nop 3
    v_rcp_f32 v{OO[0] + 13}, v{OO[0] + 12}
    v_rcp_f32 v{OO[1] + 13}, v{OO[1] + 12}
    s_add_u32 s{s_t0}, s{s_cm}, {C_O * CH}
    s_add_u32 s{s_t1}, s{s_cr}, {C_O * CH}
    """)
    normalise(0, True)
    normalise(1, True)
    put_out(0)
    a(f"s_branch {L('norm')}")

    a(f"""
    {L('near')}:
    s_lshl_b32 s{s_t0}, s{s_rb}, 3
    s_add_u32 s{s_t0}, s{s_t0}, s{s_w}
    s_mul_i32 s{s_t1}, s{s_t0}, {135 * 128}
    s_mul_i32 s{s_t0}, s{s_t0}, {50 * 128}
    v_lshlrev_b32 v{T[2]}, 7, v{vL}
    s_mov_b64 s[{sA}:{sA + 1}], s[16:17]
    s_mov_b32 s{sA + 2}, {F * D * 2}
    s_mov_b32 exec_hi, 0x1fff
    """)
    for i in range(3):
        a(f"buffer_load_dword v{88 + i}, v{T[2]}, s[{sA}:{sA + 3}], s{s_t1} offen\ns_add_u32 s{s_t1}, s{s_t1}, {45 * 128}")
    a(f"""
    s_mov_b64 s[{sA}:{sA + 1}], s[8:9]
    s_mov_b32 s{sA + 2}, {D * D * 2}
    s_mov_b32 exec_hi, 0x3ffff
    buffer_load_dword v91, v{T[2]}, s[{sA}:{sA + 3}], s{s_t0} offen
    s_mov_b32 exec_hi, -1
    s_branch {L('p_go')}
    """)

    g0_lines, a.lines = a.lines, []
    MK, G = 240, 96
    VX, VW, VG = [11, 12, 13, 14], [15, 16, 17, 18], [19, 20, 21, 22]
    gR, gL, gA, gB = 24, 25, 26, 27
    fC, mQ, mQR, mQD, fB, FK, FO, one, pH, pO = range(246, 256)

    def w_addr(VF, stride, grp):
        a(f"""
        v_lshrrev_b32 v{T[0]}, 4, v{vL}
        v_lshlrev_b32 v{T[1]}, 1, v{T[0]}
        v_xor_b32 v{T[1]}, v{T[1]}, v{vL}
        v_and_b32 v{T[1]}, 15, v{T[1]}
        s_lshl_b32 s{s_t1}, s{grp}, 8
        s_mul_i32 s{s_t0}, s{s_wj}, {16 * stride}
        s_add_u32 s{s_t1}, s{s_t1}, s{s_t0}
        v_mul_u32_u24 v{T[0]}, {stride}, v{T[0]}
        v_add_u32 v{T[0]}, s{s_t1}, v{T[0]}
        v_lshl_add_u32 v{VF[0]}, v{T[1]}, 4, v{T[0]}
        v_xor_b32 v{T[1]}, 8, v{T[1]}
        v_lshl_add_u32 v{VF[2]}, v{T[1]}, 4, v{T[0]}
        v_add_u32 v{VF[1]}, {4 * stride - 1024}, v{VF[0]}
        v_add_u32 v{VF[3]}, {3 * (4 * stride - 1024)}, v{VF[2]}
        v_add_u32 v{VF[2]}, {2 * (4 * stride - 1024)}, v{VF[2]}
        """)

    TF, TA, TV = 32, [52, 53], [54, 55, 56, 57, 58]
    has_block = f"s_cmp_lt_u32 s{s_tt}, 74"

    def block_addr():
        a(f"""
        s_and_b32 s{s_tt}, s2, 31
        s_lshl_b32 s{s_t0}, s{s_wj}, 5
        s_add_u32 s{s_tt}, s{s_tt}, s{s_t0}
        s_mul_i32 s{s_c}, s{s_wj}, 5120
        s_add_u32 s{s_c}, s{s_c}, {STG + LW}
        """)
        for i in range(5):
            a(f"""
            v_add_u32 v{T[2]}, {64 * i}, v{vL}
            v_mul_u32_u24 v{T[3]}, 6554, v{T[2]}
            v_lshrrev_b32 v{T[3]}, 16, v{T[3]}
            v_mul_u32_u24 v{T[3]}, {1280 - 160}, v{T[3]}
            v_lshl_add_u32 v{TV[i]}, v{T[2]}, 4, v{T[3]}
            """)
        a(f"""
        v_lshrrev_b32 v{T[2]}, 4, v{vL}
        v_bfe_u32 v{T[3]}, v{vL}, 2, 2
        v_lshl_add_u32 v{T[2]}, v{T[2]}, 3, v{T[3]}
        v_mul_u32_u24 v{T[2]}, 160, v{T[2]}
        v_add_u32 v{T[2]}, s{s_c}, v{T[2]}
        v_and_b32 v{T[3]}, 3, v{vL}
        v_lshl_add_u32 v{TA[0]}, v{T[3]}, 4, v{T[2]}
        v_lshl_add_u32 v{TA[1]}, v{T[3]}, 3, v{T[2]}
        """)

    def block_fetch():
        a(f"""
        s_cmp_lt_u32 s{s_tt}, 54
        s_cselect_b64 s[{sA}:{sA + 1}], s[16:17], s[8:9]
        s_mov_b32 s{sA + 2}, {F * D * 2}
        s_cselect_b32 s{sA + 2}, s{sA + 2}, {D * D * 2}
        s_cselect_b32 s{s_t1}, 0, 54
        s_sub_u32 s{s_t0}, s{s_tt}, s{s_t1}
        s_mul_i32 s{s_t0}, s{s_t0}, {32 * 1280}
        s_mul_i32 s{s_t1}, s{s_qb}, 160
        s_add_u32 s{s_t0}, s{s_t0}, s{s_t1}
        """)
        for i in range(5):
            a(f"s_add_u32 m0, s{s_c}, {i * 1024}\ns_nop 0")
            a(f"buffer_load_dwordx4 v{TV[i]}, s[{sA}:{sA + 3}], s{s_t0} offen lds")

    def block_turn():
        a("s_waitcnt vmcnt(0)")
        for c in range(5):
            va, off = (TA[0], 64 * (c >> 1) + 8 * (c & 1)) if c < 4 else (TA[1], 128)
            for h in range(2):
                a(f"ds_read_b64_tr_b16 {vr(TF + 4 * c + 2 * h, 2)}, v{va} offset:{off + 640 * h}")
        a("s_waitcnt lgkmcnt(0)")

    def block_put():
        a(f"""
        s_mul_i32 s{s_t0}, s{s_tt}, {KS_ROW}
        s_mul_i32 s{s_t1}, s{s_qb}, 5120
        s_add_u32 s{s_t0}, s{s_t0}, s{s_t1}
        s_add_u32 s{s_t0}, s{s_t0}, {WS_WT}
        s_add_u32 s{s_t1}, s{s_t0}, 4096
        v_lshlrev_b32 v{T[2]}, 4, v{vL}
        """)
        for c in range(5):
            a(f"buffer_store_dwordx4 {vr(TF + 4 * c, 4)}, v{T[2]}, {WSD}, s{(s_t0, s_t1)[c >> 2]} offen offset:{1024 * (c & 3)} sc1")

    def later_addr():
        attn_ids()
        block_addr()
        kv_addr(0)
        ones_addr(one, 0, 3)
        a(f"v_and_b32 v{T[0]}, 1, v{vL}")
        head_unit(T[1], T[0])
        a(f"""
        v_lshrrev_b32 v{T[0]}, 1, v{vL}
        v_min_u32 v{T[0]}, 2, v{T[0]}
        v_mad_u32_u24 v{T[1]}, v{T[0]}, 10, v{T[1]}
        v_mov_b32 v{T[2]}, s{s_kc}
        s_mov_b64 exec, 3
        v_mov_b32 v{T[2]}, s{s_qb}
        s_mov_b64 exec, -1
        v_lshl_add_u32 v{T[2]}, v{T[2]}, 2, s{s_wj}
        """)
        flag_of_tile(FO, f"v{T[2]}", T[1])
        a(f"v_and_b32 v{T[0]}, 1, v{vL}")
        head_unit(T[1], T[0])
        a(f"""
        v_bfe_u32 v{T[0]}, v{vL}, 1, 1
        v_mad_u32_u24 v{T[1]}, v{T[0]}, 10, v{T[1]}
        v_add_u32 v{T[1]}, 10, v{T[1]}
        v_and_b32 v{T[0]}, 28, v{vL}
        v_add_u32 v{T[0]}, s{s_wj}, v{T[0]}
        """)
        flag_of_tile(FK, f"v{T[0]}", T[1])
        q_addr(mQ, mQR)
        a(f"""
        v_lshl_add_u32 v{mQD}, v{vL}, 4, s{s_t0}
        s_lshl_b32 s{s_t0}, s{s_head}, 2
        s_add_u32 s{s_t0}, s{s_t0}, s{s_wj}
        v_and_b32 v{T[2]}, 15, v{vL}
        v_lshl_add_u32 v{T[2]}, s{s_t0}, 4, v{T[2]}
        v_lshrrev_b32 v{T[3]}, 4, v{vL}
        v_lshlrev_b32 v{pH}, 15, v{T[3]}
        v_lshl_add_u32 v{pH}, v{T[2]}, 4, v{pH}
        v_mul_u32_u24 v{pO}, 1280, v{T[2]}
        """)
        a(f"""
        v_min_u32 v{T[3]}, 26, v{T[0]}
        v_lshl_add_u32 v{fC}, v{T[3]}, 5, s{s_head}
        v_lshl_add_u32 v{T[3]}, v{T[0]}, 2, s{s_wj}
        v_min_u32 v{T[3]}, 53, v{T[3]}
        v_subrev_u32 v{T[4]}, 16, v{T[0]}
        v_min_u32 v{T[4]}, 4, v{T[4]}
        v_lshl_add_u32 v{T[4]}, v{T[4]}, 2, s{s_wj}
        s_lshl_b32 s{s_t0}, s{s_qb}, 7
        s_add_u32 s{s_t0}, s{s_t0}, 1024
        s_add_u32 s{s_fl}, s{s_t0}, s{s_tt}
        s_add_u32 s{s_t1}, s{s_t0}, 54
        s_mov_b32 exec_lo, 0
        v_add_u32 v{fC}, s{s_t0}, v{T[3]}
        s_mov_b32 exec_hi, 0xffff0000
        v_add_u32 v{fC}, s{s_t1}, v{T[4]}
        s_mov_b64 exec, -1
        v_lshlrev_b32 v{fC}, 7, v{fC}
        s_lshr_b32 s{s_t0}, s{s_head}, 2
        v_lshl_add_u32 v{fB}, s{s_t0}, 5, v{T[0]}
        v_lshlrev_b32 v{fB}, 7, v{fB}
        """)

    def boundary(wait=None):
        if wait is not None:
            a(f"s_waitcnt vmcnt({wait})")
        if 1 < cfg.get("trace", 0) < 4:
            stamp(a, prof, 21)
        a("s_barrier")

    def ask_tag():
        srd(a, sWS, 22, WS_TOP)
        load_tag()

    def take_tag():
        a(f"s_waitcnt lgkmcnt(0)\ns_add_u32 s{s_tag}, s{s_tag}, 1")

    def split(ops, n):
        k = -(-len(ops) // n)
        return [ops[i * k:(i + 1) * k] for i in range(n)]

    def feed(c, which="xwf", mix=()):
        mix = list(mix)
        per = -(-len(mix) // max(4 * len(which), 1))
        for key, part, va, sd, step in (("x", LX, VX, sX, 128), ("w", LW, VW, sW, 64 * 3840), ("f", LF, VG, sB, 64 * 3456)):
            if key in which:
                half = {"x": s_xo, "w": s_wstep, "f": s_ho}[key]
                a(f"s_add_u32 m0, s{s_ring}, {(c % 3) * STG + part}")
                if cfg["rot"]:
                    a(f"s_mov_b32 s{s_wo}, s{half}\ns_add_u32 s{half}, s{half}, {step}\n"
                      f"s_cmp_eq_u32 s{half}, {10 * step}\ns_cselect_b32 s{half}, 0, s{half}")
                else:
                    a(f"s_add_u32 s{s_wo}, s{half}, {c * step}" if c < 5 else f"s_sub_u32 s{s_wo}, {c * step}, s{half}")
                for i in range(4):
                    a(f"buffer_load_dwordx4 v{va[i]}, s[{sd}:{sd + 3}], s{s_wo} offen offset:{1024 * i} lds")
                    a("\n".join(mix[:per]))
                    mix = mix[per:]

    def only(name, cond, fn):
        a(f"{cond}\ns_cbranch_scc0 {L(name)}")
        fn()
        a(f"{L(name)}:")

    feeding = f"s_cmp_lt_u32 s{s_cg}, 15"
    a(f"""
    s_lshl_b32 s{s_ring}, s{s_wj}, 12
    s_mul_i32 s{s_t3}, s{s_t3}, 5
    """)
    if cfg["rot"]:
        a(f"""
        s_mul_i32 s{s_t3}, s{s_cg}, {cfg['rot'] >> 4}
        s_mul_i32 s{s_t0}, s{s_rb}, {cfg['rot'] & 15}
        s_add_u32 s{s_t3}, s{s_t3}, s{s_t0}
        s_mul_i32 s{s_t0}, s{s_t3}, 6554
        s_lshr_b32 s{s_t0}, s{s_t0}, 16
        s_mul_i32 s{s_t0}, s{s_t0}, 10
        s_sub_u32 s{s_t3}, s{s_t3}, s{s_t0}
        """)
    a(f"""
    s_mul_i32 s{s_xo}, s{s_t3}, 128
    s_mul_i32 s{s_wstep}, s{s_t3}, {64 * 3840}
    s_mul_i32 s{s_ho}, s{s_t3}, {64 * 3456}
    v_lshrrev_b32 v{T[2]}, 4, v{vL}
    v_xor_b32 v{T[2]}, v{T[2]}, v{T[1]}
    s_lshl_b32 s{s_t1}, s{s_rb}, 2
    s_add_u32 s{s_t1}, s{s_t1}, s{s_wj}
    s_mul_i32 s{s_t1}, s{s_t1}, {32 * 1280}
    v_mul_u32_u24 v{T[3]}, 1280, v{T[0]}
    v_add_u32 v{T[3]}, s{s_t1}, v{T[3]}
    v_lshl_add_u32 v{VX[0]}, v{T[2]}, 4, v{T[3]}
    v_xor_b32 v{T[2]}, 4, v{T[2]}
    v_lshl_add_u32 v{VX[1]}, v{T[2]}, 4, v{T[3]}
    v_add_u32 v{VX[2]}, {2 * (10240 - 1024)}, v{VX[0]}
    v_add_u32 v{VX[3]}, {3 * (10240 - 1024)}, v{VX[1]}
    v_add_u32 v{VX[1]}, {10240 - 1024}, v{VX[1]}
    v_and_b32 v{SO}, 48, v{vL}
    v_lshl_add_u32 v{SO}, v{T[1]}, 6, v{SO}
    """)
    srd(a, sX, 4, S * D * 2)

    def touch():
        a(f"""
        s_getpc_b64 s[{sA}:{sA + 1}]
        {L('pc')}:
        s_sub_u32 s{sA}, s{sA}, {L('pc')}-{label}
        s_subb_u32 s{sA + 1}, s{sA + 1}, 0
        s_mov_b32 s{sA + 2}, {L('end')}-{label}
        s_lshr_b32 s{s_t0}, s2, 3
        s_lshl_b32 s{s_t0}, s{s_t0}, 10
        v_lshlrev_b32 v{T[2]}, 7, v{vL}
        s_mov_b64 exec, 0xff
        buffer_load_dword v226, v{T[2]}, s[{sA}:{sA + 3}], s{s_t0} offen
        s_mov_b64 exec, -1
        """)

    if cfg["touch"] & 1:
        only("tc", f"s_cmp_eq_u32 s{s_wj}, 0", touch)
    srd(a, sA, 14, F * 2)
    a(f"""
    s_lshl_b32 s{s_t2}, s{s_cf}, 8
    v_lshlrev_b32 v{T[2]}, 2, v{vL}
    buffer_load_dword v28, v{T[2]}, s[{sA}:{sA + 3}], s{s_t2} offen
    """)
    ask_tag()
    w_addr(VW, 3840, s_cg)
    w_addr(VG, 3456, s_cf)
    srd(a, sW, 6, D * 3 * D * 2)
    srd(a, sB, 12, D * F * 2)
    a(f"""
    s_cmp_lt_u32 s{s_cf}, 14
    s_cselect_b32 s{sB + 2}, s{sB + 2}, 0
    s_lshl_b32 s{s_o[1]}, s{s_o[1]}, 9
    s_add_u32 s{s_o[0]}, s{s_o[0]}, s{s_o[1]}
    s_add_u32 s{s_o[0]}, s{s_o[0]}, {WS_CP}
    s_and_b32 s{s_t1}, s{s_wj}, 1
    v_lshl_add_u32 v{gL}, s{s_t1}, 6, v{vL}
    s_lshl_b32 s{s_t3}, s{s_rb}, 11
    v_lshl_add_u32 v{gR}, v{gL}, 4, s{s_t3}
    s_add_u32 s{s_t2}, s{s_cf}, 15
    s_cmp_eq_u32 s{s_t1}, 0
    s_cselect_b32 s{s_t1}, s{s_cg}, s{s_t2}
    s_lshl_b32 s{s_t1}, s{s_t1}, 6
    v_add_u32 v{gA}, s{s_t1}, v{vL}
    v_min_u32 v{gA}, 1823, v{gA}
    v_lshlrev_b32 v{gA}, 4, v{gA}
    s_mov_b32 s{s_spin}, {SPIN}
    v_lshrrev_b32 v23, 1, v{SO}
    v_add_u32 v23, {L_CP}, v23
    """)
    if cfg["early"]:
        later_addr()
    take_tag()
    stamp(a, prof, 44)

    def sums():
        for r in range(20):
            c = AC + 2 * (r & 3)
            if r < 4:
                a(f"v_lshlrev_b32 v{c}, 16, v{SD + r}\nv_and_b32 v{c + 1}, 0xffff0000, v{SD + r}")
            else:
                lo, hi = T[2 + 2 * (r & 1)], T[3 + 2 * (r & 1)]
                a(f"v_lshlrev_b32 v{lo}, 16, v{SD + r}\nv_and_b32 v{hi}, 0xffff0000, v{SD + r}\n"
                  f"v_add_f32 v{c}, v{c}, v{lo}\nv_add_f32 v{c + 1}, v{c + 1}, v{hi}")
        a(f"s_lshl_b32 s{s_t0}, s{s_wj}, 8\nv_add_u32 v{T[2]}, s{s_t0}, v23")
        for i in range(4):
            a(f"v_permlane32_swap_b32 v{AC + i}, v{AC + 4 + i}")
        for i in range(4):
            a(f"v_add_f32 v{AC + i}, v{AC + i}, v{AC + 4 + i}")
        a("s_nop 1")
        for i in range(2):
            a(f"v_permlane16_swap_b32 v{AC + i}, v{AC + 2 + i}")
        a(f"v_add_f32 v{AC}, v{AC}, v{AC + 2}\nv_add_f32 v{AC + 1}, v{AC + 1}, v{AC + 3}\ns_nop 1")
        for r in (AC, AC + 1):
            a(f"v_add_f32_dpp v{r}, v{r}, v{r} row_ror:8 row_mask:0xf bank_mask:0xf")
        a(f"ds_write_b64 v{T[2]}, {vr(AC, 2)}")

    def publish():
        for i in range(4):
            a(f"ds_read_b64 {vr(AC + 2 * i, 2)}, v23 offset:{256 * i}")
        a(f"""
        s_waitcnt lgkmcnt(0)
        v_add_f32 v{AC}, v{AC}, v{AC + 2}
        v_add_f32 v{AC + 2}, v{AC + 1}, v{AC + 3}
        v_add_f32 v{AC + 4}, v{AC + 4}, v{AC + 6}
        v_add_f32 v{AC + 5}, v{AC + 5}, v{AC + 7}
        v_add_f32 v{AC}, v{AC}, v{AC + 4}
        v_add_f32 v{AC + 2}, v{AC + 2}, v{AC + 5}
        v_mov_b32 v{AC + 1}, s{s_tag}
        v_mov_b32 v{AC + 3}, s{s_tag}
        s_mov_b32 exec_lo, 0x00ff00ff
        s_mov_b32 exec_hi, 0x00ff00ff
        buffer_store_dwordx4 {vr(AC, 4)}, v{SO}, {WSD}, s{s_o[0]} offen sc1
        s_mov_b64 exec, -1
        """)

    def publish_rows():
        a(f"""
        s_lshl4_add_u32 s{s_t0}, s{s_rb}, s{s_cg}
        s_lshl_b32 s{s_t0}, s{s_t0}, 7
        s_add_u32 s{s_t0}, s{s_t0}, {WS_RS}
        v_lshlrev_b32 v{T[2]}, 4, v{vL}
        v_add_u32 v{T[3]}, {L_RP}, v{T[2]}
        s_cmp_eq_u32 s{s_cg}, 14
        s_movk_i32 s{s_t1}, 0xff
        s_cselect_b32 exec_lo, 0xffff, s{s_t1}
        s_mov_b32 exec_hi, 0
        ds_read_b128 {vr(AC, 4)}, v{T[3]}
        s_waitcnt lgkmcnt(0)
        buffer_store_dwordx4 {vr(AC, 4)}, v{T[2]}, {WSD}, s{s_t0} offen sc1
        s_mov_b64 exec, -1
        """)

    def gather_loads():
        a(f"s_mov_b32 s{s_slot}, {WS_RS}\nbuffer_load_dwordx4 {vr(G + 16, 4)}, v{gR}, {WSD}, s{s_slot} offen sc1")
        a(f"s_mov_b32 s{s_slot}, {WS_CP}")
        for p in range(4):
            a(f"buffer_load_dwordx4 {vr(G + 4 * p, 4)}, v{gA}, {WSD}, s{s_slot} offen sc1")
            a(f"s_add_u32 s{s_slot}, s{s_slot}, {CP_ROW}")

    def gather_put():
        a(f"s_branch {L('ga_chk')}\n{L('ga')}:")
        gather_loads()
        a(f"s_sub_u32 s{s_spin}, s{s_spin}, 1\ns_waitcnt vmcnt(0)\n{L('ga_chk')}:")
        a(f"v_min_u32 v{T[3]}, v{G + 1}, v{G + 3}\nv_max_u32 v{T[4]}, v{G + 1}, v{G + 3}")
        for p in range(1, 5):
            b = G + 4 * p
            a(f"v_min3_u32 v{T[3]}, v{T[3]}, v{b + 1}, v{b + 3}\nv_max3_u32 v{T[4]}, v{T[4]}, v{b + 1}, v{b + 3}")
        retry("ga")
        a(f"v_add_f32 v{G + 1}, v{G + 2}, v{G + 6}\nv_add_f32 v{G}, v{G}, v{G + 4}")
        for p in range(2, 4):
            b = G + 4 * p
            a(f"v_add_f32 v{G}, v{G}, v{b}\nv_add_f32 v{G + 1}, v{G + 1}, v{b + 2}")
        a(f"""
        s_mov_b32 s{s_t0}, {L_NM}
        v_lshlrev_b32 v{G + 2}, 16, v28
        v_and_b32 v{G + 3}, 0xffff0000, v28
        v_lshl_add_u32 v{T[3]}, v{gL}, 2, s{s_t0}
        v_lshl_add_u32 v{T[4]}, v{gL}, 3, s{s_t0}
        v_lshl_add_u32 v{T[5]}, v{vL}, 3, s{s_t0}
        ds_write2_b32 v{T[3]}, v{G + 16}, v{G + 18} offset0:0 offset1:128
        ds_write_b64 v{T[4]}, {vr(G, 2)} offset:{L_CSA - L_NM}
        ds_write_b64 v{T[5]}, {vr(G + 2, 2)} offset:{L_BI - L_NM}
        s_waitcnt lgkmcnt(0)
        """)

    def mark_unwritten():
        a(f"""
        s_add_u32 s{s_ko}, s{s_cm}, {C_O * CH}
        s_add_u32 s{s_vo}, s{s_cr}, {C_O * CH}
        v_mov_b64 {vr(MK, 2)}, -1
        v_mov_b64 {vr(MK + 2, 2)}, -1
        buffer_store_dwordx4 {vr(MK, 4)}, v{mQ}, {WSD}, s{s_ko} offen sc1
        buffer_store_dwordx4 {vr(MK, 4)}, v{mQ}, {WSD}, s{s_ko} offen offset:512 sc1
        s_mov_b32 exec_hi, 0
        buffer_store_dwordx2 {vr(MK, 2)}, v{mQR}, {WSD}, s{s_vo} offen sc1
        buffer_store_dwordx2 {vr(MK, 2)}, v{mQR}, {WSD}, s{s_vo} offen offset:512 sc1
        s_mov_b32 exec_hi, -1
        """)

    a(f"{feeding}\ns_cbranch_scc1 {L('g1_on')}")
    if not cfg["early"]:
        later_addr()
    early_mark = cfg["mk"] < 10
    if early_mark:
        mark_unwritten()
    only("bf0", has_block, block_fetch)
    only("bt0", has_block, block_turn)
    a(f"s_branch {L('b_last')}\n{L('g1_on')}:")
    feed(0)
    stamp(a, prof, 43)
    pre = "xwf"[:cfg["pre"]]
    feed(1, pre)
    boundary(4 * len(pre))
    a(f"s_setprio {cfg['fprio']}")
    sm = capture(sums)
    LT = cfg["late"]

    def late_loads():
        for q in range(5):
            a(f"buffer_load_dwordx4 {vr(SD + 4 * q, 4)}, v29, s[88:91], s10 offen\ns_add_u32 s10, s10, s11")

    if LT == 1:
        late_loads()
    k = len(sm) * (3 - len(pre)) // 3
    feed(1, "xwf"[len(pre):], [] if LT else sm[:k])
    feed(2, pre, [] if LT else sm[k:])
    only("pr", f"s_cmp_eq_u32 s{s_wj}, 2", publish_rows)
    a("s_waitcnt lgkmcnt(0)")
    late = [[]] + split(capture(later_addr), 4)
    if LT:
        late = [[]] * (LT - 1) + [sm + ["s_waitcnt lgkmcnt(0)"]] + split(capture(later_addr), 5 - LT)
    gath = f"s_cmp_lt_u32 s{s_wj}, 2"
    for c in range(10):
        if c - cfg["gat"] in (1, 2):
            a(f"{gath}\ns_cbranch_scc1 {L('bw' + str(c))}\ns_waitcnt vmcnt(12)\n{L('bw' + str(c))}:")
            boundary(17)
            assert c <= 5
        else:
            boundary({0: 4 * len(pre), 6: 8, 7: 8, 8: 4, 9: None}.get(c, 12))
        if c == LT - 2:
            late_loads()
        if c == 0:
            feed(2, "xwf"[len(pre):])
        if c < 5:
            feed(c + 3, mix=late[c])
        elif c < 7:
            feed(c + 3, "xw")
        elif c < 9:
            feed(c + 1, "f")
        if c == LT:
            only("pb", f"s_cmp_eq_u32 s{s_wj}, s{s_hook}", publish)
        if c == cfg["mk"]:
            mark_unwritten()
        if c == 8:
            only("bf", has_block, block_fetch)
        if c == cfg["gat"]:
            only("gf", gath, gather_loads)
        if c == cfg["gat"] + 3:
            only("gp", gath, gather_put)
    a(f"{has_block}\ns_cbranch_scc1 {L('bwa')}\ns_waitcnt vmcnt({4 * early_mark})\n{L('bwa')}:")
    boundary(5 + 4 * early_mark)
    only("bt", has_block, block_turn)
    boundary()

    def first_fetch():
        a(f"""
        s_mul_i32 s{s_t0}, s{s_wj}, 3072
        s_add_u32 m0, s{s_t0}, {L_Q}
        s_nop 0
        buffer_load_dwordx4 v{mQ}, {WSD}, s{s_cm} offen sc1 lds
        s_add_u32 m0, s{s_t0}, {L_Q + 512}
        s_nop 0
        buffer_load_dwordx4 v{mQ}, {WSD}, s{s_cm} offen offset:512 sc1 lds
        s_add_u32 m0, s{s_t0}, {L_Q + 2048}
        s_nop 0
        buffer_load_dwordx4 v{mQD}, {WSD}, s{s_cr} offen sc1 lds
        """)
        kv_dma(0)

    a(f"{L('b_last')}:\ns_setprio 2")
    stamp(a, prof, 40)
    ones_write(one, 20)
    wait_flags("wa", WS_FA, [FO] if cfg["lean"] else [FO, FK])
    stamp(a, prof, 41)
    if prof is True:
        a(f"s_sub_u32 s{s_t0}, {SPIN}, s{s_spin}\ns_add_u32 s96, s{s_t0}, 100")
    first_fetch()
    if cfg["hpos"] == 0:
        stamp(a, prof, 4)
        if cfg["lean"]:
            a(f"s_mov_b32 s{s_t0}, {WS_FA}\nbuffer_load_dword v{T[3]}, v{FK}, {WSD}, s{s_t0} offen sc1")
        a(f"s_barrier\ns_waitcnt vmcnt({cfg['lean']}) lgkmcnt(0)")
        stamp(a, prof, 3)
        a("s_barrier")
        if cfg["lean"]:
            a(f"s_waitcnt vmcnt(0)\nv_cmp_ne_u32 vcc, s{s_tag}, v{T[3]}\ns_nop 3\ns_cbranch_vccz {L('wk_done')}")
            wait_flags("wk", WS_FA, [FK])
        kv_dma(1)
        only("bp", has_block, block_put)
    else:
        kv_dma(1)
        stamp(a, prof, 4)
        only("bp", has_block, block_put)
        a(f"{has_block}\ns_cbranch_scc1 {L('bq')}\ns_waitcnt vmcnt(7)\n{L('bq')}:\ns_waitcnt vmcnt(12) lgkmcnt(0)")
        stamp(a, prof, 3)
        a("s_barrier")

    vH, vW, vO, vB, vLn = [11, 12, 13, 14], [15, 16], [17, 18], [T[0], T[1]], 19
    ACC = 20
    LB = [100 + 36 * i for i in range(3)]
    WR, XR, BR = 180, 220, 230
    sH, sT = sW, sA
    a(f"""
    v_mov_b32 v{vH[0]}, v{pH}
    v_xor_b32 v{vH[1]}, 256, v{pH}
    v_xor_b32 v{vH[2]}, 512, v{pH}
    v_xor_b32 v{vH[3]}, 768, v{pH}
    v_lshlrev_b32 v{vLn}, 4, v{vL}
    s_mul_i32 s{s_t0}, s{s_qb}, 5120
    v_add_u32 v{vW[0]}, s{s_t0}, v{vLn}
    v_add_u32 v{vW[1]}, 4096, v{vW[0]}
    s_mul_i32 s{s_t0}, s{s_qb}, 160
    v_lshrrev_b32 v{T[2]}, 4, v{vL}
    v_lshl_add_u32 v{vB[0]}, v{T[2]}, 4, s{s_t0}
    v_lshl_add_u32 v{vB[1]}, v{T[2]}, 3, s{s_t0}
    v_add_u32 v{vO[0]}, v{pO}, v{vB[0]}
    v_add_u32 v{vO[1]}, v{pO}, v{vB[1]}
    s_add_u32 s{sH}, s22, {C_H * CH}
    s_addc_u32 s{sH + 1}, s23, 0
    s_mov_b32 s{sH + 2}, {216 * CH}
    s_mov_b32 s{sH + 3}, 0x00020000
    s_add_u32 s{sT}, s22, {WS_WT}
    s_addc_u32 s{sT + 1}, s23, 0
    s_mov_b32 s{sT + 2}, {54 * KS_ROW}
    s_mov_b32 s{sT + 3}, 0x00020000
    s_lshl_b32 s{s_ho}, s{s_wj}, 17
    s_mul_i32 s{s_wo}, s{s_wj}, {KS_ROW}
    s_add_u32 s{s_xo}, s{s_wo}, {WS_WT + 54 * KS_ROW}
    s_mul_i32 s{s_ring}, s{s_wj}, 5120
    s_waitcnt vmcnt(0)
    """)
    only("fw", has_block, lambda: set_flag(WS_FH))
    kv_dma(2)
    a(f"s_mov_b32 s{s_fl}, s2\ns_barrier")
    stamp(a, prof, 5)

    def w_frag(c):
        return (vW[0], 1024 * c) if c < 4 else (vW[1], 0)

    def ffn_loads(b):
        for t in range(4):
            a(f"buffer_load_dwordx4 {vr(LB[b] + 4 * t, 4)}, v{vH[t]}, s[{sH}:{sH + 3}], s{s_ho} offen sc1")
        for c in range(5):
            va, off = w_frag(c)
            a(f"buffer_load_dwordx4 {vr(LB[b] + 16 + 4 * c, 4)}, v{va}, s[{sT}:{sT + 3}], s{s_wo} offen offset:{off} sc1")
        a(f"s_add_u32 s{s_ho}, s{s_ho}, {16 * CH}\ns_add_u32 s{s_wo}, s{s_wo}, {4 * KS_ROW}")

    def wo_stage(i):
        for c in range(5):
            va, off = w_frag(c)
            if c in (0, 4):
                a(f"s_add_u32 m0, s{s_ring}, {L_WO + i * 20480 + 1024 * c}\ns_nop 0")
            a(f"buffer_load_dwordx4 v{va}, {WSD}, s{s_xo} offen offset:{off} sc1 lds")
        a(f"s_add_u32 s{s_xo}, s{s_xo}, {4 * KS_ROW}")

    queue = []

    def need(tag):
        if tag not in queue:
            return
        last = max(i for i, q in enumerate(queue) if q == tag)
        a(f"s_waitcnt vmcnt({len(queue) - 1 - last})")
        del queue[:last + 1]

    def send(r):
        a(f"s_add_u32 s{s_t0}, s{s_ring}, {L_EX[r]}\nv_add_u32 v{T[2]}, s{s_t0}, v{vLn}")
        for c in range(5):
            a(f"ds_write_b128 v{T[2]}, {vr(ACC + 20 * r + 4 * c, 4)} offset:{1024 * c}")

    wait_flags("wb", WS_FH, [fC], cfg["fbr"])
    a(f"s_cbranch_vccnz {L('fb_late')}")
    stamp(a, prof, 6)
    ffn_loads(0)
    a(f"s_barrier\ns_branch {L('fb_go')}\n{L('fb_late')}:\ns_barrier")
    wait_flags("wc", WS_FH, [fC])
    stamp(a, prof, 16)
    ffn_loads(0)
    a(f"{L('fb_go')}:\ns_setprio 0")
    assert not early_mark
    queue += [("L", 0)] * 9

    def vm_units(fn, tag):
        out, cur = [], []
        for u in capture(fn):
            cur.append(u)
            n = u.count("buffer_load")
            if n:
                out.append(("\n".join(cur), [tag] * n))
                cur = []
        out[-1] = (out[-1][0] + "\n" + "\n".join(cur), out[-1][1])
        return out

    cuts = [cfg["cut0"] + cfg["cutd"] * k for k in range(5)]
    side = vm_units(lambda: kv_dma(3), ("D", 2)) + vm_units(lambda: wo_stage(0), ("W", 2))
    iv, m = 2, 0
    for step in range(14):
        b = step % 3
        main = vm_units(lambda: ffn_loads((step + 2) % 3), ("L", step + 2)) if step + 2 < 14 else []
        if step == 0:
            ffn_loads(1)
            queue += [("L", 1)] * 9
        need(("L", step))
        if step == 13:
            assert not side and iv == 7
            a(f"s_cmp_lt_u32 s{s_wj}, 2\ns_cbranch_scc0 {L('m13')}")
        for k in range(20):
            t, c = divmod(k, 5)
            d = vr(ACC + 20 * t + 4 * c, 4)
            a(f"v_mfma_f32_16x16x32_bf16 {d}, {vr(LB[b] + 16 + 4 * c, 4)}, {vr(LB[b] + 4 * t, 4)}, {d if step else 0}")
            m += 1
            src = main if (main and (k & 1 or not side)) else side
            if src:
                text, tags = src.pop(0)
                a(text)
                queue += tags
            if iv < 7 and m == cuts[iv - 2]:
                assert not side
                need(("D", iv))
                if cfg.get("trace"):
                    stamp(a, prof, 24)
                a("s_barrier")
                iv += 1
                if iv == cfg["mk"] - 10:
                    mark_unwritten()
                    queue += [("M", 0)] * 4
                if iv == cfg["mk"] - 9:
                    assert ("M", 0) not in queue
                    only("fb", f"s_cmp_eq_u32 s{s_wj}, 0", lambda: set_flag(WS_FB))
                if iv < 7:
                    side = vm_units(lambda: kv_dma(iv + 1), ("D", iv))
                if iv < 6:
                    side += vm_units(lambda: wo_stage(iv - 2), ("W", iv))
                if iv == 7:
                    only("w5", f"s_cmp_lt_u32 s{s_wj}, 2", lambda: wo_stage(4))
        assert not main
    a(f"{L('m13')}:")
    srd(a, sX, 4, S * D * 2)
    srd(a, sA, 18, D * 2)
    srd(a, sB, 20, S * D * 2)
    upper = f"s_cmp_ge_u32 s{s_wj}, 2"

    def wo_last():
        for c in range(5):
            va, off = w_frag(c)
            a(f"buffer_load_dwordx4 {vr(WR + 4 * c, 4)}, v{va}, {WSD}, s{s_xo} offen offset:{off} sc1")

    def wo_last_put():
        a(f"s_add_u32 s{s_t0}, s{s_ring}, {L_WO + 4 * 20480}\nv_add_u32 v{T[2]}, s{s_t0}, v{vLn}")
        for c in range(5):
            a(f"ds_write_b128 v{T[2]}, {vr(WR + 4 * c, 4)} offset:{1024 * c}")

    only("wl", upper, wo_last)
    for dst, va, sd in ((XR, vO, sX), (BR, vB, sA)):
        a(f"""
        buffer_load_dwordx4 {vr(dst, 4)}, v{va[0]}, s[{sd}:{sd + 3}], 0 offen
        buffer_load_dwordx4 {vr(dst + 4, 4)}, v{va[0]}, s[{sd}:{sd + 3}], 0 offen offset:64
        buffer_load_dwordx2 {vr(dst + 8, 2)}, v{va[1]}, s[{sd}:{sd + 3}], 0 offen offset:128
        """)
    NW, AH = 7, cfg["ahead"]
    AC2, WG, OF = 40, 60, 200
    assert OF + 4 * (AH + 1) <= 256

    def wo_read(i, c):
        va, off = (vLn, L_WO + 5120 * i) if i < 10 else (T[2], 5120 * (i - 10))
        return f"ds_read_b128 {vr(WG + 20 * (i % NW) + 4 * c, 4)}, v{va} offset:{off + 1024 * c}"

    def o_load(i):
        a(f"s_mov_b32 s{s_t0}, {(C_O + 4 * i) * CH}")
        a(f"buffer_load_dwordx4 {vr(OF + 4 * (i % (AH + 1)), 4)}, v{vH[0]}, {WSD}, s{s_t0} offen sc1")

    def prime(steps):
        for i in steps:
            a("s_waitcnt lgkmcnt(10)\n" + "\n".join(wo_read(i, c) for c in range(5)))

    prime(range(2, 6))
    wait_flags("wm", WS_FB, [fB])
    a(f"""
    s_cmp_lg_u32 s2, 0
    s_cbranch_scc1 {L('we_done')}
    s_lshl_b32 s{s_t0}, s{s_wj}, 6
    v_add_u32 v{T[5]}, s{s_t0}, v{vL}
    v_lshlrev_b32 v{T[5]}, 7, v{T[5]}
    """)
    wait_flags("we", WS_FB, [T[5]])
    a(f"""
    v_bfe_u32 v{T[2]}, v{vL}, 1, 4
    v_mul_u32_u24 v{T[2]}, 5, v{T[2]}
    v_and_b32 v{T[3]}, 1, v{vL}
    s_cmp_eq_u32 s{s_wj}, 2
    s_cselect_b32 s{s_t1}, 8, {3 * CH}
    s_cselect_b32 s{s_t2}, 4, 12
    s_cmp_eq_u32 s{s_wj}, 3
    s_cselect_b32 s{s_t0}, 0, s{s_wj}
    v_add_u32 v{T[2]}, s{s_t0}, v{T[2]}
    v_lshlrev_b32 v{T[2]}, 15, v{T[2]}
    v_mad_u32_u24 v{T[0]}, v{T[3]}, s{s_t1}, v{T[2]}
    s_lshl_b32 s{s_t0}, s{s_head}, 3
    s_add_u32 s{s_t0}, s{s_t0}, s{s_qb}
    s_lshl_b32 s{s_t0}, s{s_t0}, 7
    s_add_u32 s{s_t0}, s{s_t0}, s{s_t2}
    s_add_u32 s{s_ko}, s{s_t0}, {C_O * CH}
    s_mov_b32 s{s_spin}, {SPIN}
    """)
    a("s_waitcnt lgkmcnt(0)")
    if cfg.get("trace"):
        stamp(a, prof, 24)
    a("s_barrier")
    send(1)
    send(2)
    stamp(a, prof, 7)
    a("s_barrier")
    a("s_waitcnt vmcnt(0) lgkmcnt(0)")
    send(3)
    only("wp", upper, wo_last_put)
    a("s_waitcnt lgkmcnt(0)\ns_barrier")
    stamp(a, prof, 8)
    a(f"""
    s_cmp_lg_u32 s2, 0
    s_cbranch_scc1 {L('tag_kept')}
    v_mov_b32 v{T[4]}, 0
    v_mov_b32 v{T[5]}, s{s_tag}
    s_mov_b32 s{s_t0}, {WS_E}
    buffer_store_dword v{T[5]}, v{T[4]}, {WSD}, s{s_t0} offen sc1
    {L('tag_kept')}:
    """)
    for r in range(1, 4):
        a(f"""
        s_xor_b32 s{s_t0}, s{s_wj}, {r}
        s_mul_i32 s{s_t0}, s{s_t0}, 5120
        s_add_u32 s{s_t0}, s{s_t0}, {L_EX[r]}
        v_add_u32 v{T[2]}, s{s_t0}, v{vLn}
        """)
        for c in range(5):
            a(f"ds_read_b128 {vr(ACC + 20 * r + 4 * c, 4)}, v{T[2]} offset:{1024 * c}")
    for src in (XR, BR):
        for i in range(10):
            t = T[2 + 2 * (i & 1)]
            a(f"v_lshlrev_b32 v{t}, 16, v{src + i}\nv_and_b32 v{t + 1}, 0xffff0000, v{src + i}")
            a(f"v_pk_add_f32 {vr(ACC + 2 * i, 2)}, {vr(ACC + 2 * i, 2)}, {vr(t, 2)}")
    for r in range(1, 4):
        a(f"s_waitcnt lgkmcnt({5 * (3 - r)})")
        for i in range(0, 20, 2):
            a(f"v_pk_add_f32 {vr(ACC + i, 2)}, {vr(ACC + i, 2)}, {vr(ACC + 20 * r + i, 2)}")
    a(f"v_add_u32 v{T[2]}, {L_WO + 10 * 5120}, v{vLn}")

    look = f"buffer_load_dword v{T[3]}, v{T[0]}, {WSD}, s{s_ko} offen sc1"
    a(f"{L('first')}:\ns_mov_b32 exec_hi, 0\n{look}\ns_mov_b32 exec_hi, -1")
    prime((0, 1, 6))
    a(f"""
    v_mov_b32 v{T[4]}, 0
    s_mov_b32 exec_hi, 0
    s_branch {L('seen')}
    {L('poll')}:
    {look}
    {L('seen')}:
    s_sub_u32 s{s_spin}, s{s_spin}, 1
    s_cmp_lt_i32 s{s_spin}, 0
    s_waitcnt vmcnt(0) lgkmcnt(0)
    v_cmp_eq_u32 vcc, -1, v{T[3]}
    s_cbranch_scc1 {L('got')}
    s_nop 2
    s_cbranch_vccnz {L('poll')}
    {L('got')}:
    s_mov_b32 exec_hi, -1
    """)
    if prof is True:
        stamp(a, prof, 50)
        a(f"s_sub_u32 s96, {SPIN + 200}, s{s_spin}\ns_waitcnt lgkmcnt(0)")
    for i in range(AH):
        o_load(i)
    todo = [(i, c) for i in range(NW, 20) for c in range(5)]
    issued = 0
    for i in range(20):
        lg = f" lgkmcnt({min(15, issued - 5 * (i - NW + 1))})" if i >= NW else ""
        assert i < NW or issued >= 5 * (i - NW + 1)
        a(f"s_waitcnt vmcnt({min(20, i + AH) - i - 1}){lg}")
        o = OF + 4 * (i % (AH + 1))
        for c in range(5):
            d = vr(AC2 + 4 * c, 4)
            a(f"v_mfma_f32_16x16x32_bf16 {d}, {vr(WG + 20 * (i % NW) + 4 * c, 4)}, {vr(o, 4)}, {d if i else 0}")
            if c == 0:
                if i + AH < 20:
                    o_load(i + AH)
            elif todo and (todo[0][0] - NW, todo[0][1]) <= (i, c):
                a(wo_read(*todo.pop(0)))
                issued += 1
            if c == 4:
                a(f"v_max3_u32 v{T[4]}, v{T[4]}, v{o + 1}, v{o + 3}")
    assert not todo
    stamp(a, prof, 9)
    a(f"""
    v_cmp_eq_u32 vcc, -1, v{T[4]}
    s_cmp_lt_i32 s{s_spin}, 0
    s_cbranch_scc1 {L('sum')}
    s_nop 1
    s_cbranch_vccnz {L('again')}
    {L('sum')}:
    s_nop 3
    """)
    for i in range(0, 20, 2):
        a(f"v_pk_add_f32 {vr(ACC + i, 2)}, {vr(ACC + i, 2)}, {vr(AC2 + i, 2)}")
    for i in range(10):
        a(f"v_cvt_pk_bf16_f32 v{XR + i}, v{ACC + 2 * i}, v{ACC + 2 * i + 1}")
    a(f"""
    buffer_store_dwordx4 {vr(XR, 4)}, v{vO[0]}, s[{sB}:{sB + 3}], 0 offen {OSF}
    buffer_store_dwordx4 {vr(XR + 4, 4)}, v{vO[0]}, s[{sB}:{sB + 3}], 0 offen offset:64 {OSF}
    buffer_store_dwordx2 {vr(XR + 8, 2)}, v{vO[1]}, s[{sB}:{sB + 3}], 0 offen offset:128 {OSF}
    """)
    if prof:
        a(f"{L('dump')}:\ns_waitcnt vmcnt(0)")
        stamp(a, prof, 10)
        stamp(a, prof, 11)
        a(f"""
        s_memrealtime s[78:79]
        s_waitcnt lgkmcnt(0)
        s_mov_b32 s{sWS + 2}, {WS_SIZE}
        s_sub_u32 s{sWS}, s{sWS}, {cfg['wsoff'] << 20}
        s_subb_u32 s{sWS + 1}, s{sWS + 1}, 0
        s_lshl_b32 s95, s2, 3
        s_add_u32 s95, s95, s{s_w}
        s_lshl_b32 s95, s95, 8
        s_add_u32 s95, s95, {WS_DBG}
        v_writelane_b32 v0, s76, 62
        v_writelane_b32 v0, s78, 63
        v_lshlrev_b32 v{T[0]}, 2, v{vL}
        buffer_store_dword v0, v{T[0]}, {WSD}, s95 offen
        s_waitcnt vmcnt(0)
        """)
    a(f"s_endpgm\n{L('again')}:")
    prime(range(2, 6))
    a(f"s_branch {L('first')}")
    a.lines = head_lines + a.lines + g0_lines
    a(f"{L('end')}:\ns_endpgm")
    return kernel_header(label) + a.text(), kernel_desc(label, 256, 102 if prof else 92), LDS_SIZE


def build(as_list=False, **kw):
    ref = open(f"cdna_kernels/{NAME}.s.ref").read().split("\n")
    head = [ln for ln in ref if ln.startswith(";") and "launch" not in ln.lower() and "grid=" not in ln]
    label = NAME + "_kernel"
    c, d, lds = gen(label, **kw)
    c = c.replace(label + "_", "L_")
    if (kw.get("cfg") or {}).get("rt"):
        c = c.replace("s_memtime", "s_memrealtime")
    out = "\n".join(head) + "\n"
    out += f"; @launch {'kernel=' + label + ' ' if as_list else ''}grid=(256,1,1) block=(512,1,1) lds={lds}\n"
    out += '.amdgcn_target "amdgcn-amd-amdhsa--gfx950"\n.text\n' + c + '.section .rodata,"a"\n' + d
    return out


if __name__ == "__main__":
    import sys
    opts = sys.argv[2:]
    cfg = {o.split("=")[0]: int(o.split("=")[1], 0) for o in opts if "=" in o}
    open(sys.argv[1], "w").write(build(as_list="list" in opts, prof="span" if "span" in opts else "prof" in opts, force_fallback="slow" in opts, cfg=cfg))
```

```python
import math
import struct
from common import *

f32 = lambda x: struct.unpack("<I", struct.pack("<f", x))[0]
QSCALE = f32(math.log2(math.e) / math.sqrt(20.0))
SHIFT = 92.0

WS_RS = WS_END
WS_CP = WS_RS + 2048 * 16
CP_ROW = 3648 * 8
WS_FA = WS_CP + 4 * CP_ROW
WS_FH = WS_FA + 1024 * 128
WS_FB = WS_FH + 2048 * 128
WS_E = WS_FB + 256 * 128
WS_TOP = WS_E + 128

STG = 49152
LX, LW, LF = 0, 16384, 32768
L_NM = 3 * STG
L_RS, L_CSA, L_CSB, L_BI = L_NM + 512, L_NM + 1024, L_NM + 1536, L_NM + 2048
L_CP = L_NM + 2560
L_RP = L_CP + 1024
LDS_SIZE = 163840
SLOT = 8192 + 4096 + 16 * 656
OFF_R, OFF_V = 8192, 12288
KV = LDS_SIZE - 3 * SLOT
L_Q = LW
L_WO = 0
L_EX = [None, 122880, 143360, 102400]
LDS_OOB = 0x28000
assert L_WO + 18 * 5120 <= KV and LDS_OOB + 3 * SLOT <= 0x40000
KS_ROW = 40 * 1024

sWS, sX, sW, sA, sB = 24, 28, 32, 36, 40
(s_w, s_wj, s_rb, s_cg, s_head, s_qb, s_tt, s_cf, s_cm, s_cr, s_par, s_tag, s_c, s_slot,
 s_t0, s_t1, s_t2, s_t3, s_xo, s_wo, s_ring, s_wstep, s_ko, s_vo, s_ho, s_spin, s_fl) = range(44, 71)
assert s_t2 % 2 == 0
s_o = [71, 72, 73]
s_kc, s_hook = 74, 75
SPIN = 0x20000


def gen(label, prof=False, force_fallback=False, cfg=None):
    cfg = {**dict(wsoff=0, rot=0, late=0, bal=1, touch=1, gat=3, pre=3, mk=13, early=0, fprio=2, flag=1, krot=0, lean=1, plf=0, fsf=0, slp=1, cut0=46, cutd=49, fbr=2, hk=3, hpos=0, bpos=0, ahead=6, osf=0), **(cfg or {})}
    STF = ('sc1', '', 'nt')[cfg.get('plain', 0)]
    PLF = ('sc1', 'sc0 sc1', 'sc1 nt', 'sc0 sc1 nt')[cfg['plf']]
    FSF = ('sc1', 'sc0 sc1')[cfg['fsf']]
    OSF = ('', 'sc1', 'nt')[cfg['osf']]
    a = Asm()
    L = lambda n: f"{label}_{n}"
    WSD = f"s[{sWS}:{sWS + 3}]"
    vL = 1
    T = [2, 3, 4, 5, 6, 7]
    vK, vR_, vV = 8, 9, 10
    AX = [11, 12]
    AW = [13, 14, 15, 16]
    XF = [[32 + 16 * b + 4 * t for t in range(4)] for b in range(2)]
    WF = [[64 + 16 * b + 4 * c for c in range(4)] for b in range(2)]
    GA, GB = 96, 160

    def capture(fn):
        keep, a.lines = a.lines, []
        fn()
        got, a.lines = a.lines, keep
        units, masked = [], False
        for ln in got:
            t = ln.strip()
            if units and (masked or t.startswith("s_cselect") or units[-1].split("\n")[-1].strip().startswith("s_cmp")):
                units[-1] += "\n" + ln
            else:
                units.append(ln)
            if t.startswith("s_") and " exec" in t.split(",")[0]:
                masked = not t.endswith("-1")
        return units

    def gacc(tt, ci, base=GA):
        return base + (tt * 4 + ci) * 4

    SD = 32
    a(f"""
    s_cmp_ge_u32 s2, 256
    s_cbranch_scc1 {L('end')}
    s_load_dwordx16 s[4:19], s[0:1], 0
    s_load_dwordx2 s[22:23], s[0:1], 80
    s_load_dwordx2 s[20:21], s[0:1], 64
    """)
    stamp(a, prof, 0)
    a(f"""
    v_lshrrev_b32 v{T[0]}, 6, v0
    v_and_b32 v{vL}, 63, v0
    s_and_b32 s{s_t3}, s2, 1
    v_readfirstlane_b32 s{s_w}, v{T[0]}
    s_bfe_u32 s{s_rb}, s2, 0x30003
    s_bfe_u32 s{s_t0}, s2, 0x20001
    s_lshr_b32 s{s_t1}, s2, 6
    s_lshl2_add_u32 s{s_cf}, s{s_t0}, s{s_t1}
    {f"s_and_b32 s{s_t2}, s{s_rb}, 3" if cfg["bal"] else f"s_mov_b32 s{s_t2}, 3"}
    s_lshl2_add_u32 s{s_t2}, s{s_t2}, 3
    s_lshl3_add_u32 s{s_rb}, s{s_t3}, s{s_rb}
    s_cmp_gt_u32 s{s_cf}, s{s_t2}
    s_subb_u32 s{s_cg}, s{s_cf}, 0
    s_cmp_eq_u32 s{s_cf}, s{s_t2}
    s_cselect_b32 s{s_cg}, 15, s{s_cg}
    s_mov_b32 s{sA + 3}, 0x00020000
    {'v_mov_b32 v0, -1' if prof else ''}
    s_and_b32 s{s_wj}, s{s_w}, 3
    s_cmp_ge_u32 s{s_w}, 4
    s_cbranch_scc1 {L('p_col')}
    s_mov_b32 s3, 0
    s_lshl4_add_u32 s{s_t0}, s{s_rb}, s{s_cg}
    s_lshl1_add_u32 s{s_t0}, s{s_t0}, s{s_wj}
    s_mul_i32 s{s_t1}, s{s_t0}, {4 * 1280}
    s_cmp_eq_u32 s{s_cg}, 15
    s_cselect_b32 s{s_hook}, 0, 2
    s_cmp_eq_u32 s{s_cg}, 14
    s_cselect_b32 s{s_hook}, 4, s{s_hook}
    v_lshrrev_b32 v{T[0]}, 4, v{vL}
    v_and_b32 v{T[1]}, 15, v{vL}
    v_mul_u32_u24 v{T[2]}, 1280, v{T[0]}
    s_movk_i32 s{s_t2}, 256
    s_mov_b32 s{sA + 2}, {S * D * 2}
    s_cmp_lt_u32 s{s_wj}, s{s_hook}
    s_waitcnt lgkmcnt(0)
    s_mov_b64 s[{sA}:{sA + 1}], s[4:5]
    s_branch {L('p_ld')}
    {L('p_col')}:
    s_setprio 2
    s_mov_b32 s3, 1
    s_bfe_u32 s{s_t1}, s2, 0x10005
    s_lshl1_add_u32 s{s_t1}, s{s_cg}, s{s_t1}
    s_bfe_u32 s{s_t0}, s2, 0x10003
    s_lshl1_add_u32 s{s_t0}, s{s_t3}, s{s_t0}
    s_mul_i32 s{s_o[0]}, s{s_t0}, {CP_ROW // 512 * 512}
    s_lshl_b32 s{s_t0}, s{s_t0}, 2
    s_add_u32 s{s_t0}, s{s_t0}, s{s_wj}
    s_mul_i32 s{s_t0}, s{s_t0}, 40
    v_lshrrev_b32 v{T[0]}, 3, v{vL}
    v_and_b32 v{T[1]}, 7, v{vL}
    s_bitcmp0_b32 s2, 4
    s_cselect_b32 s{s_hook}, 30, 57
    s_movk_i32 s{s_t2}, 3840
    s_cselect_b32 s{s_t2}, s{s_t2}, 3456
    s_cselect_b32 s{s_o[1]}, 0, 30
    s_mul_i32 s{sA + 2}, s{s_t2}, 640
    s_mul_i32 s{s_t0}, s{s_t0}, s{s_t2}
    v_mul_u32_u24 v{T[2]}, s{s_t2}, v{T[0]}
    s_waitcnt lgkmcnt(0)
    s_cselect_b64 s[{sA}:{sA + 1}], s[6:7], s[12:13]
    s_add_u32 s{s_o[1]}, s{s_o[1]}, s{s_t1}
    s_lshl_b32 s{s_t1}, s{s_t1}, 7
    s_add_u32 s{s_t1}, s{s_t1}, s{s_t0}
    s_lshl_b32 s{s_t2}, s{s_t2}, 3
    s_cmp_lt_u32 s{s_o[1]}, s{s_hook}
    s_cselect_b32 s{s_hook}, 3, 7
    """)
    if cfg["late"]:
        a(f"""
        s_cselect_b32 s78, s{sA + 2}, 0
        s_mov_b64 s[76:77], s[{sA}:{sA + 1}]
        s_mov_b32 s79, 0x00020000
        s_mov_b32 s10, s{s_t1}
        s_mov_b32 s11, s{s_t2}
        v_lshl_add_u32 v29, v{T[1]}, 4, v{T[2]}
        s_branch {L('p_id')}
        """.replace("s78", "s90").replace("s[76:77]", "s[88:89]").replace("s79", "s91"))
    a(f"""
    {L('p_ld')}:
    """)
    a(f"""
    v_lshl_add_u32 v{T[2]}, v{T[1]}, 4, v{T[2]}
    s_cbranch_scc0 {L('p_id')}
    """)
    assert CP_ROW % 512 == 0
    for q in range(5):
        a(f"buffer_load_dwordx4 {vr(SD + 4 * q, 4)}, v{T[2]}, s[{sA}:{sA + 3}], s{s_t1} offen")
        a(f"s_add_u32 s{s_t1}, s{s_t1}, s{s_t2}")
    a(f"{L('p_id')}:")
    if cfg["wsoff"]:
        a(f"s_add_u32 s22, s22, {cfg['wsoff'] << 20}\ns_addc_u32 s23, s23, 0")
    stamp(a, prof, 45)
    a(f"""
    {f"s_xor_b32 s{s_t2}, s{s_rb}, 2" if cfg["bal"] else ""}
    {f"s_and_b32 s{s_t2}, s{s_t2}, 3" if cfg["bal"] else f"s_mov_b32 s{s_t2}, 3"}
    s_lshl2_add_u32 s{s_t2}, s{s_t2}, {3 if cfg["bal"] else 2}
    s_cmp_eq_u32 s{s_cf}, s{s_t2}
    s_cselect_b32 s{s_t0}, 15, s{s_cg}
    s_cmp_gt_u32 s{s_cf}, s{s_t2}
    s_subb_u32 s{s_cf}, s{s_t0}, 0
    s_cmp_eq_u32 s{s_cg}, 15
    s_cbranch_scc1 {L('near')}
    {L('p_go')}:
    s_cmp_eq_u32 s3, 0
    s_cbranch_scc1 {L('g0')}
    """)
    head_lines, a.lines = a.lines, []

    def attn_ids():
        a(f"""
        s_and_b32 s{s_t0}, s2, 7
        s_lshr_b32 s{s_t1}, s2, 3
        s_and_b32 s{s_t2}, s{s_t1}, 3
        s_lshl_b32 s{s_head}, s{s_t0}, 2
        s_add_u32 s{s_head}, s{s_head}, s{s_t2}
        s_lshr_b32 s{s_qb}, s{s_t1}, 2
        s_and_b32 s{s_par}, s{s_head}, 1
        s_lshr_b32 s{s_t2}, s{s_head}, 1
        s_mul_i32 s{s_t2}, s{s_t2}, 5
        s_add_u32 s{s_cr}, s{s_t2}, 2
        s_mul_i32 s{s_t3}, s{s_par}, 3
        s_add_u32 s{s_cm}, s{s_t2}, s{s_t3}
        s_lshl_b32 s{s_cm}, s{s_cm}, 15
        s_lshl_b32 s{s_cr}, s{s_cr}, 15
        """)

    def load_tag():
        a(f"""
        s_mov_b32 s{s_t0}, {WS_E}
        s_load_dword s{s_tag}, s[22:23], s{s_t0}
        """)

    def frag_addr():
        a(f"""
        v_and_b32 v{T[0]}, 15, v{vL}
        v_lshrrev_b32 v{T[1]}, 4, v{vL}
        v_bfe_u32 v{T[2]}, v{vL}, 1, 3
        v_xor_b32 v{T[2]}, v{T[2]}, v{T[1]}
        v_lshlrev_b32 v{T[2]}, 4, v{T[2]}
        v_lshl_add_u32 v{T[2]}, v{T[0]}, 7, v{T[2]}
        s_and_b32 s{s_t0}, s{s_wj}, 1
        s_lshl_b32 s{s_t0}, s{s_t0}, 13
        v_add_u32 v{AX[0]}, s{s_t0}, v{T[2]}
        v_xor_b32 v{AX[1]}, 64, v{AX[0]}
        v_bfe_u32 v{T[2]}, v{vL}, 2, 2
        v_lshl_add_u32 v{T[3]}, v{T[1]}, 3, v{T[2]}
        v_lshlrev_b32 v{T[3]}, 8, v{T[3]}
        v_bfe_u32 v{T[2]}, v{vL}, 2, 3
        s_lshr_b32 s{s_t0}, s{s_wj}, 1
        s_lshl_b32 s{s_t0}, s{s_t0}, 2
        v_xor_b32 v{T[2]}, s{s_t0}, v{T[2]}
        v_lshl_add_u32 v{T[3]}, v{T[2]}, 5, v{T[3]}
        v_and_b32 v{T[2]}, 3, v{vL}
        v_lshl_add_u32 v{AW[0]}, v{T[2]}, 3, v{T[3]}
        v_xor_b32 v{AW[1]}, 32, v{AW[0]}
        v_xor_b32 v{AW[2]}, 64, v{AW[0]}
        v_xor_b32 v{AW[3]}, 96, v{AW[0]}
        """)

    def zero(base, n):
        for r in range(base, base + n, 2):
            a(f"v_mov_b64 {vr(r, 2)}, 0")

    def wreads(part, s, b):
        return [f"ds_read_b64_tr_b16 {vr(WF[b][c] + 2 * h, 2)}, v{AW[c]} offset:{part + s * 8192 + 1024 * h}"
                for c in range(4) for h in range(2)]

    def xreads(s):
        return [f"ds_read_b128 {vr(XF[s][t], 4)}, v{AX[s]} offset:{LX + 2048 * t}" for t in range(4)]

    def both(part, s, b):
        w, x = wreads(part, s, b), xreads(s)
        return w[:2] + x[:1] + w[2:] + x[1:]

    def gemm_body(name, halves, barrier, count_to):
        a(f".p2align 3\n{L(name)}:")
        for k, (xs, wb, acc, swapped, rd) in enumerate(halves):
            fill = [[] for _ in range(16)]
            if k == len(halves) - 1:
                if barrier:
                    if prof and cfg.get("trace", 0) == 3:
                        fill[0] += capture(lambda: stamp(a, prof, 25))
                    fill[0].append("s_barrier")
                fill[13].append(f"s_add_u32 s{s_c}, s{s_c}, 1")
                fill[14].append(f"s_cmp_lt_u32 s{s_c}, {count_to}")
            if k == len(halves) - 2:
                fill[8].append(f"s_add_u32 s{s_ring}, s{s_ring}, 1")
                fill[9].append(f"s_cmp_eq_u32 s{s_ring}, 3")
                fill[10].append(f"s_cselect_b32 s{s_xo}, {-2 * STG & 0xffffffff}, s{s_wstep}")
                fill[11].append(f"s_cselect_b32 s{s_ring}, 0, s{s_ring}")
            for m, x in enumerate(rd):
                fill[m].append(x)
            if k == len(halves) - 2:
                for m, r in enumerate(AX + AW):
                    fill[12 + m // 2].append(f"v_add_u32 v{r}, s{s_xo}, v{r}")
            fill[15].append("s_waitcnt lgkmcnt(0)")
            for m in range(16):
                tt, ci = m >> 2, m & 3
                wf, xf = vr(WF[wb][ci], 4), vr(XF[xs][tt], 4)
                A, B = (xf, wf) if swapped else (wf, xf)
                a(f"v_mfma_f32_16x16x32_bf16 {vr(gacc(tt, ci, acc), 4)}, {A}, {B}, {vr(gacc(tt, ci, acc), 4)}")
                a("\n".join(fill[m]))
        if 0 < cfg.get("trace", 0) < 3:
            stamp(a, prof, 20)
        a(f"s_cbranch_scc1 {L(name)}")

    def joint(name, sw):
        gemm_body(name, [(0, 0, GA, sw, wreads(LF, 0, 1)), (0, 1, GB, False, both(LW, 1, 0)),
                         (1, 0, GA, sw, wreads(LF, 1, 1)), (1, 1, GB, False, both(LW, 0, 0))], True, 7)

    def single(name, part, acc, sw, barrier, count_to):
        gemm_body(name, [(0, 0, acc, sw, both(part, 1, 1)), (1, 1, acc, sw, both(part, 0, 0))], barrier, count_to)

    def tile_addr(e_reg, e_lane, e_st):
        a(f"""
        v_and_b32 v{T[0]}, 15, v{vL}
        v_lshrrev_b32 v{T[1]}, 4, v{vL}
        s_lshr_b32 s{s_t0}, s{s_wj}, 1
        s_lshl_b32 s{s_t0}, s{s_t0}, 8
        s_add_u32 s{s_t0}, s{s_t0}, {L_NM}
        v_lshl_add_u32 v{e_reg}, v{T[1]}, 4, s{s_t0}
        s_and_b32 s{s_t1}, s{s_wj}, 1
        s_lshl_b32 s{s_t0}, s{s_t1}, 8
        s_add_u32 s{s_t0}, s{s_t0}, {L_NM}
        v_lshl_add_u32 v{e_lane}, v{T[0]}, 2, s{s_t0}
        v_bfrev_b32 v{T[1]}, v{T[1]}
        v_lshrrev_b32 v{T[1]}, 15, v{T[1]}
        v_lshl_add_u32 v{T[1]}, v{T[0]}, 4, v{T[1]}
        s_lshl_b32 s{s_t0}, s{s_rb}, 1
        s_add_u32 s{s_t0}, s{s_t0}, s{s_t1}
        s_lshl_b32 s{s_t0}, s{s_t0}, 10
        v_add_u32 v{e_st}, s{s_t0}, v{T[1]}
        """)

    def put_piece(src, addr, x, y):
        return f"buffer_store_dwordx4 {vr(src, 4)}, v{addr}, {WSD}, s{s_o[x]} offen offset:{256 * y} {STF}"

    def pack_tiles(acc, math, dst, addr=None, between=None):
        pend = []
        for tt in range(4):
            for cp in range(2):
                ob = dst(cp, tt)
                r0 = gacc(tt, 2 * cp, acc)
                math(tt, [(r0 + 2 * p, 8 * cp + 2 * p) for p in range(4)])
                a("\n".join(pend))
                for p in range(4):
                    a(f"v_cvt_pk_bf16_f32 v{ob + p}, v{r0 + 2 * p}, v{r0 + 2 * p + 1}")
                pend = [f"v_permlane16_swap_b32 v{ob}, v{ob + 2}", f"v_permlane16_swap_b32 v{ob + 1}, v{ob + 3}"]
                if addr:
                    pend.append(put_piece(ob, addr, cp, tt))
            if between:
                between(tt)
        a("s_nop 1\n" + "\n".join(pend))

    def key_perm(dst, src, t0, t1):
        a(f"""
        v_bfe_u32 v{t0}, v{src}, 2, 1
        v_bfe_u32 v{t1}, v{src}, 3, 2
        v_lshl_add_u32 v{t0}, v{t0}, 2, v{t1}
        v_and_b32 v{t1}, 3, v{src}
        v_lshl_add_u32 v{dst}, v{t0}, 2, v{t1}
        """)

    def v_feature(dst, row, t0, t1):
        swap23(a, dst, row, t0, t1)
        a(f"""
        s_lshl_b32 s{s_t0}, s{s_par}, 2
        s_mul_i32 s{s_t1}, s{s_par}, -16
        v_cmp_gt_u32 vcc, 16, v{row}
        v_add_u32 v{dst}, s{s_t0}, v{dst}
        v_add_u32 v{t0}, s{s_t1}, v{row}
        v_cndmask_b32 v{dst}, v{t0}, v{dst}, vcc
        """)

    def kv_addr(first_chunk):
        a(f"v_and_b32 v{T[0]}, 31, v{vL}\nv_lshrrev_b32 v{T[1]}, 5, v{vL}")
        key_perm(T[2], T[0], T[3], T[4])
        a(f"""
        v_lshlrev_b32 v{T[3]}, 4, v{T[2]}
        v_lshl_add_u32 v{vK}, v{T[1]}, 15, v{T[3]}
        v_add_u32 v{vK}, s{s_cm}, v{vK}
        v_lshl_add_u32 v{vR_}, v{T[1]}, 9, v{T[3]}
        v_add_u32 v{vR_}, s{s_cr}, v{vR_}
        v_cmp_le_u32 vcc, 20, v{vL}
        s_lshl_b32 s{s_t0}, s{s_wj}, 10
        s_andn2_b32 s{s_kc}, 1, s2
        s_mul_i32 s{s_kc}, s{s_kc}, {cfg['krot']}
        v_cndmask_b32 v{T[2]}, 0, 1, vcc
        v_mul_u32_u24 v{T[3]}, 20, v{T[2]}
        v_sub_u32 v{T[3]}, v{vL}, v{T[3]}
        v_mul_u32_u24 v{vV}, 10240, v{T[2]}
        """)
        v_feature(T[2], T[3], T[4], T[5])
        a(f"""
        s_mul_i32 s{s_t0}, s{s_head}, 320
        v_lshl_add_u32 v{vV}, v{T[2]}, 4, v{vV}
        v_add_u32 v{vV}, s{s_t0}, v{vV}
        """)

    def kv_dma(chunk):
        base = KV + ((chunk + 2) % 3) * SLOT
        a(f"""
        s_and_b32 s{s_t0}, s{s_kc}, 7
        s_lshl_b32 s{s_t0}, s{s_t0}, 2
        s_add_u32 s{s_t0}, s{s_t0}, s{s_wj}
        s_lshl_b32 s{s_ko}, s{s_t0}, 10
        s_add_u32 s{s_ko}, s{s_ko}, {C_K * CH}
        s_mul_i32 s{s_vo}, s{s_t0}, 81920
        s_add_u32 s{s_vo}, s{s_vo}, {WS_V}
        s_add_u32 s{s_kc}, s{s_kc}, 1
        s_lshl_b32 s{s_t0}, s{s_wj}, 11
        s_add_u32 m0, s{s_t0}, {base}
        s_lshl_b32 s{s_t1}, s{s_wj}, 10
        buffer_load_dwordx4 v{vK}, {WSD}, s{s_ko} offen sc1 lds
        s_add_u32 m0, s{s_t0}, {base + 512}
        s_mul_i32 s{s_t0}, s{s_wj}, {4 * 656}
        buffer_load_dwordx4 v{vK}, {WSD}, s{s_ko} offen offset:512 sc1 lds
        s_add_u32 m0, s{s_t1}, {base + OFF_R}
        s_nop 0
        buffer_load_dwordx4 v{vR_}, {WSD}, s{s_ko} offen sc1 lds
        s_mov_b32 exec_hi, 0xff
        """)
        for i in range(4):
            a(f"""
            s_add_u32 m0, s{s_t0}, {base + OFF_V + 656 * i}
            s_add_u32 s{s_t1}, s{s_vo}, {20480 * i}
            buffer_load_dwordx4 v{vV}, {WSD}, s{s_t1} offen sc1 lds
            """)
        a("s_mov_b32 exec_hi, -1")

    def ones_addr(dst, first_slot, nslots):
        a(f"""
        v_min_u32 v{dst}, {16 * nslots - 1}, v{vL}
        v_lshrrev_b32 v{T[3]}, 4, v{dst}
        v_and_b32 v{dst}, 15, v{dst}
        v_mul_u32_u24 v{T[3]}, {SLOT}, v{T[3]}
        v_mul_u32_u24 v{dst}, 656, v{dst}
        v_add_u32 v{dst}, v{dst}, v{T[3]}
        v_add_u32 v{dst}, {KV + first_slot * SLOT + OFF_V + 640}, v{dst}
        """)

    def ones_write(addr, tmp):
        for r in range(4):
            a(f"v_mov_b32 v{tmp + r}, 0x3f803f80")
        a(f"ds_write_b128 v{addr}, {vr(tmp, 4)}")

    def set_flag(base):
        a(f"""
        s_lshl_b32 s{s_t0}, s{s_fl}, 7
        s_add_u32 s{s_t0}, s{s_t0}, {base}
        v_mov_b32 v{T[4]}, 0
        v_mov_b32 v{T[3]}, s{s_tag}
        s_mov_b64 exec, 1
        buffer_store_dword v{T[3]}, v{T[4]}, {WSD}, s{s_t0} offen {FSF}
        s_mov_b64 exec, -1
        """)

    def flag_of_tile(dst, rh, unit):
        a(f"v_lshl_add_u32 v{dst}, v{unit}, 5, {rh}\nv_lshlrev_b32 v{dst}, 7, v{dst}")

    def head_unit(dst, sel):
        a(f"""
        s_mul_i32 s{s_t0}, s{s_head}, 20
        v_mad_u32_u24 v{dst}, v{sel}, 19, s{s_t0}
        v_lshrrev_b32 v{dst}, 6, v{dst}
        """)

    def wait_flags(name, base, offs, rounds=SPIN):
        a(f"""
        s_mov_b32 s{s_t0}, {base}
        s_mov_b32 s{s_spin}, {rounds}
        s_branch {L(name + '_ld')}
        {L(name)}:
        s_sleep {cfg['slp']}
        {L(name + '_ld')}:
        buffer_load_dword v{T[3]}, v{offs[0]}, {WSD}, s{s_t0} offen {PLF}
        """)
        if len(offs) > 1:
            a(f"buffer_load_dword v{T[4]}, v{offs[1]}, {WSD}, s{s_t0} offen {PLF}")
        a(f"s_sub_u32 s{s_spin}, s{s_spin}, 1\ns_waitcnt vmcnt(0)")
        if len(offs) == 1:
            a(f"v_mov_b32 v{T[4]}, v{T[3]}")
        retry(name)

    def retry(name):
        a(f"""
        v_cmp_ne_u32 vcc, s{s_tag}, v{T[3]}
        v_cmp_ne_u32 s[{s_t2}:{s_t2 + 1}], s{s_tag}, v{T[4]}
        s_cmp_eq_u32 s{s_spin}, 0
        s_cbranch_scc1 {L(name + '_done')}
        s_or_b64 vcc, vcc, s[{s_t2}:{s_t2 + 1}]
        s_cbranch_scc1 {L(name)}
        {L(name + '_done')}:
        """)

    def q_addr(vq, vqr):
        a(f"""
        v_and_b32 v{T[0]}, 31, v{vL}
        v_lshrrev_b32 v{T[1]}, 5, v{vL}
        s_lshl_b32 s{s_t0}, s{s_qb}, 2
        s_add_u32 s{s_t0}, s{s_t0}, s{s_wj}
        s_lshl_b32 s{s_t0}, s{s_t0}, 10
        s_lshl_b32 s{s_t1}, s{s_par}, 3
        s_add_u32 s{s_t2}, s{s_t0}, s{s_t1}
        v_lshlrev_b32 v{T[2]}, 4, v{T[0]}
        v_lshl_add_u32 v{vq}, v{T[1]}, 15, v{T[2]}
        v_add_u32 v{vq}, s{s_t0}, v{vq}
        v_add_u32 v{vqr}, s{s_t2}, v{T[2]}
        """)

    eR, eL, eS, hR, hL, hS = 17, 18, 19, 8, 9, 10
    IDX, AK0, AR0, AV0, VQ, VQR, AQ = 20, 21, 22, 23, 24, 25, 26
    AK, AR, AV = 27, 28, 29
    R = Regs(216)
    MX = [R.get(), R.get()]
    Q1 = [R.get(4), R.get(4)]
    Q2 = [[R.get(2), R.get(2)], [R.get(2), R.get(2)]]
    K1 = [R.get(4), R.get(4)]
    K2 = [R.get(2), R.get(2)]
    V0 = [R.get(4), R.get(4)]
    PH = 32
    SS, CM, TS, OO, V1 = [96, 160], [112, 128], 144, [176, 192], [208, 212]

    AC, SO = 72, 80
    a(f"""
    {L('g0')}:
    v_lshlrev_b32 v{SO}, 4, v{T[0]}
    """)
    srd(a, sWS, 22, WS_TOP)
    load_tag()
    frag_addr()
    zero(GA, 128)
    attn_ids()
    tile_addr(hR, hL, hS)
    a(f"""
    v_mov_b32 v{eR}, v{hR}
    v_mov_b32 v{eS}, v{hS}
    s_cmp_lt_u32 s{s_cg}, 10
    s_cbranch_scc1 {L('ad_j')}
    v_lshrrev_b32 v{T[1]}, 4, v{vL}
    s_lshl_b32 s{s_t0}, s{s_t1}, 8
    s_add_u32 s{s_t0}, s{s_t0}, {L_NM}
    v_lshl_add_u32 v{eR}, v{T[1]}, 4, s{s_t0}
    s_lshr_b32 s{s_t2}, s{s_wj}, 1
    s_lshl_b32 s{s_t0}, s{s_t2}, 8
    s_add_u32 s{s_t0}, s{s_t0}, {L_CSA}
    v_lshl_add_u32 v{eL}, v{T[0]}, 2, s{s_t0}
    s_sub_u32 s{s_t0}, s{s_cg}, 10
    s_lshl_b32 s{s_t0}, s{s_t0}, 1
    s_add_u32 s{s_t0}, s{s_t0}, s{s_t2}
    s_lshl_b32 s{s_t0}, s{s_t0}, 10
    v_mul_u32_u24 v{T[1]}, 10240, v{T[1]}
    v_lshl_add_u32 v{T[1]}, v{T[0]}, 4, v{T[1]}
    v_add_u32 v{eS}, s{s_t0}, v{T[1]}
    {L('ad_j')}:
    """)
    q_addr(VQ, VQR)
    a(f"""
    v_mov_b32 v{IDX}, 0xdddddddd
    v_lshlrev_b32 v{AK0}, 4, v{vL}
    s_mul_i32 s{s_t0}, s{s_wj}, 3072
    v_add_u32 v{AQ}, s{s_t0}, v{AK0}
    v_add_u32 v{AK0}, {KV}, v{AK0}
    v_add_u32 v{AR0}, s{s_t1}, v{AK0}
    v_mad_u32_u24 v{T[2]}, v{T[1]}, 20, v{T[0]}
    v_lshlrev_b32 v{T[2]}, 4, v{T[2]}
    v_add_u32 v{T[2]}, {KV}, v{T[2]}
    v_cmp_gt_u32 vcc, 20, v{T[0]}
    v_mov_b32 v{T[4]}, {LDS_OOB}
    v_and_b32 v{T[3]}, 27, v{T[0]}
    v_cndmask_b32 v{T[2]}, v{T[4]}, v{T[2]}, vcc
    v_cmp_eq_u32 vcc, 24, v{T[3]}
    v_mov_b32 v{T[4]}, {KV + 640}
    s_mov_b32 s{s_slot}, {2 * SLOT}
    v_cndmask_b32 v{AV0}, v{T[2]}, v{T[4]}, vcc
    v_add_u32 v{AK}, s{s_slot}, v{AK0}
    v_add_u32 v{AR}, s{s_slot}, v{AR0}
    v_add_u32 v{AV}, s{s_slot}, v{AV0}
    """)
    a(f"""
    s_add_u32 s{s_t0}, s{s_t0}, s{s_t1}
    v_lshl_add_u32 v30, v{T[0]}, 4, s{s_t0}
    v_mov_b32 v31, v30
    s_mov_b32 exec_hi, 0
    v_mov_b32 v31, {LDS_OOB}
    s_not_b64 exec, exec
    v_mov_b32 v30, {LDS_OOB}
    s_mov_b64 exec, -1
    """)
    a("v_mov_b32 v84, 0x3f803f80")
    a(f"""
    s_lshl_b32 s{s_o[2]}, s{s_cg}, 1
    s_lshr_b32 s{s_t0}, s{s_wj}, 1
    s_add_u32 s{s_o[2]}, s{s_o[2]}, s{s_t0}
    s_lshl1_add_u32 s{s_ho}, s{s_cf}, s{s_t0}
    s_lshl_b32 s{s_fl}, s{s_o[2]}, 4
    s_add_u32 s{s_fl}, s{s_fl}, s{s_rb}
    s_lshl_b32 s{s_fl}, s{s_fl}, 1
    s_and_b32 s{s_t0}, s{s_wj}, 1
    s_add_u32 s{s_fl}, s{s_fl}, s{s_t0}
    s_mov_b32 s{s_c}, 0
    s_mov_b32 s{s_ring}, 0
    s_mov_b32 s{s_wstep}, {STG}
    s_waitcnt lgkmcnt(0)
    s_add_u32 s{s_tag}, s{s_tag}, 1
    s_cmp_ge_u32 s{s_wj}, s{s_hook}
    s_cbranch_scc1 {L('st_m')}
    v_mov_b32 v{AC}, 0
    v_mov_b32 v{AC + 2}, 0
    v_mov_b32 v{AC + 1}, s{s_tag}
    v_mov_b32 v{AC + 3}, s{s_tag}
    """)
    for q in range(5):
        a(f"s_waitcnt vmcnt({4 - q})")
        for r in range(SD + 4 * q, SD + 4 * q + 4):
            a(f"v_dot2c_f32_bf16 v{AC}, v{r}, v84\nv_dot2c_f32_bf16 v{AC + 2}, v{r}, v{r}")
    a("s_nop 1")
    for sh in (8, 4, 2, 1):
        a(f"""
        s_nop 0
        v_add_f32_dpp v{AC}, v{AC}, v{AC} row_ror:{sh} row_mask:0xf bank_mask:0xf
        v_add_f32_dpp v{AC + 2}, v{AC + 2}, v{AC + 2} row_ror:{sh} row_mask:0xf bank_mask:0xf
        """)
    a(f"""
    v_mul_f32 v{AC}, {f32(-1.0 / D)}, v{AC}
    v_mul_f32 v{AC + 2}, {f32(1.0 / D)}, v{AC + 2}
    v_fma_f32 v{AC + 2}, -v{AC}, v{AC}, v{AC + 2}
    v_max_f32 v{AC + 2}, 0, v{AC + 2}
    v_add_f32 v{AC + 2}, {f32(1e-5)}, v{AC + 2}
    v_rsq_f32 v{AC + 2}, v{AC + 2}
    s_lshl_b32 s{s_t0}, s{s_wj}, 6
    s_add_u32 s{s_t0}, s{s_t0}, {L_RP}
    v_add_u32 v{T[2]}, s{s_t0}, v{SO}
    s_mov_b32 exec_lo, 0x00010001
    s_mov_b32 exec_hi, 0x00010001
    ds_write_b128 v{T[2]}, {vr(AC, 4)}
    s_mov_b64 exec, -1
    s_waitcnt lgkmcnt(0)
    {L('st_m')}:
    s_cmp_eq_u32 s{s_cg}, 15
    s_cbranch_scc1 {L('a_none')}
    """)
    stamp(a, prof, 1)
    a("s_barrier")
    stamp(a, prof, 2)
    a("\n".join(both(LW, 0, 0)))
    a(f"""
    s_cmp_ge_u32 s{s_cg}, 10
    s_waitcnt lgkmcnt(0)
    s_cbranch_scc0 {L('aN')}
    s_cmp_ge_u32 s{s_ho}, 27
    s_cbranch_scc1 {L('sV')}
    """)

    def lane_stats(dst, addr):
        for tt in range(4):
            a(f"ds_read2_b32 {vr(dst + 2 * tt, 2)}, v{addr} offset0:{16 * tt} offset1:{128 + 16 * tt}")

    def reg_stats(dst, addr, off):
        for i in range(4):
            a(f"ds_read_b128 {vr(dst + 4 * i, 4)}, v{addr} offset:{off + 64 * i}")

    def centre(cs, nr, tt, prs):
        for r, q in prs:
            a(f"v_pk_fma_f32 {vr(r, 2)}, {vr(cs + q, 2)}, {vr(nr + 2 * tt, 2)}, {vr(r, 2)} op_sel:[0,0,0] op_sel_hi:[1,0,1]")

    E0, E1 = 224, 240
    F0, F1, F2 = 96, 112, 128

    def qk_math(tt, prs):
        centre(E0, E1, tt, prs)
        for r, q in prs:
            a(f"v_pk_mul_f32 {vr(r, 2)}, {vr(r, 2)}, {vr(E1 + 2 * tt, 2)} op_sel:[0,1] op_sel_hi:[1,1]")

    def ffn_math(tt, prs):
        centre(F0, F2, tt, prs)
        for r, q in prs:
            a(f"v_pk_fma_f32 {vr(r, 2)}, {vr(r, 2)}, {vr(F2 + 2 * tt, 2)}, {vr(F1 + q, 2)} op_sel:[0,1,0] op_sel_hi:[1,1,1]")
        for r, q in prs:
            a(f"v_max_f32 v{r}, 0, v{r}\nv_max_f32 v{r + 1}, 0, v{r + 1}")
        for r, q in prs:
            a(f"v_pk_mul_f32 {vr(r, 2)}, {vr(r, 2)}, {vr(r, 2)}")

    joint("jV", True)
    single("sV", LW, GA, True, True, 10)
    CV = 80
    a(f"ds_read2_b32 {vr(CV, 2)}, v{eL} offset0:0 offset1:16\nds_read2_b32 {vr(CV + 2, 2)}, v{eL} offset0:32 offset1:48")
    reg_stats(E0, eR, 0)
    reg_stats(E1, eR, 512)
    a(f"""
    s_and_b32 s{s_t1}, s{s_wj}, 1
    s_lshl_b32 s{s_t0}, s{s_rb}, 1
    s_add_u32 s{s_t0}, s{s_t0}, s{s_t1}
    s_mul_i32 s{s_o[0]}, s{s_t0}, 81920
    s_add_u32 s{s_o[0]}, s{s_o[0]}, {WS_V}
    s_add_u32 s{s_o[1]}, s{s_o[0]}, 40960
    s_waitcnt lgkmcnt(0)
    """)
    a("\n".join(wreads(LF, 0, 0)))
    stamp(a, prof, 3)
    for kt in range(2):
        for ci in range(4):
            ob = 88 + 4 * (ci & 1)
            prs = [(gacc(tt, ci) + i, 4 * tt + i) for tt in (2 * kt, 2 * kt + 1) for i in (0, 2)]
            for r, q in prs:
                a(f"v_pk_fma_f32 {vr(r, 2)}, {vr(E0 + q, 2)}, {vr(CV + (ci & 2), 2)}, {vr(r, 2)} op_sel:[0,{ci & 1},0] op_sel_hi:[1,{ci & 1},1]")
            for r, q in prs:
                a(f"v_pk_mul_f32 {vr(r, 2)}, {vr(r, 2)}, {vr(E1 + q, 2)}")
            for p in range(4):
                a(f"v_cvt_pk_bf16_f32 v{ob + p}, v{prs[p][0]}, v{prs[p][0] + 1}")
            a(put_piece(ob, eS, kt, ci))
    a(f"""
    s_cmp_ge_u32 s{s_ho}, 27
    s_cbranch_scc0 {L('a_done')}
    {L('a_only')}:
    s_barrier
    s_waitcnt vmcnt(0) lgkmcnt(0)
    """)
    set_flag(WS_FA)
    a(f"""
    s_barrier
    {L('a_none')}:
    s_mov_b32 s{s_o[0]}, {WS_TOP}
    s_mov_b32 s{s_o[1]}, {WS_TOP}
    s_branch {L('a_go')}
    """)
    a(f"{L('aN')}:\ns_cmp_ge_u32 s{s_ho}, 27\ns_cbranch_scc1 {L('sN')}")
    joint("jN", False)
    single("sN", LW, GA, False, True, 10)
    reg_stats(E0, eR, L_CSA - L_NM)
    lane_stats(E1, hL)
    a(f"""
    s_lshl_b32 s{s_o[0]}, s{s_o[2]}, 18
    s_add_u32 s{s_o[1]}, s{s_o[0]}, {4 * CH}
    s_cmp_lt_u32 s{s_cg}, 5
    s_cselect_b32 s{s_t0}, {QSCALE}, 1.0
    s_waitcnt lgkmcnt(0)
    """)
    a("\n".join(wreads(LF, 0, 0)))
    stamp(a, prof, 3)
    for tt in range(4):
        a(f"v_mul_f32 v{E1 + 2 * tt + 1}, s{s_t0}, v{E1 + 2 * tt + 1}")
    pack_tiles(GA, qk_math, lambda cp, tt: 248 + 4 * cp, eS)
    a(f"s_cmp_ge_u32 s{s_ho}, 27\ns_cbranch_scc1 {L('a_only')}\n{L('a_done')}:")
    stamp(a, prof, 4)
    a("s_waitcnt lgkmcnt(0)\ns_barrier")
    reg_stats(F0, hR, L_CSB - L_NM)
    reg_stats(F1, hR, L_BI - L_NM)
    lane_stats(F2, hL)
    a(f"s_mov_b32 s{s_hook}, {12 if cfg['flag'] else 13}\ns_waitcnt lgkmcnt(3)")
    single("sF", LF, GB, False, False, f"s{s_hook}")
    if cfg["flag"]:
        a(f"s_cmp_eq_u32 s{s_c}, 13\ns_cbranch_scc1 {L('eF')}")
    a("s_waitcnt vmcnt(0)")
    set_flag(WS_FA)
    stamp(a, prof, 5)
    a("s_barrier")
    if cfg["flag"]:
        a(f"s_branch {L('sF')}\n{L('eF')}:")
    stamp(a, prof, 12)
    pack_tiles(GB, ffn_math, lambda cp, tt: PH + 16 * cp + 4 * tt)
    a(f"""
    s_add_u32 s{s_o[0]}, s{s_ho}, 20
    s_lshl_b32 s{s_o[0]}, s{s_o[0]}, 18
    s_add_u32 s{s_o[1]}, s{s_o[0]}, {4 * CH}
    {L('a_go')}:
    s_and_b32 s{s_fl}, s{s_fl}, 31
    s_lshl_b32 s{s_t0}, s{s_ho}, 5
    s_add_u32 s{s_fl}, s{s_fl}, s{s_t0}
    s_setprio 1
    s_mov_b32 s{s_c}, 0
    """)
    zero(SS[1], 16 + 32 + 8)
    stamp(a, prof, 13)
    hput = [put_piece(PH + 4 * k, hS, k >> 2, k & 3) for k in range(8)]
    if cfg["hpos"] == 0:
        a("s_barrier")
        stamp(a, prof, 18)
        a("\n".join(hput))
        stamp(a, prof, 19)
        hput = [""] * 8
    a("s_barrier")
    stamp(a, prof, 6)
    for ab in range(2):
        a(f"ds_read_b128 {vr(Q1[ab], 4)}, v{AQ} offset:{L_Q + 1024 * ab}")
        for par in range(2):
            a(f"ds_read_b64 {vr(Q2[ab][par], 2)}, v{30 + par} offset:{L_Q + 2048 + 512 * ab}")

    def rdK1(t):
        return f"ds_read_b128 {vr(K1[t & 1], 4)}, v{AK} offset:{(t & 7) * 1024}"

    def rdK2(p):
        return f"ds_read_b64 {vr(K2[p & 1], 2)}, v{AR} offset:{OFF_R + (p & 3) * 1024}"

    def rdV(j, t):
        return f"ds_read_b128 {vr((V0, V1)[j][t & 1], 4)}, v{AV} offset:{OFF_V + ((t & 7) * 2 + j) * 656}"

    def qk1(dst, ab, t, c):
        return f"v_mfma_f32_32x32x16_bf16 {vr(dst, 16)}, {vr(K1[t & 1], 4)}, {vr(Q1[ab], 4)}, {c}"

    def qk2(dst, ab, t):
        return f"v_mfma_f32_32x32x8_bf16 {vr(dst, 16)}, {vr(K2[(t >> 1) & 1], 2)}, {vr(Q2[ab][t & 1], 2)}, {vr(dst, 16)}"

    def pv(ab, j, t):
        return f"v_smfmac_f32_32x32x32_bf16 {vr(OO[ab], 16)}, {vr((V0, V1)[j][t & 1], 4)}, {vr(SS[ab] + 8 * j, 8)}, v{IDX}"

    def row_max(dst, bufs):
        regs = [b + i for b in bufs for i in range(16)]
        a(f"v_max3_f32 v{dst}, v{regs[0]}, v{regs[1]}, v{regs[2]}")
        rest = regs[3:]
        while len(rest) >= 2:
            a(f"v_max3_f32 v{dst}, v{dst}, v{rest[0]}, v{rest[1]}")
            rest = rest[2:]
        if rest:
            a(f"v_max_f32 v{dst}, v{dst}, v{rest[0]}")

    def set_shift(ab, shift):
        m = MX[ab]
        a(f"""
        v_mov_b32 v{T[2]}, v{m}
        s_nop 1
        v_permlane32_swap_b32 v{m}, v{T[2]}
        v_max_f32 v{m}, v{m}, v{T[2]}
        v_sub_f32 v{CM[ab]}, {f32(-shift) if shift else 0}, v{m}
        v_mov_b32 v{CM[ab] + 1}, v{CM[ab]}
        """)
        for i in range(2, 16, 2):
            a(f"v_mov_b64 {vr(CM[ab] + i, 2)}, {vr(CM[ab], 2)}")

    a("\n".join([rdK1(0), rdK2(0), rdK1(1), rdV(0, 0), rdV(1, 0)]))
    a("s_waitcnt lgkmcnt(0)" if prof is True else "s_waitcnt lgkmcnt(2)")
    est = {(0, 0): SS[0], (0, 1): CM[0], (1, 0): TS, (1, 1): CM[1]}
    for t in range(2):
        a(qk1(est[0, t], 0, t, 0) + "\n" + qk2(est[0, t], 0, t))
    a(qk1(est[1, 0], 1, 0, 0) + "\ns_nop 7\ns_nop 0")
    work = capture(lambda: (row_max(MX[0], [SS[0], CM[0]]), set_shift(0, SHIFT)))
    for k, x in enumerate((qk2(est[1, 0], 1, 0), qk1(est[1, 1], 1, 1, 0), qk2(est[1, 1], 1, 1))):
        a(x + "\n" + "\n".join(work[6 * k:6 * k + 6]))
    a("\n".join(work[18:]) + "\ns_nop 1")
    work = capture(lambda: (row_max(MX[1], [TS, CM[1]]), set_shift(1, SHIFT)))
    a(qk1(SS[0], 0, 0, vr(CM[0], 16)) + "\n" + "\n".join(work[:7]))
    a(qk2(SS[0], 0, 0) + "\n" + "\n".join(work[7:]))
    a("s_waitcnt lgkmcnt(0)")

    def slot_events(ab, t):
        o = 1 - ab
        tp = t - 1 if ab == 0 else t
        tn = t if ab == 0 else t + 1
        e = [("i", f"v_exp_f32 v{SS[ab] + i}, v{SS[ab] + i}") for i in range(16)]
        ev = []
        if ab == 0 and t % 8 == 7:
            ev += [("i", f"v_add_u32 v{AV}, s{s_slot}, v{AV0}")]
        ev += e[0:2]
        ev += [("use", ("V1", tp)), ("i", pv(o, 1, tp)), ("wait",)]
        if ab == 1 and t % 8 == cfg["hk"]:
            ev += [("l", f"s_cmp_eq_u32 s{s_c}, {1 if cfg['hpos'] else 0}")]
        if ab == 0 and t % 8 == 6:
            ev += [("i", "s_barrier")]
        if ab == 0 and t % 8 == 4:
            ev += [("i", f"s_add_u32 s{s_slot}, s{s_slot}, {SLOT}")]
        if ab == 1 and t % 8 == 4:
            ev += [("i", f"s_cmp_eq_u32 s{s_slot}, {3 * SLOT}")]
        if ab == 1 and t % 8 == 6:
            ev += [("i", f"s_add_u32 s{s_c}, s{s_c}, 1")]
        if ab == 0:
            ev += [("rd", rdV(1, t + 1), ("V1", t + 1))]
        ev += e[2:5]
        if ab == 0 and t % 8 == 6:
            ev += [("i", f"v_add_u32 v{AK}, s{s_slot}, v{AK0}"), ("i", f"v_add_u32 v{AR}, s{s_slot}, v{AR0}")]
        ev += [("use", ("K1", tn)), ("i", qk1(SS[o], o, tn, vr(CM[o], 16))), ("wait",)]
        if ab == 0:
            ev += [("rd", rdK1(t + 2), ("K1", t + 2))]
        else:
            ev += [("rd", rdV(0, t + 1), ("V0", t + 1))]
        ev += e[5:8]
        ev += [("use", ("K2", tn >> 1)), ("i", qk2(SS[o], o, tn))]
        ev += e[8:12]
        ev += [("use", ("V0", t)), ("i", pv(ab, 0, t)), ("wait",)]
        if ab == 1 and t % 8 == 4:
            ev += [("i", f"s_cselect_b32 s{s_slot}, 0, s{s_slot}")]
        if ab == 1 and t % 8 == cfg["hk"]:
            ev += [("l", f"s_cbranch_scc1 {L('hk')}\n{L('hk_r')}:")]
        if ab == 0:
            ev += [("p", hput[t % 8])]
        if ab == 1 and t % 8 == 7:
            ev += [("i", f"s_cmp_lt_u32 s{s_c}, 8")]
        if ab == 1 and t % 2 == 0:
            ev += [("rd", rdK2(t // 2 + 1), ("K2", t // 2 + 1))]
        ev += e[12:16]
        return ev

    evs = []
    for t in range(24):
        for ab in range(2):
            evs += [(t, x) for x in slot_events(ab, t)]
    issue_idx = {}
    n = 0
    for t, x in evs:
        if x[0] == "rd":
            issue_idx[x[2]] = n
            n += 1
    tail4 = "\n".join(f"v_exp_f32 v{SS[1] + i}, v{SS[1] + i}" for i in range(12, 16))

    def trip(kind):
        n, have = 0, -1
        for k, (t, x) in enumerate(evs):
            emit = 8 <= t < 16
            if x[0] == "rd":
                n += 1
                if emit:
                    a(x[1])
            elif x[0] in ("i", kind):
                if emit:
                    a(x[1])
            elif x[0] == "wait" and t >= 4:
                need = -1
                for t2, y in evs[k + 1:]:
                    if y[0] == "wait":
                        break
                    if y[0] == "use":
                        assert issue_idx[y[1]] < n, (t, y)
                        need = max(need, issue_idx[y[1]])
                if need > have and emit:
                    a(f"s_waitcnt lgkmcnt({n - 1 - need})")
                have = max(have, need)
        del a.lines[-4:]
        if 0 < cfg.get("trace", 0) < 4:
            stamp(a, prof, 23)
            a("s_waitcnt lgkmcnt(0)")

    if cfg["hpos"]:
        trip("p")
        a(f".p2align 3\n{L('aloop')}:\n{tail4}")
    else:
        a(f"s_branch {L('aent')}\n.p2align 3\n{L('aloop')}:\n{tail4}\n{L('aent')}:")
    trip("l")
    a(f"s_cbranch_scc1 {L('aloop')}")
    a(tail4)

    def magnitude(ab):
        o, t = OO[ab], T[2 + ab]
        a(f"v_maximum3_f32 v{t}, |v{o}|, |v{o + 1}|, |v{o + 2}|")
        for i in (3, 5, 7, 9):
            a(f"v_maximum3_f32 v{t}, v{t}, |v{o + i}|, |v{o + i + 1}|")
        a(f"v_maximum3_f32 v{t}, v{t}, |v{o + 11}|, |v{o + 11}|")

    def normalise(ab, guard):
        o = OO[ab]
        for p in range(6):
            a(f"v_pk_mul_f32 {vr(o + 2 * p, 2)}, {vr(o + 2 * p, 2)}, {vr(o + 12, 2)} op_sel:[0,1] op_sel_hi:[1,1]")
        for p in range(6):
            a(f"v_cvt_pk_bf16_f32 v{CM[ab] + p}, v{o + 2 * p}, v{o + 2 * p + 1}")
        if guard:
            for p in (1, 3, 5):
                a(f"v_min_u32 v{CM[ab] + p}, -2, v{CM[ab] + p}")

    a(f"v_rcp_f32 v{OO[0] + 13}, v{OO[0] + 12}\ns_waitcnt lgkmcnt(0)")
    a(pv(1, 1, 7))
    stamp(a, prof, 7)
    a(f"""
    s_barrier
    s_mov_b32 s{s_t0}, {f32(2.0 ** 126)}
    s_mov_b32 s{s_t1}, {f32(2.0 ** (-7 - SHIFT))}
    """)
    magnitude(0)
    normalise(0, False)
    a(f"v_rcp_f32 v{OO[1] + 13}, v{OO[1] + 12}")
    magnitude(1)
    a(f"""
    v_maximum3_f32 v{T[4]}, v{T[2]}, v{T[3]}, v{OO[0] + 12}
    v_min_f32 v{T[2]}, v{T[2]}, v{T[3]}
    v_maximum3_f32 v{T[4]}, v{T[4]}, v{OO[1] + 12}, v{OO[1] + 12}
    v_cmp_le_f32 vcc, s{s_t1}, v{T[2]}
    v_cmp_gt_f32 s[{s_t2}:{s_t2 + 1}], s{s_t0}, v{T[4]}
    s_add_u32 s{s_t0}, s{s_cm}, {C_O * CH}
    s_add_u32 s{s_t1}, s{s_cr}, {C_O * CH}
    s_and_b64 vcc, vcc, s[{s_t2}:{s_t2 + 1}]
    s_cmp_eq_u64 vcc, exec
    """)
    a(f"s_branch {L('slow')}" if force_fallback else f"s_cbranch_scc0 {L('slow')}")

    def put_out(ab):
        a(f"""
        buffer_store_dwordx4 {vr(CM[ab], 4)}, v{VQ}, {WSD}, s{s_t0} offen offset:{512 * ab} sc1
        s_mov_b32 exec_hi, 0
        buffer_store_dwordx2 {vr(CM[ab] + 4, 2)}, v{VQR}, {WSD}, s{s_t1} offen offset:{512 * ab} sc1
        s_mov_b32 exec_hi, -1
        """)

    put_out(0)
    normalise(1, False)
    a(f"{L('norm')}:")
    put_out(1)
    stamp(a, prof, 17)
    a("s_barrier")
    stamp(a, prof, 8)
    a(f"s_branch {L('dump')}" if prof else "s_endpgm")

    a(f"{L('hk')}:\ns_waitcnt vmcnt(0)")
    set_flag(WS_FH)
    a(f"s_branch {L('hk_r')}")

    a(f"{L('slow')}:")
    GR, GV = AR, AV
    a(f"v_and_b32 v{T[0]}, 31, v{vL}\nv_lshrrev_b32 v{T[1]}, 5, v{vL}")
    key_perm(T[2], T[0], T[3], T[4])
    a(f"""
    s_lshl_b32 s{s_t0}, s{s_par}, 3
    s_add_u32 s{s_t0}, s{s_t0}, s{s_cr}
    v_lshl_add_u32 v{GR}, v{T[2]}, 4, s{s_t0}
    v_lshl_add_u32 v{vK}, v{T[2]}, 4, s{s_cm}
    v_lshl_add_u32 v{vK}, v{T[1]}, 15, v{vK}
    """)
    v_feature(T[2], T[0], T[3], T[4])
    a(f"""
    s_mul_i32 s{s_t0}, s{s_head}, 320
    v_mul_u32_u24 v{T[4]}, 10240, v{T[1]}
    v_lshl_add_u32 v{T[2]}, v{T[2]}, 4, v{T[4]}
    v_add_u32 v{GV}, s{s_t0}, v{T[2]}
    v_mov_b32 v{MX[0]}, 0xff800000
    v_mov_b32 v{MX[1]}, 0xff800000
    s_mov_b32 s{s_ko}, {C_K * CH}
    {L('slow1')}:
    buffer_load_dwordx4 {vr(K1[0], 4)}, v{vK}, {WSD}, s{s_ko} offen sc1
    buffer_load_dwordx2 {vr(K2[0], 2)}, v{GR}, {WSD}, s{s_ko} offen sc1
    s_add_u32 s{s_ko}, s{s_ko}, 512
    s_waitcnt vmcnt(0)
    """)
    for ab in range(2):
        a(qk1(SS[ab], ab, 0, 0))
        a(qk2(SS[ab], ab, 0))
    a("s_nop 7\ns_nop 3")
    for ab in range(2):
        for i in range(0, 16, 2):
            a(f"v_max3_f32 v{MX[ab]}, v{MX[ab]}, v{SS[ab] + i}, v{SS[ab] + i + 1}")
    a(f"s_cmp_lt_u32 s{s_ko}, {(C_K + 1) * CH}\ns_cbranch_scc1 {L('slow1')}")
    for ab in range(2):
        set_shift(ab, 0)
    zero(OO[0], 32)
    for r in range(4):
        a(f"v_mov_b32 v{V0[0] + r}, 0x3f803f80\nv_mov_b32 v{V1[0] + r}, 0x3f803f80")
    a(f"""
    s_mov_b32 s{s_ko}, {C_K * CH}
    s_mov_b32 s{s_vo}, {WS_V}
    {L('slow2')}:
    buffer_load_dwordx4 {vr(K1[0], 4)}, v{vK}, {WSD}, s{s_ko} offen sc1
    buffer_load_dwordx2 {vr(K2[0], 2)}, v{GR}, {WSD}, s{s_ko} offen sc1
    s_mov_b32 exec_lo, 0xfffff
    s_mov_b32 exec_hi, 0xfffff
    buffer_load_dwordx4 {vr(V0[0], 4)}, v{GV}, {WSD}, s{s_vo} offen sc1
    s_add_u32 s{s_vo}, s{s_vo}, 20480
    buffer_load_dwordx4 {vr(V1[0], 4)}, v{GV}, {WSD}, s{s_vo} offen sc1
    s_mov_b64 exec, -1
    s_add_u32 s{s_vo}, s{s_vo}, 20480
    s_add_u32 s{s_ko}, s{s_ko}, 512
    s_waitcnt vmcnt(0)
    """)
    for ab in range(2):
        a(qk1(SS[ab], ab, 0, vr(CM[ab], 16)))
        a(qk2(SS[ab], ab, 0))
    a("s_nop 7\ns_nop 3")
    for ab in range(2):
        for i in range(16):
            a(f"v_exp_f32 v{SS[ab] + i}, v{SS[ab] + i}")
    a("s_nop 1")
    for ab in range(2):
        a(pv(ab, 0, 0))
        a(pv(ab, 1, 0))
    a(f"""
    s_cmp_lt_u32 s{s_ko}, {(C_K + 1) * CH}
    s_cbranch_scc1 {L('slow2')}
    s_nop 7
    s_nop 3
    v_rcp_f32 v{OO[0] + 13}, v{OO[0] + 12}
    v_rcp_f32 v{OO[1] + 13}, v{OO[1] + 12}
    s_add_u32 s{s_t0}, s{s_cm}, {C_O * CH}
    s_add_u32 s{s_t1}, s{s_cr}, {C_O * CH}
    """)
    normalise(0, True)
    normalise(1, True)
    put_out(0)
    a(f"s_branch {L('norm')}")

    a(f"""
    {L('near')}:
    s_lshl_b32 s{s_t0}, s{s_rb}, 3
    s_add_u32 s{s_t0}, s{s_t0}, s{s_w}
    s_mul_i32 s{s_t1}, s{s_t0}, {135 * 128}
    s_mul_i32 s{s_t0}, s{s_t0}, {50 * 128}
    v_lshlrev_b32 v{T[2]}, 7, v{vL}
    s_mov_b64 s[{sA}:{sA + 1}], s[16:17]
    s_mov_b32 s{sA + 2}, {F * D * 2}
    s_mov_b32 exec_hi, 0x1fff
    """)
    for i in range(3):
        a(f"buffer_load_dword v{88 + i}, v{T[2]}, s[{sA}:{sA + 3}], s{s_t1} offen\ns_add_u32 s{s_t1}, s{s_t1}, {45 * 128}")
    a(f"""
    s_mov_b64 s[{sA}:{sA + 1}], s[8:9]
    s_mov_b32 s{sA + 2}, {D * D * 2}
    s_mov_b32 exec_hi, 0x3ffff
    buffer_load_dword v91, v{T[2]}, s[{sA}:{sA + 3}], s{s_t0} offen
    s_mov_b32 exec_hi, -1
    s_branch {L('p_go')}
    """)

    g0_lines, a.lines = a.lines, []
    MK, G = 240, 96
    VX, VW, VG = [11, 12, 13, 14], [15, 16, 17, 18], [19, 20, 21, 22]
    gR, gL, gA, gB = 24, 25, 26, 27
    fC, mQ, mQR, mQD, fB, FK, FO, one, pH, pO = range(246, 256)

    def w_addr(VF, stride, grp):
        a(f"""
        v_lshrrev_b32 v{T[0]}, 4, v{vL}
        v_lshlrev_b32 v{T[1]}, 1, v{T[0]}
        v_xor_b32 v{T[1]}, v{T[1]}, v{vL}
        v_and_b32 v{T[1]}, 15, v{T[1]}
        s_lshl_b32 s{s_t1}, s{grp}, 8
        s_mul_i32 s{s_t0}, s{s_wj}, {16 * stride}
        s_add_u32 s{s_t1}, s{s_t1}, s{s_t0}
        v_mul_u32_u24 v{T[0]}, {stride}, v{T[0]}
        v_add_u32 v{T[0]}, s{s_t1}, v{T[0]}
        v_lshl_add_u32 v{VF[0]}, v{T[1]}, 4, v{T[0]}
        v_xor_b32 v{T[1]}, 8, v{T[1]}
        v_lshl_add_u32 v{VF[2]}, v{T[1]}, 4, v{T[0]}
        v_add_u32 v{VF[1]}, {4 * stride - 1024}, v{VF[0]}
        v_add_u32 v{VF[3]}, {3 * (4 * stride - 1024)}, v{VF[2]}
        v_add_u32 v{VF[2]}, {2 * (4 * stride - 1024)}, v{VF[2]}
        """)

    TF, TA, TV = 32, [52, 53], [54, 55, 56, 57, 58]
    has_block = f"s_cmp_lt_u32 s{s_tt}, 74"

    def block_addr():
        a(f"""
        s_and_b32 s{s_tt}, s2, 31
        s_lshl_b32 s{s_t0}, s{s_wj}, 5
        s_add_u32 s{s_tt}, s{s_tt}, s{s_t0}
        s_mul_i32 s{s_c}, s{s_wj}, 5120
        s_add_u32 s{s_c}, s{s_c}, {STG + LW}
        """)
        for i in range(5):
            a(f"""
            v_add_u32 v{T[2]}, {64 * i}, v{vL}
            v_mul_u32_u24 v{T[3]}, 6554, v{T[2]}
            v_lshrrev_b32 v{T[3]}, 16, v{T[3]}
            v_mul_u32_u24 v{T[3]}, {1280 - 160}, v{T[3]}
            v_lshl_add_u32 v{TV[i]}, v{T[2]}, 4, v{T[3]}
            """)
        a(f"""
        v_lshrrev_b32 v{T[2]}, 4, v{vL}
        v_bfe_u32 v{T[3]}, v{vL}, 2, 2
        v_lshl_add_u32 v{T[2]}, v{T[2]}, 3, v{T[3]}
        v_mul_u32_u24 v{T[2]}, 160, v{T[2]}
        v_add_u32 v{T[2]}, s{s_c}, v{T[2]}
        v_and_b32 v{T[3]}, 3, v{vL}
        v_lshl_add_u32 v{TA[0]}, v{T[3]}, 4, v{T[2]}
        v_lshl_add_u32 v{TA[1]}, v{T[3]}, 3, v{T[2]}
        """)

    def block_fetch():
        a(f"""
        s_cmp_lt_u32 s{s_tt}, 54
        s_cselect_b64 s[{sA}:{sA + 1}], s[16:17], s[8:9]
        s_mov_b32 s{sA + 2}, {F * D * 2}
        s_cselect_b32 s{sA + 2}, s{sA + 2}, {D * D * 2}
        s_cselect_b32 s{s_t1}, 0, 54
        s_sub_u32 s{s_t0}, s{s_tt}, s{s_t1}
        s_mul_i32 s{s_t0}, s{s_t0}, {32 * 1280}
        s_mul_i32 s{s_t1}, s{s_qb}, 160
        s_add_u32 s{s_t0}, s{s_t0}, s{s_t1}
        """)
        for i in range(5):
            a(f"s_add_u32 m0, s{s_c}, {i * 1024}\ns_nop 0")
            a(f"buffer_load_dwordx4 v{TV[i]}, s[{sA}:{sA + 3}], s{s_t0} offen lds")

    def block_turn():
        a("s_waitcnt vmcnt(0)")
        for c in range(5):
            va, off = (TA[0], 64 * (c >> 1) + 8 * (c & 1)) if c < 4 else (TA[1], 128)
            for h in range(2):
                a(f"ds_read_b64_tr_b16 {vr(TF + 4 * c + 2 * h, 2)}, v{va} offset:{off + 640 * h}")
        a("s_waitcnt lgkmcnt(0)")

    def block_put():
        a(f"""
        s_mul_i32 s{s_t0}, s{s_tt}, {KS_ROW}
        s_mul_i32 s{s_t1}, s{s_qb}, 5120
        s_add_u32 s{s_t0}, s{s_t0}, s{s_t1}
        s_add_u32 s{s_t0}, s{s_t0}, {WS_WT}
        s_add_u32 s{s_t1}, s{s_t0}, 4096
        v_lshlrev_b32 v{T[2]}, 4, v{vL}
        """)
        for c in range(5):
            a(f"buffer_store_dwordx4 {vr(TF + 4 * c, 4)}, v{T[2]}, {WSD}, s{(s_t0, s_t1)[c >> 2]} offen offset:{1024 * (c & 3)} sc1")

    def later_addr():
        attn_ids()
        block_addr()
        kv_addr(0)
        ones_addr(one, 0, 3)
        a(f"v_and_b32 v{T[0]}, 1, v{vL}")
        head_unit(T[1], T[0])
        a(f"""
        v_lshrrev_b32 v{T[0]}, 1, v{vL}
        v_min_u32 v{T[0]}, 2, v{T[0]}
        v_mad_u32_u24 v{T[1]}, v{T[0]}, 10, v{T[1]}
        v_mov_b32 v{T[2]}, s{s_kc}
        s_mov_b64 exec, 3
        v_mov_b32 v{T[2]}, s{s_qb}
        s_mov_b64 exec, -1
        v_lshl_add_u32 v{T[2]}, v{T[2]}, 2, s{s_wj}
        """)
        flag_of_tile(FO, f"v{T[2]}", T[1])
        a(f"v_and_b32 v{T[0]}, 1, v{vL}")
        head_unit(T[1], T[0])
        a(f"""
        v_bfe_u32 v{T[0]}, v{vL}, 1, 1
        v_mad_u32_u24 v{T[1]}, v{T[0]}, 10, v{T[1]}
        v_add_u32 v{T[1]}, 10, v{T[1]}
        v_and_b32 v{T[0]}, 28, v{vL}
        v_add_u32 v{T[0]}, s{s_wj}, v{T[0]}
        """)
        flag_of_tile(FK, f"v{T[0]}", T[1])
        q_addr(mQ, mQR)
        a(f"""
        v_lshl_add_u32 v{mQD}, v{vL}, 4, s{s_t0}
        s_lshl_b32 s{s_t0}, s{s_head}, 2
        s_add_u32 s{s_t0}, s{s_t0}, s{s_wj}
        v_and_b32 v{T[2]}, 15, v{vL}
        v_lshl_add_u32 v{T[2]}, s{s_t0}, 4, v{T[2]}
        v_lshrrev_b32 v{T[3]}, 4, v{vL}
        v_lshlrev_b32 v{pH}, 15, v{T[3]}
        v_lshl_add_u32 v{pH}, v{T[2]}, 4, v{pH}
        v_mul_u32_u24 v{pO}, 1280, v{T[2]}
        """)
        a(f"""
        v_min_u32 v{T[3]}, 26, v{T[0]}
        v_lshl_add_u32 v{fC}, v{T[3]}, 5, s{s_head}
        v_lshl_add_u32 v{T[3]}, v{T[0]}, 2, s{s_wj}
        v_min_u32 v{T[3]}, 53, v{T[3]}
        v_subrev_u32 v{T[4]}, 16, v{T[0]}
        v_min_u32 v{T[4]}, 4, v{T[4]}
        v_lshl_add_u32 v{T[4]}, v{T[4]}, 2, s{s_wj}
        s_lshl_b32 s{s_t0}, s{s_qb}, 7
        s_add_u32 s{s_t0}, s{s_t0}, 1024
        s_add_u32 s{s_fl}, s{s_t0}, s{s_tt}
        s_add_u32 s{s_t1}, s{s_t0}, 54
        s_mov_b32 exec_lo, 0
        v_add_u32 v{fC}, s{s_t0}, v{T[3]}
        s_mov_b32 exec_hi, 0xffff0000
        v_add_u32 v{fC}, s{s_t1}, v{T[4]}
        s_mov_b64 exec, -1
        v_lshlrev_b32 v{fC}, 7, v{fC}
        s_lshr_b32 s{s_t0}, s{s_head}, 2
        v_lshl_add_u32 v{fB}, s{s_t0}, 5, v{T[0]}
        v_lshlrev_b32 v{fB}, 7, v{fB}
        """)

    def boundary(wait=None):
        if wait is not None:
            a(f"s_waitcnt vmcnt({wait})")
        if 1 < cfg.get("trace", 0) < 4:
            stamp(a, prof, 21)
        a("s_barrier")

    def ask_tag():
        srd(a, sWS, 22, WS_TOP)
        load_tag()

    def take_tag():
        a(f"s_waitcnt lgkmcnt(0)\ns_add_u32 s{s_tag}, s{s_tag}, 1")

    def split(ops, n):
        k = -(-len(ops) // n)
        return [ops[i * k:(i + 1) * k] for i in range(n)]

    def feed(c, which="xwf", mix=()):
        mix = list(mix)
        per = -(-len(mix) // max(4 * len(which), 1))
        for key, part, va, sd, step in (("x", LX, VX, sX, 128), ("w", LW, VW, sW, 64 * 3840), ("f", LF, VG, sB, 64 * 3456)):
            if key in which:
                half = {"x": s_xo, "w": s_wstep, "f": s_ho}[key]
                a(f"s_add_u32 m0, s{s_ring}, {(c % 3) * STG + part}")
                if cfg["rot"]:
                    a(f"s_mov_b32 s{s_wo}, s{half}\ns_add_u32 s{half}, s{half}, {step}\n"
                      f"s_cmp_eq_u32 s{half}, {10 * step}\ns_cselect_b32 s{half}, 0, s{half}")
                else:
                    a(f"s_add_u32 s{s_wo}, s{half}, {c * step}" if c < 5 else f"s_sub_u32 s{s_wo}, {c * step}, s{half}")
                for i in range(4):
                    a(f"buffer_load_dwordx4 v{va[i]}, s[{sd}:{sd + 3}], s{s_wo} offen offset:{1024 * i} lds")
                    a("\n".join(mix[:per]))
                    mix = mix[per:]

    def only(name, cond, fn):
        a(f"{cond}\ns_cbranch_scc0 {L(name)}")
        fn()
        a(f"{L(name)}:")

    feeding = f"s_cmp_lt_u32 s{s_cg}, 15"
    a(f"""
    s_lshl_b32 s{s_ring}, s{s_wj}, 12
    s_mul_i32 s{s_t3}, s{s_t3}, 5
    """)
    if cfg["rot"]:
        a(f"""
        s_mul_i32 s{s_t3}, s{s_cg}, {cfg['rot'] >> 4}
        s_mul_i32 s{s_t0}, s{s_rb}, {cfg['rot'] & 15}
        s_add_u32 s{s_t3}, s{s_t3}, s{s_t0}
        s_mul_i32 s{s_t0}, s{s_t3}, 6554
        s_lshr_b32 s{s_t0}, s{s_t0}, 16
        s_mul_i32 s{s_t0}, s{s_t0}, 10
        s_sub_u32 s{s_t3}, s{s_t3}, s{s_t0}
        """)
    a(f"""
    s_mul_i32 s{s_xo}, s{s_t3}, 128
    s_mul_i32 s{s_wstep}, s{s_t3}, {64 * 3840}
    s_mul_i32 s{s_ho}, s{s_t3}, {64 * 3456}
    v_lshrrev_b32 v{T[2]}, 4, v{vL}
    v_xor_b32 v{T[2]}, v{T[2]}, v{T[1]}
    s_lshl_b32 s{s_t1}, s{s_rb}, 2
    s_add_u32 s{s_t1}, s{s_t1}, s{s_wj}
    s_mul_i32 s{s_t1}, s{s_t1}, {32 * 1280}
    v_mul_u32_u24 v{T[3]}, 1280, v{T[0]}
    v_add_u32 v{T[3]}, s{s_t1}, v{T[3]}
    v_lshl_add_u32 v{VX[0]}, v{T[2]}, 4, v{T[3]}
    v_xor_b32 v{T[2]}, 4, v{T[2]}
    v_lshl_add_u32 v{VX[1]}, v{T[2]}, 4, v{T[3]}
    v_add_u32 v{VX[2]}, {2 * (10240 - 1024)}, v{VX[0]}
    v_add_u32 v{VX[3]}, {3 * (10240 - 1024)}, v{VX[1]}
    v_add_u32 v{VX[1]}, {10240 - 1024}, v{VX[1]}
    v_and_b32 v{SO}, 48, v{vL}
    v_lshl_add_u32 v{SO}, v{T[1]}, 6, v{SO}
    """)
    srd(a, sX, 4, S * D * 2)

    def touch():
        a(f"""
        s_getpc_b64 s[{sA}:{sA + 1}]
        {L('pc')}:
        s_sub_u32 s{sA}, s{sA}, {L('pc')}-{label}
        s_subb_u32 s{sA + 1}, s{sA + 1}, 0
        s_mov_b32 s{sA + 2}, {L('end')}-{label}
        s_lshr_b32 s{s_t0}, s2, 3
        s_mul_i32 s{s_t0}, s{s_t0}, {9 * 128}
        v_lshlrev_b32 v{T[2]}, 7, v{vL}
        s_mov_b64 exec, 0x1ff
        buffer_load_dword v226, v{T[2]}, s[{sA}:{sA + 3}], s{s_t0} offen
        s_mov_b64 exec, -1
        """)

    if cfg["touch"] & 1:
        only("tc", f"s_cmp_eq_u32 s{s_wj}, 0", touch)
    srd(a, sA, 14, F * 2)
    a(f"""
    s_lshl_b32 s{s_t2}, s{s_cf}, 8
    v_lshlrev_b32 v{T[2]}, 2, v{vL}
    buffer_load_dword v28, v{T[2]}, s[{sA}:{sA + 3}], s{s_t2} offen
    """)
    ask_tag()
    w_addr(VW, 3840, s_cg)
    w_addr(VG, 3456, s_cf)
    srd(a, sW, 6, D * 3 * D * 2)
    srd(a, sB, 12, D * F * 2)
    a(f"""
    s_cmp_lt_u32 s{s_cf}, 14
    s_cselect_b32 s{sB + 2}, s{sB + 2}, 0
    s_lshl_b32 s{s_o[1]}, s{s_o[1]}, 9
    s_add_u32 s{s_o[0]}, s{s_o[0]}, s{s_o[1]}
    s_add_u32 s{s_o[0]}, s{s_o[0]}, {WS_CP}
    s_and_b32 s{s_t1}, s{s_wj}, 1
    v_lshl_add_u32 v{gL}, s{s_t1}, 6, v{vL}
    s_lshl_b32 s{s_t3}, s{s_rb}, 11
    v_lshl_add_u32 v{gR}, v{gL}, 4, s{s_t3}
    s_add_u32 s{s_t2}, s{s_cf}, 15
    s_cmp_eq_u32 s{s_t1}, 0
    s_cselect_b32 s{s_t1}, s{s_cg}, s{s_t2}
    s_lshl_b32 s{s_t1}, s{s_t1}, 6
    v_add_u32 v{gA}, s{s_t1}, v{vL}
    v_min_u32 v{gA}, 1823, v{gA}
    v_lshlrev_b32 v{gA}, 4, v{gA}
    s_mov_b32 s{s_spin}, {SPIN}
    v_lshrrev_b32 v23, 1, v{SO}
    v_add_u32 v23, {L_CP}, v23
    """)
    if cfg["early"]:
        later_addr()
    take_tag()
    stamp(a, prof, 44)

    def sums():
        for r in range(20):
            c = AC + 2 * (r & 3)
            if r < 4:
                a(f"v_lshlrev_b32 v{c}, 16, v{SD + r}\nv_and_b32 v{c + 1}, 0xffff0000, v{SD + r}")
            else:
                lo, hi = T[2 + 2 * (r & 1)], T[3 + 2 * (r & 1)]
                a(f"v_lshlrev_b32 v{lo}, 16, v{SD + r}\nv_and_b32 v{hi}, 0xffff0000, v{SD + r}\n"
                  f"v_add_f32 v{c}, v{c}, v{lo}\nv_add_f32 v{c + 1}, v{c + 1}, v{hi}")
        a(f"s_lshl_b32 s{s_t0}, s{s_wj}, 8\nv_add_u32 v{T[2]}, s{s_t0}, v23")
        for i in range(4):
            a(f"v_permlane32_swap_b32 v{AC + i}, v{AC + 4 + i}")
        for i in range(4):
            a(f"v_add_f32 v{AC + i}, v{AC + i}, v{AC + 4 + i}")
        a("s_nop 1")
        for i in range(2):
            a(f"v_permlane16_swap_b32 v{AC + i}, v{AC + 2 + i}")
        a(f"v_add_f32 v{AC}, v{AC}, v{AC + 2}\nv_add_f32 v{AC + 1}, v{AC + 1}, v{AC + 3}\ns_nop 1")
        for r in (AC, AC + 1):
            a(f"v_add_f32_dpp v{r}, v{r}, v{r} row_ror:8 row_mask:0xf bank_mask:0xf")
        a(f"ds_write_b64 v{T[2]}, {vr(AC, 2)}")

    def publish():
        for i in range(4):
            a(f"ds_read_b64 {vr(AC + 2 * i, 2)}, v23 offset:{256 * i}")
        a(f"""
        s_waitcnt lgkmcnt(0)
        v_add_f32 v{AC}, v{AC}, v{AC + 2}
        v_add_f32 v{AC + 2}, v{AC + 1}, v{AC + 3}
        v_add_f32 v{AC + 4}, v{AC + 4}, v{AC + 6}
        v_add_f32 v{AC + 5}, v{AC + 5}, v{AC + 7}
        v_add_f32 v{AC}, v{AC}, v{AC + 4}
        v_add_f32 v{AC + 2}, v{AC + 2}, v{AC + 5}
        v_mov_b32 v{AC + 1}, s{s_tag}
        v_mov_b32 v{AC + 3}, s{s_tag}
        s_mov_b32 exec_lo, 0x00ff00ff
        s_mov_b32 exec_hi, 0x00ff00ff
        buffer_store_dwordx4 {vr(AC, 4)}, v{SO}, {WSD}, s{s_o[0]} offen sc1
        s_mov_b64 exec, -1
        """)

    def publish_rows():
        a(f"""
        s_lshl4_add_u32 s{s_t0}, s{s_rb}, s{s_cg}
        s_lshl_b32 s{s_t0}, s{s_t0}, 7
        s_add_u32 s{s_t0}, s{s_t0}, {WS_RS}
        v_lshlrev_b32 v{T[2]}, 4, v{vL}
        v_add_u32 v{T[3]}, {L_RP}, v{T[2]}
        s_cmp_eq_u32 s{s_cg}, 14
        s_movk_i32 s{s_t1}, 0xff
        s_cselect_b32 exec_lo, 0xffff, s{s_t1}
        s_mov_b32 exec_hi, 0
        ds_read_b128 {vr(AC, 4)}, v{T[3]}
        s_waitcnt lgkmcnt(0)
        buffer_store_dwordx4 {vr(AC, 4)}, v{T[2]}, {WSD}, s{s_t0} offen sc1
        s_mov_b64 exec, -1
        """)

    def gather_loads():
        a(f"s_mov_b32 s{s_slot}, {WS_RS}\nbuffer_load_dwordx4 {vr(G + 16, 4)}, v{gR}, {WSD}, s{s_slot} offen sc1")
        a(f"s_mov_b32 s{s_slot}, {WS_CP}")
        for p in range(4):
            a(f"buffer_load_dwordx4 {vr(G + 4 * p, 4)}, v{gA}, {WSD}, s{s_slot} offen sc1")
            a(f"s_add_u32 s{s_slot}, s{s_slot}, {CP_ROW}")

    def gather_put():
        a(f"s_branch {L('ga_chk')}\n{L('ga')}:")
        gather_loads()
        a(f"s_sub_u32 s{s_spin}, s{s_spin}, 1\ns_waitcnt vmcnt(0)\n{L('ga_chk')}:")
        a(f"v_min_u32 v{T[3]}, v{G + 1}, v{G + 3}\nv_max_u32 v{T[4]}, v{G + 1}, v{G + 3}")
        for p in range(1, 5):
            b = G + 4 * p
            a(f"v_min3_u32 v{T[3]}, v{T[3]}, v{b + 1}, v{b + 3}\nv_max3_u32 v{T[4]}, v{T[4]}, v{b + 1}, v{b + 3}")
        retry("ga")
        a(f"v_add_f32 v{G + 1}, v{G + 2}, v{G + 6}\nv_add_f32 v{G}, v{G}, v{G + 4}")
        for p in range(2, 4):
            b = G + 4 * p
            a(f"v_add_f32 v{G}, v{G}, v{b}\nv_add_f32 v{G + 1}, v{G + 1}, v{b + 2}")
        a(f"""
        s_mov_b32 s{s_t0}, {L_NM}
        v_lshlrev_b32 v{G + 2}, 16, v28
        v_and_b32 v{G + 3}, 0xffff0000, v28
        v_lshl_add_u32 v{T[3]}, v{gL}, 2, s{s_t0}
        v_lshl_add_u32 v{T[4]}, v{gL}, 3, s{s_t0}
        v_lshl_add_u32 v{T[5]}, v{vL}, 3, s{s_t0}
        ds_write2_b32 v{T[3]}, v{G + 16}, v{G + 18} offset0:0 offset1:128
        ds_write_b64 v{T[4]}, {vr(G, 2)} offset:{L_CSA - L_NM}
        ds_write_b64 v{T[5]}, {vr(G + 2, 2)} offset:{L_BI - L_NM}
        s_waitcnt lgkmcnt(0)
        """)

    def mark_unwritten():
        a(f"""
        s_add_u32 s{s_ko}, s{s_cm}, {C_O * CH}
        s_add_u32 s{s_vo}, s{s_cr}, {C_O * CH}
        v_mov_b64 {vr(MK, 2)}, -1
        v_mov_b64 {vr(MK + 2, 2)}, -1
        buffer_store_dwordx4 {vr(MK, 4)}, v{mQ}, {WSD}, s{s_ko} offen sc1
        buffer_store_dwordx4 {vr(MK, 4)}, v{mQ}, {WSD}, s{s_ko} offen offset:512 sc1
        s_mov_b32 exec_hi, 0
        buffer_store_dwordx2 {vr(MK, 2)}, v{mQR}, {WSD}, s{s_vo} offen sc1
        buffer_store_dwordx2 {vr(MK, 2)}, v{mQR}, {WSD}, s{s_vo} offen offset:512 sc1
        s_mov_b32 exec_hi, -1
        """)

    a(f"{feeding}\ns_cbranch_scc1 {L('g1_on')}")
    if not cfg["early"]:
        later_addr()
    early_mark = cfg["mk"] < 10
    if early_mark:
        mark_unwritten()
    only("bf0", has_block, block_fetch)
    only("bt0", has_block, block_turn)
    a(f"s_branch {L('b_last')}\n{L('g1_on')}:")
    feed(0)
    stamp(a, prof, 43)
    pre = "xwf"[:cfg["pre"]]
    feed(1, pre)
    boundary(4 * len(pre))
    a(f"s_setprio {cfg['fprio']}")
    sm = capture(sums)
    LT = cfg["late"]

    def late_loads():
        for q in range(5):
            a(f"buffer_load_dwordx4 {vr(SD + 4 * q, 4)}, v29, s[88:91], s10 offen\ns_add_u32 s10, s10, s11")

    if LT == 1:
        late_loads()
    k = len(sm) * (3 - len(pre)) // 3
    feed(1, "xwf"[len(pre):], [] if LT else sm[:k])
    feed(2, pre, [] if LT else sm[k:])
    only("pr", f"s_cmp_eq_u32 s{s_wj}, 2", publish_rows)
    a("s_waitcnt lgkmcnt(0)")
    late = [[]] + split(capture(later_addr), 4)
    if LT:
        late = [[]] * (LT - 1) + [sm + ["s_waitcnt lgkmcnt(0)"]] + split(capture(later_addr), 5 - LT)
    gath = f"s_cmp_lt_u32 s{s_wj}, 2"
    for c in range(10):
        if c - cfg["gat"] in (1, 2):
            a(f"{gath}\ns_cbranch_scc1 {L('bw' + str(c))}\ns_waitcnt vmcnt(12)\n{L('bw' + str(c))}:")
            boundary(17)
            assert c <= 5
        else:
            boundary({0: 4 * len(pre), 6: 8, 7: 8, 8: 4, 9: None}.get(c, 12))
        if c == LT - 2:
            late_loads()
        if c == 0:
            feed(2, "xwf"[len(pre):])
        if c < 5:
            feed(c + 3, mix=late[c])
        elif c < 7:
            feed(c + 3, "xw")
        elif c < 9:
            feed(c + 1, "f")
        if c == LT:
            only("pb", f"s_cmp_eq_u32 s{s_wj}, s{s_hook}", publish)
        if c == cfg["mk"]:
            mark_unwritten()
        if c == 8:
            only("bf", has_block, block_fetch)
        if c == cfg["gat"]:
            only("gf", gath, gather_loads)
        if c == cfg["gat"] + 3:
            only("gp", gath, gather_put)
    a(f"{has_block}\ns_cbranch_scc1 {L('bwa')}\ns_waitcnt vmcnt({4 * early_mark})\n{L('bwa')}:")
    boundary(5 + 4 * early_mark)
    only("bt", has_block, block_turn)
    boundary()

    def first_fetch():
        a(f"""
        s_mul_i32 s{s_t0}, s{s_wj}, 3072
        s_add_u32 m0, s{s_t0}, {L_Q}
        s_nop 0
        buffer_load_dwordx4 v{mQ}, {WSD}, s{s_cm} offen sc1 lds
        s_add_u32 m0, s{s_t0}, {L_Q + 512}
        s_nop 0
        buffer_load_dwordx4 v{mQ}, {WSD}, s{s_cm} offen offset:512 sc1 lds
        s_add_u32 m0, s{s_t0}, {L_Q + 2048}
        s_nop 0
        buffer_load_dwordx4 v{mQD}, {WSD}, s{s_cr} offen sc1 lds
        """)
        kv_dma(0)

    a(f"{L('b_last')}:\ns_setprio 2")
    stamp(a, prof, 40)
    ones_write(one, 20)
    wait_flags("wa", WS_FA, [FO])
    stamp(a, prof, 41)
    if prof is True:
        a(f"s_sub_u32 s{s_t0}, {SPIN}, s{s_spin}\ns_add_u32 s96, s{s_t0}, 100")
    first_fetch()
    stamp(a, prof, 4)
    a(f"s_mov_b32 s{s_t0}, {WS_FA}\nbuffer_load_dword v{T[3]}, v{FK}, {WSD}, s{s_t0} offen sc1")
    if cfg["hpos"] == 0:
        a("s_barrier")
    a("s_waitcnt vmcnt(1) lgkmcnt(0)")
    stamp(a, prof, 3)
    a(f"s_barrier\ns_waitcnt vmcnt(0)\nv_cmp_ne_u32 vcc, s{s_tag}, v{T[3]}\ns_nop 3\ns_cbranch_vccz {L('wk_done')}")
    wait_flags("wk", WS_FA, [FK])
    kv_dma(1)
    if cfg["bpos"] == 0:
        only("bp", has_block, block_put)

    vH, vW, vO, vB, vLn = [11, 12, 13, 14], [15, 16], [17, 18], [T[0], T[1]], 19
    ACC = 20
    LB = [100 + 36 * i for i in range(3)]
    WR, XR, BR = 180, 220, 230
    sH, sT = sW, sA
    a(f"""
    v_mov_b32 v{vH[0]}, v{pH}
    v_xor_b32 v{vH[1]}, 256, v{pH}
    v_xor_b32 v{vH[2]}, 512, v{pH}
    v_xor_b32 v{vH[3]}, 768, v{pH}
    v_lshlrev_b32 v{vLn}, 4, v{vL}
    s_mul_i32 s{s_t0}, s{s_qb}, 5120
    v_add_u32 v{vW[0]}, s{s_t0}, v{vLn}
    v_add_u32 v{vW[1]}, 4096, v{vW[0]}
    s_mul_i32 s{s_t0}, s{s_qb}, 160
    v_lshrrev_b32 v{T[2]}, 4, v{vL}
    v_lshl_add_u32 v{vB[0]}, v{T[2]}, 4, s{s_t0}
    v_lshl_add_u32 v{vB[1]}, v{T[2]}, 3, s{s_t0}
    v_add_u32 v{vO[0]}, v{pO}, v{vB[0]}
    v_add_u32 v{vO[1]}, v{pO}, v{vB[1]}
    s_add_u32 s{sH}, s22, {C_H * CH}
    s_addc_u32 s{sH + 1}, s23, 0
    s_mov_b32 s{sH + 2}, {216 * CH}
    s_mov_b32 s{sH + 3}, 0x00020000
    s_add_u32 s{sT}, s22, {WS_WT}
    s_addc_u32 s{sT + 1}, s23, 0
    s_mov_b32 s{sT + 2}, {54 * KS_ROW}
    s_mov_b32 s{sT + 3}, 0x00020000
    s_lshl_b32 s{s_ho}, s{s_wj}, 17
    s_mul_i32 s{s_wo}, s{s_wj}, {KS_ROW}
    s_add_u32 s{s_xo}, s{s_wo}, {WS_WT + 54 * KS_ROW}
    s_mul_i32 s{s_ring}, s{s_wj}, 5120
    """)
    if cfg["bpos"] == 0:
        a("s_waitcnt vmcnt(0)")
        only("fw", has_block, lambda: set_flag(WS_FH))
        kv_dma(2)
        a("s_barrier")
    else:
        kv_dma(2)
        a("s_waitcnt vmcnt(7)\ns_barrier")
        only("bp", has_block, lambda: (block_put(), a("s_waitcnt vmcnt(0)"), set_flag(WS_FH)))
    a(f"s_mov_b32 s{s_fl}, s2")
    stamp(a, prof, 5)

    def w_frag(c):
        return (vW[0], 1024 * c) if c < 4 else (vW[1], 0)

    def ffn_loads(b):
        for t in range(4):
            a(f"buffer_load_dwordx4 {vr(LB[b] + 4 * t, 4)}, v{vH[t]}, s[{sH}:{sH + 3}], s{s_ho} offen sc1")
        for c in range(5):
            va, off = w_frag(c)
            a(f"buffer_load_dwordx4 {vr(LB[b] + 16 + 4 * c, 4)}, v{va}, s[{sT}:{sT + 3}], s{s_wo} offen offset:{off} sc1")
        a(f"s_add_u32 s{s_ho}, s{s_ho}, {16 * CH}\ns_add_u32 s{s_wo}, s{s_wo}, {4 * KS_ROW}")

    def wo_stage(i):
        for c in range(5):
            va, off = w_frag(c)
            if c in (0, 4):
                a(f"s_add_u32 m0, s{s_ring}, {L_WO + i * 20480 + 1024 * c}\ns_nop 0")
            a(f"buffer_load_dwordx4 v{va}, {WSD}, s{s_xo} offen offset:{off} sc1 lds")
        a(f"s_add_u32 s{s_xo}, s{s_xo}, {4 * KS_ROW}")

    queue = []

    def need(tag):
        if tag not in queue:
            return
        last = max(i for i, q in enumerate(queue) if q == tag)
        a(f"s_waitcnt vmcnt({len(queue) - 1 - last})")
        del queue[:last + 1]

    def send(r):
        a(f"s_add_u32 s{s_t0}, s{s_ring}, {L_EX[r]}\nv_add_u32 v{T[2]}, s{s_t0}, v{vLn}")
        for c in range(5):
            a(f"ds_write_b128 v{T[2]}, {vr(ACC + 20 * r + 4 * c, 4)} offset:{1024 * c}")

    wait_flags("wb", WS_FH, [fC], cfg["fbr"])
    a(f"s_cbranch_vccnz {L('fb_late')}")
    stamp(a, prof, 6)
    ffn_loads(0)
    a(f"s_barrier\ns_branch {L('fb_go')}\n{L('fb_late')}:\ns_barrier")
    wait_flags("wc", WS_FH, [fC])
    stamp(a, prof, 16)
    ffn_loads(0)
    a(f"{L('fb_go')}:\ns_setprio 0")
    assert not early_mark
    queue += [("L", 0)] * 9

    def vm_units(fn, tag):
        out, cur = [], []
        for u in capture(fn):
            cur.append(u)
            n = u.count("buffer_load")
            if n:
                out.append(("\n".join(cur), [tag] * n))
                cur = []
        out[-1] = (out[-1][0] + "\n" + "\n".join(cur), out[-1][1])
        return out

    cuts = [cfg["cut0"] + cfg["cutd"] * k for k in range(5)]
    side = vm_units(lambda: kv_dma(3), ("D", 2)) + vm_units(lambda: wo_stage(0), ("W", 2))
    iv, m = 2, 0
    for step in range(14):
        b = step % 3
        main = vm_units(lambda: ffn_loads((step + 2) % 3), ("L", step + 2)) if step + 2 < 14 else []
        if step == 0:
            ffn_loads(1)
            queue += [("L", 1)] * 9
        need(("L", step))
        if step == 13:
            assert not side and iv == 7
            a(f"s_cmp_lt_u32 s{s_wj}, 2\ns_cbranch_scc0 {L('m13')}")
        for k in range(20):
            t, c = divmod(k, 5)
            d = vr(ACC + 20 * t + 4 * c, 4)
            a(f"v_mfma_f32_16x16x32_bf16 {d}, {vr(LB[b] + 16 + 4 * c, 4)}, {vr(LB[b] + 4 * t, 4)}, {d if step else 0}")
            m += 1
            src = main if (main and (k & 1 or not side)) else side
            if src:
                text, tags = src.pop(0)
                a(text)
                queue += tags
            if iv < 7 and m == cuts[iv - 2]:
                assert not side
                need(("D", iv))
                if cfg.get("trace"):
                    stamp(a, prof, 24)
                a("s_barrier")
                iv += 1
                if iv == cfg["mk"] - 10:
                    mark_unwritten()
                    queue += [("M", 0)] * 4
                if iv == cfg["mk"] - 9:
                    assert ("M", 0) not in queue
                    only("fb", f"s_cmp_eq_u32 s{s_wj}, 0", lambda: set_flag(WS_FB))
                if iv < 7:
                    side = vm_units(lambda: kv_dma(iv + 1), ("D", iv))
                if iv < 6:
                    side += vm_units(lambda: wo_stage(iv - 2), ("W", iv))
                if iv == 7:
                    only("w5", f"s_cmp_lt_u32 s{s_wj}, 2", lambda: wo_stage(4))
        assert not main
    a(f"{L('m13')}:")
    srd(a, sX, 4, S * D * 2)
    srd(a, sA, 18, D * 2)
    srd(a, sB, 20, S * D * 2)
    upper = f"s_cmp_ge_u32 s{s_wj}, 2"

    def wo_last():
        for c in range(5):
            va, off = w_frag(c)
            a(f"buffer_load_dwordx4 {vr(WR + 4 * c, 4)}, v{va}, {WSD}, s{s_xo} offen offset:{off} sc1")

    def wo_last_put():
        a(f"s_add_u32 s{s_t0}, s{s_ring}, {L_WO + 4 * 20480}\nv_add_u32 v{T[2]}, s{s_t0}, v{vLn}")
        for c in range(5):
            a(f"ds_write_b128 v{T[2]}, {vr(WR + 4 * c, 4)} offset:{1024 * c}")

    only("wl", upper, wo_last)
    for dst, va, sd in ((XR, vO, sX), (BR, vB, sA)):
        a(f"""
        buffer_load_dwordx4 {vr(dst, 4)}, v{va[0]}, s[{sd}:{sd + 3}], 0 offen
        buffer_load_dwordx4 {vr(dst + 4, 4)}, v{va[0]}, s[{sd}:{sd + 3}], 0 offen offset:64
        buffer_load_dwordx2 {vr(dst + 8, 2)}, v{va[1]}, s[{sd}:{sd + 3}], 0 offen offset:128
        """)
    NW, AH = 7, cfg["ahead"]
    AC2, WG, OF = 40, 60, 200
    assert OF + 4 * (AH + 1) <= 256

    def wo_read(i, c):
        va, off = (vLn, L_WO + 5120 * i) if i < 10 else (T[2], 5120 * (i - 10))
        return f"ds_read_b128 {vr(WG + 20 * (i % NW) + 4 * c, 4)}, v{va} offset:{off + 1024 * c}"

    def o_load(i):
        a(f"s_mov_b32 s{s_t0}, {(C_O + 4 * i) * CH}")
        a(f"buffer_load_dwordx4 {vr(OF + 4 * (i % (AH + 1)), 4)}, v{vH[0]}, {WSD}, s{s_t0} offen sc1")

    def prime(steps):
        for i in steps:
            a("s_waitcnt lgkmcnt(10)\n" + "\n".join(wo_read(i, c) for c in range(5)))

    prime(range(2, 6))
    wait_flags("wm", WS_FB, [fB])
    a(f"""
    s_cmp_lg_u32 s2, 0
    s_cbranch_scc1 {L('we_done')}
    s_lshl_b32 s{s_t0}, s{s_wj}, 6
    v_add_u32 v{T[5]}, s{s_t0}, v{vL}
    v_lshlrev_b32 v{T[5]}, 7, v{T[5]}
    """)
    wait_flags("we", WS_FB, [T[5]])
    a(f"""
    v_bfe_u32 v{T[2]}, v{vL}, 1, 4
    v_mul_u32_u24 v{T[2]}, 5, v{T[2]}
    v_and_b32 v{T[3]}, 1, v{vL}
    s_cmp_eq_u32 s{s_wj}, 2
    s_cselect_b32 s{s_t1}, 8, {3 * CH}
    s_cselect_b32 s{s_t2}, 4, 12
    s_cmp_eq_u32 s{s_wj}, 3
    s_cselect_b32 s{s_t0}, 0, s{s_wj}
    v_add_u32 v{T[2]}, s{s_t0}, v{T[2]}
    v_lshlrev_b32 v{T[2]}, 15, v{T[2]}
    v_mad_u32_u24 v{T[0]}, v{T[3]}, s{s_t1}, v{T[2]}
    s_lshl_b32 s{s_t0}, s{s_head}, 3
    s_add_u32 s{s_t0}, s{s_t0}, s{s_qb}
    s_lshl_b32 s{s_t0}, s{s_t0}, 7
    s_add_u32 s{s_t0}, s{s_t0}, s{s_t2}
    s_add_u32 s{s_ko}, s{s_t0}, {C_O * CH}
    s_mov_b32 s{s_spin}, {SPIN}
    """)
    a("s_waitcnt lgkmcnt(0)")
    if cfg.get("trace"):
        stamp(a, prof, 24)
    a("s_barrier")
    send(1)
    send(2)
    stamp(a, prof, 7)
    a("s_barrier")
    a("s_waitcnt vmcnt(0) lgkmcnt(0)")
    send(3)
    only("wp", upper, wo_last_put)
    a("s_waitcnt lgkmcnt(0)\ns_barrier")
    stamp(a, prof, 8)
    a(f"""
    s_cmp_lg_u32 s2, 0
    s_cbranch_scc1 {L('tag_kept')}
    v_mov_b32 v{T[4]}, 0
    v_mov_b32 v{T[5]}, s{s_tag}
    s_mov_b32 s{s_t0}, {WS_E}
    buffer_store_dword v{T[5]}, v{T[4]}, {WSD}, s{s_t0} offen sc1
    {L('tag_kept')}:
    """)
    for r in range(1, 4):
        a(f"""
        s_xor_b32 s{s_t0}, s{s_wj}, {r}
        s_mul_i32 s{s_t0}, s{s_t0}, 5120
        s_add_u32 s{s_t0}, s{s_t0}, {L_EX[r]}
        v_add_u32 v{T[2]}, s{s_t0}, v{vLn}
        """)
        for c in range(5):
            a(f"ds_read_b128 {vr(ACC + 20 * r + 4 * c, 4)}, v{T[2]} offset:{1024 * c}")
    for src in (XR, BR):
        for i in range(10):
            t = T[2 + 2 * (i & 1)]
            a(f"v_lshlrev_b32 v{t}, 16, v{src + i}\nv_and_b32 v{t + 1}, 0xffff0000, v{src + i}")
            a(f"v_pk_add_f32 {vr(ACC + 2 * i, 2)}, {vr(ACC + 2 * i, 2)}, {vr(t, 2)}")
    for r in range(1, 4):
        a(f"s_waitcnt lgkmcnt({5 * (3 - r)})")
        for i in range(0, 20, 2):
            a(f"v_pk_add_f32 {vr(ACC + i, 2)}, {vr(ACC + i, 2)}, {vr(ACC + 20 * r + i, 2)}")
    a(f"v_add_u32 v{T[2]}, {L_WO + 10 * 5120}, v{vLn}")

    look = f"buffer_load_dword v{T[3]}, v{T[0]}, {WSD}, s{s_ko} offen sc1"
    a(f"{L('first')}:\ns_mov_b32 exec_hi, 0\n{look}\ns_mov_b32 exec_hi, -1")
    prime((0, 1, 6))
    a(f"""
    v_mov_b32 v{T[4]}, 0
    s_mov_b32 exec_hi, 0
    s_branch {L('seen')}
    {L('poll')}:
    {look}
    {L('seen')}:
    s_sub_u32 s{s_spin}, s{s_spin}, 1
    s_cmp_lt_i32 s{s_spin}, 0
    s_waitcnt vmcnt(0) lgkmcnt(0)
    v_cmp_eq_u32 vcc, -1, v{T[3]}
    s_cbranch_scc1 {L('got')}
    s_nop 2
    s_cbranch_vccnz {L('poll')}
    {L('got')}:
    s_mov_b32 exec_hi, -1
    """)
    if prof is True:
        stamp(a, prof, 50)
        a(f"s_sub_u32 s96, {SPIN + 200}, s{s_spin}\ns_waitcnt lgkmcnt(0)")
    for i in range(AH):
        o_load(i)
    todo = [(i, c) for i in range(NW, 20) for c in range(5)]
    issued = 0
    for i in range(20):
        lg = f" lgkmcnt({min(15, issued - 5 * (i - NW + 1))})" if i >= NW else ""
        assert i < NW or issued >= 5 * (i - NW + 1)
        a(f"s_waitcnt vmcnt({min(20, i + AH) - i - 1}){lg}")
        o = OF + 4 * (i % (AH + 1))
        for c in range(5):
            d = vr(AC2 + 4 * c, 4)
            a(f"v_mfma_f32_16x16x32_bf16 {d}, {vr(WG + 20 * (i % NW) + 4 * c, 4)}, {vr(o, 4)}, {d if i else 0}")
            if c == 0:
                if i + AH < 20:
                    o_load(i + AH)
            elif todo and (todo[0][0] - NW, todo[0][1]) <= (i, c):
                a(wo_read(*todo.pop(0)))
                issued += 1
            if c == 4:
                a(f"v_max3_u32 v{T[4]}, v{T[4]}, v{o + 1}, v{o + 3}")
    assert not todo
    stamp(a, prof, 9)
    a(f"""
    v_cmp_eq_u32 vcc, -1, v{T[4]}
    s_cmp_lt_i32 s{s_spin}, 0
    s_cbranch_scc1 {L('sum')}
    s_nop 1
    s_cbranch_vccnz {L('again')}
    {L('sum')}:
    s_nop 3
    """)
    for i in range(0, 20, 2):
        a(f"v_pk_add_f32 {vr(ACC + i, 2)}, {vr(ACC + i, 2)}, {vr(AC2 + i, 2)}")
    for i in range(10):
        a(f"v_cvt_pk_bf16_f32 v{XR + i}, v{ACC + 2 * i}, v{ACC + 2 * i + 1}")
    a(f"""
    buffer_store_dwordx4 {vr(XR, 4)}, v{vO[0]}, s[{sB}:{sB + 3}], 0 offen {OSF}
    buffer_store_dwordx4 {vr(XR + 4, 4)}, v{vO[0]}, s[{sB}:{sB + 3}], 0 offen offset:64 {OSF}
    buffer_store_dwordx2 {vr(XR + 8, 2)}, v{vO[1]}, s[{sB}:{sB + 3}], 0 offen offset:128 {OSF}
    """)
    if prof:
        a(f"{L('dump')}:\ns_waitcnt vmcnt(0)")
        stamp(a, prof, 10)
        stamp(a, prof, 11)
        a(f"""
        s_memrealtime s[78:79]
        s_waitcnt lgkmcnt(0)
        s_mov_b32 s{sWS + 2}, {WS_SIZE}
        s_sub_u32 s{sWS}, s{sWS}, {cfg['wsoff'] << 20}
        s_subb_u32 s{sWS + 1}, s{sWS + 1}, 0
        s_lshl_b32 s95, s2, 3
        s_add_u32 s95, s95, s{s_w}
        s_lshl_b32 s95, s95, 8
        s_add_u32 s95, s95, {WS_DBG}
        v_writelane_b32 v0, s76, 62
        v_writelane_b32 v0, s78, 63
        v_lshlrev_b32 v{T[0]}, 2, v{vL}
        buffer_store_dword v0, v{T[0]}, {WSD}, s95 offen
        s_waitcnt vmcnt(0)
        """)
    a(f"s_endpgm\n{L('again')}:")
    prime(range(2, 6))
    a(f"s_branch {L('first')}")
    a.lines = head_lines + a.lines + g0_lines
    a(f"{L('end')}:\ns_endpgm")
    return kernel_header(label) + a.text(), kernel_desc(label, 256, 102 if prof else 92), LDS_SIZE


def build(as_list=False, **kw):
    ref = open(f"cdna_kernels/{NAME}.s.ref").read().split("\n")
    head = [ln for ln in ref if ln.startswith(";") and "launch" not in ln.lower() and "grid=" not in ln]
    label = NAME + "_kernel"
    c, d, lds = gen(label, **kw)
    c = c.replace(label + "_", "L_")
    if (kw.get("cfg") or {}).get("rt"):
        c = c.replace("s_memtime", "s_memrealtime")
    out = "\n".join(head) + "\n"
    out += f"; @launch {'kernel=' + label + ' ' if as_list else ''}grid=(256,1,1) block=(512,1,1) lds={lds}\n"
    out += '.amdgcn_target "amdgcn-amd-amdhsa--gfx950"\n.text\n' + c + '.section .rodata,"a"\n' + d
    return out


if __name__ == "__main__":
    import sys
    opts = sys.argv[2:]
    cfg = {o.split("=")[0]: int(o.split("=")[1], 0) for o in opts if "=" in o}
    open(sys.argv[1], "w").write(build(as_list="list" in opts, prof="span" if "span" in opts else "prof" in opts, force_fallback="slow" in opts, cfg=cfg))
```

```python
import math
import struct
from common import *

f32 = lambda x: struct.unpack("<I", struct.pack("<f", x))[0]
QSCALE = f32(math.log2(math.e) / math.sqrt(20.0))
SHIFT = 92.0

WS_RS = WS_END
WS_CP = WS_RS + 2048 * 16
CP_ROW = 3648 * 8
WS_FA = WS_CP + 4 * CP_ROW
WS_FH = WS_FA + 1024 * 128
WS_FB = WS_FH + 2048 * 128
WS_E = WS_FB + 256 * 128
WS_TOP = WS_E + 128

STG = 49152
LX, LW, LF = 0, 16384, 32768
L_NM = 3 * STG
L_RS, L_CSA, L_CSB, L_BI = L_NM + 512, L_NM + 1024, L_NM + 1536, L_NM + 2048
L_CP = L_NM + 2560
L_RP = L_CP + 1024
LDS_SIZE = 163840
SLOT = 8192 + 4096 + 16 * 656
OFF_R, OFF_V = 8192, 12288
KV = LDS_SIZE - 3 * SLOT
L_Q = LW
L_WO = 0
L_EX = [None, 122880, 143360, 102400]
LDS_OOB = 0x28000
assert L_WO + 18 * 5120 <= KV and LDS_OOB + 3 * SLOT <= 0x40000
KS_ROW = 40 * 1024

sWS, sX, sW, sA, sB = 24, 28, 32, 36, 40
(s_w, s_wj, s_rb, s_cg, s_head, s_qb, s_tt, s_cf, s_cm, s_cr, s_par, s_tag, s_c, s_slot,
 s_t0, s_t1, s_t2, s_t3, s_xo, s_wo, s_ring, s_wstep, s_ko, s_vo, s_ho, s_spin, s_fl) = range(44, 71)
assert s_t2 % 2 == 0
s_o = [71, 72, 73]
s_kc, s_hook = 74, 75
SPIN = 0x20000


def gen(label, prof=False, force_fallback=False, cfg=None):
    cfg = {**dict(wsoff=0, rot=0, late=0, bal=1, touch=1, gat=2, pre=3, mk=12, pa=14, early=0, fprio=2, flag=1, krot=0, lean=1, plf=0, fsf=0, slp=1, cut0=46, cutd=49, fbr=3, hk=3, hpos=0, bpos=0, ahead=6, thin=1, osl=0, osf=0), **(cfg or {})}
    STF = ('sc1', '', 'nt')[cfg.get('plain', 0)]
    PLF = ('sc1', 'sc0 sc1', 'sc1 nt', 'sc0 sc1 nt')[cfg['plf']]
    FSF = ('sc1', 'sc0 sc1')[cfg['fsf']]
    OSF = ('', 'sc1', 'nt')[cfg['osf']]
    a = Asm()
    L = lambda n: f"{label}_{n}"
    WSD = f"s[{sWS}:{sWS + 3}]"
    vL = 1
    T = [2, 3, 4, 5, 6, 7]
    vK, vR_, vV = 8, 9, 10
    AX = [11, 12]
    AW = [13, 14, 15, 16]
    XF = [[32 + 16 * b + 4 * t for t in range(4)] for b in range(2)]
    WF = [[64 + 16 * b + 4 * c for c in range(4)] for b in range(2)]
    GA, GB = 96, 160

    def capture(fn):
        keep, a.lines = a.lines, []
        fn()
        got, a.lines = a.lines, keep
        units, masked = [], False
        for ln in got:
            t = ln.strip()
            if units and (masked or t.startswith("s_cselect") or units[-1].split("\n")[-1].strip().startswith("s_cmp")):
                units[-1] += "\n" + ln
            else:
                units.append(ln)
            if t.startswith("s_") and " exec" in t.split(",")[0]:
                masked = not t.endswith("-1")
        return units

    def gacc(tt, ci, base=GA):
        return base + (tt * 4 + ci) * 4

    SD = 32
    a(f"""
    s_cmp_ge_u32 s2, 256
    s_cbranch_scc1 {L('end')}
    s_load_dwordx16 s[4:19], s[0:1], 0
    s_load_dwordx2 s[22:23], s[0:1], 80
    s_load_dwordx2 s[20:21], s[0:1], 64
    """)
    stamp(a, prof, 0)
    a(f"""
    v_lshrrev_b32 v{T[0]}, 6, v0
    v_and_b32 v{vL}, 63, v0
    s_and_b32 s{s_t3}, s2, 1
    v_readfirstlane_b32 s{s_w}, v{T[0]}
    s_bfe_u32 s{s_rb}, s2, 0x30003
    s_bfe_u32 s{s_t0}, s2, 0x20001
    s_lshr_b32 s{s_t1}, s2, 6
    s_lshl2_add_u32 s{s_cf}, s{s_t0}, s{s_t1}
    {f"s_and_b32 s{s_t2}, s{s_rb}, 3" if cfg["bal"] else f"s_mov_b32 s{s_t2}, 3"}
    s_lshl2_add_u32 s{s_t2}, s{s_t2}, 3
    s_lshl3_add_u32 s{s_rb}, s{s_t3}, s{s_rb}
    s_cmp_gt_u32 s{s_cf}, s{s_t2}
    s_subb_u32 s{s_cg}, s{s_cf}, 0
    s_cmp_eq_u32 s{s_cf}, s{s_t2}
    s_cselect_b32 s{s_cg}, 15, s{s_cg}
    s_mov_b32 s{sA + 3}, 0x00020000
    {'v_mov_b32 v0, -1' if prof else ''}
    s_and_b32 s{s_wj}, s{s_w}, 3
    s_cmp_ge_u32 s{s_w}, 4
    s_cbranch_scc1 {L('p_col')}
    s_mov_b32 s3, 0
    s_lshl4_add_u32 s{s_t0}, s{s_rb}, s{s_cg}
    s_lshl1_add_u32 s{s_t0}, s{s_t0}, s{s_wj}
    s_mul_i32 s{s_t1}, s{s_t0}, {4 * 1280}
    s_cmp_eq_u32 s{s_cg}, 15
    s_cselect_b32 s{s_hook}, 0, 2
    s_cmp_eq_u32 s{s_cg}, 14
    s_cselect_b32 s{s_hook}, 4, s{s_hook}
    v_lshrrev_b32 v{T[0]}, 4, v{vL}
    v_and_b32 v{T[1]}, 15, v{vL}
    v_mul_u32_u24 v{T[2]}, 1280, v{T[0]}
    s_movk_i32 s{s_t2}, 256
    s_mov_b32 s{sA + 2}, {S * D * 2}
    s_cmp_lt_u32 s{s_wj}, s{s_hook}
    s_waitcnt lgkmcnt(0)
    s_mov_b64 s[{sA}:{sA + 1}], s[4:5]
    s_branch {L('p_ld')}
    {L('p_col')}:
    s_setprio 2
    s_mov_b32 s3, 1
    s_bfe_u32 s{s_t1}, s2, 0x10005
    s_lshl1_add_u32 s{s_t1}, s{s_cg}, s{s_t1}
    s_bfe_u32 s{s_t0}, s2, 0x10003
    s_lshl1_add_u32 s{s_t0}, s{s_t3}, s{s_t0}
    s_mul_i32 s{s_o[0]}, s{s_t0}, {CP_ROW // 512 * 512}
    s_lshl_b32 s{s_t0}, s{s_t0}, 2
    s_add_u32 s{s_t0}, s{s_t0}, s{s_wj}
    s_mul_i32 s{s_t0}, s{s_t0}, 40
    v_lshrrev_b32 v{T[0]}, 3, v{vL}
    v_and_b32 v{T[1]}, 7, v{vL}
    s_bitcmp0_b32 s2, 4
    s_cselect_b32 s{s_hook}, 30, 57
    s_movk_i32 s{s_t2}, 3840
    s_cselect_b32 s{s_t2}, s{s_t2}, 3456
    s_cselect_b32 s{s_o[1]}, 0, 30
    s_mul_i32 s{sA + 2}, s{s_t2}, 640
    s_mul_i32 s{s_t0}, s{s_t0}, s{s_t2}
    v_mul_u32_u24 v{T[2]}, s{s_t2}, v{T[0]}
    s_waitcnt lgkmcnt(0)
    s_cselect_b64 s[{sA}:{sA + 1}], s[6:7], s[12:13]
    s_add_u32 s{s_o[1]}, s{s_o[1]}, s{s_t1}
    s_lshl_b32 s{s_t1}, s{s_t1}, 7
    s_add_u32 s{s_t1}, s{s_t1}, s{s_t0}
    s_lshl_b32 s{s_t2}, s{s_t2}, 3
    s_cmp_lt_u32 s{s_o[1]}, s{s_hook}
    s_cselect_b32 s{s_hook}, 3, 7
    """)
    if cfg["late"]:
        a(f"""
        s_cselect_b32 s78, s{sA + 2}, 0
        s_mov_b64 s[76:77], s[{sA}:{sA + 1}]
        s_mov_b32 s79, 0x00020000
        s_mov_b32 s10, s{s_t1}
        s_mov_b32 s11, s{s_t2}
        v_lshl_add_u32 v29, v{T[1]}, 4, v{T[2]}
        s_branch {L('p_id')}
        """.replace("s78", "s90").replace("s[76:77]", "s[88:89]").replace("s79", "s91"))
    a(f"""
    {L('p_ld')}:
    """)
    a(f"""
    v_lshl_add_u32 v{T[2]}, v{T[1]}, 4, v{T[2]}
    s_cbranch_scc0 {L('p_id')}
    """)
    assert CP_ROW % 512 == 0
    for q in range(5):
        a(f"buffer_load_dwordx4 {vr(SD + 4 * q, 4)}, v{T[2]}, s[{sA}:{sA + 3}], s{s_t1} offen")
        a(f"s_add_u32 s{s_t1}, s{s_t1}, s{s_t2}")
    a(f"{L('p_id')}:")
    if cfg["wsoff"]:
        a(f"s_add_u32 s22, s22, {cfg['wsoff'] << 20}\ns_addc_u32 s23, s23, 0")
    stamp(a, prof, 45)
    a(f"""
    {f"s_xor_b32 s{s_t2}, s{s_rb}, 2" if cfg["bal"] else ""}
    {f"s_and_b32 s{s_t2}, s{s_t2}, 3" if cfg["bal"] else f"s_mov_b32 s{s_t2}, 3"}
    s_lshl2_add_u32 s{s_t2}, s{s_t2}, {3 if cfg["bal"] else 2}
    s_cmp_eq_u32 s{s_cf}, s{s_t2}
    s_cselect_b32 s{s_t0}, 15, s{s_cg}
    s_cmp_gt_u32 s{s_cf}, s{s_t2}
    s_subb_u32 s{s_cf}, s{s_t0}, 0
    s_cmp_eq_u32 s{s_cg}, 15
    s_cbranch_scc1 {L('near')}
    {L('p_go')}:
    s_cmp_eq_u32 s3, 0
    s_cbranch_scc1 {L('g0')}
    """)
    head_lines, a.lines = a.lines, []

    def attn_ids():
        a(f"""
        s_and_b32 s{s_t0}, s2, 7
        s_lshr_b32 s{s_t1}, s2, 3
        s_and_b32 s{s_t2}, s{s_t1}, 3
        s_lshl_b32 s{s_head}, s{s_t0}, 2
        s_add_u32 s{s_head}, s{s_head}, s{s_t2}
        s_lshr_b32 s{s_qb}, s{s_t1}, 2
        s_and_b32 s{s_par}, s{s_head}, 1
        s_lshr_b32 s{s_t2}, s{s_head}, 1
        s_mul_i32 s{s_t2}, s{s_t2}, 5
        s_add_u32 s{s_cr}, s{s_t2}, 2
        s_mul_i32 s{s_t3}, s{s_par}, 3
        s_add_u32 s{s_cm}, s{s_t2}, s{s_t3}
        s_lshl_b32 s{s_cm}, s{s_cm}, 15
        s_lshl_b32 s{s_cr}, s{s_cr}, 15
        """)

    def load_tag():
        a(f"""
        s_mov_b32 s{s_t0}, {WS_E}
        s_load_dword s{s_tag}, s[22:23], s{s_t0}
        """)

    def frag_addr():
        a(f"""
        v_and_b32 v{T[0]}, 15, v{vL}
        v_lshrrev_b32 v{T[1]}, 4, v{vL}
        v_bfe_u32 v{T[2]}, v{vL}, 1, 3
        v_xor_b32 v{T[2]}, v{T[2]}, v{T[1]}
        v_lshlrev_b32 v{T[2]}, 4, v{T[2]}
        v_lshl_add_u32 v{T[2]}, v{T[0]}, 7, v{T[2]}
        s_and_b32 s{s_t0}, s{s_wj}, 1
        s_lshl_b32 s{s_t0}, s{s_t0}, 13
        v_add_u32 v{AX[0]}, s{s_t0}, v{T[2]}
        v_xor_b32 v{AX[1]}, 64, v{AX[0]}
        v_bfe_u32 v{T[2]}, v{vL}, 2, 2
        v_lshl_add_u32 v{T[3]}, v{T[1]}, 3, v{T[2]}
        v_lshlrev_b32 v{T[3]}, 8, v{T[3]}
        v_bfe_u32 v{T[2]}, v{vL}, 2, 3
        s_lshr_b32 s{s_t0}, s{s_wj}, 1
        s_lshl_b32 s{s_t0}, s{s_t0}, 2
        v_xor_b32 v{T[2]}, s{s_t0}, v{T[2]}
        v_lshl_add_u32 v{T[3]}, v{T[2]}, 5, v{T[3]}
        v_and_b32 v{T[2]}, 3, v{vL}
        v_lshl_add_u32 v{AW[0]}, v{T[2]}, 3, v{T[3]}
        v_xor_b32 v{AW[1]}, 32, v{AW[0]}
        v_xor_b32 v{AW[2]}, 64, v{AW[0]}
        v_xor_b32 v{AW[3]}, 96, v{AW[0]}
        """)

    def zero(base, n):
        for r in range(base, base + n, 2):
            a(f"v_mov_b64 {vr(r, 2)}, 0")

    def wreads(part, s, b):
        return [f"ds_read_b64_tr_b16 {vr(WF[b][c] + 2 * h, 2)}, v{AW[c]} offset:{part + s * 8192 + 1024 * h}"
                for c in range(4) for h in range(2)]

    def xreads(s):
        return [f"ds_read_b128 {vr(XF[s][t], 4)}, v{AX[s]} offset:{LX + 2048 * t}" for t in range(4)]

    def both(part, s, b):
        w, x = wreads(part, s, b), xreads(s)
        return w[:2] + x[:1] + w[2:] + x[1:]

    def gemm_body(name, halves, barrier, count_to):
        a(f".p2align 3\n{L(name)}:")
        for k, (xs, wb, acc, swapped, rd) in enumerate(halves):
            fill = [[] for _ in range(16)]
            if k == len(halves) - 1:
                if barrier:
                    if prof and cfg.get("trace", 0) == 3:
                        fill[0] += capture(lambda: stamp(a, prof, 25))
                    fill[0].append("s_barrier")
                fill[13].append(f"s_add_u32 s{s_c}, s{s_c}, 1")
                fill[14].append(f"s_cmp_lt_u32 s{s_c}, {count_to}")
            if k == len(halves) - 2:
                fill[8].append(f"s_add_u32 s{s_ring}, s{s_ring}, 1")
                fill[9].append(f"s_cmp_eq_u32 s{s_ring}, 3")
                fill[10].append(f"s_cselect_b32 s{s_xo}, {-2 * STG & 0xffffffff}, s{s_wstep}")
                fill[11].append(f"s_cselect_b32 s{s_ring}, 0, s{s_ring}")
            for m, x in enumerate(rd):
                fill[m].append(x)
            if k == len(halves) - 2:
                for m, r in enumerate(AX + AW):
                    fill[12 + m // 2].append(f"v_add_u32 v{r}, s{s_xo}, v{r}")
            fill[15].append("s_waitcnt lgkmcnt(0)")
            for m in range(16):
                tt, ci = m >> 2, m & 3
                wf, xf = vr(WF[wb][ci], 4), vr(XF[xs][tt], 4)
                A, B = (xf, wf) if swapped else (wf, xf)
                a(f"v_mfma_f32_16x16x32_bf16 {vr(gacc(tt, ci, acc), 4)}, {A}, {B}, {vr(gacc(tt, ci, acc), 4)}")
                a("\n".join(fill[m]))
        if 0 < cfg.get("trace", 0) < 3:
            stamp(a, prof, 20)
        a(f"s_cbranch_scc1 {L(name)}")

    def joint(name, sw):
        gemm_body(name, [(0, 0, GA, sw, wreads(LF, 0, 1)), (0, 1, GB, False, both(LW, 1, 0)),
                         (1, 0, GA, sw, wreads(LF, 1, 1)), (1, 1, GB, False, both(LW, 0, 0))], True, 7)

    def single(name, part, acc, sw, barrier, count_to):
        gemm_body(name, [(0, 0, acc, sw, both(part, 1, 1)), (1, 1, acc, sw, both(part, 0, 0))], barrier, count_to)

    def tile_addr(e_reg, e_lane, e_st):
        a(f"""
        v_and_b32 v{T[0]}, 15, v{vL}
        v_lshrrev_b32 v{T[1]}, 4, v{vL}
        s_lshr_b32 s{s_t0}, s{s_wj}, 1
        s_lshl_b32 s{s_t0}, s{s_t0}, 8
        s_add_u32 s{s_t0}, s{s_t0}, {L_NM}
        v_lshl_add_u32 v{e_reg}, v{T[1]}, 4, s{s_t0}
        s_and_b32 s{s_t1}, s{s_wj}, 1
        s_lshl_b32 s{s_t0}, s{s_t1}, 8
        s_add_u32 s{s_t0}, s{s_t0}, {L_NM}
        v_lshl_add_u32 v{e_lane}, v{T[0]}, 2, s{s_t0}
        v_bfrev_b32 v{T[1]}, v{T[1]}
        v_lshrrev_b32 v{T[1]}, 15, v{T[1]}
        v_lshl_add_u32 v{T[1]}, v{T[0]}, 4, v{T[1]}
        s_lshl_b32 s{s_t0}, s{s_rb}, 1
        s_add_u32 s{s_t0}, s{s_t0}, s{s_t1}
        s_lshl_b32 s{s_t0}, s{s_t0}, 10
        v_add_u32 v{e_st}, s{s_t0}, v{T[1]}
        """)

    def put_piece(src, addr, x, y):
        return f"buffer_store_dwordx4 {vr(src, 4)}, v{addr}, {WSD}, s{s_o[x]} offen offset:{256 * y} {STF}"

    def pack_tiles(acc, math, dst, addr=None, between=None):
        pend = []
        for tt in range(4):
            for cp in range(2):
                ob = dst(cp, tt)
                r0 = gacc(tt, 2 * cp, acc)
                math(tt, [(r0 + 2 * p, 8 * cp + 2 * p) for p in range(4)])
                a("\n".join(pend))
                for p in range(4):
                    a(f"v_cvt_pk_bf16_f32 v{ob + p}, v{r0 + 2 * p}, v{r0 + 2 * p + 1}")
                pend = [f"v_permlane16_swap_b32 v{ob}, v{ob + 2}", f"v_permlane16_swap_b32 v{ob + 1}, v{ob + 3}"]
                if addr:
                    pend.append(put_piece(ob, addr, cp, tt))
            if between:
                between(tt)
        a("s_nop 1\n" + "\n".join(pend))

    def key_perm(dst, src, t0, t1):
        a(f"""
        v_bfe_u32 v{t0}, v{src}, 2, 1
        v_bfe_u32 v{t1}, v{src}, 3, 2
        v_lshl_add_u32 v{t0}, v{t0}, 2, v{t1}
        v_and_b32 v{t1}, 3, v{src}
        v_lshl_add_u32 v{dst}, v{t0}, 2, v{t1}
        """)

    def v_feature(dst, row, t0, t1):
        swap23(a, dst, row, t0, t1)
        a(f"""
        s_lshl_b32 s{s_t0}, s{s_par}, 2
        s_mul_i32 s{s_t1}, s{s_par}, -16
        v_cmp_gt_u32 vcc, 16, v{row}
        v_add_u32 v{dst}, s{s_t0}, v{dst}
        v_add_u32 v{t0}, s{s_t1}, v{row}
        v_cndmask_b32 v{dst}, v{t0}, v{dst}, vcc
        """)

    def kv_addr(first_chunk):
        a(f"v_and_b32 v{T[0]}, 31, v{vL}\nv_lshrrev_b32 v{T[1]}, 5, v{vL}")
        key_perm(T[2], T[0], T[3], T[4])
        a(f"""
        v_lshlrev_b32 v{T[3]}, 4, v{T[2]}
        v_lshl_add_u32 v{vK}, v{T[1]}, 15, v{T[3]}
        v_add_u32 v{vK}, s{s_cm}, v{vK}
        v_lshl_add_u32 v{vR_}, v{T[1]}, 9, v{T[3]}
        v_add_u32 v{vR_}, s{s_cr}, v{vR_}
        v_cmp_le_u32 vcc, 20, v{vL}
        s_lshl_b32 s{s_t0}, s{s_wj}, 10
        s_andn2_b32 s{s_kc}, 1, s2
        s_mul_i32 s{s_kc}, s{s_kc}, {cfg['krot']}
        v_cndmask_b32 v{T[2]}, 0, 1, vcc
        v_mul_u32_u24 v{T[3]}, 20, v{T[2]}
        v_sub_u32 v{T[3]}, v{vL}, v{T[3]}
        v_mul_u32_u24 v{vV}, 10240, v{T[2]}
        """)
        v_feature(T[2], T[3], T[4], T[5])
        a(f"""
        s_mul_i32 s{s_t0}, s{s_head}, 320
        v_lshl_add_u32 v{vV}, v{T[2]}, 4, v{vV}
        v_add_u32 v{vV}, s{s_t0}, v{vV}
        """)

    def kv_dma(chunk):
        base = KV + ((chunk + 2) % 3) * SLOT
        a(f"""
        s_and_b32 s{s_t0}, s{s_kc}, 7
        s_lshl_b32 s{s_t0}, s{s_t0}, 2
        s_add_u32 s{s_t0}, s{s_t0}, s{s_wj}
        s_lshl_b32 s{s_ko}, s{s_t0}, 10
        s_add_u32 s{s_ko}, s{s_ko}, {C_K * CH}
        s_mul_i32 s{s_vo}, s{s_t0}, 81920
        s_add_u32 s{s_vo}, s{s_vo}, {WS_V}
        s_add_u32 s{s_kc}, s{s_kc}, 1
        s_lshl_b32 s{s_t0}, s{s_wj}, 11
        s_add_u32 m0, s{s_t0}, {base}
        s_lshl_b32 s{s_t1}, s{s_wj}, 10
        buffer_load_dwordx4 v{vK}, {WSD}, s{s_ko} offen sc1 lds
        s_add_u32 m0, s{s_t0}, {base + 512}
        s_mul_i32 s{s_t0}, s{s_wj}, {4 * 656}
        buffer_load_dwordx4 v{vK}, {WSD}, s{s_ko} offen offset:512 sc1 lds
        s_add_u32 m0, s{s_t1}, {base + OFF_R}
        s_nop 0
        buffer_load_dwordx4 v{vR_}, {WSD}, s{s_ko} offen sc1 lds
        s_mov_b32 exec_hi, 0xff
        """)
        for i in range(4):
            a(f"""
            s_add_u32 m0, s{s_t0}, {base + OFF_V + 656 * i}
            s_add_u32 s{s_t1}, s{s_vo}, {20480 * i}
            buffer_load_dwordx4 v{vV}, {WSD}, s{s_t1} offen sc1 lds
            """)
        a("s_mov_b32 exec_hi, -1")

    def ones_addr(dst, first_slot, nslots):
        a(f"""
        v_min_u32 v{dst}, {16 * nslots - 1}, v{vL}
        v_lshrrev_b32 v{T[3]}, 4, v{dst}
        v_and_b32 v{dst}, 15, v{dst}
        v_mul_u32_u24 v{T[3]}, {SLOT}, v{T[3]}
        v_mul_u32_u24 v{dst}, 656, v{dst}
        v_add_u32 v{dst}, v{dst}, v{T[3]}
        v_add_u32 v{dst}, {KV + first_slot * SLOT + OFF_V + 640}, v{dst}
        """)

    def ones_write(addr, tmp):
        for r in range(4):
            a(f"v_mov_b32 v{tmp + r}, 0x3f803f80")
        a(f"ds_write_b128 v{addr}, {vr(tmp, 4)}")

    def set_flag(base):
        a(f"""
        s_lshl_b32 s{s_t0}, s{s_fl}, 7
        s_add_u32 s{s_t0}, s{s_t0}, {base}
        v_mov_b32 v{T[4]}, 0
        v_mov_b32 v{T[3]}, s{s_tag}
        s_mov_b64 exec, 1
        buffer_store_dword v{T[3]}, v{T[4]}, {WSD}, s{s_t0} offen {FSF}
        s_mov_b64 exec, -1
        """)

    def flag_of_tile(dst, rh, unit):
        a(f"v_lshl_add_u32 v{dst}, v{unit}, 5, {rh}\nv_lshlrev_b32 v{dst}, 7, v{dst}")

    def head_unit(dst, sel):
        a(f"""
        s_mul_i32 s{s_t0}, s{s_head}, 20
        v_mad_u32_u24 v{dst}, v{sel}, 19, s{s_t0}
        v_lshrrev_b32 v{dst}, 6, v{dst}
        """)

    def wait_flags(name, base, offs, rounds=SPIN):
        a(f"""
        s_mov_b32 s{s_t0}, {base}
        s_mov_b32 s{s_spin}, {rounds}
        s_branch {L(name + '_ld')}
        {L(name)}:
        {"s_mov_b64 exec, vcc" if cfg["thin"] > 1 else ""}
        s_sleep {cfg['slp']}
        {L(name + '_ld')}:
        buffer_load_dword v{T[3]}, v{offs[0]}, {WSD}, s{s_t0} offen {PLF}
        """)
        if len(offs) > 1:
            a(f"buffer_load_dword v{T[4]}, v{offs[1]}, {WSD}, s{s_t0} offen {PLF}")
        a(f"s_sub_u32 s{s_spin}, s{s_spin}, 1\ns_waitcnt vmcnt(0)")
        if len(offs) == 1:
            a(f"v_mov_b32 v{T[4]}, v{T[3]}")
        retry(name)
        if cfg["thin"] > 1:
            a("s_mov_b64 exec, -1")

    def retry(name):
        a(f"""
        v_cmp_ne_u32 vcc, s{s_tag}, v{T[3]}
        v_cmp_ne_u32 s[{s_t2}:{s_t2 + 1}], s{s_tag}, v{T[4]}
        s_cmp_eq_u32 s{s_spin}, 0
        s_cbranch_scc1 {L(name + '_done')}
        s_or_b64 vcc, vcc, s[{s_t2}:{s_t2 + 1}]
        s_cbranch_scc1 {L(name)}
        {L(name + '_done')}:
        """)

    def q_addr(vq, vqr):
        a(f"""
        v_and_b32 v{T[0]}, 31, v{vL}
        v_lshrrev_b32 v{T[1]}, 5, v{vL}
        s_lshl_b32 s{s_t0}, s{s_qb}, 2
        s_add_u32 s{s_t0}, s{s_t0}, s{s_wj}
        s_lshl_b32 s{s_t0}, s{s_t0}, 10
        s_lshl_b32 s{s_t1}, s{s_par}, 3
        s_add_u32 s{s_t2}, s{s_t0}, s{s_t1}
        v_lshlrev_b32 v{T[2]}, 4, v{T[0]}
        v_lshl_add_u32 v{vq}, v{T[1]}, 15, v{T[2]}
        v_add_u32 v{vq}, s{s_t0}, v{vq}
        v_add_u32 v{vqr}, s{s_t2}, v{T[2]}
        """)

    eR, eL, eS, hR, hL, hS = 17, 18, 19, 8, 9, 10
    IDX, AK0, AR0, AV0, VQ, VQR, AQ = 20, 21, 22, 23, 24, 25, 26
    AK, AR, AV = 27, 28, 29
    R = Regs(216)
    MX = [R.get(), R.get()]
    Q1 = [R.get(4), R.get(4)]
    Q2 = [[R.get(2), R.get(2)], [R.get(2), R.get(2)]]
    K1 = [R.get(4), R.get(4)]
    K2 = [R.get(2), R.get(2)]
    V0 = [R.get(4), R.get(4)]
    PH = 32
    SS, CM, TS, OO, V1 = [96, 160], [112, 128], 144, [176, 192], [208, 212]

    AC, SO = 72, 80
    a(f"""
    {L('g0')}:
    v_lshlrev_b32 v{SO}, 4, v{T[0]}
    """)
    srd(a, sWS, 22, WS_TOP)
    load_tag()
    frag_addr()
    zero(GA, 128)
    attn_ids()
    tile_addr(hR, hL, hS)
    a(f"""
    v_mov_b32 v{eR}, v{hR}
    v_mov_b32 v{eS}, v{hS}
    s_cmp_lt_u32 s{s_cg}, 10
    s_cbranch_scc1 {L('ad_j')}
    v_lshrrev_b32 v{T[1]}, 4, v{vL}
    s_lshl_b32 s{s_t0}, s{s_t1}, 8
    s_add_u32 s{s_t0}, s{s_t0}, {L_NM}
    v_lshl_add_u32 v{eR}, v{T[1]}, 4, s{s_t0}
    s_lshr_b32 s{s_t2}, s{s_wj}, 1
    s_lshl_b32 s{s_t0}, s{s_t2}, 8
    s_add_u32 s{s_t0}, s{s_t0}, {L_CSA}
    v_lshl_add_u32 v{eL}, v{T[0]}, 2, s{s_t0}
    s_sub_u32 s{s_t0}, s{s_cg}, 10
    s_lshl_b32 s{s_t0}, s{s_t0}, 1
    s_add_u32 s{s_t0}, s{s_t0}, s{s_t2}
    s_lshl_b32 s{s_t0}, s{s_t0}, 10
    v_mul_u32_u24 v{T[1]}, 10240, v{T[1]}
    v_lshl_add_u32 v{T[1]}, v{T[0]}, 4, v{T[1]}
    v_add_u32 v{eS}, s{s_t0}, v{T[1]}
    {L('ad_j')}:
    """)
    q_addr(VQ, VQR)
    a(f"""
    v_mov_b32 v{IDX}, 0xdddddddd
    v_lshlrev_b32 v{AK0}, 4, v{vL}
    s_mul_i32 s{s_t0}, s{s_wj}, 3072
    v_add_u32 v{AQ}, s{s_t0}, v{AK0}
    v_add_u32 v{AK0}, {KV}, v{AK0}
    v_add_u32 v{AR0}, s{s_t1}, v{AK0}
    v_mad_u32_u24 v{T[2]}, v{T[1]}, 20, v{T[0]}
    v_lshlrev_b32 v{T[2]}, 4, v{T[2]}
    v_add_u32 v{T[2]}, {KV}, v{T[2]}
    v_cmp_gt_u32 vcc, 20, v{T[0]}
    v_mov_b32 v{T[4]}, {LDS_OOB}
    v_and_b32 v{T[3]}, 27, v{T[0]}
    v_cndmask_b32 v{T[2]}, v{T[4]}, v{T[2]}, vcc
    v_cmp_eq_u32 vcc, 24, v{T[3]}
    v_mov_b32 v{T[4]}, {KV + 640}
    s_mov_b32 s{s_slot}, {2 * SLOT}
    v_cndmask_b32 v{AV0}, v{T[2]}, v{T[4]}, vcc
    v_add_u32 v{AK}, s{s_slot}, v{AK0}
    v_add_u32 v{AR}, s{s_slot}, v{AR0}
    v_add_u32 v{AV}, s{s_slot}, v{AV0}
    """)
    a(f"""
    s_add_u32 s{s_t0}, s{s_t0}, s{s_t1}
    v_lshl_add_u32 v30, v{T[0]}, 4, s{s_t0}
    v_mov_b32 v31, v30
    s_mov_b32 exec_hi, 0
    v_mov_b32 v31, {LDS_OOB}
    s_not_b64 exec, exec
    v_mov_b32 v30, {LDS_OOB}
    s_mov_b64 exec, -1
    """)
    a("v_mov_b32 v84, 0x3f803f80")
    a(f"""
    s_lshl_b32 s{s_o[2]}, s{s_cg}, 1
    s_lshr_b32 s{s_t0}, s{s_wj}, 1
    s_add_u32 s{s_o[2]}, s{s_o[2]}, s{s_t0}
    s_lshl1_add_u32 s{s_ho}, s{s_cf}, s{s_t0}
    s_lshl_b32 s{s_fl}, s{s_o[2]}, 4
    s_add_u32 s{s_fl}, s{s_fl}, s{s_rb}
    s_lshl_b32 s{s_fl}, s{s_fl}, 1
    s_and_b32 s{s_t0}, s{s_wj}, 1
    s_add_u32 s{s_fl}, s{s_fl}, s{s_t0}
    s_mov_b32 s{s_c}, 0
    s_mov_b32 s{s_ring}, 0
    s_mov_b32 s{s_wstep}, {STG}
    s_waitcnt lgkmcnt(0)
    s_add_u32 s{s_tag}, s{s_tag}, 1
    s_cmp_ge_u32 s{s_wj}, s{s_hook}
    s_cbranch_scc1 {L('st_m')}
    v_mov_b32 v{AC}, 0
    v_mov_b32 v{AC + 2}, 0
    v_mov_b32 v{AC + 1}, s{s_tag}
    v_mov_b32 v{AC + 3}, s{s_tag}
    """)
    for q in range(5):
        a(f"s_waitcnt vmcnt({4 - q})")
        for r in range(SD + 4 * q, SD + 4 * q + 4):
            a(f"v_dot2c_f32_bf16 v{AC}, v{r}, v84\nv_dot2c_f32_bf16 v{AC + 2}, v{r}, v{r}")
    a("s_nop 1")
    for sh in (8, 4, 2, 1):
        a(f"""
        s_nop 0
        v_add_f32_dpp v{AC}, v{AC}, v{AC} row_ror:{sh} row_mask:0xf bank_mask:0xf
        v_add_f32_dpp v{AC + 2}, v{AC + 2}, v{AC + 2} row_ror:{sh} row_mask:0xf bank_mask:0xf
        """)
    a(f"""
    v_mul_f32 v{AC}, {f32(-1.0 / D)}, v{AC}
    v_mul_f32 v{AC + 2}, {f32(1.0 / D)}, v{AC + 2}
    v_fma_f32 v{AC + 2}, -v{AC}, v{AC}, v{AC + 2}
    v_max_f32 v{AC + 2}, 0, v{AC + 2}
    v_add_f32 v{AC + 2}, {f32(1e-5)}, v{AC + 2}
    v_rsq_f32 v{AC + 2}, v{AC + 2}
    s_lshl_b32 s{s_t0}, s{s_wj}, 6
    s_add_u32 s{s_t0}, s{s_t0}, {L_RP}
    v_add_u32 v{T[2]}, s{s_t0}, v{SO}
    s_mov_b32 exec_lo, 0x00010001
    s_mov_b32 exec_hi, 0x00010001
    ds_write_b128 v{T[2]}, {vr(AC, 4)}
    s_mov_b64 exec, -1
    s_waitcnt lgkmcnt(0)
    {L('st_m')}:
    s_cmp_eq_u32 s{s_cg}, 15
    s_cbranch_scc1 {L('a_none')}
    """)
    stamp(a, prof, 1)
    a("s_barrier")
    stamp(a, prof, 2)
    a("\n".join(both(LW, 0, 0)))
    a(f"""
    s_cmp_ge_u32 s{s_cg}, 10
    s_waitcnt lgkmcnt(0)
    s_cbranch_scc0 {L('aN')}
    s_cmp_ge_u32 s{s_ho}, 27
    s_cbranch_scc1 {L('sV')}
    """)

    def lane_stats(dst, addr):
        for tt in range(4):
            a(f"ds_read2_b32 {vr(dst + 2 * tt, 2)}, v{addr} offset0:{16 * tt} offset1:{128 + 16 * tt}")

    def reg_stats(dst, addr, off):
        for i in range(4):
            a(f"ds_read_b128 {vr(dst + 4 * i, 4)}, v{addr} offset:{off + 64 * i}")

    def centre(cs, nr, tt, prs):
        for r, q in prs:
            a(f"v_pk_fma_f32 {vr(r, 2)}, {vr(cs + q, 2)}, {vr(nr + 2 * tt, 2)}, {vr(r, 2)} op_sel:[0,0,0] op_sel_hi:[1,0,1]")

    E0, E1 = 224, 240
    F0, F1, F2 = 96, 112, 128

    def qk_math(tt, prs):
        centre(E0, E1, tt, prs)
        for r, q in prs:
            a(f"v_pk_mul_f32 {vr(r, 2)}, {vr(r, 2)}, {vr(E1 + 2 * tt, 2)} op_sel:[0,1] op_sel_hi:[1,1]")

    def ffn_math(tt, prs):
        centre(F0, F2, tt, prs)
        for r, q in prs:
            a(f"v_pk_fma_f32 {vr(r, 2)}, {vr(r, 2)}, {vr(F2 + 2 * tt, 2)}, {vr(F1 + q, 2)} op_sel:[0,1,0] op_sel_hi:[1,1,1]")
        for r, q in prs:
            a(f"v_max_f32 v{r}, 0, v{r}\nv_max_f32 v{r + 1}, 0, v{r + 1}")
        for r, q in prs:
            a(f"v_pk_mul_f32 {vr(r, 2)}, {vr(r, 2)}, {vr(r, 2)}")

    CV = T[2]

    def twice(name, sw, fetch):
        single(name, LW, GA, sw, True, 9)
        a(f"s_cmp_eq_u32 s{s_c}, 10\ns_cbranch_scc1 {L(name + 'e')}")
        fetch()
        a(f"s_branch {L(name)}\n{L(name + 'e')}:")

    def v_stats():
        a(f"ds_read2_b32 {vr(CV, 2)}, v{eL} offset0:0 offset1:16\nds_read2_b32 {vr(CV + 2, 2)}, v{eL} offset0:32 offset1:48")
        reg_stats(E0, eR, 0)
        reg_stats(E1, eR, 512)

    joint("jV", True)
    twice("sV", True, v_stats)
    a(f"""
    s_and_b32 s{s_t1}, s{s_wj}, 1
    s_lshl_b32 s{s_t0}, s{s_rb}, 1
    s_add_u32 s{s_t0}, s{s_t0}, s{s_t1}
    s_mul_i32 s{s_o[0]}, s{s_t0}, 81920
    s_add_u32 s{s_o[0]}, s{s_o[0]}, {WS_V}
    s_add_u32 s{s_o[1]}, s{s_o[0]}, 40960
    """)
    a("\n".join(wreads(LF, 0, 0)))
    stamp(a, prof, 3)
    for kt in range(2):
        for ci in range(4):
            ob = 88 + 4 * (ci & 1)
            prs = [(gacc(tt, ci) + i, 4 * tt + i) for tt in (2 * kt, 2 * kt + 1) for i in (0, 2)]
            for r, q in prs:
                a(f"v_pk_fma_f32 {vr(r, 2)}, {vr(E0 + q, 2)}, {vr(CV + (ci & 2), 2)}, {vr(r, 2)} op_sel:[0,{ci & 1},0] op_sel_hi:[1,{ci & 1},1]")
            for r, q in prs:
                a(f"v_pk_mul_f32 {vr(r, 2)}, {vr(r, 2)}, {vr(E1 + q, 2)}")
            for p in range(4):
                a(f"v_cvt_pk_bf16_f32 v{ob + p}, v{prs[p][0]}, v{prs[p][0] + 1}")
            a(put_piece(ob, eS, kt, ci))
    a(f"""
    s_cmp_ge_u32 s{s_ho}, 27
    s_cbranch_scc0 {L('a_done')}
    {L('a_only')}:
    s_barrier
    s_waitcnt vmcnt(0) lgkmcnt(0)
    """)
    set_flag(WS_FA)
    a(f"""
    s_barrier
    {L('a_none')}:
    s_mov_b32 s{s_o[0]}, {WS_TOP}
    s_mov_b32 s{s_o[1]}, {WS_TOP}
    s_branch {L('a_go')}
    """)
    a(f"{L('aN')}:\ns_cmp_ge_u32 s{s_ho}, 27\ns_cbranch_scc1 {L('sN')}")
    joint("jN", False)
    twice("sN", False, lambda: (reg_stats(E0, eR, L_CSA - L_NM), lane_stats(E1, hL)))
    a(f"""
    s_lshl_b32 s{s_o[0]}, s{s_o[2]}, 18
    s_add_u32 s{s_o[1]}, s{s_o[0]}, {4 * CH}
    s_cmp_lt_u32 s{s_cg}, 5
    s_cselect_b32 s{s_t0}, {QSCALE}, 1.0
    """)
    a("\n".join(wreads(LF, 0, 0)))
    stamp(a, prof, 3)
    for tt in range(4):
        a(f"v_mul_f32 v{E1 + 2 * tt + 1}, s{s_t0}, v{E1 + 2 * tt + 1}")
    pack_tiles(GA, qk_math, lambda cp, tt: 248 + 4 * cp, eS)
    a(f"s_cmp_ge_u32 s{s_ho}, 27\ns_cbranch_scc1 {L('a_only')}\n{L('a_done')}:")
    stamp(a, prof, 4)
    a("s_waitcnt lgkmcnt(0)\ns_barrier")
    single("sF", LF, GB, False, False, 0)
    a(f"""
    s_cmp_eq_u32 s{s_c}, 13
    s_cbranch_scc1 {L('eF')}
    s_cmp_eq_u32 s{s_c}, 12
    s_cbranch_scc1 {L('hF')}
    """)
    reg_stats(F0, hR, L_CSB - L_NM)
    reg_stats(F1, hR, L_BI - L_NM)
    lane_stats(F2, hL)

    def hand_over():
        a("s_waitcnt vmcnt(0)")
        set_flag(WS_FA)
        stamp(a, prof, 5)

    if cfg["flag"] == 2:
        hand_over()
    a(f"s_branch {L('sF')}\n{L('hF')}:")
    if cfg["flag"] == 1:
        hand_over()
    a(f"s_barrier\ns_branch {L('sF')}\n{L('eF')}:")
    stamp(a, prof, 12)
    pack_tiles(GB, ffn_math, lambda cp, tt: PH + 16 * cp + 4 * tt)
    a(f"""
    s_add_u32 s{s_o[0]}, s{s_ho}, 20
    s_lshl_b32 s{s_o[0]}, s{s_o[0]}, 18
    s_add_u32 s{s_o[1]}, s{s_o[0]}, {4 * CH}
    {L('a_go')}:
    s_and_b32 s{s_fl}, s{s_fl}, 31
    s_lshl_b32 s{s_t0}, s{s_ho}, 5
    s_add_u32 s{s_fl}, s{s_fl}, s{s_t0}
    s_setprio 1
    s_mov_b32 s{s_c}, 0
    """)
    zero(SS[1], 16 + 32 + 8)
    stamp(a, prof, 13)
    hput = [put_piece(PH + 4 * k, hS, k >> 2, k & 3) for k in range(8)]
    if cfg["hpos"] == 0:
        a("s_barrier")
        stamp(a, prof, 18)
        a("\n".join(hput))
        stamp(a, prof, 19)
        hput = [""] * 8
    a("s_barrier")
    stamp(a, prof, 6)
    for ab in range(2):
        a(f"ds_read_b128 {vr(Q1[ab], 4)}, v{AQ} offset:{L_Q + 1024 * ab}")
        for par in range(2):
            a(f"ds_read_b64 {vr(Q2[ab][par], 2)}, v{30 + par} offset:{L_Q + 2048 + 512 * ab}")

    def rdK1(t):
        return f"ds_read_b128 {vr(K1[t & 1], 4)}, v{AK} offset:{(t & 7) * 1024}"

    def rdK2(p):
        return f"ds_read_b64 {vr(K2[p & 1], 2)}, v{AR} offset:{OFF_R + (p & 3) * 1024}"

    def rdV(j, t):
        return f"ds_read_b128 {vr((V0, V1)[j][t & 1], 4)}, v{AV} offset:{OFF_V + ((t & 7) * 2 + j) * 656}"

    def qk1(dst, ab, t, c):
        return f"v_mfma_f32_32x32x16_bf16 {vr(dst, 16)}, {vr(K1[t & 1], 4)}, {vr(Q1[ab], 4)}, {c}"

    def qk2(dst, ab, t):
        return f"v_mfma_f32_32x32x8_bf16 {vr(dst, 16)}, {vr(K2[(t >> 1) & 1], 2)}, {vr(Q2[ab][t & 1], 2)}, {vr(dst, 16)}"

    def pv(ab, j, t):
        return f"v_smfmac_f32_32x32x32_bf16 {vr(OO[ab], 16)}, {vr((V0, V1)[j][t & 1], 4)}, {vr(SS[ab] + 8 * j, 8)}, v{IDX}"

    def row_max(dst, bufs):
        regs = [b + i for b in bufs for i in range(16)]
        a(f"v_max3_f32 v{dst}, v{regs[0]}, v{regs[1]}, v{regs[2]}")
        rest = regs[3:]
        while len(rest) >= 2:
            a(f"v_max3_f32 v{dst}, v{dst}, v{rest[0]}, v{rest[1]}")
            rest = rest[2:]
        if rest:
            a(f"v_max_f32 v{dst}, v{dst}, v{rest[0]}")

    def set_shift(ab, shift):
        m = MX[ab]
        a(f"""
        v_mov_b32 v{T[2]}, v{m}
        s_nop 1
        v_permlane32_swap_b32 v{m}, v{T[2]}
        v_max_f32 v{m}, v{m}, v{T[2]}
        v_sub_f32 v{CM[ab]}, {f32(-shift) if shift else 0}, v{m}
        v_mov_b32 v{CM[ab] + 1}, v{CM[ab]}
        """)
        for i in range(2, 16, 2):
            a(f"v_mov_b64 {vr(CM[ab] + i, 2)}, {vr(CM[ab], 2)}")

    a("\n".join([rdK1(0), rdK2(0), rdK1(1), rdV(0, 0), rdV(1, 0)]))
    a("s_waitcnt lgkmcnt(0)" if prof is True else "s_waitcnt lgkmcnt(2)")
    est = {(0, 0): SS[0], (0, 1): CM[0], (1, 0): TS, (1, 1): CM[1]}
    for t in range(2):
        a(qk1(est[0, t], 0, t, 0) + "\n" + qk2(est[0, t], 0, t))
    a(qk1(est[1, 0], 1, 0, 0) + "\ns_nop 7\ns_nop 0")
    work = capture(lambda: (row_max(MX[0], [SS[0], CM[0]]), set_shift(0, SHIFT)))
    for k, x in enumerate((qk2(est[1, 0], 1, 0), qk1(est[1, 1], 1, 1, 0), qk2(est[1, 1], 1, 1))):
        a(x + "\n" + "\n".join(work[6 * k:6 * k + 6]))
    a("\n".join(work[18:]) + "\ns_nop 1")
    work = capture(lambda: (row_max(MX[1], [TS, CM[1]]), set_shift(1, SHIFT)))
    a(qk1(SS[0], 0, 0, vr(CM[0], 16)) + "\n" + "\n".join(work[:7]))
    a(qk2(SS[0], 0, 0) + "\n" + "\n".join(work[7:]))
    a("s_waitcnt lgkmcnt(0)")

    PA = cfg["pa"]

    def slot_events(ab, t):
        o = 1 - ab
        tp = t - 1 if ab == 0 else t
        tn = t if ab == 0 else t + 1
        e = [("i", f"v_exp_f32 v{SS[ab] + i}, v{SS[ab] + i}") for i in range(16)]
        ev = []
        if ab == 0 and t % 8 == 7:
            ev += [("i", f"v_add_u32 v{AV}, s{s_slot}, v{AV0}")]
        ev += e[0:2]
        ev += [("use", ("V1", tp)), ("i", pv(o, 1, tp)), ("wait",)]
        if ab == 1 and t % 8 == cfg["hk"]:
            ev += [("l", f"s_cmp_eq_u32 s{s_c}, {1 if cfg['hpos'] else 0}")]
        if ab == 0 and t % 8 == 6:
            ev += [("i", "s_barrier")]
        if ab == 0 and t % 8 == 4:
            ev += [("i", f"s_add_u32 s{s_slot}, s{s_slot}, {SLOT}")]
        if ab == 1 and t % 8 == 4:
            ev += [("i", f"s_cmp_eq_u32 s{s_slot}, {3 * SLOT}")]
        if ab == 1 and t % 8 == 6:
            ev += [("i", f"s_add_u32 s{s_c}, s{s_c}, 1")]
        if ab == 0:
            ev += [("rd", rdV(1, t + 1), ("V1", t + 1))]
        ev += e[2:5]
        if ab == 0 and t % 8 == 6:
            ev += [("i", f"v_add_u32 v{AK}, s{s_slot}, v{AK0}"), ("i", f"v_add_u32 v{AR}, s{s_slot}, v{AR0}")]
        ev += [("use", ("K1", tn)), ("i", qk1(SS[o], o, tn, vr(CM[o], 16))), ("wait",)]
        if ab == 0:
            ev += [("rd", rdK1(t + 2), ("K1", t + 2))]
        else:
            ev += [("rd", rdV(0, t + 1), ("V0", t + 1))]
        ev += e[5:8]
        ev += [("use", ("K2", tn >> 1)), ("i", qk2(SS[o], o, tn))]
        ev += e[8:PA]
        ev += [("use", ("V0", t)), ("i", pv(ab, 0, t)), ("wait",)]
        if ab == 1 and t % 8 == 4:
            ev += [("i", f"s_cselect_b32 s{s_slot}, 0, s{s_slot}")]
        if ab == 1 and t % 8 == cfg["hk"]:
            ev += [("l", f"s_cbranch_scc1 {L('hk')}\n{L('hk_r')}:")]
        if ab == 0:
            ev += [("p", hput[t % 8])]
        if ab == 1 and t % 8 == 7:
            ev += [("i", f"s_cmp_lt_u32 s{s_c}, 8")]
        if ab == 1 and t % 2 == 0:
            ev += [("rd", rdK2(t // 2 + 1), ("K2", t // 2 + 1))]
        ev += e[PA:16]
        return ev

    evs = []
    for t in range(24):
        for ab in range(2):
            evs += [(t, x) for x in slot_events(ab, t)]
    issue_idx = {}
    n = 0
    for t, x in evs:
        if x[0] == "rd":
            issue_idx[x[2]] = n
            n += 1
    tail4 = "\n".join(f"v_exp_f32 v{SS[1] + i}, v{SS[1] + i}" for i in range(PA, 16))

    def trip(kind):
        n, have = 0, -1
        for k, (t, x) in enumerate(evs):
            emit = 8 <= t < 16
            if x[0] == "rd":
                n += 1
                if emit:
                    a(x[1])
            elif x[0] in ("i", kind):
                if emit:
                    a(x[1])
            elif x[0] == "wait" and t >= 4:
                need = -1
                for t2, y in evs[k + 1:]:
                    if y[0] == "wait":
                        break
                    if y[0] == "use":
                        assert issue_idx[y[1]] < n, (t, y)
                        need = max(need, issue_idx[y[1]])
                if need > have and emit:
                    a(f"s_waitcnt lgkmcnt({n - 1 - need})")
                have = max(have, need)
        del a.lines[PA - 16:]
        if 0 < cfg.get("trace", 0) < 4:
            stamp(a, prof, 23)
            a("s_waitcnt lgkmcnt(0)")

    if cfg["hpos"]:
        trip("p")
        a(f".p2align 3\n{L('aloop')}:\n{tail4}")
    else:
        a(f"s_branch {L('aent')}\n.p2align 3\n{L('aloop')}:\n{tail4}\n{L('aent')}:")
    trip("l")
    a(f"s_cbranch_scc1 {L('aloop')}")
    a(tail4)

    def magnitude(ab):
        o, t = OO[ab], T[2 + ab]
        a(f"v_maximum3_f32 v{t}, |v{o}|, |v{o + 1}|, |v{o + 2}|")
        for i in (3, 5, 7, 9):
            a(f"v_maximum3_f32 v{t}, v{t}, |v{o + i}|, |v{o + i + 1}|")
        a(f"v_maximum3_f32 v{t}, v{t}, |v{o + 11}|, |v{o + 11}|")

    def normalise(ab, guard):
        o = OO[ab]
        for p in range(6):
            a(f"v_pk_mul_f32 {vr(o + 2 * p, 2)}, {vr(o + 2 * p, 2)}, {vr(o + 12, 2)} op_sel:[0,1] op_sel_hi:[1,1]")
        for p in range(6):
            a(f"v_cvt_pk_bf16_f32 v{CM[ab] + p}, v{o + 2 * p}, v{o + 2 * p + 1}")
        if guard:
            for p in (1, 3, 5):
                a(f"v_min_u32 v{CM[ab] + p}, -2, v{CM[ab] + p}")

    a(f"v_rcp_f32 v{OO[0] + 13}, v{OO[0] + 12}\ns_waitcnt lgkmcnt(0)")
    a(pv(1, 1, 7))
    stamp(a, prof, 7)
    a(f"""
    s_barrier
    s_mov_b32 s{s_t0}, {f32(2.0 ** 126)}
    s_mov_b32 s{s_t1}, {f32(2.0 ** (-7 - SHIFT))}
    """)
    magnitude(0)
    normalise(0, False)
    a(f"v_rcp_f32 v{OO[1] + 13}, v{OO[1] + 12}")
    magnitude(1)
    a(f"""
    v_maximum3_f32 v{T[4]}, v{T[2]}, v{T[3]}, v{OO[0] + 12}
    v_min_f32 v{T[2]}, v{T[2]}, v{T[3]}
    v_maximum3_f32 v{T[4]}, v{T[4]}, v{OO[1] + 12}, v{OO[1] + 12}
    v_cmp_le_f32 vcc, s{s_t1}, v{T[2]}
    v_cmp_gt_f32 s[{s_t2}:{s_t2 + 1}], s{s_t0}, v{T[4]}
    s_add_u32 s{s_t0}, s{s_cm}, {C_O * CH}
    s_add_u32 s{s_t1}, s{s_cr}, {C_O * CH}
    s_and_b64 vcc, vcc, s[{s_t2}:{s_t2 + 1}]
    s_cmp_eq_u64 vcc, exec
    """)
    a(f"s_branch {L('slow')}" if force_fallback else f"s_cbranch_scc0 {L('slow')}")

    def put_out(ab):
        a(f"""
        buffer_store_dwordx4 {vr(CM[ab], 4)}, v{VQ}, {WSD}, s{s_t0} offen offset:{512 * ab} sc1
        s_mov_b32 exec_hi, 0
        buffer_store_dwordx2 {vr(CM[ab] + 4, 2)}, v{VQR}, {WSD}, s{s_t1} offen offset:{512 * ab} sc1
        s_mov_b32 exec_hi, -1
        """)

    put_out(0)
    normalise(1, False)
    a(f"{L('norm')}:")
    put_out(1)
    stamp(a, prof, 17)
    a("s_barrier")
    stamp(a, prof, 8)
    a(f"s_branch {L('dump')}" if prof else "s_endpgm")

    a(f"{L('hk')}:\ns_waitcnt vmcnt(0)")
    set_flag(WS_FH)
    a(f"s_branch {L('hk_r')}")

    a(f"{L('slow')}:")
    GR, GV = AR, AV
    a(f"v_and_b32 v{T[0]}, 31, v{vL}\nv_lshrrev_b32 v{T[1]}, 5, v{vL}")
    key_perm(T[2], T[0], T[3], T[4])
    a(f"""
    s_lshl_b32 s{s_t0}, s{s_par}, 3
    s_add_u32 s{s_t0}, s{s_t0}, s{s_cr}
    v_lshl_add_u32 v{GR}, v{T[2]}, 4, s{s_t0}
    v_lshl_add_u32 v{vK}, v{T[2]}, 4, s{s_cm}
    v_lshl_add_u32 v{vK}, v{T[1]}, 15, v{vK}
    """)
    v_feature(T[2], T[0], T[3], T[4])
    a(f"""
    s_mul_i32 s{s_t0}, s{s_head}, 320
    v_mul_u32_u24 v{T[4]}, 10240, v{T[1]}
    v_lshl_add_u32 v{T[2]}, v{T[2]}, 4, v{T[4]}
    v_add_u32 v{GV}, s{s_t0}, v{T[2]}
    v_mov_b32 v{MX[0]}, 0xff800000
    v_mov_b32 v{MX[1]}, 0xff800000
    s_mov_b32 s{s_ko}, {C_K * CH}
    {L('slow1')}:
    buffer_load_dwordx4 {vr(K1[0], 4)}, v{vK}, {WSD}, s{s_ko} offen sc1
    buffer_load_dwordx2 {vr(K2[0], 2)}, v{GR}, {WSD}, s{s_ko} offen sc1
    s_add_u32 s{s_ko}, s{s_ko}, 512
    s_waitcnt vmcnt(0)
    """)
    for ab in range(2):
        a(qk1(SS[ab], ab, 0, 0))
        a(qk2(SS[ab], ab, 0))
    a("s_nop 7\ns_nop 3")
    for ab in range(2):
        for i in range(0, 16, 2):
            a(f"v_max3_f32 v{MX[ab]}, v{MX[ab]}, v{SS[ab] + i}, v{SS[ab] + i + 1}")
    a(f"s_cmp_lt_u32 s{s_ko}, {(C_K + 1) * CH}\ns_cbranch_scc1 {L('slow1')}")
    for ab in range(2):
        set_shift(ab, 0)
    zero(OO[0], 32)
    for r in range(4):
        a(f"v_mov_b32 v{V0[0] + r}, 0x3f803f80\nv_mov_b32 v{V1[0] + r}, 0x3f803f80")
    a(f"""
    s_mov_b32 s{s_ko}, {C_K * CH}
    s_mov_b32 s{s_vo}, {WS_V}
    {L('slow2')}:
    buffer_load_dwordx4 {vr(K1[0], 4)}, v{vK}, {WSD}, s{s_ko} offen sc1
    buffer_load_dwordx2 {vr(K2[0], 2)}, v{GR}, {WSD}, s{s_ko} offen sc1
    s_mov_b32 exec_lo, 0xfffff
    s_mov_b32 exec_hi, 0xfffff
    buffer_load_dwordx4 {vr(V0[0], 4)}, v{GV}, {WSD}, s{s_vo} offen sc1
    s_add_u32 s{s_vo}, s{s_vo}, 20480
    buffer_load_dwordx4 {vr(V1[0], 4)}, v{GV}, {WSD}, s{s_vo} offen sc1
    s_mov_b64 exec, -1
    s_add_u32 s{s_vo}, s{s_vo}, 20480
    s_add_u32 s{s_ko}, s{s_ko}, 512
    s_waitcnt vmcnt(0)
    """)
    for ab in range(2):
        a(qk1(SS[ab], ab, 0, vr(CM[ab], 16)))
        a(qk2(SS[ab], ab, 0))
    a("s_nop 7\ns_nop 3")
    for ab in range(2):
        for i in range(16):
            a(f"v_exp_f32 v{SS[ab] + i}, v{SS[ab] + i}")
    a("s_nop 1")
    for ab in range(2):
        a(pv(ab, 0, 0))
        a(pv(ab, 1, 0))
    a(f"""
    s_cmp_lt_u32 s{s_ko}, {(C_K + 1) * CH}
    s_cbranch_scc1 {L('slow2')}
    s_nop 7
    s_nop 3
    v_rcp_f32 v{OO[0] + 13}, v{OO[0] + 12}
    v_rcp_f32 v{OO[1] + 13}, v{OO[1] + 12}
    s_add_u32 s{s_t0}, s{s_cm}, {C_O * CH}
    s_add_u32 s{s_t1}, s{s_cr}, {C_O * CH}
    """)
    normalise(0, True)
    normalise(1, True)
    put_out(0)
    a(f"s_branch {L('norm')}")

    a(f"""
    {L('near')}:
    s_lshl_b32 s{s_t0}, s{s_rb}, 3
    s_add_u32 s{s_t0}, s{s_t0}, s{s_w}
    s_mul_i32 s{s_t1}, s{s_t0}, {135 * 128}
    s_mul_i32 s{s_t0}, s{s_t0}, {50 * 128}
    v_lshlrev_b32 v{T[2]}, 7, v{vL}
    s_mov_b64 s[{sA}:{sA + 1}], s[16:17]
    s_mov_b32 s{sA + 2}, {F * D * 2}
    s_mov_b32 exec_hi, 0x1fff
    """)
    for i in range(3):
        a(f"buffer_load_dword v{88 + i}, v{T[2]}, s[{sA}:{sA + 3}], s{s_t1} offen\ns_add_u32 s{s_t1}, s{s_t1}, {45 * 128}")
    a(f"""
    s_mov_b64 s[{sA}:{sA + 1}], s[8:9]
    s_mov_b32 s{sA + 2}, {D * D * 2}
    s_mov_b32 exec_hi, 0x3ffff
    buffer_load_dword v91, v{T[2]}, s[{sA}:{sA + 3}], s{s_t0} offen
    s_mov_b32 exec_hi, -1
    s_branch {L('p_go')}
    """)

    g0_lines, a.lines = a.lines, []
    MK, G = 240, 96
    VX, VW, VG = [11, 12, 13, 14], [15, 16, 17, 18], [19, 20, 21, 22]
    gR, gL, gA, gB = 24, 25, 26, 27
    fC, mQ, mQR, mQD, fB, FK, FO, one, pH, pO = range(246, 256)

    def w_addr(VF, stride, grp):
        a(f"""
        v_lshrrev_b32 v{T[0]}, 4, v{vL}
        v_lshlrev_b32 v{T[1]}, 1, v{T[0]}
        v_xor_b32 v{T[1]}, v{T[1]}, v{vL}
        v_and_b32 v{T[1]}, 15, v{T[1]}
        s_lshl_b32 s{s_t1}, s{grp}, 8
        s_mul_i32 s{s_t0}, s{s_wj}, {16 * stride}
        s_add_u32 s{s_t1}, s{s_t1}, s{s_t0}
        v_mul_u32_u24 v{T[0]}, {stride}, v{T[0]}
        v_add_u32 v{T[0]}, s{s_t1}, v{T[0]}
        v_lshl_add_u32 v{VF[0]}, v{T[1]}, 4, v{T[0]}
        v_xor_b32 v{T[1]}, 8, v{T[1]}
        v_lshl_add_u32 v{VF[2]}, v{T[1]}, 4, v{T[0]}
        v_add_u32 v{VF[1]}, {4 * stride - 1024}, v{VF[0]}
        v_add_u32 v{VF[3]}, {3 * (4 * stride - 1024)}, v{VF[2]}
        v_add_u32 v{VF[2]}, {2 * (4 * stride - 1024)}, v{VF[2]}
        """)

    TF, TA, TV = 32, [52, 53], [54, 55, 56, 57, 58]
    has_block = f"s_cmp_lt_u32 s{s_tt}, 74"

    def block_addr():
        a(f"""
        s_and_b32 s{s_tt}, s2, 31
        s_lshl_b32 s{s_t0}, s{s_wj}, 5
        s_add_u32 s{s_tt}, s{s_tt}, s{s_t0}
        s_mul_i32 s{s_c}, s{s_wj}, 5120
        s_add_u32 s{s_c}, s{s_c}, {STG + LW}
        """)
        for i in range(5):
            a(f"""
            v_add_u32 v{T[2]}, {64 * i}, v{vL}
            v_mul_u32_u24 v{T[3]}, 6554, v{T[2]}
            v_lshrrev_b32 v{T[3]}, 16, v{T[3]}
            v_mul_u32_u24 v{T[3]}, {1280 - 160}, v{T[3]}
            v_lshl_add_u32 v{TV[i]}, v{T[2]}, 4, v{T[3]}
            """)
        a(f"""
        v_lshrrev_b32 v{T[2]}, 4, v{vL}
        v_bfe_u32 v{T[3]}, v{vL}, 2, 2
        v_lshl_add_u32 v{T[2]}, v{T[2]}, 3, v{T[3]}
        v_mul_u32_u24 v{T[2]}, 160, v{T[2]}
        v_add_u32 v{T[2]}, s{s_c}, v{T[2]}
        v_and_b32 v{T[3]}, 3, v{vL}
        v_lshl_add_u32 v{TA[0]}, v{T[3]}, 4, v{T[2]}
        v_lshl_add_u32 v{TA[1]}, v{T[3]}, 3, v{T[2]}
        """)

    def block_fetch():
        a(f"""
        s_cmp_lt_u32 s{s_tt}, 54
        s_cselect_b64 s[{sA}:{sA + 1}], s[16:17], s[8:9]
        s_mov_b32 s{sA + 2}, {F * D * 2}
        s_cselect_b32 s{sA + 2}, s{sA + 2}, {D * D * 2}
        s_cselect_b32 s{s_t1}, 0, 54
        s_sub_u32 s{s_t0}, s{s_tt}, s{s_t1}
        s_mul_i32 s{s_t0}, s{s_t0}, {32 * 1280}
        s_mul_i32 s{s_t1}, s{s_qb}, 160
        s_add_u32 s{s_t0}, s{s_t0}, s{s_t1}
        """)
        for i in range(5):
            a(f"s_add_u32 m0, s{s_c}, {i * 1024}\ns_nop 0")
            a(f"buffer_load_dwordx4 v{TV[i]}, s[{sA}:{sA + 3}], s{s_t0} offen lds")

    def block_turn():
        a("s_waitcnt vmcnt(0)")
        for c in range(5):
            va, off = (TA[0], 64 * (c >> 1) + 8 * (c & 1)) if c < 4 else (TA[1], 128)
            for h in range(2):
                a(f"ds_read_b64_tr_b16 {vr(TF + 4 * c + 2 * h, 2)}, v{va} offset:{off + 640 * h}")
        a("s_waitcnt lgkmcnt(0)")

    def block_put():
        a(f"""
        s_mul_i32 s{s_t0}, s{s_tt}, {KS_ROW}
        s_mul_i32 s{s_t1}, s{s_qb}, 5120
        s_add_u32 s{s_t0}, s{s_t0}, s{s_t1}
        s_add_u32 s{s_t0}, s{s_t0}, {WS_WT}
        s_add_u32 s{s_t1}, s{s_t0}, 4096
        v_lshlrev_b32 v{T[2]}, 4, v{vL}
        """)
        for c in range(5):
            a(f"buffer_store_dwordx4 {vr(TF + 4 * c, 4)}, v{T[2]}, {WSD}, s{(s_t0, s_t1)[c >> 2]} offen offset:{1024 * (c & 3)} sc1")

    def later_addr():
        attn_ids()
        block_addr()
        kv_addr(0)
        ones_addr(one, 0, 3)
        a(f"v_and_b32 v{T[0]}, 1, v{vL}")
        head_unit(T[1], T[0])
        a(f"""
        v_lshrrev_b32 v{T[0]}, 1, v{vL}
        v_min_u32 v{T[0]}, 2, v{T[0]}
        v_mad_u32_u24 v{T[1]}, v{T[0]}, 10, v{T[1]}
        v_mov_b32 v{T[2]}, s{s_kc}
        s_mov_b64 exec, 3
        v_mov_b32 v{T[2]}, s{s_qb}
        s_mov_b64 exec, -1
        v_lshl_add_u32 v{T[2]}, v{T[2]}, 2, s{s_wj}
        """)
        flag_of_tile(FO, f"v{T[2]}", T[1])
        a(f"v_and_b32 v{T[0]}, 1, v{vL}")
        head_unit(T[1], T[0])
        a(f"""
        v_bfe_u32 v{T[0]}, v{vL}, 1, 1
        v_mad_u32_u24 v{T[1]}, v{T[0]}, 10, v{T[1]}
        v_add_u32 v{T[1]}, 10, v{T[1]}
        v_and_b32 v{T[0]}, 28, v{vL}
        v_add_u32 v{T[0]}, s{s_wj}, v{T[0]}
        """)
        flag_of_tile(FK, f"v{T[0]}", T[1])
        q_addr(mQ, mQR)
        a(f"""
        v_lshl_add_u32 v{mQD}, v{vL}, 4, s{s_t0}
        s_lshl_b32 s{s_t0}, s{s_head}, 2
        s_add_u32 s{s_t0}, s{s_t0}, s{s_wj}
        v_and_b32 v{T[2]}, 15, v{vL}
        v_lshl_add_u32 v{T[2]}, s{s_t0}, 4, v{T[2]}
        v_lshrrev_b32 v{T[3]}, 4, v{vL}
        v_lshlrev_b32 v{pH}, 15, v{T[3]}
        v_lshl_add_u32 v{pH}, v{T[2]}, 4, v{pH}
        v_mul_u32_u24 v{pO}, 1280, v{T[2]}
        """)
        a(f"""
        v_min_u32 v{T[3]}, 26, v{T[0]}
        v_lshl_add_u32 v{fC}, v{T[3]}, 5, s{s_head}
        v_lshl_add_u32 v{T[3]}, v{T[0]}, 2, s{s_wj}
        v_min_u32 v{T[3]}, 53, v{T[3]}
        v_subrev_u32 v{T[4]}, 16, v{T[0]}
        v_min_u32 v{T[4]}, 4, v{T[4]}
        v_lshl_add_u32 v{T[4]}, v{T[4]}, 2, s{s_wj}
        s_lshl_b32 s{s_t0}, s{s_qb}, 7
        s_add_u32 s{s_t0}, s{s_t0}, 1024
        s_add_u32 s{s_fl}, s{s_t0}, s{s_tt}
        s_add_u32 s{s_t1}, s{s_t0}, 54
        s_mov_b32 exec_lo, 0
        v_add_u32 v{fC}, s{s_t0}, v{T[3]}
        s_mov_b32 exec_hi, 0xffff0000
        v_add_u32 v{fC}, s{s_t1}, v{T[4]}
        s_mov_b64 exec, -1
        v_lshlrev_b32 v{fC}, 7, v{fC}
        s_lshr_b32 s{s_t0}, s{s_head}, 2
        v_lshl_add_u32 v{fB}, s{s_t0}, 5, v{T[0]}
        v_lshlrev_b32 v{fB}, 7, v{fB}
        """)

    def boundary(wait=None):
        if wait is not None:
            a(f"s_waitcnt vmcnt({wait})")
        if 1 < cfg.get("trace", 0) < 4:
            stamp(a, prof, 21)
        a("s_barrier")

    def ask_tag():
        srd(a, sWS, 22, WS_TOP)
        load_tag()

    def take_tag():
        a(f"s_waitcnt lgkmcnt(0)\ns_add_u32 s{s_tag}, s{s_tag}, 1")

    def split(ops, n):
        k = -(-len(ops) // n)
        return [ops[i * k:(i + 1) * k] for i in range(n)]

    def feed(c, which="xwf", mix=()):
        mix = list(mix)
        per = -(-len(mix) // max(4 * len(which), 1))
        for key, part, va, sd, step in (("x", LX, VX, sX, 128), ("w", LW, VW, sW, 64 * 3840), ("f", LF, VG, sB, 64 * 3456)):
            if key in which:
                half = {"x": s_xo, "w": s_wstep, "f": s_ho}[key]
                a(f"s_add_u32 m0, s{s_ring}, {(c % 3) * STG + part}")
                if cfg["rot"]:
                    a(f"s_mov_b32 s{s_wo}, s{half}\ns_add_u32 s{half}, s{half}, {step}\n"
                      f"s_cmp_eq_u32 s{half}, {10 * step}\ns_cselect_b32 s{half}, 0, s{half}")
                else:
                    a(f"s_add_u32 s{s_wo}, s{half}, {c * step}" if c < 5 else f"s_sub_u32 s{s_wo}, {c * step}, s{half}")
                for i in range(4):
                    a(f"buffer_load_dwordx4 v{va[i]}, s[{sd}:{sd + 3}], s{s_wo} offen offset:{1024 * i} lds")
                    a("\n".join(mix[:per]))
                    mix = mix[per:]

    def only(name, cond, fn):
        a(f"{cond}\ns_cbranch_scc0 {L(name)}")
        fn()
        a(f"{L(name)}:")

    feeding = f"s_cmp_lt_u32 s{s_cg}, 15"
    a(f"""
    s_lshl_b32 s{s_ring}, s{s_wj}, 12
    s_mul_i32 s{s_t3}, s{s_t3}, 5
    """)
    if cfg["rot"]:
        a(f"""
        s_mul_i32 s{s_t3}, s{s_cg}, {cfg['rot'] >> 4}
        s_mul_i32 s{s_t0}, s{s_rb}, {cfg['rot'] & 15}
        s_add_u32 s{s_t3}, s{s_t3}, s{s_t0}
        s_mul_i32 s{s_t0}, s{s_t3}, 6554
        s_lshr_b32 s{s_t0}, s{s_t0}, 16
        s_mul_i32 s{s_t0}, s{s_t0}, 10
        s_sub_u32 s{s_t3}, s{s_t3}, s{s_t0}
        """)
    a(f"""
    s_mul_i32 s{s_xo}, s{s_t3}, 128
    s_mul_i32 s{s_wstep}, s{s_t3}, {64 * 3840}
    s_mul_i32 s{s_ho}, s{s_t3}, {64 * 3456}
    v_lshrrev_b32 v{T[2]}, 4, v{vL}
    v_xor_b32 v{T[2]}, v{T[2]}, v{T[1]}
    s_lshl_b32 s{s_t1}, s{s_rb}, 2
    s_add_u32 s{s_t1}, s{s_t1}, s{s_wj}
    s_mul_i32 s{s_t1}, s{s_t1}, {32 * 1280}
    v_mul_u32_u24 v{T[3]}, 1280, v{T[0]}
    v_add_u32 v{T[3]}, s{s_t1}, v{T[3]}
    v_lshl_add_u32 v{VX[0]}, v{T[2]}, 4, v{T[3]}
    v_xor_b32 v{T[2]}, 4, v{T[2]}
    v_lshl_add_u32 v{VX[1]}, v{T[2]}, 4, v{T[3]}
    v_add_u32 v{VX[2]}, {2 * (10240 - 1024)}, v{VX[0]}
    v_add_u32 v{VX[3]}, {3 * (10240 - 1024)}, v{VX[1]}
    v_add_u32 v{VX[1]}, {10240 - 1024}, v{VX[1]}
    v_and_b32 v{SO}, 48, v{vL}
    v_lshl_add_u32 v{SO}, v{T[1]}, 6, v{SO}
    """)
    srd(a, sX, 4, S * D * 2)

    def touch():
        a(f"""
        s_getpc_b64 s[{sA}:{sA + 1}]
        {L('pc')}:
        s_sub_u32 s{sA}, s{sA}, {L('pc')}-{label}
        s_subb_u32 s{sA + 1}, s{sA + 1}, 0
        s_mov_b32 s{sA + 2}, {L('end')}-{label}
        s_lshr_b32 s{s_t0}, s2, 3
        s_mul_i32 s{s_t0}, s{s_t0}, {9 * 128}
        v_lshlrev_b32 v{T[2]}, 7, v{vL}
        s_mov_b64 exec, 0x1ff
        buffer_load_dword v226, v{T[2]}, s[{sA}:{sA + 3}], s{s_t0} offen
        s_mov_b64 exec, -1
        """)

    if cfg["touch"] & 1:
        only("tc", f"s_cmp_eq_u32 s{s_wj}, 0", touch)
    srd(a, sA, 14, F * 2)
    a(f"""
    s_lshl_b32 s{s_t2}, s{s_cf}, 8
    v_lshlrev_b32 v{T[2]}, 2, v{vL}
    buffer_load_dword v28, v{T[2]}, s[{sA}:{sA + 3}], s{s_t2} offen
    """)
    ask_tag()
    w_addr(VW, 3840, s_cg)
    w_addr(VG, 3456, s_cf)
    srd(a, sW, 6, D * 3 * D * 2)
    srd(a, sB, 12, D * F * 2)
    a(f"""
    s_cmp_lt_u32 s{s_cf}, 14
    s_cselect_b32 s{sB + 2}, s{sB + 2}, 0
    s_lshl_b32 s{s_o[1]}, s{s_o[1]}, 9
    s_add_u32 s{s_o[0]}, s{s_o[0]}, s{s_o[1]}
    s_add_u32 s{s_o[0]}, s{s_o[0]}, {WS_CP}
    s_and_b32 s{s_t1}, s{s_wj}, 1
    v_lshl_add_u32 v{gL}, s{s_t1}, 6, v{vL}
    s_lshl_b32 s{s_t3}, s{s_rb}, 11
    v_lshl_add_u32 v{gR}, v{gL}, 4, s{s_t3}
    s_add_u32 s{s_t2}, s{s_cf}, 15
    s_cmp_eq_u32 s{s_t1}, 0
    s_cselect_b32 s{s_t1}, s{s_cg}, s{s_t2}
    s_lshl_b32 s{s_t1}, s{s_t1}, 6
    v_add_u32 v{gA}, s{s_t1}, v{vL}
    v_min_u32 v{gA}, 1823, v{gA}
    v_lshlrev_b32 v{gA}, 4, v{gA}
    s_mov_b32 s{s_spin}, {SPIN}
    v_lshrrev_b32 v23, 1, v{SO}
    v_add_u32 v23, {L_CP}, v23
    """)
    if cfg["early"]:
        later_addr()
    take_tag()
    stamp(a, prof, 44)

    def sums():
        for r in range(20):
            c = AC + 2 * (r & 3)
            if r < 4:
                a(f"v_lshlrev_b32 v{c}, 16, v{SD + r}\nv_and_b32 v{c + 1}, 0xffff0000, v{SD + r}")
            else:
                lo, hi = T[2 + 2 * (r & 1)], T[3 + 2 * (r & 1)]
                a(f"v_lshlrev_b32 v{lo}, 16, v{SD + r}\nv_and_b32 v{hi}, 0xffff0000, v{SD + r}\n"
                  f"v_add_f32 v{c}, v{c}, v{lo}\nv_add_f32 v{c + 1}, v{c + 1}, v{hi}")
        a(f"s_lshl_b32 s{s_t0}, s{s_wj}, 8\nv_add_u32 v{T[2]}, s{s_t0}, v23")
        for i in range(4):
            a(f"v_permlane32_swap_b32 v{AC + i}, v{AC + 4 + i}")
        for i in range(4):
            a(f"v_add_f32 v{AC + i}, v{AC + i}, v{AC + 4 + i}")
        a("s_nop 1")
        for i in range(2):
            a(f"v_permlane16_swap_b32 v{AC + i}, v{AC + 2 + i}")
        a(f"v_add_f32 v{AC}, v{AC}, v{AC + 2}\nv_add_f32 v{AC + 1}, v{AC + 1}, v{AC + 3}\ns_nop 1")
        for r in (AC, AC + 1):
            a(f"v_add_f32_dpp v{r}, v{r}, v{r} row_ror:8 row_mask:0xf bank_mask:0xf")
        a(f"ds_write_b64 v{T[2]}, {vr(AC, 2)}")

    def publish():
        for i in range(4):
            a(f"ds_read_b64 {vr(AC + 2 * i, 2)}, v23 offset:{256 * i}")
        a(f"""
        s_waitcnt lgkmcnt(0)
        v_add_f32 v{AC}, v{AC}, v{AC + 2}
        v_add_f32 v{AC + 2}, v{AC + 1}, v{AC + 3}
        v_add_f32 v{AC + 4}, v{AC + 4}, v{AC + 6}
        v_add_f32 v{AC + 5}, v{AC + 5}, v{AC + 7}
        v_add_f32 v{AC}, v{AC}, v{AC + 4}
        v_add_f32 v{AC + 2}, v{AC + 2}, v{AC + 5}
        v_mov_b32 v{AC + 1}, s{s_tag}
        v_mov_b32 v{AC + 3}, s{s_tag}
        s_mov_b32 exec_lo, 0x00ff00ff
        s_mov_b32 exec_hi, 0x00ff00ff
        buffer_store_dwordx4 {vr(AC, 4)}, v{SO}, {WSD}, s{s_o[0]} offen sc1
        s_mov_b64 exec, -1
        """)

    def publish_rows():
        a(f"""
        s_lshl4_add_u32 s{s_t0}, s{s_rb}, s{s_cg}
        s_lshl_b32 s{s_t0}, s{s_t0}, 7
        s_add_u32 s{s_t0}, s{s_t0}, {WS_RS}
        v_lshlrev_b32 v{T[2]}, 4, v{vL}
        v_add_u32 v{T[3]}, {L_RP}, v{T[2]}
        s_cmp_eq_u32 s{s_cg}, 14
        s_movk_i32 s{s_t1}, 0xff
        s_cselect_b32 exec_lo, 0xffff, s{s_t1}
        s_mov_b32 exec_hi, 0
        ds_read_b128 {vr(AC, 4)}, v{T[3]}
        s_waitcnt lgkmcnt(0)
        buffer_store_dwordx4 {vr(AC, 4)}, v{T[2]}, {WSD}, s{s_t0} offen sc1
        s_mov_b64 exec, -1
        """)

    def gather_loads():
        a(f"s_mov_b32 s{s_slot}, {WS_RS}\nbuffer_load_dwordx4 {vr(G + 16, 4)}, v{gR}, {WSD}, s{s_slot} offen sc1")
        a(f"s_mov_b32 s{s_slot}, {WS_CP}")
        for p in range(4):
            a(f"buffer_load_dwordx4 {vr(G + 4 * p, 4)}, v{gA}, {WSD}, s{s_slot} offen sc1")
            a(f"s_add_u32 s{s_slot}, s{s_slot}, {CP_ROW}")

    def gather_put():
        a(f"s_branch {L('ga_chk')}\n{L('ga')}:")
        gather_loads()
        a(f"s_sub_u32 s{s_spin}, s{s_spin}, 1\ns_waitcnt vmcnt(0)\n{L('ga_chk')}:")
        a(f"v_min_u32 v{T[3]}, v{G + 1}, v{G + 3}\nv_max_u32 v{T[4]}, v{G + 1}, v{G + 3}")
        for p in range(1, 5):
            b = G + 4 * p
            a(f"v_min3_u32 v{T[3]}, v{T[3]}, v{b + 1}, v{b + 3}\nv_max3_u32 v{T[4]}, v{T[4]}, v{b + 1}, v{b + 3}")
        retry("ga")
        a(f"v_add_f32 v{G + 1}, v{G + 2}, v{G + 6}\nv_add_f32 v{G}, v{G}, v{G + 4}")
        for p in range(2, 4):
            b = G + 4 * p
            a(f"v_add_f32 v{G}, v{G}, v{b}\nv_add_f32 v{G + 1}, v{G + 1}, v{b + 2}")
        a(f"""
        s_mov_b32 s{s_t0}, {L_NM}
        v_lshlrev_b32 v{G + 2}, 16, v28
        v_and_b32 v{G + 3}, 0xffff0000, v28
        v_lshl_add_u32 v{T[3]}, v{gL}, 2, s{s_t0}
        v_lshl_add_u32 v{T[4]}, v{gL}, 3, s{s_t0}
        v_lshl_add_u32 v{T[5]}, v{vL}, 3, s{s_t0}
        ds_write2_b32 v{T[3]}, v{G + 16}, v{G + 18} offset0:0 offset1:128
        ds_write_b64 v{T[4]}, {vr(G, 2)} offset:{L_CSA - L_NM}
        ds_write_b64 v{T[5]}, {vr(G + 2, 2)} offset:{L_BI - L_NM}
        s_waitcnt lgkmcnt(0)
        """)

    def mark_unwritten():
        a(f"""
        s_add_u32 s{s_ko}, s{s_cm}, {C_O * CH}
        s_add_u32 s{s_vo}, s{s_cr}, {C_O * CH}
        v_mov_b64 {vr(MK, 2)}, -1
        v_mov_b64 {vr(MK + 2, 2)}, -1
        buffer_store_dwordx4 {vr(MK, 4)}, v{mQ}, {WSD}, s{s_ko} offen sc1
        buffer_store_dwordx4 {vr(MK, 4)}, v{mQ}, {WSD}, s{s_ko} offen offset:512 sc1
        s_mov_b32 exec_hi, 0
        buffer_store_dwordx2 {vr(MK, 2)}, v{mQR}, {WSD}, s{s_vo} offen sc1
        buffer_store_dwordx2 {vr(MK, 2)}, v{mQR}, {WSD}, s{s_vo} offen offset:512 sc1
        s_mov_b32 exec_hi, -1
        """)

    a(f"{feeding}\ns_cbranch_scc1 {L('g1_on')}")
    if not cfg["early"]:
        later_addr()
    early_mark = cfg["mk"] < 10
    if early_mark:
        mark_unwritten()
    only("bf0", has_block, block_fetch)
    only("bt0", has_block, block_turn)
    a(f"s_branch {L('b_last')}\n{L('g1_on')}:")
    feed(0)
    stamp(a, prof, 43)
    pre = "xwf"[:cfg["pre"]]
    feed(1, pre)
    boundary(4 * len(pre))
    a(f"s_setprio {cfg['fprio']}")
    sm = capture(sums)
    LT = cfg["late"]

    def late_loads():
        for q in range(5):
            a(f"buffer_load_dwordx4 {vr(SD + 4 * q, 4)}, v29, s[88:91], s10 offen\ns_add_u32 s10, s10, s11")

    if LT == 1:
        late_loads()
    k = len(sm) * (3 - len(pre)) // 3
    feed(1, "xwf"[len(pre):], [] if LT else sm[:k])
    feed(2, pre, [] if LT else sm[k:])
    only("pr", f"s_cmp_eq_u32 s{s_wj}, 2", publish_rows)
    a("s_waitcnt lgkmcnt(0)")
    late = [[]] + split(capture(later_addr), 4)
    if LT:
        late = [[]] * (LT - 1) + [sm + ["s_waitcnt lgkmcnt(0)"]] + split(capture(later_addr), 5 - LT)
    gath = f"s_cmp_lt_u32 s{s_wj}, 2"
    for c in range(10):
        if c - cfg["gat"] in (1, 2):
            a(f"{gath}\ns_cbranch_scc1 {L('bw' + str(c))}\ns_waitcnt vmcnt(12)\n{L('bw' + str(c))}:")
            boundary(17)
            assert c <= 5
        else:
            boundary({0: 4 * len(pre), 6: 8, 7: 8, 8: 4, 9: None}.get(c, 12))
        if c == LT - 2:
            late_loads()
        if c == 0:
            feed(2, "xwf"[len(pre):])
        if c < 5:
            feed(c + 3, mix=late[c])
        elif c < 7:
            feed(c + 3, "xw")
        elif c < 9:
            feed(c + 1, "f")
        if c == LT:
            only("pb", f"s_cmp_eq_u32 s{s_wj}, s{s_hook}", publish)
        if c == cfg["mk"]:
            mark_unwritten()
        if c == 8:
            only("bf", has_block, block_fetch)
        if c == cfg["gat"]:
            only("gf", gath, gather_loads)
        if c == cfg["gat"] + 3:
            only("gp", gath, gather_put)
    a(f"{has_block}\ns_cbranch_scc1 {L('bwa')}\ns_waitcnt vmcnt({4 * early_mark})\n{L('bwa')}:")
    boundary(5 + 4 * early_mark)
    only("bt", has_block, block_turn)
    boundary()

    def first_fetch():
        a(f"""
        s_mul_i32 s{s_t0}, s{s_wj}, 3072
        s_add_u32 m0, s{s_t0}, {L_Q}
        s_nop 0
        buffer_load_dwordx4 v{mQ}, {WSD}, s{s_cm} offen sc1 lds
        s_add_u32 m0, s{s_t0}, {L_Q + 512}
        s_nop 0
        buffer_load_dwordx4 v{mQ}, {WSD}, s{s_cm} offen offset:512 sc1 lds
        s_add_u32 m0, s{s_t0}, {L_Q + 2048}
        s_nop 0
        buffer_load_dwordx4 v{mQD}, {WSD}, s{s_cr} offen sc1 lds
        """)
        kv_dma(0)

    a(f"{L('b_last')}:\ns_setprio 2")
    stamp(a, prof, 40)
    ones_write(one, 20)
    wait_flags("wa", WS_FA, [FO])
    stamp(a, prof, 41)
    if prof is True:
        a(f"s_sub_u32 s{s_t0}, {SPIN}, s{s_spin}\ns_add_u32 s96, s{s_t0}, 100")
    first_fetch()
    stamp(a, prof, 4)
    a(f"s_mov_b32 s{s_t0}, {WS_FA}\nbuffer_load_dword v{T[3]}, v{FK}, {WSD}, s{s_t0} offen sc1")
    if cfg["hpos"] == 0:
        a("s_barrier")
    a("s_waitcnt vmcnt(1) lgkmcnt(0)")
    stamp(a, prof, 3)
    a(f"s_barrier\ns_waitcnt vmcnt(0)\nv_cmp_ne_u32 vcc, s{s_tag}, v{T[3]}\ns_nop 3\ns_cbranch_vccz {L('wk_done')}")
    wait_flags("wk", WS_FA, [FK])
    kv_dma(1)
    if cfg["bpos"] == 0:
        only("bp", has_block, block_put)

    vH, vW, vO, vB, vLn = [11, 12, 13, 14], [15, 16], [17, 18], [T[0], T[1]], 19
    ACC = 20
    LB = [100 + 36 * i for i in range(3)]
    WR, XR, BR = 180, 220, 230
    sH, sT = sW, sA
    a(f"""
    v_mov_b32 v{vH[0]}, v{pH}
    v_xor_b32 v{vH[1]}, 256, v{pH}
    v_xor_b32 v{vH[2]}, 512, v{pH}
    v_xor_b32 v{vH[3]}, 768, v{pH}
    v_lshlrev_b32 v{vLn}, 4, v{vL}
    s_mul_i32 s{s_t0}, s{s_qb}, 5120
    v_add_u32 v{vW[0]}, s{s_t0}, v{vLn}
    v_add_u32 v{vW[1]}, 4096, v{vW[0]}
    s_mul_i32 s{s_t0}, s{s_qb}, 160
    v_lshrrev_b32 v{T[2]}, 4, v{vL}
    v_lshl_add_u32 v{vB[0]}, v{T[2]}, 4, s{s_t0}
    v_lshl_add_u32 v{vB[1]}, v{T[2]}, 3, s{s_t0}
    v_add_u32 v{vO[0]}, v{pO}, v{vB[0]}
    v_add_u32 v{vO[1]}, v{pO}, v{vB[1]}
    s_add_u32 s{sH}, s22, {C_H * CH}
    s_addc_u32 s{sH + 1}, s23, 0
    s_mov_b32 s{sH + 2}, {216 * CH}
    s_mov_b32 s{sH + 3}, 0x00020000
    s_add_u32 s{sT}, s22, {WS_WT}
    s_addc_u32 s{sT + 1}, s23, 0
    s_mov_b32 s{sT + 2}, {54 * KS_ROW}
    s_mov_b32 s{sT + 3}, 0x00020000
    s_lshl_b32 s{s_ho}, s{s_wj}, 17
    s_mul_i32 s{s_wo}, s{s_wj}, {KS_ROW}
    s_add_u32 s{s_xo}, s{s_wo}, {WS_WT + 54 * KS_ROW}
    s_mul_i32 s{s_ring}, s{s_wj}, 5120
    """)
    if cfg["bpos"] == 0:
        a("s_waitcnt vmcnt(0)")
        only("fw", has_block, lambda: set_flag(WS_FH))
        kv_dma(2)
        a("s_barrier")
    elif cfg["bpos"] == 2:
        kv_dma(2)
        only("bp", has_block, block_put)
        a(f"{has_block}\ns_cbranch_scc1 {L('bq')}\ns_waitcnt vmcnt(7)\n{L('bq')}:\ns_waitcnt vmcnt(12)\ns_barrier")
        only("fw", has_block, lambda: (a("s_waitcnt vmcnt(0)"), set_flag(WS_FH)))
    elif cfg["bpos"] == 3:
        only("bp", has_block, block_put)
        a(f"{has_block}\ns_cbranch_scc1 {L('bq')}\ns_waitcnt vmcnt(0)\n{L('bq')}:\ns_waitcnt vmcnt(5)\ns_barrier")
        only("fw", has_block, lambda: (a("s_waitcnt vmcnt(0)"), set_flag(WS_FH)))
        kv_dma(2)
    else:
        kv_dma(2)
        a("s_waitcnt vmcnt(7)\ns_barrier")
        only("bp", has_block, lambda: (block_put(), a("s_waitcnt vmcnt(0)"), set_flag(WS_FH)))
    a(f"s_mov_b32 s{s_fl}, s2")
    stamp(a, prof, 5)

    def w_frag(c):
        return (vW[0], 1024 * c) if c < 4 else (vW[1], 0)

    def ffn_loads(b):
        for t in range(4):
            a(f"buffer_load_dwordx4 {vr(LB[b] + 4 * t, 4)}, v{vH[t]}, s[{sH}:{sH + 3}], s{s_ho} offen sc1")
        for c in range(5):
            va, off = w_frag(c)
            a(f"buffer_load_dwordx4 {vr(LB[b] + 16 + 4 * c, 4)}, v{va}, s[{sT}:{sT + 3}], s{s_wo} offen offset:{off} sc1")
        a(f"s_add_u32 s{s_ho}, s{s_ho}, {16 * CH}\ns_add_u32 s{s_wo}, s{s_wo}, {4 * KS_ROW}")

    def wo_stage(i):
        for c in range(5):
            va, off = w_frag(c)
            if c in (0, 4):
                a(f"s_add_u32 m0, s{s_ring}, {L_WO + i * 20480 + 1024 * c}\ns_nop 0")
            a(f"buffer_load_dwordx4 v{va}, {WSD}, s{s_xo} offen offset:{off} sc1 lds")
        a(f"s_add_u32 s{s_xo}, s{s_xo}, {4 * KS_ROW}")

    queue = []

    def need(tag):
        if tag not in queue:
            return
        last = max(i for i, q in enumerate(queue) if q == tag)
        a(f"s_waitcnt vmcnt({len(queue) - 1 - last})")
        del queue[:last + 1]

    def send(r):
        a(f"s_add_u32 s{s_t0}, s{s_ring}, {L_EX[r]}\nv_add_u32 v{T[2]}, s{s_t0}, v{vLn}")
        for c in range(5):
            a(f"ds_write_b128 v{T[2]}, {vr(ACC + 20 * r + 4 * c, 4)} offset:{1024 * c}")

    wait_flags("wb", WS_FH, [fC], cfg["fbr"])
    a(f"s_mov_b32 s{s_slot}, s{s_spin}\ns_cbranch_vccz {L('fb_go')}\ns_barrier")
    wait_flags("wc", WS_FH, [fC])
    a(f"s_mov_b32 s{s_slot}, -1\n{L('fb_go')}:")
    stamp(a, prof, 6)
    ffn_loads(0)
    only("fb1", f"s_cmp_eq_u32 s{s_slot}, 0", lambda: a("s_barrier"))
    ffn_loads(1)
    queue += [("L", 0)] * 9 + [("L", 1)] * 9
    if cfg["mk"] == 12:
        mark_unwritten()
        queue += [("M", 0)] * 4
    only("fb2", f"s_cmp_gt_i32 s{s_slot}, 0", lambda: a("s_barrier"))
    a("s_setprio 0")
    assert not early_mark

    def vm_units(fn, tag):
        out, cur = [], []
        for u in capture(fn):
            cur.append(u)
            n = u.count("buffer_load")
            if n:
                out.append(("\n".join(cur), [tag] * n))
                cur = []
        out[-1] = (out[-1][0] + "\n" + "\n".join(cur), out[-1][1])
        return out

    cuts = [cfg["cut0"] + cfg["cutd"] * k for k in range(5)]
    side = vm_units(lambda: kv_dma(3), ("D", 2)) + vm_units(lambda: wo_stage(0), ("W", 2))
    iv, m = 2, 0
    for step in range(14):
        b = step % 3
        main = vm_units(lambda: ffn_loads((step + 2) % 3), ("L", step + 2)) if step + 2 < 14 else []
        need(("L", step))
        if step == 13:
            assert not side and iv == 7
            a(f"s_cmp_lt_u32 s{s_wj}, 2\ns_cbranch_scc0 {L('m13')}")
        for k in range(20):
            t, c = divmod(k, 5)
            d = vr(ACC + 20 * t + 4 * c, 4)
            a(f"v_mfma_f32_16x16x32_bf16 {d}, {vr(LB[b] + 16 + 4 * c, 4)}, {vr(LB[b] + 4 * t, 4)}, {d if step else 0}")
            m += 1
            src = main if (main and (k & 1 or not side)) else side
            if src:
                text, tags = src.pop(0)
                a(text)
                queue += tags
            if iv < 7 and m == cuts[iv - 2]:
                assert not side
                need(("D", iv))
                if cfg.get("trace"):
                    stamp(a, prof, 24)
                a("s_barrier")
                iv += 1
                if iv == cfg["mk"] - 10:
                    mark_unwritten()
                    queue += [("M", 0)] * 4
                if iv == cfg["mk"] - 9:
                    assert ("M", 0) not in queue
                    only("fb", f"s_cmp_eq_u32 s{s_wj}, 0", lambda: set_flag(WS_FB))
                if iv < 7:
                    side = vm_units(lambda: kv_dma(iv + 1), ("D", iv))
                if iv < 6:
                    side += vm_units(lambda: wo_stage(iv - 2), ("W", iv))
                if iv == 7:
                    only("w5", f"s_cmp_lt_u32 s{s_wj}, 2", lambda: wo_stage(4))
        assert not main
    a(f"{L('m13')}:")
    srd(a, sX, 4, S * D * 2)
    srd(a, sA, 18, D * 2)
    srd(a, sB, 20, S * D * 2)
    upper = f"s_cmp_ge_u32 s{s_wj}, 2"

    def wo_last():
        for c in range(5):
            va, off = w_frag(c)
            a(f"buffer_load_dwordx4 {vr(WR + 4 * c, 4)}, v{va}, {WSD}, s{s_xo} offen offset:{off} sc1")

    def wo_last_put():
        a(f"s_add_u32 s{s_t0}, s{s_ring}, {L_WO + 4 * 20480}\nv_add_u32 v{T[2]}, s{s_t0}, v{vLn}")
        for c in range(5):
            a(f"ds_write_b128 v{T[2]}, {vr(WR + 4 * c, 4)} offset:{1024 * c}")

    only("wl", upper, wo_last)
    for dst, va, sd in ((XR, vO, sX), (BR, vB, sA)):
        a(f"""
        buffer_load_dwordx4 {vr(dst, 4)}, v{va[0]}, s[{sd}:{sd + 3}], 0 offen
        buffer_load_dwordx4 {vr(dst + 4, 4)}, v{va[0]}, s[{sd}:{sd + 3}], 0 offen offset:64
        buffer_load_dwordx2 {vr(dst + 8, 2)}, v{va[1]}, s[{sd}:{sd + 3}], 0 offen offset:128
        """)
    NW, AH = 7, cfg["ahead"]
    AC2, WG, OF = 40, 60, 200
    assert OF + 4 * (AH + 1) <= 256

    def wo_read(i, c):
        va, off = (vLn, L_WO + 5120 * i) if i < 10 else (T[2], 5120 * (i - 10))
        return f"ds_read_b128 {vr(WG + 20 * (i % NW) + 4 * c, 4)}, v{va} offset:{off + 1024 * c}"

    def o_load(i):
        a(f"s_mov_b32 s{s_t0}, {(C_O + 4 * i) * CH}")
        a(f"buffer_load_dwordx4 {vr(OF + 4 * (i % (AH + 1)), 4)}, v{vH[0]}, {WSD}, s{s_t0} offen sc1")

    def prime(steps):
        for i in steps:
            a("s_waitcnt lgkmcnt(10)\n" + "\n".join(wo_read(i, c) for c in range(5)))

    prime(range(2, 6))
    wait_flags("wm", WS_FB, [fB])
    a(f"""
    s_cmp_lg_u32 s2, 0
    s_cbranch_scc1 {L('we_done')}
    s_lshl_b32 s{s_t0}, s{s_wj}, 6
    v_add_u32 v{T[5]}, s{s_t0}, v{vL}
    v_lshlrev_b32 v{T[5]}, 7, v{T[5]}
    """)
    wait_flags("we", WS_FB, [T[5]])
    a(f"""
    v_bfe_u32 v{T[2]}, v{vL}, 1, 4
    v_mul_u32_u24 v{T[2]}, 5, v{T[2]}
    v_and_b32 v{T[3]}, 1, v{vL}
    s_cmp_eq_u32 s{s_wj}, 2
    s_cselect_b32 s{s_t1}, 8, {3 * CH}
    s_cselect_b32 s{s_t2}, 4, 12
    s_cmp_eq_u32 s{s_wj}, 3
    s_cselect_b32 s{s_t0}, 0, s{s_wj}
    v_add_u32 v{T[2]}, s{s_t0}, v{T[2]}
    v_lshlrev_b32 v{T[2]}, 15, v{T[2]}
    v_mad_u32_u24 v{T[0]}, v{T[3]}, s{s_t1}, v{T[2]}
    s_lshl_b32 s{s_t0}, s{s_head}, 3
    s_add_u32 s{s_t0}, s{s_t0}, s{s_qb}
    s_lshl_b32 s{s_t0}, s{s_t0}, 7
    s_add_u32 s{s_t0}, s{s_t0}, s{s_t2}
    s_add_u32 s{s_ko}, s{s_t0}, {C_O * CH}
    s_mov_b32 s{s_spin}, {SPIN}
    """)
    a("s_waitcnt lgkmcnt(0)")
    if cfg.get("trace"):
        stamp(a, prof, 24)
    a("s_barrier")
    send(1)
    send(2)
    stamp(a, prof, 7)
    a("s_barrier")
    a("s_waitcnt vmcnt(0) lgkmcnt(0)")
    send(3)
    only("wp", upper, wo_last_put)
    a("s_waitcnt lgkmcnt(0)\ns_barrier")
    stamp(a, prof, 8)
    a(f"""
    s_cmp_lg_u32 s2, 0
    s_cbranch_scc1 {L('tag_kept')}
    v_mov_b32 v{T[4]}, 0
    v_mov_b32 v{T[5]}, s{s_tag}
    s_mov_b32 s{s_t0}, {WS_E}
    buffer_store_dword v{T[5]}, v{T[4]}, {WSD}, s{s_t0} offen sc1
    {L('tag_kept')}:
    """)
    for r in range(1, 4):
        a(f"""
        s_xor_b32 s{s_t0}, s{s_wj}, {r}
        s_mul_i32 s{s_t0}, s{s_t0}, 5120
        s_add_u32 s{s_t0}, s{s_t0}, {L_EX[r]}
        v_add_u32 v{T[2]}, s{s_t0}, v{vLn}
        """)
        for c in range(5):
            a(f"ds_read_b128 {vr(ACC + 20 * r + 4 * c, 4)}, v{T[2]} offset:{1024 * c}")
    for src in (XR, BR):
        for i in range(10):
            t = T[2 + 2 * (i & 1)]
            a(f"v_lshlrev_b32 v{t}, 16, v{src + i}\nv_and_b32 v{t + 1}, 0xffff0000, v{src + i}")
            a(f"v_pk_add_f32 {vr(ACC + 2 * i, 2)}, {vr(ACC + 2 * i, 2)}, {vr(t, 2)}")
    for r in range(1, 4):
        a(f"s_waitcnt lgkmcnt({5 * (3 - r)})")
        for i in range(0, 20, 2):
            a(f"v_pk_add_f32 {vr(ACC + i, 2)}, {vr(ACC + i, 2)}, {vr(ACC + 20 * r + i, 2)}")
    a(f"v_add_u32 v{T[2]}, {L_WO + 10 * 5120}, v{vLn}")

    look = f"buffer_load_dword v{T[3]}, v{T[0]}, {WSD}, s{s_ko} offen sc1"
    a(f"{L('first')}:\ns_mov_b32 exec_hi, 0\n{look}\ns_mov_b32 exec_hi, -1")
    prime((0, 1, 6))
    a(f"""
    v_mov_b32 v{T[4]}, 0
    s_mov_b32 exec_hi, 0
    s_branch {L('seen')}
    {L('poll')}:
    {"s_mov_b32 exec_lo, vcc_lo" if cfg["thin"] else ""}
    {f"s_sleep {cfg['osl']}" if cfg["osl"] else ""}
    {look}
    {L('seen')}:
    s_sub_u32 s{s_spin}, s{s_spin}, 1
    s_cmp_lt_i32 s{s_spin}, 0
    s_waitcnt vmcnt(0) lgkmcnt(0)
    v_cmp_eq_u32 vcc, -1, v{T[3]}
    s_cbranch_scc1 {L('got')}
    s_nop 2
    s_cbranch_vccnz {L('poll')}
    {L('got')}:
    s_mov_b64 exec, -1
    """)
    if prof is True:
        stamp(a, prof, 50)
        a(f"s_sub_u32 s96, {SPIN + 200}, s{s_spin}\ns_waitcnt lgkmcnt(0)")
    for i in range(AH):
        o_load(i)
    todo = [(i, c) for i in range(NW, 20) for c in range(5)]
    issued = 0
    for i in range(20):
        lg = f" lgkmcnt({min(15, issued - 5 * (i - NW + 1))})" if i >= NW else ""
        assert i < NW or issued >= 5 * (i - NW + 1)
        a(f"s_waitcnt vmcnt({min(20, i + AH) - i - 1}){lg}")
        o = OF + 4 * (i % (AH + 1))
        for c in range(5):
            d = vr(AC2 + 4 * c, 4)
            a(f"v_mfma_f32_16x16x32_bf16 {d}, {vr(WG + 20 * (i % NW) + 4 * c, 4)}, {vr(o, 4)}, {d if i else 0}")
            if c == 0:
                if i + AH < 20:
                    o_load(i + AH)
            elif todo and (todo[0][0] - NW, todo[0][1]) <= (i, c):
                a(wo_read(*todo.pop(0)))
                issued += 1
            if c == 4:
                a(f"v_max3_u32 v{T[4]}, v{T[4]}, v{o + 1}, v{o + 3}")
    assert not todo
    stamp(a, prof, 9)
    a(f"""
    v_cmp_eq_u32 vcc, -1, v{T[4]}
    s_cmp_lt_i32 s{s_spin}, 0
    s_cbranch_scc1 {L('sum')}
    s_nop 1
    s_cbranch_vccnz {L('again')}
    {L('sum')}:
    s_nop 3
    """)
    for i in range(0, 20, 2):
        a(f"v_pk_add_f32 {vr(ACC + i, 2)}, {vr(ACC + i, 2)}, {vr(AC2 + i, 2)}")
    for i in range(10):
        a(f"v_cvt_pk_bf16_f32 v{XR + i}, v{ACC + 2 * i}, v{ACC + 2 * i + 1}")
    a(f"""
    buffer_store_dwordx4 {vr(XR, 4)}, v{vO[0]}, s[{sB}:{sB + 3}], 0 offen {OSF}
    buffer_store_dwordx4 {vr(XR + 4, 4)}, v{vO[0]}, s[{sB}:{sB + 3}], 0 offen offset:64 {OSF}
    buffer_store_dwordx2 {vr(XR + 8, 2)}, v{vO[1]}, s[{sB}:{sB + 3}], 0 offen offset:128 {OSF}
    """)
    if prof:
        a(f"{L('dump')}:\ns_waitcnt vmcnt(0)")
        stamp(a, prof, 10)
        stamp(a, prof, 11)
        a(f"""
        s_memrealtime s[78:79]
        s_waitcnt lgkmcnt(0)
        s_mov_b32 s{sWS + 2}, {WS_SIZE}
        s_sub_u32 s{sWS}, s{sWS}, {cfg['wsoff'] << 20}
        s_subb_u32 s{sWS + 1}, s{sWS + 1}, 0
        s_lshl_b32 s95, s2, 3
        s_add_u32 s95, s95, s{s_w}
        s_lshl_b32 s95, s95, 8
        s_add_u32 s95, s95, {WS_DBG}
        v_writelane_b32 v0, s76, 62
        v_writelane_b32 v0, s78, 63
        v_lshlrev_b32 v{T[0]}, 2, v{vL}
        buffer_store_dword v0, v{T[0]}, {WSD}, s95 offen
        s_waitcnt vmcnt(0)
        """)
    a(f"s_endpgm\n{L('again')}:")
    prime(range(2, 6))
    a(f"s_branch {L('first')}")
    a.lines = head_lines + a.lines + g0_lines
    a(f"{L('end')}:\ns_endpgm")
    return kernel_header(label) + a.text(), kernel_desc(label, 256, 102 if prof else 92), LDS_SIZE


def build(as_list=False, **kw):
    ref = open(f"cdna_kernels/{NAME}.s.ref").read().split("\n")
    head = [ln for ln in ref if ln.startswith(";") and "launch" not in ln.lower() and "grid=" not in ln]
    label = NAME + "_kernel"
    c, d, lds = gen(label, **kw)
    c = c.replace(label + "_", "L_")
    if (kw.get("cfg") or {}).get("rt"):
        c = c.replace("s_memtime", "s_memrealtime")
    out = "\n".join(head) + "\n"
    out += f"; @launch {'kernel=' + label + ' ' if as_list else ''}grid=(256,1,1) block=(512,1,1) lds={lds}\n"
    out += '.amdgcn_target "amdgcn-amd-amdhsa--gfx950"\n.text\n' + c + '.section .rodata,"a"\n' + d
    return out


if __name__ == "__main__":
    import sys
    opts = sys.argv[2:]
    cfg = {o.split("=")[0]: int(o.split("=")[1], 0) for o in opts if "=" in o}
    open(sys.argv[1], "w").write(build(as_list="list" in opts, prof="span" if "span" in opts else "prof" in opts, force_fallback="slow" in opts, cfg=cfg))
```

```python
import math
import struct
from common import *

f32 = lambda x: struct.unpack("<I", struct.pack("<f", x))[0]
QSCALE = f32(math.log2(math.e) / math.sqrt(20.0))
SHIFT = 92.0

WS_RS = WS_END
WS_CP = WS_RS + 2048 * 16
CP_ROW = 3648 * 8
WS_FA = WS_CP + 4 * CP_ROW
WS_FH = WS_FA + 1024 * 128
WS_FB = WS_FH + 2048 * 128
WS_E = WS_FB + 256 * 128
WS_TOP = WS_E + 128

STG = 49152
LX, LW, LF = 0, 16384, 32768
L_NM = 3 * STG
L_RS, L_CSA, L_CSB, L_BI = L_NM + 512, L_NM + 1024, L_NM + 1536, L_NM + 2048
L_CP = L_NM + 2560
L_RP = L_CP + 1024
LDS_SIZE = 163840
SLOT = 8192 + 4096 + 16 * 656
OFF_R, OFF_V = 8192, 12288
KV = LDS_SIZE - 3 * SLOT
L_Q = LW
L_WO = 0
L_EX = [None, 122880, 143360, 102400]
LDS_OOB = 0x28000
assert L_WO + 18 * 5120 <= KV and LDS_OOB + 3 * SLOT <= 0x40000
KS_ROW = 40 * 1024

sWS, sX, sW, sA, sB = 24, 28, 32, 36, 40
(s_w, s_wj, s_rb, s_cg, s_head, s_qb, s_tt, s_cf, s_cm, s_cr, s_par, s_tag, s_c, s_slot,
 s_t0, s_t1, s_t2, s_t3, s_xo, s_wo, s_ring, s_wstep, s_ko, s_vo, s_ho, s_spin, s_fl) = range(44, 71)
assert s_t2 % 2 == 0
s_o = [71, 72, 73]
s_kc, s_hook = 74, 75
SPIN = 0x20000


def gen(label, prof=False, force_fallback=False, cfg=None):
    cfg = {**dict(ot=1, nf=1, wm=1, full=1, skip=0, wsoff=0, rot=0, late=0, bal=1, touch=1, gat=2, pre=3, mk=12, pa=14, early=0, fprio=2, flag=1, krot=0, lean=1, plf=0, fsf=0, slp=1, cut0=46, cutd=49, fbr=3, hk=3, hpos=0, bpos=0, ahead=6, thin=1, osl=0, osf=0), **(cfg or {})}
    STF = ('sc1', '', 'nt')[cfg.get('plain', 0)]
    PLF = ('sc1', 'sc0 sc1', 'sc1 nt', 'sc0 sc1 nt')[cfg['plf']]
    FSF = ('sc1', 'sc0 sc1')[cfg['fsf']]
    OSF = ('', 'sc1', 'nt')[cfg['osf']]
    a = Asm()
    L = lambda n: f"{label}_{n}"
    WSD = f"s[{sWS}:{sWS + 3}]"
    vL = 1
    T = [2, 3, 4, 5, 6, 7]
    vK, vR_, vV = 8, 9, 10
    AX = [11, 12]
    AW = [13, 14, 15, 16]
    XF = [[32 + 16 * b + 4 * t for t in range(4)] for b in range(2)]
    WF = [[64 + 16 * b + 4 * c for c in range(4)] for b in range(2)]
    GA, GB = 96, 160

    def capture(fn):
        keep, a.lines = a.lines, []
        fn()
        got, a.lines = a.lines, keep
        units, masked = [], False
        for ln in got:
            t = ln.strip()
            if units and (masked or t.startswith("s_cselect") or units[-1].split("\n")[-1].strip().startswith("s_cmp")):
                units[-1] += "\n" + ln
            else:
                units.append(ln)
            if t.startswith("s_") and " exec" in t.split(",")[0]:
                masked = not t.endswith("-1")
        return units

    def gacc(tt, ci, base=GA):
        return base + (tt * 4 + ci) * 4

    SD = 32
    a(f"""
    s_cmp_ge_u32 s2, 256
    s_cbranch_scc1 {L('end')}
    s_load_dwordx16 s[4:19], s[0:1], 0
    s_load_dwordx2 s[22:23], s[0:1], 80
    s_load_dwordx2 s[20:21], s[0:1], 64
    """)
    stamp(a, prof, 0)
    a(f"""
    v_lshrrev_b32 v{T[0]}, 6, v0
    v_and_b32 v{vL}, 63, v0
    s_and_b32 s{s_t3}, s2, 1
    v_readfirstlane_b32 s{s_w}, v{T[0]}
    s_bfe_u32 s{s_rb}, s2, 0x30003
    s_bfe_u32 s{s_t0}, s2, 0x20001
    s_lshr_b32 s{s_t1}, s2, 6
    s_lshl2_add_u32 s{s_cf}, s{s_t0}, s{s_t1}
    {f"s_and_b32 s{s_t2}, s{s_rb}, 3" if cfg["bal"] else f"s_mov_b32 s{s_t2}, 3"}
    s_lshl2_add_u32 s{s_t2}, s{s_t2}, 3
    s_lshl3_add_u32 s{s_rb}, s{s_t3}, s{s_rb}
    s_cmp_gt_u32 s{s_cf}, s{s_t2}
    s_subb_u32 s{s_cg}, s{s_cf}, 0
    s_cmp_eq_u32 s{s_cf}, s{s_t2}
    s_cselect_b32 s{s_cg}, 15, s{s_cg}
    s_mov_b32 s{sA + 3}, 0x00020000
    {'v_mov_b32 v0, -1' if prof else ''}
    s_and_b32 s{s_wj}, s{s_w}, 3
    s_cmp_ge_u32 s{s_w}, 4
    s_cbranch_scc1 {L('p_col')}
    s_mov_b32 s3, 0
    s_lshl4_add_u32 s{s_t0}, s{s_rb}, s{s_cg}
    s_lshl1_add_u32 s{s_t0}, s{s_t0}, s{s_wj}
    s_mul_i32 s{s_t1}, s{s_t0}, {4 * 1280}
    s_cmp_eq_u32 s{s_cg}, 15
    s_cselect_b32 s{s_hook}, 0, 2
    s_cmp_eq_u32 s{s_cg}, 14
    s_cselect_b32 s{s_hook}, 4, s{s_hook}
    v_lshrrev_b32 v{T[0]}, 4, v{vL}
    v_and_b32 v{T[1]}, 7, v{vL}
    v_lshrrev_b32 v{T[2]}, 3, v{vL}
    v_mul_u32_u24 v{T[2]}, 640, v{T[2]}
    s_movk_i32 s{s_t2}, 128
    s_mov_b32 s{sA + 2}, {S * D * 2}
    s_cmp_lt_u32 s{s_wj}, s{s_hook}
    s_waitcnt lgkmcnt(0)
    s_mov_b64 s[{sA}:{sA + 1}], s[4:5]
    s_branch {L('p_ld')}
    {L('p_col')}:
    s_setprio 2
    s_mov_b32 s3, 1
    s_bfe_u32 s{s_t1}, s2, 0x10005
    s_lshl1_add_u32 s{s_t1}, s{s_cg}, s{s_t1}
    s_bfe_u32 s{s_t0}, s2, 0x10003
    s_lshl1_add_u32 s{s_t0}, s{s_t3}, s{s_t0}
    s_mul_i32 s{s_o[0]}, s{s_t0}, {CP_ROW // 512 * 512}
    s_lshl2_add_u32 s{s_t0}, s{s_t0}, s{s_wj}
    s_lshl_b32 s{s_t0}, s{s_t0}, 3
    s_lshl_b32 s{s_t2}, s{s_t3}, 8
    s_add_u32 s{s_t0}, s{s_t0}, s{s_t2}
    v_lshrrev_b32 v{T[0]}, 3, v{vL}
    v_and_b32 v{T[1]}, 7, v{vL}
    s_bitcmp0_b32 s2, 4
    s_cselect_b32 s{s_hook}, 30, 57
    s_movk_i32 s{s_t2}, 3840
    s_cselect_b32 s{s_t2}, s{s_t2}, 3456
    s_cselect_b32 s{s_o[1]}, 0, 30
    s_mul_i32 s{sA + 2}, s{s_t2}, 640
    s_mul_i32 s{s_t0}, s{s_t0}, s{s_t2}
    v_mul_u32_u24 v{T[2]}, s{s_t2}, v{T[0]}
    s_waitcnt lgkmcnt(0)
    s_cselect_b64 s[{sA}:{sA + 1}], s[6:7], s[12:13]
    s_add_u32 s{s_o[1]}, s{s_o[1]}, s{s_t1}
    s_lshl_b32 s{s_t1}, s{s_t1}, 7
    s_add_u32 s{s_t1}, s{s_t1}, s{s_t0}
    s_lshl_b32 s{s_t2}, s{s_t2}, 6
    s_cmp_lt_u32 s{s_o[1]}, s{s_hook}
    s_cselect_b32 s{s_hook}, 3, 7
    """)
    if cfg["late"]:
        a(f"""
        s_cselect_b32 s78, s{sA + 2}, 0
        s_mov_b64 s[76:77], s[{sA}:{sA + 1}]
        s_mov_b32 s79, 0x00020000
        s_mov_b32 s10, s{s_t1}
        s_mov_b32 s11, s{s_t2}
        v_lshl_add_u32 v29, v{T[1]}, 4, v{T[2]}
        s_branch {L('p_id')}
        """.replace("s78", "s90").replace("s[76:77]", "s[88:89]").replace("s79", "s91"))
    a(f"""
    {L('p_ld')}:
    """)
    a(f"""
    v_lshl_add_u32 v{T[2]}, v{T[1]}, 4, v{T[2]}
    s_cbranch_scc0 {L('p_id')}
    """)
    assert CP_ROW % 512 == 0 and WS_FA % 128 == 0
    if cfg["skip"]:
        a(f"v_mov_b64 {vr(SD + 16, 2)}, 0\nv_mov_b64 {vr(SD + 18, 2)}, 0")
    for q in range(5 - cfg["skip"]):
        a(f"buffer_load_dwordx4 {vr(SD + 4 * q, 4)}, v{T[2]}, s[{sA}:{sA + 3}], s{s_t1} offen")
        a(f"s_add_u32 s{s_t1}, s{s_t1}, s{s_t2}")
    a(f"{L('p_id')}:")
    if cfg["wsoff"]:
        a(f"s_add_u32 s22, s22, {cfg['wsoff'] << 20}\ns_addc_u32 s23, s23, 0")
    stamp(a, prof, 45)
    a(f"""
    {f"s_xor_b32 s{s_t2}, s{s_rb}, 2" if cfg["bal"] else ""}
    {f"s_and_b32 s{s_t2}, s{s_t2}, 3" if cfg["bal"] else f"s_mov_b32 s{s_t2}, 3"}
    s_lshl2_add_u32 s{s_t2}, s{s_t2}, {3 if cfg["bal"] else 2}
    s_cmp_eq_u32 s{s_cf}, s{s_t2}
    s_cselect_b32 s{s_t0}, 15, s{s_cg}
    s_cmp_gt_u32 s{s_cf}, s{s_t2}
    s_subb_u32 s{s_cf}, s{s_t0}, 0
    s_cmp_eq_u32 s{s_cg}, 15
    s_cbranch_scc1 {L('near')}
    {L('p_go')}:
    s_cmp_eq_u32 s3, 0
    s_cbranch_scc1 {L('g0')}
    """)
    head_lines, a.lines = a.lines, []

    def attn_ids():
        a(f"""
        s_and_b32 s{s_t0}, s2, 7
        s_lshr_b32 s{s_t1}, s2, 3
        s_and_b32 s{s_t2}, s{s_t1}, 3
        s_lshl_b32 s{s_head}, s{s_t0}, 2
        s_add_u32 s{s_head}, s{s_head}, s{s_t2}
        s_lshr_b32 s{s_qb}, s{s_t1}, 2
        s_and_b32 s{s_par}, s{s_head}, 1
        s_lshr_b32 s{s_t2}, s{s_head}, 1
        s_mul_i32 s{s_t2}, s{s_t2}, 5
        s_add_u32 s{s_cr}, s{s_t2}, 2
        s_mul_i32 s{s_t3}, s{s_par}, 3
        s_add_u32 s{s_cm}, s{s_t2}, s{s_t3}
        s_lshl_b32 s{s_cm}, s{s_cm}, 15
        s_lshl_b32 s{s_cr}, s{s_cr}, 15
        """)

    def load_tag():
        a(f"""
        s_mov_b32 s{s_t0}, {WS_E}
        s_load_dword s{s_tag}, s[22:23], s{s_t0}
        """)

    def frag_addr():
        a(f"""
        v_and_b32 v{T[0]}, 15, v{vL}
        v_lshrrev_b32 v{T[1]}, 4, v{vL}
        v_bfe_u32 v{T[2]}, v{vL}, 1, 3
        v_xor_b32 v{T[2]}, v{T[2]}, v{T[1]}
        v_lshlrev_b32 v{T[2]}, 4, v{T[2]}
        v_lshl_add_u32 v{T[2]}, v{T[0]}, 7, v{T[2]}
        s_and_b32 s{s_t0}, s{s_wj}, 1
        s_lshl_b32 s{s_t0}, s{s_t0}, 13
        v_add_u32 v{AX[0]}, s{s_t0}, v{T[2]}
        v_xor_b32 v{AX[1]}, 64, v{AX[0]}
        v_bfe_u32 v{T[2]}, v{vL}, 2, 2
        v_lshl_add_u32 v{T[3]}, v{T[1]}, 3, v{T[2]}
        v_lshlrev_b32 v{T[3]}, 8, v{T[3]}
        v_bfe_u32 v{T[2]}, v{vL}, 2, 3
        s_lshr_b32 s{s_t0}, s{s_wj}, 1
        s_lshl_b32 s{s_t0}, s{s_t0}, 2
        v_xor_b32 v{T[2]}, s{s_t0}, v{T[2]}
        v_lshl_add_u32 v{T[3]}, v{T[2]}, 5, v{T[3]}
        v_and_b32 v{T[2]}, 3, v{vL}
        v_lshl_add_u32 v{AW[0]}, v{T[2]}, 3, v{T[3]}
        v_xor_b32 v{AW[1]}, 32, v{AW[0]}
        v_xor_b32 v{AW[2]}, 64, v{AW[0]}
        v_xor_b32 v{AW[3]}, 96, v{AW[0]}
        """)

    def zero(base, n):
        for r in range(base, base + n, 2):
            a(f"v_mov_b64 {vr(r, 2)}, 0")

    def wreads(part, s, b):
        return [f"ds_read_b64_tr_b16 {vr(WF[b][c] + 2 * h, 2)}, v{AW[c]} offset:{part + s * 8192 + 1024 * h}"
                for c in range(4) for h in range(2)]

    def xreads(s):
        return [f"ds_read_b128 {vr(XF[s][t], 4)}, v{AX[s]} offset:{LX + 2048 * t}" for t in range(4)]

    def both(part, s, b):
        w, x = wreads(part, s, b), xreads(s)
        return w[:2] + x[:1] + w[2:] + x[1:]

    def gemm_body(name, halves, barrier, count_to):
        a(f".p2align 3\n{L(name)}:")
        for k, (xs, wb, acc, swapped, rd) in enumerate(halves):
            fill = [[] for _ in range(16)]
            if k == len(halves) - 1:
                if barrier:
                    if prof and cfg.get("trace", 0) == 3:
                        fill[0] += capture(lambda: stamp(a, prof, 25))
                    fill[0].append("s_barrier")
                fill[13].append(f"s_add_u32 s{s_c}, s{s_c}, 1")
                fill[14].append(f"s_cmp_lt_u32 s{s_c}, {count_to}")
            if k == len(halves) - 2:
                fill[8].append(f"s_add_u32 s{s_ring}, s{s_ring}, 1")
                fill[9].append(f"s_cmp_eq_u32 s{s_ring}, 3")
                fill[10].append(f"s_cselect_b32 s{s_xo}, {-2 * STG & 0xffffffff}, s{s_wstep}")
                fill[11].append(f"s_cselect_b32 s{s_ring}, 0, s{s_ring}")
            for m, x in enumerate(rd):
                fill[m].append(x)
            if k == len(halves) - 2:
                for m, r in enumerate(AX + AW):
                    fill[12 + m // 2].append(f"v_add_u32 v{r}, s{s_xo}, v{r}")
            fill[15].append("s_waitcnt lgkmcnt(0)")
            for m in range(16):
                tt, ci = m >> 2, m & 3
                wf, xf = vr(WF[wb][ci], 4), vr(XF[xs][tt], 4)
                A, B = (xf, wf) if swapped else (wf, xf)
                a(f"v_mfma_f32_16x16x32_bf16 {vr(gacc(tt, ci, acc), 4)}, {A}, {B}, {vr(gacc(tt, ci, acc), 4)}")
                a("\n".join(fill[m]))
        if 0 < cfg.get("trace", 0) < 3:
            stamp(a, prof, 20)
        a(f"s_cbranch_scc1 {L(name)}")

    def joint(name, sw):
        gemm_body(name, [(0, 0, GA, sw, wreads(LF, 0, 1)), (0, 1, GB, False, both(LW, 1, 0)),
                         (1, 0, GA, sw, wreads(LF, 1, 1)), (1, 1, GB, False, both(LW, 0, 0))], True, 7)

    def single(name, part, acc, sw, barrier, count_to):
        gemm_body(name, [(0, 0, acc, sw, both(part, 1, 1)), (1, 1, acc, sw, both(part, 0, 0))], barrier, count_to)

    def tile_addr(e_reg, e_lane, e_st):
        a(f"""
        v_and_b32 v{T[0]}, 15, v{vL}
        v_lshrrev_b32 v{T[1]}, 4, v{vL}
        s_lshr_b32 s{s_t0}, s{s_wj}, 1
        s_lshl_b32 s{s_t0}, s{s_t0}, 8
        s_add_u32 s{s_t0}, s{s_t0}, {L_NM}
        v_lshl_add_u32 v{e_reg}, v{T[1]}, 4, s{s_t0}
        s_and_b32 s{s_t1}, s{s_wj}, 1
        s_lshl_b32 s{s_t0}, s{s_t1}, 8
        s_add_u32 s{s_t0}, s{s_t0}, {L_NM}
        v_lshl_add_u32 v{e_lane}, v{T[0]}, 2, s{s_t0}
        v_bfrev_b32 v{T[1]}, v{T[1]}
        v_lshrrev_b32 v{T[1]}, 15, v{T[1]}
        v_lshl_add_u32 v{T[1]}, v{T[0]}, 4, v{T[1]}
        s_lshl_b32 s{s_t0}, s{s_rb}, 1
        s_add_u32 s{s_t0}, s{s_t0}, s{s_t1}
        s_lshl_b32 s{s_t0}, s{s_t0}, 10
        v_add_u32 v{e_st}, s{s_t0}, v{T[1]}
        """)

    def put_piece(src, addr, x, y):
        return f"buffer_store_dwordx4 {vr(src, 4)}, v{addr}, {WSD}, s{s_o[x]} offen offset:{256 * y} {STF}"

    def pack_tiles(acc, math, dst, addr=None, between=None):
        pend = []
        for tt in range(4):
            for cp in range(2):
                ob = dst(cp, tt)
                r0 = gacc(tt, 2 * cp, acc)
                math(tt, [(r0 + 2 * p, 8 * cp + 2 * p) for p in range(4)])
                a("\n".join(pend))
                for p in range(4):
                    a(f"v_cvt_pk_bf16_f32 v{ob + p}, v{r0 + 2 * p}, v{r0 + 2 * p + 1}")
                pend = [f"v_permlane16_swap_b32 v{ob}, v{ob + 2}", f"v_permlane16_swap_b32 v{ob + 1}, v{ob + 3}"]
                if addr:
                    pend.append(put_piece(ob, addr, cp, tt))
            if between:
                between(tt)
        a("s_nop 1\n" + "\n".join(pend))

    def key_perm(dst, src, t0, t1):
        a(f"""
        v_bfe_u32 v{t0}, v{src}, 2, 1
        v_bfe_u32 v{t1}, v{src}, 3, 2
        v_lshl_add_u32 v{t0}, v{t0}, 2, v{t1}
        v_and_b32 v{t1}, 3, v{src}
        v_lshl_add_u32 v{dst}, v{t0}, 2, v{t1}
        """)

    def v_feature(dst, row, t0, t1):
        swap23(a, dst, row, t0, t1)
        a(f"""
        s_lshl_b32 s{s_t0}, s{s_par}, 2
        s_mul_i32 s{s_t1}, s{s_par}, -16
        v_cmp_gt_u32 vcc, 16, v{row}
        v_add_u32 v{dst}, s{s_t0}, v{dst}
        v_add_u32 v{t0}, s{s_t1}, v{row}
        v_cndmask_b32 v{dst}, v{t0}, v{dst}, vcc
        """)

    def kv_addr(first_chunk):
        a(f"v_and_b32 v{T[0]}, 31, v{vL}\nv_lshrrev_b32 v{T[1]}, 5, v{vL}")
        key_perm(T[2], T[0], T[3], T[4])
        a(f"""
        v_lshlrev_b32 v{T[3]}, 4, v{T[2]}
        v_lshl_add_u32 v{vK}, v{T[1]}, 15, v{T[3]}
        v_add_u32 v{vK}, s{s_cm}, v{vK}
        v_lshl_add_u32 v{vR_}, v{T[1]}, 9, v{T[3]}
        v_add_u32 v{vR_}, s{s_cr}, v{vR_}
        v_cmp_le_u32 vcc, 20, v{vL}
        s_lshl_b32 s{s_t0}, s{s_wj}, 10
        s_andn2_b32 s{s_kc}, 1, s2
        s_mul_i32 s{s_kc}, s{s_kc}, {cfg['krot']}
        v_cndmask_b32 v{T[2]}, 0, 1, vcc
        v_mul_u32_u24 v{T[3]}, 20, v{T[2]}
        v_sub_u32 v{T[3]}, v{vL}, v{T[3]}
        v_mul_u32_u24 v{vV}, 10240, v{T[2]}
        """)
        v_feature(T[2], T[3], T[4], T[5])
        a(f"""
        s_mul_i32 s{s_t0}, s{s_head}, 320
        v_lshl_add_u32 v{vV}, v{T[2]}, 4, v{vV}
        v_add_u32 v{vV}, s{s_t0}, v{vV}
        """)

    def kv_dma(chunk):
        base = KV + ((chunk + 2) % 3) * SLOT
        a(f"""
        s_and_b32 s{s_t0}, s{s_kc}, 7
        s_lshl_b32 s{s_t0}, s{s_t0}, 2
        s_add_u32 s{s_t0}, s{s_t0}, s{s_wj}
        s_lshl_b32 s{s_ko}, s{s_t0}, 10
        s_add_u32 s{s_ko}, s{s_ko}, {C_K * CH}
        s_mul_i32 s{s_vo}, s{s_t0}, 81920
        s_add_u32 s{s_vo}, s{s_vo}, {WS_V}
        s_add_u32 s{s_kc}, s{s_kc}, 1
        s_lshl_b32 s{s_t0}, s{s_wj}, 11
        s_add_u32 m0, s{s_t0}, {base}
        s_lshl_b32 s{s_t1}, s{s_wj}, 10
        buffer_load_dwordx4 v{vK}, {WSD}, s{s_ko} offen sc1 lds
        s_add_u32 m0, s{s_t0}, {base + 512}
        s_mul_i32 s{s_t0}, s{s_wj}, {4 * 656}
        buffer_load_dwordx4 v{vK}, {WSD}, s{s_ko} offen offset:512 sc1 lds
        s_add_u32 m0, s{s_t1}, {base + OFF_R}
        s_nop 0
        buffer_load_dwordx4 v{vR_}, {WSD}, s{s_ko} offen sc1 lds
        s_mov_b32 exec_hi, 0xff
        """)
        for i in range(4):
            a(f"""
            s_add_u32 m0, s{s_t0}, {base + OFF_V + 656 * i}
            s_add_u32 s{s_t1}, s{s_vo}, {20480 * i}
            buffer_load_dwordx4 v{vV}, {WSD}, s{s_t1} offen sc1 lds
            """)
        a("s_mov_b32 exec_hi, -1")

    def ones_addr(dst, first_slot, nslots):
        a(f"""
        v_min_u32 v{dst}, {16 * nslots - 1}, v{vL}
        v_lshrrev_b32 v{T[3]}, 4, v{dst}
        v_and_b32 v{dst}, 15, v{dst}
        v_mul_u32_u24 v{T[3]}, {SLOT}, v{T[3]}
        v_mul_u32_u24 v{dst}, 656, v{dst}
        v_add_u32 v{dst}, v{dst}, v{T[3]}
        v_add_u32 v{dst}, {KV + first_slot * SLOT + OFF_V + 640}, v{dst}
        """)

    def ones_write(addr, tmp):
        for r in range(4):
            a(f"v_mov_b32 v{tmp + r}, 0x3f803f80")
        a(f"ds_write_b128 v{addr}, {vr(tmp, 4)}")

    def set_flag(base):
        a(f"""
        s_lshl_b32 s{s_t0}, s{s_fl}, 7
        s_add_u32 s{s_t0}, s{s_t0}, {base}
        v_lshlrev_b32 v{T[4]}, 2, v{vL}
        v_mov_b32 v{T[3]}, s{s_tag}
        {"s_mov_b32 exec_hi, 0" if cfg["full"] else "s_mov_b64 exec, 1"}
        buffer_store_dword v{T[3]}, v{T[4]}, {WSD}, s{s_t0} offen {FSF}
        s_mov_b64 exec, -1
        """)

    def flag_of_tile(dst, rh, unit):
        a(f"v_lshl_add_u32 v{dst}, v{unit}, 5, {rh}\nv_lshlrev_b32 v{dst}, 7, v{dst}")

    def head_unit(dst, sel):
        a(f"""
        s_mul_i32 s{s_t0}, s{s_head}, 20
        v_mad_u32_u24 v{dst}, v{sel}, 19, s{s_t0}
        v_lshrrev_b32 v{dst}, 6, v{dst}
        """)

    def wait_flags(name, base, offs, rounds=SPIN):
        a(f"""
        s_mov_b32 s{s_t0}, {base}
        s_mov_b32 s{s_spin}, {rounds}
        s_branch {L(name + '_ld')}
        {L(name)}:
        {"s_mov_b64 exec, vcc" if cfg["thin"] > 1 else ""}
        s_sleep {cfg['slp']}
        {L(name + '_ld')}:
        buffer_load_dword v{T[3]}, v{offs[0]}, {WSD}, s{s_t0} offen {PLF}
        """)
        if len(offs) > 1:
            a(f"buffer_load_dword v{T[4]}, v{offs[1]}, {WSD}, s{s_t0} offen {PLF}")
        a(f"s_sub_u32 s{s_spin}, s{s_spin}, 1\ns_waitcnt vmcnt(0)")
        if len(offs) == 1:
            a(f"v_mov_b32 v{T[4]}, v{T[3]}")
        retry(name)
        if cfg["thin"] > 1:
            a("s_mov_b64 exec, -1")

    def retry(name):
        a(f"""
        v_cmp_ne_u32 vcc, s{s_tag}, v{T[3]}
        v_cmp_ne_u32 s[{s_t2}:{s_t2 + 1}], s{s_tag}, v{T[4]}
        s_cmp_eq_u32 s{s_spin}, 0
        s_cbranch_scc1 {L(name + '_done')}
        s_or_b64 vcc, vcc, s[{s_t2}:{s_t2 + 1}]
        s_cbranch_scc1 {L(name)}
        {L(name + '_done')}:
        """)

    def q_addr(vq, vqr):
        a(f"""
        v_and_b32 v{T[0]}, 31, v{vL}
        v_lshrrev_b32 v{T[1]}, 5, v{vL}
        s_lshl_b32 s{s_t0}, s{s_qb}, 2
        s_add_u32 s{s_t0}, s{s_t0}, s{s_wj}
        s_lshl_b32 s{s_t0}, s{s_t0}, 10
        s_lshl_b32 s{s_t1}, s{s_par}, 3
        s_add_u32 s{s_t2}, s{s_t0}, s{s_t1}
        v_lshlrev_b32 v{T[2]}, 4, v{T[0]}
        v_lshl_add_u32 v{vq}, v{T[1]}, 15, v{T[2]}
        v_add_u32 v{vq}, s{s_t0}, v{vq}
        v_add_u32 v{vqr}, s{s_t2}, v{T[2]}
        """)

    eR, eL, eS, hR, hL, hS = 17, 18, 19, 8, 9, 10
    IDX, AK0, AR0, AV0, VQ, VQR, AQ = 20, 21, 22, 23, 24, 25, 26
    AK, AR, AV = 27, 28, 29
    R = Regs(216)
    MX = [R.get(), R.get()]
    Q1 = [R.get(4), R.get(4)]
    Q2 = [[R.get(2), R.get(2)], [R.get(2), R.get(2)]]
    K1 = [R.get(4), R.get(4)]
    K2 = [R.get(2), R.get(2)]
    V0 = [R.get(4), R.get(4)]
    PH = 32
    SS, CM, TS, OO, V1 = [96, 160], [112, 128], 144, [176, 192], [208, 212]

    AC, SO = 72, 80
    a(f"""
    {L('g0')}:
    v_lshlrev_b32 v{SO}, 4, v{T[0]}
    """)
    srd(a, sWS, 22, WS_TOP)
    load_tag()
    frag_addr()
    zero(GA, 128)
    attn_ids()
    tile_addr(hR, hL, hS)
    a(f"""
    v_mov_b32 v{eR}, v{hR}
    v_mov_b32 v{eS}, v{hS}
    s_cmp_lt_u32 s{s_cg}, 10
    s_cbranch_scc1 {L('ad_j')}
    v_lshrrev_b32 v{T[1]}, 4, v{vL}
    s_lshl_b32 s{s_t0}, s{s_t1}, 8
    s_add_u32 s{s_t0}, s{s_t0}, {L_NM}
    v_lshl_add_u32 v{eR}, v{T[1]}, 4, s{s_t0}
    s_lshr_b32 s{s_t2}, s{s_wj}, 1
    s_lshl_b32 s{s_t0}, s{s_t2}, 8
    s_add_u32 s{s_t0}, s{s_t0}, {L_CSA}
    v_lshl_add_u32 v{eL}, v{T[0]}, 2, s{s_t0}
    s_sub_u32 s{s_t0}, s{s_cg}, 10
    s_lshl_b32 s{s_t0}, s{s_t0}, 1
    s_add_u32 s{s_t0}, s{s_t0}, s{s_t2}
    s_lshl_b32 s{s_t0}, s{s_t0}, 10
    v_mul_u32_u24 v{T[1]}, 10240, v{T[1]}
    v_lshl_add_u32 v{T[1]}, v{T[0]}, 4, v{T[1]}
    v_add_u32 v{eS}, s{s_t0}, v{T[1]}
    {L('ad_j')}:
    """)
    q_addr(VQ, VQR)
    a(f"""
    v_mov_b32 v{IDX}, 0xdddddddd
    v_lshlrev_b32 v{AK0}, 4, v{vL}
    s_mul_i32 s{s_t0}, s{s_wj}, 3072
    v_add_u32 v{AQ}, s{s_t0}, v{AK0}
    v_add_u32 v{AK0}, {KV}, v{AK0}
    v_add_u32 v{AR0}, s{s_t1}, v{AK0}
    v_mad_u32_u24 v{T[2]}, v{T[1]}, 20, v{T[0]}
    v_lshlrev_b32 v{T[2]}, 4, v{T[2]}
    v_add_u32 v{T[2]}, {KV}, v{T[2]}
    v_cmp_gt_u32 vcc, 20, v{T[0]}
    v_mov_b32 v{T[4]}, {LDS_OOB}
    v_and_b32 v{T[3]}, 27, v{T[0]}
    v_cndmask_b32 v{T[2]}, v{T[4]}, v{T[2]}, vcc
    v_cmp_eq_u32 vcc, 24, v{T[3]}
    v_mov_b32 v{T[4]}, {KV + 640}
    s_mov_b32 s{s_slot}, {2 * SLOT}
    v_cndmask_b32 v{AV0}, v{T[2]}, v{T[4]}, vcc
    v_add_u32 v{AK}, s{s_slot}, v{AK0}
    v_add_u32 v{AR}, s{s_slot}, v{AR0}
    v_add_u32 v{AV}, s{s_slot}, v{AV0}
    """)
    a(f"""
    s_add_u32 s{s_t0}, s{s_t0}, s{s_t1}
    v_lshl_add_u32 v30, v{T[0]}, 4, s{s_t0}
    v_mov_b32 v31, v30
    s_mov_b32 exec_hi, 0
    v_mov_b32 v31, {LDS_OOB}
    s_not_b64 exec, exec
    v_mov_b32 v30, {LDS_OOB}
    s_mov_b64 exec, -1
    """)
    a("v_mov_b32 v84, 0x3f803f80")
    a(f"""
    s_lshl_b32 s{s_o[2]}, s{s_cg}, 1
    s_lshr_b32 s{s_t0}, s{s_wj}, 1
    s_add_u32 s{s_o[2]}, s{s_o[2]}, s{s_t0}
    s_lshl1_add_u32 s{s_ho}, s{s_cf}, s{s_t0}
    s_lshl_b32 s{s_fl}, s{s_o[2]}, 4
    s_add_u32 s{s_fl}, s{s_fl}, s{s_rb}
    s_lshl_b32 s{s_fl}, s{s_fl}, 1
    s_and_b32 s{s_t0}, s{s_wj}, 1
    s_add_u32 s{s_fl}, s{s_fl}, s{s_t0}
    s_mov_b32 s{s_c}, 0
    s_mov_b32 s{s_ring}, 0
    s_mov_b32 s{s_wstep}, {STG}
    s_waitcnt lgkmcnt(0)
    s_add_u32 s{s_tag}, s{s_tag}, 1
    s_cmp_ge_u32 s{s_wj}, s{s_hook}
    s_cbranch_scc1 {L('st_m')}
    v_mov_b32 v{AC}, 0
    v_mov_b32 v{AC + 2}, 0
    v_mov_b32 v{AC + 1}, s{s_tag}
    v_mov_b32 v{AC + 3}, s{s_tag}
    """)
    for q in range(5):
        a(f"s_waitcnt vmcnt({max(4 - cfg['skip'] - q, 0)})")
        for r in range(SD + 4 * q, SD + 4 * q + 4):
            a(f"v_dot2c_f32_bf16 v{AC}, v{r}, v84\nv_dot2c_f32_bf16 v{AC + 2}, v{r}, v{r}")
    a("s_nop 1")
    for sh in (8, 4, 2, 1):
        a(f"""
        s_nop 0
        v_add_f32_dpp v{AC}, v{AC}, v{AC} row_ror:{sh} row_mask:0xf bank_mask:0xf
        v_add_f32_dpp v{AC + 2}, v{AC + 2}, v{AC + 2} row_ror:{sh} row_mask:0xf bank_mask:0xf
        """)
    a(f"""
    v_mul_f32 v{AC}, {f32(-1.0 / D)}, v{AC}
    v_mul_f32 v{AC + 2}, {f32(1.0 / D)}, v{AC + 2}
    v_fma_f32 v{AC + 2}, -v{AC}, v{AC}, v{AC + 2}
    v_max_f32 v{AC + 2}, 0, v{AC + 2}
    v_add_f32 v{AC + 2}, {f32(1e-5)}, v{AC + 2}
    v_rsq_f32 v{AC + 2}, v{AC + 2}
    s_lshl_b32 s{s_t0}, s{s_wj}, 6
    s_add_u32 s{s_t0}, s{s_t0}, {L_RP}
    v_add_u32 v{T[2]}, s{s_t0}, v{SO}
    s_mov_b32 exec_lo, 0x00010001
    s_mov_b32 exec_hi, 0x00010001
    ds_write_b128 v{T[2]}, {vr(AC, 4)}
    s_mov_b64 exec, -1
    s_waitcnt lgkmcnt(0)
    {L('st_m')}:
    s_cmp_eq_u32 s{s_cg}, 15
    s_cbranch_scc1 {L('a_none')}
    """)
    stamp(a, prof, 1)
    a("s_barrier")
    stamp(a, prof, 2)
    a("\n".join(both(LW, 0, 0)))
    a(f"""
    s_cmp_ge_u32 s{s_cg}, 10
    s_waitcnt lgkmcnt(0)
    s_cbranch_scc0 {L('aN')}
    s_cmp_ge_u32 s{s_ho}, 27
    s_cbranch_scc1 {L('sV')}
    """)

    def lane_stats(dst, addr):
        for tt in range(4):
            a(f"ds_read2_b32 {vr(dst + 2 * tt, 2)}, v{addr} offset0:{16 * tt} offset1:{128 + 16 * tt}")

    def reg_stats(dst, addr, off):
        for i in range(4):
            a(f"ds_read_b128 {vr(dst + 4 * i, 4)}, v{addr} offset:{off + 64 * i}")

    def centre(cs, nr, tt, prs):
        for r, q in prs:
            a(f"v_pk_fma_f32 {vr(r, 2)}, {vr(cs + q, 2)}, {vr(nr + 2 * tt, 2)}, {vr(r, 2)} op_sel:[0,0,0] op_sel_hi:[1,0,1]")

    E0, E1 = 224, 240
    F0, F1, F2 = 96, 112, 128

    def qk_math(tt, prs):
        centre(E0, E1, tt, prs)
        for r, q in prs:
            a(f"v_pk_mul_f32 {vr(r, 2)}, {vr(r, 2)}, {vr(E1 + 2 * tt, 2)} op_sel:[0,1] op_sel_hi:[1,1]")

    def ffn_math(tt, prs):
        centre(F0, F2, tt, prs)
        for r, q in prs:
            a(f"v_pk_fma_f32 {vr(r, 2)}, {vr(r, 2)}, {vr(F2 + 2 * tt, 2)}, {vr(F1 + q, 2)} op_sel:[0,1,0] op_sel_hi:[1,1,1]")
        for r, q in prs:
            a(f"v_max_f32 v{r}, 0, v{r}\nv_max_f32 v{r + 1}, 0, v{r + 1}")
        for r, q in prs:
            a(f"v_pk_mul_f32 {vr(r, 2)}, {vr(r, 2)}, {vr(r, 2)}")

    CV = T[2]

    def twice(name, sw, fetch):
        single(name, LW, GA, sw, True, 9)
        a(f"s_cmp_eq_u32 s{s_c}, 10\ns_cbranch_scc1 {L(name + 'e')}")
        fetch()
        a(f"s_branch {L(name)}\n{L(name + 'e')}:")

    def v_stats():
        a(f"ds_read2_b32 {vr(CV, 2)}, v{eL} offset0:0 offset1:16\nds_read2_b32 {vr(CV + 2, 2)}, v{eL} offset0:32 offset1:48")
        reg_stats(E0, eR, 0)
        reg_stats(E1, eR, 512)

    joint("jV", True)
    twice("sV", True, v_stats)
    a(f"""
    s_and_b32 s{s_t1}, s{s_wj}, 1
    s_lshl_b32 s{s_t0}, s{s_rb}, 1
    s_add_u32 s{s_t0}, s{s_t0}, s{s_t1}
    s_mul_i32 s{s_o[0]}, s{s_t0}, 81920
    s_add_u32 s{s_o[0]}, s{s_o[0]}, {WS_V}
    s_add_u32 s{s_o[1]}, s{s_o[0]}, 40960
    """)
    a("\n".join(wreads(LF, 0, 0)))
    stamp(a, prof, 3)
    for kt in range(2):
        for ci in range(4):
            ob = 88 + 4 * (ci & 1)
            prs = [(gacc(tt, ci) + i, 4 * tt + i) for tt in (2 * kt, 2 * kt + 1) for i in (0, 2)]
            for r, q in prs:
                a(f"v_pk_fma_f32 {vr(r, 2)}, {vr(E0 + q, 2)}, {vr(CV + (ci & 2), 2)}, {vr(r, 2)} op_sel:[0,{ci & 1},0] op_sel_hi:[1,{ci & 1},1]")
            for r, q in prs:
                a(f"v_pk_mul_f32 {vr(r, 2)}, {vr(r, 2)}, {vr(E1 + q, 2)}")
            for p in range(4):
                a(f"v_cvt_pk_bf16_f32 v{ob + p}, v{prs[p][0]}, v{prs[p][0] + 1}")
            a(put_piece(ob, eS, kt, ci))
    a(f"""
    s_cmp_ge_u32 s{s_ho}, 27
    s_cbranch_scc0 {L('a_done')}
    {L('a_only')}:
    s_barrier
    s_waitcnt vmcnt(0) lgkmcnt(0)
    """)
    set_flag(WS_FA)
    a(f"""
    s_barrier
    {L('a_none')}:
    s_mov_b32 s{s_o[0]}, {WS_TOP}
    s_mov_b32 s{s_o[1]}, {WS_TOP}
    s_branch {L('a_go')}
    """)
    a(f"{L('aN')}:\ns_cmp_ge_u32 s{s_ho}, 27\ns_cbranch_scc1 {L('sN')}")
    joint("jN", False)
    twice("sN", False, lambda: (reg_stats(E0, eR, L_CSA - L_NM), lane_stats(E1, hL)))
    a(f"""
    s_lshl_b32 s{s_o[0]}, s{s_o[2]}, 18
    s_add_u32 s{s_o[1]}, s{s_o[0]}, {4 * CH}
    s_cmp_lt_u32 s{s_cg}, 5
    s_cselect_b32 s{s_t0}, {QSCALE}, 1.0
    """)
    a("\n".join(wreads(LF, 0, 0)))
    stamp(a, prof, 3)
    for tt in range(4):
        a(f"v_mul_f32 v{E1 + 2 * tt + 1}, s{s_t0}, v{E1 + 2 * tt + 1}")
    pack_tiles(GA, qk_math, lambda cp, tt: 248 + 4 * cp, eS)
    a(f"s_cmp_ge_u32 s{s_ho}, 27\ns_cbranch_scc1 {L('a_only')}\n{L('a_done')}:")
    stamp(a, prof, 4)
    a("s_waitcnt lgkmcnt(0)\ns_barrier")
    single("sF", LF, GB, False, False, 0)
    a(f"""
    s_cmp_eq_u32 s{s_c}, 13
    s_cbranch_scc1 {L('eF')}
    s_cmp_eq_u32 s{s_c}, 12
    s_cbranch_scc1 {L('hF')}
    """)
    reg_stats(F0, hR, L_CSB - L_NM)
    reg_stats(F1, hR, L_BI - L_NM)
    lane_stats(F2, hL)

    def hand_over():
        a("s_waitcnt vmcnt(0)")
        set_flag(WS_FA)
        stamp(a, prof, 5)

    if cfg["flag"] == 2:
        hand_over()
    a(f"s_branch {L('sF')}\n{L('hF')}:")
    if cfg["flag"] == 1:
        hand_over()
    a(f"s_barrier\ns_branch {L('sF')}\n{L('eF')}:")
    stamp(a, prof, 12)
    pack_tiles(GB, ffn_math, lambda cp, tt: PH + 16 * cp + 4 * tt)
    a(f"""
    s_add_u32 s{s_o[0]}, s{s_ho}, 20
    s_lshl_b32 s{s_o[0]}, s{s_o[0]}, 18
    s_add_u32 s{s_o[1]}, s{s_o[0]}, {4 * CH}
    {L('a_go')}:
    s_and_b32 s{s_fl}, s{s_fl}, 31
    s_lshl_b32 s{s_t0}, s{s_ho}, 5
    s_add_u32 s{s_fl}, s{s_fl}, s{s_t0}
    s_setprio 1
    s_mov_b32 s{s_c}, 0
    """)
    zero(SS[1], 16 + 32 + 8)
    stamp(a, prof, 13)
    hput = [put_piece(PH + 4 * k, hS, k >> 2, k & 3) for k in range(8)]
    if cfg["hpos"] == 0:
        a("s_barrier")
        stamp(a, prof, 18)
        a("\n".join(hput))
        stamp(a, prof, 19)
        hput = [""] * 8
    a("s_barrier")
    stamp(a, prof, 6)
    for ab in range(2):
        a(f"ds_read_b128 {vr(Q1[ab], 4)}, v{AQ} offset:{L_Q + 1024 * ab}")
        for par in range(2):
            a(f"ds_read_b64 {vr(Q2[ab][par], 2)}, v{30 + par} offset:{L_Q + 2048 + 512 * ab}")

    def rdK1(t):
        return f"ds_read_b128 {vr(K1[t & 1], 4)}, v{AK} offset:{(t & 7) * 1024}"

    def rdK2(p):
        return f"ds_read_b64 {vr(K2[p & 1], 2)}, v{AR} offset:{OFF_R + (p & 3) * 1024}"

    def rdV(j, t):
        return f"ds_read_b128 {vr((V0, V1)[j][t & 1], 4)}, v{AV} offset:{OFF_V + ((t & 7) * 2 + j) * 656}"

    def qk1(dst, ab, t, c):
        return f"v_mfma_f32_32x32x16_bf16 {vr(dst, 16)}, {vr(K1[t & 1], 4)}, {vr(Q1[ab], 4)}, {c}"

    def qk2(dst, ab, t):
        return f"v_mfma_f32_32x32x8_bf16 {vr(dst, 16)}, {vr(K2[(t >> 1) & 1], 2)}, {vr(Q2[ab][t & 1], 2)}, {vr(dst, 16)}"

    def pv(ab, j, t):
        return f"v_smfmac_f32_32x32x32_bf16 {vr(OO[ab], 16)}, {vr((V0, V1)[j][t & 1], 4)}, {vr(SS[ab] + 8 * j, 8)}, v{IDX}"

    def row_max(dst, bufs):
        regs = [b + i for b in bufs for i in range(16)]
        a(f"v_max3_f32 v{dst}, v{regs[0]}, v{regs[1]}, v{regs[2]}")
        rest = regs[3:]
        while len(rest) >= 2:
            a(f"v_max3_f32 v{dst}, v{dst}, v{rest[0]}, v{rest[1]}")
            rest = rest[2:]
        if rest:
            a(f"v_max_f32 v{dst}, v{dst}, v{rest[0]}")

    def set_shift(ab, shift):
        m = MX[ab]
        a(f"""
        v_mov_b32 v{T[2]}, v{m}
        s_nop 1
        v_permlane32_swap_b32 v{m}, v{T[2]}
        v_max_f32 v{m}, v{m}, v{T[2]}
        v_sub_f32 v{CM[ab]}, {f32(-shift) if shift else 0}, v{m}
        v_mov_b32 v{CM[ab] + 1}, v{CM[ab]}
        """)
        for i in range(2, 16, 2):
            a(f"v_mov_b64 {vr(CM[ab] + i, 2)}, {vr(CM[ab], 2)}")

    a("\n".join([rdK1(0), rdK2(0), rdK1(1), rdV(0, 0), rdV(1, 0)]))
    a("s_waitcnt lgkmcnt(0)" if prof is True else "s_waitcnt lgkmcnt(2)")
    est = {(0, 0): SS[0], (0, 1): CM[0], (1, 0): TS, (1, 1): CM[1]}
    for t in range(2):
        a(qk1(est[0, t], 0, t, 0) + "\n" + qk2(est[0, t], 0, t))
    a(qk1(est[1, 0], 1, 0, 0) + "\ns_nop 7\ns_nop 0")
    work = capture(lambda: (row_max(MX[0], [SS[0], CM[0]]), set_shift(0, SHIFT)))
    for k, x in enumerate((qk2(est[1, 0], 1, 0), qk1(est[1, 1], 1, 1, 0), qk2(est[1, 1], 1, 1))):
        a(x + "\n" + "\n".join(work[6 * k:6 * k + 6]))
    a("\n".join(work[18:]) + "\ns_nop 1")
    work = capture(lambda: (row_max(MX[1], [TS, CM[1]]), set_shift(1, SHIFT)))
    a(qk1(SS[0], 0, 0, vr(CM[0], 16)) + "\n" + "\n".join(work[:7]))
    a(qk2(SS[0], 0, 0) + "\n" + "\n".join(work[7:]))
    a("s_waitcnt lgkmcnt(0)")

    PA = cfg["pa"]

    def slot_events(ab, t):
        o = 1 - ab
        tp = t - 1 if ab == 0 else t
        tn = t if ab == 0 else t + 1
        e = [("i", f"v_exp_f32 v{SS[ab] + i}, v{SS[ab] + i}") for i in range(16)]
        ev = []
        if ab == 0 and t % 8 == 7:
            ev += [("i", f"v_add_u32 v{AV}, s{s_slot}, v{AV0}")]
        ev += e[0:2]
        ev += [("use", ("V1", tp)), ("i", pv(o, 1, tp)), ("wait",)]
        if ab == 1 and t % 8 == cfg["hk"]:
            ev += [("l", f"s_cmp_eq_u32 s{s_c}, {1 if cfg['hpos'] else 0}")]
        if ab == 0 and t % 8 == 6:
            ev += [("i", "s_barrier")]
        if ab == 0 and t % 8 == 4:
            ev += [("i", f"s_add_u32 s{s_slot}, s{s_slot}, {SLOT}")]
        if ab == 1 and t % 8 == 4:
            ev += [("i", f"s_cmp_eq_u32 s{s_slot}, {3 * SLOT}")]
        if ab == 1 and t % 8 == 6:
            ev += [("i", f"s_add_u32 s{s_c}, s{s_c}, 1")]
        if ab == 0:
            ev += [("rd", rdV(1, t + 1), ("V1", t + 1))]
        ev += e[2:5]
        if ab == 0 and t % 8 == 6:
            ev += [("i", f"v_add_u32 v{AK}, s{s_slot}, v{AK0}"), ("i", f"v_add_u32 v{AR}, s{s_slot}, v{AR0}")]
        ev += [("use", ("K1", tn)), ("i", qk1(SS[o], o, tn, vr(CM[o], 16))), ("wait",)]
        if ab == 0:
            ev += [("rd", rdK1(t + 2), ("K1", t + 2))]
        else:
            ev += [("rd", rdV(0, t + 1), ("V0", t + 1))]
        ev += e[5:8]
        ev += [("use", ("K2", tn >> 1)), ("i", qk2(SS[o], o, tn))]
        ev += e[8:PA]
        ev += [("use", ("V0", t)), ("i", pv(ab, 0, t)), ("wait",)]
        if ab == 1 and t % 8 == 4:
            ev += [("i", f"s_cselect_b32 s{s_slot}, 0, s{s_slot}")]
        if ab == 1 and t % 8 == cfg["hk"]:
            ev += [("l", f"s_cbranch_scc1 {L('hk')}\n{L('hk_r')}:")]
        if ab == 0:
            ev += [("p", hput[t % 8])]
        if ab == 1 and t % 8 == 7:
            ev += [("i", f"s_cmp_lt_u32 s{s_c}, 8")]
        if ab == 1 and t % 2 == 0:
            ev += [("rd", rdK2(t // 2 + 1), ("K2", t // 2 + 1))]
        ev += e[PA:16]
        return ev

    evs = []
    for t in range(24):
        for ab in range(2):
            evs += [(t, x) for x in slot_events(ab, t)]
    issue_idx = {}
    n = 0
    for t, x in evs:
        if x[0] == "rd":
            issue_idx[x[2]] = n
            n += 1
    tail4 = "\n".join(f"v_exp_f32 v{SS[1] + i}, v{SS[1] + i}" for i in range(PA, 16))

    def trip(kind):
        n, have = 0, -1
        for k, (t, x) in enumerate(evs):
            emit = 8 <= t < 16
            if x[0] == "rd":
                n += 1
                if emit:
                    a(x[1])
            elif x[0] in ("i", kind):
                if emit:
                    a(x[1])
            elif x[0] == "wait" and t >= 4:
                need = -1
                for t2, y in evs[k + 1:]:
                    if y[0] == "wait":
                        break
                    if y[0] == "use":
                        assert issue_idx[y[1]] < n, (t, y)
                        need = max(need, issue_idx[y[1]])
                if need > have and emit:
                    a(f"s_waitcnt lgkmcnt({n - 1 - need})")
                have = max(have, need)
        del a.lines[PA - 16:]
        if 0 < cfg.get("trace", 0) < 4:
            stamp(a, prof, 23)
            a("s_waitcnt lgkmcnt(0)")

    if cfg["hpos"]:
        trip("p")
        a(f".p2align 3\n{L('aloop')}:\n{tail4}")
    else:
        a(f"s_branch {L('aent')}\n.p2align 3\n{L('aloop')}:\n{tail4}\n{L('aent')}:")
    trip("l")
    a(f"s_cbranch_scc1 {L('aloop')}")
    a(tail4)

    def magnitude(ab):
        o, t = OO[ab], T[2 + ab]
        a(f"v_maximum3_f32 v{t}, |v{o}|, |v{o + 1}|, |v{o + 2}|")
        for i in (3, 5, 7, 9):
            a(f"v_maximum3_f32 v{t}, v{t}, |v{o + i}|, |v{o + i + 1}|")
        a(f"v_maximum3_f32 v{t}, v{t}, |v{o + 11}|, |v{o + 11}|")

    def normalise(ab, guard):
        o = OO[ab]
        for p in range(6):
            a(f"v_pk_mul_f32 {vr(o + 2 * p, 2)}, {vr(o + 2 * p, 2)}, {vr(o + 12, 2)} op_sel:[0,1] op_sel_hi:[1,1]")
        for p in range(6):
            a(f"v_cvt_pk_bf16_f32 v{CM[ab] + p}, v{o + 2 * p}, v{o + 2 * p + 1}")
        if guard:
            for p in (1, 3, 5):
                a(f"v_min_u32 v{CM[ab] + p}, -2, v{CM[ab] + p}")

    a(f"v_rcp_f32 v{OO[0] + 13}, v{OO[0] + 12}\ns_waitcnt lgkmcnt(0)")
    a(pv(1, 1, 7))
    stamp(a, prof, 7)
    a(f"""
    s_barrier
    s_mov_b32 s{s_t0}, {f32(2.0 ** 126)}
    s_mov_b32 s{s_t1}, {f32(2.0 ** (-7 - SHIFT))}
    """)
    magnitude(0)
    normalise(0, False)
    a(f"v_rcp_f32 v{OO[1] + 13}, v{OO[1] + 12}")
    magnitude(1)
    a(f"""
    v_maximum3_f32 v{T[4]}, v{T[2]}, v{T[3]}, v{OO[0] + 12}
    v_min_f32 v{T[2]}, v{T[2]}, v{T[3]}
    v_maximum3_f32 v{T[4]}, v{T[4]}, v{OO[1] + 12}, v{OO[1] + 12}
    v_cmp_le_f32 vcc, s{s_t1}, v{T[2]}
    v_cmp_gt_f32 s[{s_t2}:{s_t2 + 1}], s{s_t0}, v{T[4]}
    s_add_u32 s{s_t0}, s{s_cm}, {C_O * CH}
    s_add_u32 s{s_t1}, s{s_cr}, {C_O * CH}
    s_and_b64 vcc, vcc, s[{s_t2}:{s_t2 + 1}]
    s_cmp_eq_u64 vcc, exec
    """)
    a(f"s_branch {L('slow')}" if force_fallback else f"s_cbranch_scc0 {L('slow')}")

    def put_out(ab):
        a(f"""
        buffer_store_dwordx4 {vr(CM[ab], 4)}, v{VQ}, {WSD}, s{s_t0} offen offset:{512 * ab} sc1
        s_mov_b32 exec_hi, 0
        buffer_store_dwordx2 {vr(CM[ab] + 4, 2)}, v{VQR}, {WSD}, s{s_t1} offen offset:{512 * ab} sc1
        s_mov_b32 exec_hi, -1
        """)

    put_out(0)
    normalise(1, False)
    a(f"{L('norm')}:")
    put_out(1)
    stamp(a, prof, 17)
    a("s_barrier")
    stamp(a, prof, 8)
    a(f"s_branch {L('dump')}" if prof else "s_endpgm")

    a(f"{L('hk')}:\ns_waitcnt vmcnt(0)")
    set_flag(WS_FH)
    a(f"s_branch {L('hk_r')}")

    a(f"{L('slow')}:")
    GR, GV = AR, AV
    a(f"v_and_b32 v{T[0]}, 31, v{vL}\nv_lshrrev_b32 v{T[1]}, 5, v{vL}")
    key_perm(T[2], T[0], T[3], T[4])
    a(f"""
    s_lshl_b32 s{s_t0}, s{s_par}, 3
    s_add_u32 s{s_t0}, s{s_t0}, s{s_cr}
    v_lshl_add_u32 v{GR}, v{T[2]}, 4, s{s_t0}
    v_lshl_add_u32 v{vK}, v{T[2]}, 4, s{s_cm}
    v_lshl_add_u32 v{vK}, v{T[1]}, 15, v{vK}
    """)
    v_feature(T[2], T[0], T[3], T[4])
    a(f"""
    s_mul_i32 s{s_t0}, s{s_head}, 320
    v_mul_u32_u24 v{T[4]}, 10240, v{T[1]}
    v_lshl_add_u32 v{T[2]}, v{T[2]}, 4, v{T[4]}
    v_add_u32 v{GV}, s{s_t0}, v{T[2]}
    v_mov_b32 v{MX[0]}, 0xff800000
    v_mov_b32 v{MX[1]}, 0xff800000
    s_mov_b32 s{s_ko}, {C_K * CH}
    {L('slow1')}:
    buffer_load_dwordx4 {vr(K1[0], 4)}, v{vK}, {WSD}, s{s_ko} offen sc1
    buffer_load_dwordx2 {vr(K2[0], 2)}, v{GR}, {WSD}, s{s_ko} offen sc1
    s_add_u32 s{s_ko}, s{s_ko}, 512
    s_waitcnt vmcnt(0)
    """)
    for ab in range(2):
        a(qk1(SS[ab], ab, 0, 0))
        a(qk2(SS[ab], ab, 0))
    a("s_nop 7\ns_nop 3")
    for ab in range(2):
        for i in range(0, 16, 2):
            a(f"v_max3_f32 v{MX[ab]}, v{MX[ab]}, v{SS[ab] + i}, v{SS[ab] + i + 1}")
    a(f"s_cmp_lt_u32 s{s_ko}, {(C_K + 1) * CH}\ns_cbranch_scc1 {L('slow1')}")
    for ab in range(2):
        set_shift(ab, 0)
    zero(OO[0], 32)
    for r in range(4):
        a(f"v_mov_b32 v{V0[0] + r}, 0x3f803f80\nv_mov_b32 v{V1[0] + r}, 0x3f803f80")
    a(f"""
    s_mov_b32 s{s_ko}, {C_K * CH}
    s_mov_b32 s{s_vo}, {WS_V}
    {L('slow2')}:
    buffer_load_dwordx4 {vr(K1[0], 4)}, v{vK}, {WSD}, s{s_ko} offen sc1
    buffer_load_dwordx2 {vr(K2[0], 2)}, v{GR}, {WSD}, s{s_ko} offen sc1
    s_mov_b32 exec_lo, 0xfffff
    s_mov_b32 exec_hi, 0xfffff
    buffer_load_dwordx4 {vr(V0[0], 4)}, v{GV}, {WSD}, s{s_vo} offen sc1
    s_add_u32 s{s_vo}, s{s_vo}, 20480
    buffer_load_dwordx4 {vr(V1[0], 4)}, v{GV}, {WSD}, s{s_vo} offen sc1
    s_mov_b64 exec, -1
    s_add_u32 s{s_vo}, s{s_vo}, 20480
    s_add_u32 s{s_ko}, s{s_ko}, 512
    s_waitcnt vmcnt(0)
    """)
    for ab in range(2):
        a(qk1(SS[ab], ab, 0, vr(CM[ab], 16)))
        a(qk2(SS[ab], ab, 0))
    a("s_nop 7\ns_nop 3")
    for ab in range(2):
        for i in range(16):
            a(f"v_exp_f32 v{SS[ab] + i}, v{SS[ab] + i}")
    a("s_nop 1")
    for ab in range(2):
        a(pv(ab, 0, 0))
        a(pv(ab, 1, 0))
    a(f"""
    s_cmp_lt_u32 s{s_ko}, {(C_K + 1) * CH}
    s_cbranch_scc1 {L('slow2')}
    s_nop 7
    s_nop 3
    v_rcp_f32 v{OO[0] + 13}, v{OO[0] + 12}
    v_rcp_f32 v{OO[1] + 13}, v{OO[1] + 12}
    s_add_u32 s{s_t0}, s{s_cm}, {C_O * CH}
    s_add_u32 s{s_t1}, s{s_cr}, {C_O * CH}
    """)
    normalise(0, True)
    normalise(1, True)
    put_out(0)
    a(f"s_branch {L('norm')}")

    a(f"""
    {L('near')}:
    s_lshl_b32 s{s_t0}, s{s_rb}, 3
    s_add_u32 s{s_t0}, s{s_t0}, s{s_w}
    """)
    if cfg["nf"]:
        a(f"""
        s_mul_i32 s{s_t1}, s{s_t0}, {26 * 128}
        s_add_u32 s{s_t1}, s{s_t1}, {WS_FA}
        v_lshlrev_b32 v{T[2]}, 7, v{vL}
        s_mov_b64 s[{sA}:{sA + 1}], s[22:23]
        s_mov_b32 s{sA + 2}, {WS_TOP}
        s_mov_b64 exec, 0x3ffffff
        buffer_load_dword v95, v{T[2]}, s[{sA}:{sA + 3}], s{s_t1} offen {("", "", "nt")[cfg["nf"]]}
        s_mov_b64 exec, -1
        """)
    a(f"""
    s_mul_i32 s{s_t1}, s{s_t0}, {135 * 128}
    s_mul_i32 s{s_t0}, s{s_t0}, {50 * 128}
    """)
    if cfg["skip"]:
        a(f"""
        s_lshl_b32 s{s_t2}, s{s_rb}, 3
        s_add_u32 s{s_t2}, s{s_t2}, s{s_w}
        s_mul_i32 s{s_wo}, s{s_t2}, {16 * 1280}
        s_add_u32 s{s_wo}, s{s_wo}, 512
        v_mul_u32_u24 v{T[2]}, 640, v{vL}
        s_mov_b64 s[{sA}:{sA + 1}], s[4:5]
        s_mov_b32 s{sA + 2}, {S * D * 2}
        s_mov_b32 exec_hi, 0
        buffer_load_dword v92, v{T[2]}, s[{sA}:{sA + 3}], s{s_wo} offen
        v_lshlrev_b32 v{T[2]}, 7, v{vL}
        s_lshr_b32 s{s_wo}, s{s_t2}, 6
        s_lshl_b32 s{s_wo}, s{s_wo}, 8
        s_add_u32 s{s_t2}, s{s_t2}, s{s_wo}
        s_add_u32 s{s_t2}, s{s_t2}, 256
        s_mul_i32 s{s_wo}, s{s_t2}, 3840
        s_mov_b64 s[{sA}:{sA + 1}], s[6:7]
        s_mov_b32 s{sA + 2}, {D * 3 * D * 2}
        s_mov_b32 exec_lo, 0x3fffffff
        buffer_load_dword v93, v{T[2]}, s[{sA}:{sA + 3}], s{s_wo} offen
        s_mul_i32 s{s_wo}, s{s_t2}, 3456
        s_mov_b64 s[{sA}:{sA + 1}], s[12:13]
        s_mov_b32 s{sA + 2}, {D * F * 2}
        s_mov_b32 exec_lo, 0x7ffffff
        buffer_load_dword v94, v{T[2]}, s[{sA}:{sA + 3}], s{s_wo} offen
        s_mov_b64 exec, -1
        s_barrier
        """)
    a(f"""
    v_lshlrev_b32 v{T[2]}, 7, v{vL}
    s_mov_b64 s[{sA}:{sA + 1}], s[16:17]
    s_mov_b32 s{sA + 2}, {F * D * 2}
    s_mov_b32 exec_hi, 0x1fff
    """)
    for i in range(3):
        a(f"buffer_load_dword v{88 + i}, v{T[2]}, s[{sA}:{sA + 3}], s{s_t1} offen\ns_add_u32 s{s_t1}, s{s_t1}, {45 * 128}")
    a(f"""
    s_mov_b64 s[{sA}:{sA + 1}], s[8:9]
    s_mov_b32 s{sA + 2}, {D * D * 2}
    s_mov_b32 exec_hi, 0x3ffff
    buffer_load_dword v91, v{T[2]}, s[{sA}:{sA + 3}], s{s_t0} offen
    s_mov_b32 exec_hi, -1
    s_branch {L('p_go')}
    """)

    g0_lines, a.lines = a.lines, []
    MK, G = 240, 96
    VX, VW, VG = [11, 12, 13, 14], [15, 16, 17, 18], [19, 20, 21, 22]
    gR, gL, gA, gB = 24, 25, 26, 27
    fC, mQ, mQR, mQD, fB, FK, FO, one, pH, pO = range(246, 256)

    def w_addr(VF, stride, grp):
        a(f"""
        v_lshrrev_b32 v{T[0]}, 4, v{vL}
        v_lshlrev_b32 v{T[1]}, 1, v{T[0]}
        v_xor_b32 v{T[1]}, v{T[1]}, v{vL}
        v_and_b32 v{T[1]}, 15, v{T[1]}
        s_lshl_b32 s{s_t1}, s{grp}, 8
        s_mul_i32 s{s_t0}, s{s_wj}, {16 * stride}
        s_add_u32 s{s_t1}, s{s_t1}, s{s_t0}
        v_mul_u32_u24 v{T[0]}, {stride}, v{T[0]}
        v_add_u32 v{T[0]}, s{s_t1}, v{T[0]}
        v_lshl_add_u32 v{VF[0]}, v{T[1]}, 4, v{T[0]}
        v_xor_b32 v{T[1]}, 8, v{T[1]}
        v_lshl_add_u32 v{VF[2]}, v{T[1]}, 4, v{T[0]}
        v_add_u32 v{VF[1]}, {4 * stride - 1024}, v{VF[0]}
        v_add_u32 v{VF[3]}, {3 * (4 * stride - 1024)}, v{VF[2]}
        v_add_u32 v{VF[2]}, {2 * (4 * stride - 1024)}, v{VF[2]}
        """)

    TF, TA, TV = 32, [52, 53], [54, 55, 56, 57, 58]
    has_block = f"s_cmp_lt_u32 s{s_tt}, 74"

    def block_addr():
        a(f"""
        s_and_b32 s{s_tt}, s2, 31
        s_lshl_b32 s{s_t0}, s{s_wj}, 5
        s_add_u32 s{s_tt}, s{s_tt}, s{s_t0}
        s_mul_i32 s{s_c}, s{s_wj}, 5120
        s_add_u32 s{s_c}, s{s_c}, {STG + LW}
        """)
        for i in range(5):
            a(f"""
            v_add_u32 v{T[2]}, {64 * i}, v{vL}
            v_mul_u32_u24 v{T[3]}, 6554, v{T[2]}
            v_lshrrev_b32 v{T[3]}, 16, v{T[3]}
            v_mul_u32_u24 v{T[3]}, {1280 - 160}, v{T[3]}
            v_lshl_add_u32 v{TV[i]}, v{T[2]}, 4, v{T[3]}
            """)
        a(f"""
        v_lshrrev_b32 v{T[2]}, 4, v{vL}
        v_bfe_u32 v{T[3]}, v{vL}, 2, 2
        v_lshl_add_u32 v{T[2]}, v{T[2]}, 3, v{T[3]}
        v_mul_u32_u24 v{T[2]}, 160, v{T[2]}
        v_add_u32 v{T[2]}, s{s_c}, v{T[2]}
        v_and_b32 v{T[3]}, 3, v{vL}
        v_lshl_add_u32 v{TA[0]}, v{T[3]}, 4, v{T[2]}
        v_lshl_add_u32 v{TA[1]}, v{T[3]}, 3, v{T[2]}
        """)

    def block_fetch():
        a(f"""
        s_cmp_lt_u32 s{s_tt}, 54
        s_cselect_b64 s[{sA}:{sA + 1}], s[16:17], s[8:9]
        s_mov_b32 s{sA + 2}, {F * D * 2}
        s_cselect_b32 s{sA + 2}, s{sA + 2}, {D * D * 2}
        s_cselect_b32 s{s_t1}, 0, 54
        s_sub_u32 s{s_t0}, s{s_tt}, s{s_t1}
        s_mul_i32 s{s_t0}, s{s_t0}, {32 * 1280}
        s_mul_i32 s{s_t1}, s{s_qb}, 160
        s_add_u32 s{s_t0}, s{s_t0}, s{s_t1}
        """)
        for i in range(5):
            a(f"s_add_u32 m0, s{s_c}, {i * 1024}\ns_nop 0")
            a(f"buffer_load_dwordx4 v{TV[i]}, s[{sA}:{sA + 3}], s{s_t0} offen lds")

    def block_turn():
        a("s_waitcnt vmcnt(0)")
        for c in range(5):
            va, off = (TA[0], 64 * (c >> 1) + 8 * (c & 1)) if c < 4 else (TA[1], 128)
            for h in range(2):
                a(f"ds_read_b64_tr_b16 {vr(TF + 4 * c + 2 * h, 2)}, v{va} offset:{off + 640 * h}")
        a("s_waitcnt lgkmcnt(0)")

    def block_put():
        a(f"""
        s_mul_i32 s{s_t0}, s{s_tt}, {KS_ROW}
        s_mul_i32 s{s_t1}, s{s_qb}, 5120
        s_add_u32 s{s_t0}, s{s_t0}, s{s_t1}
        s_add_u32 s{s_t0}, s{s_t0}, {WS_WT}
        s_add_u32 s{s_t1}, s{s_t0}, 4096
        v_lshlrev_b32 v{T[2]}, 4, v{vL}
        """)
        for c in range(5):
            a(f"buffer_store_dwordx4 {vr(TF + 4 * c, 4)}, v{T[2]}, {WSD}, s{(s_t0, s_t1)[c >> 2]} offen offset:{1024 * (c & 3)} sc1")

    def later_addr():
        attn_ids()
        block_addr()
        kv_addr(0)
        ones_addr(one, 0, 3)
        a(f"v_and_b32 v{T[0]}, 1, v{vL}")
        head_unit(T[1], T[0])
        a(f"""
        v_lshrrev_b32 v{T[0]}, 1, v{vL}
        v_min_u32 v{T[0]}, 2, v{T[0]}
        v_mad_u32_u24 v{T[1]}, v{T[0]}, 10, v{T[1]}
        v_mov_b32 v{T[2]}, s{s_kc}
        s_mov_b64 exec, 3
        v_mov_b32 v{T[2]}, s{s_qb}
        s_mov_b64 exec, -1
        v_lshl_add_u32 v{T[2]}, v{T[2]}, 2, s{s_wj}
        """)
        flag_of_tile(FO, f"v{T[2]}", T[1])
        a(f"v_and_b32 v{T[0]}, 1, v{vL}")
        head_unit(T[1], T[0])
        a(f"""
        v_bfe_u32 v{T[0]}, v{vL}, 1, 1
        v_mad_u32_u24 v{T[1]}, v{T[0]}, 10, v{T[1]}
        v_add_u32 v{T[1]}, 10, v{T[1]}
        v_and_b32 v{T[0]}, 28, v{vL}
        v_add_u32 v{T[0]}, s{s_wj}, v{T[0]}
        """)
        flag_of_tile(FK, f"v{T[0]}", T[1])
        q_addr(mQ, mQR)
        a(f"""
        v_lshl_add_u32 v{mQD}, v{vL}, 4, s{s_t0}
        s_lshl_b32 s{s_t0}, s{s_head}, 2
        s_add_u32 s{s_t0}, s{s_t0}, s{s_wj}
        v_and_b32 v{T[2]}, 15, v{vL}
        v_lshl_add_u32 v{T[2]}, s{s_t0}, 4, v{T[2]}
        v_lshrrev_b32 v{T[3]}, 4, v{vL}
        v_lshlrev_b32 v{pH}, 15, v{T[3]}
        v_lshl_add_u32 v{pH}, v{T[2]}, 4, v{pH}
        v_mul_u32_u24 v{pO}, 1280, v{T[2]}
        """)
        a(f"""
        v_min_u32 v{T[3]}, 26, v{T[0]}
        v_lshl_add_u32 v{fC}, v{T[3]}, 5, s{s_head}
        v_lshl_add_u32 v{T[3]}, v{T[0]}, 2, s{s_wj}
        v_min_u32 v{T[3]}, 53, v{T[3]}
        v_subrev_u32 v{T[4]}, 16, v{T[0]}
        v_min_u32 v{T[4]}, 4, v{T[4]}
        v_lshl_add_u32 v{T[4]}, v{T[4]}, 2, s{s_wj}
        s_lshl_b32 s{s_t0}, s{s_qb}, 7
        s_add_u32 s{s_t0}, s{s_t0}, 1024
        s_add_u32 s{s_fl}, s{s_t0}, s{s_tt}
        s_add_u32 s{s_t1}, s{s_t0}, 54
        s_mov_b32 exec_lo, 0
        v_add_u32 v{fC}, s{s_t0}, v{T[3]}
        s_mov_b32 exec_hi, 0xffff0000
        v_add_u32 v{fC}, s{s_t1}, v{T[4]}
        s_mov_b64 exec, -1
        v_lshlrev_b32 v{fC}, 7, v{fC}
        s_lshr_b32 s{s_t0}, s{s_head}, 2
        v_lshl_add_u32 v{fB}, s{s_t0}, 5, v{T[0]}
        s_andn2_b32 s{s_t0}, s2, 8
        s_mov_b32 exec_lo, 0
        v_mov_b32 v{fB}, s{s_t0}
        s_mov_b32 exec_lo, -1
        v_lshlrev_b32 v{fB}, 7, v{fB}
        """)

    def boundary(wait=None):
        if wait is not None:
            a(f"s_waitcnt vmcnt({wait})")
        if 1 < cfg.get("trace", 0) < 4:
            stamp(a, prof, 21)
        a("s_barrier")

    def ask_tag():
        srd(a, sWS, 22, WS_TOP)
        load_tag()

    def take_tag():
        a(f"s_waitcnt lgkmcnt(0)\ns_add_u32 s{s_tag}, s{s_tag}, 1")

    def split(ops, n):
        k = -(-len(ops) // n)
        return [ops[i * k:(i + 1) * k] for i in range(n)]

    def feed(c, which="xwf", mix=()):
        mix = list(mix)
        per = -(-len(mix) // max(4 * len(which), 1))
        for key, part, va, sd, step in (("x", LX, VX, sX, 128), ("w", LW, VW, sW, 64 * 3840), ("f", LF, VG, sB, 64 * 3456)):
            if key in which:
                half = {"x": s_xo, "w": s_wstep, "f": s_ho}[key]
                a(f"s_add_u32 m0, s{s_ring}, {(c % 3) * STG + part}")
                if cfg["rot"]:
                    a(f"s_mov_b32 s{s_wo}, s{half}\ns_add_u32 s{half}, s{half}, {step}\n"
                      f"s_cmp_eq_u32 s{half}, {10 * step}\ns_cselect_b32 s{half}, 0, s{half}")
                else:
                    a(f"s_add_u32 s{s_wo}, s{half}, {c * step}" if c < 5 else f"s_sub_u32 s{s_wo}, {c * step}, s{half}")
                for i in range(4):
                    a(f"buffer_load_dwordx4 v{va[i]}, s[{sd}:{sd + 3}], s{s_wo} offen offset:{1024 * i} lds")
                    a("\n".join(mix[:per]))
                    mix = mix[per:]

    def only(name, cond, fn):
        a(f"{cond}\ns_cbranch_scc0 {L(name)}")
        fn()
        a(f"{L(name)}:")

    feeding = f"s_cmp_lt_u32 s{s_cg}, 15"
    a(f"""
    s_lshl_b32 s{s_ring}, s{s_wj}, 12
    s_mul_i32 s{s_t3}, s{s_t3}, 5
    """)
    if cfg["rot"]:
        a(f"""
        s_mul_i32 s{s_t3}, s{s_cg}, {cfg['rot'] >> 4}
        s_mul_i32 s{s_t0}, s{s_rb}, {cfg['rot'] & 15}
        s_add_u32 s{s_t3}, s{s_t3}, s{s_t0}
        s_mul_i32 s{s_t0}, s{s_t3}, 6554
        s_lshr_b32 s{s_t0}, s{s_t0}, 16
        s_mul_i32 s{s_t0}, s{s_t0}, 10
        s_sub_u32 s{s_t3}, s{s_t3}, s{s_t0}
        """)
    a(f"""
    s_mul_i32 s{s_xo}, s{s_t3}, 128
    s_mul_i32 s{s_wstep}, s{s_t3}, {64 * 3840}
    s_mul_i32 s{s_ho}, s{s_t3}, {64 * 3456}
    v_lshrrev_b32 v{T[2]}, 4, v{vL}
    v_xor_b32 v{T[2]}, v{T[2]}, v{T[1]}
    s_lshl_b32 s{s_t1}, s{s_rb}, 2
    s_add_u32 s{s_t1}, s{s_t1}, s{s_wj}
    s_mul_i32 s{s_t1}, s{s_t1}, {32 * 1280}
    v_mul_u32_u24 v{T[3]}, 1280, v{T[0]}
    v_add_u32 v{T[3]}, s{s_t1}, v{T[3]}
    v_lshl_add_u32 v{VX[0]}, v{T[2]}, 4, v{T[3]}
    v_xor_b32 v{T[2]}, 4, v{T[2]}
    v_lshl_add_u32 v{VX[1]}, v{T[2]}, 4, v{T[3]}
    v_add_u32 v{VX[2]}, {2 * (10240 - 1024)}, v{VX[0]}
    v_add_u32 v{VX[3]}, {3 * (10240 - 1024)}, v{VX[1]}
    v_add_u32 v{VX[1]}, {10240 - 1024}, v{VX[1]}
    v_and_b32 v{SO}, 48, v{vL}
    v_lshl_add_u32 v{SO}, v{T[1]}, 6, v{SO}
    """)
    srd(a, sX, 4, S * D * 2)

    def touch():
        a(f"""
        s_getpc_b64 s[{sA}:{sA + 1}]
        {L('pc')}:
        s_sub_u32 s{sA}, s{sA}, {L('pc')}-{label}
        s_subb_u32 s{sA + 1}, s{sA + 1}, 0
        s_mov_b32 s{sA + 2}, {L('end')}-{label}
        s_lshr_b32 s{s_t0}, s2, 3
        s_mul_i32 s{s_t0}, s{s_t0}, {9 * 128}
        v_lshlrev_b32 v{T[2]}, 7, v{vL}
        s_mov_b64 exec, 0x1ff
        buffer_load_dword v226, v{T[2]}, s[{sA}:{sA + 3}], s{s_t0} offen
        s_mov_b64 exec, -1
        """)

    if cfg["touch"] & 1:
        only("tc", f"s_cmp_eq_u32 s{s_wj}, 0", touch)
    srd(a, sA, 14, F * 2)
    a(f"""
    s_lshl_b32 s{s_t2}, s{s_cf}, 8
    v_lshlrev_b32 v{T[2]}, 2, v{vL}
    buffer_load_dword v28, v{T[2]}, s[{sA}:{sA + 3}], s{s_t2} offen
    """)
    ask_tag()
    w_addr(VW, 3840, s_cg)
    w_addr(VG, 3456, s_cf)
    srd(a, sW, 6, D * 3 * D * 2)
    srd(a, sB, 12, D * F * 2)
    a(f"""
    s_cmp_lt_u32 s{s_cf}, 14
    s_cselect_b32 s{sB + 2}, s{sB + 2}, 0
    s_lshl_b32 s{s_o[1]}, s{s_o[1]}, 9
    s_add_u32 s{s_o[0]}, s{s_o[0]}, s{s_o[1]}
    s_add_u32 s{s_o[0]}, s{s_o[0]}, {WS_CP}
    s_and_b32 s{s_t1}, s{s_wj}, 1
    v_lshl_add_u32 v{gL}, s{s_t1}, 6, v{vL}
    s_lshl_b32 s{s_t3}, s{s_rb}, 11
    v_lshl_add_u32 v{gR}, v{gL}, 4, s{s_t3}
    s_add_u32 s{s_t2}, s{s_cf}, 15
    s_cmp_eq_u32 s{s_t1}, 0
    s_cselect_b32 s{s_t1}, s{s_cg}, s{s_t2}
    s_lshl_b32 s{s_t1}, s{s_t1}, 6
    v_add_u32 v{gA}, s{s_t1}, v{vL}
    v_min_u32 v{gA}, 1823, v{gA}
    v_lshlrev_b32 v{gA}, 4, v{gA}
    s_mov_b32 s{s_spin}, {SPIN}
    v_lshrrev_b32 v23, 1, v{SO}
    v_add_u32 v23, {L_CP}, v23
    """)
    if cfg["early"]:
        later_addr()
    stamp(a, prof, 44)

    def sums():
        for r in range(20):
            c = AC + 2 * (r & 3)
            if r < 4:
                a(f"v_lshlrev_b32 v{c}, 16, v{SD + r}\nv_and_b32 v{c + 1}, 0xffff0000, v{SD + r}")
            else:
                lo, hi = T[2 + 2 * (r & 1)], T[3 + 2 * (r & 1)]
                a(f"v_lshlrev_b32 v{lo}, 16, v{SD + r}\nv_and_b32 v{hi}, 0xffff0000, v{SD + r}\n"
                  f"v_add_f32 v{c}, v{c}, v{lo}\nv_add_f32 v{c + 1}, v{c + 1}, v{hi}")
        a(f"s_lshl_b32 s{s_t0}, s{s_wj}, 8\nv_add_u32 v{T[2]}, s{s_t0}, v23")
        for i in range(4):
            a(f"v_permlane32_swap_b32 v{AC + i}, v{AC + 4 + i}")
        for i in range(4):
            a(f"v_add_f32 v{AC + i}, v{AC + i}, v{AC + 4 + i}")
        a("s_nop 1")
        for i in range(2):
            a(f"v_permlane16_swap_b32 v{AC + i}, v{AC + 2 + i}")
        a(f"v_add_f32 v{AC}, v{AC}, v{AC + 2}\nv_add_f32 v{AC + 1}, v{AC + 1}, v{AC + 3}\ns_nop 1")
        for r in (AC, AC + 1):
            a(f"v_add_f32_dpp v{r}, v{r}, v{r} row_ror:8 row_mask:0xf bank_mask:0xf")
        a(f"ds_write_b64 v{T[2]}, {vr(AC, 2)}")

    def publish():
        for i in range(4):
            a(f"ds_read_b64 {vr(AC + 2 * i, 2)}, v23 offset:{256 * i}")
        a(f"""
        s_waitcnt lgkmcnt(0)
        v_add_f32 v{AC}, v{AC}, v{AC + 2}
        v_add_f32 v{AC + 2}, v{AC + 1}, v{AC + 3}
        v_add_f32 v{AC + 4}, v{AC + 4}, v{AC + 6}
        v_add_f32 v{AC + 5}, v{AC + 5}, v{AC + 7}
        v_add_f32 v{AC}, v{AC}, v{AC + 4}
        v_add_f32 v{AC + 2}, v{AC + 2}, v{AC + 5}
        v_mov_b32 v{AC + 1}, s{s_tag}
        v_mov_b32 v{AC + 3}, s{s_tag}
        s_mov_b32 exec_lo, 0x00ff00ff
        s_mov_b32 exec_hi, 0x00ff00ff
        buffer_store_dwordx4 {vr(AC, 4)}, v{SO}, {WSD}, s{s_o[0]} offen sc1
        s_mov_b64 exec, -1
        """)

    def publish_rows():
        a(f"""
        s_lshl4_add_u32 s{s_t0}, s{s_rb}, s{s_cg}
        s_lshl_b32 s{s_t0}, s{s_t0}, 7
        s_add_u32 s{s_t0}, s{s_t0}, {WS_RS}
        v_lshlrev_b32 v{T[2]}, 4, v{vL}
        v_add_u32 v{T[3]}, {L_RP}, v{T[2]}
        s_cmp_eq_u32 s{s_cg}, 14
        s_movk_i32 s{s_t1}, 0xff
        s_cselect_b32 exec_lo, 0xffff, s{s_t1}
        s_mov_b32 exec_hi, 0
        ds_read_b128 {vr(AC, 4)}, v{T[3]}
        s_waitcnt lgkmcnt(0)
        buffer_store_dwordx4 {vr(AC, 4)}, v{T[2]}, {WSD}, s{s_t0} offen sc1
        s_mov_b64 exec, -1
        """)

    def gather_loads():
        a(f"s_mov_b32 s{s_slot}, {WS_RS}\nbuffer_load_dwordx4 {vr(G + 16, 4)}, v{gR}, {WSD}, s{s_slot} offen sc1")
        a(f"s_mov_b32 s{s_slot}, {WS_CP}")
        for p in range(4):
            a(f"buffer_load_dwordx4 {vr(G + 4 * p, 4)}, v{gA}, {WSD}, s{s_slot} offen sc1")
            a(f"s_add_u32 s{s_slot}, s{s_slot}, {CP_ROW}")

    def gather_put():
        a(f"s_branch {L('ga_chk')}\n{L('ga')}:")
        gather_loads()
        a(f"s_sub_u32 s{s_spin}, s{s_spin}, 1\ns_waitcnt vmcnt(0)\n{L('ga_chk')}:")
        a(f"v_min_u32 v{T[3]}, v{G + 1}, v{G + 3}\nv_max_u32 v{T[4]}, v{G + 1}, v{G + 3}")
        for p in range(1, 5):
            b = G + 4 * p
            a(f"v_min3_u32 v{T[3]}, v{T[3]}, v{b + 1}, v{b + 3}\nv_max3_u32 v{T[4]}, v{T[4]}, v{b + 1}, v{b + 3}")
        retry("ga")
        a(f"v_add_f32 v{G + 1}, v{G + 2}, v{G + 6}\nv_add_f32 v{G}, v{G}, v{G + 4}")
        for p in range(2, 4):
            b = G + 4 * p
            a(f"v_add_f32 v{G}, v{G}, v{b}\nv_add_f32 v{G + 1}, v{G + 1}, v{b + 2}")
        a(f"""
        s_mov_b32 s{s_t0}, {L_NM}
        v_lshlrev_b32 v{G + 2}, 16, v28
        v_and_b32 v{G + 3}, 0xffff0000, v28
        v_lshl_add_u32 v{T[3]}, v{gL}, 2, s{s_t0}
        v_lshl_add_u32 v{T[4]}, v{gL}, 3, s{s_t0}
        v_lshl_add_u32 v{T[5]}, v{vL}, 3, s{s_t0}
        ds_write2_b32 v{T[3]}, v{G + 16}, v{G + 18} offset0:0 offset1:128
        ds_write_b64 v{T[4]}, {vr(G, 2)} offset:{L_CSA - L_NM}
        ds_write_b64 v{T[5]}, {vr(G + 2, 2)} offset:{L_BI - L_NM}
        s_waitcnt lgkmcnt(0)
        """)

    def mark_unwritten():
        a(f"""
        s_add_u32 s{s_ko}, s{s_cm}, {C_O * CH}
        s_add_u32 s{s_vo}, s{s_cr}, {C_O * CH}
        v_mov_b64 {vr(MK, 2)}, -1
        v_mov_b64 {vr(MK + 2, 2)}, -1
        buffer_store_dwordx4 {vr(MK, 4)}, v{mQ}, {WSD}, s{s_ko} offen sc1
        buffer_store_dwordx4 {vr(MK, 4)}, v{mQ}, {WSD}, s{s_ko} offen offset:512 sc1
        """)
        if cfg["wm"]:
            a(f"s_cmp_eq_u32 s{s_par}, 0\ns_cselect_b32 s{s_vo}, s{s_vo}, {WS_TOP}")
            a(f"buffer_store_dwordx4 {vr(MK, 4)}, v{mQD}, {WSD}, s{s_vo} offen sc1")
        else:
            a(f"""
            s_mov_b32 exec_hi, 0
            buffer_store_dwordx2 {vr(MK, 2)}, v{mQR}, {WSD}, s{s_vo} offen sc1
            buffer_store_dwordx2 {vr(MK, 2)}, v{mQR}, {WSD}, s{s_vo} offen offset:512 sc1
            s_mov_b32 exec_hi, -1
            """)

    a(f"{feeding}\ns_cbranch_scc1 {L('g1_on')}")
    if not cfg["early"]:
        later_addr()
    take_tag()
    early_mark = cfg["mk"] < 10
    if early_mark:
        mark_unwritten()
    only("bf0", has_block, block_fetch)
    only("bt0", has_block, block_turn)
    a(f"s_branch {L('b_last')}\n{L('g1_on')}:")
    feed(0)
    stamp(a, prof, 43)
    pre = "xwf"[:cfg["pre"]]
    feed(1, pre)
    take_tag()
    boundary(4 * len(pre))
    a(f"s_setprio {cfg['fprio']}")
    sm = capture(sums)
    LT = cfg["late"]

    def late_loads():
        for q in range(5):
            a(f"buffer_load_dwordx4 {vr(SD + 4 * q, 4)}, v29, s[88:91], s10 offen\ns_add_u32 s10, s10, s11")

    if LT == 1:
        late_loads()
    k = len(sm) * (3 - len(pre)) // 3
    feed(1, "xwf"[len(pre):], [] if LT else sm[:k])
    feed(2, pre, [] if LT else sm[k:])
    only("pr", f"s_cmp_eq_u32 s{s_wj}, 2", publish_rows)
    a("s_waitcnt lgkmcnt(0)")
    late = [[]] + split(capture(later_addr), 4)
    if LT:
        late = [[]] * (LT - 1) + [sm + ["s_waitcnt lgkmcnt(0)"]] + split(capture(later_addr), 5 - LT)
    gath = f"s_cmp_lt_u32 s{s_wj}, 2"
    for c in range(10):
        if c - cfg["gat"] in (1, 2):
            a(f"{gath}\ns_cbranch_scc1 {L('bw' + str(c))}\ns_waitcnt vmcnt(12)\n{L('bw' + str(c))}:")
            boundary(17)
            assert c <= 5
        else:
            boundary({0: 4 * len(pre), 6: 8, 7: 8, 8: 4, 9: None}.get(c, 12))
        if c == LT - 2:
            late_loads()
        if c == 0:
            feed(2, "xwf"[len(pre):])
        if c < 5:
            feed(c + 3, mix=late[c])
        elif c < 7:
            feed(c + 3, "xw")
        elif c < 9:
            feed(c + 1, "f")
        if c == LT:
            only("pb", f"s_cmp_eq_u32 s{s_wj}, s{s_hook}", publish)
        if c == cfg["mk"]:
            mark_unwritten()
        if c == 8:
            only("bf", has_block, block_fetch)
        if c == cfg["gat"]:
            only("gf", gath, gather_loads)
        if c == cfg["gat"] + 3:
            only("gp", gath, gather_put)
    a(f"{has_block}\ns_cbranch_scc1 {L('bwa')}\ns_waitcnt vmcnt({4 * early_mark})\n{L('bwa')}:")
    boundary(5 + 4 * early_mark)
    only("bt", has_block, block_turn)
    boundary()

    def first_fetch():
        a(f"""
        s_mul_i32 s{s_t0}, s{s_wj}, 3072
        s_add_u32 m0, s{s_t0}, {L_Q}
        s_nop 0
        buffer_load_dwordx4 v{mQ}, {WSD}, s{s_cm} offen sc1 lds
        s_add_u32 m0, s{s_t0}, {L_Q + 512}
        s_nop 0
        buffer_load_dwordx4 v{mQ}, {WSD}, s{s_cm} offen offset:512 sc1 lds
        s_add_u32 m0, s{s_t0}, {L_Q + 2048}
        s_nop 0
        buffer_load_dwordx4 v{mQD}, {WSD}, s{s_cr} offen sc1 lds
        """)
        kv_dma(0)

    a(f"{L('b_last')}:\ns_setprio 2")
    stamp(a, prof, 40)
    ones_write(one, 20)
    wait_flags("wa", WS_FA, [FO])
    stamp(a, prof, 41)
    if prof is True:
        a(f"s_sub_u32 s{s_t0}, {SPIN}, s{s_spin}\ns_add_u32 s96, s{s_t0}, 100")
    first_fetch()
    stamp(a, prof, 4)
    a(f"s_mov_b32 s{s_t0}, {WS_FA}\nbuffer_load_dword v{T[3]}, v{FK}, {WSD}, s{s_t0} offen sc1")
    if cfg["hpos"] == 0:
        a("s_barrier")
    a("s_waitcnt vmcnt(1) lgkmcnt(0)")
    stamp(a, prof, 3)
    a(f"s_barrier\ns_waitcnt vmcnt(0)\nv_cmp_ne_u32 vcc, s{s_tag}, v{T[3]}\ns_nop 3\ns_cbranch_vccz {L('wk_done')}")
    wait_flags("wk", WS_FA, [FK])
    kv_dma(1)
    if cfg["bpos"] == 0:
        only("bp", has_block, block_put)

    vH, vW, vO, vB, vLn = [11, 12, 13, 14], [15, 16], [17, 18], [T[0], T[1]], 19
    ACC = 20
    LB = [100 + 36 * i for i in range(3)]
    WR, XR, BR = 180, 220, 230
    sH, sT = sW, sA
    a(f"""
    v_mov_b32 v{vH[0]}, v{pH}
    v_xor_b32 v{vH[1]}, 256, v{pH}
    v_xor_b32 v{vH[2]}, 512, v{pH}
    v_xor_b32 v{vH[3]}, 768, v{pH}
    v_lshlrev_b32 v{vLn}, 4, v{vL}
    s_mul_i32 s{s_t0}, s{s_qb}, 5120
    v_add_u32 v{vW[0]}, s{s_t0}, v{vLn}
    v_add_u32 v{vW[1]}, 4096, v{vW[0]}
    s_mul_i32 s{s_t0}, s{s_qb}, 160
    v_lshrrev_b32 v{T[2]}, 4, v{vL}
    v_lshl_add_u32 v{vB[0]}, v{T[2]}, 4, s{s_t0}
    v_lshl_add_u32 v{vB[1]}, v{T[2]}, 3, s{s_t0}
    v_add_u32 v{vO[0]}, v{pO}, v{vB[0]}
    v_add_u32 v{vO[1]}, v{pO}, v{vB[1]}
    s_add_u32 s{sH}, s22, {C_H * CH}
    s_addc_u32 s{sH + 1}, s23, 0
    s_mov_b32 s{sH + 2}, {216 * CH}
    s_mov_b32 s{sH + 3}, 0x00020000
    s_add_u32 s{sT}, s22, {WS_WT}
    s_addc_u32 s{sT + 1}, s23, 0
    s_mov_b32 s{sT + 2}, {54 * KS_ROW}
    s_mov_b32 s{sT + 3}, 0x00020000
    s_lshl_b32 s{s_ho}, s{s_wj}, 17
    s_mul_i32 s{s_wo}, s{s_wj}, {KS_ROW}
    s_add_u32 s{s_xo}, s{s_wo}, {WS_WT + 54 * KS_ROW}
    s_mul_i32 s{s_ring}, s{s_wj}, 5120
    """)
    if cfg["bpos"] == 0:
        a("s_waitcnt vmcnt(0)")
        only("fw", has_block, lambda: set_flag(WS_FH))
        kv_dma(2)
        a("s_barrier")
    elif cfg["bpos"] == 2:
        kv_dma(2)
        only("bp", has_block, block_put)
        a(f"{has_block}\ns_cbranch_scc1 {L('bq')}\ns_waitcnt vmcnt(7)\n{L('bq')}:\ns_waitcnt vmcnt(12)\ns_barrier")
        only("fw", has_block, lambda: (a("s_waitcnt vmcnt(0)"), set_flag(WS_FH)))
    elif cfg["bpos"] == 3:
        only("bp", has_block, block_put)
        a(f"{has_block}\ns_cbranch_scc1 {L('bq')}\ns_waitcnt vmcnt(0)\n{L('bq')}:\ns_waitcnt vmcnt(5)\ns_barrier")
        only("fw", has_block, lambda: (a("s_waitcnt vmcnt(0)"), set_flag(WS_FH)))
        kv_dma(2)
    else:
        kv_dma(2)
        a("s_waitcnt vmcnt(7)\ns_barrier")
        only("bp", has_block, lambda: (block_put(), a("s_waitcnt vmcnt(0)"), set_flag(WS_FH)))
    a(f"s_mov_b32 s{s_fl}, s2")
    stamp(a, prof, 5)

    def w_frag(c):
        return (vW[0], 1024 * c) if c < 4 else (vW[1], 0)

    def ffn_loads(b):
        for t in range(4):
            a(f"buffer_load_dwordx4 {vr(LB[b] + 4 * t, 4)}, v{vH[t]}, s[{sH}:{sH + 3}], s{s_ho} offen sc1")
        for c in range(5):
            va, off = w_frag(c)
            a(f"buffer_load_dwordx4 {vr(LB[b] + 16 + 4 * c, 4)}, v{va}, s[{sT}:{sT + 3}], s{s_wo} offen offset:{off} sc1")
        a(f"s_add_u32 s{s_ho}, s{s_ho}, {16 * CH}\ns_add_u32 s{s_wo}, s{s_wo}, {4 * KS_ROW}")

    def wo_stage(i):
        for c in range(5):
            va, off = w_frag(c)
            if c in (0, 4):
                a(f"s_add_u32 m0, s{s_ring}, {L_WO + i * 20480 + 1024 * c}\ns_nop 0")
            a(f"buffer_load_dwordx4 v{va}, {WSD}, s{s_xo} offen offset:{off} sc1 lds")
        a(f"s_add_u32 s{s_xo}, s{s_xo}, {4 * KS_ROW}")

    queue = []

    def need(tag):
        if tag not in queue:
            return
        last = max(i for i, q in enumerate(queue) if q == tag)
        a(f"s_waitcnt vmcnt({len(queue) - 1 - last})")
        del queue[:last + 1]

    def send(r):
        a(f"s_add_u32 s{s_t0}, s{s_ring}, {L_EX[r]}\nv_add_u32 v{T[2]}, s{s_t0}, v{vLn}")
        for c in range(5):
            a(f"ds_write_b128 v{T[2]}, {vr(ACC + 20 * r + 4 * c, 4)} offset:{1024 * c}")

    wait_flags("wb", WS_FH, [fC], cfg["fbr"])
    a(f"s_mov_b32 s{s_slot}, s{s_spin}\ns_cbranch_vccz {L('fb_go')}\ns_barrier")
    wait_flags("wc", WS_FH, [fC])
    a(f"s_mov_b32 s{s_slot}, -1\n{L('fb_go')}:")
    stamp(a, prof, 6)
    ffn_loads(0)
    only("fb1", f"s_cmp_eq_u32 s{s_slot}, 0", lambda: a("s_barrier"))
    ffn_loads(1)
    queue += [("L", 0)] * 9 + [("L", 1)] * 9
    if cfg["mk"] == 12:
        mark_unwritten()
        queue += [("M", 0)] * (3 if cfg["wm"] else 4)
    only("fb2", f"s_cmp_gt_i32 s{s_slot}, 0", lambda: a("s_barrier"))
    a("s_setprio 0")
    assert not early_mark

    def vm_units(fn, tag):
        out, cur = [], []
        for u in capture(fn):
            cur.append(u)
            n = u.count("buffer_load")
            if n:
                out.append(("\n".join(cur), [tag] * n))
                cur = []
        out[-1] = (out[-1][0] + "\n" + "\n".join(cur), out[-1][1])
        return out

    cuts = [cfg["cut0"] + cfg["cutd"] * k for k in range(5)]
    side = vm_units(lambda: kv_dma(3), ("D", 2)) + vm_units(lambda: wo_stage(0), ("W", 2))
    iv, m = 2, 0
    for step in range(14):
        b = step % 3
        main = vm_units(lambda: ffn_loads((step + 2) % 3), ("L", step + 2)) if step + 2 < 14 else []
        need(("L", step))
        if step == 13:
            assert not side and iv == 7
            a(f"s_cmp_lt_u32 s{s_wj}, 2\ns_cbranch_scc0 {L('m13')}")
        for k in range(20):
            t, c = divmod(k, 5)
            d = vr(ACC + 20 * t + 4 * c, 4)
            a(f"v_mfma_f32_16x16x32_bf16 {d}, {vr(LB[b] + 16 + 4 * c, 4)}, {vr(LB[b] + 4 * t, 4)}, {d if step else 0}")
            m += 1
            src = main if (main and (k & 1 or not side)) else side
            if src:
                text, tags = src.pop(0)
                a(text)
                queue += tags
            if iv < 7 and m == cuts[iv - 2]:
                assert not side
                need(("D", iv))
                if cfg.get("trace"):
                    stamp(a, prof, 24)
                a("s_barrier")
                iv += 1
                if iv == cfg["mk"] - 10:
                    mark_unwritten()
                    queue += [("M", 0)] * (3 if cfg["wm"] else 4)
                if iv == cfg["mk"] - 9:
                    assert ("M", 0) not in queue
                    only("fb", f"s_cmp_eq_u32 s{s_wj}, 0", lambda: set_flag(WS_FB))
                if iv < 7:
                    side = vm_units(lambda: kv_dma(iv + 1), ("D", iv))
                if iv < 6:
                    side += vm_units(lambda: wo_stage(iv - 2), ("W", iv))
                if iv == 7:
                    only("w5", f"s_cmp_lt_u32 s{s_wj}, 2", lambda: wo_stage(4))
        assert not main
    a(f"{L('m13')}:")
    srd(a, sX, 4, S * D * 2)
    srd(a, sA, 18, D * 2)
    srd(a, sB, 20, S * D * 2)
    upper = f"s_cmp_ge_u32 s{s_wj}, 2"

    def wo_last():
        for c in range(5):
            va, off = w_frag(c)
            a(f"buffer_load_dwordx4 {vr(WR + 4 * c, 4)}, v{va}, {WSD}, s{s_xo} offen offset:{off} sc1")

    def wo_last_put():
        a(f"s_add_u32 s{s_t0}, s{s_ring}, {L_WO + 4 * 20480}\nv_add_u32 v{T[2]}, s{s_t0}, v{vLn}")
        for c in range(5):
            a(f"ds_write_b128 v{T[2]}, {vr(WR + 4 * c, 4)} offset:{1024 * c}")

    only("wl", upper, wo_last)
    if cfg["ot"]:
        a(f"buffer_load_dword v244, v{vO[0]}, s[{sB}:{sB + 3}], 0 offen\nbuffer_load_dword v245, v{vO[1]}, s[{sB}:{sB + 3}], 0 offen offset:128")
    for dst, va, sd in ((XR, vO, sX), (BR, vB, sA)):
        a(f"""
        buffer_load_dwordx4 {vr(dst, 4)}, v{va[0]}, s[{sd}:{sd + 3}], 0 offen
        buffer_load_dwordx4 {vr(dst + 4, 4)}, v{va[0]}, s[{sd}:{sd + 3}], 0 offen offset:64
        buffer_load_dwordx2 {vr(dst + 8, 2)}, v{va[1]}, s[{sd}:{sd + 3}], 0 offen offset:128
        """)
    NW, AH = 7, cfg["ahead"]
    AC2, WG, OF = 40, 60, 200
    assert OF + 4 * (AH + 1) <= 256

    def wo_read(i, c):
        va, off = (vLn, L_WO + 5120 * i) if i < 10 else (T[2], 5120 * (i - 10))
        return f"ds_read_b128 {vr(WG + 20 * (i % NW) + 4 * c, 4)}, v{va} offset:{off + 1024 * c}"

    def o_load(i):
        a(f"s_mov_b32 s{s_t0}, {(C_O + 4 * i) * CH}")
        a(f"buffer_load_dwordx4 {vr(OF + 4 * (i % (AH + 1)), 4)}, v{vH[0]}, {WSD}, s{s_t0} offen sc1")

    def prime(steps):
        for i in steps:
            a("s_waitcnt lgkmcnt(10)\n" + "\n".join(wo_read(i, c) for c in range(5)))

    prime(range(2, 6))
    wait_flags("wm", WS_FB, [fB])
    a(f"""
    s_cmp_lg_u32 s2, 0
    s_cbranch_scc1 {L('we_done')}
    s_lshl_b32 s{s_t0}, s{s_wj}, 6
    v_add_u32 v{T[5]}, s{s_t0}, v{vL}
    v_lshlrev_b32 v{T[5]}, 7, v{T[5]}
    """)
    wait_flags("we", WS_FB, [T[5]])
    a(f"""
    v_bfe_u32 v{T[2]}, v{vL}, 1, 4
    v_mul_u32_u24 v{T[2]}, 5, v{T[2]}
    v_and_b32 v{T[3]}, 1, v{vL}
    s_cmp_eq_u32 s{s_wj}, 2
    s_cselect_b32 s{s_t1}, 8, {3 * CH}
    s_cselect_b32 s{s_t2}, 4, 12
    s_cmp_eq_u32 s{s_wj}, 3
    s_cselect_b32 s{s_t0}, 0, s{s_wj}
    v_add_u32 v{T[2]}, s{s_t0}, v{T[2]}
    v_lshlrev_b32 v{T[2]}, 15, v{T[2]}
    v_mad_u32_u24 v{T[0]}, v{T[3]}, s{s_t1}, v{T[2]}
    s_lshl_b32 s{s_t0}, s{s_head}, 3
    s_add_u32 s{s_t0}, s{s_t0}, s{s_qb}
    s_lshl_b32 s{s_t0}, s{s_t0}, 7
    s_add_u32 s{s_t0}, s{s_t0}, s{s_t2}
    s_add_u32 s{s_ko}, s{s_t0}, {C_O * CH}
    s_mov_b32 s{s_spin}, {SPIN}
    """)
    a("s_waitcnt lgkmcnt(0)")
    if cfg.get("trace"):
        stamp(a, prof, 24)
    a("s_barrier")
    send(1)
    send(2)
    stamp(a, prof, 7)
    a("s_barrier")
    a("s_waitcnt vmcnt(0) lgkmcnt(0)")
    send(3)
    only("wp", upper, wo_last_put)
    a("s_waitcnt lgkmcnt(0)\ns_barrier")
    stamp(a, prof, 8)
    a(f"""
    s_cmp_lg_u32 s2, 0
    s_cbranch_scc1 {L('tag_kept')}
    v_mov_b32 v{T[4]}, 0
    v_mov_b32 v{T[5]}, s{s_tag}
    s_mov_b32 s{s_t0}, {WS_E}
    buffer_store_dword v{T[5]}, v{T[4]}, {WSD}, s{s_t0} offen sc1
    {L('tag_kept')}:
    """)
    for r in range(1, 4):
        a(f"""
        s_xor_b32 s{s_t0}, s{s_wj}, {r}
        s_mul_i32 s{s_t0}, s{s_t0}, 5120
        s_add_u32 s{s_t0}, s{s_t0}, {L_EX[r]}
        v_add_u32 v{T[2]}, s{s_t0}, v{vLn}
        """)
        for c in range(5):
            a(f"ds_read_b128 {vr(ACC + 20 * r + 4 * c, 4)}, v{T[2]} offset:{1024 * c}")
    for src in (XR, BR):
        for i in range(10):
            t = T[2 + 2 * (i & 1)]
            a(f"v_lshlrev_b32 v{t}, 16, v{src + i}\nv_and_b32 v{t + 1}, 0xffff0000, v{src + i}")
            a(f"v_pk_add_f32 {vr(ACC + 2 * i, 2)}, {vr(ACC + 2 * i, 2)}, {vr(t, 2)}")
    for r in range(1, 4):
        a(f"s_waitcnt lgkmcnt({5 * (3 - r)})")
        for i in range(0, 20, 2):
            a(f"v_pk_add_f32 {vr(ACC + i, 2)}, {vr(ACC + i, 2)}, {vr(ACC + 20 * r + i, 2)}")
    a(f"v_add_u32 v{T[2]}, {L_WO + 10 * 5120}, v{vLn}")

    look = f"buffer_load_dword v{T[3]}, v{T[0]}, {WSD}, s{s_ko} offen sc1"
    a(f"{L('first')}:\ns_mov_b32 exec_hi, 0\n{look}\ns_mov_b32 exec_hi, -1")
    prime((0, 1, 6))
    a(f"""
    v_mov_b32 v{T[4]}, 0
    s_mov_b32 exec_hi, 0
    s_branch {L('seen')}
    {L('poll')}:
    {"s_mov_b32 exec_lo, vcc_lo" if cfg["thin"] else ""}
    {f"s_sleep {cfg['osl']}" if cfg["osl"] else ""}
    {look}
    {L('seen')}:
    s_sub_u32 s{s_spin}, s{s_spin}, 1
    s_cmp_lt_i32 s{s_spin}, 0
    s_waitcnt vmcnt(0) lgkmcnt(0)
    v_cmp_eq_u32 vcc, -1, v{T[3]}
    s_cbranch_scc1 {L('got')}
    s_nop 2
    s_cbranch_vccnz {L('poll')}
    {L('got')}:
    s_mov_b64 exec, -1
    """)
    if prof is True:
        stamp(a, prof, 50)
        a(f"s_sub_u32 s96, {SPIN + 200}, s{s_spin}\ns_waitcnt lgkmcnt(0)")
    for i in range(AH):
        o_load(i)
    todo = [(i, c) for i in range(NW, 20) for c in range(5)]
    issued = 0
    for i in range(20):
        lg = f" lgkmcnt({min(15, issued - 5 * (i - NW + 1))})" if i >= NW else ""
        assert i < NW or issued >= 5 * (i - NW + 1)
        a(f"s_waitcnt vmcnt({min(20, i + AH) - i - 1}){lg}")
        o = OF + 4 * (i % (AH + 1))
        for c in range(5):
            d = vr(AC2 + 4 * c, 4)
            a(f"v_mfma_f32_16x16x32_bf16 {d}, {vr(WG + 20 * (i % NW) + 4 * c, 4)}, {vr(o, 4)}, {d if i else 0}")
            if c == 0:
                if i + AH < 20:
                    o_load(i + AH)
            elif todo and (todo[0][0] - NW, todo[0][1]) <= (i, c):
                a(wo_read(*todo.pop(0)))
                issued += 1
            if c == 4:
                a(f"v_max3_u32 v{T[4]}, v{T[4]}, v{o + 1}, v{o + 3}")
    assert not todo
    stamp(a, prof, 9)
    a(f"""
    v_cmp_eq_u32 vcc, -1, v{T[4]}
    s_cmp_lt_i32 s{s_spin}, 0
    s_cbranch_scc1 {L('sum')}
    s_nop 1
    s_cbranch_vccnz {L('again')}
    {L('sum')}:
    s_nop 3
    """)
    for i in range(0, 20, 2):
        a(f"v_pk_add_f32 {vr(ACC + i, 2)}, {vr(ACC + i, 2)}, {vr(AC2 + i, 2)}")
    for i in range(10):
        a(f"v_cvt_pk_bf16_f32 v{XR + i}, v{ACC + 2 * i}, v{ACC + 2 * i + 1}")
    a(f"""
    buffer_store_dwordx4 {vr(XR, 4)}, v{vO[0]}, s[{sB}:{sB + 3}], 0 offen {OSF}
    buffer_store_dwordx4 {vr(XR + 4, 4)}, v{vO[0]}, s[{sB}:{sB + 3}], 0 offen offset:64 {OSF}
    buffer_store_dwordx2 {vr(XR + 8, 2)}, v{vO[1]}, s[{sB}:{sB + 3}], 0 offen offset:128 {OSF}
    """)
    if prof:
        a(f"{L('dump')}:\ns_waitcnt vmcnt(0)")
        stamp(a, prof, 10)
        stamp(a, prof, 11)
        a(f"""
        s_memrealtime s[78:79]
        s_waitcnt lgkmcnt(0)
        s_mov_b32 s{sWS + 2}, {WS_SIZE}
        s_sub_u32 s{sWS}, s{sWS}, {cfg['wsoff'] << 20}
        s_subb_u32 s{sWS + 1}, s{sWS + 1}, 0
        s_lshl_b32 s95, s2, 3
        s_add_u32 s95, s95, s{s_w}
        s_lshl_b32 s95, s95, 8
        s_add_u32 s95, s95, {WS_DBG}
        v_writelane_b32 v0, s76, 62
        v_writelane_b32 v0, s78, 63
        v_lshlrev_b32 v{T[0]}, 2, v{vL}
        buffer_store_dword v0, v{T[0]}, {WSD}, s95 offen
        s_waitcnt vmcnt(0)
        """)
    a(f"s_endpgm\n{L('again')}:")
    prime(range(2, 6))
    a(f"s_branch {L('first')}")
    a.lines = head_lines + a.lines + g0_lines
    a(f"{L('end')}:\ns_endpgm")
    return kernel_header(label) + a.text(), kernel_desc(label, 256, 102 if prof else 92), LDS_SIZE


def build(as_list=False, **kw):
    ref = open(f"cdna_kernels/{NAME}.s.ref").read().split("\n")
    head = [ln for ln in ref if ln.startswith(";") and "launch" not in ln.lower() and "grid=" not in ln]
    label = NAME + "_kernel"
    c, d, lds = gen(label, **kw)
    c = c.replace(label + "_", "L_")
    if (kw.get("cfg") or {}).get("rt"):
        c = c.replace("s_memtime", "s_memrealtime")
    out = "\n".join(head) + "\n"
    out += f"; @launch {'kernel=' + label + ' ' if as_list else ''}grid=(256,1,1) block=(512,1,1) lds={lds}\n"
    out += '.amdgcn_target "amdgcn-amd-amdhsa--gfx950"\n.text\n' + c + '.section .rodata,"a"\n' + d
    return out


if __name__ == "__main__":
    import sys
    opts = sys.argv[2:]
    cfg = {o.split("=")[0]: int(o.split("=")[1], 0) for o in opts if "=" in o}
    open(sys.argv[1], "w").write(build(as_list="list" in opts, prof="span" if "span" in opts else "prof" in opts, force_fallback="slow" in opts, cfg=cfg))
```

```python
import math
import struct
from common import *

f32 = lambda x: struct.unpack("<I", struct.pack("<f", x))[0]
QSCALE = f32(math.log2(math.e) / math.sqrt(20.0))
SHIFT = 92.0

WS_RS = WS_END
WS_CP = WS_RS + 2048 * 16
CP_ROW = 3648 * 8
WS_FA = WS_CP + 4 * CP_ROW
WS_FH = WS_FA + 1024 * 128
WS_FB = WS_FH + 2048 * 128
WS_E = WS_FB + 256 * 128
WS_TOP = WS_E + 128

STG = 49152
LX, LW, LF = 0, 16384, 32768
L_NM = 3 * STG
L_RS, L_CSA, L_CSB, L_BI = L_NM + 512, L_NM + 1024, L_NM + 1536, L_NM + 2048
L_CP = L_NM + 2560
L_RP = L_CP + 1024
LDS_SIZE = 163840
SLOT = 8192 + 4096 + 16 * 656
OFF_R, OFF_V = 8192, 12288
KV = LDS_SIZE - 3 * SLOT
L_Q = LW
L_WO = 0
L_EX = [None, 122880, 143360, 102400]
LDS_OOB = 0x28000
assert L_WO + 18 * 5120 <= KV and LDS_OOB + 3 * SLOT <= 0x40000
KS_ROW = 40 * 1024

sWS, sX, sW, sA, sB = 24, 28, 32, 36, 40
(s_w, s_wj, s_rb, s_cg, s_head, s_qb, s_tt, s_cf, s_cm, s_cr, s_par, s_tag, s_c, s_slot,
 s_t0, s_t1, s_t2, s_t3, s_xo, s_wo, s_ring, s_wstep, s_ko, s_vo, s_ho, s_spin, s_fl) = range(44, 71)
assert s_t2 % 2 == 0
s_o = [71, 72, 73]
s_kc, s_hook = 74, 75
SPIN = 0x20000


def gen(label, prof=False, force_fallback=False, cfg=None):
    cfg = {**dict(cl=6, ot=0, nf=1, wm=1, full=1, skip=0, wsoff=0, rot=0, late=0, bal=1, touch=1, gat=2, pre=3, mk=12, pa=14, early=0, fprio=2, flag=1, krot=0, lean=1, plf=0, fsf=0, slp=1, cut0=46, cutd=49, fbr=3, hk=3, hpos=0, bpos=0, ahead=6, thin=1, osl=0, osf=0), **(cfg or {})}
    STF = ('sc1', '', 'nt')[cfg.get('plain', 0)]
    PLF = ('sc1', 'sc0 sc1', 'sc1 nt', 'sc0 sc1 nt')[cfg['plf']]
    FSF = ('sc1', 'sc0 sc1')[cfg['fsf']]
    OSF = ('', 'sc1', 'nt')[cfg['osf']]
    a = Asm()
    L = lambda n: f"{label}_{n}"
    WSD = f"s[{sWS}:{sWS + 3}]"
    vL = 1
    T = [2, 3, 4, 5, 6, 7]
    vK, vR_, vV = 8, 9, 10
    AX = [11, 12]
    AW = [13, 14, 15, 16]
    XF = [[32 + 16 * b + 4 * t for t in range(4)] for b in range(2)]
    WF = [[64 + 16 * b + 4 * c for c in range(4)] for b in range(2)]
    GA, GB = 96, 160

    def capture(fn):
        keep, a.lines = a.lines, []
        fn()
        got, a.lines = a.lines, keep
        units, masked = [], False
        for ln in got:
            t = ln.strip()
            if units and (masked or t.startswith("s_cselect") or units[-1].split("\n")[-1].strip().startswith("s_cmp")):
                units[-1] += "\n" + ln
            else:
                units.append(ln)
            if t.startswith("s_") and " exec" in t.split(",")[0]:
                masked = not t.endswith("-1")
        return units

    def gacc(tt, ci, base=GA):
        return base + (tt * 4 + ci) * 4

    SD = 32
    a(f"""
    s_cmp_ge_u32 s2, 256
    s_cbranch_scc1 {L('end')}
    s_load_dwordx16 s[4:19], s[0:1], 0
    s_load_dwordx2 s[22:23], s[0:1], 80
    s_load_dwordx2 s[20:21], s[0:1], 64
    """)
    stamp(a, prof, 0)
    a(f"""
    v_lshrrev_b32 v{T[0]}, 6, v0
    v_and_b32 v{vL}, 63, v0
    s_and_b32 s{s_t3}, s2, 1
    v_readfirstlane_b32 s{s_w}, v{T[0]}
    s_bfe_u32 s{s_rb}, s2, 0x30003
    s_bfe_u32 s{s_t0}, s2, 0x20001
    s_lshr_b32 s{s_t1}, s2, 6
    s_lshl2_add_u32 s{s_cf}, s{s_t0}, s{s_t1}
    {f"s_and_b32 s{s_t2}, s{s_rb}, 3" if cfg["bal"] else f"s_mov_b32 s{s_t2}, 3"}
    s_lshl2_add_u32 s{s_t2}, s{s_t2}, 3
    s_lshl3_add_u32 s{s_rb}, s{s_t3}, s{s_rb}
    s_cmp_gt_u32 s{s_cf}, s{s_t2}
    s_subb_u32 s{s_cg}, s{s_cf}, 0
    s_cmp_eq_u32 s{s_cf}, s{s_t2}
    s_cselect_b32 s{s_cg}, 15, s{s_cg}
    s_mov_b32 s{sA + 3}, 0x00020000
    {'v_mov_b32 v0, -1' if prof else ''}
    s_and_b32 s{s_wj}, s{s_w}, 3
    s_cmp_ge_u32 s{s_w}, 4
    s_cbranch_scc1 {L('p_col')}
    s_mov_b32 s3, 0
    s_lshl4_add_u32 s{s_t0}, s{s_rb}, s{s_cg}
    s_lshl1_add_u32 s{s_t0}, s{s_t0}, s{s_wj}
    s_mul_i32 s{s_t1}, s{s_t0}, {4 * 1280}
    s_cmp_eq_u32 s{s_cg}, 15
    s_cselect_b32 s{s_hook}, 0, 2
    s_cmp_eq_u32 s{s_cg}, 14
    s_cselect_b32 s{s_hook}, 4, s{s_hook}
    v_lshrrev_b32 v{T[0]}, 4, v{vL}
    v_and_b32 v{T[1]}, 7, v{vL}
    v_lshrrev_b32 v{T[2]}, 3, v{vL}
    v_mul_u32_u24 v{T[2]}, 640, v{T[2]}
    s_movk_i32 s{s_t2}, 128
    s_mov_b32 s{sA + 2}, {S * D * 2}
    s_cmp_lt_u32 s{s_wj}, s{s_hook}
    s_waitcnt lgkmcnt(0)
    s_mov_b64 s[{sA}:{sA + 1}], s[4:5]
    s_branch {L('p_ld')}
    {L('p_col')}:
    s_setprio 2
    s_mov_b32 s3, 1
    s_bfe_u32 s{s_t1}, s2, 0x10005
    s_lshl1_add_u32 s{s_t1}, s{s_cg}, s{s_t1}
    s_bfe_u32 s{s_t0}, s2, 0x10003
    s_lshl1_add_u32 s{s_t0}, s{s_t3}, s{s_t0}
    s_mul_i32 s{s_o[0]}, s{s_t0}, {CP_ROW // 512 * 512}
    s_lshl2_add_u32 s{s_t0}, s{s_t0}, s{s_wj}
    s_lshl_b32 s{s_t0}, s{s_t0}, 3
    s_lshl_b32 s{s_t2}, s{s_t3}, 8
    s_add_u32 s{s_t0}, s{s_t0}, s{s_t2}
    v_lshrrev_b32 v{T[0]}, 3, v{vL}
    v_and_b32 v{T[1]}, 7, v{vL}
    s_bitcmp0_b32 s2, 4
    s_cselect_b32 s{s_hook}, 30, 57
    s_movk_i32 s{s_t2}, 3840
    s_cselect_b32 s{s_t2}, s{s_t2}, 3456
    s_cselect_b32 s{s_o[1]}, 0, 30
    s_mul_i32 s{sA + 2}, s{s_t2}, 640
    s_mul_i32 s{s_t0}, s{s_t0}, s{s_t2}
    v_mul_u32_u24 v{T[2]}, s{s_t2}, v{T[0]}
    s_waitcnt lgkmcnt(0)
    s_cselect_b64 s[{sA}:{sA + 1}], s[6:7], s[12:13]
    s_add_u32 s{s_o[1]}, s{s_o[1]}, s{s_t1}
    s_lshl_b32 s{s_t1}, s{s_t1}, 7
    s_add_u32 s{s_t1}, s{s_t1}, s{s_t0}
    s_lshl_b32 s{s_t2}, s{s_t2}, 6
    s_cmp_lt_u32 s{s_o[1]}, s{s_hook}
    s_cselect_b32 s{s_hook}, 3, 7
    """)
    if cfg["late"]:
        a(f"""
        s_cselect_b32 s78, s{sA + 2}, 0
        s_mov_b64 s[76:77], s[{sA}:{sA + 1}]
        s_mov_b32 s79, 0x00020000
        s_mov_b32 s10, s{s_t1}
        s_mov_b32 s11, s{s_t2}
        v_lshl_add_u32 v29, v{T[1]}, 4, v{T[2]}
        s_branch {L('p_id')}
        """.replace("s78", "s90").replace("s[76:77]", "s[88:89]").replace("s79", "s91"))
    a(f"""
    {L('p_ld')}:
    """)
    a(f"""
    v_lshl_add_u32 v{T[2]}, v{T[1]}, 4, v{T[2]}
    s_cbranch_scc0 {L('p_id')}
    """)
    assert CP_ROW % 512 == 0 and WS_FA % 128 == 0
    if cfg["skip"]:
        a(f"v_mov_b64 {vr(SD + 16, 2)}, 0\nv_mov_b64 {vr(SD + 18, 2)}, 0")
    for q in range(5 - cfg["skip"]):
        a(f"buffer_load_dwordx4 {vr(SD + 4 * q, 4)}, v{T[2]}, s[{sA}:{sA + 3}], s{s_t1} offen")
        a(f"s_add_u32 s{s_t1}, s{s_t1}, s{s_t2}")
    a(f"{L('p_id')}:")
    if cfg["wsoff"]:
        a(f"s_add_u32 s22, s22, {cfg['wsoff'] << 20}\ns_addc_u32 s23, s23, 0")
    stamp(a, prof, 45)
    a(f"""
    {f"s_xor_b32 s{s_t2}, s{s_rb}, 2" if cfg["bal"] else ""}
    {f"s_and_b32 s{s_t2}, s{s_t2}, 3" if cfg["bal"] else f"s_mov_b32 s{s_t2}, 3"}
    s_lshl2_add_u32 s{s_t2}, s{s_t2}, {3 if cfg["bal"] else 2}
    s_cmp_eq_u32 s{s_cf}, s{s_t2}
    s_cselect_b32 s{s_t0}, 15, s{s_cg}
    s_cmp_gt_u32 s{s_cf}, s{s_t2}
    s_subb_u32 s{s_cf}, s{s_t0}, 0
    s_cmp_eq_u32 s{s_cg}, 15
    s_cbranch_scc1 {L('near')}
    {L('p_go')}:
    s_cmp_eq_u32 s3, 0
    s_cbranch_scc1 {L('g0')}
    """)
    head_lines, a.lines = a.lines, []

    def attn_ids():
        a(f"""
        s_and_b32 s{s_t0}, s2, 7
        s_lshr_b32 s{s_t1}, s2, 3
        s_and_b32 s{s_t2}, s{s_t1}, 3
        s_lshl_b32 s{s_head}, s{s_t0}, 2
        s_add_u32 s{s_head}, s{s_head}, s{s_t2}
        s_lshr_b32 s{s_qb}, s{s_t1}, 2
        s_and_b32 s{s_par}, s{s_head}, 1
        s_lshr_b32 s{s_t2}, s{s_head}, 1
        s_mul_i32 s{s_t2}, s{s_t2}, 5
        s_add_u32 s{s_cr}, s{s_t2}, 2
        s_mul_i32 s{s_t3}, s{s_par}, 3
        s_add_u32 s{s_cm}, s{s_t2}, s{s_t3}
        s_lshl_b32 s{s_cm}, s{s_cm}, 15
        s_lshl_b32 s{s_cr}, s{s_cr}, 15
        """)

    def load_tag():
        a(f"""
        s_mov_b32 s{s_t0}, {WS_E}
        s_load_dword s{s_tag}, s[22:23], s{s_t0}
        """)

    def frag_addr():
        a(f"""
        v_and_b32 v{T[0]}, 15, v{vL}
        v_lshrrev_b32 v{T[1]}, 4, v{vL}
        v_bfe_u32 v{T[2]}, v{vL}, 1, 3
        v_xor_b32 v{T[2]}, v{T[2]}, v{T[1]}
        v_lshlrev_b32 v{T[2]}, 4, v{T[2]}
        v_lshl_add_u32 v{T[2]}, v{T[0]}, 7, v{T[2]}
        s_and_b32 s{s_t0}, s{s_wj}, 1
        s_lshl_b32 s{s_t0}, s{s_t0}, 13
        v_add_u32 v{AX[0]}, s{s_t0}, v{T[2]}
        v_xor_b32 v{AX[1]}, 64, v{AX[0]}
        v_bfe_u32 v{T[2]}, v{vL}, 2, 2
        v_lshl_add_u32 v{T[3]}, v{T[1]}, 3, v{T[2]}
        v_lshlrev_b32 v{T[3]}, 8, v{T[3]}
        v_bfe_u32 v{T[2]}, v{vL}, 2, 3
        s_lshr_b32 s{s_t0}, s{s_wj}, 1
        s_lshl_b32 s{s_t0}, s{s_t0}, 2
        v_xor_b32 v{T[2]}, s{s_t0}, v{T[2]}
        v_lshl_add_u32 v{T[3]}, v{T[2]}, 5, v{T[3]}
        v_and_b32 v{T[2]}, 3, v{vL}
        v_lshl_add_u32 v{AW[0]}, v{T[2]}, 3, v{T[3]}
        v_xor_b32 v{AW[1]}, 32, v{AW[0]}
        v_xor_b32 v{AW[2]}, 64, v{AW[0]}
        v_xor_b32 v{AW[3]}, 96, v{AW[0]}
        """)

    def zero(base, n):
        for r in range(base, base + n, 2):
            a(f"v_mov_b64 {vr(r, 2)}, 0")

    def wreads(part, s, b):
        return [f"ds_read_b64_tr_b16 {vr(WF[b][c] + 2 * h, 2)}, v{AW[c]} offset:{part + s * 8192 + 1024 * h}"
                for c in range(4) for h in range(2)]

    def xreads(s):
        return [f"ds_read_b128 {vr(XF[s][t], 4)}, v{AX[s]} offset:{LX + 2048 * t}" for t in range(4)]

    def both(part, s, b):
        w, x = wreads(part, s, b), xreads(s)
        return w[:2] + x[:1] + w[2:] + x[1:]

    def gemm_body(name, halves, barrier, count_to):
        a(f".p2align 3\n{L(name)}:")
        for k, (xs, wb, acc, swapped, rd) in enumerate(halves):
            fill = [[] for _ in range(16)]
            if k == len(halves) - 1:
                if barrier:
                    if prof and cfg.get("trace", 0) == 3:
                        fill[0] += capture(lambda: stamp(a, prof, 25))
                    fill[0].append("s_barrier")
                fill[13].append(f"s_add_u32 s{s_c}, s{s_c}, 1")
                fill[14].append(f"s_cmp_lt_u32 s{s_c}, {count_to}")
            if k == len(halves) - 2:
                fill[8].append(f"s_add_u32 s{s_ring}, s{s_ring}, 1")
                fill[9].append(f"s_cmp_eq_u32 s{s_ring}, 3")
                fill[10].append(f"s_cselect_b32 s{s_xo}, {-2 * STG & 0xffffffff}, s{s_wstep}")
                fill[11].append(f"s_cselect_b32 s{s_ring}, 0, s{s_ring}")
            for m, x in enumerate(rd):
                fill[m].append(x)
            if k == len(halves) - 2:
                for m, r in enumerate(AX + AW):
                    fill[12 + m // 2].append(f"v_add_u32 v{r}, s{s_xo}, v{r}")
            fill[15].append("s_waitcnt lgkmcnt(0)")
            for m in range(16):
                tt, ci = m >> 2, m & 3
                wf, xf = vr(WF[wb][ci], 4), vr(XF[xs][tt], 4)
                A, B = (xf, wf) if swapped else (wf, xf)
                a(f"v_mfma_f32_16x16x32_bf16 {vr(gacc(tt, ci, acc), 4)}, {A}, {B}, {vr(gacc(tt, ci, acc), 4)}")
                a("\n".join(fill[m]))
        if 0 < cfg.get("trace", 0) < 3:
            stamp(a, prof, 20)
        a(f"s_cbranch_scc1 {L(name)}")

    def joint(name, sw):
        gemm_body(name, [(0, 0, GA, sw, wreads(LF, 0, 1)), (0, 1, GB, False, both(LW, 1, 0)),
                         (1, 0, GA, sw, wreads(LF, 1, 1)), (1, 1, GB, False, both(LW, 0, 0))], True, 7)

    def single(name, part, acc, sw, barrier, count_to):
        gemm_body(name, [(0, 0, acc, sw, both(part, 1, 1)), (1, 1, acc, sw, both(part, 0, 0))], barrier, count_to)

    def tile_addr(e_reg, e_lane, e_st):
        a(f"""
        v_and_b32 v{T[0]}, 15, v{vL}
        v_lshrrev_b32 v{T[1]}, 4, v{vL}
        s_lshr_b32 s{s_t0}, s{s_wj}, 1
        s_lshl_b32 s{s_t0}, s{s_t0}, 8
        s_add_u32 s{s_t0}, s{s_t0}, {L_NM}
        v_lshl_add_u32 v{e_reg}, v{T[1]}, 4, s{s_t0}
        s_and_b32 s{s_t1}, s{s_wj}, 1
        s_lshl_b32 s{s_t0}, s{s_t1}, 8
        s_add_u32 s{s_t0}, s{s_t0}, {L_NM}
        v_lshl_add_u32 v{e_lane}, v{T[0]}, 2, s{s_t0}
        v_bfrev_b32 v{T[1]}, v{T[1]}
        v_lshrrev_b32 v{T[1]}, 15, v{T[1]}
        v_lshl_add_u32 v{T[1]}, v{T[0]}, 4, v{T[1]}
        s_lshl_b32 s{s_t0}, s{s_rb}, 1
        s_add_u32 s{s_t0}, s{s_t0}, s{s_t1}
        s_lshl_b32 s{s_t0}, s{s_t0}, 10
        v_add_u32 v{e_st}, s{s_t0}, v{T[1]}
        """)

    def put_piece(src, addr, x, y):
        return f"buffer_store_dwordx4 {vr(src, 4)}, v{addr}, {WSD}, s{s_o[x]} offen offset:{256 * y} {STF}"

    def pack_tiles(acc, math, dst, addr=None, between=None):
        pend = []
        for tt in range(4):
            for cp in range(2):
                ob = dst(cp, tt)
                r0 = gacc(tt, 2 * cp, acc)
                math(tt, [(r0 + 2 * p, 8 * cp + 2 * p) for p in range(4)])
                a("\n".join(pend))
                for p in range(4):
                    a(f"v_cvt_pk_bf16_f32 v{ob + p}, v{r0 + 2 * p}, v{r0 + 2 * p + 1}")
                pend = [f"v_permlane16_swap_b32 v{ob}, v{ob + 2}", f"v_permlane16_swap_b32 v{ob + 1}, v{ob + 3}"]
                if addr:
                    pend.append(put_piece(ob, addr, cp, tt))
            if between:
                between(tt)
        a("s_nop 1\n" + "\n".join(pend))

    def key_perm(dst, src, t0, t1):
        a(f"""
        v_bfe_u32 v{t0}, v{src}, 2, 1
        v_bfe_u32 v{t1}, v{src}, 3, 2
        v_lshl_add_u32 v{t0}, v{t0}, 2, v{t1}
        v_and_b32 v{t1}, 3, v{src}
        v_lshl_add_u32 v{dst}, v{t0}, 2, v{t1}
        """)

    def v_feature(dst, row, t0, t1):
        swap23(a, dst, row, t0, t1)
        a(f"""
        s_lshl_b32 s{s_t0}, s{s_par}, 2
        s_mul_i32 s{s_t1}, s{s_par}, -16
        v_cmp_gt_u32 vcc, 16, v{row}
        v_add_u32 v{dst}, s{s_t0}, v{dst}
        v_add_u32 v{t0}, s{s_t1}, v{row}
        v_cndmask_b32 v{dst}, v{t0}, v{dst}, vcc
        """)

    def kv_addr(first_chunk):
        a(f"v_and_b32 v{T[0]}, 31, v{vL}\nv_lshrrev_b32 v{T[1]}, 5, v{vL}")
        key_perm(T[2], T[0], T[3], T[4])
        a(f"""
        v_lshlrev_b32 v{T[3]}, 4, v{T[2]}
        v_lshl_add_u32 v{vK}, v{T[1]}, 15, v{T[3]}
        v_add_u32 v{vK}, s{s_cm}, v{vK}
        v_lshl_add_u32 v{vR_}, v{T[1]}, 9, v{T[3]}
        v_add_u32 v{vR_}, s{s_cr}, v{vR_}
        v_cmp_le_u32 vcc, 20, v{vL}
        s_lshl_b32 s{s_t0}, s{s_wj}, 10
        s_andn2_b32 s{s_kc}, 1, s2
        s_mul_i32 s{s_kc}, s{s_kc}, {cfg['krot']}
        v_cndmask_b32 v{T[2]}, 0, 1, vcc
        v_mul_u32_u24 v{T[3]}, 20, v{T[2]}
        v_sub_u32 v{T[3]}, v{vL}, v{T[3]}
        v_mul_u32_u24 v{vV}, 10240, v{T[2]}
        """)
        v_feature(T[2], T[3], T[4], T[5])
        a(f"""
        s_mul_i32 s{s_t0}, s{s_head}, 320
        v_lshl_add_u32 v{vV}, v{T[2]}, 4, v{vV}
        v_add_u32 v{vV}, s{s_t0}, v{vV}
        """)

    def kv_dma(chunk):
        base = KV + ((chunk + 2) % 3) * SLOT
        a(f"""
        s_and_b32 s{s_t0}, s{s_kc}, 7
        s_lshl_b32 s{s_t0}, s{s_t0}, 2
        s_add_u32 s{s_t0}, s{s_t0}, s{s_wj}
        s_lshl_b32 s{s_ko}, s{s_t0}, 10
        s_add_u32 s{s_ko}, s{s_ko}, {C_K * CH}
        s_mul_i32 s{s_vo}, s{s_t0}, 81920
        s_add_u32 s{s_vo}, s{s_vo}, {WS_V}
        s_add_u32 s{s_kc}, s{s_kc}, 1
        s_lshl_b32 s{s_t0}, s{s_wj}, 11
        s_add_u32 m0, s{s_t0}, {base}
        s_lshl_b32 s{s_t1}, s{s_wj}, 10
        buffer_load_dwordx4 v{vK}, {WSD}, s{s_ko} offen sc1 lds
        s_add_u32 m0, s{s_t0}, {base + 512}
        s_mul_i32 s{s_t0}, s{s_wj}, {4 * 656}
        buffer_load_dwordx4 v{vK}, {WSD}, s{s_ko} offen offset:512 sc1 lds
        s_add_u32 m0, s{s_t1}, {base + OFF_R}
        s_nop 0
        buffer_load_dwordx4 v{vR_}, {WSD}, s{s_ko} offen sc1 lds
        s_mov_b32 exec_hi, 0xff
        """)
        for i in range(4):
            a(f"""
            s_add_u32 m0, s{s_t0}, {base + OFF_V + 656 * i}
            s_add_u32 s{s_t1}, s{s_vo}, {20480 * i}
            buffer_load_dwordx4 v{vV}, {WSD}, s{s_t1} offen sc1 lds
            """)
        a("s_mov_b32 exec_hi, -1")

    def ones_addr(dst, first_slot, nslots):
        a(f"""
        v_min_u32 v{dst}, {16 * nslots - 1}, v{vL}
        v_lshrrev_b32 v{T[3]}, 4, v{dst}
        v_and_b32 v{dst}, 15, v{dst}
        v_mul_u32_u24 v{T[3]}, {SLOT}, v{T[3]}
        v_mul_u32_u24 v{dst}, 656, v{dst}
        v_add_u32 v{dst}, v{dst}, v{T[3]}
        v_add_u32 v{dst}, {KV + first_slot * SLOT + OFF_V + 640}, v{dst}
        """)

    def ones_write(addr, tmp):
        for r in range(4):
            a(f"v_mov_b32 v{tmp + r}, 0x3f803f80")
        a(f"ds_write_b128 v{addr}, {vr(tmp, 4)}")

    def set_flag(base):
        a(f"""
        s_lshl_b32 s{s_t0}, s{s_fl}, 7
        s_add_u32 s{s_t0}, s{s_t0}, {base}
        v_lshlrev_b32 v{T[4]}, 2, v{vL}
        v_mov_b32 v{T[3]}, s{s_tag}
        {"s_mov_b32 exec_hi, 0" if cfg["full"] else "s_mov_b64 exec, 1"}
        buffer_store_dword v{T[3]}, v{T[4]}, {WSD}, s{s_t0} offen {FSF}
        s_mov_b64 exec, -1
        """)

    def flag_of_tile(dst, rh, unit):
        a(f"v_lshl_add_u32 v{dst}, v{unit}, 5, {rh}\nv_lshlrev_b32 v{dst}, 7, v{dst}")

    def head_unit(dst, sel):
        a(f"""
        s_mul_i32 s{s_t0}, s{s_head}, 20
        v_mad_u32_u24 v{dst}, v{sel}, 19, s{s_t0}
        v_lshrrev_b32 v{dst}, 6, v{dst}
        """)

    def wait_flags(name, base, offs, rounds=SPIN):
        a(f"""
        s_mov_b32 s{s_t0}, {base}
        s_mov_b32 s{s_spin}, {rounds}
        s_branch {L(name + '_ld')}
        {L(name)}:
        {"s_mov_b64 exec, vcc" if cfg["thin"] > 1 else ""}
        s_sleep {cfg['slp']}
        {L(name + '_ld')}:
        buffer_load_dword v{T[3]}, v{offs[0]}, {WSD}, s{s_t0} offen {PLF}
        """)
        if len(offs) > 1:
            a(f"buffer_load_dword v{T[4]}, v{offs[1]}, {WSD}, s{s_t0} offen {PLF}")
        a(f"s_sub_u32 s{s_spin}, s{s_spin}, 1\ns_waitcnt vmcnt(0)")
        if len(offs) == 1:
            a(f"v_mov_b32 v{T[4]}, v{T[3]}")
        retry(name)
        if cfg["thin"] > 1:
            a("s_mov_b64 exec, -1")

    def retry(name):
        a(f"""
        v_cmp_ne_u32 vcc, s{s_tag}, v{T[3]}
        v_cmp_ne_u32 s[{s_t2}:{s_t2 + 1}], s{s_tag}, v{T[4]}
        s_cmp_eq_u32 s{s_spin}, 0
        s_cbranch_scc1 {L(name + '_done')}
        s_or_b64 vcc, vcc, s[{s_t2}:{s_t2 + 1}]
        s_cbranch_scc1 {L(name)}
        {L(name + '_done')}:
        """)

    def q_addr(vq, vqr):
        a(f"""
        v_and_b32 v{T[0]}, 31, v{vL}
        v_lshrrev_b32 v{T[1]}, 5, v{vL}
        s_lshl_b32 s{s_t0}, s{s_qb}, 2
        s_add_u32 s{s_t0}, s{s_t0}, s{s_wj}
        s_lshl_b32 s{s_t0}, s{s_t0}, 10
        s_lshl_b32 s{s_t1}, s{s_par}, 3
        s_add_u32 s{s_t2}, s{s_t0}, s{s_t1}
        v_lshlrev_b32 v{T[2]}, 4, v{T[0]}
        v_lshl_add_u32 v{vq}, v{T[1]}, 15, v{T[2]}
        v_add_u32 v{vq}, s{s_t0}, v{vq}
        v_add_u32 v{vqr}, s{s_t2}, v{T[2]}
        """)

    eR, eL, eS, hR, hL, hS = 17, 18, 19, 8, 9, 10
    IDX, AK0, AR0, AV0, VQ, VQR, AQ = 20, 21, 22, 23, 24, 25, 26
    AK, AR, AV = 27, 28, 29
    R = Regs(216)
    MX = [R.get(), R.get()]
    Q1 = [R.get(4), R.get(4)]
    Q2 = [[R.get(2), R.get(2)], [R.get(2), R.get(2)]]
    K1 = [R.get(4), R.get(4)]
    K2 = [R.get(2), R.get(2)]
    V0 = [R.get(4), R.get(4)]
    PH = 32
    SS, CM, TS, OO, V1 = [96, 160], [112, 128], 144, [176, 192], [208, 212]

    AC, SO = 72, 80
    a(f"""
    {L('g0')}:
    v_lshlrev_b32 v{SO}, 4, v{T[0]}
    """)
    srd(a, sWS, 22, WS_TOP)
    load_tag()
    frag_addr()
    zero(GA, 128)
    attn_ids()
    tile_addr(hR, hL, hS)
    a(f"""
    v_mov_b32 v{eR}, v{hR}
    v_mov_b32 v{eS}, v{hS}
    s_cmp_lt_u32 s{s_cg}, 10
    s_cbranch_scc1 {L('ad_j')}
    v_lshrrev_b32 v{T[1]}, 4, v{vL}
    s_lshl_b32 s{s_t0}, s{s_t1}, 8
    s_add_u32 s{s_t0}, s{s_t0}, {L_NM}
    v_lshl_add_u32 v{eR}, v{T[1]}, 4, s{s_t0}
    s_lshr_b32 s{s_t2}, s{s_wj}, 1
    s_lshl_b32 s{s_t0}, s{s_t2}, 8
    s_add_u32 s{s_t0}, s{s_t0}, {L_CSA}
    v_lshl_add_u32 v{eL}, v{T[0]}, 2, s{s_t0}
    s_sub_u32 s{s_t0}, s{s_cg}, 10
    s_lshl_b32 s{s_t0}, s{s_t0}, 1
    s_add_u32 s{s_t0}, s{s_t0}, s{s_t2}
    s_lshl_b32 s{s_t0}, s{s_t0}, 10
    v_mul_u32_u24 v{T[1]}, 10240, v{T[1]}
    v_lshl_add_u32 v{T[1]}, v{T[0]}, 4, v{T[1]}
    v_add_u32 v{eS}, s{s_t0}, v{T[1]}
    {L('ad_j')}:
    """)
    q_addr(VQ, VQR)
    a(f"""
    v_mov_b32 v{IDX}, 0xdddddddd
    v_lshlrev_b32 v{AK0}, 4, v{vL}
    s_mul_i32 s{s_t0}, s{s_wj}, 3072
    v_add_u32 v{AQ}, s{s_t0}, v{AK0}
    v_add_u32 v{AK0}, {KV}, v{AK0}
    v_add_u32 v{AR0}, s{s_t1}, v{AK0}
    v_mad_u32_u24 v{T[2]}, v{T[1]}, 20, v{T[0]}
    v_lshlrev_b32 v{T[2]}, 4, v{T[2]}
    v_add_u32 v{T[2]}, {KV}, v{T[2]}
    v_cmp_gt_u32 vcc, 20, v{T[0]}
    v_mov_b32 v{T[4]}, {LDS_OOB}
    v_and_b32 v{T[3]}, 27, v{T[0]}
    v_cndmask_b32 v{T[2]}, v{T[4]}, v{T[2]}, vcc
    v_cmp_eq_u32 vcc, 24, v{T[3]}
    v_mov_b32 v{T[4]}, {KV + 640}
    s_mov_b32 s{s_slot}, {2 * SLOT}
    v_cndmask_b32 v{AV0}, v{T[2]}, v{T[4]}, vcc
    v_add_u32 v{AK}, s{s_slot}, v{AK0}
    v_add_u32 v{AR}, s{s_slot}, v{AR0}
    v_add_u32 v{AV}, s{s_slot}, v{AV0}
    """)
    a(f"""
    s_add_u32 s{s_t0}, s{s_t0}, s{s_t1}
    v_lshl_add_u32 v30, v{T[0]}, 4, s{s_t0}
    v_mov_b32 v31, v30
    s_mov_b32 exec_hi, 0
    v_mov_b32 v31, {LDS_OOB}
    s_not_b64 exec, exec
    v_mov_b32 v30, {LDS_OOB}
    s_mov_b64 exec, -1
    """)
    a("v_mov_b32 v84, 0x3f803f80")
    a(f"""
    s_lshl_b32 s{s_o[2]}, s{s_cg}, 1
    s_lshr_b32 s{s_t0}, s{s_wj}, 1
    s_add_u32 s{s_o[2]}, s{s_o[2]}, s{s_t0}
    s_lshl1_add_u32 s{s_ho}, s{s_cf}, s{s_t0}
    s_lshl_b32 s{s_fl}, s{s_o[2]}, 4
    s_add_u32 s{s_fl}, s{s_fl}, s{s_rb}
    s_lshl_b32 s{s_fl}, s{s_fl}, 1
    s_and_b32 s{s_t0}, s{s_wj}, 1
    s_add_u32 s{s_fl}, s{s_fl}, s{s_t0}
    s_mov_b32 s{s_c}, 0
    s_mov_b32 s{s_ring}, 0
    s_mov_b32 s{s_wstep}, {STG}
    s_waitcnt lgkmcnt(0)
    s_add_u32 s{s_tag}, s{s_tag}, 1
    s_cmp_ge_u32 s{s_wj}, s{s_hook}
    s_cbranch_scc1 {L('st_m')}
    v_mov_b32 v{AC}, 0
    v_mov_b32 v{AC + 2}, 0
    v_mov_b32 v{AC + 1}, s{s_tag}
    v_mov_b32 v{AC + 3}, s{s_tag}
    """)
    for q in range(5):
        a(f"s_waitcnt vmcnt({max(4 - cfg['skip'] - q, 0)})")
        for r in range(SD + 4 * q, SD + 4 * q + 4):
            a(f"v_dot2c_f32_bf16 v{AC}, v{r}, v84\nv_dot2c_f32_bf16 v{AC + 2}, v{r}, v{r}")
    a("s_nop 1")
    for sh in (8, 4, 2, 1):
        a(f"""
        s_nop 0
        v_add_f32_dpp v{AC}, v{AC}, v{AC} row_ror:{sh} row_mask:0xf bank_mask:0xf
        v_add_f32_dpp v{AC + 2}, v{AC + 2}, v{AC + 2} row_ror:{sh} row_mask:0xf bank_mask:0xf
        """)
    a(f"""
    v_mul_f32 v{AC}, {f32(-1.0 / D)}, v{AC}
    v_mul_f32 v{AC + 2}, {f32(1.0 / D)}, v{AC + 2}
    v_fma_f32 v{AC + 2}, -v{AC}, v{AC}, v{AC + 2}
    v_max_f32 v{AC + 2}, 0, v{AC + 2}
    v_add_f32 v{AC + 2}, {f32(1e-5)}, v{AC + 2}
    v_rsq_f32 v{AC + 2}, v{AC + 2}
    s_lshl_b32 s{s_t0}, s{s_wj}, 6
    s_add_u32 s{s_t0}, s{s_t0}, {L_RP}
    v_add_u32 v{T[2]}, s{s_t0}, v{SO}
    s_mov_b32 exec_lo, 0x00010001
    s_mov_b32 exec_hi, 0x00010001
    ds_write_b128 v{T[2]}, {vr(AC, 4)}
    s_mov_b64 exec, -1
    s_waitcnt lgkmcnt(0)
    {L('st_m')}:
    s_cmp_eq_u32 s{s_cg}, 15
    s_cbranch_scc1 {L('a_none')}
    """)
    stamp(a, prof, 1)
    a("s_barrier")
    stamp(a, prof, 2)
    a("\n".join(both(LW, 0, 0)))
    a(f"""
    s_cmp_ge_u32 s{s_cg}, 10
    s_waitcnt lgkmcnt(0)
    s_cbranch_scc0 {L('aN')}
    s_cmp_ge_u32 s{s_ho}, 27
    s_cbranch_scc1 {L('sV')}
    """)

    def lane_stats(dst, addr):
        for tt in range(4):
            a(f"ds_read2_b32 {vr(dst + 2 * tt, 2)}, v{addr} offset0:{16 * tt} offset1:{128 + 16 * tt}")

    def reg_stats(dst, addr, off):
        for i in range(4):
            a(f"ds_read_b128 {vr(dst + 4 * i, 4)}, v{addr} offset:{off + 64 * i}")

    def centre(cs, nr, tt, prs):
        for r, q in prs:
            a(f"v_pk_fma_f32 {vr(r, 2)}, {vr(cs + q, 2)}, {vr(nr + 2 * tt, 2)}, {vr(r, 2)} op_sel:[0,0,0] op_sel_hi:[1,0,1]")

    E0, E1 = 224, 240
    F0, F1, F2 = 96, 112, 128

    def qk_math(tt, prs):
        centre(E0, E1, tt, prs)
        for r, q in prs:
            a(f"v_pk_mul_f32 {vr(r, 2)}, {vr(r, 2)}, {vr(E1 + 2 * tt, 2)} op_sel:[0,1] op_sel_hi:[1,1]")

    def ffn_math(tt, prs):
        centre(F0, F2, tt, prs)
        for r, q in prs:
            a(f"v_pk_fma_f32 {vr(r, 2)}, {vr(r, 2)}, {vr(F2 + 2 * tt, 2)}, {vr(F1 + q, 2)} op_sel:[0,1,0] op_sel_hi:[1,1,1]")
        for r, q in prs:
            a(f"v_max_f32 v{r}, 0, v{r}\nv_max_f32 v{r + 1}, 0, v{r + 1}")
        for r, q in prs:
            a(f"v_pk_mul_f32 {vr(r, 2)}, {vr(r, 2)}, {vr(r, 2)}")

    CV = T[2]

    def twice(name, sw, fetch):
        single(name, LW, GA, sw, True, 9)
        a(f"s_cmp_eq_u32 s{s_c}, 10\ns_cbranch_scc1 {L(name + 'e')}")
        fetch()
        a(f"s_branch {L(name)}\n{L(name + 'e')}:")

    def v_stats():
        a(f"ds_read2_b32 {vr(CV, 2)}, v{eL} offset0:0 offset1:16\nds_read2_b32 {vr(CV + 2, 2)}, v{eL} offset0:32 offset1:48")
        reg_stats(E0, eR, 0)
        reg_stats(E1, eR, 512)

    joint("jV", True)
    twice("sV", True, v_stats)
    a(f"""
    s_and_b32 s{s_t1}, s{s_wj}, 1
    s_lshl_b32 s{s_t0}, s{s_rb}, 1
    s_add_u32 s{s_t0}, s{s_t0}, s{s_t1}
    s_mul_i32 s{s_o[0]}, s{s_t0}, 81920
    s_add_u32 s{s_o[0]}, s{s_o[0]}, {WS_V}
    s_add_u32 s{s_o[1]}, s{s_o[0]}, 40960
    """)
    a("\n".join(wreads(LF, 0, 0)))
    stamp(a, prof, 3)
    for kt in range(2):
        for ci in range(4):
            ob = 88 + 4 * (ci & 1)
            prs = [(gacc(tt, ci) + i, 4 * tt + i) for tt in (2 * kt, 2 * kt + 1) for i in (0, 2)]
            for r, q in prs:
                a(f"v_pk_fma_f32 {vr(r, 2)}, {vr(E0 + q, 2)}, {vr(CV + (ci & 2), 2)}, {vr(r, 2)} op_sel:[0,{ci & 1},0] op_sel_hi:[1,{ci & 1},1]")
            for r, q in prs:
                a(f"v_pk_mul_f32 {vr(r, 2)}, {vr(r, 2)}, {vr(E1 + q, 2)}")
            for p in range(4):
                a(f"v_cvt_pk_bf16_f32 v{ob + p}, v{prs[p][0]}, v{prs[p][0] + 1}")
            a(put_piece(ob, eS, kt, ci))
    a(f"""
    s_cmp_ge_u32 s{s_ho}, 27
    s_cbranch_scc0 {L('a_done')}
    {L('a_only')}:
    s_barrier
    s_waitcnt vmcnt(0) lgkmcnt(0)
    """)
    set_flag(WS_FA)
    a(f"""
    s_barrier
    {L('a_none')}:
    s_mov_b32 s{s_o[0]}, {WS_TOP}
    s_mov_b32 s{s_o[1]}, {WS_TOP}
    s_branch {L('a_go')}
    """)
    a(f"{L('aN')}:\ns_cmp_ge_u32 s{s_ho}, 27\ns_cbranch_scc1 {L('sN')}")
    joint("jN", False)
    twice("sN", False, lambda: (reg_stats(E0, eR, L_CSA - L_NM), lane_stats(E1, hL)))
    a(f"""
    s_lshl_b32 s{s_o[0]}, s{s_o[2]}, 18
    s_add_u32 s{s_o[1]}, s{s_o[0]}, {4 * CH}
    s_cmp_lt_u32 s{s_cg}, 5
    s_cselect_b32 s{s_t0}, {QSCALE}, 1.0
    """)
    a("\n".join(wreads(LF, 0, 0)))
    stamp(a, prof, 3)
    for tt in range(4):
        a(f"v_mul_f32 v{E1 + 2 * tt + 1}, s{s_t0}, v{E1 + 2 * tt + 1}")
    pack_tiles(GA, qk_math, lambda cp, tt: 248 + 4 * cp, eS)
    a(f"s_cmp_ge_u32 s{s_ho}, 27\ns_cbranch_scc1 {L('a_only')}\n{L('a_done')}:")
    stamp(a, prof, 4)
    a("s_waitcnt lgkmcnt(0)\ns_barrier")
    single("sF", LF, GB, False, False, 0)
    a(f"""
    s_cmp_eq_u32 s{s_c}, 13
    s_cbranch_scc1 {L('eF')}
    s_cmp_eq_u32 s{s_c}, 12
    s_cbranch_scc1 {L('hF')}
    """)
    reg_stats(F0, hR, L_CSB - L_NM)
    reg_stats(F1, hR, L_BI - L_NM)
    lane_stats(F2, hL)

    def hand_over():
        a("s_waitcnt vmcnt(0)")
        set_flag(WS_FA)
        stamp(a, prof, 5)

    if cfg["flag"] == 2:
        hand_over()
    a(f"s_branch {L('sF')}\n{L('hF')}:")
    if cfg["flag"] == 1:
        hand_over()
    a(f"s_barrier\ns_branch {L('sF')}\n{L('eF')}:")
    stamp(a, prof, 12)
    pack_tiles(GB, ffn_math, lambda cp, tt: PH + 16 * cp + 4 * tt)
    a(f"""
    s_add_u32 s{s_o[0]}, s{s_ho}, 20
    s_lshl_b32 s{s_o[0]}, s{s_o[0]}, 18
    s_add_u32 s{s_o[1]}, s{s_o[0]}, {4 * CH}
    {L('a_go')}:
    s_and_b32 s{s_fl}, s{s_fl}, 31
    s_lshl_b32 s{s_t0}, s{s_ho}, 5
    s_add_u32 s{s_fl}, s{s_fl}, s{s_t0}
    s_setprio 1
    s_mov_b32 s{s_c}, 0
    """)
    zero(SS[1], 16 + 32 + 8)
    stamp(a, prof, 13)
    hput = [put_piece(PH + 4 * k, hS, k >> 2, k & 3) for k in range(8)]
    if cfg["hpos"] == 0:
        a("s_barrier")
        stamp(a, prof, 18)
        a("\n".join(hput))
        stamp(a, prof, 19)
        hput = [""] * 8
    a("s_barrier")
    stamp(a, prof, 6)
    for ab in range(2):
        a(f"ds_read_b128 {vr(Q1[ab], 4)}, v{AQ} offset:{L_Q + 1024 * ab}")
        for par in range(2):
            a(f"ds_read_b64 {vr(Q2[ab][par], 2)}, v{30 + par} offset:{L_Q + 2048 + 512 * ab}")

    def rdK1(t):
        return f"ds_read_b128 {vr(K1[t & 1], 4)}, v{AK} offset:{(t & 7) * 1024}"

    def rdK2(p):
        return f"ds_read_b64 {vr(K2[p & 1], 2)}, v{AR} offset:{OFF_R + (p & 3) * 1024}"

    def rdV(j, t):
        return f"ds_read_b128 {vr((V0, V1)[j][t & 1], 4)}, v{AV} offset:{OFF_V + ((t & 7) * 2 + j) * 656}"

    def qk1(dst, ab, t, c):
        return f"v_mfma_f32_32x32x16_bf16 {vr(dst, 16)}, {vr(K1[t & 1], 4)}, {vr(Q1[ab], 4)}, {c}"

    def qk2(dst, ab, t):
        return f"v_mfma_f32_32x32x8_bf16 {vr(dst, 16)}, {vr(K2[(t >> 1) & 1], 2)}, {vr(Q2[ab][t & 1], 2)}, {vr(dst, 16)}"

    def pv(ab, j, t):
        return f"v_smfmac_f32_32x32x32_bf16 {vr(OO[ab], 16)}, {vr((V0, V1)[j][t & 1], 4)}, {vr(SS[ab] + 8 * j, 8)}, v{IDX}"

    def row_max(dst, bufs):
        regs = [b + i for b in bufs for i in range(16)]
        a(f"v_max3_f32 v{dst}, v{regs[0]}, v{regs[1]}, v{regs[2]}")
        rest = regs[3:]
        while len(rest) >= 2:
            a(f"v_max3_f32 v{dst}, v{dst}, v{rest[0]}, v{rest[1]}")
            rest = rest[2:]
        if rest:
            a(f"v_max_f32 v{dst}, v{dst}, v{rest[0]}")

    def set_shift(ab, shift):
        m = MX[ab]
        a(f"""
        v_mov_b32 v{T[2]}, v{m}
        s_nop 1
        v_permlane32_swap_b32 v{m}, v{T[2]}
        v_max_f32 v{m}, v{m}, v{T[2]}
        v_sub_f32 v{CM[ab]}, {f32(-shift) if shift else 0}, v{m}
        v_mov_b32 v{CM[ab] + 1}, v{CM[ab]}
        """)
        for i in range(2, 16, 2):
            a(f"v_mov_b64 {vr(CM[ab] + i, 2)}, {vr(CM[ab], 2)}")

    a("\n".join([rdK1(0), rdK2(0), rdK1(1), rdV(0, 0), rdV(1, 0)]))
    a("s_waitcnt lgkmcnt(0)" if prof is True else "s_waitcnt lgkmcnt(2)")
    est = {(0, 0): SS[0], (0, 1): CM[0], (1, 0): TS, (1, 1): CM[1]}
    for t in range(2):
        a(qk1(est[0, t], 0, t, 0) + "\n" + qk2(est[0, t], 0, t))
    a(qk1(est[1, 0], 1, 0, 0) + "\ns_nop 7\ns_nop 0")
    work = capture(lambda: (row_max(MX[0], [SS[0], CM[0]]), set_shift(0, SHIFT)))
    for k, x in enumerate((qk2(est[1, 0], 1, 0), qk1(est[1, 1], 1, 1, 0), qk2(est[1, 1], 1, 1))):
        a(x + "\n" + "\n".join(work[6 * k:6 * k + 6]))
    a("\n".join(work[18:]) + "\ns_nop 1")
    work = capture(lambda: (row_max(MX[1], [TS, CM[1]]), set_shift(1, SHIFT)))
    a(qk1(SS[0], 0, 0, vr(CM[0], 16)) + "\n" + "\n".join(work[:7]))
    a(qk2(SS[0], 0, 0) + "\n" + "\n".join(work[7:]))
    a("s_waitcnt lgkmcnt(0)")

    PA = cfg["pa"]

    def slot_events(ab, t):
        o = 1 - ab
        tp = t - 1 if ab == 0 else t
        tn = t if ab == 0 else t + 1
        e = [("i", f"v_exp_f32 v{SS[ab] + i}, v{SS[ab] + i}") for i in range(16)]
        ev = []
        if ab == 0 and t % 8 == 7:
            ev += [("i", f"v_add_u32 v{AV}, s{s_slot}, v{AV0}")]
        ev += e[0:2]
        ev += [("use", ("V1", tp)), ("i", pv(o, 1, tp)), ("wait",)]
        if ab == 1 and t % 8 == cfg["hk"]:
            ev += [("l", f"s_cmp_eq_u32 s{s_c}, {1 if cfg['hpos'] else 0}")]
        if ab == 0 and t % 8 == 6:
            ev += [("i", "s_barrier")]
        if ab == 0 and t % 8 == 4:
            ev += [("i", f"s_add_u32 s{s_slot}, s{s_slot}, {SLOT}")]
        if ab == 1 and t % 8 == 4:
            ev += [("i", f"s_cmp_eq_u32 s{s_slot}, {3 * SLOT}")]
        if ab == 1 and t % 8 == 6:
            ev += [("i", f"s_add_u32 s{s_c}, s{s_c}, 1")]
        if ab == 0:
            ev += [("rd", rdV(1, t + 1), ("V1", t + 1))]
        ev += e[2:5]
        if ab == 0 and t % 8 == 6:
            ev += [("i", f"v_add_u32 v{AK}, s{s_slot}, v{AK0}"), ("i", f"v_add_u32 v{AR}, s{s_slot}, v{AR0}")]
        ev += [("use", ("K1", tn)), ("i", qk1(SS[o], o, tn, vr(CM[o], 16))), ("wait",)]
        if ab == 0:
            ev += [("rd", rdK1(t + 2), ("K1", t + 2))]
        else:
            ev += [("rd", rdV(0, t + 1), ("V0", t + 1))]
        ev += e[5:8]
        ev += [("use", ("K2", tn >> 1)), ("i", qk2(SS[o], o, tn))]
        ev += e[8:PA]
        ev += [("use", ("V0", t)), ("i", pv(ab, 0, t)), ("wait",)]
        if ab == 1 and t % 8 == 4:
            ev += [("i", f"s_cselect_b32 s{s_slot}, 0, s{s_slot}")]
        if ab == 1 and t % 8 == cfg["hk"]:
            ev += [("l", f"s_cbranch_scc1 {L('hk')}\n{L('hk_r')}:")]
        if ab == 0:
            ev += [("p", hput[t % 8])]
        if ab == 1 and t % 8 == 7:
            ev += [("i", f"s_cmp_lt_u32 s{s_c}, 8")]
        if ab == 1 and t % 2 == 0:
            ev += [("rd", rdK2(t // 2 + 1), ("K2", t // 2 + 1))]
        ev += e[PA:16]
        return ev

    evs = []
    for t in range(24):
        for ab in range(2):
            evs += [(t, x) for x in slot_events(ab, t)]
    issue_idx = {}
    n = 0
    for t, x in evs:
        if x[0] == "rd":
            issue_idx[x[2]] = n
            n += 1
    tail4 = "\n".join(f"v_exp_f32 v{SS[1] + i}, v{SS[1] + i}" for i in range(PA, 16))

    def trip(kind):
        n, have = 0, -1
        for k, (t, x) in enumerate(evs):
            emit = 8 <= t < 16
            if x[0] == "rd":
                n += 1
                if emit:
                    a(x[1])
            elif x[0] in ("i", kind):
                if emit:
                    a(x[1])
            elif x[0] == "wait" and t >= 4:
                need = -1
                for t2, y in evs[k + 1:]:
                    if y[0] == "wait":
                        break
                    if y[0] == "use":
                        assert issue_idx[y[1]] < n, (t, y)
                        need = max(need, issue_idx[y[1]])
                if need > have and emit:
                    a(f"s_waitcnt lgkmcnt({n - 1 - need})")
                have = max(have, need)
        del a.lines[PA - 16:]
        if 0 < cfg.get("trace", 0) < 4:
            stamp(a, prof, 23)
            a("s_waitcnt lgkmcnt(0)")

    if cfg["hpos"]:
        trip("p")
        a(f".p2align 3\n{L('aloop')}:\n{tail4}")
    else:
        a(f"s_branch {L('aent')}\n.p2align 3\n{L('aloop')}:\n{tail4}\n{L('aent')}:")
    trip("l")
    a(f"s_cbranch_scc1 {L('aloop')}")
    a(tail4)

    def magnitude(ab):
        o, t = OO[ab], T[2 + ab]
        a(f"v_maximum3_f32 v{t}, |v{o}|, |v{o + 1}|, |v{o + 2}|")
        for i in (3, 5, 7, 9):
            a(f"v_maximum3_f32 v{t}, v{t}, |v{o + i}|, |v{o + i + 1}|")
        a(f"v_maximum3_f32 v{t}, v{t}, |v{o + 11}|, |v{o + 11}|")

    def normalise(ab, guard):
        o = OO[ab]
        for p in range(6):
            a(f"v_pk_mul_f32 {vr(o + 2 * p, 2)}, {vr(o + 2 * p, 2)}, {vr(o + 12, 2)} op_sel:[0,1] op_sel_hi:[1,1]")
        for p in range(6):
            a(f"v_cvt_pk_bf16_f32 v{CM[ab] + p}, v{o + 2 * p}, v{o + 2 * p + 1}")
        if guard:
            for p in (1, 3, 5):
                a(f"v_min_u32 v{CM[ab] + p}, -2, v{CM[ab] + p}")

    a(f"v_rcp_f32 v{OO[0] + 13}, v{OO[0] + 12}\ns_waitcnt lgkmcnt(0)")
    a(pv(1, 1, 7))
    stamp(a, prof, 7)
    a(f"""
    s_barrier
    s_mov_b32 s{s_t0}, {f32(2.0 ** 126)}
    s_mov_b32 s{s_t1}, {f32(2.0 ** (-7 - SHIFT))}
    """)
    magnitude(0)
    normalise(0, False)
    a(f"v_rcp_f32 v{OO[1] + 13}, v{OO[1] + 12}")
    magnitude(1)
    a(f"""
    v_maximum3_f32 v{T[4]}, v{T[2]}, v{T[3]}, v{OO[0] + 12}
    v_min_f32 v{T[2]}, v{T[2]}, v{T[3]}
    v_maximum3_f32 v{T[4]}, v{T[4]}, v{OO[1] + 12}, v{OO[1] + 12}
    v_cmp_le_f32 vcc, s{s_t1}, v{T[2]}
    v_cmp_gt_f32 s[{s_t2}:{s_t2 + 1}], s{s_t0}, v{T[4]}
    s_add_u32 s{s_t0}, s{s_cm}, {C_O * CH}
    s_add_u32 s{s_t1}, s{s_cr}, {C_O * CH}
    s_and_b64 vcc, vcc, s[{s_t2}:{s_t2 + 1}]
    s_cmp_eq_u64 vcc, exec
    """)
    a(f"s_branch {L('slow')}" if force_fallback else f"s_cbranch_scc0 {L('slow')}")

    def put_out(ab):
        a(f"""
        buffer_store_dwordx4 {vr(CM[ab], 4)}, v{VQ}, {WSD}, s{s_t0} offen offset:{512 * ab} sc1
        s_mov_b32 exec_hi, 0
        buffer_store_dwordx2 {vr(CM[ab] + 4, 2)}, v{VQR}, {WSD}, s{s_t1} offen offset:{512 * ab} sc1
        s_mov_b32 exec_hi, -1
        """)

    put_out(0)
    normalise(1, False)
    a(f"{L('norm')}:")
    put_out(1)
    stamp(a, prof, 17)
    a("s_barrier")
    stamp(a, prof, 8)
    a(f"s_branch {L('dump')}" if prof else "s_endpgm")

    a(f"{L('hk')}:\ns_waitcnt vmcnt(0)")
    set_flag(WS_FH)
    a(f"s_branch {L('hk_r')}")

    a(f"{L('slow')}:")
    GR, GV = AR, AV
    a(f"v_and_b32 v{T[0]}, 31, v{vL}\nv_lshrrev_b32 v{T[1]}, 5, v{vL}")
    key_perm(T[2], T[0], T[3], T[4])
    a(f"""
    s_lshl_b32 s{s_t0}, s{s_par}, 3
    s_add_u32 s{s_t0}, s{s_t0}, s{s_cr}
    v_lshl_add_u32 v{GR}, v{T[2]}, 4, s{s_t0}
    v_lshl_add_u32 v{vK}, v{T[2]}, 4, s{s_cm}
    v_lshl_add_u32 v{vK}, v{T[1]}, 15, v{vK}
    """)
    v_feature(T[2], T[0], T[3], T[4])
    a(f"""
    s_mul_i32 s{s_t0}, s{s_head}, 320
    v_mul_u32_u24 v{T[4]}, 10240, v{T[1]}
    v_lshl_add_u32 v{T[2]}, v{T[2]}, 4, v{T[4]}
    v_add_u32 v{GV}, s{s_t0}, v{T[2]}
    v_mov_b32 v{MX[0]}, 0xff800000
    v_mov_b32 v{MX[1]}, 0xff800000
    s_mov_b32 s{s_ko}, {C_K * CH}
    {L('slow1')}:
    buffer_load_dwordx4 {vr(K1[0], 4)}, v{vK}, {WSD}, s{s_ko} offen sc1
    buffer_load_dwordx2 {vr(K2[0], 2)}, v{GR}, {WSD}, s{s_ko} offen sc1
    s_add_u32 s{s_ko}, s{s_ko}, 512
    s_waitcnt vmcnt(0)
    """)
    for ab in range(2):
        a(qk1(SS[ab], ab, 0, 0))
        a(qk2(SS[ab], ab, 0))
    a("s_nop 7\ns_nop 3")
    for ab in range(2):
        for i in range(0, 16, 2):
            a(f"v_max3_f32 v{MX[ab]}, v{MX[ab]}, v{SS[ab] + i}, v{SS[ab] + i + 1}")
    a(f"s_cmp_lt_u32 s{s_ko}, {(C_K + 1) * CH}\ns_cbranch_scc1 {L('slow1')}")
    for ab in range(2):
        set_shift(ab, 0)
    zero(OO[0], 32)
    for r in range(4):
        a(f"v_mov_b32 v{V0[0] + r}, 0x3f803f80\nv_mov_b32 v{V1[0] + r}, 0x3f803f80")
    a(f"""
    s_mov_b32 s{s_ko}, {C_K * CH}
    s_mov_b32 s{s_vo}, {WS_V}
    {L('slow2')}:
    buffer_load_dwordx4 {vr(K1[0], 4)}, v{vK}, {WSD}, s{s_ko} offen sc1
    buffer_load_dwordx2 {vr(K2[0], 2)}, v{GR}, {WSD}, s{s_ko} offen sc1
    s_mov_b32 exec_lo, 0xfffff
    s_mov_b32 exec_hi, 0xfffff
    buffer_load_dwordx4 {vr(V0[0], 4)}, v{GV}, {WSD}, s{s_vo} offen sc1
    s_add_u32 s{s_vo}, s{s_vo}, 20480
    buffer_load_dwordx4 {vr(V1[0], 4)}, v{GV}, {WSD}, s{s_vo} offen sc1
    s_mov_b64 exec, -1
    s_add_u32 s{s_vo}, s{s_vo}, 20480
    s_add_u32 s{s_ko}, s{s_ko}, 512
    s_waitcnt vmcnt(0)
    """)
    for ab in range(2):
        a(qk1(SS[ab], ab, 0, vr(CM[ab], 16)))
        a(qk2(SS[ab], ab, 0))
    a("s_nop 7\ns_nop 3")
    for ab in range(2):
        for i in range(16):
            a(f"v_exp_f32 v{SS[ab] + i}, v{SS[ab] + i}")
    a("s_nop 1")
    for ab in range(2):
        a(pv(ab, 0, 0))
        a(pv(ab, 1, 0))
    a(f"""
    s_cmp_lt_u32 s{s_ko}, {(C_K + 1) * CH}
    s_cbranch_scc1 {L('slow2')}
    s_nop 7
    s_nop 3
    v_rcp_f32 v{OO[0] + 13}, v{OO[0] + 12}
    v_rcp_f32 v{OO[1] + 13}, v{OO[1] + 12}
    s_add_u32 s{s_t0}, s{s_cm}, {C_O * CH}
    s_add_u32 s{s_t1}, s{s_cr}, {C_O * CH}
    """)
    normalise(0, True)
    normalise(1, True)
    put_out(0)
    a(f"s_branch {L('norm')}")

    a(f"""
    {L('near')}:
    s_lshl_b32 s{s_t0}, s{s_rb}, 3
    s_add_u32 s{s_t0}, s{s_t0}, s{s_w}
    """)
    if cfg["nf"]:
        a(f"""
        s_mul_i32 s{s_t1}, s{s_t0}, {26 * 128}
        s_add_u32 s{s_t1}, s{s_t1}, {WS_FA}
        v_lshlrev_b32 v{T[2]}, 7, v{vL}
        s_mov_b64 s[{sA}:{sA + 1}], s[22:23]
        s_mov_b32 s{sA + 2}, {WS_TOP}
        s_mov_b64 exec, 0x3ffffff
        buffer_load_dword v95, v{T[2]}, s[{sA}:{sA + 3}], s{s_t1} offen {("", "", "nt")[cfg["nf"]]}
        s_mov_b64 exec, -1
        """)
    a(f"""
    s_mul_i32 s{s_t1}, s{s_t0}, {135 * 128}
    s_mul_i32 s{s_t0}, s{s_t0}, {50 * 128}
    """)
    if cfg["skip"]:
        a(f"""
        s_lshl_b32 s{s_t2}, s{s_rb}, 3
        s_add_u32 s{s_t2}, s{s_t2}, s{s_w}
        s_mul_i32 s{s_wo}, s{s_t2}, {16 * 1280}
        s_add_u32 s{s_wo}, s{s_wo}, 512
        v_mul_u32_u24 v{T[2]}, 640, v{vL}
        s_mov_b64 s[{sA}:{sA + 1}], s[4:5]
        s_mov_b32 s{sA + 2}, {S * D * 2}
        s_mov_b32 exec_hi, 0
        buffer_load_dword v92, v{T[2]}, s[{sA}:{sA + 3}], s{s_wo} offen
        v_lshlrev_b32 v{T[2]}, 7, v{vL}
        s_lshr_b32 s{s_wo}, s{s_t2}, 6
        s_lshl_b32 s{s_wo}, s{s_wo}, 8
        s_add_u32 s{s_t2}, s{s_t2}, s{s_wo}
        s_add_u32 s{s_t2}, s{s_t2}, 256
        s_mul_i32 s{s_wo}, s{s_t2}, 3840
        s_mov_b64 s[{sA}:{sA + 1}], s[6:7]
        s_mov_b32 s{sA + 2}, {D * 3 * D * 2}
        s_mov_b32 exec_lo, 0x3fffffff
        buffer_load_dword v93, v{T[2]}, s[{sA}:{sA + 3}], s{s_wo} offen
        s_mul_i32 s{s_wo}, s{s_t2}, 3456
        s_mov_b64 s[{sA}:{sA + 1}], s[12:13]
        s_mov_b32 s{sA + 2}, {D * F * 2}
        s_mov_b32 exec_lo, 0x7ffffff
        buffer_load_dword v94, v{T[2]}, s[{sA}:{sA + 3}], s{s_wo} offen
        s_mov_b64 exec, -1
        s_barrier
        """)
    a(f"""
    v_lshlrev_b32 v{T[2]}, 7, v{vL}
    s_mov_b64 s[{sA}:{sA + 1}], s[16:17]
    s_mov_b32 s{sA + 2}, {F * D * 2}
    s_mov_b32 exec_hi, 0x1fff
    """)
    for i in range(3):
        a(f"buffer_load_dword v{88 + i}, v{T[2]}, s[{sA}:{sA + 3}], s{s_t1} offen\ns_add_u32 s{s_t1}, s{s_t1}, {45 * 128}")
    a(f"""
    s_mov_b64 s[{sA}:{sA + 1}], s[8:9]
    s_mov_b32 s{sA + 2}, {D * D * 2}
    s_mov_b32 exec_hi, 0x3ffff
    buffer_load_dword v91, v{T[2]}, s[{sA}:{sA + 3}], s{s_t0} offen
    s_mov_b32 exec_hi, -1
    s_branch {L('p_go')}
    """)

    g0_lines, a.lines = a.lines, []
    MK, G = 240, 96
    VX, VW, VG = [11, 12, 13, 14], [15, 16, 17, 18], [19, 20, 21, 22]
    gR, gL, gA, gB = 24, 25, 26, 27
    fC, mQ, mQR, mQD, fB, FK, FO, one, pH, pO = range(246, 256)

    def w_addr(VF, stride, grp):
        a(f"""
        v_lshrrev_b32 v{T[0]}, 4, v{vL}
        v_lshlrev_b32 v{T[1]}, 1, v{T[0]}
        v_xor_b32 v{T[1]}, v{T[1]}, v{vL}
        v_and_b32 v{T[1]}, 15, v{T[1]}
        s_lshl_b32 s{s_t1}, s{grp}, 8
        s_mul_i32 s{s_t0}, s{s_wj}, {16 * stride}
        s_add_u32 s{s_t1}, s{s_t1}, s{s_t0}
        v_mul_u32_u24 v{T[0]}, {stride}, v{T[0]}
        v_add_u32 v{T[0]}, s{s_t1}, v{T[0]}
        v_lshl_add_u32 v{VF[0]}, v{T[1]}, 4, v{T[0]}
        v_xor_b32 v{T[1]}, 8, v{T[1]}
        v_lshl_add_u32 v{VF[2]}, v{T[1]}, 4, v{T[0]}
        v_add_u32 v{VF[1]}, {4 * stride - 1024}, v{VF[0]}
        v_add_u32 v{VF[3]}, {3 * (4 * stride - 1024)}, v{VF[2]}
        v_add_u32 v{VF[2]}, {2 * (4 * stride - 1024)}, v{VF[2]}
        """)

    TF, TA, TV = 32, [52, 53], [54, 55, 56, 57, 58]
    has_block = f"s_cmp_lt_u32 s{s_tt}, 74"

    def block_addr():
        a(f"""
        s_and_b32 s{s_tt}, s2, 31
        s_lshl_b32 s{s_t0}, s{s_wj}, 5
        s_add_u32 s{s_tt}, s{s_tt}, s{s_t0}
        s_mul_i32 s{s_c}, s{s_wj}, 5120
        s_add_u32 s{s_c}, s{s_c}, {STG + LW}
        """)
        for i in range(5):
            a(f"""
            v_add_u32 v{T[2]}, {64 * i}, v{vL}
            v_mul_u32_u24 v{T[3]}, 6554, v{T[2]}
            v_lshrrev_b32 v{T[3]}, 16, v{T[3]}
            v_mul_u32_u24 v{T[3]}, {1280 - 160}, v{T[3]}
            v_lshl_add_u32 v{TV[i]}, v{T[2]}, 4, v{T[3]}
            """)
        a(f"""
        v_lshrrev_b32 v{T[2]}, 4, v{vL}
        v_bfe_u32 v{T[3]}, v{vL}, 2, 2
        v_lshl_add_u32 v{T[2]}, v{T[2]}, 3, v{T[3]}
        v_mul_u32_u24 v{T[2]}, 160, v{T[2]}
        v_add_u32 v{T[2]}, s{s_c}, v{T[2]}
        v_and_b32 v{T[3]}, 3, v{vL}
        v_lshl_add_u32 v{TA[0]}, v{T[3]}, 4, v{T[2]}
        v_lshl_add_u32 v{TA[1]}, v{T[3]}, 3, v{T[2]}
        """)

    def block_fetch():
        a(f"""
        s_cmp_lt_u32 s{s_tt}, 54
        s_cselect_b64 s[{sA}:{sA + 1}], s[16:17], s[8:9]
        s_mov_b32 s{sA + 2}, {F * D * 2}
        s_cselect_b32 s{sA + 2}, s{sA + 2}, {D * D * 2}
        s_cselect_b32 s{s_t1}, 0, 54
        s_sub_u32 s{s_t0}, s{s_tt}, s{s_t1}
        s_mul_i32 s{s_t0}, s{s_t0}, {32 * 1280}
        s_mul_i32 s{s_t1}, s{s_qb}, 160
        s_add_u32 s{s_t0}, s{s_t0}, s{s_t1}
        """)
        for i in range(5):
            a(f"s_add_u32 m0, s{s_c}, {i * 1024}\ns_nop 0")
            a(f"buffer_load_dwordx4 v{TV[i]}, s[{sA}:{sA + 3}], s{s_t0} offen lds")

    def block_turn():
        a("s_waitcnt vmcnt(0)")
        for c in range(5):
            va, off = (TA[0], 64 * (c >> 1) + 8 * (c & 1)) if c < 4 else (TA[1], 128)
            for h in range(2):
                a(f"ds_read_b64_tr_b16 {vr(TF + 4 * c + 2 * h, 2)}, v{va} offset:{off + 640 * h}")
        a("s_waitcnt lgkmcnt(0)")

    def block_put():
        a(f"""
        s_mul_i32 s{s_t0}, s{s_tt}, {KS_ROW}
        s_mul_i32 s{s_t1}, s{s_qb}, 5120
        s_add_u32 s{s_t0}, s{s_t0}, s{s_t1}
        s_add_u32 s{s_t0}, s{s_t0}, {WS_WT}
        s_add_u32 s{s_t1}, s{s_t0}, 4096
        v_lshlrev_b32 v{T[2]}, 4, v{vL}
        """)
        for c in range(5):
            a(f"buffer_store_dwordx4 {vr(TF + 4 * c, 4)}, v{T[2]}, {WSD}, s{(s_t0, s_t1)[c >> 2]} offen offset:{1024 * (c & 3)} sc1")

    def later_addr():
        attn_ids()
        block_addr()
        kv_addr(0)
        ones_addr(one, 0, 3)
        a(f"v_and_b32 v{T[0]}, 1, v{vL}")
        head_unit(T[1], T[0])
        a(f"""
        v_lshrrev_b32 v{T[0]}, 1, v{vL}
        v_min_u32 v{T[0]}, 2, v{T[0]}
        v_mad_u32_u24 v{T[1]}, v{T[0]}, 10, v{T[1]}
        v_mov_b32 v{T[2]}, s{s_kc}
        s_mov_b64 exec, 3
        v_mov_b32 v{T[2]}, s{s_qb}
        s_mov_b64 exec, -1
        v_lshl_add_u32 v{T[2]}, v{T[2]}, 2, s{s_wj}
        """)
        flag_of_tile(FO, f"v{T[2]}", T[1])
        a(f"v_and_b32 v{T[0]}, 1, v{vL}")
        head_unit(T[1], T[0])
        a(f"""
        v_bfe_u32 v{T[0]}, v{vL}, 1, 1
        v_mad_u32_u24 v{T[1]}, v{T[0]}, 10, v{T[1]}
        v_add_u32 v{T[1]}, 10, v{T[1]}
        v_and_b32 v{T[0]}, 28, v{vL}
        v_add_u32 v{T[0]}, s{s_wj}, v{T[0]}
        """)
        flag_of_tile(FK, f"v{T[0]}", T[1])
        q_addr(mQ, mQR)
        a(f"""
        v_lshl_add_u32 v{mQD}, v{vL}, 4, s{s_t0}
        s_lshl_b32 s{s_t0}, s{s_head}, 2
        s_add_u32 s{s_t0}, s{s_t0}, s{s_wj}
        v_and_b32 v{T[2]}, 15, v{vL}
        v_lshl_add_u32 v{T[2]}, s{s_t0}, 4, v{T[2]}
        v_lshrrev_b32 v{T[3]}, 4, v{vL}
        v_lshlrev_b32 v{pH}, 15, v{T[3]}
        v_lshl_add_u32 v{pH}, v{T[2]}, 4, v{pH}
        v_mul_u32_u24 v{pO}, 1280, v{T[2]}
        """)
        a(f"""
        v_min_u32 v{T[3]}, 26, v{T[0]}
        v_lshl_add_u32 v{fC}, v{T[3]}, 5, s{s_head}
        v_lshl_add_u32 v{T[3]}, v{T[0]}, 2, s{s_wj}
        v_min_u32 v{T[3]}, 53, v{T[3]}
        v_subrev_u32 v{T[4]}, 16, v{T[0]}
        v_min_u32 v{T[4]}, 4, v{T[4]}
        v_lshl_add_u32 v{T[4]}, v{T[4]}, 2, s{s_wj}
        s_lshl_b32 s{s_t0}, s{s_qb}, 7
        s_add_u32 s{s_t0}, s{s_t0}, 1024
        s_add_u32 s{s_fl}, s{s_t0}, s{s_tt}
        s_add_u32 s{s_t1}, s{s_t0}, 54
        s_mov_b32 exec_lo, 0
        v_add_u32 v{fC}, s{s_t0}, v{T[3]}
        s_mov_b32 exec_hi, 0xffff0000
        v_add_u32 v{fC}, s{s_t1}, v{T[4]}
        s_mov_b64 exec, -1
        v_lshlrev_b32 v{fC}, 7, v{fC}
        s_lshr_b32 s{s_t0}, s{s_head}, 2
        v_lshl_add_u32 v{fB}, s{s_t0}, 5, v{T[0]}
        s_andn2_b32 s{s_t0}, s2, 8
        s_mov_b32 exec_lo, 0
        v_mov_b32 v{fB}, s{s_t0}
        s_cmp_eq_u32 s2, 0
        s_cselect_b64 exec, -1, 0
        v_lshl_add_u32 v{fB}, s{s_wj}, 6, v{vL}
        s_mov_b64 exec, -1
        v_lshlrev_b32 v{fB}, 7, v{fB}
        """)

    def boundary(wait=None):
        if wait is not None:
            a(f"s_waitcnt vmcnt({wait})")
        if 1 < cfg.get("trace", 0) < 4:
            stamp(a, prof, 21)
        a("s_barrier")

    def ask_tag():
        srd(a, sWS, 22, WS_TOP)
        load_tag()

    def take_tag():
        a(f"s_waitcnt lgkmcnt(0)\ns_add_u32 s{s_tag}, s{s_tag}, 1")

    def split(ops, n):
        k = -(-len(ops) // n)
        return [ops[i * k:(i + 1) * k] for i in range(n)]

    def feed(c, which="xwf", mix=()):
        mix = list(mix)
        per = -(-len(mix) // max(4 * len(which), 1))
        for key, part, va, sd, step in (("x", LX, VX, sX, 128), ("w", LW, VW, sW, 64 * 3840), ("f", LF, VG, sB, 64 * 3456)):
            if key in which:
                half = {"x": s_xo, "w": s_wstep, "f": s_ho}[key]
                a(f"s_add_u32 m0, s{s_ring}, {(c % 3) * STG + part}")
                if cfg["rot"]:
                    a(f"s_mov_b32 s{s_wo}, s{half}\ns_add_u32 s{half}, s{half}, {step}\n"
                      f"s_cmp_eq_u32 s{half}, {10 * step}\ns_cselect_b32 s{half}, 0, s{half}")
                else:
                    a(f"s_add_u32 s{s_wo}, s{half}, {c * step}" if c < 5 else f"s_sub_u32 s{s_wo}, {c * step}, s{half}")
                for i in range(4):
                    a(f"buffer_load_dwordx4 v{va[i]}, s[{sd}:{sd + 3}], s{s_wo} offen offset:{1024 * i} lds")
                    a("\n".join(mix[:per]))
                    mix = mix[per:]

    def only(name, cond, fn):
        a(f"{cond}\ns_cbranch_scc0 {L(name)}")
        fn()
        a(f"{L(name)}:")

    feeding = f"s_cmp_lt_u32 s{s_cg}, 15"
    a(f"""
    s_lshl_b32 s{s_ring}, s{s_wj}, 12
    s_mul_i32 s{s_t3}, s{s_t3}, 5
    """)
    if cfg["rot"]:
        a(f"""
        s_mul_i32 s{s_t3}, s{s_cg}, {cfg['rot'] >> 4}
        s_mul_i32 s{s_t0}, s{s_rb}, {cfg['rot'] & 15}
        s_add_u32 s{s_t3}, s{s_t3}, s{s_t0}
        s_mul_i32 s{s_t0}, s{s_t3}, 6554
        s_lshr_b32 s{s_t0}, s{s_t0}, 16
        s_mul_i32 s{s_t0}, s{s_t0}, 10
        s_sub_u32 s{s_t3}, s{s_t3}, s{s_t0}
        """)
    a(f"""
    s_mul_i32 s{s_xo}, s{s_t3}, 128
    s_mul_i32 s{s_wstep}, s{s_t3}, {64 * 3840}
    s_mul_i32 s{s_ho}, s{s_t3}, {64 * 3456}
    v_lshrrev_b32 v{T[2]}, 4, v{vL}
    v_xor_b32 v{T[2]}, v{T[2]}, v{T[1]}
    s_lshl_b32 s{s_t1}, s{s_rb}, 2
    s_add_u32 s{s_t1}, s{s_t1}, s{s_wj}
    s_mul_i32 s{s_t1}, s{s_t1}, {32 * 1280}
    v_mul_u32_u24 v{T[3]}, 1280, v{T[0]}
    v_add_u32 v{T[3]}, s{s_t1}, v{T[3]}
    v_lshl_add_u32 v{VX[0]}, v{T[2]}, 4, v{T[3]}
    v_xor_b32 v{T[2]}, 4, v{T[2]}
    v_lshl_add_u32 v{VX[1]}, v{T[2]}, 4, v{T[3]}
    v_add_u32 v{VX[2]}, {2 * (10240 - 1024)}, v{VX[0]}
    v_add_u32 v{VX[3]}, {3 * (10240 - 1024)}, v{VX[1]}
    v_add_u32 v{VX[1]}, {10240 - 1024}, v{VX[1]}
    v_and_b32 v{SO}, 48, v{vL}
    v_lshl_add_u32 v{SO}, v{T[1]}, 6, v{SO}
    """)
    srd(a, sX, 4, S * D * 2)

    def touch():
        a(f"""
        s_getpc_b64 s[{sA}:{sA + 1}]
        {L('pc')}:
        s_sub_u32 s{sA}, s{sA}, {L('pc')}-{label}
        s_subb_u32 s{sA + 1}, s{sA + 1}, 0
        s_mov_b32 s{sA + 2}, {L('end')}-{label}
        s_lshr_b32 s{s_t0}, s2, 3
        s_mul_i32 s{s_t0}, s{s_t0}, {9 * 128}
        v_lshlrev_b32 v{T[2]}, 7, v{vL}
        s_mov_b64 exec, 0x1ff
        buffer_load_dword v226, v{T[2]}, s[{sA}:{sA + 3}], s{s_t0} offen
        s_mov_b64 exec, -1
        """)

    if cfg["touch"] & 1:
        only("tc", f"s_cmp_eq_u32 s{s_wj}, 0", touch)
    srd(a, sA, 14, F * 2)
    a(f"""
    s_lshl_b32 s{s_t2}, s{s_cf}, 8
    v_lshlrev_b32 v{T[2]}, 2, v{vL}
    buffer_load_dword v28, v{T[2]}, s[{sA}:{sA + 3}], s{s_t2} offen
    """)
    ask_tag()
    w_addr(VW, 3840, s_cg)
    w_addr(VG, 3456, s_cf)
    srd(a, sW, 6, D * 3 * D * 2)
    srd(a, sB, 12, D * F * 2)
    a(f"""
    s_cmp_lt_u32 s{s_cf}, 14
    s_cselect_b32 s{sB + 2}, s{sB + 2}, 0
    s_lshl_b32 s{s_o[1]}, s{s_o[1]}, 9
    s_add_u32 s{s_o[0]}, s{s_o[0]}, s{s_o[1]}
    s_add_u32 s{s_o[0]}, s{s_o[0]}, {WS_CP}
    s_and_b32 s{s_t1}, s{s_wj}, 1
    v_lshl_add_u32 v{gL}, s{s_t1}, 6, v{vL}
    s_lshl_b32 s{s_t3}, s{s_rb}, 11
    v_lshl_add_u32 v{gR}, v{gL}, 4, s{s_t3}
    s_add_u32 s{s_t2}, s{s_cf}, 15
    s_cmp_eq_u32 s{s_t1}, 0
    s_cselect_b32 s{s_t1}, s{s_cg}, s{s_t2}
    s_lshl_b32 s{s_t1}, s{s_t1}, 6
    v_add_u32 v{gA}, s{s_t1}, v{vL}
    v_min_u32 v{gA}, 1823, v{gA}
    v_lshlrev_b32 v{gA}, 4, v{gA}
    s_mov_b32 s{s_spin}, {SPIN}
    v_lshrrev_b32 v23, 1, v{SO}
    v_add_u32 v23, {L_CP}, v23
    """)
    if cfg["early"]:
        later_addr()
    stamp(a, prof, 44)

    def sums():
        for r in range(20):
            c = AC + 2 * (r & 3)
            if r < 4:
                a(f"v_lshlrev_b32 v{c}, 16, v{SD + r}\nv_and_b32 v{c + 1}, 0xffff0000, v{SD + r}")
            else:
                lo, hi = T[2 + 2 * (r & 1)], T[3 + 2 * (r & 1)]
                a(f"v_lshlrev_b32 v{lo}, 16, v{SD + r}\nv_and_b32 v{hi}, 0xffff0000, v{SD + r}\n"
                  f"v_add_f32 v{c}, v{c}, v{lo}\nv_add_f32 v{c + 1}, v{c + 1}, v{hi}")
        a(f"s_lshl_b32 s{s_t0}, s{s_wj}, 8\nv_add_u32 v{T[2]}, s{s_t0}, v23")
        for i in range(4):
            a(f"v_permlane32_swap_b32 v{AC + i}, v{AC + 4 + i}")
        for i in range(4):
            a(f"v_add_f32 v{AC + i}, v{AC + i}, v{AC + 4 + i}")
        a("s_nop 1")
        for i in range(2):
            a(f"v_permlane16_swap_b32 v{AC + i}, v{AC + 2 + i}")
        a(f"v_add_f32 v{AC}, v{AC}, v{AC + 2}\nv_add_f32 v{AC + 1}, v{AC + 1}, v{AC + 3}\ns_nop 1")
        for r in (AC, AC + 1):
            a(f"v_add_f32_dpp v{r}, v{r}, v{r} row_ror:8 row_mask:0xf bank_mask:0xf")
        a(f"ds_write_b64 v{T[2]}, {vr(AC, 2)}")

    def publish():
        for i in range(4):
            a(f"ds_read_b64 {vr(AC + 2 * i, 2)}, v23 offset:{256 * i}")
        a(f"""
        s_waitcnt lgkmcnt(0)
        v_add_f32 v{AC}, v{AC}, v{AC + 2}
        v_add_f32 v{AC + 2}, v{AC + 1}, v{AC + 3}
        v_add_f32 v{AC + 4}, v{AC + 4}, v{AC + 6}
        v_add_f32 v{AC + 5}, v{AC + 5}, v{AC + 7}
        v_add_f32 v{AC}, v{AC}, v{AC + 4}
        v_add_f32 v{AC + 2}, v{AC + 2}, v{AC + 5}
        v_mov_b32 v{AC + 1}, s{s_tag}
        v_mov_b32 v{AC + 3}, s{s_tag}
        s_mov_b32 exec_lo, 0x00ff00ff
        s_mov_b32 exec_hi, 0x00ff00ff
        buffer_store_dwordx4 {vr(AC, 4)}, v{SO}, {WSD}, s{s_o[0]} offen sc1
        s_mov_b64 exec, -1
        """)

    def publish_rows():
        a(f"""
        s_lshl4_add_u32 s{s_t0}, s{s_rb}, s{s_cg}
        s_lshl_b32 s{s_t0}, s{s_t0}, 7
        s_add_u32 s{s_t0}, s{s_t0}, {WS_RS}
        v_lshlrev_b32 v{T[2]}, 4, v{vL}
        v_add_u32 v{T[3]}, {L_RP}, v{T[2]}
        s_cmp_eq_u32 s{s_cg}, 14
        s_movk_i32 s{s_t1}, 0xff
        s_cselect_b32 exec_lo, 0xffff, s{s_t1}
        s_mov_b32 exec_hi, 0
        ds_read_b128 {vr(AC, 4)}, v{T[3]}
        s_waitcnt lgkmcnt(0)
        buffer_store_dwordx4 {vr(AC, 4)}, v{T[2]}, {WSD}, s{s_t0} offen sc1
        s_mov_b64 exec, -1
        """)

    def gather_loads():
        a(f"s_mov_b32 s{s_slot}, {WS_RS}\nbuffer_load_dwordx4 {vr(G + 16, 4)}, v{gR}, {WSD}, s{s_slot} offen sc1")
        a(f"s_mov_b32 s{s_slot}, {WS_CP}")
        for p in range(4):
            a(f"buffer_load_dwordx4 {vr(G + 4 * p, 4)}, v{gA}, {WSD}, s{s_slot} offen sc1")
            a(f"s_add_u32 s{s_slot}, s{s_slot}, {CP_ROW}")

    def gather_put():
        a(f"s_branch {L('ga_chk')}\n{L('ga')}:")
        gather_loads()
        a(f"s_sub_u32 s{s_spin}, s{s_spin}, 1\ns_waitcnt vmcnt(0)\n{L('ga_chk')}:")
        a(f"v_min_u32 v{T[3]}, v{G + 1}, v{G + 3}\nv_max_u32 v{T[4]}, v{G + 1}, v{G + 3}")
        for p in range(1, 5):
            b = G + 4 * p
            a(f"v_min3_u32 v{T[3]}, v{T[3]}, v{b + 1}, v{b + 3}\nv_max3_u32 v{T[4]}, v{T[4]}, v{b + 1}, v{b + 3}")
        retry("ga")
        a(f"v_add_f32 v{G + 1}, v{G + 2}, v{G + 6}\nv_add_f32 v{G}, v{G}, v{G + 4}")
        for p in range(2, 4):
            b = G + 4 * p
            a(f"v_add_f32 v{G}, v{G}, v{b}\nv_add_f32 v{G + 1}, v{G + 1}, v{b + 2}")
        a(f"""
        s_mov_b32 s{s_t0}, {L_NM}
        v_lshlrev_b32 v{G + 2}, 16, v28
        v_and_b32 v{G + 3}, 0xffff0000, v28
        v_lshl_add_u32 v{T[3]}, v{gL}, 2, s{s_t0}
        v_lshl_add_u32 v{T[4]}, v{gL}, 3, s{s_t0}
        v_lshl_add_u32 v{T[5]}, v{vL}, 3, s{s_t0}
        ds_write2_b32 v{T[3]}, v{G + 16}, v{G + 18} offset0:0 offset1:128
        ds_write_b64 v{T[4]}, {vr(G, 2)} offset:{L_CSA - L_NM}
        ds_write_b64 v{T[5]}, {vr(G + 2, 2)} offset:{L_BI - L_NM}
        s_waitcnt lgkmcnt(0)
        """)

    def mark_unwritten():
        a(f"""
        s_add_u32 s{s_ko}, s{s_cm}, {C_O * CH}
        s_add_u32 s{s_vo}, s{s_cr}, {C_O * CH}
        v_mov_b64 {vr(MK, 2)}, -1
        v_mov_b64 {vr(MK + 2, 2)}, -1
        buffer_store_dwordx4 {vr(MK, 4)}, v{mQ}, {WSD}, s{s_ko} offen sc1
        buffer_store_dwordx4 {vr(MK, 4)}, v{mQ}, {WSD}, s{s_ko} offen offset:512 sc1
        """)
        if cfg["wm"]:
            a(f"s_cmp_eq_u32 s{s_par}, 0\ns_cselect_b32 s{s_vo}, s{s_vo}, {WS_TOP}")
            a(f"buffer_store_dwordx4 {vr(MK, 4)}, v{mQD}, {WSD}, s{s_vo} offen sc1")
        else:
            a(f"""
            s_mov_b32 exec_hi, 0
            buffer_store_dwordx2 {vr(MK, 2)}, v{mQR}, {WSD}, s{s_vo} offen sc1
            buffer_store_dwordx2 {vr(MK, 2)}, v{mQR}, {WSD}, s{s_vo} offen offset:512 sc1
            s_mov_b32 exec_hi, -1
            """)

    a(f"{feeding}\ns_cbranch_scc1 {L('g1_on')}")
    if not cfg["early"]:
        later_addr()
    take_tag()
    early_mark = cfg["mk"] < 10
    if early_mark:
        mark_unwritten()
    only("bf0", has_block, block_fetch)
    only("bt0", has_block, block_turn)
    a(f"s_branch {L('b_last')}\n{L('g1_on')}:")
    feed(0)
    stamp(a, prof, 43)
    pre = "xwf"[:cfg["pre"]]
    feed(1, pre)
    take_tag()
    boundary(4 * len(pre))
    a(f"s_setprio {cfg['fprio']}")
    sm = capture(sums)
    LT = cfg["late"]

    def late_loads():
        for q in range(5):
            a(f"buffer_load_dwordx4 {vr(SD + 4 * q, 4)}, v29, s[88:91], s10 offen\ns_add_u32 s10, s10, s11")

    if LT == 1:
        late_loads()
    k = len(sm) * (3 - len(pre)) // 3
    feed(1, "xwf"[len(pre):], [] if LT else sm[:k])
    feed(2, pre, [] if LT else sm[k:])
    only("pr", f"s_cmp_eq_u32 s{s_wj}, 2", publish_rows)
    a("s_waitcnt lgkmcnt(0)")
    late = [[]] + split(capture(later_addr), 4)
    if LT:
        late = [[]] * (LT - 1) + [sm + ["s_waitcnt lgkmcnt(0)"]] + split(capture(later_addr), 5 - LT)
    gath = f"s_cmp_lt_u32 s{s_wj}, 2"
    for c in range(10):
        if c - cfg["gat"] in (1, 2):
            a(f"{gath}\ns_cbranch_scc1 {L('bw' + str(c))}\ns_waitcnt vmcnt(12)\n{L('bw' + str(c))}:")
            boundary(17)
            assert c <= 5
        else:
            boundary({0: 4 * len(pre), 6: 8, 7: 8, 8: 4, 9: None}.get(c, 12))
        if c == LT - 2:
            late_loads()
        if c == 0:
            feed(2, "xwf"[len(pre):])
        if c < 5:
            feed(c + 3, mix=late[c])
        elif c < 7:
            feed(c + 3, "xw")
        elif c < 9:
            feed(c + 1, "f")
        if c == LT:
            only("pb", f"s_cmp_eq_u32 s{s_wj}, s{s_hook}", publish)
        if c == cfg["mk"]:
            mark_unwritten()
        if c == 8:
            only("bf", has_block, block_fetch)
        if c == cfg["gat"]:
            only("gf", gath, gather_loads)
        if c == cfg["gat"] + 3:
            only("gp", gath, gather_put)
    a(f"{has_block}\ns_cbranch_scc1 {L('bwa')}\ns_waitcnt vmcnt({4 * early_mark})\n{L('bwa')}:")
    boundary(5 + 4 * early_mark)
    only("bt", has_block, block_turn)
    boundary()

    def first_fetch():
        a(f"""
        s_mul_i32 s{s_t0}, s{s_wj}, 3072
        s_add_u32 m0, s{s_t0}, {L_Q}
        s_nop 0
        buffer_load_dwordx4 v{mQ}, {WSD}, s{s_cm} offen sc1 lds
        s_add_u32 m0, s{s_t0}, {L_Q + 512}
        s_nop 0
        buffer_load_dwordx4 v{mQ}, {WSD}, s{s_cm} offen offset:512 sc1 lds
        s_add_u32 m0, s{s_t0}, {L_Q + 2048}
        s_nop 0
        buffer_load_dwordx4 v{mQD}, {WSD}, s{s_cr} offen sc1 lds
        """)
        kv_dma(0)

    a(f"{L('b_last')}:\ns_setprio 2")
    stamp(a, prof, 40)
    ones_write(one, 20)
    wait_flags("wa", WS_FA, [FO])
    stamp(a, prof, 41)
    if prof is True:
        a(f"s_sub_u32 s{s_t0}, {SPIN}, s{s_spin}\ns_add_u32 s96, s{s_t0}, 100")
    first_fetch()
    stamp(a, prof, 4)
    a(f"s_mov_b32 s{s_t0}, {WS_FA}\nbuffer_load_dword v{T[3]}, v{FK}, {WSD}, s{s_t0} offen sc1")
    if cfg["hpos"] == 0:
        a("s_barrier")
    a("s_waitcnt vmcnt(1) lgkmcnt(0)")
    stamp(a, prof, 3)
    a(f"s_barrier\ns_waitcnt vmcnt(0)\nv_cmp_ne_u32 vcc, s{s_tag}, v{T[3]}\ns_nop 3\ns_cbranch_vccz {L('wk_done')}")
    wait_flags("wk", WS_FA, [FK])
    kv_dma(1)
    if cfg["bpos"] == 0:
        only("bp", has_block, block_put)

    vH, vW, vO, vB, vLn = [11, 12, 13, 14], [15, 16], [17, 18], [T[0], T[1]], 19
    ACC = 20
    LB = [100 + 36 * i for i in range(3)]
    WR, XR, BR = 180, 220, 230
    sH, sT = sW, sA
    a(f"""
    v_mov_b32 v{vH[0]}, v{pH}
    v_xor_b32 v{vH[1]}, 256, v{pH}
    v_xor_b32 v{vH[2]}, 512, v{pH}
    v_xor_b32 v{vH[3]}, 768, v{pH}
    v_lshlrev_b32 v{vLn}, 4, v{vL}
    s_mul_i32 s{s_t0}, s{s_qb}, 5120
    v_add_u32 v{vW[0]}, s{s_t0}, v{vLn}
    v_add_u32 v{vW[1]}, 4096, v{vW[0]}
    s_mul_i32 s{s_t0}, s{s_qb}, 160
    v_lshrrev_b32 v{T[2]}, 4, v{vL}
    v_lshl_add_u32 v{vB[0]}, v{T[2]}, 4, s{s_t0}
    v_lshl_add_u32 v{vB[1]}, v{T[2]}, 3, s{s_t0}
    v_add_u32 v{vO[0]}, v{pO}, v{vB[0]}
    v_add_u32 v{vO[1]}, v{pO}, v{vB[1]}
    s_add_u32 s{sH}, s22, {C_H * CH}
    s_addc_u32 s{sH + 1}, s23, 0
    s_mov_b32 s{sH + 2}, {216 * CH}
    s_mov_b32 s{sH + 3}, 0x00020000
    s_add_u32 s{sT}, s22, {WS_WT}
    s_addc_u32 s{sT + 1}, s23, 0
    s_mov_b32 s{sT + 2}, {54 * KS_ROW}
    s_mov_b32 s{sT + 3}, 0x00020000
    s_lshl_b32 s{s_ho}, s{s_wj}, 17
    s_mul_i32 s{s_wo}, s{s_wj}, {KS_ROW}
    s_add_u32 s{s_xo}, s{s_wo}, {WS_WT + 54 * KS_ROW}
    s_mul_i32 s{s_ring}, s{s_wj}, 5120
    """)
    if cfg["bpos"] == 0:
        a("s_waitcnt vmcnt(0)")
        only("fw", has_block, lambda: set_flag(WS_FH))
        kv_dma(2)
        if cfg["ot"] == 2:
            srd(a, sB, 20, S * D * 2)
            a(f"buffer_load_dword v209, v{vO[0]}, s[{sB}:{sB + 3}], 0 offen\nbuffer_load_dword v210, v{vO[1]}, s[{sB}:{sB + 3}], 0 offen offset:128")
        a("s_barrier")
    elif cfg["bpos"] == 2:
        kv_dma(2)
        only("bp", has_block, block_put)
        a(f"{has_block}\ns_cbranch_scc1 {L('bq')}\ns_waitcnt vmcnt(7)\n{L('bq')}:\ns_waitcnt vmcnt(12)\ns_barrier")
        only("fw", has_block, lambda: (a("s_waitcnt vmcnt(0)"), set_flag(WS_FH)))
    elif cfg["bpos"] == 3:
        only("bp", has_block, block_put)
        a(f"{has_block}\ns_cbranch_scc1 {L('bq')}\ns_waitcnt vmcnt(0)\n{L('bq')}:\ns_waitcnt vmcnt(5)\ns_barrier")
        only("fw", has_block, lambda: (a("s_waitcnt vmcnt(0)"), set_flag(WS_FH)))
        kv_dma(2)
    else:
        kv_dma(2)
        a("s_waitcnt vmcnt(7)\ns_barrier")
        only("bp", has_block, lambda: (block_put(), a("s_waitcnt vmcnt(0)"), set_flag(WS_FH)))
    a(f"s_mov_b32 s{s_fl}, s2")
    stamp(a, prof, 5)

    def w_frag(c):
        return (vW[0], 1024 * c) if c < 4 else (vW[1], 0)

    def ffn_loads(b):
        for t in range(4):
            a(f"buffer_load_dwordx4 {vr(LB[b] + 4 * t, 4)}, v{vH[t]}, s[{sH}:{sH + 3}], s{s_ho} offen sc1")
        for c in range(5):
            va, off = w_frag(c)
            a(f"buffer_load_dwordx4 {vr(LB[b] + 16 + 4 * c, 4)}, v{va}, s[{sT}:{sT + 3}], s{s_wo} offen offset:{off} sc1")
        a(f"s_add_u32 s{s_ho}, s{s_ho}, {16 * CH}\ns_add_u32 s{s_wo}, s{s_wo}, {4 * KS_ROW}")

    def wo_stage(i):
        for c in range(5):
            va, off = w_frag(c)
            if c in (0, 4):
                a(f"s_add_u32 m0, s{s_ring}, {L_WO + i * 20480 + 1024 * c}\ns_nop 0")
            a(f"buffer_load_dwordx4 v{va}, {WSD}, s{s_xo} offen offset:{off} sc1 lds")
        a(f"s_add_u32 s{s_xo}, s{s_xo}, {4 * KS_ROW}")

    queue = []

    def need(tag):
        if tag not in queue:
            return
        last = max(i for i, q in enumerate(queue) if q == tag)
        a(f"s_waitcnt vmcnt({len(queue) - 1 - last})")
        del queue[:last + 1]

    def send(r):
        a(f"s_add_u32 s{s_t0}, s{s_ring}, {L_EX[r]}\nv_add_u32 v{T[2]}, s{s_t0}, v{vLn}")
        for c in range(5):
            a(f"ds_write_b128 v{T[2]}, {vr(ACC + 20 * r + 4 * c, 4)} offset:{1024 * c}")

    wait_flags("wb", WS_FH, [fC], cfg["fbr"])
    a(f"s_mov_b32 s{s_slot}, s{s_spin}\ns_cbranch_vccz {L('fb_go')}\ns_barrier")
    wait_flags("wc", WS_FH, [fC])
    a(f"s_mov_b32 s{s_slot}, -1\n{L('fb_go')}:")
    stamp(a, prof, 6)
    ffn_loads(0)
    only("fb1", f"s_cmp_eq_u32 s{s_slot}, 0", lambda: a("s_barrier"))
    ffn_loads(1)
    queue += [("L", 0)] * 9 + [("L", 1)] * 9
    if cfg["mk"] == 12:
        mark_unwritten()
        queue += [("M", 0)] * (3 if cfg["wm"] else 4)
    if cfg["ot"] == 3:
        srd(a, sB, 20, S * D * 2)
        a(f"buffer_load_dword v209, v{vO[0]}, s[{sB}:{sB + 3}], 0 offen\nbuffer_load_dword v210, v{vO[1]}, s[{sB}:{sB + 3}], 0 offen offset:128")
        queue += [("T", 0)] * 2
    only("fb2", f"s_cmp_gt_i32 s{s_slot}, 0", lambda: a("s_barrier"))
    a("s_setprio 0")
    assert not early_mark

    def closing_loads():
        srd(a, sX, 4, S * D * 2)
        srd(a, 88, 18, D * 2)
        srd(a, sB, 20, S * D * 2)
        a(f"s_mov_b32 s{s_slot}, {WS_FB}\nbuffer_load_dword v208, v{fB}, {WSD}, s{s_slot} offen sc1")
        for dst, va, sd in ((XR, vO, sX), (BR, vB, 88)):
            a(f"""
            buffer_load_dwordx4 {vr(dst, 4)}, v{va[0]}, s[{sd}:{sd + 3}], 0 offen
            buffer_load_dwordx4 {vr(dst + 4, 4)}, v{va[0]}, s[{sd}:{sd + 3}], 0 offen offset:64
            buffer_load_dwordx2 {vr(dst + 8, 2)}, v{va[1]}, s[{sd}:{sd + 3}], 0 offen offset:128
            """)
        if cfg["ot"] == 1:
            a(f"buffer_load_dword v209, v{vO[0]}, s[{sB}:{sB + 3}], 0 offen\nbuffer_load_dword v210, v{vO[1]}, s[{sB}:{sB + 3}], 0 offen offset:128")

    def vm_units(fn, tag):
        out, cur = [], []
        for u in capture(fn):
            cur.append(u)
            n = u.count("buffer_load")
            if n:
                out.append(("\n".join(cur), [tag] * n))
                cur = []
        out[-1] = (out[-1][0] + "\n" + "\n".join(cur), out[-1][1])
        return out

    cuts = [cfg["cut0"] + cfg["cutd"] * k for k in range(5)]
    side = vm_units(lambda: kv_dma(3), ("D", 2)) + vm_units(lambda: wo_stage(0), ("W", 2))
    iv, m = 2, 0
    for step in range(14):
        b = step % 3
        main = vm_units(lambda: ffn_loads((step + 2) % 3), ("L", step + 2)) if step + 2 < 14 else []
        need(("L", step))
        if step == 13:
            assert not side and iv == 7
            a(f"s_cmp_lt_u32 s{s_wj}, 2\ns_cbranch_scc0 {L('m13')}")
        for k in range(20):
            t, c = divmod(k, 5)
            d = vr(ACC + 20 * t + 4 * c, 4)
            a(f"v_mfma_f32_16x16x32_bf16 {d}, {vr(LB[b] + 16 + 4 * c, 4)}, {vr(LB[b] + 4 * t, 4)}, {d if step else 0}")
            m += 1
            src = main if (main and (k & 1 or not side)) else side
            if src:
                text, tags = src.pop(0)
                a(text)
                queue += tags
            if iv < 7 and m == cuts[iv - 2]:
                assert not side
                need(("D", iv))
                if cfg.get("trace"):
                    stamp(a, prof, 24)
                a("s_barrier")
                iv += 1
                if iv == cfg["mk"] - 10:
                    mark_unwritten()
                    queue += [("M", 0)] * (3 if cfg["wm"] else 4)
                if iv == cfg["mk"] - 9:
                    assert ("M", 0) not in queue
                    only("fb", f"s_cmp_eq_u32 s{s_wj}, 0", lambda: set_flag(WS_FB))
                if iv < 7:
                    side = vm_units(lambda: kv_dma(iv + 1), ("D", iv))
                if iv < 6:
                    side += vm_units(lambda: wo_stage(iv - 2), ("W", iv))
                if iv == cfg["cl"]:
                    side += vm_units(closing_loads, ("C", 0))
                if iv == 7:
                    only("w5", f"s_cmp_lt_u32 s{s_wj}, 2", lambda: wo_stage(4))
        assert not main
    a(f"{L('m13')}:")
    need(("C", 0))
    upper = f"s_cmp_ge_u32 s{s_wj}, 2"

    def wo_last():
        for c in range(5):
            va, off = w_frag(c)
            a(f"buffer_load_dwordx4 {vr(WR + 4 * c, 4)}, v{va}, {WSD}, s{s_xo} offen offset:{off} sc1")

    def wo_last_put():
        a(f"s_add_u32 s{s_t0}, s{s_ring}, {L_WO + 4 * 20480}\nv_add_u32 v{T[2]}, s{s_t0}, v{vLn}")
        for c in range(5):
            a(f"ds_write_b128 v{T[2]}, {vr(WR + 4 * c, 4)} offset:{1024 * c}")

    only("wl", upper, wo_last)
    NW, AH = 7, cfg["ahead"]
    AC2, WG, OF = 40, 60, 200
    assert OF + 4 * (AH + 1) <= 256

    def wo_read(i, c):
        va, off = (vLn, L_WO + 5120 * i) if i < 10 else (T[2], 5120 * (i - 10))
        return f"ds_read_b128 {vr(WG + 20 * (i % NW) + 4 * c, 4)}, v{va} offset:{off + 1024 * c}"

    def o_load(i):
        a(f"s_mov_b32 s{s_t0}, {(C_O + 4 * i) * CH}")
        a(f"buffer_load_dwordx4 {vr(OF + 4 * (i % (AH + 1)), 4)}, v{vH[0]}, {WSD}, s{s_t0} offen sc1")

    def prime(steps):
        for i in steps:
            a("s_waitcnt lgkmcnt(10)\n" + "\n".join(wo_read(i, c) for c in range(5)))

    prime(range(2, 6))
    a(f"v_cmp_ne_u32 vcc, s{s_tag}, v208\ns_nop 3\ns_cbranch_vccz {L('wm_done')}")
    wait_flags("wm", WS_FB, [fB])
    a(f"""
    v_bfe_u32 v{T[2]}, v{vL}, 1, 4
    v_mul_u32_u24 v{T[2]}, 5, v{T[2]}
    v_and_b32 v{T[3]}, 1, v{vL}
    s_cmp_eq_u32 s{s_wj}, 2
    s_cselect_b32 s{s_t1}, 8, {3 * CH}
    s_cselect_b32 s{s_t2}, 4, 12
    s_cmp_eq_u32 s{s_wj}, 3
    s_cselect_b32 s{s_t0}, 0, s{s_wj}
    v_add_u32 v{T[2]}, s{s_t0}, v{T[2]}
    v_lshlrev_b32 v{T[2]}, 15, v{T[2]}
    v_mad_u32_u24 v{T[0]}, v{T[3]}, s{s_t1}, v{T[2]}
    s_lshl_b32 s{s_t0}, s{s_head}, 3
    s_add_u32 s{s_t0}, s{s_t0}, s{s_qb}
    s_lshl_b32 s{s_t0}, s{s_t0}, 7
    s_add_u32 s{s_t0}, s{s_t0}, s{s_t2}
    s_add_u32 s{s_ko}, s{s_t0}, {C_O * CH}
    s_mov_b32 s{s_spin}, {SPIN}
    """)
    a("s_waitcnt lgkmcnt(0)")
    if cfg.get("trace"):
        stamp(a, prof, 24)
    a("s_barrier")
    send(1)
    send(2)
    stamp(a, prof, 7)
    a("s_barrier")
    a("s_waitcnt vmcnt(0) lgkmcnt(0)")
    send(3)
    only("wp", upper, wo_last_put)
    a("s_waitcnt lgkmcnt(0)\ns_barrier")
    stamp(a, prof, 8)
    a(f"""
    s_cmp_lg_u32 s2, 0
    s_cbranch_scc1 {L('tag_kept')}
    v_mov_b32 v{T[4]}, 0
    v_mov_b32 v{T[5]}, s{s_tag}
    s_mov_b32 s{s_t0}, {WS_E}
    buffer_store_dword v{T[5]}, v{T[4]}, {WSD}, s{s_t0} offen sc1
    {L('tag_kept')}:
    """)
    for r in range(1, 4):
        a(f"""
        s_xor_b32 s{s_t0}, s{s_wj}, {r}
        s_mul_i32 s{s_t0}, s{s_t0}, 5120
        s_add_u32 s{s_t0}, s{s_t0}, {L_EX[r]}
        v_add_u32 v{T[2]}, s{s_t0}, v{vLn}
        """)
        for c in range(5):
            a(f"ds_read_b128 {vr(ACC + 20 * r + 4 * c, 4)}, v{T[2]} offset:{1024 * c}")
    for src in (XR, BR):
        for i in range(10):
            t = T[2 + 2 * (i & 1)]
            a(f"v_lshlrev_b32 v{t}, 16, v{src + i}\nv_and_b32 v{t + 1}, 0xffff0000, v{src + i}")
            a(f"v_pk_add_f32 {vr(ACC + 2 * i, 2)}, {vr(ACC + 2 * i, 2)}, {vr(t, 2)}")
    for r in range(1, 4):
        a(f"s_waitcnt lgkmcnt({5 * (3 - r)})")
        for i in range(0, 20, 2):
            a(f"v_pk_add_f32 {vr(ACC + i, 2)}, {vr(ACC + i, 2)}, {vr(ACC + 20 * r + i, 2)}")
    a(f"v_add_u32 v{T[2]}, {L_WO + 10 * 5120}, v{vLn}")

    look = f"buffer_load_dword v{T[3]}, v{T[0]}, {WSD}, s{s_ko} offen sc1"
    a(f"{L('first')}:\ns_mov_b32 exec_hi, 0\n{look}\ns_mov_b32 exec_hi, -1")
    prime((0, 1, 6))
    a(f"""
    v_mov_b32 v{T[4]}, 0
    s_mov_b32 exec_hi, 0
    s_branch {L('seen')}
    {L('poll')}:
    {"s_mov_b32 exec_lo, vcc_lo" if cfg["thin"] else ""}
    {f"s_sleep {cfg['osl']}" if cfg["osl"] else ""}
    {look}
    {L('seen')}:
    s_sub_u32 s{s_spin}, s{s_spin}, 1
    s_cmp_lt_i32 s{s_spin}, 0
    s_waitcnt vmcnt(0) lgkmcnt(0)
    v_cmp_eq_u32 vcc, -1, v{T[3]}
    s_cbranch_scc1 {L('got')}
    s_nop 2
    s_cbranch_vccnz {L('poll')}
    {L('got')}:
    s_mov_b64 exec, -1
    """)
    if prof is True:
        stamp(a, prof, 50)
        a(f"s_sub_u32 s96, {SPIN + 200}, s{s_spin}\ns_waitcnt lgkmcnt(0)")
    for i in range(AH):
        o_load(i)
    todo = [(i, c) for i in range(NW, 20) for c in range(5)]
    issued = 0
    for i in range(20):
        lg = f" lgkmcnt({min(15, issued - 5 * (i - NW + 1))})" if i >= NW else ""
        assert i < NW or issued >= 5 * (i - NW + 1)
        a(f"s_waitcnt vmcnt({min(20, i + AH) - i - 1}){lg}")
        o = OF + 4 * (i % (AH + 1))
        for c in range(5):
            d = vr(AC2 + 4 * c, 4)
            a(f"v_mfma_f32_16x16x32_bf16 {d}, {vr(WG + 20 * (i % NW) + 4 * c, 4)}, {vr(o, 4)}, {d if i else 0}")
            if c == 0:
                if i + AH < 20:
                    o_load(i + AH)
            elif todo and (todo[0][0] - NW, todo[0][1]) <= (i, c):
                a(wo_read(*todo.pop(0)))
                issued += 1
            if c == 4:
                a(f"v_max3_u32 v{T[4]}, v{T[4]}, v{o + 1}, v{o + 3}")
    assert not todo
    stamp(a, prof, 9)
    a(f"""
    v_cmp_eq_u32 vcc, -1, v{T[4]}
    s_cmp_lt_i32 s{s_spin}, 0
    s_cbranch_scc1 {L('sum')}
    s_nop 1
    s_cbranch_vccnz {L('again')}
    {L('sum')}:
    s_nop 3
    """)
    for i in range(0, 20, 2):
        a(f"v_pk_add_f32 {vr(ACC + i, 2)}, {vr(ACC + i, 2)}, {vr(AC2 + i, 2)}")
    for i in range(10):
        a(f"v_cvt_pk_bf16_f32 v{XR + i}, v{ACC + 2 * i}, v{ACC + 2 * i + 1}")
    a(f"""
    buffer_store_dwordx4 {vr(XR, 4)}, v{vO[0]}, s[{sB}:{sB + 3}], 0 offen {OSF}
    buffer_store_dwordx4 {vr(XR + 4, 4)}, v{vO[0]}, s[{sB}:{sB + 3}], 0 offen offset:64 {OSF}
    buffer_store_dwordx2 {vr(XR + 8, 2)}, v{vO[1]}, s[{sB}:{sB + 3}], 0 offen offset:128 {OSF}
    """)
    if prof:
        a(f"{L('dump')}:\ns_waitcnt vmcnt(0)")
        stamp(a, prof, 10)
        stamp(a, prof, 11)
        a(f"""
        s_memrealtime s[78:79]
        s_waitcnt lgkmcnt(0)
        s_mov_b32 s{sWS + 2}, {WS_SIZE}
        s_sub_u32 s{sWS}, s{sWS}, {cfg['wsoff'] << 20}
        s_subb_u32 s{sWS + 1}, s{sWS + 1}, 0
        s_lshl_b32 s95, s2, 3
        s_add_u32 s95, s95, s{s_w}
        s_lshl_b32 s95, s95, 8
        s_add_u32 s95, s95, {WS_DBG}
        v_writelane_b32 v0, s76, 62
        v_writelane_b32 v0, s78, 63
        v_lshlrev_b32 v{T[0]}, 2, v{vL}
        buffer_store_dword v0, v{T[0]}, {WSD}, s95 offen
        s_waitcnt vmcnt(0)
        """)
    a(f"s_endpgm\n{L('again')}:")
    prime(range(2, 6))
    a(f"s_branch {L('first')}")
    a.lines = head_lines + a.lines + g0_lines
    a(f"{L('end')}:\ns_endpgm")
    return kernel_header(label) + a.text(), kernel_desc(label, 256, 102 if prof else 92), LDS_SIZE


def build(as_list=False, **kw):
    ref = open(f"cdna_kernels/{NAME}.s.ref").read().split("\n")
    head = [ln for ln in ref if ln.startswith(";") and "launch" not in ln.lower() and "grid=" not in ln]
    label = NAME + "_kernel"
    c, d, lds = gen(label, **kw)
    c = c.replace(label + "_", "L_")
    if (kw.get("cfg") or {}).get("rt"):
        c = c.replace("s_memtime", "s_memrealtime")
    out = "\n".join(head) + "\n"
    out += f"; @launch {'kernel=' + label + ' ' if as_list else ''}grid=(256,1,1) block=(512,1,1) lds={lds}\n"
    out += '.amdgcn_target "amdgcn-amd-amdhsa--gfx950"\n.text\n' + c + '.section .rodata,"a"\n' + d
    return out


if __name__ == "__main__":
    import sys
    opts = sys.argv[2:]
    cfg = {o.split("=")[0]: int(o.split("=")[1], 0) for o in opts if "=" in o}
    open(sys.argv[1], "w").write(build(as_list="list" in opts, prof="span" if "span" in opts else "prof" in opts, force_fallback="slow" in opts, cfg=cfg))
```

```python
import math
import struct
from common import *

f32 = lambda x: struct.unpack("<I", struct.pack("<f", x))[0]
QSCALE = f32(math.log2(math.e) / math.sqrt(20.0))
SHIFT = 92.0

WS_RS = WS_END
WS_CP = WS_RS + 2048 * 16
CP_ROW = 3648 * 8
WS_FA = WS_CP + 4 * CP_ROW
WS_FH = WS_FA + 1024 * 128
WS_FB = WS_FH + 2048 * 128
WS_E = WS_FB + 256 * 128
WS_TOP = WS_E + 128

STG = 49152
LX, LW, LF = 0, 16384, 32768
L_NM = 3 * STG
L_RS, L_CSA, L_CSB, L_BI = L_NM + 512, L_NM + 1024, L_NM + 1536, L_NM + 2048
L_CP = L_NM + 2560
L_RP = L_CP + 1024
LDS_SIZE = 163840
SLOT = 8192 + 4096 + 16 * 656
OFF_R, OFF_V = 8192, 12288
KV = LDS_SIZE - 3 * SLOT
L_Q = LW
L_WO = 0
L_EX = [None, 122880, 143360, 102400]
LDS_OOB = 0x28000
assert L_WO + 18 * 5120 <= KV and LDS_OOB + 3 * SLOT <= 0x40000
KS_ROW = 40 * 1024

sWS, sX, sW, sA, sB = 24, 28, 32, 36, 40
(s_w, s_wj, s_rb, s_cg, s_head, s_qb, s_tt, s_cf, s_cm, s_cr, s_par, s_tag, s_c, s_slot,
 s_t0, s_t1, s_t2, s_t3, s_xo, s_wo, s_ring, s_wstep, s_ko, s_vo, s_ho, s_spin, s_fl) = range(44, 71)
assert s_t2 % 2 == 0
s_o = [71, 72, 73]
s_kc, s_hook = 74, 75
SPIN = 0x20000


def gen(label, prof=False, force_fallback=False, cfg=None):
    cfg = {**dict(ded=1, cl=6, wi=0x4577, nf=1, wm=1, full=1, skip=0, wsoff=0, rot=0, late=0, bal=1, touch=1, gat=2, pre=3, mk=12, pa=14, early=0, fprio=2, flag=1, krot=0, lean=1, plf=0, fsf=0, slp=1, cut0=46, cutd=49, fbr=3, hk=3, hpos=0, bpos=0, ahead=6, thin=1, osl=0, osf=0), **(cfg or {})}
    STF = ('sc1', '', 'nt')[cfg.get('plain', 0)]
    PLF = ('sc1', 'sc0 sc1', 'sc1 nt', 'sc0 sc1 nt')[cfg['plf']]
    FSF = ('sc1', 'sc0 sc1')[cfg['fsf']]
    OSF = ('', 'sc1', 'nt')[cfg['osf']]
    a = Asm()
    L = lambda n: f"{label}_{n}"
    WSD = f"s[{sWS}:{sWS + 3}]"
    vL = 1
    T = [2, 3, 4, 5, 6, 7]
    vK, vR_, vV = 8, 9, 10
    AX = [11, 12]
    AW = [13, 14, 15, 16]
    XF = [[32 + 16 * b + 4 * t for t in range(4)] for b in range(2)]
    WF = [[64 + 16 * b + 4 * c for c in range(4)] for b in range(2)]
    GA, GB = 96, 160

    def capture(fn):
        keep, a.lines = a.lines, []
        fn()
        got, a.lines = a.lines, keep
        units, masked = [], False
        for ln in got:
            t = ln.strip()
            if units and (masked or t.startswith("s_cselect") or units[-1].split("\n")[-1].strip().startswith("s_cmp")):
                units[-1] += "\n" + ln
            else:
                units.append(ln)
            if t.startswith("s_") and " exec" in t.split(",")[0]:
                masked = not t.endswith("-1")
        return units

    def gacc(tt, ci, base=GA):
        return base + (tt * 4 + ci) * 4

    SD = 32
    a(f"""
    s_cmp_ge_u32 s2, 256
    s_cbranch_scc1 {L('end')}
    s_load_dwordx16 s[4:19], s[0:1], 0
    s_load_dwordx2 s[22:23], s[0:1], 80
    s_load_dwordx2 s[20:21], s[0:1], 64
    """)
    stamp(a, prof, 0)
    a(f"""
    v_lshrrev_b32 v{T[0]}, 6, v0
    v_and_b32 v{vL}, 63, v0
    s_and_b32 s{s_t3}, s2, 1
    v_readfirstlane_b32 s{s_w}, v{T[0]}
    s_bfe_u32 s{s_rb}, s2, 0x30003
    s_bfe_u32 s{s_t0}, s2, 0x20001
    s_lshr_b32 s{s_t1}, s2, 6
    s_lshl2_add_u32 s{s_cf}, s{s_t0}, s{s_t1}
    {f"s_and_b32 s{s_t2}, s{s_rb}, 3" if cfg["bal"] else f"s_mov_b32 s{s_t2}, 3"}
    s_lshl2_add_u32 s{s_t2}, s{s_t2}, 3
    s_lshl3_add_u32 s{s_rb}, s{s_t3}, s{s_rb}
    s_cmp_gt_u32 s{s_cf}, s{s_t2}
    s_subb_u32 s{s_cg}, s{s_cf}, 0
    s_cmp_eq_u32 s{s_cf}, s{s_t2}
    s_cselect_b32 s{s_cg}, 15, s{s_cg}
    s_mov_b32 s{sA + 3}, 0x00020000
    {'v_mov_b32 v0, -1' if prof else ''}
    s_and_b32 s{s_wj}, s{s_w}, 3
    s_cmp_ge_u32 s{s_w}, 4
    s_cbranch_scc1 {L('p_col')}
    s_mov_b32 s3, 0
    s_lshl4_add_u32 s{s_t0}, s{s_rb}, s{s_cg}
    s_lshl1_add_u32 s{s_t0}, s{s_t0}, s{s_wj}
    s_mul_i32 s{s_t1}, s{s_t0}, {4 * 1280}
    s_cmp_eq_u32 s{s_cg}, 15
    s_cselect_b32 s{s_hook}, 0, 2
    s_cmp_eq_u32 s{s_cg}, 14
    s_cselect_b32 s{s_hook}, 4, s{s_hook}
    v_lshrrev_b32 v{T[0]}, 4, v{vL}
    v_and_b32 v{T[1]}, 7, v{vL}
    v_lshrrev_b32 v{T[2]}, 3, v{vL}
    v_mul_u32_u24 v{T[2]}, 640, v{T[2]}
    s_movk_i32 s{s_t2}, 128
    s_mov_b32 s{sA + 2}, {S * D * 2}
    s_cmp_lt_u32 s{s_wj}, s{s_hook}
    s_waitcnt lgkmcnt(0)
    s_mov_b64 s[{sA}:{sA + 1}], s[4:5]
    s_branch {L('p_ld')}
    {L('p_col')}:
    s_setprio 2
    s_mov_b32 s3, 1
    s_bfe_u32 s{s_t1}, s2, 0x10005
    s_lshl1_add_u32 s{s_t1}, s{s_cg}, s{s_t1}
    s_bfe_u32 s{s_t0}, s2, 0x10003
    s_lshl1_add_u32 s{s_t0}, s{s_t3}, s{s_t0}
    s_mul_i32 s{s_o[0]}, s{s_t0}, {CP_ROW // 512 * 512}
    s_lshl2_add_u32 s{s_t0}, s{s_t0}, s{s_wj}
    s_lshl_b32 s{s_t0}, s{s_t0}, 3
    s_lshl_b32 s{s_t2}, s{s_t3}, 8
    s_add_u32 s{s_t0}, s{s_t0}, s{s_t2}
    v_lshrrev_b32 v{T[0]}, 3, v{vL}
    v_and_b32 v{T[1]}, 7, v{vL}
    s_bitcmp0_b32 s2, 4
    s_cselect_b32 s{s_hook}, 30, 57
    s_movk_i32 s{s_t2}, 3840
    s_cselect_b32 s{s_t2}, s{s_t2}, 3456
    s_cselect_b32 s{s_o[1]}, 0, 30
    s_mul_i32 s{sA + 2}, s{s_t2}, 640
    s_mul_i32 s{s_t0}, s{s_t0}, s{s_t2}
    v_mul_u32_u24 v{T[2]}, s{s_t2}, v{T[0]}
    s_waitcnt lgkmcnt(0)
    s_cselect_b64 s[{sA}:{sA + 1}], s[6:7], s[12:13]
    s_add_u32 s{s_o[1]}, s{s_o[1]}, s{s_t1}
    s_lshl_b32 s{s_t1}, s{s_t1}, 7
    s_add_u32 s{s_t1}, s{s_t1}, s{s_t0}
    s_lshl_b32 s{s_t2}, s{s_t2}, 6
    s_cmp_lt_u32 s{s_o[1]}, s{s_hook}
    s_cselect_b32 s{s_hook}, 3, 7
    """)
    if cfg["late"]:
        a(f"""
        s_cselect_b32 s78, s{sA + 2}, 0
        s_mov_b64 s[76:77], s[{sA}:{sA + 1}]
        s_mov_b32 s79, 0x00020000
        s_mov_b32 s10, s{s_t1}
        s_mov_b32 s11, s{s_t2}
        v_lshl_add_u32 v29, v{T[1]}, 4, v{T[2]}
        s_branch {L('p_id')}
        """.replace("s78", "s90").replace("s[76:77]", "s[88:89]").replace("s79", "s91"))
    a(f"""
    {L('p_ld')}:
    """)
    a(f"""
    v_lshl_add_u32 v{T[2]}, v{T[1]}, 4, v{T[2]}
    s_cbranch_scc0 {L('p_id')}
    """)
    assert CP_ROW % 512 == 0 and WS_FA % 128 == 0
    if cfg["skip"]:
        a(f"v_mov_b64 {vr(SD + 16, 2)}, 0\nv_mov_b64 {vr(SD + 18, 2)}, 0")
    for q in range(5 - cfg["skip"]):
        a(f"buffer_load_dwordx4 {vr(SD + 4 * q, 4)}, v{T[2]}, s[{sA}:{sA + 3}], s{s_t1} offen")
        a(f"s_add_u32 s{s_t1}, s{s_t1}, s{s_t2}")
    a(f"{L('p_id')}:")
    if cfg["wsoff"]:
        a(f"s_add_u32 s22, s22, {cfg['wsoff'] << 20}\ns_addc_u32 s23, s23, 0")
    stamp(a, prof, 45)
    a(f"""
    {f"s_xor_b32 s{s_t2}, s{s_rb}, 2" if cfg["bal"] else ""}
    {f"s_and_b32 s{s_t2}, s{s_t2}, 3" if cfg["bal"] else f"s_mov_b32 s{s_t2}, 3"}
    s_lshl2_add_u32 s{s_t2}, s{s_t2}, {3 if cfg["bal"] else 2}
    s_cmp_eq_u32 s{s_cf}, s{s_t2}
    s_cselect_b32 s{s_t0}, 15, s{s_cg}
    s_cmp_gt_u32 s{s_cf}, s{s_t2}
    s_subb_u32 s{s_cf}, s{s_t0}, 0
    s_cmp_eq_u32 s{s_cg}, 15
    s_cbranch_scc1 {L('near')}
    {L('p_go')}:
    s_cmp_eq_u32 s3, 0
    s_cbranch_scc1 {L('g0')}
    """)
    head_lines, a.lines = a.lines, []

    def attn_ids():
        a(f"""
        s_and_b32 s{s_t0}, s2, 7
        s_lshr_b32 s{s_t1}, s2, 3
        s_and_b32 s{s_t2}, s{s_t1}, 3
        s_lshl_b32 s{s_head}, s{s_t0}, 2
        s_add_u32 s{s_head}, s{s_head}, s{s_t2}
        s_lshr_b32 s{s_qb}, s{s_t1}, 2
        s_and_b32 s{s_par}, s{s_head}, 1
        s_lshr_b32 s{s_t2}, s{s_head}, 1
        s_mul_i32 s{s_t2}, s{s_t2}, 5
        s_add_u32 s{s_cr}, s{s_t2}, 2
        s_mul_i32 s{s_t3}, s{s_par}, 3
        s_add_u32 s{s_cm}, s{s_t2}, s{s_t3}
        s_lshl_b32 s{s_cm}, s{s_cm}, 15
        s_lshl_b32 s{s_cr}, s{s_cr}, 15
        """)

    def load_tag():
        a(f"""
        s_mov_b32 s{s_t0}, {WS_E}
        s_load_dword s{s_tag}, s[22:23], s{s_t0}
        """)

    def frag_addr():
        a(f"""
        v_and_b32 v{T[0]}, 15, v{vL}
        v_lshrrev_b32 v{T[1]}, 4, v{vL}
        v_bfe_u32 v{T[2]}, v{vL}, 1, 3
        v_xor_b32 v{T[2]}, v{T[2]}, v{T[1]}
        v_lshlrev_b32 v{T[2]}, 4, v{T[2]}
        v_lshl_add_u32 v{T[2]}, v{T[0]}, 7, v{T[2]}
        s_and_b32 s{s_t0}, s{s_wj}, 1
        s_lshl_b32 s{s_t0}, s{s_t0}, 13
        v_add_u32 v{AX[0]}, s{s_t0}, v{T[2]}
        v_xor_b32 v{AX[1]}, 64, v{AX[0]}
        v_bfe_u32 v{T[2]}, v{vL}, 2, 2
        v_lshl_add_u32 v{T[3]}, v{T[1]}, 3, v{T[2]}
        v_lshlrev_b32 v{T[3]}, 8, v{T[3]}
        v_bfe_u32 v{T[2]}, v{vL}, 2, 3
        s_lshr_b32 s{s_t0}, s{s_wj}, 1
        s_lshl_b32 s{s_t0}, s{s_t0}, 2
        v_xor_b32 v{T[2]}, s{s_t0}, v{T[2]}
        v_lshl_add_u32 v{T[3]}, v{T[2]}, 5, v{T[3]}
        v_and_b32 v{T[2]}, 3, v{vL}
        v_lshl_add_u32 v{AW[0]}, v{T[2]}, 3, v{T[3]}
        v_xor_b32 v{AW[1]}, 32, v{AW[0]}
        v_xor_b32 v{AW[2]}, 64, v{AW[0]}
        v_xor_b32 v{AW[3]}, 96, v{AW[0]}
        """)

    def zero(base, n):
        for r in range(base, base + n, 2):
            a(f"v_mov_b64 {vr(r, 2)}, 0")

    def wreads(part, s, b):
        return [f"ds_read_b64_tr_b16 {vr(WF[b][c] + 2 * h, 2)}, v{AW[c]} offset:{part + s * 8192 + 1024 * h}"
                for c in range(4) for h in range(2)]

    def xreads(s):
        return [f"ds_read_b128 {vr(XF[s][t], 4)}, v{AX[s]} offset:{LX + 2048 * t}" for t in range(4)]

    def both(part, s, b):
        w, x = wreads(part, s, b), xreads(s)
        return w[:2] + x[:1] + w[2:] + x[1:]

    def gemm_body(name, halves, barrier, count_to):
        a(f".p2align 3\n{L(name)}:")
        for k, (xs, wb, acc, swapped, rd) in enumerate(halves):
            fill = [[] for _ in range(16)]
            if k == len(halves) - 1:
                if barrier:
                    if prof and cfg.get("trace", 0) == 3:
                        fill[0] += capture(lambda: stamp(a, prof, 25))
                    fill[0].append("s_barrier")
                fill[13].append(f"s_add_u32 s{s_c}, s{s_c}, 1")
                fill[14].append(f"s_cmp_lt_u32 s{s_c}, {count_to}")
            if k == len(halves) - 2:
                fill[8].append(f"s_add_u32 s{s_ring}, s{s_ring}, 1")
                fill[9].append(f"s_cmp_eq_u32 s{s_ring}, 3")
                fill[10].append(f"s_cselect_b32 s{s_xo}, {-2 * STG & 0xffffffff}, s{s_wstep}")
                fill[11].append(f"s_cselect_b32 s{s_ring}, 0, s{s_ring}")
            for m, x in enumerate(rd):
                fill[m].append(x)
            if k == len(halves) - 2:
                for m, r in enumerate(AX + AW):
                    fill[12 + m // 2].append(f"v_add_u32 v{r}, s{s_xo}, v{r}")
            fill[15].append("s_waitcnt lgkmcnt(0)")
            for m in range(16):
                tt, ci = m >> 2, m & 3
                wf, xf = vr(WF[wb][ci], 4), vr(XF[xs][tt], 4)
                A, B = (xf, wf) if swapped else (wf, xf)
                a(f"v_mfma_f32_16x16x32_bf16 {vr(gacc(tt, ci, acc), 4)}, {A}, {B}, {vr(gacc(tt, ci, acc), 4)}")
                a("\n".join(fill[m]))
        if 0 < cfg.get("trace", 0) < 3:
            stamp(a, prof, 20)
        a(f"s_cbranch_scc1 {L(name)}")

    def joint(name, sw):
        gemm_body(name, [(0, 0, GA, sw, wreads(LF, 0, 1)), (0, 1, GB, False, both(LW, 1, 0)),
                         (1, 0, GA, sw, wreads(LF, 1, 1)), (1, 1, GB, False, both(LW, 0, 0))], True, 7)

    def single(name, part, acc, sw, barrier, count_to):
        gemm_body(name, [(0, 0, acc, sw, both(part, 1, 1)), (1, 1, acc, sw, both(part, 0, 0))], barrier, count_to)

    def tile_addr(e_reg, e_lane, e_st):
        a(f"""
        v_and_b32 v{T[0]}, 15, v{vL}
        v_lshrrev_b32 v{T[1]}, 4, v{vL}
        s_lshr_b32 s{s_t0}, s{s_wj}, 1
        s_lshl_b32 s{s_t0}, s{s_t0}, 8
        s_add_u32 s{s_t0}, s{s_t0}, {L_NM}
        v_lshl_add_u32 v{e_reg}, v{T[1]}, 4, s{s_t0}
        s_and_b32 s{s_t1}, s{s_wj}, 1
        s_lshl_b32 s{s_t0}, s{s_t1}, 8
        s_add_u32 s{s_t0}, s{s_t0}, {L_NM}
        v_lshl_add_u32 v{e_lane}, v{T[0]}, 2, s{s_t0}
        v_bfrev_b32 v{T[1]}, v{T[1]}
        v_lshrrev_b32 v{T[1]}, 15, v{T[1]}
        v_lshl_add_u32 v{T[1]}, v{T[0]}, 4, v{T[1]}
        s_lshl_b32 s{s_t0}, s{s_rb}, 1
        s_add_u32 s{s_t0}, s{s_t0}, s{s_t1}
        s_lshl_b32 s{s_t0}, s{s_t0}, 10
        v_add_u32 v{e_st}, s{s_t0}, v{T[1]}
        """)

    def put_piece(src, addr, x, y):
        return f"buffer_store_dwordx4 {vr(src, 4)}, v{addr}, {WSD}, s{s_o[x]} offen offset:{256 * y} {STF}"

    def pack_tiles(acc, math, dst, addr=None, between=None):
        pend = []
        for tt in range(4):
            for cp in range(2):
                ob = dst(cp, tt)
                r0 = gacc(tt, 2 * cp, acc)
                math(tt, [(r0 + 2 * p, 8 * cp + 2 * p) for p in range(4)])
                a("\n".join(pend))
                for p in range(4):
                    a(f"v_cvt_pk_bf16_f32 v{ob + p}, v{r0 + 2 * p}, v{r0 + 2 * p + 1}")
                pend = [f"v_permlane16_swap_b32 v{ob}, v{ob + 2}", f"v_permlane16_swap_b32 v{ob + 1}, v{ob + 3}"]
                if addr:
                    pend.append(put_piece(ob, addr, cp, tt))
            if between:
                between(tt)
        a("s_nop 1\n" + "\n".join(pend))

    def key_perm(dst, src, t0, t1):
        a(f"""
        v_bfe_u32 v{t0}, v{src}, 2, 1
        v_bfe_u32 v{t1}, v{src}, 3, 2
        v_lshl_add_u32 v{t0}, v{t0}, 2, v{t1}
        v_and_b32 v{t1}, 3, v{src}
        v_lshl_add_u32 v{dst}, v{t0}, 2, v{t1}
        """)

    def v_feature(dst, row, t0, t1):
        swap23(a, dst, row, t0, t1)
        a(f"""
        s_lshl_b32 s{s_t0}, s{s_par}, 2
        s_mul_i32 s{s_t1}, s{s_par}, -16
        v_cmp_gt_u32 vcc, 16, v{row}
        v_add_u32 v{dst}, s{s_t0}, v{dst}
        v_add_u32 v{t0}, s{s_t1}, v{row}
        v_cndmask_b32 v{dst}, v{t0}, v{dst}, vcc
        """)

    def kv_addr(first_chunk):
        a(f"v_and_b32 v{T[0]}, 31, v{vL}\nv_lshrrev_b32 v{T[1]}, 5, v{vL}")
        key_perm(T[2], T[0], T[3], T[4])
        a(f"""
        v_lshlrev_b32 v{T[3]}, 4, v{T[2]}
        v_lshl_add_u32 v{vK}, v{T[1]}, 15, v{T[3]}
        v_add_u32 v{vK}, s{s_cm}, v{vK}
        v_lshl_add_u32 v{vR_}, v{T[1]}, 9, v{T[3]}
        v_add_u32 v{vR_}, s{s_cr}, v{vR_}
        v_cmp_le_u32 vcc, 20, v{vL}
        s_lshl_b32 s{s_t0}, s{s_wj}, 10
        s_andn2_b32 s{s_kc}, 1, s2
        s_mul_i32 s{s_kc}, s{s_kc}, {cfg['krot']}
        v_cndmask_b32 v{T[2]}, 0, 1, vcc
        v_mul_u32_u24 v{T[3]}, 20, v{T[2]}
        v_sub_u32 v{T[3]}, v{vL}, v{T[3]}
        v_mul_u32_u24 v{vV}, 10240, v{T[2]}
        """)
        v_feature(T[2], T[3], T[4], T[5])
        a(f"""
        s_mul_i32 s{s_t0}, s{s_head}, 320
        v_lshl_add_u32 v{vV}, v{T[2]}, 4, v{vV}
        v_add_u32 v{vV}, s{s_t0}, v{vV}
        """)

    def kv_dma(chunk):
        base = KV + ((chunk + 2) % 3) * SLOT
        a(f"""
        s_and_b32 s{s_t0}, s{s_kc}, 7
        s_lshl_b32 s{s_t0}, s{s_t0}, 2
        s_add_u32 s{s_t0}, s{s_t0}, s{s_wj}
        s_lshl_b32 s{s_ko}, s{s_t0}, 10
        s_add_u32 s{s_ko}, s{s_ko}, {C_K * CH}
        s_mul_i32 s{s_vo}, s{s_t0}, 81920
        s_add_u32 s{s_vo}, s{s_vo}, {WS_V}
        s_add_u32 s{s_kc}, s{s_kc}, 1
        s_lshl_b32 s{s_t0}, s{s_wj}, 11
        s_add_u32 m0, s{s_t0}, {base}
        s_lshl_b32 s{s_t1}, s{s_wj}, 10
        buffer_load_dwordx4 v{vK}, {WSD}, s{s_ko} offen sc1 lds
        s_add_u32 m0, s{s_t0}, {base + 512}
        s_mul_i32 s{s_t0}, s{s_wj}, {4 * 656}
        buffer_load_dwordx4 v{vK}, {WSD}, s{s_ko} offen offset:512 sc1 lds
        s_add_u32 m0, s{s_t1}, {base + OFF_R}
        s_nop 0
        buffer_load_dwordx4 v{vR_}, {WSD}, s{s_ko} offen sc1 lds
        s_mov_b32 exec_hi, 0xff
        """)
        for i in range(4):
            a(f"""
            s_add_u32 m0, s{s_t0}, {base + OFF_V + 656 * i}
            s_add_u32 s{s_t1}, s{s_vo}, {20480 * i}
            buffer_load_dwordx4 v{vV}, {WSD}, s{s_t1} offen sc1 lds
            """)
        a("s_mov_b32 exec_hi, -1")

    def ones_addr(dst, first_slot, nslots):
        a(f"""
        v_min_u32 v{dst}, {16 * nslots - 1}, v{vL}
        v_lshrrev_b32 v{T[3]}, 4, v{dst}
        v_and_b32 v{dst}, 15, v{dst}
        v_mul_u32_u24 v{T[3]}, {SLOT}, v{T[3]}
        v_mul_u32_u24 v{dst}, 656, v{dst}
        v_add_u32 v{dst}, v{dst}, v{T[3]}
        v_add_u32 v{dst}, {KV + first_slot * SLOT + OFF_V + 640}, v{dst}
        """)

    def ones_write(addr, tmp):
        for r in range(4):
            a(f"v_mov_b32 v{tmp + r}, 0x3f803f80")
        a(f"ds_write_b128 v{addr}, {vr(tmp, 4)}")

    def set_flag(base):
        a(f"""
        s_lshl_b32 s{s_t0}, s{s_fl}, 7
        s_add_u32 s{s_t0}, s{s_t0}, {base}
        v_lshlrev_b32 v{T[4]}, 2, v{vL}
        v_mov_b32 v{T[3]}, s{s_tag}
        {"s_mov_b32 exec_hi, 0" if cfg["full"] else "s_mov_b64 exec, 1"}
        buffer_store_dword v{T[3]}, v{T[4]}, {WSD}, s{s_t0} offen {FSF}
        s_mov_b64 exec, -1
        """)

    def flag_of_tile(dst, rh, unit):
        a(f"v_lshl_add_u32 v{dst}, v{unit}, 5, {rh}\nv_lshlrev_b32 v{dst}, 7, v{dst}")

    def head_unit(dst, sel):
        a(f"""
        s_mul_i32 s{s_t0}, s{s_head}, 20
        v_mad_u32_u24 v{dst}, v{sel}, 19, s{s_t0}
        v_lshrrev_b32 v{dst}, 6, v{dst}
        """)

    def wait_flags(name, base, offs, rounds=SPIN):
        a(f"""
        s_mov_b32 s{s_t0}, {base}
        s_mov_b32 s{s_spin}, {rounds}
        s_branch {L(name + '_ld')}
        {L(name)}:
        {"s_mov_b64 exec, vcc" if cfg["thin"] > 1 else ""}
        s_sleep {cfg['slp']}
        {L(name + '_ld')}:
        buffer_load_dword v{T[3]}, v{offs[0]}, {WSD}, s{s_t0} offen {PLF}
        """)
        if len(offs) > 1:
            a(f"buffer_load_dword v{T[4]}, v{offs[1]}, {WSD}, s{s_t0} offen {PLF}")
        a(f"s_sub_u32 s{s_spin}, s{s_spin}, 1\ns_waitcnt vmcnt(0)")
        if len(offs) == 1:
            a(f"v_mov_b32 v{T[4]}, v{T[3]}")
        retry(name)
        if cfg["thin"] > 1:
            a("s_mov_b64 exec, -1")

    def retry(name):
        a(f"""
        v_cmp_ne_u32 vcc, s{s_tag}, v{T[3]}
        v_cmp_ne_u32 s[{s_t2}:{s_t2 + 1}], s{s_tag}, v{T[4]}
        s_cmp_eq_u32 s{s_spin}, 0
        s_cbranch_scc1 {L(name + '_done')}
        s_or_b64 vcc, vcc, s[{s_t2}:{s_t2 + 1}]
        s_cbranch_scc1 {L(name)}
        {L(name + '_done')}:
        """)

    def relayout(part):
        TF, TA, TV, TS = 40, [11, 12], [228, 229, 230, 231, 232], [33, 34, 35]
        s_q, s_wl = 10, s_spin
        if part == 0:
            a(f"""
            s_setprio 0
            s_lshl_b32 s{s_q}, s{s_w}, 4
            s_add_u32 s{s_q}, s{s_q}, s{s_rb}
            """)
        for i in range(5):
            a(f"""
            v_add_u32 v{T[2]}, {64 * i}, v{vL}
            v_mul_u32_u24 v{T[3]}, 3277, v{T[2]}
            v_lshrrev_b32 v{T[3]}, 16, v{T[3]}
            v_mul_u32_u24 v{T[3]}, {1280 - 320}, v{T[3]}
            v_lshl_add_u32 v{TV[i]}, v{T[2]}, 4, v{T[3]}
            """)
        a(f"s_mul_i32 s{s_wl}, s{s_w}, 20480\ns_mov_b32 s{sW + 3}, 0x00020000")
        if part == 1:
            a(f"""
        s_add_u32 s{sB}, s22, {WS_WT}
        s_addc_u32 s{sB + 1}, s23, 0
        s_mov_b32 s{sB + 2}, {74 * KS_ROW}
        s_mov_b32 s{sB + 3}, 0x00020000
        s_mul_i32 s{s_o[0]}, s{s_q}, 20480
        s_add_u32 s{s_o[1]}, s{s_o[0]}, 10240
        s_mul_i32 s{s_o[2]}, s{s_q}, 10240
        s_add_u32 s{s_o[2]}, s{s_o[2]}, {256 * 10240}
        v_lshrrev_b32 v{T[0]}, 4, v{vL}
        v_bfe_u32 v{T[1]}, v{vL}, 2, 2
        v_lshl_add_u32 v{T[0]}, v{T[0]}, 3, v{T[1]}
        v_mul_u32_u24 v{T[0]}, 320, v{T[0]}
        v_add_u32 v{T[0]}, s{s_wl}, v{T[0]}
        v_and_b32 v{T[1]}, 3, v{vL}
        v_lshl_add_u32 v{TA[0]}, v{T[1]}, 4, v{T[0]}
        v_lshl_add_u32 v{TA[1]}, v{T[1]}, 3, v{T[0]}
        v_lshlrev_b32 v{TS[0]}, 4, v{vL}
        v_add_u32 v{TS[1]}, 4096, v{TS[0]}
        v_add_u32 v{TS[2]}, 8192, v{TS[0]}
        """)

        def fetch(u):
            a(f"s_lshl_b32 s{s_t2}, s{s_q}, 1\ns_add_u32 s{s_t2}, s{s_t2}, {u}" if u < 2 else f"s_add_u32 s{s_t2}, s{s_q}, 256")
            a(f"""
            s_lshr_b32 s{s_t0}, s{s_t2}, 2
            s_cmp_lt_u32 s{s_t0}, 54
            s_cselect_b32 s{sW}, s16, s8
            s_cselect_b32 s{sW + 1}, s17, s9
            s_mov_b32 s{sW + 2}, {F * D * 2}
            s_cselect_b32 s{sW + 2}, s{sW + 2}, {D * D * 2}
            s_cselect_b32 s{s_t1}, 0, 54
            s_sub_u32 s{s_t0}, s{s_t0}, s{s_t1}
            s_mul_i32 s{s_wo}, s{s_t0}, {32 * 1280}
            s_and_b32 s{s_t1}, s{s_t2}, 3
            s_mul_i32 s{s_t1}, s{s_t1}, 320
            s_add_u32 s{s_wo}, s{s_wo}, s{s_t1}
            """)
            for g in range(2):
                for i in range(5):
                    a(f"s_add_u32 m0, s{s_wl}, {(u & 1) * 10240 + g * 5120 + i * 1024}\ns_nop 0")
                    a(f"buffer_load_dwordx4 v{TV[i]}, s[{sW}:{sW + 3}], s{s_wo} offen lds")
                a(f"s_add_u32 s{s_wo}, s{s_wo}, {16 * 1280}")

        def turn(u):
            for f in range(10):
                c = f % 5
                va, off = (TA[0], 64 * (c >> 1) + 8 * (c & 1)) if c < 4 else (TA[1], 128)
                for h in range(2):
                    a(f"ds_read_b64_tr_b16 {vr(TF + u * 40 + 4 * f + 2 * h, 2)}, v{va} offset:{(u & 1) * 10240 + 160 * (f // 5) + off + 1280 * h}")
                if c == 4:
                    a("s_waitcnt lgkmcnt(0)")

        def put(u):
            for f in range(10):
                a(f"buffer_store_dwordx4 {vr(TF + u * 40 + 4 * f, 4)}, v{TS[f >> 2]}, s[{sB}:{sB + 3}], s{s_o[u]} offen offset:{1024 * (f & 3)} sc1")

        if part == 0:
            fetch(0)
            fetch(1)
            return
        stamp(a, prof, 31)
        a("s_waitcnt vmcnt(0)")
        stamp(a, prof, 32)
        turn(0)
        a(f"s_cmp_lt_u32 s{s_q}, 40\ns_cbranch_scc0 {L('tr2')}")
        fetch(2)
        a(f"{L('tr2')}:")
        turn(1)
        if cfg["ded"] == 1:
            a("s_barrier")
        stamp(a, prof, 33)
        put(0)
        put(1)
        a(f"s_cmp_lt_u32 s{s_q}, 40\ns_cbranch_scc0 {L('tr3')}\ns_waitcnt vmcnt(20)")
        turn(2)
        put(2)
        a(f"{L('tr3')}:")
        stamp(a, prof, 35)

    def q_addr(vq, vqr):
        a(f"""
        v_and_b32 v{T[0]}, 31, v{vL}
        v_lshrrev_b32 v{T[1]}, 5, v{vL}
        s_lshl_b32 s{s_t0}, s{s_qb}, 2
        s_add_u32 s{s_t0}, s{s_t0}, s{s_wj}
        s_lshl_b32 s{s_t0}, s{s_t0}, 10
        s_lshl_b32 s{s_t1}, s{s_par}, 3
        s_add_u32 s{s_t2}, s{s_t0}, s{s_t1}
        v_lshlrev_b32 v{T[2]}, 4, v{T[0]}
        v_lshl_add_u32 v{vq}, v{T[1]}, 15, v{T[2]}
        v_add_u32 v{vq}, s{s_t0}, v{vq}
        v_add_u32 v{vqr}, s{s_t2}, v{T[2]}
        """)

    eR, eL, eS, hR, hL, hS = 17, 18, 19, 8, 9, 10
    IDX, AK0, AR0, AV0, VQ, VQR, AQ = 20, 21, 22, 23, 24, 25, 26
    AK, AR, AV = 27, 28, 29
    R = Regs(216)
    MX = [R.get(), R.get()]
    Q1 = [R.get(4), R.get(4)]
    Q2 = [[R.get(2), R.get(2)], [R.get(2), R.get(2)]]
    K1 = [R.get(4), R.get(4)]
    K2 = [R.get(2), R.get(2)]
    V0 = [R.get(4), R.get(4)]
    PH = 32
    SS, CM, TS, OO, V1 = [96, 160], [112, 128], 144, [176, 192], [208, 212]

    AC, SO = 72, 80
    a(f"""
    {L('g0')}:
    v_lshlrev_b32 v{SO}, 4, v{T[0]}
    """)
    srd(a, sWS, 22, WS_TOP)
    load_tag()
    frag_addr()
    zero(GA, 128)
    attn_ids()
    tile_addr(hR, hL, hS)
    a(f"""
    v_mov_b32 v{eR}, v{hR}
    v_mov_b32 v{eS}, v{hS}
    s_cmp_lt_u32 s{s_cg}, 10
    s_cbranch_scc1 {L('ad_j')}
    v_lshrrev_b32 v{T[1]}, 4, v{vL}
    s_lshl_b32 s{s_t0}, s{s_t1}, 8
    s_add_u32 s{s_t0}, s{s_t0}, {L_NM}
    v_lshl_add_u32 v{eR}, v{T[1]}, 4, s{s_t0}
    s_lshr_b32 s{s_t2}, s{s_wj}, 1
    s_lshl_b32 s{s_t0}, s{s_t2}, 8
    s_add_u32 s{s_t0}, s{s_t0}, {L_CSA}
    v_lshl_add_u32 v{eL}, v{T[0]}, 2, s{s_t0}
    s_sub_u32 s{s_t0}, s{s_cg}, 10
    s_lshl_b32 s{s_t0}, s{s_t0}, 1
    s_add_u32 s{s_t0}, s{s_t0}, s{s_t2}
    s_lshl_b32 s{s_t0}, s{s_t0}, 10
    v_mul_u32_u24 v{T[1]}, 10240, v{T[1]}
    v_lshl_add_u32 v{T[1]}, v{T[0]}, 4, v{T[1]}
    v_add_u32 v{eS}, s{s_t0}, v{T[1]}
    {L('ad_j')}:
    """)
    q_addr(VQ, VQR)
    a(f"""
    v_mov_b32 v{IDX}, 0xdddddddd
    v_lshlrev_b32 v{AK0}, 4, v{vL}
    s_mul_i32 s{s_t0}, s{s_wj}, 3072
    v_add_u32 v{AQ}, s{s_t0}, v{AK0}
    v_add_u32 v{AK0}, {KV}, v{AK0}
    v_add_u32 v{AR0}, s{s_t1}, v{AK0}
    v_mad_u32_u24 v{T[2]}, v{T[1]}, 20, v{T[0]}
    v_lshlrev_b32 v{T[2]}, 4, v{T[2]}
    v_add_u32 v{T[2]}, {KV}, v{T[2]}
    v_cmp_gt_u32 vcc, 20, v{T[0]}
    v_mov_b32 v{T[4]}, {LDS_OOB}
    v_and_b32 v{T[3]}, 27, v{T[0]}
    v_cndmask_b32 v{T[2]}, v{T[4]}, v{T[2]}, vcc
    v_cmp_eq_u32 vcc, 24, v{T[3]}
    v_mov_b32 v{T[4]}, {KV + 640}
    s_mov_b32 s{s_slot}, {2 * SLOT}
    v_cndmask_b32 v{AV0}, v{T[2]}, v{T[4]}, vcc
    v_add_u32 v{AK}, s{s_slot}, v{AK0}
    v_add_u32 v{AR}, s{s_slot}, v{AR0}
    v_add_u32 v{AV}, s{s_slot}, v{AV0}
    """)
    a(f"""
    s_add_u32 s{s_t0}, s{s_t0}, s{s_t1}
    v_lshl_add_u32 v30, v{T[0]}, 4, s{s_t0}
    v_mov_b32 v31, v30
    s_mov_b32 exec_hi, 0
    v_mov_b32 v31, {LDS_OOB}
    s_not_b64 exec, exec
    v_mov_b32 v30, {LDS_OOB}
    s_mov_b64 exec, -1
    """)
    a("v_mov_b32 v84, 0x3f803f80")
    a(f"""
    s_lshl_b32 s{s_o[2]}, s{s_cg}, 1
    s_lshr_b32 s{s_t0}, s{s_wj}, 1
    s_add_u32 s{s_o[2]}, s{s_o[2]}, s{s_t0}
    s_lshl1_add_u32 s{s_ho}, s{s_cf}, s{s_t0}
    s_lshl_b32 s{s_fl}, s{s_o[2]}, 4
    s_add_u32 s{s_fl}, s{s_fl}, s{s_rb}
    s_lshl_b32 s{s_fl}, s{s_fl}, 1
    s_and_b32 s{s_t0}, s{s_wj}, 1
    s_add_u32 s{s_fl}, s{s_fl}, s{s_t0}
    s_mov_b32 s{s_c}, 0
    s_mov_b32 s{s_ring}, 0
    s_mov_b32 s{s_wstep}, {STG}
    s_waitcnt lgkmcnt(0)
    s_add_u32 s{s_tag}, s{s_tag}, 1
    s_cmp_ge_u32 s{s_wj}, s{s_hook}
    s_cbranch_scc1 {L('st_m')}
    v_mov_b32 v{AC}, 0
    v_mov_b32 v{AC + 2}, 0
    v_mov_b32 v{AC + 1}, s{s_tag}
    v_mov_b32 v{AC + 3}, s{s_tag}
    """)
    for q in range(5):
        a(f"s_waitcnt vmcnt({max(4 - cfg['skip'] - q, 0)})")
        for r in range(SD + 4 * q, SD + 4 * q + 4):
            a(f"v_dot2c_f32_bf16 v{AC}, v{r}, v84\nv_dot2c_f32_bf16 v{AC + 2}, v{r}, v{r}")
    a("s_nop 1")
    for sh in (8, 4, 2, 1):
        a(f"""
        s_nop 0
        v_add_f32_dpp v{AC}, v{AC}, v{AC} row_ror:{sh} row_mask:0xf bank_mask:0xf
        v_add_f32_dpp v{AC + 2}, v{AC + 2}, v{AC + 2} row_ror:{sh} row_mask:0xf bank_mask:0xf
        """)
    a(f"""
    v_mul_f32 v{AC}, {f32(-1.0 / D)}, v{AC}
    v_mul_f32 v{AC + 2}, {f32(1.0 / D)}, v{AC + 2}
    v_fma_f32 v{AC + 2}, -v{AC}, v{AC}, v{AC + 2}
    v_max_f32 v{AC + 2}, 0, v{AC + 2}
    v_add_f32 v{AC + 2}, {f32(1e-5)}, v{AC + 2}
    v_rsq_f32 v{AC + 2}, v{AC + 2}
    s_lshl_b32 s{s_t0}, s{s_wj}, 6
    s_add_u32 s{s_t0}, s{s_t0}, {L_RP}
    v_add_u32 v{T[2]}, s{s_t0}, v{SO}
    s_mov_b32 exec_lo, 0x00010001
    s_mov_b32 exec_hi, 0x00010001
    ds_write_b128 v{T[2]}, {vr(AC, 4)}
    s_mov_b64 exec, -1
    s_waitcnt lgkmcnt(0)
    {L('st_m')}:
    s_cmp_eq_u32 s{s_cg}, 15
    s_cbranch_scc1 {L('tr' if cfg['ded'] else 'a_none')}
    """)
    stamp(a, prof, 1)
    a("s_barrier")
    stamp(a, prof, 2)
    a("\n".join(both(LW, 0, 0)))
    a(f"""
    s_cmp_ge_u32 s{s_cg}, 10
    s_waitcnt lgkmcnt(0)
    s_cbranch_scc0 {L('aN')}
    s_cmp_ge_u32 s{s_ho}, 27
    s_cbranch_scc1 {L('sV')}
    """)

    def lane_stats(dst, addr):
        for tt in range(4):
            a(f"ds_read2_b32 {vr(dst + 2 * tt, 2)}, v{addr} offset0:{16 * tt} offset1:{128 + 16 * tt}")

    def reg_stats(dst, addr, off):
        for i in range(4):
            a(f"ds_read_b128 {vr(dst + 4 * i, 4)}, v{addr} offset:{off + 64 * i}")

    def centre(cs, nr, tt, prs):
        for r, q in prs:
            a(f"v_pk_fma_f32 {vr(r, 2)}, {vr(cs + q, 2)}, {vr(nr + 2 * tt, 2)}, {vr(r, 2)} op_sel:[0,0,0] op_sel_hi:[1,0,1]")

    E0, E1 = 224, 240
    F0, F1, F2 = 96, 112, 128

    def qk_math(tt, prs):
        centre(E0, E1, tt, prs)
        for r, q in prs:
            a(f"v_pk_mul_f32 {vr(r, 2)}, {vr(r, 2)}, {vr(E1 + 2 * tt, 2)} op_sel:[0,1] op_sel_hi:[1,1]")

    def ffn_math(tt, prs):
        centre(F0, F2, tt, prs)
        for r, q in prs:
            a(f"v_pk_fma_f32 {vr(r, 2)}, {vr(r, 2)}, {vr(F2 + 2 * tt, 2)}, {vr(F1 + q, 2)} op_sel:[0,1,0] op_sel_hi:[1,1,1]")
        for r, q in prs:
            a(f"v_max_f32 v{r}, 0, v{r}\nv_max_f32 v{r + 1}, 0, v{r + 1}")
        for r, q in prs:
            a(f"v_pk_mul_f32 {vr(r, 2)}, {vr(r, 2)}, {vr(r, 2)}")

    CV = T[2]

    def twice(name, sw, fetch):
        single(name, LW, GA, sw, True, 9)
        a(f"s_cmp_eq_u32 s{s_c}, 10\ns_cbranch_scc1 {L(name + 'e')}")
        fetch()
        a(f"s_branch {L(name)}\n{L(name + 'e')}:")

    def v_stats():
        a(f"ds_read2_b32 {vr(CV, 2)}, v{eL} offset0:0 offset1:16\nds_read2_b32 {vr(CV + 2, 2)}, v{eL} offset0:32 offset1:48")
        reg_stats(E0, eR, 0)
        reg_stats(E1, eR, 512)

    joint("jV", True)
    twice("sV", True, v_stats)
    a(f"""
    s_and_b32 s{s_t1}, s{s_wj}, 1
    s_lshl_b32 s{s_t0}, s{s_rb}, 1
    s_add_u32 s{s_t0}, s{s_t0}, s{s_t1}
    s_mul_i32 s{s_o[0]}, s{s_t0}, 81920
    s_add_u32 s{s_o[0]}, s{s_o[0]}, {WS_V}
    s_add_u32 s{s_o[1]}, s{s_o[0]}, 40960
    """)
    a("\n".join(wreads(LF, 0, 0)))
    stamp(a, prof, 3)
    for kt in range(2):
        for ci in range(4):
            ob = 88 + 4 * (ci & 1)
            prs = [(gacc(tt, ci) + i, 4 * tt + i) for tt in (2 * kt, 2 * kt + 1) for i in (0, 2)]
            for r, q in prs:
                a(f"v_pk_fma_f32 {vr(r, 2)}, {vr(E0 + q, 2)}, {vr(CV + (ci & 2), 2)}, {vr(r, 2)} op_sel:[0,{ci & 1},0] op_sel_hi:[1,{ci & 1},1]")
            for r, q in prs:
                a(f"v_pk_mul_f32 {vr(r, 2)}, {vr(r, 2)}, {vr(E1 + q, 2)}")
            for p in range(4):
                a(f"v_cvt_pk_bf16_f32 v{ob + p}, v{prs[p][0]}, v{prs[p][0] + 1}")
            a(put_piece(ob, eS, kt, ci))
    a(f"""
    s_cmp_ge_u32 s{s_ho}, 27
    s_cbranch_scc0 {L('a_done')}
    {L('a_only')}:
    s_barrier
    s_waitcnt vmcnt(0) lgkmcnt(0)
    """)
    set_flag(WS_FA)
    a(f"""
    s_barrier
    {L('a_none')}:
    s_mov_b32 s{s_o[0]}, {WS_TOP}
    s_mov_b32 s{s_o[1]}, {WS_TOP}
    s_branch {L('a_go')}
    """)
    a(f"{L('aN')}:\ns_cmp_ge_u32 s{s_ho}, 27\ns_cbranch_scc1 {L('sN')}")
    joint("jN", False)
    twice("sN", False, lambda: (reg_stats(E0, eR, L_CSA - L_NM), lane_stats(E1, hL)))
    a(f"""
    s_lshl_b32 s{s_o[0]}, s{s_o[2]}, 18
    s_add_u32 s{s_o[1]}, s{s_o[0]}, {4 * CH}
    s_cmp_lt_u32 s{s_cg}, 5
    s_cselect_b32 s{s_t0}, {QSCALE}, 1.0
    """)
    a("\n".join(wreads(LF, 0, 0)))
    stamp(a, prof, 3)
    for tt in range(4):
        a(f"v_mul_f32 v{E1 + 2 * tt + 1}, s{s_t0}, v{E1 + 2 * tt + 1}")
    pack_tiles(GA, qk_math, lambda cp, tt: 248 + 4 * cp, eS)
    a(f"s_cmp_ge_u32 s{s_ho}, 27\ns_cbranch_scc1 {L('a_only')}\n{L('a_done')}:")
    stamp(a, prof, 4)
    a("s_waitcnt lgkmcnt(0)\ns_barrier")
    single("sF", LF, GB, False, False, 0)
    a(f"""
    s_cmp_eq_u32 s{s_c}, 13
    s_cbranch_scc1 {L('eF')}
    s_cmp_eq_u32 s{s_c}, 12
    s_cbranch_scc1 {L('hF')}
    """)
    reg_stats(F0, hR, L_CSB - L_NM)
    reg_stats(F1, hR, L_BI - L_NM)
    lane_stats(F2, hL)

    def hand_over():
        a("s_waitcnt vmcnt(0)")
        set_flag(WS_FA)
        stamp(a, prof, 5)

    if cfg["flag"] == 2:
        hand_over()
    a(f"s_branch {L('sF')}\n{L('hF')}:")
    if cfg["flag"] == 1:
        hand_over()
    a(f"s_barrier\ns_branch {L('sF')}\n{L('eF')}:")
    stamp(a, prof, 12)
    pack_tiles(GB, ffn_math, lambda cp, tt: PH + 16 * cp + 4 * tt)
    a(f"""
    s_add_u32 s{s_o[0]}, s{s_ho}, 20
    s_lshl_b32 s{s_o[0]}, s{s_o[0]}, 18
    s_add_u32 s{s_o[1]}, s{s_o[0]}, {4 * CH}
    {L('a_go')}:
    s_and_b32 s{s_fl}, s{s_fl}, 31
    s_lshl_b32 s{s_t0}, s{s_ho}, 5
    s_add_u32 s{s_fl}, s{s_fl}, s{s_t0}
    s_setprio 1
    s_mov_b32 s{s_c}, 0
    """)
    zero(SS[1], 16 + 32 + 8)
    stamp(a, prof, 13)
    hput = [put_piece(PH + 4 * k, hS, k >> 2, k & 3) for k in range(8)]
    if cfg["hpos"] == 0:
        a("s_barrier")
        stamp(a, prof, 18)
        a("\n".join(hput))
        stamp(a, prof, 19)
        hput = [""] * 8
    a("s_barrier")
    stamp(a, prof, 6)
    for ab in range(2):
        a(f"ds_read_b128 {vr(Q1[ab], 4)}, v{AQ} offset:{L_Q + 1024 * ab}")
        for par in range(2):
            a(f"ds_read_b64 {vr(Q2[ab][par], 2)}, v{30 + par} offset:{L_Q + 2048 + 512 * ab}")

    def rdK1(t):
        return f"ds_read_b128 {vr(K1[t & 1], 4)}, v{AK} offset:{(t & 7) * 1024}"

    def rdK2(p):
        return f"ds_read_b64 {vr(K2[p & 1], 2)}, v{AR} offset:{OFF_R + (p & 3) * 1024}"

    def rdV(j, t):
        return f"ds_read_b128 {vr((V0, V1)[j][t & 1], 4)}, v{AV} offset:{OFF_V + ((t & 7) * 2 + j) * 656}"

    def qk1(dst, ab, t, c):
        return f"v_mfma_f32_32x32x16_bf16 {vr(dst, 16)}, {vr(K1[t & 1], 4)}, {vr(Q1[ab], 4)}, {c}"

    def qk2(dst, ab, t):
        return f"v_mfma_f32_32x32x8_bf16 {vr(dst, 16)}, {vr(K2[(t >> 1) & 1], 2)}, {vr(Q2[ab][t & 1], 2)}, {vr(dst, 16)}"

    def pv(ab, j, t):
        return f"v_smfmac_f32_32x32x32_bf16 {vr(OO[ab], 16)}, {vr((V0, V1)[j][t & 1], 4)}, {vr(SS[ab] + 8 * j, 8)}, v{IDX}"

    def row_max(dst, bufs):
        regs = [b + i for b in bufs for i in range(16)]
        a(f"v_max3_f32 v{dst}, v{regs[0]}, v{regs[1]}, v{regs[2]}")
        rest = regs[3:]
        while len(rest) >= 2:
            a(f"v_max3_f32 v{dst}, v{dst}, v{rest[0]}, v{rest[1]}")
            rest = rest[2:]
        if rest:
            a(f"v_max_f32 v{dst}, v{dst}, v{rest[0]}")

    def set_shift(ab, shift):
        m = MX[ab]
        a(f"""
        v_mov_b32 v{T[2]}, v{m}
        s_nop 1
        v_permlane32_swap_b32 v{m}, v{T[2]}
        v_max_f32 v{m}, v{m}, v{T[2]}
        v_sub_f32 v{CM[ab]}, {f32(-shift) if shift else 0}, v{m}
        v_mov_b32 v{CM[ab] + 1}, v{CM[ab]}
        """)
        for i in range(2, 16, 2):
            a(f"v_mov_b64 {vr(CM[ab] + i, 2)}, {vr(CM[ab], 2)}")

    a("\n".join([rdK1(0), rdK2(0), rdK1(1), rdV(0, 0), rdV(1, 0)]))
    a("s_waitcnt lgkmcnt(0)" if prof is True else "s_waitcnt lgkmcnt(2)")
    est = {(0, 0): SS[0], (0, 1): CM[0], (1, 0): TS, (1, 1): CM[1]}
    for t in range(2):
        a(qk1(est[0, t], 0, t, 0) + "\n" + qk2(est[0, t], 0, t))
    a(qk1(est[1, 0], 1, 0, 0) + "\ns_nop 7\ns_nop 0")
    work = capture(lambda: (row_max(MX[0], [SS[0], CM[0]]), set_shift(0, SHIFT)))
    for k, x in enumerate((qk2(est[1, 0], 1, 0), qk1(est[1, 1], 1, 1, 0), qk2(est[1, 1], 1, 1))):
        a(x + "\n" + "\n".join(work[6 * k:6 * k + 6]))
    a("\n".join(work[18:]) + "\ns_nop 1")
    work = capture(lambda: (row_max(MX[1], [TS, CM[1]]), set_shift(1, SHIFT)))
    a(qk1(SS[0], 0, 0, vr(CM[0], 16)) + "\n" + "\n".join(work[:7]))
    a(qk2(SS[0], 0, 0) + "\n" + "\n".join(work[7:]))
    a("s_waitcnt lgkmcnt(0)")

    PA = cfg["pa"]

    def slot_events(ab, t):
        o = 1 - ab
        tp = t - 1 if ab == 0 else t
        tn = t if ab == 0 else t + 1
        e = [("i", f"v_exp_f32 v{SS[ab] + i}, v{SS[ab] + i}") for i in range(16)]
        ev = []
        if ab == 0 and t % 8 == 7:
            ev += [("i", f"v_add_u32 v{AV}, s{s_slot}, v{AV0}")]
        ev += e[0:2]
        ev += [("use", ("V1", tp)), ("i", pv(o, 1, tp)), ("wait",)]
        if ab == 1 and t % 8 == cfg["hk"]:
            ev += [("l", f"s_cmp_eq_u32 s{s_c}, {1 if cfg['hpos'] else 0}")]
        if ab == 0 and t % 8 == 6:
            ev += [("i", "s_barrier")]
        if ab == 0 and t % 8 == 4:
            ev += [("i", f"s_add_u32 s{s_slot}, s{s_slot}, {SLOT}")]
        if ab == 1 and t % 8 == 4:
            ev += [("i", f"s_cmp_eq_u32 s{s_slot}, {3 * SLOT}")]
        if ab == 1 and t % 8 == 6:
            ev += [("i", f"s_add_u32 s{s_c}, s{s_c}, 1")]
        if ab == 0:
            ev += [("rd", rdV(1, t + 1), ("V1", t + 1))]
        ev += e[2:5]
        if ab == 0 and t % 8 == 6:
            ev += [("i", f"v_add_u32 v{AK}, s{s_slot}, v{AK0}"), ("i", f"v_add_u32 v{AR}, s{s_slot}, v{AR0}")]
        ev += [("use", ("K1", tn)), ("i", qk1(SS[o], o, tn, vr(CM[o], 16))), ("wait",)]
        if ab == 0:
            ev += [("rd", rdK1(t + 2), ("K1", t + 2))]
        else:
            ev += [("rd", rdV(0, t + 1), ("V0", t + 1))]
        ev += e[5:8]
        ev += [("use", ("K2", tn >> 1)), ("i", qk2(SS[o], o, tn))]
        ev += e[8:PA]
        ev += [("use", ("V0", t)), ("i", pv(ab, 0, t)), ("wait",)]
        if ab == 1 and t % 8 == 4:
            ev += [("i", f"s_cselect_b32 s{s_slot}, 0, s{s_slot}")]
        if ab == 1 and t % 8 == cfg["hk"]:
            ev += [("l", f"s_cbranch_scc1 {L('hk')}\n{L('hk_r')}:")]
        if ab == 0:
            ev += [("p", hput[t % 8])]
        if ab == 1 and t % 8 == 7:
            ev += [("i", f"s_cmp_lt_u32 s{s_c}, 8")]
        if ab == 1 and t % 2 == 0:
            ev += [("rd", rdK2(t // 2 + 1), ("K2", t // 2 + 1))]
        ev += e[PA:16]
        return ev

    evs = []
    for t in range(24):
        for ab in range(2):
            evs += [(t, x) for x in slot_events(ab, t)]
    issue_idx = {}
    n = 0
    for t, x in evs:
        if x[0] == "rd":
            issue_idx[x[2]] = n
            n += 1
    tail4 = "\n".join(f"v_exp_f32 v{SS[1] + i}, v{SS[1] + i}" for i in range(PA, 16))

    def trip(kind):
        n, have = 0, -1
        for k, (t, x) in enumerate(evs):
            emit = 8 <= t < 16
            if x[0] == "rd":
                n += 1
                if emit:
                    a(x[1])
            elif x[0] in ("i", kind):
                if emit:
                    a(x[1])
            elif x[0] == "wait" and t >= 4:
                need = -1
                for t2, y in evs[k + 1:]:
                    if y[0] == "wait":
                        break
                    if y[0] == "use":
                        assert issue_idx[y[1]] < n, (t, y)
                        need = max(need, issue_idx[y[1]])
                if need > have and emit:
                    a(f"s_waitcnt lgkmcnt({n - 1 - need})")
                have = max(have, need)
        del a.lines[PA - 16:]
        if 0 < cfg.get("trace", 0) < 4:
            stamp(a, prof, 23)
            a("s_waitcnt lgkmcnt(0)")

    if cfg["hpos"]:
        trip("p")
        a(f".p2align 3\n{L('aloop')}:\n{tail4}")
    else:
        a(f"s_branch {L('aent')}\n.p2align 3\n{L('aloop')}:\n{tail4}\n{L('aent')}:")
    trip("l")
    a(f"s_cbranch_scc1 {L('aloop')}")
    a(tail4)

    def magnitude(ab):
        o, t = OO[ab], T[2 + ab]
        a(f"v_maximum3_f32 v{t}, |v{o}|, |v{o + 1}|, |v{o + 2}|")
        for i in (3, 5, 7, 9):
            a(f"v_maximum3_f32 v{t}, v{t}, |v{o + i}|, |v{o + i + 1}|")
        a(f"v_maximum3_f32 v{t}, v{t}, |v{o + 11}|, |v{o + 11}|")

    def normalise(ab, guard):
        o = OO[ab]
        for p in range(6):
            a(f"v_pk_mul_f32 {vr(o + 2 * p, 2)}, {vr(o + 2 * p, 2)}, {vr(o + 12, 2)} op_sel:[0,1] op_sel_hi:[1,1]")
        for p in range(6):
            a(f"v_cvt_pk_bf16_f32 v{CM[ab] + p}, v{o + 2 * p}, v{o + 2 * p + 1}")
        if guard:
            for p in (1, 3, 5):
                a(f"v_min_u32 v{CM[ab] + p}, -2, v{CM[ab] + p}")

    a(f"v_rcp_f32 v{OO[0] + 13}, v{OO[0] + 12}\ns_waitcnt lgkmcnt(0)")
    a(pv(1, 1, 7))
    stamp(a, prof, 7)
    a(f"""
    s_barrier
    s_mov_b32 s{s_t0}, {f32(2.0 ** 126)}
    s_mov_b32 s{s_t1}, {f32(2.0 ** (-7 - SHIFT))}
    """)
    magnitude(0)
    normalise(0, False)
    a(f"v_rcp_f32 v{OO[1] + 13}, v{OO[1] + 12}")
    magnitude(1)
    a(f"""
    v_maximum3_f32 v{T[4]}, v{T[2]}, v{T[3]}, v{OO[0] + 12}
    v_min_f32 v{T[2]}, v{T[2]}, v{T[3]}
    v_maximum3_f32 v{T[4]}, v{T[4]}, v{OO[1] + 12}, v{OO[1] + 12}
    v_cmp_le_f32 vcc, s{s_t1}, v{T[2]}
    v_cmp_gt_f32 s[{s_t2}:{s_t2 + 1}], s{s_t0}, v{T[4]}
    s_add_u32 s{s_t0}, s{s_cm}, {C_O * CH}
    s_add_u32 s{s_t1}, s{s_cr}, {C_O * CH}
    s_and_b64 vcc, vcc, s[{s_t2}:{s_t2 + 1}]
    s_cmp_eq_u64 vcc, exec
    """)
    a(f"s_branch {L('slow')}" if force_fallback else f"s_cbranch_scc0 {L('slow')}")

    def put_out(ab):
        a(f"""
        buffer_store_dwordx4 {vr(CM[ab], 4)}, v{VQ}, {WSD}, s{s_t0} offen offset:{512 * ab} sc1
        s_mov_b32 exec_hi, 0
        buffer_store_dwordx2 {vr(CM[ab] + 4, 2)}, v{VQR}, {WSD}, s{s_t1} offen offset:{512 * ab} sc1
        s_mov_b32 exec_hi, -1
        """)

    put_out(0)
    normalise(1, False)
    a(f"{L('norm')}:")
    put_out(1)
    stamp(a, prof, 17)
    a("s_barrier")
    stamp(a, prof, 8)
    a(f"s_branch {L('dump')}" if prof else "s_endpgm")

    a(f"{L('hk')}:\ns_waitcnt vmcnt(0)")
    set_flag(WS_FH)
    a(f"s_branch {L('hk_r')}")

    a(f"{L('slow')}:")
    GR, GV = AR, AV
    a(f"v_and_b32 v{T[0]}, 31, v{vL}\nv_lshrrev_b32 v{T[1]}, 5, v{vL}")
    key_perm(T[2], T[0], T[3], T[4])
    a(f"""
    s_lshl_b32 s{s_t0}, s{s_par}, 3
    s_add_u32 s{s_t0}, s{s_t0}, s{s_cr}
    v_lshl_add_u32 v{GR}, v{T[2]}, 4, s{s_t0}
    v_lshl_add_u32 v{vK}, v{T[2]}, 4, s{s_cm}
    v_lshl_add_u32 v{vK}, v{T[1]}, 15, v{vK}
    """)
    v_feature(T[2], T[0], T[3], T[4])
    a(f"""
    s_mul_i32 s{s_t0}, s{s_head}, 320
    v_mul_u32_u24 v{T[4]}, 10240, v{T[1]}
    v_lshl_add_u32 v{T[2]}, v{T[2]}, 4, v{T[4]}
    v_add_u32 v{GV}, s{s_t0}, v{T[2]}
    v_mov_b32 v{MX[0]}, 0xff800000
    v_mov_b32 v{MX[1]}, 0xff800000
    s_mov_b32 s{s_ko}, {C_K * CH}
    {L('slow1')}:
    buffer_load_dwordx4 {vr(K1[0], 4)}, v{vK}, {WSD}, s{s_ko} offen sc1
    buffer_load_dwordx2 {vr(K2[0], 2)}, v{GR}, {WSD}, s{s_ko} offen sc1
    s_add_u32 s{s_ko}, s{s_ko}, 512
    s_waitcnt vmcnt(0)
    """)
    for ab in range(2):
        a(qk1(SS[ab], ab, 0, 0))
        a(qk2(SS[ab], ab, 0))
    a("s_nop 7\ns_nop 3")
    for ab in range(2):
        for i in range(0, 16, 2):
            a(f"v_max3_f32 v{MX[ab]}, v{MX[ab]}, v{SS[ab] + i}, v{SS[ab] + i + 1}")
    a(f"s_cmp_lt_u32 s{s_ko}, {(C_K + 1) * CH}\ns_cbranch_scc1 {L('slow1')}")
    for ab in range(2):
        set_shift(ab, 0)
    zero(OO[0], 32)
    for r in range(4):
        a(f"v_mov_b32 v{V0[0] + r}, 0x3f803f80\nv_mov_b32 v{V1[0] + r}, 0x3f803f80")
    a(f"""
    s_mov_b32 s{s_ko}, {C_K * CH}
    s_mov_b32 s{s_vo}, {WS_V}
    {L('slow2')}:
    buffer_load_dwordx4 {vr(K1[0], 4)}, v{vK}, {WSD}, s{s_ko} offen sc1
    buffer_load_dwordx2 {vr(K2[0], 2)}, v{GR}, {WSD}, s{s_ko} offen sc1
    s_mov_b32 exec_lo, 0xfffff
    s_mov_b32 exec_hi, 0xfffff
    buffer_load_dwordx4 {vr(V0[0], 4)}, v{GV}, {WSD}, s{s_vo} offen sc1
    s_add_u32 s{s_vo}, s{s_vo}, 20480
    buffer_load_dwordx4 {vr(V1[0], 4)}, v{GV}, {WSD}, s{s_vo} offen sc1
    s_mov_b64 exec, -1
    s_add_u32 s{s_vo}, s{s_vo}, 20480
    s_add_u32 s{s_ko}, s{s_ko}, 512
    s_waitcnt vmcnt(0)
    """)
    for ab in range(2):
        a(qk1(SS[ab], ab, 0, vr(CM[ab], 16)))
        a(qk2(SS[ab], ab, 0))
    a("s_nop 7\ns_nop 3")
    for ab in range(2):
        for i in range(16):
            a(f"v_exp_f32 v{SS[ab] + i}, v{SS[ab] + i}")
    a("s_nop 1")
    for ab in range(2):
        a(pv(ab, 0, 0))
        a(pv(ab, 1, 0))
    a(f"""
    s_cmp_lt_u32 s{s_ko}, {(C_K + 1) * CH}
    s_cbranch_scc1 {L('slow2')}
    s_nop 7
    s_nop 3
    v_rcp_f32 v{OO[0] + 13}, v{OO[0] + 12}
    v_rcp_f32 v{OO[1] + 13}, v{OO[1] + 12}
    s_add_u32 s{s_t0}, s{s_cm}, {C_O * CH}
    s_add_u32 s{s_t1}, s{s_cr}, {C_O * CH}
    """)
    normalise(0, True)
    normalise(1, True)
    put_out(0)
    a(f"s_branch {L('norm')}")

    a(f"""
    {L('near')}:
    s_lshl_b32 s{s_t0}, s{s_rb}, 3
    s_add_u32 s{s_t0}, s{s_t0}, s{s_w}
    """)
    if cfg["nf"]:
        a(f"""
        s_mul_i32 s{s_t1}, s{s_t0}, {26 * 128}
        s_add_u32 s{s_t1}, s{s_t1}, {WS_FA}
        v_lshlrev_b32 v{T[2]}, 7, v{vL}
        s_mov_b64 s[{sA}:{sA + 1}], s[22:23]
        s_mov_b32 s{sA + 2}, {WS_TOP}
        s_mov_b64 exec, 0x3ffffff
        buffer_load_dword v95, v{T[2]}, s[{sA}:{sA + 3}], s{s_t1} offen {("", "", "nt")[cfg["nf"]]}
        s_mov_b64 exec, -1
        """)
    if cfg["ded"]:
        a(f"""
        s_mov_b64 s[{sA}:{sA + 1}], s[18:19]
        s_mov_b32 s{sA + 2}, {D * 2}
        buffer_load_dword v92, v{T[2]}, s[{sA}:{sA + 3}], 0 offen
        """)
        relayout(0)
        a(f"s_branch {L('p_go')}\n{L('tr')}:")
        relayout(1)
        a(f"s_cmp_eq_u32 s3, 1\ns_waitcnt vmcnt(0)\ns_barrier\ns_cbranch_scc1 {L('tr_f')}")
        stamp(a, prof, 4)
        a(f"s_branch {L('a_none')}")
    a(f"""
    s_mul_i32 s{s_t1}, s{s_t0}, {135 * 128}
    s_mul_i32 s{s_t0}, s{s_t0}, {50 * 128}
    """)
    if cfg["skip"]:
        a(f"""
        s_lshl_b32 s{s_t2}, s{s_rb}, 3
        s_add_u32 s{s_t2}, s{s_t2}, s{s_w}
        s_mul_i32 s{s_wo}, s{s_t2}, {16 * 1280}
        s_add_u32 s{s_wo}, s{s_wo}, 512
        v_mul_u32_u24 v{T[2]}, 640, v{vL}
        s_mov_b64 s[{sA}:{sA + 1}], s[4:5]
        s_mov_b32 s{sA + 2}, {S * D * 2}
        s_mov_b32 exec_hi, 0
        buffer_load_dword v92, v{T[2]}, s[{sA}:{sA + 3}], s{s_wo} offen
        v_lshlrev_b32 v{T[2]}, 7, v{vL}
        s_lshr_b32 s{s_wo}, s{s_t2}, 6
        s_lshl_b32 s{s_wo}, s{s_wo}, 8
        s_add_u32 s{s_t2}, s{s_t2}, s{s_wo}
        s_add_u32 s{s_t2}, s{s_t2}, 256
        s_mul_i32 s{s_wo}, s{s_t2}, 3840
        s_mov_b64 s[{sA}:{sA + 1}], s[6:7]
        s_mov_b32 s{sA + 2}, {D * 3 * D * 2}
        s_mov_b32 exec_lo, 0x3fffffff
        buffer_load_dword v93, v{T[2]}, s[{sA}:{sA + 3}], s{s_wo} offen
        s_mul_i32 s{s_wo}, s{s_t2}, 3456
        s_mov_b64 s[{sA}:{sA + 1}], s[12:13]
        s_mov_b32 s{sA + 2}, {D * F * 2}
        s_mov_b32 exec_lo, 0x7ffffff
        buffer_load_dword v94, v{T[2]}, s[{sA}:{sA + 3}], s{s_wo} offen
        s_mov_b64 exec, -1
        s_barrier
        """)
    a(f"""
    v_lshlrev_b32 v{T[2]}, 7, v{vL}
    s_mov_b64 s[{sA}:{sA + 1}], s[16:17]
    s_mov_b32 s{sA + 2}, {F * D * 2}
    s_mov_b32 exec_hi, 0x1fff
    """)
    for i in range(3):
        a(f"buffer_load_dword v{88 + i}, v{T[2]}, s[{sA}:{sA + 3}], s{s_t1} offen\ns_add_u32 s{s_t1}, s{s_t1}, {45 * 128}")
    a(f"""
    s_mov_b64 s[{sA}:{sA + 1}], s[8:9]
    s_mov_b32 s{sA + 2}, {D * D * 2}
    s_mov_b32 exec_hi, 0x3ffff
    buffer_load_dword v91, v{T[2]}, s[{sA}:{sA + 3}], s{s_t0} offen
    s_mov_b32 exec_hi, -1
    s_mov_b64 s[{sA}:{sA + 1}], s[18:19]
    s_mov_b32 s{sA + 2}, {D * 2}
    buffer_load_dword v92, v{T[2]}, s[{sA}:{sA + 3}], 0 offen
    s_branch {L('p_go')}
    """)

    g0_lines, a.lines = a.lines, []
    MK, G = 240, 96
    VX, VW, VG = [11, 12, 13, 14], [15, 16, 17, 18], [19, 20, 21, 22]
    gR, gL, gA, gB = 24, 25, 26, 27
    fC, mQ, mQR, mQD, fB, FK, FO, one, pH, pO = range(246, 256)

    def w_addr(VF, stride, grp):
        a(f"""
        v_lshrrev_b32 v{T[0]}, 4, v{vL}
        v_lshlrev_b32 v{T[1]}, 1, v{T[0]}
        v_xor_b32 v{T[1]}, v{T[1]}, v{vL}
        v_and_b32 v{T[1]}, 15, v{T[1]}
        s_lshl_b32 s{s_t1}, s{grp}, 8
        s_mul_i32 s{s_t0}, s{s_wj}, {16 * stride}
        s_add_u32 s{s_t1}, s{s_t1}, s{s_t0}
        v_mul_u32_u24 v{T[0]}, {stride}, v{T[0]}
        v_add_u32 v{T[0]}, s{s_t1}, v{T[0]}
        v_lshl_add_u32 v{VF[0]}, v{T[1]}, 4, v{T[0]}
        v_xor_b32 v{T[1]}, 8, v{T[1]}
        v_lshl_add_u32 v{VF[2]}, v{T[1]}, 4, v{T[0]}
        v_add_u32 v{VF[1]}, {4 * stride - 1024}, v{VF[0]}
        v_add_u32 v{VF[3]}, {3 * (4 * stride - 1024)}, v{VF[2]}
        v_add_u32 v{VF[2]}, {2 * (4 * stride - 1024)}, v{VF[2]}
        """)

    TF, TA, TV = 32, [52, 53], [54, 55, 56, 57, 58]
    has_block = f"s_cmp_lt_u32 s{s_tt}, 74" if not cfg["ded"] else None

    def block_addr():
        a(f"""
        s_and_b32 s{s_tt}, s2, 31
        s_lshl_b32 s{s_t0}, s{s_wj}, 5
        s_add_u32 s{s_tt}, s{s_tt}, s{s_t0}
        s_mul_i32 s{s_c}, s{s_wj}, 5120
        s_add_u32 s{s_c}, s{s_c}, {STG + LW}
        """)
        for i in range(5):
            a(f"""
            v_add_u32 v{T[2]}, {64 * i}, v{vL}
            v_mul_u32_u24 v{T[3]}, 6554, v{T[2]}
            v_lshrrev_b32 v{T[3]}, 16, v{T[3]}
            v_mul_u32_u24 v{T[3]}, {1280 - 160}, v{T[3]}
            v_lshl_add_u32 v{TV[i]}, v{T[2]}, 4, v{T[3]}
            """)
        a(f"""
        v_lshrrev_b32 v{T[2]}, 4, v{vL}
        v_bfe_u32 v{T[3]}, v{vL}, 2, 2
        v_lshl_add_u32 v{T[2]}, v{T[2]}, 3, v{T[3]}
        v_mul_u32_u24 v{T[2]}, 160, v{T[2]}
        v_add_u32 v{T[2]}, s{s_c}, v{T[2]}
        v_and_b32 v{T[3]}, 3, v{vL}
        v_lshl_add_u32 v{TA[0]}, v{T[3]}, 4, v{T[2]}
        v_lshl_add_u32 v{TA[1]}, v{T[3]}, 3, v{T[2]}
        """)

    def block_fetch():
        a(f"""
        s_cmp_lt_u32 s{s_tt}, 54
        s_cselect_b64 s[{sA}:{sA + 1}], s[16:17], s[8:9]
        s_mov_b32 s{sA + 2}, {F * D * 2}
        s_cselect_b32 s{sA + 2}, s{sA + 2}, {D * D * 2}
        s_cselect_b32 s{s_t1}, 0, 54
        s_sub_u32 s{s_t0}, s{s_tt}, s{s_t1}
        s_mul_i32 s{s_t0}, s{s_t0}, {32 * 1280}
        s_mul_i32 s{s_t1}, s{s_qb}, 160
        s_add_u32 s{s_t0}, s{s_t0}, s{s_t1}
        """)
        for i in range(5):
            a(f"s_add_u32 m0, s{s_c}, {i * 1024}\ns_nop 0")
            a(f"buffer_load_dwordx4 v{TV[i]}, s[{sA}:{sA + 3}], s{s_t0} offen lds")

    def block_turn():
        a("s_waitcnt vmcnt(0)")
        for c in range(5):
            va, off = (TA[0], 64 * (c >> 1) + 8 * (c & 1)) if c < 4 else (TA[1], 128)
            for h in range(2):
                a(f"ds_read_b64_tr_b16 {vr(TF + 4 * c + 2 * h, 2)}, v{va} offset:{off + 640 * h}")
        a("s_waitcnt lgkmcnt(0)")

    def block_put():
        a(f"""
        s_mul_i32 s{s_t0}, s{s_tt}, {KS_ROW}
        s_mul_i32 s{s_t1}, s{s_qb}, 5120
        s_add_u32 s{s_t0}, s{s_t0}, s{s_t1}
        s_add_u32 s{s_t0}, s{s_t0}, {WS_WT}
        s_add_u32 s{s_t1}, s{s_t0}, 4096
        v_lshlrev_b32 v{T[2]}, 4, v{vL}
        """)
        for c in range(5):
            a(f"buffer_store_dwordx4 {vr(TF + 4 * c, 4)}, v{T[2]}, {WSD}, s{(s_t0, s_t1)[c >> 2]} offen offset:{1024 * (c & 3)} sc1")

    def later_addr():
        attn_ids()
        if has_block:
            block_addr()
        kv_addr(0)
        ones_addr(one, 0, 3)
        a(f"v_and_b32 v{T[0]}, 1, v{vL}")
        head_unit(T[1], T[0])
        a(f"""
        v_lshrrev_b32 v{T[0]}, 1, v{vL}
        v_min_u32 v{T[0]}, 2, v{T[0]}
        v_mad_u32_u24 v{T[1]}, v{T[0]}, 10, v{T[1]}
        v_mov_b32 v{T[2]}, s{s_kc}
        s_mov_b64 exec, 3
        v_mov_b32 v{T[2]}, s{s_qb}
        s_mov_b64 exec, -1
        v_lshl_add_u32 v{T[2]}, v{T[2]}, 2, s{s_wj}
        """)
        flag_of_tile(FO, f"v{T[2]}", T[1])
        a(f"v_and_b32 v{T[0]}, 1, v{vL}")
        head_unit(T[1], T[0])
        a(f"""
        v_bfe_u32 v{T[0]}, v{vL}, 1, 1
        v_mad_u32_u24 v{T[1]}, v{T[0]}, 10, v{T[1]}
        v_add_u32 v{T[1]}, 10, v{T[1]}
        v_and_b32 v{T[0]}, 28, v{vL}
        v_add_u32 v{T[0]}, s{s_wj}, v{T[0]}
        """)
        flag_of_tile(FK, f"v{T[0]}", T[1])
        q_addr(mQ, mQR)
        a(f"""
        v_lshl_add_u32 v{mQD}, v{vL}, 4, s{s_t0}
        s_lshl_b32 s{s_t0}, s{s_head}, 2
        s_add_u32 s{s_t0}, s{s_t0}, s{s_wj}
        v_and_b32 v{T[2]}, 15, v{vL}
        v_lshl_add_u32 v{T[2]}, s{s_t0}, 4, v{T[2]}
        v_lshrrev_b32 v{T[3]}, 4, v{vL}
        v_lshlrev_b32 v{pH}, 15, v{T[3]}
        v_lshl_add_u32 v{pH}, v{T[2]}, 4, v{pH}
        v_mul_u32_u24 v{pO}, 1280, v{T[2]}
        """)
        a(f"""
        v_min_u32 v{T[3]}, 26, v{T[0]}
        v_lshl_add_u32 v{fC}, v{T[3]}, 5, s{s_head}
        v_lshl_add_u32 v{T[3]}, v{T[0]}, 2, s{s_wj}
        v_min_u32 v{T[3]}, 53, v{T[3]}
        v_subrev_u32 v{T[4]}, 16, v{T[0]}
        v_min_u32 v{T[4]}, 4, v{T[4]}
        v_lshl_add_u32 v{T[4]}, v{T[4]}, 2, s{s_wj}
        s_lshl_b32 s{s_t0}, s{s_qb}, 7
        s_add_u32 s{s_t0}, s{s_t0}, 1024
        s_add_u32 s{s_fl}, s{s_t0}, s{s_tt}
        s_add_u32 s{s_t1}, s{s_t0}, 54
        s_mov_b32 exec_lo, 0
        v_add_u32 v{fC}, s{s_t0}, v{T[3]}
        s_mov_b32 exec_hi, 0xffff0000
        v_add_u32 v{fC}, s{s_t1}, v{T[4]}
        {f"s_mov_b32 exec_hi, 0xffffffff" if cfg["ded"] else ""}
        {f"v_and_b32 v{fC}, 15, v{T[0]}" if cfg["ded"] else ""}
        {f"v_add_u32 v{fC}, 1024, v{fC}" if cfg["ded"] else ""}
        s_mov_b64 exec, -1
        v_lshlrev_b32 v{fC}, 7, v{fC}
        s_lshr_b32 s{s_t0}, s{s_head}, 2
        v_lshl_add_u32 v{fB}, s{s_t0}, 5, v{T[0]}
        s_andn2_b32 s{s_t0}, s2, 8
        s_mov_b32 exec_lo, 0
        v_mov_b32 v{fB}, s{s_t0}
        s_cmp_eq_u32 s2, 0
        s_cselect_b64 exec, -1, 0
        v_lshl_add_u32 v{fB}, s{s_wj}, 6, v{vL}
        s_mov_b64 exec, -1
        v_lshlrev_b32 v{fB}, 7, v{fB}
        """)

    def boundary(wait=None):
        if wait is not None:
            a(f"s_waitcnt vmcnt({wait})")
        if 1 < cfg.get("trace", 0) < 4:
            stamp(a, prof, 21)
        a("s_barrier")

    def ask_tag():
        srd(a, sWS, 22, WS_TOP)
        load_tag()

    def take_tag():
        a(f"s_waitcnt lgkmcnt(0)\ns_add_u32 s{s_tag}, s{s_tag}, 1")

    def split(ops, n):
        k = -(-len(ops) // n)
        return [ops[i * k:(i + 1) * k] for i in range(n)]

    def feed(c, which="xwf", mix=()):
        mix = list(mix)
        per = -(-len(mix) // max(4 * len(which), 1))
        for key, part, va, sd, step in (("x", LX, VX, sX, 128), ("w", LW, VW, sW, 64 * 3840), ("f", LF, VG, sB, 64 * 3456)):
            if key in which:
                half = {"x": s_xo, "w": s_wstep, "f": s_ho}[key]
                a(f"s_add_u32 m0, s{s_ring}, {(c % 3) * STG + part}")
                if cfg["rot"]:
                    a(f"s_mov_b32 s{s_wo}, s{half}\ns_add_u32 s{half}, s{half}, {step}\n"
                      f"s_cmp_eq_u32 s{half}, {10 * step}\ns_cselect_b32 s{half}, 0, s{half}")
                else:
                    a(f"s_add_u32 s{s_wo}, s{half}, {c * step}" if c < 5 else f"s_sub_u32 s{s_wo}, {c * step}, s{half}")
                for i in range(4):
                    a(f"buffer_load_dwordx4 v{va[i]}, s[{sd}:{sd + 3}], s{s_wo} offen offset:{1024 * i} lds")
                    a("\n".join(mix[:per]))
                    mix = mix[per:]

    def only(name, cond, fn):
        if cond is None:
            return
        a(f"{cond}\ns_cbranch_scc0 {L(name)}")
        fn()
        a(f"{L(name)}:")

    feeding = f"s_cmp_lt_u32 s{s_cg}, 15"
    a(f"""
    s_lshl_b32 s{s_ring}, s{s_wj}, 12
    s_mul_i32 s{s_t3}, s{s_t3}, 5
    """)
    if cfg["rot"]:
        a(f"""
        s_mul_i32 s{s_t3}, s{s_cg}, {cfg['rot'] >> 4}
        s_mul_i32 s{s_t0}, s{s_rb}, {cfg['rot'] & 15}
        s_add_u32 s{s_t3}, s{s_t3}, s{s_t0}
        s_mul_i32 s{s_t0}, s{s_t3}, 6554
        s_lshr_b32 s{s_t0}, s{s_t0}, 16
        s_mul_i32 s{s_t0}, s{s_t0}, 10
        s_sub_u32 s{s_t3}, s{s_t3}, s{s_t0}
        """)
    a(f"""
    s_mul_i32 s{s_xo}, s{s_t3}, 128
    s_mul_i32 s{s_wstep}, s{s_t3}, {64 * 3840}
    s_mul_i32 s{s_ho}, s{s_t3}, {64 * 3456}
    v_lshrrev_b32 v{T[2]}, 4, v{vL}
    v_xor_b32 v{T[2]}, v{T[2]}, v{T[1]}
    s_lshl_b32 s{s_t1}, s{s_rb}, 2
    s_add_u32 s{s_t1}, s{s_t1}, s{s_wj}
    s_mul_i32 s{s_t1}, s{s_t1}, {32 * 1280}
    v_mul_u32_u24 v{T[3]}, 1280, v{T[0]}
    v_add_u32 v{T[3]}, s{s_t1}, v{T[3]}
    v_lshl_add_u32 v{VX[0]}, v{T[2]}, 4, v{T[3]}
    v_xor_b32 v{T[2]}, 4, v{T[2]}
    v_lshl_add_u32 v{VX[1]}, v{T[2]}, 4, v{T[3]}
    v_add_u32 v{VX[2]}, {2 * (10240 - 1024)}, v{VX[0]}
    v_add_u32 v{VX[3]}, {3 * (10240 - 1024)}, v{VX[1]}
    v_add_u32 v{VX[1]}, {10240 - 1024}, v{VX[1]}
    v_and_b32 v{SO}, 48, v{vL}
    v_lshl_add_u32 v{SO}, v{T[1]}, 6, v{SO}
    """)
    srd(a, sX, 4, S * D * 2)

    def touch():
        a(f"""
        s_getpc_b64 s[{sA}:{sA + 1}]
        {L('pc')}:
        s_sub_u32 s{sA}, s{sA}, {L('pc')}-{label}
        s_subb_u32 s{sA + 1}, s{sA + 1}, 0
        s_mov_b32 s{sA + 2}, {L('end')}-{label}
        s_lshr_b32 s{s_t0}, s2, 3
        s_mul_i32 s{s_t0}, s{s_t0}, {9 * 128}
        v_lshlrev_b32 v{T[2]}, 7, v{vL}
        s_mov_b64 exec, 0x1ff
        buffer_load_dword v226, v{T[2]}, s[{sA}:{sA + 3}], s{s_t0} offen
        s_mov_b64 exec, -1
        """)

    if cfg["touch"] & 1:
        only("tc", f"s_cmp_eq_u32 s{s_wj}, 0", touch)
    srd(a, sA, 14, F * 2)
    a(f"""
    s_lshl_b32 s{s_t2}, s{s_cf}, 8
    v_lshlrev_b32 v{T[2]}, 2, v{vL}
    buffer_load_dword v28, v{T[2]}, s[{sA}:{sA + 3}], s{s_t2} offen
    """)
    ask_tag()
    w_addr(VW, 3840, s_cg)
    w_addr(VG, 3456, s_cf)
    srd(a, sW, 6, D * 3 * D * 2)
    srd(a, sB, 12, D * F * 2)
    a(f"""
    s_cmp_lt_u32 s{s_cf}, 14
    s_cselect_b32 s{sB + 2}, s{sB + 2}, 0
    s_lshl_b32 s{s_o[1]}, s{s_o[1]}, 9
    s_add_u32 s{s_o[0]}, s{s_o[0]}, s{s_o[1]}
    s_add_u32 s{s_o[0]}, s{s_o[0]}, {WS_CP}
    s_and_b32 s{s_t1}, s{s_wj}, 1
    v_lshl_add_u32 v{gL}, s{s_t1}, 6, v{vL}
    s_lshl_b32 s{s_t3}, s{s_rb}, 11
    v_lshl_add_u32 v{gR}, v{gL}, 4, s{s_t3}
    s_add_u32 s{s_t2}, s{s_cf}, 15
    s_cmp_eq_u32 s{s_t1}, 0
    s_cselect_b32 s{s_t1}, s{s_cg}, s{s_t2}
    s_lshl_b32 s{s_t1}, s{s_t1}, 6
    v_add_u32 v{gA}, s{s_t1}, v{vL}
    v_min_u32 v{gA}, 1823, v{gA}
    v_lshlrev_b32 v{gA}, 4, v{gA}
    s_mov_b32 s{s_spin}, {SPIN}
    v_lshrrev_b32 v23, 1, v{SO}
    v_add_u32 v23, {L_CP}, v23
    """)
    if cfg["early"]:
        later_addr()
    stamp(a, prof, 44)

    def sums():
        for r in range(20):
            c = AC + 2 * (r & 3)
            if r < 4:
                a(f"v_lshlrev_b32 v{c}, 16, v{SD + r}\nv_and_b32 v{c + 1}, 0xffff0000, v{SD + r}")
            else:
                lo, hi = T[2 + 2 * (r & 1)], T[3 + 2 * (r & 1)]
                a(f"v_lshlrev_b32 v{lo}, 16, v{SD + r}\nv_and_b32 v{hi}, 0xffff0000, v{SD + r}\n"
                  f"v_add_f32 v{c}, v{c}, v{lo}\nv_add_f32 v{c + 1}, v{c + 1}, v{hi}")
        a(f"s_lshl_b32 s{s_t0}, s{s_wj}, 8\nv_add_u32 v{T[2]}, s{s_t0}, v23")
        for i in range(4):
            a(f"v_permlane32_swap_b32 v{AC + i}, v{AC + 4 + i}")
        for i in range(4):
            a(f"v_add_f32 v{AC + i}, v{AC + i}, v{AC + 4 + i}")
        a("s_nop 1")
        for i in range(2):
            a(f"v_permlane16_swap_b32 v{AC + i}, v{AC + 2 + i}")
        a(f"v_add_f32 v{AC}, v{AC}, v{AC + 2}\nv_add_f32 v{AC + 1}, v{AC + 1}, v{AC + 3}\ns_nop 1")
        for r in (AC, AC + 1):
            a(f"v_add_f32_dpp v{r}, v{r}, v{r} row_ror:8 row_mask:0xf bank_mask:0xf")
        a(f"ds_write_b64 v{T[2]}, {vr(AC, 2)}")

    def publish():
        for i in range(4):
            a(f"ds_read_b64 {vr(AC + 2 * i, 2)}, v23 offset:{256 * i}")
        a(f"""
        s_waitcnt lgkmcnt(0)
        v_add_f32 v{AC}, v{AC}, v{AC + 2}
        v_add_f32 v{AC + 2}, v{AC + 1}, v{AC + 3}
        v_add_f32 v{AC + 4}, v{AC + 4}, v{AC + 6}
        v_add_f32 v{AC + 5}, v{AC + 5}, v{AC + 7}
        v_add_f32 v{AC}, v{AC}, v{AC + 4}
        v_add_f32 v{AC + 2}, v{AC + 2}, v{AC + 5}
        v_mov_b32 v{AC + 1}, s{s_tag}
        v_mov_b32 v{AC + 3}, s{s_tag}
        s_mov_b32 exec_lo, 0x00ff00ff
        s_mov_b32 exec_hi, 0x00ff00ff
        buffer_store_dwordx4 {vr(AC, 4)}, v{SO}, {WSD}, s{s_o[0]} offen sc1
        s_mov_b64 exec, -1
        """)

    def publish_rows():
        a(f"""
        s_lshl4_add_u32 s{s_t0}, s{s_rb}, s{s_cg}
        s_lshl_b32 s{s_t0}, s{s_t0}, 7
        s_add_u32 s{s_t0}, s{s_t0}, {WS_RS}
        v_lshlrev_b32 v{T[2]}, 4, v{vL}
        v_add_u32 v{T[3]}, {L_RP}, v{T[2]}
        s_cmp_eq_u32 s{s_cg}, 14
        s_movk_i32 s{s_t1}, 0xff
        s_cselect_b32 exec_lo, 0xffff, s{s_t1}
        s_mov_b32 exec_hi, 0
        ds_read_b128 {vr(AC, 4)}, v{T[3]}
        s_waitcnt lgkmcnt(0)
        buffer_store_dwordx4 {vr(AC, 4)}, v{T[2]}, {WSD}, s{s_t0} offen sc1
        s_mov_b64 exec, -1
        """)

    def gather_loads():
        a(f"s_mov_b32 s{s_slot}, {WS_RS}\nbuffer_load_dwordx4 {vr(G + 16, 4)}, v{gR}, {WSD}, s{s_slot} offen sc1")
        a(f"s_mov_b32 s{s_slot}, {WS_CP}")
        for p in range(4):
            a(f"buffer_load_dwordx4 {vr(G + 4 * p, 4)}, v{gA}, {WSD}, s{s_slot} offen sc1")
            a(f"s_add_u32 s{s_slot}, s{s_slot}, {CP_ROW}")

    def gather_put():
        a(f"s_branch {L('ga_chk')}\n{L('ga')}:")
        gather_loads()
        a(f"s_sub_u32 s{s_spin}, s{s_spin}, 1\ns_waitcnt vmcnt(0)\n{L('ga_chk')}:")
        a(f"v_min_u32 v{T[3]}, v{G + 1}, v{G + 3}\nv_max_u32 v{T[4]}, v{G + 1}, v{G + 3}")
        for p in range(1, 5):
            b = G + 4 * p
            a(f"v_min3_u32 v{T[3]}, v{T[3]}, v{b + 1}, v{b + 3}\nv_max3_u32 v{T[4]}, v{T[4]}, v{b + 1}, v{b + 3}")
        retry("ga")
        a(f"v_add_f32 v{G + 1}, v{G + 2}, v{G + 6}\nv_add_f32 v{G}, v{G}, v{G + 4}")
        for p in range(2, 4):
            b = G + 4 * p
            a(f"v_add_f32 v{G}, v{G}, v{b}\nv_add_f32 v{G + 1}, v{G + 1}, v{b + 2}")
        a(f"""
        s_mov_b32 s{s_t0}, {L_NM}
        v_lshlrev_b32 v{G + 2}, 16, v28
        v_and_b32 v{G + 3}, 0xffff0000, v28
        v_lshl_add_u32 v{T[3]}, v{gL}, 2, s{s_t0}
        v_lshl_add_u32 v{T[4]}, v{gL}, 3, s{s_t0}
        v_lshl_add_u32 v{T[5]}, v{vL}, 3, s{s_t0}
        ds_write2_b32 v{T[3]}, v{G + 16}, v{G + 18} offset0:0 offset1:128
        ds_write_b64 v{T[4]}, {vr(G, 2)} offset:{L_CSA - L_NM}
        ds_write_b64 v{T[5]}, {vr(G + 2, 2)} offset:{L_BI - L_NM}
        s_waitcnt lgkmcnt(0)
        """)

    def mark_unwritten():
        a(f"""
        s_add_u32 s{s_ko}, s{s_cm}, {C_O * CH}
        s_add_u32 s{s_vo}, s{s_cr}, {C_O * CH}
        v_mov_b64 {vr(MK, 2)}, -1
        v_mov_b64 {vr(MK + 2, 2)}, -1
        buffer_store_dwordx4 {vr(MK, 4)}, v{mQ}, {WSD}, s{s_ko} offen sc1
        buffer_store_dwordx4 {vr(MK, 4)}, v{mQ}, {WSD}, s{s_ko} offen offset:512 sc1
        """)
        if cfg["wm"]:
            a(f"s_cmp_eq_u32 s{s_par}, 0\ns_cselect_b32 s{s_vo}, s{s_vo}, {WS_TOP}")
            a(f"buffer_store_dwordx4 {vr(MK, 4)}, v{mQD}, {WSD}, s{s_vo} offen sc1")
        else:
            a(f"""
            s_mov_b32 exec_hi, 0
            buffer_store_dwordx2 {vr(MK, 2)}, v{mQR}, {WSD}, s{s_vo} offen sc1
            buffer_store_dwordx2 {vr(MK, 2)}, v{mQR}, {WSD}, s{s_vo} offen offset:512 sc1
            s_mov_b32 exec_hi, -1
            """)

    a(f"{feeding}\ns_cbranch_scc1 {L('g1_on')}")
    if not cfg["early"]:
        later_addr()
    take_tag()
    early_mark = cfg["mk"] < 10
    if early_mark:
        mark_unwritten()
    if cfg["ded"]:
        a(f"s_branch {L('tr')}\n{L('tr_f')}:\ns_add_u32 s{s_fl}, s{s_rb}, 1024")
        only("trf", f"s_cmp_eq_u32 s{s_wj}, 0", lambda: set_flag(WS_FH))
    only("bf0", has_block, block_fetch)
    only("bt0", has_block, block_turn)
    a(f"s_branch {L('b_last')}\n{L('g1_on')}:")
    feed(0)
    stamp(a, prof, 43)
    pre = "xwf"[:cfg["pre"]]
    feed(1, pre)
    take_tag()
    boundary(4 * len(pre))
    a(f"s_setprio {cfg['fprio']}")
    sm = capture(sums)
    LT = cfg["late"]

    def late_loads():
        for q in range(5):
            a(f"buffer_load_dwordx4 {vr(SD + 4 * q, 4)}, v29, s[88:91], s10 offen\ns_add_u32 s10, s10, s11")

    if LT == 1:
        late_loads()
    k = len(sm) * (3 - len(pre)) // 3
    feed(1, "xwf"[len(pre):], [] if LT else sm[:k])
    feed(2, pre, [] if LT else sm[k:])
    only("pr", f"s_cmp_eq_u32 s{s_wj}, 2", publish_rows)
    a("s_waitcnt lgkmcnt(0)")
    late = [[]] + split(capture(later_addr), 4)
    if LT:
        late = [[]] * (LT - 1) + [sm + ["s_waitcnt lgkmcnt(0)"]] + split(capture(later_addr), 5 - LT)
    gath = f"s_cmp_lt_u32 s{s_wj}, 2"
    for c in range(10):
        if c - cfg["gat"] in (1, 2):
            a(f"{gath}\ns_cbranch_scc1 {L('bw' + str(c))}\ns_waitcnt vmcnt(12)\n{L('bw' + str(c))}:")
            boundary(17)
            assert c <= 5
        else:
            boundary({0: 4 * len(pre), 6: 8, 7: 8, 8: 4, 9: None}.get(c, 12))
        if c == LT - 2:
            late_loads()
        if c == 0:
            feed(2, "xwf"[len(pre):])
        if c < 5:
            feed(c + 3, mix=late[c])
        elif c < 7:
            feed(c + 3, "xw")
        elif c < 9:
            feed(c + 1, "f")
        if c == LT:
            only("pb", f"s_cmp_eq_u32 s{s_wj}, s{s_hook}", publish)
        if c == cfg["mk"]:
            mark_unwritten()
        if c == 8:
            only("bf", has_block, block_fetch)
        if c == cfg["gat"]:
            only("gf", gath, gather_loads)
        if c == cfg["gat"] + 3:
            only("gp", gath, gather_put)
    if has_block:
        a(f"{has_block}\ns_cbranch_scc1 {L('bwa')}\ns_waitcnt vmcnt({4 * early_mark})\n{L('bwa')}:")
    boundary(5 + 4 * early_mark if has_block else 0)
    only("bt", has_block, block_turn)
    boundary()

    def first_fetch():
        a(f"""
        s_mul_i32 s{s_t0}, s{s_wj}, 3072
        s_add_u32 m0, s{s_t0}, {L_Q}
        s_nop 0
        buffer_load_dwordx4 v{mQ}, {WSD}, s{s_cm} offen sc1 lds
        s_add_u32 m0, s{s_t0}, {L_Q + 512}
        s_nop 0
        buffer_load_dwordx4 v{mQ}, {WSD}, s{s_cm} offen offset:512 sc1 lds
        s_add_u32 m0, s{s_t0}, {L_Q + 2048}
        s_nop 0
        buffer_load_dwordx4 v{mQD}, {WSD}, s{s_cr} offen sc1 lds
        """)
        kv_dma(0)

    a(f"{L('b_last')}:\ns_setprio 2")
    stamp(a, prof, 40)
    ones_write(one, 20)
    wait_flags("wa", WS_FA, [FO])
    stamp(a, prof, 41)
    if prof is True:
        a(f"s_sub_u32 s{s_t0}, {SPIN}, s{s_spin}\ns_add_u32 s96, s{s_t0}, 100")
    first_fetch()
    stamp(a, prof, 4)
    a(f"s_mov_b32 s{s_t0}, {WS_FA}\nbuffer_load_dword v{T[3]}, v{FK}, {WSD}, s{s_t0} offen sc1")
    if cfg["hpos"] == 0:
        a("s_barrier")
    a("s_waitcnt vmcnt(1) lgkmcnt(0)")
    stamp(a, prof, 3)
    a(f"s_barrier\ns_waitcnt vmcnt(0)\nv_cmp_ne_u32 vcc, s{s_tag}, v{T[3]}\ns_nop 3\ns_cbranch_vccz {L('wk_done')}")
    wait_flags("wk", WS_FA, [FK])
    kv_dma(1)
    if cfg["bpos"] == 0:
        only("bp", has_block, block_put)

    vH, vW, vO, vB, vLn = [11, 12, 13, 14], [15, 16], [17, 18], [T[0], T[1]], 19
    ACC = 20
    LB = [100 + 36 * i for i in range(3)]
    WR, XR, BR = 180, 220, 230
    sH, sT = sW, sA
    a(f"""
    v_mov_b32 v{vH[0]}, v{pH}
    v_xor_b32 v{vH[1]}, 256, v{pH}
    v_xor_b32 v{vH[2]}, 512, v{pH}
    v_xor_b32 v{vH[3]}, 768, v{pH}
    v_lshlrev_b32 v{vLn}, 4, v{vL}
    s_mul_i32 s{s_t0}, s{s_qb}, 5120
    v_add_u32 v{vW[0]}, s{s_t0}, v{vLn}
    v_add_u32 v{vW[1]}, 4096, v{vW[0]}
    s_mul_i32 s{s_t0}, s{s_qb}, 160
    v_lshrrev_b32 v{T[2]}, 4, v{vL}
    v_lshl_add_u32 v{vB[0]}, v{T[2]}, 4, s{s_t0}
    v_lshl_add_u32 v{vB[1]}, v{T[2]}, 3, s{s_t0}
    v_add_u32 v{vO[0]}, v{pO}, v{vB[0]}
    v_add_u32 v{vO[1]}, v{pO}, v{vB[1]}
    s_add_u32 s{sH}, s22, {C_H * CH}
    s_addc_u32 s{sH + 1}, s23, 0
    s_mov_b32 s{sH + 2}, {216 * CH}
    s_mov_b32 s{sH + 3}, 0x00020000
    s_add_u32 s{sT}, s22, {WS_WT}
    s_addc_u32 s{sT + 1}, s23, 0
    s_mov_b32 s{sT + 2}, {54 * KS_ROW}
    s_mov_b32 s{sT + 3}, 0x00020000
    s_lshl_b32 s{s_ho}, s{s_wj}, 17
    s_mul_i32 s{s_wo}, s{s_wj}, {KS_ROW}
    s_add_u32 s{s_xo}, s{s_wo}, {WS_WT + 54 * KS_ROW}
    s_mul_i32 s{s_ring}, s{s_wj}, 5120
    """)
    if cfg["bpos"] == 0:
        a("s_waitcnt vmcnt(0)")
        only("fw", has_block, lambda: set_flag(WS_FH))
        kv_dma(2)
        a("s_barrier")
    elif cfg["bpos"] == 2:
        kv_dma(2)
        only("bp", has_block, block_put)
        a(f"{has_block}\ns_cbranch_scc1 {L('bq')}\ns_waitcnt vmcnt(7)\n{L('bq')}:\ns_waitcnt vmcnt(12)\ns_barrier")
        only("fw", has_block, lambda: (a("s_waitcnt vmcnt(0)"), set_flag(WS_FH)))
    elif cfg["bpos"] == 3:
        only("bp", has_block, block_put)
        a(f"{has_block}\ns_cbranch_scc1 {L('bq')}\ns_waitcnt vmcnt(0)\n{L('bq')}:\ns_waitcnt vmcnt(5)\ns_barrier")
        only("fw", has_block, lambda: (a("s_waitcnt vmcnt(0)"), set_flag(WS_FH)))
        kv_dma(2)
    else:
        kv_dma(2)
        a("s_waitcnt vmcnt(7)\ns_barrier")
        only("bp", has_block, lambda: (block_put(), a("s_waitcnt vmcnt(0)"), set_flag(WS_FH)))
    a(f"s_mov_b32 s{s_fl}, s2")
    stamp(a, prof, 5)

    def w_frag(c):
        return (vW[0], 1024 * c) if c < 4 else (vW[1], 0)

    def ffn_loads(b):
        for t in range(4):
            a(f"buffer_load_dwordx4 {vr(LB[b] + 4 * t, 4)}, v{vH[t]}, s[{sH}:{sH + 3}], s{s_ho} offen sc1")
        for c in range(5):
            va, off = w_frag(c)
            a(f"buffer_load_dwordx4 {vr(LB[b] + 16 + 4 * c, 4)}, v{va}, s[{sT}:{sT + 3}], s{s_wo} offen offset:{off} sc1")
        a(f"s_add_u32 s{s_ho}, s{s_ho}, {16 * CH}\ns_add_u32 s{s_wo}, s{s_wo}, {4 * KS_ROW}")

    def wo_stage(i):
        for c in range(5):
            va, off = w_frag(c)
            if c in (0, 4):
                a(f"s_add_u32 m0, s{s_ring}, {L_WO + i * 20480 + 1024 * c}\ns_nop 0")
            a(f"buffer_load_dwordx4 v{va}, {WSD}, s{s_xo} offen offset:{off} sc1 lds")
        a(f"s_add_u32 s{s_xo}, s{s_xo}, {4 * KS_ROW}")

    queue = []

    def need(tag):
        if tag not in queue:
            return
        last = max(i for i, q in enumerate(queue) if q == tag)
        a(f"s_waitcnt vmcnt({len(queue) - 1 - last})")
        del queue[:last + 1]

    def send(r):
        a(f"s_add_u32 s{s_t0}, s{s_ring}, {L_EX[r]}\nv_add_u32 v{T[2]}, s{s_t0}, v{vLn}")
        for c in range(5):
            a(f"ds_write_b128 v{T[2]}, {vr(ACC + 20 * r + 4 * c, 4)} offset:{1024 * c}")

    wait_flags("wb", WS_FH, [fC], cfg["fbr"])
    a(f"s_mov_b32 s{s_slot}, s{s_spin}\ns_cbranch_vccz {L('fb_go')}\ns_barrier")
    wait_flags("wc", WS_FH, [fC])
    a(f"s_mov_b32 s{s_slot}, -1\n{L('fb_go')}:")
    stamp(a, prof, 6)
    ffn_loads(0)
    only("fb1", f"s_cmp_eq_u32 s{s_slot}, 0", lambda: a("s_barrier"))
    ffn_loads(1)
    queue += [("L", 0)] * 9 + [("L", 1)] * 9
    if cfg["mk"] == 12:
        mark_unwritten()
        queue += [("M", 0)] * (3 if cfg["wm"] else 4)
    WI = [cfg["wi"] >> (4 * (3 - i)) & 15 for i in range(4)]
    for i in range(4):
        if WI[i] == 1:
            wo_stage(i)
            queue += [("W", i)] * 5
    only("fb2", f"s_cmp_gt_i32 s{s_slot}, 0", lambda: a("s_barrier"))
    a("s_setprio 0")
    assert not early_mark

    def closing_loads():
        srd(a, sX, 4, S * D * 2)
        srd(a, 88, 18, D * 2)
        srd(a, sB, 20, S * D * 2)
        a(f"s_mov_b32 s{s_slot}, {WS_FB}\nbuffer_load_dword v208, v{fB}, {WSD}, s{s_slot} offen sc1")
        for dst, va, sd in ((XR, vO, sX), (BR, vB, 88)):
            a(f"""
            buffer_load_dwordx4 {vr(dst, 4)}, v{va[0]}, s[{sd}:{sd + 3}], 0 offen
            buffer_load_dwordx4 {vr(dst + 4, 4)}, v{va[0]}, s[{sd}:{sd + 3}], 0 offen offset:64
            buffer_load_dwordx2 {vr(dst + 8, 2)}, v{va[1]}, s[{sd}:{sd + 3}], 0 offen offset:128
            """)

    def vm_units(fn, tag):
        out, cur = [], []
        for u in capture(fn):
            cur.append(u)
            n = u.count("buffer_load")
            if n:
                out.append(("\n".join(cur), [tag] * n))
                cur = []
        out[-1] = (out[-1][0] + "\n" + "\n".join(cur), out[-1][1])
        return out

    cuts = [cfg["cut0"] + cfg["cutd"] * k for k in range(5)]

    def wo_units(iv):
        return [u for i in range(4) if WI[i] == iv for u in vm_units(lambda: wo_stage(i), ("W", i))]

    side = vm_units(lambda: kv_dma(3), ("D", 2)) + wo_units(2)
    iv, m = 2, 0
    for step in range(14):
        b = step % 3
        main = vm_units(lambda: ffn_loads((step + 2) % 3), ("L", step + 2)) if step + 2 < 14 else []
        need(("L", step))
        if step == 13:
            assert not side and iv == 7
            a(f"s_cmp_lt_u32 s{s_wj}, 2\ns_cbranch_scc0 {L('m13')}")
            side = [(u, []) for u, _ in vm_units(lambda: wo_stage(4), None)]
        for k in range(20):
            t, c = divmod(k, 5)
            d = vr(ACC + 20 * t + 4 * c, 4)
            a(f"v_mfma_f32_16x16x32_bf16 {d}, {vr(LB[b] + 16 + 4 * c, 4)}, {vr(LB[b] + 4 * t, 4)}, {d if step else 0}")
            m += 1
            src = main if (main and (k & 1 or not side)) else side
            if src:
                text, tags = src.pop(0)
                a(text)
                queue += tags
            if iv < 7 and m == cuts[iv - 2]:
                assert not side
                need(("D", iv))
                if cfg.get("trace"):
                    stamp(a, prof, 24)
                a("s_barrier")
                iv += 1
                if iv == cfg["mk"] - 10:
                    mark_unwritten()
                    queue += [("M", 0)] * (3 if cfg["wm"] else 4)
                if iv == cfg["mk"] - 9:
                    assert ("M", 0) not in queue
                    only("fb", f"s_cmp_eq_u32 s{s_wj}, 0", lambda: set_flag(WS_FB))
                if iv < 7:
                    side = vm_units(lambda: kv_dma(iv + 1), ("D", iv))
                if iv == 7:
                    assert ("W", 0) not in queue and ("W", 1) not in queue
                side += wo_units(iv)
                if iv == cfg["cl"]:
                    side += vm_units(closing_loads, ("C", 0))
        assert not main
    a(f"{L('m13')}:")
    need(("C", 0))
    upper = f"s_cmp_ge_u32 s{s_wj}, 2"

    def wo_last():
        for c in range(5):
            va, off = w_frag(c)
            a(f"buffer_load_dwordx4 {vr(WR + 4 * c, 4)}, v{va}, {WSD}, s{s_xo} offen offset:{off} sc1")

    def wo_last_put():
        a(f"s_add_u32 s{s_t0}, s{s_ring}, {L_WO + 4 * 20480}\nv_add_u32 v{T[2]}, s{s_t0}, v{vLn}")
        for c in range(5):
            a(f"ds_write_b128 v{T[2]}, {vr(WR + 4 * c, 4)} offset:{1024 * c}")

    only("wl", upper, wo_last)
    NW, AH = 7, cfg["ahead"]
    AC2, WG, OF = 40, 60, 200
    assert OF + 4 * (AH + 1) <= 256

    def wo_read(i, c):
        va, off = (vLn, L_WO + 5120 * i) if i < 10 else (T[2], 5120 * (i - 10))
        return f"ds_read_b128 {vr(WG + 20 * (i % NW) + 4 * c, 4)}, v{va} offset:{off + 1024 * c}"

    def o_load(i):
        a(f"s_mov_b32 s{s_t0}, {(C_O + 4 * i) * CH}")
        a(f"buffer_load_dwordx4 {vr(OF + 4 * (i % (AH + 1)), 4)}, v{vH[0]}, {WSD}, s{s_t0} offen sc1")

    def prime(steps):
        for i in steps:
            a("s_waitcnt lgkmcnt(10)\n" + "\n".join(wo_read(i, c) for c in range(5)))

    prime(range(2, 6))
    a(f"v_cmp_ne_u32 vcc, s{s_tag}, v208\ns_nop 3\ns_cbranch_vccz {L('wm_done')}")
    wait_flags("wm", WS_FB, [fB])
    a(f"""
    v_bfe_u32 v{T[2]}, v{vL}, 1, 4
    v_mul_u32_u24 v{T[2]}, 5, v{T[2]}
    v_and_b32 v{T[3]}, 1, v{vL}
    s_cmp_eq_u32 s{s_wj}, 2
    s_cselect_b32 s{s_t1}, 8, {3 * CH}
    s_cselect_b32 s{s_t2}, 4, 12
    s_cmp_eq_u32 s{s_wj}, 3
    s_cselect_b32 s{s_t0}, 0, s{s_wj}
    v_add_u32 v{T[2]}, s{s_t0}, v{T[2]}
    v_lshlrev_b32 v{T[2]}, 15, v{T[2]}
    v_mad_u32_u24 v{T[0]}, v{T[3]}, s{s_t1}, v{T[2]}
    s_lshl_b32 s{s_t0}, s{s_head}, 3
    s_add_u32 s{s_t0}, s{s_t0}, s{s_qb}
    s_lshl_b32 s{s_t0}, s{s_t0}, 7
    s_add_u32 s{s_t0}, s{s_t0}, s{s_t2}
    s_add_u32 s{s_ko}, s{s_t0}, {C_O * CH}
    s_mov_b32 s{s_spin}, {SPIN}
    """)
    a("s_waitcnt lgkmcnt(0)")
    if cfg.get("trace"):
        stamp(a, prof, 24)
    a("s_barrier")
    send(1)
    send(2)
    stamp(a, prof, 7)
    a("s_barrier")
    a("s_waitcnt vmcnt(0) lgkmcnt(0)")
    send(3)
    only("wp", upper, wo_last_put)
    a("s_waitcnt lgkmcnt(0)\ns_barrier")
    stamp(a, prof, 8)
    a(f"""
    s_cmp_lg_u32 s2, 0
    s_cbranch_scc1 {L('tag_kept')}
    v_mov_b32 v{T[4]}, 0
    v_mov_b32 v{T[5]}, s{s_tag}
    s_mov_b32 s{s_t0}, {WS_E}
    buffer_store_dword v{T[5]}, v{T[4]}, {WSD}, s{s_t0} offen sc1
    {L('tag_kept')}:
    """)
    for r in range(1, 4):
        a(f"""
        s_xor_b32 s{s_t0}, s{s_wj}, {r}
        s_mul_i32 s{s_t0}, s{s_t0}, 5120
        s_add_u32 s{s_t0}, s{s_t0}, {L_EX[r]}
        v_add_u32 v{T[2]}, s{s_t0}, v{vLn}
        """)
        for c in range(5):
            a(f"ds_read_b128 {vr(ACC + 20 * r + 4 * c, 4)}, v{T[2]} offset:{1024 * c}")
    for src in (XR, BR):
        for i in range(10):
            t = T[2 + 2 * (i & 1)]
            a(f"v_lshlrev_b32 v{t}, 16, v{src + i}\nv_and_b32 v{t + 1}, 0xffff0000, v{src + i}")
            a(f"v_pk_add_f32 {vr(ACC + 2 * i, 2)}, {vr(ACC + 2 * i, 2)}, {vr(t, 2)}")
    for r in range(1, 4):
        a(f"s_waitcnt lgkmcnt({5 * (3 - r)})")
        for i in range(0, 20, 2):
            a(f"v_pk_add_f32 {vr(ACC + i, 2)}, {vr(ACC + i, 2)}, {vr(ACC + 20 * r + i, 2)}")
    a(f"v_add_u32 v{T[2]}, {L_WO + 10 * 5120}, v{vLn}")

    look = f"buffer_load_dword v{T[3]}, v{T[0]}, {WSD}, s{s_ko} offen sc1"
    a(f"{L('first')}:\ns_mov_b32 exec_hi, 0\n{look}\ns_mov_b32 exec_hi, -1")
    prime((0, 1, 6))
    a(f"""
    v_mov_b32 v{T[4]}, 0
    s_mov_b32 exec_hi, 0
    s_branch {L('seen')}
    {L('poll')}:
    {"s_mov_b32 exec_lo, vcc_lo" if cfg["thin"] else ""}
    {f"s_sleep {cfg['osl']}" if cfg["osl"] else ""}
    {look}
    {L('seen')}:
    s_sub_u32 s{s_spin}, s{s_spin}, 1
    s_cmp_lt_i32 s{s_spin}, 0
    s_waitcnt vmcnt(0) lgkmcnt(0)
    v_cmp_eq_u32 vcc, -1, v{T[3]}
    s_cbranch_scc1 {L('got')}
    s_nop 2
    s_cbranch_vccnz {L('poll')}
    {L('got')}:
    s_mov_b64 exec, -1
    """)
    if prof is True:
        stamp(a, prof, 50)
        a(f"s_sub_u32 s96, {SPIN + 200}, s{s_spin}\ns_waitcnt lgkmcnt(0)")
    for i in range(AH):
        o_load(i)
    todo = [(i, c) for i in range(NW, 20) for c in range(5)]
    issued = 0
    for i in range(20):
        lg = f" lgkmcnt({min(15, issued - 5 * (i - NW + 1))})" if i >= NW else ""
        assert i < NW or issued >= 5 * (i - NW + 1)
        a(f"s_waitcnt vmcnt({min(20, i + AH) - i - 1}){lg}")
        o = OF + 4 * (i % (AH + 1))
        for c in range(5):
            d = vr(AC2 + 4 * c, 4)
            a(f"v_mfma_f32_16x16x32_bf16 {d}, {vr(WG + 20 * (i % NW) + 4 * c, 4)}, {vr(o, 4)}, {d if i else 0}")
            if c == 0:
                if i + AH < 20:
                    o_load(i + AH)
            elif todo and (todo[0][0] - NW, todo[0][1]) <= (i, c):
                a(wo_read(*todo.pop(0)))
                issued += 1
            if c == 4:
                a(f"v_max3_u32 v{T[4]}, v{T[4]}, v{o + 1}, v{o + 3}")
    assert not todo
    stamp(a, prof, 9)
    a(f"""
    v_cmp_eq_u32 vcc, -1, v{T[4]}
    s_cmp_lt_i32 s{s_spin}, 0
    s_cbranch_scc1 {L('sum')}
    s_nop 1
    s_cbranch_vccnz {L('again')}
    {L('sum')}:
    s_nop 3
    """)
    for i in range(0, 20, 2):
        a(f"v_pk_add_f32 {vr(ACC + i, 2)}, {vr(ACC + i, 2)}, {vr(AC2 + i, 2)}")
    for i in range(10):
        a(f"v_cvt_pk_bf16_f32 v{XR + i}, v{ACC + 2 * i}, v{ACC + 2 * i + 1}")
    a(f"""
    buffer_store_dwordx4 {vr(XR, 4)}, v{vO[0]}, s[{sB}:{sB + 3}], 0 offen {OSF}
    buffer_store_dwordx4 {vr(XR + 4, 4)}, v{vO[0]}, s[{sB}:{sB + 3}], 0 offen offset:64 {OSF}
    buffer_store_dwordx2 {vr(XR + 8, 2)}, v{vO[1]}, s[{sB}:{sB + 3}], 0 offen offset:128 {OSF}
    """)
    if prof:
        a(f"{L('dump')}:\ns_waitcnt vmcnt(0)")
        stamp(a, prof, 10)
        stamp(a, prof, 11)
        a(f"""
        s_memrealtime s[78:79]
        s_waitcnt lgkmcnt(0)
        s_mov_b32 s{sWS + 2}, {WS_SIZE}
        s_sub_u32 s{sWS}, s{sWS}, {cfg['wsoff'] << 20}
        s_subb_u32 s{sWS + 1}, s{sWS + 1}, 0
        s_lshl_b32 s95, s2, 3
        s_add_u32 s95, s95, s{s_w}
        s_lshl_b32 s95, s95, 8
        s_add_u32 s95, s95, {WS_DBG}
        v_writelane_b32 v0, s76, 62
        v_writelane_b32 v0, s78, 63
        v_lshlrev_b32 v{T[0]}, 2, v{vL}
        buffer_store_dword v0, v{T[0]}, {WSD}, s95 offen
        s_waitcnt vmcnt(0)
        """)
    a(f"s_endpgm\n{L('again')}:")
    prime(range(2, 6))
    a(f"s_branch {L('first')}")
    a.lines = head_lines + a.lines + g0_lines
    a(f"{L('end')}:\ns_endpgm")
    return kernel_header(label) + a.text(), kernel_desc(label, 256, 102 if prof else 92), LDS_SIZE


def build(as_list=False, **kw):
    ref = open(f"cdna_kernels/{NAME}.s.ref").read().split("\n")
    head = [ln for ln in ref if ln.startswith(";") and "launch" not in ln.lower() and "grid=" not in ln]
    label = NAME + "_kernel"
    c, d, lds = gen(label, **kw)
    c = c.replace(label + "_", "L_")
    if (kw.get("cfg") or {}).get("rt"):
        c = c.replace("s_memtime", "s_memrealtime")
    out = "\n".join(head) + "\n"
    out += f"; @launch {'kernel=' + label + ' ' if as_list else ''}grid=(256,1,1) block=(512,1,1) lds={lds}\n"
    out += '.amdgcn_target "amdgcn-amd-amdhsa--gfx950"\n.text\n' + c + '.section .rodata,"a"\n' + d
    return out


if __name__ == "__main__":
    import sys
    opts = sys.argv[2:]
    cfg = {o.split("=")[0]: int(o.split("=")[1], 0) for o in opts if "=" in o}
    open(sys.argv[1], "w").write(build(as_list="list" in opts, prof="span" if "span" in opts else "prof" in opts, force_fallback="slow" in opts, cfg=cfg))
```
